```python
import torch

def _softmax(x, axis=-1):
    return torch.softmax(x, dim=axis)
def _gelu(x):
    return torch.nn.functional.gelu(x, approximate="tanh")
def _silu(x):
    return torch.nn.functional.silu(x)
def _sigmoid(x):
    return torch.sigmoid(x)
def _layernorm(x, axis=-1, eps=1e-5):
    m = x.mean(dim=axis, keepdim=True)
    v = x.var(dim=axis, keepdim=True, unbiased=False)
    return (x - m) / torch.sqrt(v + eps)
def _scatter_add(tgt, idx, src, axis=0):
    return tgt.clone().index_add_(axis, idx, src)
def _segment_sum(src, seg, n):
    out = torch.zeros((n,) + src.shape[1:], dtype=src.dtype)
    return out.index_add_(0, seg, src)
def _pad(x, pw):
    flat = tuple(v for pair in reversed(pw) for v in pair)
    return torch.nn.functional.pad(x, flat)

kernel_name = 'gated_mix__compressed_kv_cla__dense_activation_gelu__decode'

def setup_inputs():

    _w = (lambda a: (lambda t: t.to(torch.bfloat16) if t.is_floating_point() else t)(torch.as_tensor(a)))
    def _A_setup():
        B, H, Sq, Sk, D, M = 2, 32, 1, 4096, 128, 576
        Dc = 4 * D
        return {
            "x": _w((lambda *s: torch.randn(*s, dtype=torch.bfloat16) * 0.05)(B, Sq, M)),
            "c_kv": _w((lambda *s: torch.randn(*s, dtype=torch.bfloat16) * 0.8)(B, Sk, Dc)),
            "w_q": _w((lambda *s: torch.randn(*s, dtype=torch.bfloat16) * 6.4)(M, H, D) * (M ** -0.5)),
            "w_uk": _w((lambda *s: torch.randn(*s, dtype=torch.bfloat16) * 6.4)(Dc, H, D) * (Dc ** -0.5)),
            "w_uv": _w((lambda *s: torch.randn(*s, dtype=torch.bfloat16) * 0.8)(Dc, H, D) * (Dc ** -0.5)),
            "w_o": _w((lambda *s: torch.randn(*s, dtype=torch.bfloat16) * 0.8)(H, D, M) * ((H * D) ** -0.5)),
        }
    _A_in = _A_setup()

    def _B_setup():
        B, S, D, F = 2, 1, 576, 4608
        return {
            "x": _w((lambda *s: torch.randn(*s, dtype=torch.bfloat16) * 0.05)(B, S, D)),
            "w1": _w((lambda *s: torch.randn(*s, dtype=torch.bfloat16) * 3.2)(D, F) * (D ** -0.5)),
            "b1": _w((lambda *s: torch.randn(*s, dtype=torch.bfloat16) * 3.2)(F) * 0.01),
            "w2": _w((lambda *s: torch.randn(*s, dtype=torch.bfloat16) * 0.8)(F, D) * (F ** -0.5)),
            "b2": _w((lambda *s: torch.randn(*s, dtype=torch.bfloat16) * 1.6)(D) * 0.01),
        }
    _B_in = _B_setup()

    return {
        "A_x": _A_in["x"],
        "A_c_kv": _A_in["c_kv"],
        "A_w_q": _A_in["w_q"],
        "A_w_uk": _A_in["w_uk"],
        "A_w_uv": _A_in["w_uv"],
        "A_w_o": _A_in["w_o"],
        "B_x": _B_in["x"],
        "B_w1": _B_in["w1"],
        "B_b1": _B_in["b1"],
        "B_w2": _B_in["w2"],
        "B_b2": _B_in["b2"],
        "gate_w": _w((lambda *s: torch.randn(*s, dtype=torch.bfloat16) * 0.05)(576) * 16.0),
    }

def reference(A_x, A_c_kv, A_w_q, A_w_uk, A_w_uv, A_w_o, B_x, B_w1, B_b1, B_w2, B_b2, gate_w):
    def _A_ref(x, c_kv, w_q, w_uk, w_uv, w_o):
        B, Sq, M = x.shape[0], x.shape[1], x.shape[2]
        Sk = c_kv.shape[1]
        H, D = w_q.shape[1], w_q.shape[2]
        q = torch.einsum("bqm,mhd->bhqd", x, w_q)
        k = torch.einsum("bkc,chd->bhkd", c_kv, w_uk)
        v = torch.einsum("bkc,chd->bhkd", c_kv, w_uv)
        scores = torch.einsum("bhqd,bhkd->bhqk", q, k) * (D ** -0.5)
        off = Sk - Sq
        qi = torch.arange(Sq)[:, None]
        kj = torch.arange(Sk)[None, :]
        cmask = kj <= (qi + off)
        scores = torch.where(cmask[None, None], scores, -1e9)
        p = _softmax(scores, axis=-1)
        ctx = torch.einsum("bhqk,bhkd->bhqd", p, v)
        return torch.einsum("bhqd,hdm->bqm", ctx, w_o)

    def _B_ref(x, w1, b1, w2, b2):
        h = torch.einsum("bsd,df->bsf", x, w1) + b1
        h = _gelu(h)
        return torch.einsum("bsf,fd->bsd", h, w2) + b2

    x = A_x
    g = _sigmoid((x * gate_w).sum(-1, keepdims=True))
    a = _A_ref(x, A_c_kv, A_w_q, A_w_uk, A_w_uv, A_w_o)
    b = _B_ref(x, B_w1, B_b1, B_w2, B_b2)
    return g * a + (1 - g) * b
```

```python
import re

REG_RE = re.compile(r'^(-|\|)?(abs\()?([vsa])(\d+|\[(\d+):(\d+)\])\)?\|?$')

def parse_reg(tok):
    tok = tok.strip()
    if tok in ('vcc',): return [('s', 'vcc_lo'), ('s', 'vcc_hi')]
    if tok in ('vcc_lo', 'vcc_hi'): return [('s', tok)]
    if tok == 'exec': return [('s', 'exec_lo'), ('s', 'exec_hi')]
    if tok in ('exec_lo', 'exec_hi'): return [('s', tok)]
    if tok == 'm0': return [('s', 'm0')]
    m = REG_RE.match(tok)
    if not m: return []
    k = m.group(3)
    if m.group(5) is not None:
        return [(k, i) for i in range(int(m.group(5)), int(m.group(6)) + 1)]
    return [(k, int(m.group(4)))]

TRANS = ('v_exp_f32', 'v_log_f32', 'v_rcp_f32', 'v_rsq_f32', 'v_sqrt_f32', 'v_sin_f32', 'v_cos_f32')

class Ins:
    def __init__(self, text):
        self.text = text
        t = text.split(';')[0].strip()
        self.label = t.endswith(':')
        self.op = t.split()[0] if t else ''
        rest = t[len(self.op):].strip()
        ops, depth, cur = [], 0, ''
        for ch in rest:
            if ch == '[': depth += 1
            if ch == ']': depth -= 1
            if ch == ',' and depth == 0:
                ops.append(cur.strip()); cur = ''
            else: cur += ch
        if cur.strip(): ops.append(cur.strip())
        self.mods = ''
        if ops:
            parts = ops[-1].split()
            ops[-1] = parts[0]
            self.mods = ' '.join(parts[1:])
        self.ops = ops
        op = self.op
        self.mfma = op.startswith('v_mfma')
        self.valu = op.startswith('v_') and not self.mfma
        self.vmem = op.startswith('buffer_') or op.startswith('global_')
        self.ds = op.startswith('ds_')
        self.salu = op.startswith('s_')
        self.dpp = '_dpp' in op
        self.sdwa = '_sdwa' in op
        self.trans = any(op.startswith(x) for x in TRANS)
        self.permlane = op.startswith('v_permlane')
        self.readlane = op.startswith('v_readlane') or op.startswith('v_readfirstlane')
        self.branch = op.startswith('s_cbranch') or op.startswith('s_branch') or op == 's_endpgm'
        regs = [parse_reg(o) for o in ops]
        W, R = [], []
        ldsdma = self.vmem and ' lds' in (' ' + self.mods)
        self.ldsdma = ldsdma
        if self.label or not op: pass
        elif self.vmem:
            if 'store' in op or 'wbl2' in op or ldsdma or ('atomic' in op and 'sc0' not in self.mods):
                for r in regs: R += r
            else:
                W += regs[0]
                for r in regs[1:]: R += r
                if 'd16' in op: R += regs[0]
            if ldsdma: R += [('s', 'm0')]
        elif self.ds:
            if op.startswith('ds_read') or 'permute' in op or 'swizzle' in op or '_rtn' in op:
                W += regs[0]
                for r in regs[1:]: R += r
            else:
                for r in regs: R += r
        elif self.permlane:
            W += regs[0] + regs[1]; R += regs[0] + regs[1]
        elif op.startswith('s_cmp') or op.startswith('s_bitcmp') or self.branch or op in ('s_waitcnt', 's_barrier', 's_nop', 's_sleep', 's_setprio'):
            for r in regs: R += r
        elif op.startswith('v_add_co') or op.startswith('v_addc_co') or op.startswith('v_sub_co'):
            W += regs[0] + regs[1]
            for r in regs[2:]: R += r
        else:
            if regs: W += regs[0]
            for r in regs[1:]: R += r
            if op.startswith('v_fmac') or op.startswith('v_dot2c') or self.dpp or self.sdwa or op.startswith('v_writelane'):
                R += regs[0]
            if 'saveexec' in op: W += [('s', 'exec_lo'), ('s', 'exec_hi')]
            if op.startswith('v_cmpx'): W += [('s', 'exec_lo'), ('s', 'exec_hi')]
        self.W, self.R = set(W), set(R)
        if self.mfma:
            self.A, self.B, self.C, self.D = set(regs[1]), set(regs[2]), set(regs[3]), set(regs[0])
            self.passes = 8 if '32x32' in op else 4
        self.widestore = self.vmem and 'store' in op and ('x3' in op or 'x4' in op)
        if self.widestore:
            self.sdata = set(regs[0]) if op.startswith('buffer_') else set(regs[1])
    def states(self):
        if self.label or not self.op or self.op.startswith('.'): return 0
        if self.op == 's_nop': return int(self.ops[0], 0) + 1
        return 1

def vg(s): return {r for r in s if r[0] in 'va'}
def sg(s): return {r for r in s if r[0] == 's'}

def need(p, c):
    n = 0
    if p.valu:
        wv = vg(p.W); ws = sg(p.W)
        if wv:
            if c.mfma and (wv & c.R): n = max(n, 2)
            if c.valu and c.dpp and (wv & c.R): n = max(n, 2)
            if c.permlane and (wv & c.R): n = max(n, 2)
            if c.readlane and (wv & c.R): n = max(n, 1)
            if p.trans and c.valu and (wv & c.R): n = max(n, 1)
            if p.trans and (c.vmem or c.ds) and (wv & c.R): n = max(n, 1)
            if (p.sdwa or 'op_sel' in p.mods) and c.valu and (wv & (c.R | c.W)): n = max(n, 1)
            if p.op.startswith('v_dot') and ((wv & (c.R | c.W)) and not (c.op == p.op)): n = max(n, 3)
        if ws:
            if c.valu and (ws & c.R): n = max(n, 4 if c.readlane or c.op.startswith('v_writelane') else 2)
            if c.valu and c.op.startswith('v_cndmask') and ('s', 'vcc_lo') in ws and len(c.ops) == 3: n = max(n, 2)
            if c.vmem and (ws & c.R): n = max(n, 5)
            if c.salu and (ws & c.R): n = max(n, 1)
            if c.op in ('s_cbranch_vccz', 's_cbranch_vccnz') and ('s', 'vcc_lo') in ws: n = max(n, 1)
            if ('s', 'exec_lo') in ws:
                if c.dpp: n = max(n, 5)
                if c.mfma or c.permlane or c.readlane: n = max(n, 4)
    if p.mfma:
        big = {4: 8, 8: 12}[p.passes]
        if c.mfma:
            if p.D & (c.A | c.B): n = max(n, big)
            if p.D & c.C and not (p.D == c.C and p.passes == c.passes): n = max(n, {4: 6, 8: 10}[p.passes])
            if p.D & c.D and not (p.D == c.C): n = max(n, big)
        elif (c.valu or c.vmem or c.ds) and (p.D & (c.R | c.W)): n = max(n, big)
        if c.valu and (p.C & c.W): n = max(n, {4: 3, 8: 7}[p.passes])
    if p.salu and ('s', 'm0') in p.W and c.ldsdma: n = max(n, 1)
    if p.widestore and (p.sdata & c.W): n = max(n, 2)
    return n

class Asm:
    def __init__(self):
        self.ins = []
        self.nlabel = 0
    def __call__(self, text):
        for line in text.split('\n'):
            if line.strip(): self.ins.append(Ins(line.strip()))
    def label(self, name): self.ins.append(Ins(name + ':'))
    def newlabel(self, base='L'):
        self.nlabel += 1
        return f'{base}_{self.nlabel}'
    def finalize(self):
        out = []
        for c in self.ins:
            if not (c.label or not c.op or c.op.startswith('.')):
                dist = 0; req = 0
                for p in reversed(out):
                    if p.op in ('s_branch', 's_endpgm'): break
                    if dist >= 14: break
                    if not (p.label or p.op.startswith('.')):
                        r = need(p, c) - dist
                        req = max(req, r)
                    dist += p.states()
                while req > 0:
                    k = min(req, 16)
                    out.append(Ins(f's_nop {k-1}')); req -= k
            out.append(c)
        labels = {i.text.split(':')[0].strip(): n for n, i in enumerate(out) if i.label}
        for n, b in enumerate(out):
            if b.branch and b.op != 's_endpgm':
                tgt = labels[b.ops[0]]
                pre = []; d = 0
                for p in reversed(out[:n + 1]):
                    if d >= 14: break
                    if p is not b and p.op in ('s_branch', 's_endpgm'): break
                    pre.append((p, d)); d += p.states()
                d2 = 0
                for c in out[tgt:]:
                    if d2 >= 14: break
                    if not (c.label or c.op.startswith('.')):
                        for p, dp in pre:
                            if p.label or p.op.startswith('.'): continue
                            gap = dp - (p.states() if False else 0) + d2
                            if need(p, c) > gap:
                                raise Exception(f'hazard across branch: {p.text} -> {c.text} need {need(p,c)} have {gap}')
                    if c.op in ('s_branch', 's_endpgm'): break
                    d2 += c.states()
        self.out = out
        return '\n'.join(('' if i.label else '    ') + i.text for i in out) + '\n'
```

```python
import sys, struct, math
from asmlib import Asm

KNAME = "gated_mix__compressed_kv_cla__dense_activation_gelu__decode_kernel"

def f2u(x): return struct.unpack('<I', struct.pack('<f', x))[0]

class P:
    stamp = 0
    nt = "nt"
    pollA_wait = 4
    maxspin = 200000

EPOCH, QP, QL, ST, CX, HP, FP, OP, STAMP = 0, 0x10000, 0x50000, 0x60000, 0x70000, 0x90000, 0x120000, 0x200000, 0x800000
WS_REC = 0x1000000
L_CKV, L_QIMG, L_SX, L_HX, L_GATE = 0, 65536, 98304, 106496, 107008
L_WUK, L_WUV, L_QV, L_AIMG, L_VST, L_RED = 0, 32768, 65536, 66048, 68352, 68480
LDS_BYTES = 107520
pX, pCKV, pWQ, pWUK, pWUV, pWO, pW1, pB1, pW2, pB2, pGW, pOUT, pWS = 4, 6, 8, 10, 12, 14, 18, 20, 22, 24, 26, 28, 32
sWave, sH, sJ, sI, sXcd, sTag = 3, 34, 35, 56, 57, 58
sT = [58, 59, 60, 61]
rA, rB, rC, rWS = 36, 40, 44, 48
sT0, sT1, sT2, sT3 = 52, 53, 54, 55
sCnt = 62
sQ = 64
sStamp = 76
vL, vJ, vG, vM, vL16 = 1, 2, 3, 4, 8
SZ = dict(x=2304, ckv=8388608, wq=4718592, wuk=4194304, wuv=4194304, wo=4718592, w1=5308416, w2=5308416, b1=9216, b2=1152, gw=1152, out=2304)

def build(p=P):
    a = Asm()
    nt = p.nt
    def srd(r, ptr, size):
        a(f"s_mov_b32 s{r}, s{ptr}\ns_mov_b32 s{r+1}, s{ptr+1}\ns_mov_b32 s{r+2}, {size}\ns_mov_b32 s{r+3}, 0x20000")
    def R(r): return f"s[{r}:{r+3}]"
    def V(r, n=4): return f"v[{r}:{r+n-1}]"
    def stamp(k):
        if p.stamp: a(f"s_memrealtime s[{sStamp+2*k}:{sStamp+2*k+1}]")
    def buildA(dst, x, u):
        for r in range(4):
            a(f"v_and_b32_dpp v{dst+r}, v{x}, v{vM+r} quad_perm:[{u},{u},{u},{u}] row_mask:0xf bank_mask:0xf")
    def mfma(d, A, B, c=None):
        a(f"v_mfma_f32_16x16x32_bf16 {V(d)}, {V(A)}, {V(B)}, {V(d) if c is None else c}")
    def tag4(d):
        for k in range(4):
            a(f"v_mov_b32_sdwa v{d+k}, s{sT[k]} dst_sel:BYTE_0 dst_unused:UNUSED_PRESERVE src0_sel:BYTE_0")
    def chk4(acc, d, first=False):
        for k in range(4):
            if first and k == 0: a(f"v_xor_b32 v{acc}, s{sT[0]}, v{d}")
            else: a(f"v_bitop3_b32 v{acc}, v{acc}, v{d+k}, s{sT[k]} bitop3:0xf6")
    def chkv(acc, d, t, first=False):
        for k in range(4):
            if first and k == 0: a(f"v_xor_b32 v{acc}, v{t}, v{d}")
            else: a(f"v_bitop3_b32 v{acc}, v{acc}, v{d+k}, v{t+k} bitop3:0xf6")
    def poll_begin():
        L = a.newlabel('poll')
        a(f"s_mov_b32 s{sCnt}, 0")
        a.label(L)
        return L
    def poll_end(L, acc, mask):
        D = a.newlabel('done')
        a(f"v_and_b32 v{acc}, {mask}, v{acc}\nv_cmp_ne_u32 vcc, 0, v{acc}\ns_add_u32 s{sCnt}, s{sCnt}, 1\ns_cmp_lt_u32 s{sCnt}, {p.maxspin}")
        a(f"s_cbranch_vccz {D}\ns_cbranch_scc1 {L}")
        a.label(D)
    def treduce(r):
        a(f"v_permlane32_swap_b32 v{r}, v{r+2}\nv_permlane32_swap_b32 v{r+1}, v{r+3}")
        a(f"v_add_f32 v{r}, v{r}, v{r+2}\nv_add_f32 v{r+1}, v{r+1}, v{r+3}")
        a(f"v_permlane16_swap_b32 v{r}, v{r+1}\nv_add_f32 v{r}, v{r}, v{r+1}")
    def allred_groups(op, r, t):
        a(f"v_mov_b32 v{t}, v{r}\nv_permlane32_swap_b32 v{r}, v{t}\n{op} v{r}, v{r}, v{t}")
        a(f"v_mov_b32 v{t}, v{r}\nv_permlane16_swap_b32 v{r}, v{t}\n{op} v{r}, v{r}, v{t}")
    def masks():
        a(f"""v_and_b32 v9, 3, v{vL}
        v_lshlrev_b32 v9, 4, v9
        v_mov_b32 v10, 0xffff
        v_mov_b32 v11, 0
        v_lshlrev_b64 v[10:11], v9, v[10:11]
        v_and_b32 v9, 4, v{vL}
        v_cmp_eq_u32 vcc, 0, v9
        v_cndmask_b32 v{vM}, 0, v10, vcc
        v_cndmask_b32 v{vM+1}, 0, v11, vcc
        v_cndmask_b32 v{vM+2}, v10, 0, vcc
        v_cndmask_b32 v{vM+3}, v11, 0, vcc""".replace('v_cndmask_b32 v%d, v10, 0, vcc' % (vM+2), 'v_cndmask_b32_e64 v%d, v10, 0, vcc' % (vM+2)).replace('v_cndmask_b32 v%d, v11, 0, vcc' % (vM+3), 'v_cndmask_b32_e64 v%d, v11, 0, vcc' % (vM+3)))
    def xoff(dst):
        a(f"""v_bfe_u32 v{dst}, v{vL}, 3, 1
        v_mul_u32_u24 v{dst}, 1152, v{dst}
        v_and_b32 v9, 3, v{vL}
        v_lshl_add_u32 v{dst}, v9, 3, v{dst}
        v_lshl_add_u32 v{dst}, v{vG}, 1, v{dst}""")
    def epoch_wait():
        a(f"""s_waitcnt lgkmcnt(0)
        s_add_u32 s{sT[0]}, s{sT[0]}, 1
        s_add_u32 s{sT[1]}, s{sT[0]}, 37
        s_add_u32 s{sT[2]}, s{sT[0]}, 74
        s_add_u32 s{sT[3]}, s{sT[0]}, 111""")
    def lsbtags(t, flip=None):
        a(f"""v_and_b32 v{t}, 7, v{vL}
        v_mul_u32_u24 v{t}, 37, v{t}
        v_add_u32 v{t}, s{sT[0]}, v{t}""")
        if flip: a(f"v_xor_b32 v{t}, {flip}, v{t}")
        a(f"""v_and_b32 v{t}, 0xff, v{t}
        v_lshl_or_b32 v{t}, v{t}, 15, v{t}
        v_lshrrev_b32 v{t+1}, 2, v{t}
        v_lshrrev_b32 v{t+2}, 4, v{t}
        v_lshrrev_b32 v{t+3}, 6, v{t}""")
    def decode_v(dst, src, t):
        a(f"""v_lshrrev_b32 v{dst}, 5, v{src}
        v_lshlrev_b32 v{dst}, 7, v{dst}
        v_and_b32 v{t}, 15, v{src}
        v_lshl_add_u32 v{dst}, v{t}, 3, v{dst}
        v_bfe_u32 v{t}, v{src}, 4, 1
        v_lshl_add_u32 v{dst}, v{t}, 2, v{dst}
        v_and_b32 v{t}, 7, v{src}
        v_lshlrev_b32 v{t}, 3, v{t}
        v_bfe_u32 v{t+1}, v{src}, 3, 1
        v_lshl_add_u32 v{t}, v{t+1}, 2, v{t}
        v_add_u32 v{t}, 512, v{t}
        v_cmp_gt_u32 vcc, 128, v{src}
        v_cndmask_b32 v{dst}, v{t}, v{dst}, vcc""")
    def finish(nst):
        if p.stamp:
            a(f"""s_waitcnt lgkmcnt(0)
            s_lshl_b32 s{sT0}, s2, 3
            s_add_u32 s{sT0}, s{sT0}, s{sWave}
            s_lshl_b32 s{sT0}, s{sT0}, 6
            s_add_u32 s{sT0}, s{sT0}, {STAMP}
            s_mov_b64 exec, 1
            v_mov_b32 v9, 0""")
            for k in range(13):
                a(f"v_mov_b32 v{10+k}, s{sStamp+2*k}\nbuffer_store_dword v{10+k}, v9, {R(rWS)}, s{sT0} offen offset:{4*k}")
        a("s_endpgm")

    def slot_store(d, base_s, wave_is_half, toff):
        tag4(d)
        if wave_is_half: a("s_mov_b32 exec_lo, 0x00ff00ff\ns_mov_b32 exec_hi, 0x00ff00ff")
        a(f"buffer_store_dwordx4 {V(d)}, v{toff}, {R(rWS)}, s{base_s} offen sc1")
        if wave_is_half: a("s_mov_b64 exec, -1")
    def slot_voff(dst, half):
        a(f"""v_lshrrev_b32 v{dst}, 1, v{vG}
        v_mul_u32_u24 v{dst}, 2304, v{dst}
        v_lshl_add_u32 v{dst}, v{vJ}, 4, v{dst}
        v_and_b32 v9, 1, v{vG}""")
        if half:
            a(f"v_lshl_add_u32 v{dst}, v9, 7, v{dst}\nv_add_u32 v{dst}, 2048, v{dst}")
        else:
            a(f"v_lshl_add_u32 v{dst}, v9, 8, v{dst}\ns_lshl_b32 s{sT0}, s{sWave}, 9\nv_add_u32 v{dst}, s{sT0}, v{dst}")

    stamp(0)
    a(f"""s_cmp_ge_u32 s2, 256
    s_cbranch_scc1 L_exit
    s_load_dwordx16 s[4:19], s[0:1], 0
    s_load_dwordx2 s[32:33], s[0:1], 112
    s_load_dwordx8 s[20:27], s[0:1], 64
    s_load_dwordx4 s[28:31], s[0:1], 96
    v_lshrrev_b32 v{vL}, 6, v0
    v_and_b32 v{vJ}, 15, v0
    v_readfirstlane_b32 s{sWave}, v{vL}
    v_and_b32 v{vL}, 63, v0
    v_bfe_u32 v{vG}, v0, 4, 2
    v_lshlrev_b32 v{vL16}, 4, v{vL}
    s_and_b32 s{sXcd}, s2, 7
    s_bfe_u32 s{sT0}, s2, 0x20003
    s_lshl_b32 s{sH}, s{sXcd}, 2
    s_add_u32 s{sH}, s{sH}, s{sT0}
    s_lshr_b32 s{sJ}, s2, 5
    s_bfe_u32 s{sI}, s2, 0x40003""")
    if p.stamp:
        for k in range(1, 13): a(f"s_mov_b32 s{sStamp+2*k}, 0")
    xoff(12)
    a(f"""s_cmp_lg_u32 s{sWave}, 0
    s_cbranch_scc1 L_notw0""")
    vXP, vAP, vWP, vDP, vXF = 13, 20, 92, 164, 168
    a(f"""v_lshlrev_b32 v9, 13, v{vG}
    v_lshl_add_u32 v9, v{vJ}, 4, v9
    s_mul_i32 s{sT0}, s{sJ}, {72*8192}
    s_lshl_b32 s{sT1}, s{sH}, 8
    s_add_u32 s{sT0}, s{sT0}, s{sT1}
    s_mul_i32 s{sT1}, s{sJ}, 144
    s_waitcnt lgkmcnt(0)""")
    srd(rA, pX, SZ['x']); srd(rB, pWQ, SZ['wq'])
    for v in range(5):
        a(f"buffer_load_ushort v{vXP+v}, v12, {R(rA)}, s{sT1} offen offset:{32*v}")
    for t in range(18):
        a(f"buffer_load_dwordx4 {V(vWP+4*t)}, v9, {R(rB)}, s{sT0} offen {nt}")
        if t < 17: a(f"s_add_u32 s{sT0}, s{sT0}, 32768")
    a("s_barrier")
    a(f"s_load_dword s{sT[0]}, s[{pWS}:{pWS+1}], {EPOCH}")
    srd(rWS, pWS, WS_REC)
    stamp(1)
    masks()
    a("s_waitcnt vmcnt(18)")
    for v in range(5): a(f"v_lshl_or_b32 v{vXP+v}, v{vXP+v}, 16, v{vXP+v}")
    for t in range(18): buildA(vAP+4*t, vXP+t//4, t % 4)
    epoch_wait()
    a(f"""s_lshl_b32 s{sT0}, s{sH}, 3
    s_add_u32 s{sT0}, s{sT0}, s{sJ}
    s_lshl_b32 s{sT0}, s{sT0}, 10
    s_add_u32 s{sT0}, s{sT0}, {QP}""")
    for t in range(18):
        a(f"s_waitcnt vmcnt({17-t})")
        mfma(vDP, vAP+4*t, vWP+4*t, '0' if t == 0 else None)
    stamp(2)
    tag4(vDP)
    a(f"buffer_store_dwordx4 {V(vDP)}, v{vL16}, {R(rWS)}, s{sT0} offen sc1")
    a(f"""s_cmp_ge_u32 s2, 128
    s_cbranch_scc1 L_Y_main
    s_branch L_X_main""")

    a.label("L_notw0")
    a("s_waitcnt lgkmcnt(0)")
    a(f"s_load_dword s{sT[0]}, s[{pWS}:{pWS+1}], {EPOCH}")
    srd(rWS, pWS, WS_REC)
    srd(rA, pX, SZ['x'])
    masks()
    a(f"""s_cmp_lg_u32 s{sWave}, 1
    s_cbranch_scc1 L_notw1""")
    srd(rB, pGW, SZ['gw'])
    a(f"""v_and_b32 v9, 31, v{vL}
    v_mul_u32_u24 v9, 36, v9
    v_lshrrev_b32 v10, 5, v{vL}
    v_mul_u32_u24 v11, 1152, v10
    v_add_u32 v11, v11, v9
    s_barrier
    buffer_load_dwordx4 v[20:23], v11, {R(rA)}, 0 offen
    buffer_load_dwordx4 v[24:27], v11, {R(rA)}, 0 offen offset:16
    buffer_load_dword v28, v11, {R(rA)}, 0 offen offset:32
    buffer_load_dwordx4 v[32:35], v9, {R(rB)}, 0 offen
    buffer_load_dwordx4 v[36:39], v9, {R(rB)}, 0 offen offset:16
    buffer_load_dword v40, v9, {R(rB)}, 0 offen offset:32
    v_mov_b32 v13, 0
    v_lshlrev_b32 v10, 2, v10
    v_add_u32 v10, {L_GATE}, v10
    s_waitcnt vmcnt(0)""")
    for k in range(9): a(f"v_dot2_f32_bf16 v13, v{20+k}, v{32+k}, v13")
    for m in ("quad_perm:[1,0,3,2]", "quad_perm:[2,3,0,1]", "row_half_mirror", "row_mirror"):
        a(f"v_add_f32_dpp v13, v13, v13 {m} row_mask:0xf bank_mask:0xf")
    a(f"""v_mov_b32 v14, v13
    v_permlane16_swap_b32 v13, v14
    v_add_f32 v13, v13, v14
    v_mul_f32 v13, {f2u(-math.log2(math.e))}, v13
    v_exp_f32 v13, v13
    v_add_f32 v13, 1.0, v13
    v_rcp_f32 v13, v13
    ds_write_b32 v10, v13""")
    epoch_wait()
    a(f"""s_cmp_ge_u32 s2, 128
    s_cbranch_scc1 L_Y_main
    s_branch L_X_main""")
    a.label("L_notw1")
    a(f"""s_cmp_ge_u32 s{sWave}, 4
    s_cbranch_scc1 L_w47
    s_barrier""")
    epoch_wait()
    a(f"""s_cmp_ge_u32 s2, 128
    s_cbranch_scc1 L_Y_main
    s_branch L_X_main""")
    a.label("L_w47")
    a(f"""s_cmp_ge_u32 s2, 128
    s_cbranch_scc1 L_Y_w47""")

    srd(rB, pWUK, SZ['wuk'])
    a(f"""s_sub_u32 s{sT2}, s{sWave}, 4
    s_lshl_b32 s{sT0}, s{sJ}, 2
    s_add_u32 s{sT0}, s{sT0}, s{sT2}
    s_lshl_b32 s{sT0}, s{sT0}, 18
    s_lshl_b32 s{sT1}, s{sH}, 8
    s_add_u32 s{sT0}, s{sT0}, s{sT1}
    s_lshl_b32 s{sT1}, s{sT2}, 13
    v_xor_b32 v9, v{vJ}, v{vG}
    v_lshlrev_b32 v9, 4, v9
    v_lshl_add_u32 v20, v{vG}, 13, v9
    v_xor_b32 v21, 64, v20
    v_xor_b32 v22, 0x80, v20
    v_xor_b32 v23, 0xc0, v20
    s_mov_b32 m0, s{sT1}
    s_barrier""")
    for n in range(8):
        a(f"buffer_load_dwordx4 v{20+n%4}, {R(rB)}, s{sT0} offen {nt} lds")
        if n < 7: a(f"s_add_u32 m0, m0, 1024\ns_add_u32 s{sT0}, s{sT0}, 32768")
    stamp(1)
    epoch_wait()
    a(f"""s_lshl_b32 s{sT0}, s{sH}, 13
    s_lshl_b32 s{sT1}, s{sT2}, 8
    s_add_u32 s{sT0}, s{sT0}, s{sT1}
    s_add_u32 s{sT0}, s{sT0}, {QP}
    s_add_u32 s{sT1}, s{sT0}, 4096
    v_lshlrev_b32 v24, 10, v{vG}
    v_lshl_add_u32 v24, v{vJ}, 4, v24""")
    a(f"""s_lshr_b32 s{sT3}, s{sT2}, 1
    s_lshl_b32 s{sT3}, s{sT3}, 8
    s_bitcmp1_b32 s{sT2}, 0
    s_cselect_b32 vcc_lo, 8, 0
    s_add_u32 s{sT3}, s{sT3}, vcc_lo
    s_add_u32 s{sT3}, s{sT3}, {L_QV}
    v_lshlrev_b32 v25, 4, v{vJ}
    v_lshl_add_u32 v25, v{vG}, 1, v25
    v_add_u32 v25, s{sT3}, v25""")
    a(f"""s_lshl_b32 s{sT3}, s{sT2}, 13
    v_lshl_add_u32 v26, v{vJ}, 8, v9
    v_add_u32 v26, s{sT3}, v26
    v_xor_b32 v27, 64, v26
    v_xor_b32 v28, 0x80, v26
    v_xor_b32 v29, 0xc0, v26""")
    a(f"""v_lshrrev_b32 v30, 3, v{vJ}
    v_lshlrev_b32 v30, 8, v30
    v_lshl_add_u32 v30, v{vG}, 4, v30
    v_add_u32 v30, {L_QV}, v30""")
    a(f"""v_and_b32 v31, 31, v{vL}
    s_lshl_b32 s{sT3}, s{sT2}, 5
    v_add_u32 v31, s{sT3}, v31
    v_bfe_u32 v32, v31, 3, 3
    v_mul_u32_u24 v32, 37, v32
    v_add_u32 v32, s{sT[0]}, v32
    v_and_b32 v33, 7, v31
    v_lshrrev_b32 v32, v33, v32
    v_and_b32 v32, 1, v32
    v_lshlrev_b32 v32, 16, v32
    v_xor_b32 v33, 0x10000, v32
    v_lshlrev_b32 v31, 1, v31
    v_lshrrev_b32 v34, 5, v{vL}
    v_lshl_add_u32 v31, v34, 15, v31
    s_lshl_b32 s{sT3}, s{sH}, 10
    s_lshl_b32 vcc_lo, s{sJ}, 8
    s_add_u32 s{sT3}, s{sT3}, vcc_lo
    s_add_u32 s{sT3}, s{sT3}, {QL}
    v_mov_b32 v35, 0xfffe0000
    s_waitcnt vmcnt({p.pollA_wait})""")
    stamp(2)
    L = poll_begin()
    a(f"""buffer_load_dwordx4 v[36:39], v24, {R(rWS)}, s{sT0} offen sc1
    buffer_load_dwordx4 v[40:43], v24, {R(rWS)}, s{sT1} offen sc1
    s_waitcnt vmcnt(1)""")
    chk4(44, 36, True)
    a("s_waitcnt vmcnt(0)")
    chk4(44, 40)
    poll_end(L, 44, '0xff')
    stamp(3)
    for tl in range(2):
        for ks in range(4):
            a(f"ds_read_b128 {V(48+16*tl+4*ks)}, v{26+ks} offset:{4096*tl}")
    for k in range(4): a(f"v_add_f32 v{36+k}, v{36+k}, v{40+k}")
    treduce(36)
    a(f"""v_cvt_pk_bf16_f32 v36, v36, v36
    ds_write_b16 v25, v36
    s_waitcnt lgkmcnt(0)
    s_barrier""")
    for ks in range(4): a(f"ds_read_b128 {V(80+4*ks)}, v30 offset:{64*ks}")
    for ks in range(4):
        a(f"s_waitcnt lgkmcnt({3-ks})")
        mfma(96, 80+4*ks, 48+4*ks, '0' if ks == 0 else None)
        mfma(100, 80+4*ks, 64+4*ks, '0' if ks == 0 else None)
    a(f"""s_mov_b32 vcc_lo, 0xffff0000
    s_mov_b32 vcc_hi, 0xffff0000
    v_cndmask_b32 v96, v96, v100, vcc
    v_mul_f32 v96, {f2u(128**-0.5*math.log2(math.e))}, v96
    v_add_u32 v96, v96, v33
    v_and_or_b32 v96, v96, v35, v32
    buffer_store_short_d16_hi v96, v31, {R(rWS)}, s{sT3} offen sc1""")
    stamp(4)
    a("s_branch L_X_b2")

    a.label("L_X_main")
    a("s_barrier")
    a.label("L_X_b2")
    a("s_barrier")
    a(f"""s_cmp_ge_u32 s{sWave}, 5
    s_cbranch_scc1 L_X_wuv""")
    vXF, vAF, vWF, vDF = 13, 20, 60, 100
    srd(rB, pW1, SZ['w1'])
    a(f"s_mul_i32 s{sT1}, s{sI}, 72")
    for v in range(3): a(f"buffer_load_ushort v{vXF+v}, v12, {R(rA)}, s{sT1} offen offset:{32*v}")
    a(f"""s_mul_i32 s{sT0}, s{sI}, {36*9216}
    s_mul_i32 s{sT1}, s{sXcd}, 1152
    s_add_u32 s{sT0}, s{sT0}, s{sT1}
    s_lshl_b32 s{sT1}, s{sWave}, 8
    s_add_u32 s{sT0}, s{sT0}, s{sT1}
    v_mul_u32_u24 v10, 9216, v{vG}
    s_lshl_b32 s{sT2}, s{sXcd}, 4
    s_add_u32 s{sT2}, s{sT2}, s{sI}
    s_mul_i32 s{sT2}, s{sT2}, 4608
    s_add_u32 s{sT2}, s{sT2}, {HP}
    s_cmp_eq_u32 s{sWave}, 4
    s_cbranch_scc1 L_X_f1half
    v_lshl_add_u32 v10, v{vJ}, 4, v10""")
    for t in range(9):
        a(f"buffer_load_dwordx4 {V(vWF+4*t)}, v10, {R(rB)}, s{sT0} offen {nt}")
        if t < 8: a(f"s_add_u32 s{sT0}, s{sT0}, {4*9216}")
    slot_voff(11, False)
    a("s_waitcnt vmcnt(9)")
    for v in range(3): a(f"v_lshl_or_b32 v{vXF+v}, v{vXF+v}, 16, v{vXF+v}")
    for t in range(9): buildA(vAF+4*t, vXF+t//4, t % 4)
    for t in range(9):
        a(f"s_waitcnt vmcnt({8-t})")
        mfma(vDF, vAF+4*t, vWF+4*t, '0' if t == 0 else None)
    slot_store(vDF, sT2, False, 11)
    stamp(5)
    a("s_branch L_X_v")
    a.label("L_X_f1half")
    a(f"""v_and_b32 v9, 7, v{vJ}
    v_lshl_add_u32 v10, v9, 4, v10
    v_lshrrev_b32 v9, 3, v{vJ}
    v_mul_u32_u24 v9, {4*9216}, v9
    v_add_u32 v10, v10, v9""")
    for n in range(5):
        if n == 4: a("s_mov_b32 exec_lo, 0x00ff00ff\ns_mov_b32 exec_hi, 0x00ff00ff")
        a(f"buffer_load_dwordx4 {V(vWF+4*n)}, v10, {R(rB)}, s{sT0} offen {nt}")
        if n < 4: a(f"s_add_u32 s{sT0}, s{sT0}, {8*9216}")
    a("s_mov_b64 exec, -1")
    slot_voff(11, True)
    a("s_waitcnt vmcnt(5)")
    for v in range(3): a(f"v_lshl_or_b32 v{vXF+v}, v{vXF+v}, 16, v{vXF+v}")
    for t in range(9): buildA(vAF+4*t, vXF+t//4, t % 4)
    for n in range(5):
        a(f"s_waitcnt vmcnt({4-n})")
        mfma(vDF, vAF+8*n, vWF+4*n, '0' if n == 0 else None)
        if n < 4: mfma(vDF+4, vAF+8*n+4, vWF+4*n, '0' if n == 0 else None)
    for r in range(4): a(f"v_add_f32_dpp v{vDF+r}, v{vDF+4+r}, v{vDF+r} row_ror:8 row_mask:0xf bank_mask:0xf")
    slot_store(vDF, sT2, True, 11)
    stamp(5)
    a("s_branch L_X_v")
    a.label("L_X_wuv")
    a(f"""s_cmp_eq_u32 s{sWave}, 5
    s_cbranch_scc1 L_X_v""")
    srd(rB, pWUV, SZ['wuv'])
    a(f"""s_sub_u32 s{sT2}, s{sWave}, 6
    s_lshl_b32 s{sT0}, s{sJ}, 20
    s_lshl_b32 s{sT1}, s{sT2}, 16
    s_add_u32 s{sT0}, s{sT0}, s{sT1}
    s_lshl_b32 s{sT1}, s{sH}, 8
    s_add_u32 s{sT0}, s{sT0}, s{sT1}
    s_lshl_b32 s{sT1}, s{sT2}, 14
    s_add_u32 m0, s{sT1}, {L_WUV}
    v_lshlrev_b32 v9, 1, v{vG}
    v_xor_b32 v9, v9, v{vJ}
    v_lshlrev_b32 v9, 4, v9
    v_lshl_add_u32 v20, v{vG}, 17, v9
    v_xor_b32 v21, 0x80, v20""")
    for n in range(16):
        off = (64*(n & 1) + (n >> 1))*8192
        a(f"s_add_u32 s{sT1}, s{sT0}, {off}")
        a(f"buffer_load_dwordx4 v{20+((n>>1)&1)}, {R(rB)}, s{sT1} offen {nt} lds")
        if n < 15: a("s_add_u32 m0, m0, 1024")
    a("s_waitcnt vmcnt(0)")
    stamp(5)
    a.label("L_X_v")
    a("s_barrier")
    vBV = 20
    a(f"""v_bfe_u32 v9, v{vL}, 2, 2
    v_lshl_add_u32 v10, v{vG}, 3, v9
    v_lshlrev_b32 v10, 8, v10
    v_and_b32 v11, 1, v{vG}
    v_lshl_add_u32 v9, v11, 2, v9
    v_lshlrev_b32 v9, 1, v9
    v_bfe_u32 v11, v{vL}, 1, 1
    s_lshl_b32 s{sT0}, s{sWave}, 1
    v_add_u32 v11, s{sT0}, v11
    v_xor_b32 v9, v9, v11
    v_lshl_add_u32 v10, v9, 4, v10
    v_and_b32 v9, 1, v{vL}
    v_lshl_add_u32 v10, v9, 3, v10""")
    for ks in range(4):
        for hf in range(2):
            a(f"ds_read_b64_tr_b16 {V(vBV+4*ks+2*hf, 2)}, v10 offset:{L_WUV + (32*ks+4*hf)*256}")
    a(f"""v_bfe_u32 v9, v{vL}, 3, 1
    v_lshlrev_b32 v36, 15, v9
    v_and_b32 v11, 3, v{vL}
    v_lshl_add_u32 v36, v11, 11, v36
    v_lshl_add_u32 v36, v{vG}, 9, v36
    s_and_b32 s{sT2}, s{sWave}, 3
    s_lshr_b32 s{sT3}, s{sWave}, 2
    s_lshl_b32 s{sT0}, s{sT2}, 13
    s_lshl_b32 s{sT1}, s{sH}, 4
    s_add_u32 s{sT0}, s{sT0}, s{sT1}
    s_add_u32 s{sT0}, s{sT0}, {ST}""")
    a(f"""v_lshlrev_b32 v37, 14, v9
    v_lshl_add_u32 v37, v{vG}, 8, v37
    v_and_b32 v11, 7, v{vL}
    v_lshl_add_u32 v37, v11, 4, v37
    s_lshl_b32 s{sT1}, s{sH}, 2
    s_add_u32 s{sT1}, s{sT1}, s{sJ}
    s_lshl_b32 s{sQ+1}, s{sT1}, 10
    s_add_u32 s{sQ+1}, s{sQ+1}, {CX}
    s_lshl_b32 s{sT1}, s{sT1}, 15
    s_lshl_b32 s{sQ}, s{sT2}, 12
    s_add_u32 s{sT1}, s{sT1}, s{sQ}
    s_lshl_b32 s{sQ}, s{sT3}, 7
    s_add_u32 s{sT1}, s{sT1}, s{sQ}
    s_add_u32 s{sT1}, s{sT1}, {OP}""")
    a(f"v_and_b32 v38, 1, v{vG}\nv_mul_u32_u24 v38, 0xff, v38")
    lsbtags(40, "v38")
    a(f"""v_mul_u32_u24 v38, {4*272}, v9
    v_lshl_add_u32 v38, v11, 4, v38
    v_and_b32 v39, 1, v{vG}
    v_lshl_add_u32 v38, v39, 3, v38
    s_mul_i32 s{sQ}, s{sT2}, 272
    s_lshl_b32 s{sQ+2}, s{sT3}, 7
    s_add_u32 s{sQ}, s{sQ}, s{sQ+2}
    s_add_u32 s{sQ}, s{sQ}, {L_AIMG}
    v_add_u32 v38, s{sQ}, v38""")
    a(f"""v_lshlrev_b32 v44, 5, v9
    s_lshl_b32 s{sQ}, s{sT2}, 2
    s_add_u32 s{sQ}, s{sQ}, {L_VST}
    v_add_u32 v44, s{sQ}, v44
    v_lshlrev_b32 v45, 5, v39
    v_add_u32 v45, {L_VST}, v45""")
    a(f"""v_mul_u32_u24 v46, 272, v11
    v_lshl_add_u32 v46, v{vG}, 4, v46
    v_add_u32 v46, {L_AIMG}, v46""")
    a(f"""v_lshlrev_b32 v47, 9, v{vG}
    v_lshl_add_u32 v47, v{vJ}, 2, v47
    s_lshl_b32 s{sQ}, s{sWave}, 6
    v_add_u32 v47, s{sQ}, v47
    v_and_b32 v48, 3, v{vL}
    v_mul_u32_u24 v48, 37, v48
    v_add_u32 v48, s{sT[0]}, v48""")
    stamp(6)
    L = poll_begin()
    a(f"""buffer_load_dwordx4 v[52:55], v36, {R(rWS)}, s{sT0} offen sc1
    s_waitcnt vmcnt(0)
    v_xor_b32 v49, s{sT[0]}, v54""")
    poll_end(L, 49, '-1')
    stamp(7)
    vOD = 56
    L = poll_begin()
    for u in range(4): a(f"buffer_load_dwordx4 {V(vOD+4*u)}, v37, {R(rWS)}, s{sT1} offen offset:{1024*u} sc1")
    a(f"""v_mov_b32 v50, v52
    v_max_f32_dpp v50, v50, v50 quad_perm:[1,0,3,2] row_mask:0xf bank_mask:0xf
    v_max_f32_dpp v50, v50, v50 quad_perm:[2,3,0,1] row_mask:0xf bank_mask:0xf""")
    allred_groups("v_max_f32", 50, 51)
    a(f"""v_sub_f32 v51, v52, v50
    v_exp_f32 v51, v51
    v_cvt_pk_bf16_f32 v51, v51, v51""")
    for u in range(4): buildA(72+4*u, 51, u)
    a(f"""v_and_b32 v51, 0xffff0000, v51
    v_mul_f32 v51, v51, v53
    v_add_f32_dpp v51, v51, v51 quad_perm:[1,0,3,2] row_mask:0xf bank_mask:0xf
    v_add_f32_dpp v51, v51, v51 quad_perm:[2,3,0,1] row_mask:0xf bank_mask:0xf""")
    allred_groups("v_add_f32", 51, 55)
    for u in range(4):
        a(f"s_waitcnt vmcnt({3-u})")
        mfma(88, 72+4*u, vOD+4*u, '0' if u == 0 else None)
        chkv(49, vOD+4*u, 40, u == 0)
    poll_end(L, 49, '0x10001')
    stamp(8)
    a(f"""ds_write2_b32 v44, v50, v51 offset0:0 offset1:4
    v_cvt_pk_bf16_f32 v88, v88, v89
    v_cvt_pk_bf16_f32 v89, v90, v91
    s_mov_b32 exec_lo, 0x00ff00ff
    s_mov_b32 exec_hi, 0xff00ff00
    ds_write_b64 v38, v[88:89]
    s_mov_b64 exec, -1
    s_waitcnt lgkmcnt(0)
    s_barrier""")
    for ks in range(4): a(f"ds_read_b128 {V(56+4*ks)}, v46 offset:{64*ks}")
    a(f"ds_read_b128 v[72:75], v45\nds_read_b128 v[76:79], v45 offset:16")
    for ks in range(4):
        a(f"s_waitcnt lgkmcnt({5-ks})")
        mfma(88, 56+4*ks, vBV+4*ks, '0' if ks == 0 else None)
    a(f"""s_waitcnt lgkmcnt(0)
    v_max3_f32 v50, v72, v73, v74
    v_max_f32 v50, v50, v75""")
    for r in range(4): a(f"v_sub_f32 v{72+r}, v{72+r}, v50")
    for r in range(4): a(f"v_exp_f32 v{72+r}, v{72+r}")
    a(f"""v_mul_f32 v51, v72, v76
    v_fmac_f32 v51, v73, v77
    v_fmac_f32 v51, v74, v78
    v_fmac_f32 v51, v75, v79
    v_rcp_f32 v51, v51
    v_mul_f32 v50, v72, v88
    v_fmac_f32 v50, v73, v89
    v_fmac_f32 v50, v74, v90
    v_fmac_f32 v50, v75, v91
    v_mul_f32 v50, v50, v51
    v_mov_b32_sdwa v50, v48 dst_sel:BYTE_0 dst_unused:UNUSED_PRESERVE src0_sel:BYTE_0
    s_mov_b32 exec_hi, 0
    buffer_store_dword v50, v47, {R(rWS)}, s{sQ+1} offen sc1
    s_mov_b64 exec, -1""")
    stamp(9)
    a(f"""s_cmp_ge_u32 s2, 72
    s_cbranch_scc1 L_X_end
    s_cmp_ge_u32 s2, 36
    s_cselect_b32 s{sT2}, 1, 0
    s_mul_i32 s{sT3}, s{sT2}, 36
    s_sub_u32 s{sT3}, s2, s{sT3}
    s_mul_i32 s{sT0}, s{sWave}, {16*4608}
    s_mul_i32 s{sT1}, s{sT2}, 2304
    s_add_u32 s{sT0}, s{sT0}, s{sT1}
    s_lshl_b32 s{sT1}, s{sT3}, 6
    s_add_u32 s{sT0}, s{sT0}, s{sT1}
    s_add_u32 s{sT0}, s{sT0}, {FP}
    v_lshrrev_b32 v9, 2, v{vL}
    v_mul_u32_u24 v10, 4608, v9
    v_and_b32 v11, 3, v{vL}
    v_lshl_add_u32 v10, v11, 4, v10
    v_lshl_add_u32 v13, v{vG}, 2, v11
    v_lshlrev_b32 v13, 5, v13
    s_lshl_b32 s{sT1}, s{sWave}, 2
    s_add_u32 s{sT1}, s{sT1}, {L_RED}
    v_add_u32 v13, s{sT1}, v13""")
    srd(rB, pB2, SZ['b2']); srd(rC, pOUT, SZ['out'])
    a(f"""s_lshl_b32 s{sT1}, s{sT3}, 2
    v_add_u32 v14, s{sT1}, v11""")
    decode_v(15, 14, 16)
    a(f"""v_bfe_u32 v14, v{vL}, 2, 2
    v_add_u32 v15, v15, v14
    v_lshlrev_b32 v15, 1, v15
    buffer_load_ushort v16, v15, {R(rB)}, 0 offen
    s_lshl_b32 s{sT1}, s{sT2}, 2
    s_add_u32 s{sT1}, s{sT1}, {L_GATE}
    v_mov_b32 v17, s{sT1}
    ds_read_b32 v17, v17
    v_lshlrev_b32 v18, 5, v{vJ}
    v_add_u32 v18, {L_RED}, v18
    s_mul_i32 s{sT2}, s{sT2}, 1152
    s_waitcnt vmcnt(0) lgkmcnt(0)
    v_lshlrev_b32 v16, 16, v16
    v_sub_f32 v17, 1.0, v17
    v_mul_f32 v16, v16, v17""")
    L = poll_begin()
    a(f"""buffer_load_dwordx4 v[20:23], v10, {R(rWS)}, s{sT0} offen sc1
    s_waitcnt vmcnt(0)""")
    chk4(24, 20, True)
    poll_end(L, 24, '0xff')
    stamp(10)
    treduce(20)
    a(f"""v_add_f32_dpp v20, v20, v20 row_ror:4 row_mask:0xf bank_mask:0xf
    v_add_f32_dpp v20, v20, v20 row_ror:8 row_mask:0xf bank_mask:0xf
    ds_write_b32 v13, v20
    s_waitcnt lgkmcnt(0)
    s_barrier
    s_cmp_lg_u32 s{sWave}, 0
    s_cbranch_scc1 L_X_end
    ds_read_b128 v[20:23], v18
    ds_read_b128 v[24:27], v18 offset:16
    s_waitcnt lgkmcnt(0)
    v_add_f32 v20, v20, v24
    v_add_f32 v21, v21, v25
    v_add_f32 v22, v22, v26
    v_add_f32 v23, v23, v27
    v_add_f32 v20, v20, v21
    v_add_f32 v22, v22, v23
    v_add_f32 v20, v20, v16
    v_add_f32 v20, v20, v22
    v_cvt_pk_bf16_f32 v20, v20, v20
    s_mov_b64 exec, 0xffff
    buffer_store_short v20, v15, {R(rC)}, s{sT2} offen
    s_cmp_lg_u32 s2, 0
    s_cbranch_scc1 L_X_end
    s_mov_b64 exec, 1
    v_mov_b32 v21, s{sT[0]}
    v_mov_b32 v22, 0
    buffer_store_dword v21, v22, {R(rWS)}, 0 offen offset:{EPOCH} sc1""")
    a.label("L_X_end")
    stamp(11)
    finish(12)

    a.label("L_Y_w47")
    srd(rB, pCKV, SZ['ckv'])
    a(f"""s_sub_u32 s{sT0}, s2, 128
    s_lshl_b32 s{sT0}, s{sT0}, 16
    s_sub_u32 s{sT1}, s{sWave}, 4
    s_lshl_b32 s{sT1}, s{sT1}, 14
    s_add_u32 s{sT0}, s{sT0}, s{sT1}
    s_mov_b32 m0, s{sT1}
    s_barrier""")
    for i in range(16):
        f = ((i & 7) << 1) | (i >> 3)
        a(f"v_xor_b32 v{20+(i&1)}, {f*16}, v{vL16}")
        if i % 4 == 0 and i: a(f"s_add_u32 s{sT0}, s{sT0}, 4096\ns_add_u32 m0, m0, 4096")
        a(f"buffer_load_dwordx4 v{20+(i&1)}, {R(rB)}, s{sT0} offen offset:{1024*(i%4)} {nt} lds")
    stamp(1)
    epoch_wait()
    a.label("L_Y_main")
    vQA, vPA, vSF, vPF, vACC = 20, 36, 48, 112, 176
    vTG, vTO = 208, 212
    vQG = 216
    a(f"""s_and_b32 s{sT2}, s{sWave}, 3
    s_lshr_b32 s{sT3}, s{sWave}, 2
    v_and_b32 v9, 7, v{vJ}
    v_lshlrev_b32 v9, 1, v9
    v_lshrrev_b32 v10, 3, v{vJ}
    v_or_b32 v9, v9, v10
    v_lshlrev_b32 v9, 4, v9
    v_lshl_add_u32 v9, v{vG}, 8, v9
    v_lshl_add_u32 v9, v{vJ}, 10, v9
    s_lshl_b32 s{sT0}, s{sT2}, 14
    v_add_u32 v13, s{sT0}, v9
    s_lshl_b32 s{sT0}, s{sT3}, 14
    s_add_u32 s{sT0}, s{sT0}, {L_QIMG}
    v_add_u32 v{vQA}, s{sT0}, v9""")
    for ks in range(1, 16): a(f"v_xor_b32 v{vQA+ks}, {16*ks}, v{vQA}")
    a(f"""v_lshrrev_b32 v9, 2, v{vL}
    v_and_b32 v10, 7, v9
    v_lshlrev_b32 v10, 1, v10
    v_lshrrev_b32 v11, 3, v9
    v_or_b32 v10, v10, v11
    v_bfe_u32 v11, v{vL}, 1, 1
    v_xor_b32 v10, v10, v11
    v_lshlrev_b32 v10, 4, v10
    v_lshl_add_u32 v10, v9, 10, v10
    v_and_b32 v11, 1, v{vL}
    v_lshl_add_u32 v10, v11, 3, v10
    s_lshl_b32 s{sT0}, s{sT2}, 8
    v_add_u32 v{vPA}, s{sT0}, v10""")
    for ct in range(1, 8): a(f"v_xor_b32 v{vPA+ct}, {32*ct}, v{vPA}")
    lsbtags(vTG)
    a(f"s_bitcmp1_b32 s2, 0\ns_cselect_b32 s{sT0}, 0xff, 0")
    lsbtags(vTO, f"s{sT0}")
    a(f"s_mul_i32 s{sT0}, s{sI}, 9\nv_add_u32 v9, s{sT0}, v{vJ}")
    decode_v(14, 9, 10)
    a(f"""s_mul_i32 s{sT0}, s{sXcd}, 576
    v_add_u32 v14, s{sT0}, v14
    v_mul_u32_u24 v15, 1152, v14""")
    for t in range(9): a(f"v_readlane_b32 s{sQ+t}, v15, {t}")
    a(f"""s_bfe_u32 s{sT0}, s2, 0x10006
    s_lshl_b32 s{sT0}, s{sT0}, 15
    s_lshl_b32 s{sT1}, s{sWave}, 12
    s_add_u32 s{sT0}, s{sT0}, s{sT1}
    s_add_u32 s{sT0}, s{sT0}, {QL}
    s_add_u32 s{sT1}, s{sT1}, {L_QIMG}
    s_and_b32 vcc_lo, s{sWave}, 1
    s_lshl_b32 vcc_lo, vcc_lo, 7
    s_bfe_u32 vcc_hi, s{sWave}, 0x10001
    s_lshl_b32 vcc_hi, vcc_hi, 4
    s_or_b32 vcc_lo, vcc_lo, vcc_hi
    v_xor_b32 v16, vcc_lo, v{vL16}
    v_add_u32 v16, s{sT1}, v16
    v_xor_b32 v17, 32, v16
    v_xor_b32 v18, 64, v16
    v_xor_b32 v19, 0x60, v16
    s_waitcnt vmcnt(0)
    s_barrier""")
    stamp(3)
    def qloads():
        for n in range(4): a(f"buffer_load_dwordx4 {V(vQG+4*n)}, v{vL16}, {R(rWS)}, s{sT0} offen offset:{1024*n} sc1")
    qloads()
    for ks in range(16):
        a(f"v_xor_b32 v9, {16*ks}, v13\nds_read_b128 {V(vSF+4*ks)}, v9")
    for ct in range(8):
        for T in range(4):
            a(f"ds_read_b64_tr_b16 {V(vPF+8*ct+2*T, 2)}, v{vPA+ct} offset:{16384*T}")
    Lq = a.newlabel('qchk')
    a(f"s_mov_b32 s{sCnt}, 0\ns_branch {Lq}")
    L = a.newlabel('poll'); a.label(L)
    qloads()
    a.label(Lq)
    for n in range(4):
        a(f"s_waitcnt vmcnt({3-n})")
        chkv(9, vQG+4*n, vTG, n == 0)
    poll_end(L, 9, '0x10001')
    stamp(4)
    for n in range(4): a(f"ds_write_b128 v{16+n}, {V(vQG+4*n)} offset:{1024*n}")
    a(f"""s_lshl_b32 s{sT0}, s{sT3}, 12
    s_add_u32 s{sT0}, s{sT0}, {L_SX}
    v_add_u32 v10, s{sT0}, v{vL16}
    s_lshl_b32 s{sT0}, s{sT2}, 10
    v_add_u32 v11, s{sT0}, v10
    s_waitcnt lgkmcnt(0)
    s_barrier""")
    stamp(5)
    NQ = 8
    for ks in range(NQ): a(f"ds_read_b128 {V(vQG+4*ks)}, v{vQA+ks}")
    for ks in range(16):
        rem = min(15, ks+NQ-1) - ks
        a(f"s_waitcnt lgkmcnt({rem})")
        mfma(vACC, vSF+4*ks, vQG+4*(ks % NQ), '0' if ks == 0 else None)
        if ks + NQ < 16: a(f"ds_read_b128 {V(vQG+4*(ks%NQ))}, v{vQA+ks+NQ}")
    a(f"""s_sub_u32 s{sT0}, s2, 128
    s_lshl_b32 s{sT1}, s{sT0}, 9
    s_lshl_b32 s{sT0}, s{sT0}, 8
    s_lshl_b32 vcc_lo, s{sT3}, 21
    s_add_u32 s{sT0}, s{sT0}, vcc_lo
    s_lshl_b32 vcc_lo, s{sT2}, 15
    s_add_u32 s{sT0}, s{sT0}, vcc_lo
    s_add_u32 s{sT0}, s{sT0}, {OP}
    s_lshl_b32 vcc_lo, s{sT3}, 8
    s_add_u32 s{sT1}, s{sT1}, vcc_lo
    s_add_u32 s{sT1}, s{sT1}, {ST}
    ds_write_b128 v11, {V(vACC)}
    v_lshlrev_b32 v12, 19, v{vG}
    v_lshl_add_u32 v12, v{vJ}, 4, v12
    s_waitcnt lgkmcnt(0)
    s_barrier""")
    stamp(6)
    vS = 48
    for T in range(4): a(f"ds_read_b128 {V(vS+4*T)}, v10 offset:{1024*T}")
    a(f"""s_waitcnt lgkmcnt(2)
    v_max3_f32 v64, v{vS}, v{vS+1}, v{vS+2}
    v_max3_f32 v65, v{vS+3}, v{vS+4}, v{vS+5}
    v_max3_f32 v64, v64, v{vS+6}, v{vS+7}
    s_waitcnt lgkmcnt(0)
    v_max3_f32 v65, v65, v{vS+8}, v{vS+9}
    v_max3_f32 v64, v64, v{vS+10}, v{vS+11}
    v_max3_f32 v65, v65, v{vS+12}, v{vS+13}
    v_max3_f32 v64, v64, v{vS+14}, v{vS+15}
    v_max_f32 v64, v64, v65""")
    allred_groups("v_max_f32", 64, 65)
    for k in range(16): a(f"v_sub_f32 v{vS+k}, v{vS+k}, v64")
    for k in range(16): a(f"v_exp_f32 v{vS+k}, v{vS+k}")
    vP = 72
    for k in range(8): a(f"v_cvt_pk_bf16_f32 v{vP+k}, v{vS+2*k}, v{vS+2*k+1}")
    for ct in range(8): mfma(vACC+4*ct, vP, vPF+8*ct, '0')
    for k in range(8): a(f"v_add_f32 v{vS+k}, v{vS+k}, v{vS+8+k}")
    for k in range(4): a(f"v_add_f32 v{vS+k}, v{vS+k}, v{vS+4+k}")
    a(f"v_add_f32 v{vS}, v{vS}, v{vS+2}\nv_add_f32 v{vS+1}, v{vS+1}, v{vS+3}\nv_add_f32 v65, v{vS}, v{vS+1}")
    allred_groups("v_add_f32", 65, 66)
    a(f"""v_mov_b32 v66, s{sT[0]}
    v_mov_b32 v67, 0
    s_cmp_eq_u32 s{sT2}, 0
    s_cselect_b32 exec_lo, 0xffff, 0
    s_mov_b32 exec_hi, 0
    buffer_store_dwordx4 v[64:67], v{vL16}, {R(rWS)}, s{sT1} offen sc1
    s_mov_b64 exec, -1""")
    for ct in range(8): mfma(vACC+4*ct, vP+4, vPF+8*ct+4)
    a("v_mov_b32 v9, 0x10001")
    for r in range(4):
        o = 80+4*r
        for k in range(4): a(f"v_cvt_pk_bf16_f32 v{o+k}, v{vACC+8*k+r}, v{vACC+8*k+4+r}")
        for k in range(4): a(f"v_bfi_b32 v{o+k}, v9, v{vTO+k}, v{o+k}")
        a(f"buffer_store_dwordx4 {V(o)}, v12, {R(rWS)}, s{sT0} offen sc1")
        if r < 3: a(f"s_add_u32 s{sT0}, s{sT0}, 0x20000")
    stamp(7)
    a(f"""s_cmp_ge_u32 s{sWave}, 5
    s_cbranch_scc1 L_Y_fg""")
    srd(rB, pW2, SZ['w2']); srd(rC, pWO, SZ['wo'])
    vW2, vWO, vA2, vD2 = 100, 136, 20, 60
    a(f"""s_lshl_b32 s{sT0}, s{sH}, 2
    s_add_u32 s{sT0}, s{sT0}, s{sJ}
    s_sub_u32 s{sT0}, s{sT0}, 4
    s_mul_i32 s{sT0}, s{sT0}, {32*1152}
    v_mul_u32_u24 v10, 1152, v{vG}
    s_lshl_b32 s{sT1}, s{sWave}, 8
    v_add_u32 v10, s{sT1}, v10
    s_cmp_eq_u32 s{sWave}, 4
    s_cbranch_scc1 L_Y_half
    v_lshl_add_u32 v10, v{vJ}, 4, v10""")
    for t in range(9): a(f"buffer_load_dwordx4 {V(vW2+4*t)}, v10, {R(rB)}, s{sQ+t} offen {nt}")
    for t in range(8):
        a(f"buffer_load_dwordx4 {V(vWO+4*t)}, v10, {R(rC)}, s{sT0} offen {nt}")
        if t < 7: a(f"s_add_u32 s{sT0}, s{sT0}, {4*1152}")
    slot_voff(11, False)
    a("s_branch L_Y_o2")
    a.label("L_Y_half")
    a(f"""v_and_b32 v9, 7, v{vJ}
    v_lshl_add_u32 v10, v9, 4, v10
    s_mov_b32 vcc_lo, 0xff00ff00
    s_mov_b32 vcc_hi, 0xff00ff00""")
    for n in range(5):
        if n < 4:
            a(f"v_mov_b32 v13, s{sQ+2*n}\nv_mov_b32 v14, s{sQ+2*n+1}\nv_cndmask_b32 v13, v13, v14, vcc\nv_add_u32 v13, v13, v10")
            a(f"buffer_load_dwordx4 {V(vW2+4*n)}, v13, {R(rB)}, 0 offen {nt}")
        else:
            a("s_mov_b32 exec_lo, 0x00ff00ff\ns_mov_b32 exec_hi, 0x00ff00ff")
            a(f"buffer_load_dwordx4 {V(vW2+4*n)}, v10, {R(rB)}, s{sQ+8} offen {nt}")
            a("s_mov_b64 exec, -1")
    a(f"v_lshrrev_b32 v9, 3, v{vJ}\nv_mul_u32_u24 v9, {4*1152}, v9\nv_add_u32 v10, v10, v9")
    for n in range(4):
        a(f"buffer_load_dwordx4 {V(vWO+4*n)}, v10, {R(rC)}, s{sT0} offen {nt}")
        if n < 3: a(f"s_add_u32 s{sT0}, s{sT0}, {8*1152}")
    slot_voff(11, True)
    a.label("L_Y_o2")
    a(f"""v_bfe_u32 v9, v{vL}, 3, 1
    v_and_b32 v13, 3, v{vL}
    v_lshl_add_u32 v13, v13, 2, v{vG}
    v_lshlrev_b32 v13, 2, v13
    v_mul_u32_u24 v14, 192, v9
    v_add_u32 v14, v14, v13
    v_add_u32 v14, {L_HX}, v14
    v_and_b32 v15, 7, v{vL}
    v_lshl_add_u32 v15, v15, 2, v{vG}
    v_lshlrev_b32 v15, 2, v15
    v_lshl_add_u32 v15, v9, 9, v15
    v_lshlrev_b32 v16, 2, v9
    v_add_u32 v16, {L_GATE}, v16
    ds_read_b32 v16, v16
    v_mul_u32_u24 v17, 37, v{vG}
    v_add_u32 v17, s{sT[0]}, v17
    s_lshl_b32 s{sT0}, s{sH}, 12
    s_sub_u32 s{sT1}, s{sJ}, 4
    s_lshl_b32 s{sT1}, s{sT1}, 7
    s_add_u32 s{sT0}, s{sT0}, s{sT1}
    s_add_u32 s{sT0}, s{sT0}, {CX}
    s_sub_u32 s{sT2}, s2, 128
    s_mul_i32 s{sT2}, s{sT2}, 4608
    s_add_u32 s{sT2}, s{sT2}, {FP}
    s_barrier""")
    stamp(8)
    for v in range(3): a(f"ds_read_b32 v{68+v}, v14 offset:{64*v}")
    a("s_waitcnt lgkmcnt(0)")
    for t in range(9): buildA(vA2+4*t, 68+t//4, t % 4)
    a(f"""s_cmp_eq_u32 s{sWave}, 4
    s_cbranch_scc1 L_Y_half2""")
    for t in range(9):
        a(f"s_waitcnt vmcnt({16-t})")
        mfma(vD2, vA2+4*t, vW2+4*t, '0' if t == 0 else None)
    a("s_branch L_Y_o3")
    a.label("L_Y_half2")
    for n in range(5):
        a(f"s_waitcnt vmcnt({8-n})")
        mfma(vD2, vA2+8*n, vW2+4*n, '0' if n == 0 else None)
        if n < 4: mfma(vD2+4, vA2+8*n+4, vW2+4*n, '0' if n == 0 else None)
    a.label("L_Y_o3")
    stamp(9)
    L = poll_begin()
    for cq in range(4): a(f"buffer_load_dword v{72+cq}, v15, {R(rWS)}, s{sT0} offen offset:{1024*cq} sc1")
    a("s_waitcnt vmcnt(0)")
    a("v_xor_b32 v76, v17, v72")
    for cq in range(1, 4): a(f"v_bitop3_b32 v76, v76, v{72+cq}, v17 bitop3:0xf6")
    poll_end(L, 76, '0xff')
    stamp(10)
    a(f"""v_add_f32 v72, v72, v73
    v_add_f32 v74, v74, v75
    v_add_f32 v72, v72, v74
    v_mul_f32 v72, v72, v16
    v_cvt_pk_bf16_f32 v72, v72, v72
    v_mov_b32 v73, v72
    v_mov_b32 v74, v72
    v_mov_b32_dpp v73, v72 row_shr:4 row_mask:0xf bank_mask:0xa
    v_mov_b32_dpp v74, v72 row_shl:4 row_mask:0xf bank_mask:0x5
    s_cmp_eq_u32 s{sWave}, 4
    s_cbranch_scc1 L_Y_half3""")
    for t in range(8):
        buildA(vA2+4*t, 73+t//4, t % 4)
        if t > 0: mfma(vD2, vA2+4*(t-1), vWO+4*(t-1))
    mfma(vD2, vA2+28, vWO+28)
    slot_store(vD2, sT2, False, 11)
    a("s_branch L_Y_end")
    a.label("L_Y_half3")
    for t in range(8):
        buildA(vA2+4*t, 73+t//4, t % 4)
        if t > 0: mfma(vD2+4*((t-1) & 1), vA2+4*(t-1), vWO+4*((t-1)//2))
    mfma(vD2+4, vA2+28, vWO+12)
    for r in range(4): a(f"v_add_f32_dpp v{vD2+r}, v{vD2+4+r}, v{vD2+r} row_ror:8 row_mask:0xf bank_mask:0xf")
    slot_store(vD2, sT2, True, 11)
    a("s_branch L_Y_end")
    a.label("L_Y_fg")
    a(f"""s_cmp_eq_u32 s{sWave}, 7
    s_cbranch_scc1 L_Y_fgend""")
    srd(rB, pB1, SZ['b1'])
    a(f"""s_sub_u32 s{sT2}, s{sWave}, 5
    s_mul_i32 s{sT0}, s{sXcd}, {16*4608}
    s_mul_i32 s{sT1}, s{sT2}, 2304
    s_add_u32 s{sT0}, s{sT0}, s{sT1}
    s_mul_i32 s{sT1}, s{sI}, 144
    s_add_u32 s{sT0}, s{sT0}, s{sT1}
    s_add_u32 s{sT0}, s{sT0}, {HP}
    s_add_u32 s{sQ}, s{sT0}, {4*4608}
    s_add_u32 s{sQ+1}, s{sT0}, {8*4608}
    s_add_u32 s{sQ+2}, s{sT0}, {12*4608}
    v_mul_u32_u24 v10, 4608, v{vG}
    v_lshl_add_u32 v10, v{vJ}, 4, v10
    v_add_u32 v14, v14, v{vG}
    v_lshlrev_b32 v14, 1, v14
    s_lshl_b32 s{sT1}, s{sT2}, 2
    s_add_u32 s{sT1}, s{sT1}, {L_GATE}
    v_mov_b32 v16, s{sT1}
    ds_read_b32 v16, v16
    s_mul_i32 s{sT1}, s{sT2}, 192
    s_add_u32 s{sT1}, s{sT1}, {L_HX}
    v_lshl_add_u32 v17, v{vJ}, 2, v{vG}
    v_lshlrev_b32 v17, 2, v17
    v_add_u32 v17, s{sT1}, v17
    s_mov_b32 exec_lo, 0x01ff01ff
    s_mov_b32 exec_hi, 0x01ff01ff
    buffer_load_ushort v15, v14, {R(rB)}, 0 offen""")
    L = poll_begin()
    for k, s in enumerate((sT0, sQ, sQ+1, sQ+2)):
        a(f"buffer_load_dwordx4 {V(20+4*k)}, v10, {R(rWS)}, s{s} offen sc1")
    for k in range(4):
        a(f"s_waitcnt vmcnt({3-k})")
        chk4(36, 20+4*k, k == 0)
    poll_end(L, 36, '0xff')
    stamp(8)
    a("s_mov_b64 exec, -1")
    for k in range(4): a(f"v_add_f32 v{20+k}, v{20+k}, v{24+k}\nv_add_f32 v{28+k}, v{28+k}, v{32+k}")
    for k in range(4): a(f"v_add_f32 v{20+k}, v{20+k}, v{28+k}")
    treduce(20)
    c1 = -2*math.sqrt(2/math.pi)*math.log2(math.e)
    a(f"""v_lshlrev_b32 v15, 16, v15
    v_add_f32 v20, v20, v15
    v_mul_f32 v21, v20, v20
    v_mov_b32 v22, {f2u(c1)}
    v_fmac_f32 v22, {f2u(c1*0.044715)}, v21
    v_mul_f32 v21, v22, v20
    v_exp_f32 v21, v21
    v_add_f32 v21, 1.0, v21
    v_rcp_f32 v21, v21
    s_waitcnt lgkmcnt(0)
    v_sub_f32 v16, 1.0, v16
    v_mul_f32 v20, v20, v21
    v_mul_f32 v20, v20, v16
    v_cvt_pk_bf16_f32 v20, v20, v20
    s_mov_b32 exec_lo, 0x01ff01ff
    s_mov_b32 exec_hi, 0x01ff01ff
    ds_write_b32 v17, v20
    s_mov_b64 exec, -1
    s_waitcnt lgkmcnt(0)""")
    a.label("L_Y_fgend")
    a("s_barrier")
    a.label("L_Y_end")
    stamp(11)
    finish(12)
    a.label("L_exit")
    a("s_endpgm")
    return a.finalize()

HEADER = open('gated_mix__compressed_kv_cla__dense_activation_gelu__decode.s.ref').read().split('; Override')[0]

def emit(path, p=P):
    body = build(p)
    s = HEADER + f"""; @launch grid=(256,1,1) block=(512,1,1) lds={LDS_BYTES}
.amdgcn_target "amdgcn-amd-amdhsa--gfx950"
.text
.globl {KNAME}
.p2align 8
.type {KNAME},@function
{KNAME}:
{body}.section .rodata,"a"
.p2align 6
.amdhsa_kernel {KNAME}
  .amdhsa_next_free_vgpr 256
  .amdhsa_next_free_sgpr 102
  .amdhsa_accum_offset 256
  .amdhsa_group_segment_fixed_size 0
  .amdhsa_kernarg_size 120
  .amdhsa_user_sgpr_count 2
  .amdhsa_user_sgpr_kernarg_segment_ptr 1
  .amdhsa_system_sgpr_workgroup_id_x 1
.end_amdhsa_kernel
"""
    open(path, 'w').write(s)

if __name__ == '__main__':
    out = sys.argv[1]
    for kv in sys.argv[2:]:
        k, v = kv.split('=')
        setattr(P, k, type(getattr(P, k))(v))
    emit(out)
```

```python
import sys, struct, math
from asmlib import Asm

KNAME = "gated_mix__compressed_kv_cla__dense_activation_gelu__decode_kernel"

def f2u(x): return struct.unpack('<I', struct.pack('<f', x))[0]

class P:
    stamp = 0
    nt = "nt"
    pollA_wait = 4
    maxspin = 200000
    prefetch = 1

EPOCH, QP, QL, ST, CX, HP, FP, OP, STAMP = 0, 0x10000, 0x50000, 0x60000, 0x70000, 0x90000, 0x120000, 0x200000, 0x800000
WS_REC = 0x1000000
L_CKV, L_QIMG, L_SX, L_HX, L_GATE = 0, 65536, 98304, 106496, 107008
L_WUK, L_WUV, L_QV, L_AIMG, L_VST, L_RED = 0, 32768, 65536, 66048, 68352, 68480
LDS_BYTES = 107520
pX, pCKV, pWQ, pWUK, pWUV, pWO, pW1, pB1, pW2, pB2, pGW, pOUT, pWS = 4, 6, 8, 10, 12, 14, 18, 20, 22, 24, 26, 28, 32
sWave, sH, sJ, sI, sXcd, sTag = 3, 34, 35, 56, 57, 58
sT = [58, 59, 60, 61]
rA, rB, rC, rWS = 36, 40, 44, 48
sT0, sT1, sT2, sT3 = 52, 53, 54, 55
sCnt = 62
sQ = 64
sStamp = 76
vL, vJ, vG, vM, vL16 = 1, 2, 3, 4, 8
SZ = dict(x=2304, ckv=8388608, wq=4718592, wuk=4194304, wuv=4194304, wo=4718592, w1=5308416, w2=5308416, b1=9216, b2=1152, gw=1152, out=2304)

def build(p=P):
    a = Asm()
    nt = p.nt
    def srd(r, ptr, size):
        a(f"s_mov_b32 s{r}, s{ptr}\ns_mov_b32 s{r+1}, s{ptr+1}\ns_mov_b32 s{r+2}, {size}\ns_mov_b32 s{r+3}, 0x20000")
    def R(r): return f"s[{r}:{r+3}]"
    def V(r, n=4): return f"v[{r}:{r+n-1}]"
    def stamp(k):
        if p.stamp: a(f"s_memrealtime s[{sStamp+2*k}:{sStamp+2*k+1}]")
    def buildA(dst, x, u):
        for r in range(4):
            a(f"v_and_b32_dpp v{dst+r}, v{x}, v{vM+r} quad_perm:[{u},{u},{u},{u}] row_mask:0xf bank_mask:0xf")
    def mfma(d, A, B, c=None):
        a(f"v_mfma_f32_16x16x32_bf16 {V(d)}, {V(A)}, {V(B)}, {V(d) if c is None else c}")
    def tag4(d):
        for k in range(4):
            a(f"v_mov_b32_sdwa v{d+k}, s{sT[k]} dst_sel:BYTE_0 dst_unused:UNUSED_PRESERVE src0_sel:BYTE_0")
    def chk4(acc, d, first=False):
        for k in range(4):
            if first and k == 0: a(f"v_xor_b32 v{acc}, s{sT[0]}, v{d}")
            else: a(f"v_bitop3_b32 v{acc}, v{acc}, v{d+k}, s{sT[k]} bitop3:0xf6")
    def chkv(acc, d, t, first=False):
        for k in range(4):
            if first and k == 0: a(f"v_xor_b32 v{acc}, v{t}, v{d}")
            else: a(f"v_bitop3_b32 v{acc}, v{acc}, v{d+k}, v{t+k} bitop3:0xf6")
    def poll_begin():
        L = a.newlabel('poll')
        a(f"s_mov_b32 s{sCnt}, 0")
        a.label(L)
        return L
    def poll_end(L, acc, mask):
        D = a.newlabel('done')
        a(f"v_and_b32 v{acc}, {mask}, v{acc}\nv_cmp_ne_u32 vcc, 0, v{acc}\ns_add_u32 s{sCnt}, s{sCnt}, 1\ns_cmp_lt_u32 s{sCnt}, {p.maxspin}")
        a(f"s_cbranch_vccz {D}\ns_cbranch_scc1 {L}")
        a.label(D)
    def treduce(r):
        a(f"v_permlane32_swap_b32 v{r}, v{r+2}\nv_permlane32_swap_b32 v{r+1}, v{r+3}")
        a(f"v_add_f32 v{r}, v{r}, v{r+2}\nv_add_f32 v{r+1}, v{r+1}, v{r+3}")
        a(f"v_permlane16_swap_b32 v{r}, v{r+1}\nv_add_f32 v{r}, v{r}, v{r+1}")
    def allred_groups(op, r, t):
        a(f"v_mov_b32 v{t}, v{r}\nv_permlane32_swap_b32 v{r}, v{t}\n{op} v{r}, v{r}, v{t}")
        a(f"v_mov_b32 v{t}, v{r}\nv_permlane16_swap_b32 v{r}, v{t}\n{op} v{r}, v{r}, v{t}")
    def masks():
        a(f"""v_and_b32 v9, 3, v{vL}
        v_lshlrev_b32 v9, 4, v9
        v_mov_b32 v10, 0xffff
        v_mov_b32 v11, 0
        v_lshlrev_b64 v[10:11], v9, v[10:11]
        v_and_b32 v9, 4, v{vL}
        v_cmp_eq_u32 vcc, 0, v9
        v_cndmask_b32 v{vM}, 0, v10, vcc
        v_cndmask_b32 v{vM+1}, 0, v11, vcc
        v_cndmask_b32 v{vM+2}, v10, 0, vcc
        v_cndmask_b32 v{vM+3}, v11, 0, vcc""".replace('v_cndmask_b32 v%d, v10, 0, vcc' % (vM+2), 'v_cndmask_b32_e64 v%d, v10, 0, vcc' % (vM+2)).replace('v_cndmask_b32 v%d, v11, 0, vcc' % (vM+3), 'v_cndmask_b32_e64 v%d, v11, 0, vcc' % (vM+3)))
    def xoff(dst):
        a(f"""v_bfe_u32 v{dst}, v{vL}, 3, 1
        v_mul_u32_u24 v{dst}, 1152, v{dst}
        v_and_b32 v9, 3, v{vL}
        v_lshl_add_u32 v{dst}, v9, 3, v{dst}
        v_lshl_add_u32 v{dst}, v{vG}, 1, v{dst}""")
    def epoch_wait():
        a(f"""s_waitcnt lgkmcnt(0)
        s_add_u32 s{sT[0]}, s{sT[0]}, 1
        s_add_u32 s{sT[1]}, s{sT[0]}, 37
        s_add_u32 s{sT[2]}, s{sT[0]}, 74
        s_add_u32 s{sT[3]}, s{sT[0]}, 111""")
    def lsbtags(t, flip=None):
        a(f"""v_and_b32 v{t}, 7, v{vL}
        v_mul_u32_u24 v{t}, 37, v{t}
        v_add_u32 v{t}, s{sT[0]}, v{t}""")
        if flip: a(f"v_xor_b32 v{t}, {flip}, v{t}")
        a(f"""v_and_b32 v{t}, 0xff, v{t}
        v_lshl_or_b32 v{t}, v{t}, 15, v{t}
        v_lshrrev_b32 v{t+1}, 2, v{t}
        v_lshrrev_b32 v{t+2}, 4, v{t}
        v_lshrrev_b32 v{t+3}, 6, v{t}""")
    def decode_v(dst, src, t):
        a(f"""v_lshrrev_b32 v{dst}, 5, v{src}
        v_lshlrev_b32 v{dst}, 7, v{dst}
        v_and_b32 v{t}, 15, v{src}
        v_lshl_add_u32 v{dst}, v{t}, 3, v{dst}
        v_bfe_u32 v{t}, v{src}, 4, 1
        v_lshl_add_u32 v{dst}, v{t}, 2, v{dst}
        v_and_b32 v{t}, 7, v{src}
        v_lshlrev_b32 v{t}, 3, v{t}
        v_bfe_u32 v{t+1}, v{src}, 3, 1
        v_lshl_add_u32 v{t}, v{t+1}, 2, v{t}
        v_add_u32 v{t}, 512, v{t}
        v_cmp_gt_u32 vcc, 128, v{src}
        v_cndmask_b32 v{dst}, v{t}, v{dst}, vcc""")
    def finish(nst):
        if p.stamp:
            a(f"""s_waitcnt lgkmcnt(0)
            s_lshl_b32 s{sT0}, s2, 3
            s_add_u32 s{sT0}, s{sT0}, s{sWave}
            s_lshl_b32 s{sT0}, s{sT0}, 6
            s_add_u32 s{sT0}, s{sT0}, {STAMP}
            s_mov_b64 exec, 1
            v_mov_b32 v9, 0""")
            for k in range(13):
                a(f"v_mov_b32 v{10+k}, s{sStamp+2*k}\nbuffer_store_dword v{10+k}, v9, {R(rWS)}, s{sT0} offen offset:{4*k}")
        if p.stamp == 2:
            Ls = a.newlabel('nosum')
            a(f"""s_lshl_b32 s{sT0}, s2, 3
            s_add_u32 s{sT0}, s{sT0}, s{sWave}
            s_cmp_eq_u32 s{sT0}, {4 if nst == 'X' else 1024}
            s_cbranch_scc0 {Ls}""")
            srd(rB, 30, 256)
            for n, k in enumerate((1,2,3,4,7,8,9,10) if nst == 'X' else (1,2,3,4,7,8,10,11)):
                a(f"s_sub_u32 s{sT1}, s{sStamp+2*k}, s{sStamp}\nv_mov_b32 v{30+n}, s{sT1}\nbuffer_store_dword v{30+n}, v9, {R(rB)}, 0 offen offset:{4*n + (0 if nst == 'X' else 32)}")
            a.label(Ls)
        a("s_endpgm")

    def slot_store(d, base_s, wave_is_half, toff):
        tag4(d)
        if wave_is_half: a("s_mov_b32 exec_lo, 0x00ff00ff\ns_mov_b32 exec_hi, 0x00ff00ff")
        a(f"buffer_store_dwordx4 {V(d)}, v{toff}, {R(rWS)}, s{base_s} offen sc1")
        if wave_is_half: a("s_mov_b64 exec, -1")
    def slot_voff(dst, half):
        a(f"""v_lshrrev_b32 v{dst}, 1, v{vG}
        v_mul_u32_u24 v{dst}, 2304, v{dst}
        v_lshl_add_u32 v{dst}, v{vJ}, 4, v{dst}
        v_and_b32 v9, 1, v{vG}""")
        if half:
            a(f"v_lshl_add_u32 v{dst}, v9, 7, v{dst}\nv_add_u32 v{dst}, 2048, v{dst}")
        else:
            a(f"v_lshl_add_u32 v{dst}, v9, 8, v{dst}\ns_lshl_b32 s{sT0}, s{sWave}, 9\nv_add_u32 v{dst}, s{sT0}, v{dst}")

    def common_late():
        a(f"s_load_dword s{sT[0]}, s[{pWS}:{pWS+1}], {EPOCH}")
        srd(rWS, pWS, WS_REC)
        masks()
    stamp(0)
    a(f"""s_load_dwordx16 s[4:19], s[0:1], 0
    s_load_dwordx2 s[32:33], s[0:1], 112
    s_load_dwordx8 s[20:27], s[0:1], 64
    s_load_dwordx4 s[28:31], s[0:1], 96
    v_lshrrev_b32 v{vL}, 6, v0
    v_and_b32 v{vJ}, 15, v0
    v_readfirstlane_b32 s{sWave}, v{vL}
    v_and_b32 v{vL}, 63, v0
    v_bfe_u32 v{vG}, v0, 4, 2
    v_lshlrev_b32 v{vL16}, 4, v{vL}
    s_and_b32 s{sXcd}, s2, 7
    s_bfe_u32 s{sT0}, s2, 0x20003
    s_lshl_b32 s{sH}, s{sXcd}, 2
    s_add_u32 s{sH}, s{sH}, s{sT0}
    s_lshr_b32 s{sJ}, s2, 5
    s_bfe_u32 s{sI}, s2, 0x40003
    s_cmp_ge_u32 s{sJ}, 8
    s_cbranch_scc1 L_exit
    s_cmp_ge_u32 s{sWave}, 4
    s_cbranch_scc1 L_w47
    s_cmp_lg_u32 s{sWave}, 0
    s_cbranch_scc1 L_w123""")
    def zstamps():
        if p.stamp:
            for k in range(1, 13): a(f"s_mov_b32 s{sStamp+2*k}, 0")
    vXP, vAP, vWP, vDP, vXF = 13, 20, 92, 164, 168
    a(f"""v_lshlrev_b32 v10, 13, v{vG}
    v_lshl_add_u32 v10, v{vJ}, 4, v10
    s_mul_i32 s{sT0}, s{sJ}, {72*8192}
    s_lshl_b32 s{sT1}, s{sH}, 8
    s_add_u32 s{sT0}, s{sT0}, s{sT1}
    s_mul_i32 s{sT1}, s{sJ}, 144
    s_mov_b32 s{sT2}, 32768
    s_mov_b32 s{rA+2}, {SZ['x']}
    s_mov_b32 s{rA+3}, 0x20000
    s_mov_b32 s{rB+2}, {SZ['wq']}
    s_mov_b32 s{rB+3}, 0x20000""")
    xoff(12)
    zstamps()
    a(f"""s_waitcnt lgkmcnt(0)
    s_mov_b64 s[{rA}:{rA+1}], s[{pX}:{pX+1}]
    s_mov_b64 s[{rB}:{rB+1}], s[{pWQ}:{pWQ+1}]""")
    for v in range(5):
        a(f"buffer_load_ushort v{vXP+v}, v12, {R(rA)}, s{sT1} offen offset:{32*v}")
    for t in range(18):
        a(f"buffer_load_dwordx4 {V(vWP+4*t)}, v10, {R(rB)}, s{sT0} offen {nt}")
        if t < 17: a(f"s_add_u32 s{sT0}, s{sT0}, s{sT2}")
    stamp(1)
    a("s_barrier")
    common_late()
    a("s_waitcnt vmcnt(18)")
    for v in range(5): a(f"v_lshl_or_b32 v{vXP+v}, v{vXP+v}, 16, v{vXP+v}")
    for t in range(18): buildA(vAP+4*t, vXP+t//4, t % 4)
    epoch_wait()
    a(f"""s_lshl_b32 s{sT0}, s{sH}, 3
    s_add_u32 s{sT0}, s{sT0}, s{sJ}
    s_lshl_b32 s{sT0}, s{sT0}, 10
    s_add_u32 s{sT0}, s{sT0}, {QP}""")
    for t in range(18):
        a(f"s_waitcnt vmcnt({17-t})")
        mfma(vDP, vAP+4*t, vWP+4*t, '0' if t == 0 else None)
    tag4(vDP)
    a(f"buffer_store_dwordx4 {V(vDP)}, v{vL16}, {R(rWS)}, s{sT0} offen sc1")
    stamp(2)
    a(f"""s_barrier
    s_cmp_ge_u32 s2, 128
    s_cbranch_scc1 L_Y_main
    s_branch L_X_main""")

    a.label("L_w123")
    zstamps()
    if p.prefetch:
        a(f"""s_cmp_lg_u32 s{sWave}, 2
        s_cbranch_scc1 L_nopf
        s_getpc_b64 s[{sT0}:{sT1}]
L_pc:
        s_sub_u32 s{sT0}, s{sT0}, L_pc-{KNAME}
        s_subb_u32 s{sT1}, s{sT1}, 0
        s_lshr_b32 s{sT2}, s2, 3
        s_lshl_b32 s{sT2}, s{sT2}, 9
        v_add_u32 v9, s{sT2}, v{vL16}
        v_cmp_gt_u32 vcc, L_exit-{KNAME}, v9
        s_and_b32 exec_lo, vcc_lo, 0x01010101
        s_mov_b32 exec_hi, 0
        s_cbranch_execz L_pfdone
        global_load_dword v20, v9, s[{sT0}:{sT1}]
L_pfdone:
        s_mov_b64 exec, -1
L_nopf:""")
    xoff(12)
    a("s_waitcnt lgkmcnt(0)")
    srd(rA, pX, SZ['x'])
    a("s_barrier")
    common_late()
    a(f"""s_cmp_lg_u32 s{sWave}, 1
    s_cbranch_scc1 L_notw1""")
    srd(rB, pGW, SZ['gw'])
    a(f"""v_and_b32 v9, 31, v{vL}
    v_mul_u32_u24 v9, 36, v9
    v_lshrrev_b32 v10, 5, v{vL}
    v_mul_u32_u24 v11, 1152, v10
    v_add_u32 v11, v11, v9
    buffer_load_dwordx4 v[20:23], v11, {R(rA)}, 0 offen
    buffer_load_dwordx4 v[24:27], v11, {R(rA)}, 0 offen offset:16
    buffer_load_dword v28, v11, {R(rA)}, 0 offen offset:32
    buffer_load_dwordx4 v[32:35], v9, {R(rB)}, 0 offen
    buffer_load_dwordx4 v[36:39], v9, {R(rB)}, 0 offen offset:16
    buffer_load_dword v40, v9, {R(rB)}, 0 offen offset:32
    v_mov_b32 v13, 0
    v_lshlrev_b32 v10, 2, v10
    v_add_u32 v10, {L_GATE}, v10
    s_barrier
    s_waitcnt vmcnt(0)""")
    for k in range(9): a(f"v_dot2_f32_bf16 v13, v{20+k}, v{32+k}, v13")
    for m in ("quad_perm:[1,0,3,2]", "quad_perm:[2,3,0,1]", "row_half_mirror", "row_mirror"):
        a(f"v_add_f32_dpp v13, v13, v13 {m} row_mask:0xf bank_mask:0xf")
    a(f"""v_mov_b32 v14, v13
    v_permlane16_swap_b32 v13, v14
    v_add_f32 v13, v13, v14
    v_mul_f32 v13, {f2u(-math.log2(math.e))}, v13
    v_exp_f32 v13, v13
    v_add_f32 v13, 1.0, v13
    v_rcp_f32 v13, v13
    ds_write_b32 v10, v13
    s_branch L_w123j""")
    a.label("L_notw1")
    a("s_barrier\ns_waitcnt vmcnt(0)")
    a.label("L_w123j")
    epoch_wait()
    a(f"""s_cmp_ge_u32 s2, 128
    s_cbranch_scc1 L_Y_main
    s_branch L_X_main""")

    a.label("L_w47")
    zstamps()
    a(f"""s_sub_u32 s{sT2}, s{sWave}, 4
    s_mov_b32 s{rB+3}, 0x20000
    s_cmp_lt_u32 s2, 128
    s_cbranch_scc1 L_X_w47""")
    a(f"""s_sub_u32 s{sT0}, s2, 128
    s_lshl_b32 s{sT0}, s{sT0}, 16
    s_lshl_b32 s{sT1}, s{sT2}, 14
    s_add_u32 s{sT0}, s{sT0}, s{sT1}
    s_mov_b32 m0, s{sT1}
    s_mov_b32 s{rB+2}, {SZ['ckv']}
    s_waitcnt lgkmcnt(0)
    s_mov_b64 s[{rB}:{rB+1}], s[{pCKV}:{pCKV+1}]
    s_barrier""")
    for i in range(16):
        f = ((i & 7) << 1) | (i >> 3)
        a(f"v_xor_b32 v{20+(i&1)}, {f*16}, v{vL16}")
        if i % 4 == 0 and i: a(f"s_add_u32 s{sT0}, s{sT0}, 4096\ns_add_u32 m0, m0, 4096")
        if i == 4:
            common_late()
            a("s_barrier")
        a(f"buffer_load_dwordx4 v{20+(i&1)}, {R(rB)}, s{sT0} offen offset:{1024*(i%4)} {nt} lds")
    stamp(1)
    epoch_wait()
    a("s_branch L_Y_main")

    a.label("L_X_w47")
    a(f"""s_lshl_b32 s{sT0}, s{sJ}, 2
    s_add_u32 s{sT0}, s{sT0}, s{sT2}
    s_lshl_b32 s{sT0}, s{sT0}, 18
    s_lshl_b32 s{sT1}, s{sH}, 8
    s_add_u32 s{sT0}, s{sT0}, s{sT1}
    s_lshl_b32 s{sT1}, s{sT2}, 13
    v_xor_b32 v19, v{vJ}, v{vG}
    v_lshlrev_b32 v19, 4, v19
    v_lshl_add_u32 v20, v{vG}, 13, v19
    v_xor_b32 v21, 64, v20
    v_xor_b32 v22, 0x80, v20
    v_xor_b32 v23, 0xc0, v20
    s_mov_b32 m0, s{sT1}
    s_mov_b32 s{rB+2}, {SZ['wuk']}
    s_waitcnt lgkmcnt(0)
    s_mov_b64 s[{rB}:{rB+1}], s[{pWUK}:{pWUK+1}]
    s_barrier""")
    for n in range(4):
        a(f"buffer_load_dwordx4 v{20+n%4}, {R(rB)}, s{sT0} offen {nt} lds")
        a(f"s_add_u32 m0, m0, 1024\ns_add_u32 s{sT0}, s{sT0}, 32768")
    a(f"s_mov_b32 s{sQ}, s{sT0}")
    common_late()
    srd(rA, pX, SZ['x'])
    xoff(12)
    a("v_mov_b32 v9, v19")
    epoch_wait()
    a(f"""s_lshl_b32 s{sT0}, s{sH}, 13
    s_lshl_b32 s{sT1}, s{sT2}, 8
    s_add_u32 s{sT0}, s{sT0}, s{sT1}
    s_add_u32 s{sT0}, s{sT0}, {QP}
    s_add_u32 s{sT1}, s{sT0}, 4096
    v_lshlrev_b32 v24, 10, v{vG}
    v_lshl_add_u32 v24, v{vJ}, 4, v24""")
    a(f"""s_lshr_b32 s{sT3}, s{sT2}, 1
    s_lshl_b32 s{sT3}, s{sT3}, 8
    s_bitcmp1_b32 s{sT2}, 0
    s_cselect_b32 vcc_lo, 8, 0
    s_add_u32 s{sT3}, s{sT3}, vcc_lo
    s_add_u32 s{sT3}, s{sT3}, {L_QV}
    v_lshlrev_b32 v25, 4, v{vJ}
    v_lshl_add_u32 v25, v{vG}, 1, v25
    v_add_u32 v25, s{sT3}, v25""")
    a(f"""s_lshl_b32 s{sT3}, s{sT2}, 13
    v_lshl_add_u32 v26, v{vJ}, 8, v9
    v_add_u32 v26, s{sT3}, v26
    v_xor_b32 v27, 64, v26
    v_xor_b32 v28, 0x80, v26
    v_xor_b32 v29, 0xc0, v26""")
    a(f"""v_lshrrev_b32 v30, 3, v{vJ}
    v_lshlrev_b32 v30, 8, v30
    v_lshl_add_u32 v30, v{vG}, 4, v30
    v_add_u32 v30, {L_QV}, v30""")
    a(f"""v_and_b32 v31, 31, v{vL}
    s_lshl_b32 s{sT3}, s{sT2}, 5
    v_add_u32 v31, s{sT3}, v31
    v_bfe_u32 v32, v31, 3, 3
    v_mul_u32_u24 v32, 37, v32
    v_add_u32 v32, s{sT[0]}, v32
    v_and_b32 v33, 7, v31
    v_lshrrev_b32 v32, v33, v32
    v_and_b32 v32, 1, v32
    v_lshlrev_b32 v32, 16, v32
    v_xor_b32 v33, 0x10000, v32
    v_lshlrev_b32 v31, 1, v31
    v_lshrrev_b32 v34, 5, v{vL}
    v_lshl_add_u32 v31, v34, 15, v31
    s_lshl_b32 s{sT3}, s{sH}, 10
    s_lshl_b32 vcc_lo, s{sJ}, 8
    s_add_u32 s{sT3}, s{sT3}, vcc_lo
    s_add_u32 s{sT3}, s{sT3}, {QL}
    v_mov_b32 v35, 0xfffe0000
    s_barrier""")
    stamp(1)
    for n in range(4, 8):
        a(f"buffer_load_dwordx4 v{20+n%4}, {R(rB)}, s{sQ} offen {nt} lds")
        if n < 7: a(f"s_add_u32 m0, m0, 1024\ns_add_u32 s{sQ}, s{sQ}, 32768")
    a(f"s_waitcnt vmcnt({p.pollA_wait})")
    stamp(2)
    L = poll_begin()
    a(f"""buffer_load_dwordx4 v[36:39], v24, {R(rWS)}, s{sT0} offen sc1
    buffer_load_dwordx4 v[40:43], v24, {R(rWS)}, s{sT1} offen sc1
    s_waitcnt vmcnt(1)""")
    chk4(44, 36, True)
    a("s_waitcnt vmcnt(0)")
    chk4(44, 40)
    poll_end(L, 44, '0xff')
    stamp(3)
    for tl in range(2):
        for ks in range(4):
            a(f"ds_read_b128 {V(48+16*tl+4*ks)}, v{26+ks} offset:{4096*tl}")
    for k in range(4): a(f"v_add_f32 v{36+k}, v{36+k}, v{40+k}")
    treduce(36)
    a(f"""v_cvt_pk_bf16_f32 v36, v36, v36
    ds_write_b16 v25, v36
    s_waitcnt lgkmcnt(0)
    s_barrier""")
    for ks in range(4): a(f"ds_read_b128 {V(80+4*ks)}, v30 offset:{64*ks}")
    for ks in range(4):
        a(f"s_waitcnt lgkmcnt({3-ks})")
        mfma(96, 80+4*ks, 48+4*ks, '0' if ks == 0 else None)
        mfma(100, 80+4*ks, 64+4*ks, '0' if ks == 0 else None)
    a(f"""s_mov_b32 vcc_lo, 0xffff0000
    s_mov_b32 vcc_hi, 0xffff0000
    v_cndmask_b32 v96, v96, v100, vcc
    v_mul_f32 v96, {f2u(128**-0.5*math.log2(math.e))}, v96
    v_add_u32 v96, v96, v33
    v_and_or_b32 v96, v96, v35, v32
    buffer_store_short_d16_hi v96, v31, {R(rWS)}, s{sT3} offen sc1""")
    stamp(4)
    a("s_branch L_X_b2")

    a.label("L_X_main")
    a("s_barrier")
    a.label("L_X_b2")
    a("s_barrier")
    a(f"""s_cmp_ge_u32 s{sWave}, 5
    s_cbranch_scc1 L_X_wuv""")
    vXF, vAF, vWF, vDF = 13, 20, 60, 100
    srd(rB, pW1, SZ['w1'])
    a(f"s_mul_i32 s{sT1}, s{sI}, 72")
    for v in range(3): a(f"buffer_load_ushort v{vXF+v}, v12, {R(rA)}, s{sT1} offen offset:{32*v}")
    a(f"""s_mul_i32 s{sT0}, s{sI}, {36*9216}
    s_mul_i32 s{sT1}, s{sXcd}, 1152
    s_add_u32 s{sT0}, s{sT0}, s{sT1}
    s_lshl_b32 s{sT1}, s{sWave}, 8
    s_add_u32 s{sT0}, s{sT0}, s{sT1}
    v_mul_u32_u24 v10, 9216, v{vG}
    s_lshl_b32 s{sT2}, s{sXcd}, 4
    s_add_u32 s{sT2}, s{sT2}, s{sI}
    s_mul_i32 s{sT2}, s{sT2}, 4608
    s_add_u32 s{sT2}, s{sT2}, {HP}
    s_cmp_eq_u32 s{sWave}, 4
    s_cbranch_scc1 L_X_f1half
    v_lshl_add_u32 v10, v{vJ}, 4, v10""")
    for t in range(9):
        a(f"buffer_load_dwordx4 {V(vWF+4*t)}, v10, {R(rB)}, s{sT0} offen {nt}")
        if t < 8: a(f"s_add_u32 s{sT0}, s{sT0}, {4*9216}")
    slot_voff(11, False)
    a("s_waitcnt vmcnt(9)")
    for v in range(3): a(f"v_lshl_or_b32 v{vXF+v}, v{vXF+v}, 16, v{vXF+v}")
    for t in range(9): buildA(vAF+4*t, vXF+t//4, t % 4)
    for t in range(9):
        a(f"s_waitcnt vmcnt({8-t})")
        mfma(vDF, vAF+4*t, vWF+4*t, '0' if t == 0 else None)
    slot_store(vDF, sT2, False, 11)
    stamp(5)
    a("s_branch L_X_v")
    a.label("L_X_f1half")
    a(f"""v_and_b32 v9, 7, v{vJ}
    v_lshl_add_u32 v10, v9, 4, v10
    v_lshrrev_b32 v9, 3, v{vJ}
    v_mul_u32_u24 v9, {4*9216}, v9
    v_add_u32 v10, v10, v9""")
    for n in range(5):
        if n == 4: a("s_mov_b32 exec_lo, 0x00ff00ff\ns_mov_b32 exec_hi, 0x00ff00ff")
        a(f"buffer_load_dwordx4 {V(vWF+4*n)}, v10, {R(rB)}, s{sT0} offen {nt}")
        if n < 4: a(f"s_add_u32 s{sT0}, s{sT0}, {8*9216}")
    a("s_mov_b64 exec, -1")
    slot_voff(11, True)
    a("s_waitcnt vmcnt(5)")
    for v in range(3): a(f"v_lshl_or_b32 v{vXF+v}, v{vXF+v}, 16, v{vXF+v}")
    for t in range(9): buildA(vAF+4*t, vXF+t//4, t % 4)
    for n in range(5):
        a(f"s_waitcnt vmcnt({4-n})")
        mfma(vDF, vAF+8*n, vWF+4*n, '0' if n == 0 else None)
        if n < 4: mfma(vDF+4, vAF+8*n+4, vWF+4*n, '0' if n == 0 else None)
    for r in range(4): a(f"v_add_f32_dpp v{vDF+r}, v{vDF+4+r}, v{vDF+r} row_ror:8 row_mask:0xf bank_mask:0xf")
    slot_store(vDF, sT2, True, 11)
    stamp(5)
    a("s_branch L_X_v")
    a.label("L_X_wuv")
    a(f"""s_cmp_eq_u32 s{sWave}, 5
    s_cbranch_scc1 L_X_v""")
    srd(rB, pWUV, SZ['wuv'])
    a(f"""s_sub_u32 s{sT2}, s{sWave}, 6
    s_lshl_b32 s{sT0}, s{sJ}, 20
    s_lshl_b32 s{sT1}, s{sT2}, 16
    s_add_u32 s{sT0}, s{sT0}, s{sT1}
    s_lshl_b32 s{sT1}, s{sH}, 8
    s_add_u32 s{sT0}, s{sT0}, s{sT1}
    s_lshl_b32 s{sT1}, s{sT2}, 14
    s_add_u32 m0, s{sT1}, {L_WUV}
    v_lshlrev_b32 v9, 1, v{vG}
    v_xor_b32 v9, v9, v{vJ}
    v_lshlrev_b32 v9, 4, v9
    v_lshl_add_u32 v20, v{vG}, 17, v9
    v_xor_b32 v21, 0x80, v20""")
    for n in range(16):
        off = (64*(n & 1) + (n >> 1))*8192
        a(f"s_add_u32 s{sT1}, s{sT0}, {off}")
        a(f"buffer_load_dwordx4 v{20+((n>>1)&1)}, {R(rB)}, s{sT1} offen {nt} lds")
        if n < 15: a("s_add_u32 m0, m0, 1024")
    a("s_waitcnt vmcnt(0)")
    stamp(5)
    a.label("L_X_v")
    a("s_barrier")
    vBV = 20
    a(f"""v_bfe_u32 v9, v{vL}, 2, 2
    v_lshl_add_u32 v10, v{vG}, 3, v9
    v_lshlrev_b32 v10, 8, v10
    v_and_b32 v11, 1, v{vG}
    v_lshl_add_u32 v9, v11, 2, v9
    v_lshlrev_b32 v9, 1, v9
    v_bfe_u32 v11, v{vL}, 1, 1
    s_lshl_b32 s{sT0}, s{sWave}, 1
    v_add_u32 v11, s{sT0}, v11
    v_xor_b32 v9, v9, v11
    v_lshl_add_u32 v10, v9, 4, v10
    v_and_b32 v9, 1, v{vL}
    v_lshl_add_u32 v10, v9, 3, v10""")
    for ks in range(4):
        for hf in range(2):
            a(f"ds_read_b64_tr_b16 {V(vBV+4*ks+2*hf, 2)}, v10 offset:{L_WUV + (32*ks+4*hf)*256}")
    a(f"""v_bfe_u32 v9, v{vL}, 3, 1
    v_lshlrev_b32 v36, 15, v9
    v_and_b32 v11, 3, v{vL}
    v_lshl_add_u32 v36, v11, 11, v36
    v_lshl_add_u32 v36, v{vG}, 9, v36
    s_and_b32 s{sT2}, s{sWave}, 3
    s_lshr_b32 s{sT3}, s{sWave}, 2
    s_lshl_b32 s{sT0}, s{sT2}, 13
    s_lshl_b32 s{sT1}, s{sH}, 4
    s_add_u32 s{sT0}, s{sT0}, s{sT1}
    s_add_u32 s{sT0}, s{sT0}, {ST}""")
    a(f"""v_lshlrev_b32 v37, 14, v9
    v_lshl_add_u32 v37, v{vG}, 8, v37
    v_and_b32 v11, 7, v{vL}
    v_lshl_add_u32 v37, v11, 4, v37
    s_lshl_b32 s{sT1}, s{sH}, 2
    s_add_u32 s{sT1}, s{sT1}, s{sJ}
    s_lshl_b32 s{sQ+1}, s{sT1}, 10
    s_add_u32 s{sQ+1}, s{sQ+1}, {CX}
    s_lshl_b32 s{sT1}, s{sT1}, 15
    s_lshl_b32 s{sQ}, s{sT2}, 12
    s_add_u32 s{sT1}, s{sT1}, s{sQ}
    s_lshl_b32 s{sQ}, s{sT3}, 7
    s_add_u32 s{sT1}, s{sT1}, s{sQ}
    s_add_u32 s{sT1}, s{sT1}, {OP}""")
    a(f"v_and_b32 v38, 1, v{vG}\nv_mul_u32_u24 v38, 0xff, v38")
    lsbtags(40, "v38")
    a(f"""v_mul_u32_u24 v38, {4*272}, v9
    v_lshl_add_u32 v38, v11, 4, v38
    v_and_b32 v39, 1, v{vG}
    v_lshl_add_u32 v38, v39, 3, v38
    s_mul_i32 s{sQ}, s{sT2}, 272
    s_lshl_b32 s{sQ+2}, s{sT3}, 7
    s_add_u32 s{sQ}, s{sQ}, s{sQ+2}
    s_add_u32 s{sQ}, s{sQ}, {L_AIMG}
    v_add_u32 v38, s{sQ}, v38""")
    a(f"""v_lshlrev_b32 v44, 5, v9
    s_lshl_b32 s{sQ}, s{sT2}, 2
    s_add_u32 s{sQ}, s{sQ}, {L_VST}
    v_add_u32 v44, s{sQ}, v44
    v_lshlrev_b32 v45, 5, v39
    v_add_u32 v45, {L_VST}, v45""")
    a(f"""v_mul_u32_u24 v46, 272, v11
    v_lshl_add_u32 v46, v{vG}, 4, v46
    v_add_u32 v46, {L_AIMG}, v46""")
    a(f"""v_lshlrev_b32 v47, 9, v{vG}
    v_lshl_add_u32 v47, v{vJ}, 2, v47
    s_lshl_b32 s{sQ}, s{sWave}, 6
    v_add_u32 v47, s{sQ}, v47
    v_and_b32 v48, 3, v{vL}
    v_mul_u32_u24 v48, 37, v48
    v_add_u32 v48, s{sT[0]}, v48""")
    stamp(6)
    L = poll_begin()
    a(f"""buffer_load_dwordx4 v[52:55], v36, {R(rWS)}, s{sT0} offen sc1
    s_waitcnt vmcnt(0)
    v_xor_b32 v49, s{sT[0]}, v54""")
    poll_end(L, 49, '-1')
    stamp(7)
    vOD = 56
    L = poll_begin()
    for u in range(4): a(f"buffer_load_dwordx4 {V(vOD+4*u)}, v37, {R(rWS)}, s{sT1} offen offset:{1024*u} sc1")
    a(f"""v_mov_b32 v50, v52
    v_max_f32_dpp v50, v50, v50 quad_perm:[1,0,3,2] row_mask:0xf bank_mask:0xf
    v_max_f32_dpp v50, v50, v50 quad_perm:[2,3,0,1] row_mask:0xf bank_mask:0xf""")
    allred_groups("v_max_f32", 50, 51)
    a(f"""v_sub_f32 v51, v52, v50
    v_exp_f32 v51, v51
    v_cvt_pk_bf16_f32 v51, v51, v51""")
    for u in range(4): buildA(72+4*u, 51, u)
    a(f"""v_and_b32 v51, 0xffff0000, v51
    v_mul_f32 v51, v51, v53
    v_add_f32_dpp v51, v51, v51 quad_perm:[1,0,3,2] row_mask:0xf bank_mask:0xf
    v_add_f32_dpp v51, v51, v51 quad_perm:[2,3,0,1] row_mask:0xf bank_mask:0xf""")
    allred_groups("v_add_f32", 51, 55)
    for u in range(4):
        a(f"s_waitcnt vmcnt({3-u})")
        mfma(88, 72+4*u, vOD+4*u, '0' if u == 0 else None)
        chkv(49, vOD+4*u, 40, u == 0)
    poll_end(L, 49, '0x10001')
    stamp(8)
    a(f"""ds_write2_b32 v44, v50, v51 offset0:0 offset1:4
    v_cvt_pk_bf16_f32 v88, v88, v89
    v_cvt_pk_bf16_f32 v89, v90, v91
    s_mov_b32 exec_lo, 0x00ff00ff
    s_mov_b32 exec_hi, 0xff00ff00
    ds_write_b64 v38, v[88:89]
    s_mov_b64 exec, -1
    s_waitcnt lgkmcnt(0)
    s_barrier""")
    for ks in range(4): a(f"ds_read_b128 {V(56+4*ks)}, v46 offset:{64*ks}")
    a(f"ds_read_b128 v[72:75], v45\nds_read_b128 v[76:79], v45 offset:16")
    for ks in range(4):
        a(f"s_waitcnt lgkmcnt({5-ks})")
        mfma(88, 56+4*ks, vBV+4*ks, '0' if ks == 0 else None)
    a(f"""s_waitcnt lgkmcnt(0)
    v_max3_f32 v50, v72, v73, v74
    v_max_f32 v50, v50, v75""")
    for r in range(4): a(f"v_sub_f32 v{72+r}, v{72+r}, v50")
    for r in range(4): a(f"v_exp_f32 v{72+r}, v{72+r}")
    a(f"""v_mul_f32 v51, v72, v76
    v_fmac_f32 v51, v73, v77
    v_fmac_f32 v51, v74, v78
    v_fmac_f32 v51, v75, v79
    v_rcp_f32 v51, v51
    v_mul_f32 v50, v72, v88
    v_fmac_f32 v50, v73, v89
    v_fmac_f32 v50, v74, v90
    v_fmac_f32 v50, v75, v91
    v_mul_f32 v50, v50, v51
    v_mov_b32_sdwa v50, v48 dst_sel:BYTE_0 dst_unused:UNUSED_PRESERVE src0_sel:BYTE_0
    s_mov_b32 exec_hi, 0
    buffer_store_dword v50, v47, {R(rWS)}, s{sQ+1} offen sc1
    s_mov_b64 exec, -1""")
    stamp(9)
    a(f"""s_cmp_ge_u32 s2, 72
    s_cbranch_scc1 L_X_end
    s_cmp_ge_u32 s2, 36
    s_cselect_b32 s{sT2}, 1, 0
    s_mul_i32 s{sT3}, s{sT2}, 36
    s_sub_u32 s{sT3}, s2, s{sT3}
    s_mul_i32 s{sT0}, s{sWave}, {16*4608}
    s_mul_i32 s{sT1}, s{sT2}, 2304
    s_add_u32 s{sT0}, s{sT0}, s{sT1}
    s_lshl_b32 s{sT1}, s{sT3}, 6
    s_add_u32 s{sT0}, s{sT0}, s{sT1}
    s_add_u32 s{sT0}, s{sT0}, {FP}
    v_lshrrev_b32 v9, 2, v{vL}
    v_mul_u32_u24 v10, 4608, v9
    v_and_b32 v11, 3, v{vL}
    v_lshl_add_u32 v10, v11, 4, v10
    v_lshl_add_u32 v13, v{vG}, 2, v11
    v_lshlrev_b32 v13, 5, v13
    s_lshl_b32 s{sT1}, s{sWave}, 2
    s_add_u32 s{sT1}, s{sT1}, {L_RED}
    v_add_u32 v13, s{sT1}, v13""")
    srd(rB, pB2, SZ['b2']); srd(rC, pOUT, SZ['out'])
    a(f"""s_lshl_b32 s{sT1}, s{sT3}, 2
    v_add_u32 v14, s{sT1}, v11""")
    decode_v(15, 14, 16)
    a(f"""v_bfe_u32 v14, v{vL}, 2, 2
    v_add_u32 v15, v15, v14
    v_lshlrev_b32 v15, 1, v15
    buffer_load_ushort v16, v15, {R(rB)}, 0 offen
    s_lshl_b32 s{sT1}, s{sT2}, 2
    s_add_u32 s{sT1}, s{sT1}, {L_GATE}
    v_mov_b32 v17, s{sT1}
    ds_read_b32 v17, v17
    v_lshlrev_b32 v18, 5, v{vJ}
    v_add_u32 v18, {L_RED}, v18
    s_mul_i32 s{sT2}, s{sT2}, 1152
    s_waitcnt vmcnt(0) lgkmcnt(0)
    v_lshlrev_b32 v16, 16, v16
    v_sub_f32 v17, 1.0, v17
    v_mul_f32 v16, v16, v17""")
    L = poll_begin()
    a(f"""buffer_load_dwordx4 v[20:23], v10, {R(rWS)}, s{sT0} offen sc1
    s_waitcnt vmcnt(0)""")
    chk4(24, 20, True)
    poll_end(L, 24, '0xff')
    stamp(10)
    treduce(20)
    a(f"""v_add_f32_dpp v20, v20, v20 row_ror:4 row_mask:0xf bank_mask:0xf
    v_add_f32_dpp v20, v20, v20 row_ror:8 row_mask:0xf bank_mask:0xf
    ds_write_b32 v13, v20
    s_waitcnt lgkmcnt(0)
    s_barrier
    s_cmp_lg_u32 s{sWave}, 0
    s_cbranch_scc1 L_X_end
    ds_read_b128 v[20:23], v18
    ds_read_b128 v[24:27], v18 offset:16
    s_waitcnt lgkmcnt(0)
    v_add_f32 v20, v20, v24
    v_add_f32 v21, v21, v25
    v_add_f32 v22, v22, v26
    v_add_f32 v23, v23, v27
    v_add_f32 v20, v20, v21
    v_add_f32 v22, v22, v23
    v_add_f32 v20, v20, v16
    v_add_f32 v20, v20, v22
    v_cvt_pk_bf16_f32 v20, v20, v20
    s_mov_b64 exec, 0xffff
    buffer_store_short v20, v15, {R(rC)}, s{sT2} offen
    s_cmp_lg_u32 s2, 0
    s_cbranch_scc1 L_X_end
    s_mov_b64 exec, 1
    v_mov_b32 v21, s{sT[0]}
    v_mov_b32 v22, 0
    buffer_store_dword v21, v22, {R(rWS)}, 0 offen offset:{EPOCH} sc1""")
    a.label("L_X_end")
    stamp(11)
    finish('X')

    a.label("L_Y_main")
    vQA, vPA, vSF, vPF, vACC = 20, 36, 48, 112, 176
    vTG, vTO = 208, 212
    vQG = 216
    a(f"""s_and_b32 s{sT2}, s{sWave}, 3
    s_lshr_b32 s{sT3}, s{sWave}, 2
    v_and_b32 v9, 7, v{vJ}
    v_lshlrev_b32 v9, 1, v9
    v_lshrrev_b32 v10, 3, v{vJ}
    v_or_b32 v9, v9, v10
    v_lshlrev_b32 v9, 4, v9
    v_lshl_add_u32 v9, v{vG}, 8, v9
    v_lshl_add_u32 v9, v{vJ}, 10, v9
    s_lshl_b32 s{sT0}, s{sT2}, 14
    v_add_u32 v13, s{sT0}, v9
    s_lshl_b32 s{sT0}, s{sT3}, 14
    s_add_u32 s{sT0}, s{sT0}, {L_QIMG}
    v_add_u32 v{vQA}, s{sT0}, v9""")
    for ks in range(1, 16): a(f"v_xor_b32 v{vQA+ks}, {16*ks}, v{vQA}")
    a(f"""v_lshrrev_b32 v9, 2, v{vL}
    v_and_b32 v10, 7, v9
    v_lshlrev_b32 v10, 1, v10
    v_lshrrev_b32 v11, 3, v9
    v_or_b32 v10, v10, v11
    v_bfe_u32 v11, v{vL}, 1, 1
    v_xor_b32 v10, v10, v11
    v_lshlrev_b32 v10, 4, v10
    v_lshl_add_u32 v10, v9, 10, v10
    v_and_b32 v11, 1, v{vL}
    v_lshl_add_u32 v10, v11, 3, v10
    s_lshl_b32 s{sT0}, s{sT2}, 8
    v_add_u32 v{vPA}, s{sT0}, v10""")
    for ct in range(1, 8): a(f"v_xor_b32 v{vPA+ct}, {32*ct}, v{vPA}")
    lsbtags(vTG)
    a(f"s_bitcmp1_b32 s2, 0\ns_cselect_b32 s{sT0}, 0xff, 0")
    lsbtags(vTO, f"s{sT0}")
    a(f"s_mul_i32 s{sT0}, s{sI}, 9\nv_add_u32 v9, s{sT0}, v{vJ}")
    decode_v(14, 9, 10)
    a(f"""s_mul_i32 s{sT0}, s{sXcd}, 576
    v_add_u32 v14, s{sT0}, v14
    v_mul_u32_u24 v15, 1152, v14""")
    for t in range(9): a(f"v_readlane_b32 s{sQ+t}, v15, {t}")
    a(f"""s_bfe_u32 s{sT0}, s2, 0x10006
    s_lshl_b32 s{sT0}, s{sT0}, 15
    s_lshl_b32 s{sT1}, s{sWave}, 12
    s_add_u32 s{sT0}, s{sT0}, s{sT1}
    s_add_u32 s{sT0}, s{sT0}, {QL}
    s_add_u32 s{sT1}, s{sT1}, {L_QIMG}
    s_and_b32 vcc_lo, s{sWave}, 1
    s_lshl_b32 vcc_lo, vcc_lo, 7
    s_bfe_u32 vcc_hi, s{sWave}, 0x10001
    s_lshl_b32 vcc_hi, vcc_hi, 4
    s_or_b32 vcc_lo, vcc_lo, vcc_hi
    v_xor_b32 v16, vcc_lo, v{vL16}
    v_add_u32 v16, s{sT1}, v16
    v_xor_b32 v17, 32, v16
    v_xor_b32 v18, 64, v16
    v_xor_b32 v19, 0x60, v16
    s_waitcnt vmcnt(0)
    s_barrier""")
    stamp(3)
    def qloads():
        for n in range(4): a(f"buffer_load_dwordx4 {V(vQG+4*n)}, v{vL16}, {R(rWS)}, s{sT0} offen offset:{1024*n} sc1")
    qloads()
    for ks in range(16):
        a(f"v_xor_b32 v9, {16*ks}, v13\nds_read_b128 {V(vSF+4*ks)}, v9")
    for ct in range(8):
        for T in range(4):
            a(f"ds_read_b64_tr_b16 {V(vPF+8*ct+2*T, 2)}, v{vPA+ct} offset:{16384*T}")
    Lq = a.newlabel('qchk')
    a(f"s_mov_b32 s{sCnt}, 0\ns_branch {Lq}")
    L = a.newlabel('poll'); a.label(L)
    qloads()
    a.label(Lq)
    for n in range(4):
        a(f"s_waitcnt vmcnt({3-n})")
        chkv(9, vQG+4*n, vTG, n == 0)
    poll_end(L, 9, '0x10001')
    stamp(4)
    for n in range(4): a(f"ds_write_b128 v{16+n}, {V(vQG+4*n)} offset:{1024*n}")
    a(f"""s_lshl_b32 s{sT0}, s{sT3}, 12
    s_add_u32 s{sT0}, s{sT0}, {L_SX}
    v_add_u32 v10, s{sT0}, v{vL16}
    s_lshl_b32 s{sT0}, s{sT2}, 10
    v_add_u32 v11, s{sT0}, v10
    s_waitcnt lgkmcnt(0)
    s_barrier""")
    stamp(5)
    NQ = 8
    for ks in range(NQ): a(f"ds_read_b128 {V(vQG+4*ks)}, v{vQA+ks}")
    for ks in range(16):
        rem = min(15, ks+NQ-1) - ks
        a(f"s_waitcnt lgkmcnt({rem})")
        mfma(vACC, vSF+4*ks, vQG+4*(ks % NQ), '0' if ks == 0 else None)
        if ks + NQ < 16: a(f"ds_read_b128 {V(vQG+4*(ks%NQ))}, v{vQA+ks+NQ}")
    a(f"""s_sub_u32 s{sT0}, s2, 128
    s_lshl_b32 s{sT1}, s{sT0}, 9
    s_lshl_b32 s{sT0}, s{sT0}, 8
    s_lshl_b32 vcc_lo, s{sT3}, 21
    s_add_u32 s{sT0}, s{sT0}, vcc_lo
    s_lshl_b32 vcc_lo, s{sT2}, 15
    s_add_u32 s{sT0}, s{sT0}, vcc_lo
    s_add_u32 s{sT0}, s{sT0}, {OP}
    s_lshl_b32 vcc_lo, s{sT3}, 8
    s_add_u32 s{sT1}, s{sT1}, vcc_lo
    s_add_u32 s{sT1}, s{sT1}, {ST}
    ds_write_b128 v11, {V(vACC)}
    v_lshlrev_b32 v12, 19, v{vG}
    v_lshl_add_u32 v12, v{vJ}, 4, v12
    s_waitcnt lgkmcnt(0)
    s_barrier""")
    stamp(6)
    vS = 48
    for T in range(4): a(f"ds_read_b128 {V(vS+4*T)}, v10 offset:{1024*T}")
    a(f"""s_waitcnt lgkmcnt(2)
    v_max3_f32 v64, v{vS}, v{vS+1}, v{vS+2}
    v_max3_f32 v65, v{vS+3}, v{vS+4}, v{vS+5}
    v_max3_f32 v64, v64, v{vS+6}, v{vS+7}
    s_waitcnt lgkmcnt(0)
    v_max3_f32 v65, v65, v{vS+8}, v{vS+9}
    v_max3_f32 v64, v64, v{vS+10}, v{vS+11}
    v_max3_f32 v65, v65, v{vS+12}, v{vS+13}
    v_max3_f32 v64, v64, v{vS+14}, v{vS+15}
    v_max_f32 v64, v64, v65""")
    allred_groups("v_max_f32", 64, 65)
    for k in range(16): a(f"v_sub_f32 v{vS+k}, v{vS+k}, v64")
    for k in range(16): a(f"v_exp_f32 v{vS+k}, v{vS+k}")
    vP = 72
    for k in range(8): a(f"v_cvt_pk_bf16_f32 v{vP+k}, v{vS+2*k}, v{vS+2*k+1}")
    for ct in range(8): mfma(vACC+4*ct, vP, vPF+8*ct, '0')
    for k in range(8): a(f"v_add_f32 v{vS+k}, v{vS+k}, v{vS+8+k}")
    for k in range(4): a(f"v_add_f32 v{vS+k}, v{vS+k}, v{vS+4+k}")
    a(f"v_add_f32 v{vS}, v{vS}, v{vS+2}\nv_add_f32 v{vS+1}, v{vS+1}, v{vS+3}\nv_add_f32 v65, v{vS}, v{vS+1}")
    allred_groups("v_add_f32", 65, 66)
    a(f"""v_mov_b32 v66, s{sT[0]}
    v_mov_b32 v67, 0
    s_cmp_eq_u32 s{sT2}, 0
    s_cselect_b32 exec_lo, 0xffff, 0
    s_mov_b32 exec_hi, 0
    buffer_store_dwordx4 v[64:67], v{vL16}, {R(rWS)}, s{sT1} offen sc1
    s_mov_b64 exec, -1""")
    for ct in range(8): mfma(vACC+4*ct, vP+4, vPF+8*ct+4)
    a("v_mov_b32 v9, 0x10001")
    for r in range(4):
        o = 80+4*r
        for k in range(4): a(f"v_cvt_pk_bf16_f32 v{o+k}, v{vACC+8*k+r}, v{vACC+8*k+4+r}")
        for k in range(4): a(f"v_bfi_b32 v{o+k}, v9, v{vTO+k}, v{o+k}")
        a(f"buffer_store_dwordx4 {V(o)}, v12, {R(rWS)}, s{sT0} offen sc1")
        if r < 3: a(f"s_add_u32 s{sT0}, s{sT0}, 0x20000")
    stamp(7)
    a(f"""s_cmp_ge_u32 s{sWave}, 5
    s_cbranch_scc1 L_Y_fg""")
    srd(rB, pW2, SZ['w2']); srd(rC, pWO, SZ['wo'])
    a("s_barrier")
    vW2, vWO, vA2, vD2 = 100, 136, 20, 60
    a(f"""s_lshl_b32 s{sT0}, s{sH}, 2
    s_add_u32 s{sT0}, s{sT0}, s{sJ}
    s_sub_u32 s{sT0}, s{sT0}, 4
    s_mul_i32 s{sT0}, s{sT0}, {32*1152}
    v_mul_u32_u24 v10, 1152, v{vG}
    s_lshl_b32 s{sT1}, s{sWave}, 8
    v_add_u32 v10, s{sT1}, v10
    s_cmp_eq_u32 s{sWave}, 4
    s_cbranch_scc1 L_Y_half
    v_lshl_add_u32 v10, v{vJ}, 4, v10""")
    for t in range(9): a(f"buffer_load_dwordx4 {V(vW2+4*t)}, v10, {R(rB)}, s{sQ+t} offen {nt}")
    for t in range(8):
        a(f"buffer_load_dwordx4 {V(vWO+4*t)}, v10, {R(rC)}, s{sT0} offen {nt}")
        if t < 7: a(f"s_add_u32 s{sT0}, s{sT0}, {4*1152}")
    slot_voff(11, False)
    a("s_branch L_Y_o2")
    a.label("L_Y_half")
    a(f"""v_and_b32 v9, 7, v{vJ}
    v_lshl_add_u32 v10, v9, 4, v10
    s_mov_b32 vcc_lo, 0xff00ff00
    s_mov_b32 vcc_hi, 0xff00ff00""")
    for n in range(5):
        if n < 4:
            a(f"v_mov_b32 v13, s{sQ+2*n}\nv_mov_b32 v14, s{sQ+2*n+1}\nv_cndmask_b32 v13, v13, v14, vcc\nv_add_u32 v13, v13, v10")
            a(f"buffer_load_dwordx4 {V(vW2+4*n)}, v13, {R(rB)}, 0 offen {nt}")
        else:
            a("s_mov_b32 exec_lo, 0x00ff00ff\ns_mov_b32 exec_hi, 0x00ff00ff")
            a(f"buffer_load_dwordx4 {V(vW2+4*n)}, v10, {R(rB)}, s{sQ+8} offen {nt}")
            a("s_mov_b64 exec, -1")
    a(f"v_lshrrev_b32 v9, 3, v{vJ}\nv_mul_u32_u24 v9, {4*1152}, v9\nv_add_u32 v10, v10, v9")
    for n in range(4):
        a(f"buffer_load_dwordx4 {V(vWO+4*n)}, v10, {R(rC)}, s{sT0} offen {nt}")
        if n < 3: a(f"s_add_u32 s{sT0}, s{sT0}, {8*1152}")
    slot_voff(11, True)
    a.label("L_Y_o2")
    a(f"""v_bfe_u32 v9, v{vL}, 3, 1
    v_and_b32 v13, 3, v{vL}
    v_lshl_add_u32 v13, v13, 2, v{vG}
    v_lshlrev_b32 v13, 2, v13
    v_mul_u32_u24 v14, 192, v9
    v_add_u32 v14, v14, v13
    v_add_u32 v14, {L_HX}, v14
    v_and_b32 v15, 7, v{vL}
    v_lshl_add_u32 v15, v15, 2, v{vG}
    v_lshlrev_b32 v15, 2, v15
    v_lshl_add_u32 v15, v9, 9, v15
    v_lshlrev_b32 v16, 2, v9
    v_add_u32 v16, {L_GATE}, v16
    ds_read_b32 v16, v16
    v_mul_u32_u24 v17, 37, v{vG}
    v_add_u32 v17, s{sT[0]}, v17
    s_lshl_b32 s{sT0}, s{sH}, 12
    s_sub_u32 s{sT1}, s{sJ}, 4
    s_lshl_b32 s{sT1}, s{sT1}, 7
    s_add_u32 s{sT0}, s{sT0}, s{sT1}
    s_add_u32 s{sT0}, s{sT0}, {CX}
    s_sub_u32 s{sT2}, s2, 128
    s_mul_i32 s{sT2}, s{sT2}, 4608
    s_add_u32 s{sT2}, s{sT2}, {FP}
    s_barrier""")
    stamp(8)
    for v in range(3): a(f"ds_read_b32 v{68+v}, v14 offset:{64*v}")
    a("s_waitcnt lgkmcnt(0)")
    for t in range(9): buildA(vA2+4*t, 68+t//4, t % 4)
    a(f"""s_cmp_eq_u32 s{sWave}, 4
    s_cbranch_scc1 L_Y_half2""")
    for t in range(9):
        a(f"s_waitcnt vmcnt({16-t})")
        mfma(vD2, vA2+4*t, vW2+4*t, '0' if t == 0 else None)
    a("s_branch L_Y_o3")
    a.label("L_Y_half2")
    for n in range(5):
        a(f"s_waitcnt vmcnt({8-n})")
        mfma(vD2, vA2+8*n, vW2+4*n, '0' if n == 0 else None)
        if n < 4: mfma(vD2+4, vA2+8*n+4, vW2+4*n, '0' if n == 0 else None)
    a.label("L_Y_o3")
    stamp(9)
    L = poll_begin()
    for cq in range(4): a(f"buffer_load_dword v{72+cq}, v15, {R(rWS)}, s{sT0} offen offset:{1024*cq} sc1")
    a("s_waitcnt vmcnt(0)")
    a("v_xor_b32 v76, v17, v72")
    for cq in range(1, 4): a(f"v_bitop3_b32 v76, v76, v{72+cq}, v17 bitop3:0xf6")
    poll_end(L, 76, '0xff')
    stamp(10)
    a(f"""v_add_f32 v72, v72, v73
    v_add_f32 v74, v74, v75
    v_add_f32 v72, v72, v74
    v_mul_f32 v72, v72, v16
    v_cvt_pk_bf16_f32 v72, v72, v72
    v_mov_b32 v73, v72
    v_mov_b32 v74, v72
    v_mov_b32_dpp v73, v72 row_shr:4 row_mask:0xf bank_mask:0xa
    v_mov_b32_dpp v74, v72 row_shl:4 row_mask:0xf bank_mask:0x5
    s_cmp_eq_u32 s{sWave}, 4
    s_cbranch_scc1 L_Y_half3""")
    for t in range(8):
        buildA(vA2+4*t, 73+t//4, t % 4)
        if t > 0: mfma(vD2, vA2+4*(t-1), vWO+4*(t-1))
    mfma(vD2, vA2+28, vWO+28)
    slot_store(vD2, sT2, False, 11)
    a("s_branch L_Y_end")
    a.label("L_Y_half3")
    for t in range(8):
        buildA(vA2+4*t, 73+t//4, t % 4)
        if t > 0: mfma(vD2+4*((t-1) & 1), vA2+4*(t-1), vWO+4*((t-1)//2))
    mfma(vD2+4, vA2+28, vWO+12)
    for r in range(4): a(f"v_add_f32_dpp v{vD2+r}, v{vD2+4+r}, v{vD2+r} row_ror:8 row_mask:0xf bank_mask:0xf")
    slot_store(vD2, sT2, True, 11)
    a("s_branch L_Y_end")
    a.label("L_Y_fg")
    a(f"""s_cmp_eq_u32 s{sWave}, 7
    s_cbranch_scc1 L_Y_fg7""")
    srd(rB, pB1, SZ['b1'])
    a(f"""s_sub_u32 s{sT2}, s{sWave}, 5
    s_mul_i32 s{sT0}, s{sXcd}, {16*4608}
    s_mul_i32 s{sT1}, s{sT2}, 2304
    s_add_u32 s{sT0}, s{sT0}, s{sT1}
    s_mul_i32 s{sT1}, s{sI}, 144
    s_add_u32 s{sT0}, s{sT0}, s{sT1}
    s_add_u32 s{sT0}, s{sT0}, {HP}
    s_add_u32 s{sQ}, s{sT0}, {4*4608}
    s_add_u32 s{sQ+1}, s{sT0}, {8*4608}
    s_add_u32 s{sQ+2}, s{sT0}, {12*4608}
    v_mul_u32_u24 v10, 4608, v{vG}
    v_lshl_add_u32 v10, v{vJ}, 4, v10
    v_add_u32 v14, v14, v{vG}
    v_lshlrev_b32 v14, 1, v14
    s_lshl_b32 s{sT1}, s{sT2}, 2
    s_add_u32 s{sT1}, s{sT1}, {L_GATE}
    v_mov_b32 v16, s{sT1}
    ds_read_b32 v16, v16
    s_mul_i32 s{sT1}, s{sT2}, 192
    s_add_u32 s{sT1}, s{sT1}, {L_HX}
    v_lshl_add_u32 v17, v{vJ}, 2, v{vG}
    v_lshlrev_b32 v17, 2, v17
    v_add_u32 v17, s{sT1}, v17
    s_mov_b32 exec_lo, 0x01ff01ff
    s_mov_b32 exec_hi, 0x01ff01ff
    buffer_load_ushort v15, v14, {R(rB)}, 0 offen""")
    def floads():
        for k, s in enumerate((sT0, sQ, sQ+1, sQ+2)):
            a(f"buffer_load_dwordx4 {V(20+4*k)}, v10, {R(rWS)}, s{s} offen sc1")
    floads()
    Lf = a.newlabel('fchk')
    a(f"s_barrier\ns_mov_b32 s{sCnt}, 0\ns_branch {Lf}")
    L = a.newlabel('poll'); a.label(L)
    floads()
    a.label(Lf)
    for k in range(4):
        a(f"s_waitcnt vmcnt({3-k})")
        chk4(36, 20+4*k, k == 0)
    poll_end(L, 36, '0xff')
    stamp(8)
    a("s_mov_b64 exec, -1")
    for k in range(4): a(f"v_add_f32 v{20+k}, v{20+k}, v{24+k}\nv_add_f32 v{28+k}, v{28+k}, v{32+k}")
    for k in range(4): a(f"v_add_f32 v{20+k}, v{20+k}, v{28+k}")
    treduce(20)
    c1 = -2*math.sqrt(2/math.pi)*math.log2(math.e)
    a(f"""v_lshlrev_b32 v15, 16, v15
    v_add_f32 v20, v20, v15
    v_mul_f32 v21, v20, v20
    v_mov_b32 v22, {f2u(c1)}
    v_fmac_f32 v22, {f2u(c1*0.044715)}, v21
    v_mul_f32 v21, v22, v20
    v_exp_f32 v21, v21
    v_add_f32 v21, 1.0, v21
    v_rcp_f32 v21, v21
    s_waitcnt lgkmcnt(0)
    v_sub_f32 v16, 1.0, v16
    v_mul_f32 v20, v20, v21
    v_mul_f32 v20, v20, v16
    v_cvt_pk_bf16_f32 v20, v20, v20
    s_mov_b32 exec_lo, 0x01ff01ff
    s_mov_b32 exec_hi, 0x01ff01ff
    ds_write_b32 v17, v20
    s_mov_b64 exec, -1
    s_waitcnt lgkmcnt(0)""")
    a("s_branch L_Y_fgend")
    a.label("L_Y_fg7")
    a("s_barrier")
    a.label("L_Y_fgend")
    a("s_barrier")
    a.label("L_Y_end")
    stamp(11)
    finish('Y')
    a.label("L_exit")
    a("s_endpgm")
    return a.finalize()

HEADER = open('gated_mix__compressed_kv_cla__dense_activation_gelu__decode.s.ref').read().split('; Override')[0]

def emit(path, p=P):
    body = build(p)
    s = HEADER + f"""; @launch grid=(256,1,1) block=(512,1,1) lds={LDS_BYTES}
.amdgcn_target "amdgcn-amd-amdhsa--gfx950"
.text
.globl {KNAME}
.p2align 8
.type {KNAME},@function
{KNAME}:
{body}.section .rodata,"a"
.p2align 6
.amdhsa_kernel {KNAME}
  .amdhsa_next_free_vgpr 256
  .amdhsa_next_free_sgpr 102
  .amdhsa_accum_offset 256
  .amdhsa_group_segment_fixed_size 0
  .amdhsa_kernarg_size 120
  .amdhsa_user_sgpr_count 2
  .amdhsa_user_sgpr_kernarg_segment_ptr 1
  .amdhsa_system_sgpr_workgroup_id_x 1
.end_amdhsa_kernel
"""
    open(path, 'w').write(s)

if __name__ == '__main__':
    out = sys.argv[1]
    for kv in sys.argv[2:]:
        k, v = kv.split('=')
        setattr(P, k, type(getattr(P, k))(v))
    emit(out)
```

```python
import sys, struct, math
from asmlib import Asm

KNAME = "gated_mix__compressed_kv_cla__dense_activation_gelu__decode_kernel"

def f2u(x): return struct.unpack('<I', struct.pack('<f', x))[0]

class P:
    stamp = 0
    nt = "nt"
    pollA_wait = 4
    maxspin = 200000
    prefetch = 1
    enc = -1
    encwave = 4

EPOCH, QP, QL, ST, CX, HP, FP, OP, STAMP = 0, 0x10000, 0x50000, 0x60000, 0x70000, 0x90000, 0x120000, 0x200000, 0x800000
WS_REC = 0x1000000
L_CKV, L_QIMG, L_SX, L_HX, L_GATE = 0, 65536, 98304, 106496, 107008
L_WUK, L_WUV, L_QV, L_AIMG, L_VST, L_RED = 0, 32768, 65536, 66048, 68352, 68480
LDS_BYTES = 107520
pX, pCKV, pWQ, pWUK, pWUV, pWO, pW1, pB1, pW2, pB2, pGW, pOUT, pWS = 4, 6, 8, 10, 12, 14, 18, 20, 22, 24, 26, 28, 32
sWave, sH, sJ, sI, sXcd, sTag = 3, 34, 35, 56, 57, 58
sT = [58, 59, 60, 61]
rA, rB, rC, rWS = 36, 40, 44, 48
sT0, sT1, sT2, sT3 = 52, 53, 54, 55
sCnt = 62
sQ = 64
sStamp = 76
vL, vJ, vG, vM, vL16 = 1, 2, 3, 4, 8
SZ = dict(x=2304, ckv=8388608, wq=4718592, wuk=4194304, wuv=4194304, wo=4718592, w1=5308416, w2=5308416, b1=9216, b2=1152, gw=1152, out=2304)

def build(p=P):
    a = Asm()
    nt = p.nt
    def srd(r, ptr, size):
        a(f"s_mov_b32 s{r}, s{ptr}\ns_mov_b32 s{r+1}, s{ptr+1}\ns_mov_b32 s{r+2}, {size}\ns_mov_b32 s{r+3}, 0x20000")
    def R(r): return f"s[{r}:{r+3}]"
    def V(r, n=4): return f"v[{r}:{r+n-1}]"
    def stamp(k):
        if p.stamp: a(f"s_memrealtime s[{sStamp+2*k}:{sStamp+2*k+1}]")
    def buildA(dst, x, u):
        for r in range(4):
            a(f"v_and_b32_dpp v{dst+r}, v{x}, v{vM+r} quad_perm:[{u},{u},{u},{u}] row_mask:0xf bank_mask:0xf")
    def mfma(d, A, B, c=None):
        a(f"v_mfma_f32_16x16x32_bf16 {V(d)}, {V(A)}, {V(B)}, {V(d) if c is None else c}")
    def tag4(d):
        for k in range(4):
            a(f"v_mov_b32_sdwa v{d+k}, s{sT[k]} dst_sel:BYTE_0 dst_unused:UNUSED_PRESERVE src0_sel:BYTE_0")
    def chk4(acc, d, first=False):
        for k in range(4):
            if first and k == 0: a(f"v_xor_b32 v{acc}, s{sT[0]}, v{d}")
            else: a(f"v_bitop3_b32 v{acc}, v{acc}, v{d+k}, s{sT[k]} bitop3:0xf6")
    def chkv(acc, d, t, first=False):
        for k in range(4):
            if first and k == 0: a(f"v_xor_b32 v{acc}, v{t}, v{d}")
            else: a(f"v_bitop3_b32 v{acc}, v{acc}, v{d+k}, v{t+k} bitop3:0xf6")
    def poll_begin():
        L = a.newlabel('poll')
        a(f"s_mov_b32 s{sCnt}, 0")
        a.label(L)
        return L
    def poll_end(L, acc, mask):
        D = a.newlabel('done')
        a(f"v_and_b32 v{acc}, {mask}, v{acc}\nv_cmp_ne_u32 vcc, 0, v{acc}\ns_add_u32 s{sCnt}, s{sCnt}, 1\ns_cmp_lt_u32 s{sCnt}, {p.maxspin}")
        a(f"s_cbranch_vccz {D}\ns_cbranch_scc1 {L}")
        a.label(D)
    def treduce(r):
        a(f"v_permlane32_swap_b32 v{r}, v{r+2}\nv_permlane32_swap_b32 v{r+1}, v{r+3}")
        a(f"v_add_f32 v{r}, v{r}, v{r+2}\nv_add_f32 v{r+1}, v{r+1}, v{r+3}")
        a(f"v_permlane16_swap_b32 v{r}, v{r+1}\nv_add_f32 v{r}, v{r}, v{r+1}")
    def allred_groups(op, r, t):
        a(f"v_mov_b32 v{t}, v{r}\nv_permlane32_swap_b32 v{r}, v{t}\n{op} v{r}, v{r}, v{t}")
        a(f"v_mov_b32 v{t}, v{r}\nv_permlane16_swap_b32 v{r}, v{t}\n{op} v{r}, v{r}, v{t}")
    def masks():
        a(f"""v_and_b32 v9, 3, v{vL}
        v_lshlrev_b32 v9, 4, v9
        v_mov_b32 v10, 0xffff
        v_mov_b32 v11, 0
        v_lshlrev_b64 v[10:11], v9, v[10:11]
        v_and_b32 v9, 4, v{vL}
        v_cmp_eq_u32 vcc, 0, v9
        v_cndmask_b32 v{vM}, 0, v10, vcc
        v_cndmask_b32 v{vM+1}, 0, v11, vcc
        v_cndmask_b32 v{vM+2}, v10, 0, vcc
        v_cndmask_b32 v{vM+3}, v11, 0, vcc""".replace('v_cndmask_b32 v%d, v10, 0, vcc' % (vM+2), 'v_cndmask_b32_e64 v%d, v10, 0, vcc' % (vM+2)).replace('v_cndmask_b32 v%d, v11, 0, vcc' % (vM+3), 'v_cndmask_b32_e64 v%d, v11, 0, vcc' % (vM+3)))
    def xoff(dst):
        a(f"""v_bfe_u32 v{dst}, v{vL}, 3, 1
        v_mul_u32_u24 v{dst}, 1152, v{dst}
        v_and_b32 v9, 3, v{vL}
        v_lshl_add_u32 v{dst}, v9, 3, v{dst}
        v_lshl_add_u32 v{dst}, v{vG}, 1, v{dst}""")
    def epoch_wait():
        a(f"""s_waitcnt lgkmcnt(0)
        s_add_u32 s{sT[0]}, s{sT[0]}, 1
        s_add_u32 s{sT[1]}, s{sT[0]}, 37
        s_add_u32 s{sT[2]}, s{sT[0]}, 74
        s_add_u32 s{sT[3]}, s{sT[0]}, 111""")
    def lsbtags(t, flip=None):
        a(f"""v_and_b32 v{t}, 7, v{vL}
        v_mul_u32_u24 v{t}, 37, v{t}
        v_add_u32 v{t}, s{sT[0]}, v{t}""")
        if flip: a(f"v_xor_b32 v{t}, {flip}, v{t}")
        a(f"""v_and_b32 v{t}, 0xff, v{t}
        v_lshl_or_b32 v{t}, v{t}, 15, v{t}
        v_lshrrev_b32 v{t+1}, 2, v{t}
        v_lshrrev_b32 v{t+2}, 4, v{t}
        v_lshrrev_b32 v{t+3}, 6, v{t}""")
    def decode_v(dst, src, t):
        a(f"""v_lshrrev_b32 v{dst}, 5, v{src}
        v_lshlrev_b32 v{dst}, 7, v{dst}
        v_and_b32 v{t}, 15, v{src}
        v_lshl_add_u32 v{dst}, v{t}, 3, v{dst}
        v_bfe_u32 v{t}, v{src}, 4, 1
        v_lshl_add_u32 v{dst}, v{t}, 2, v{dst}
        v_and_b32 v{t}, 7, v{src}
        v_lshlrev_b32 v{t}, 3, v{t}
        v_bfe_u32 v{t+1}, v{src}, 3, 1
        v_lshl_add_u32 v{t}, v{t+1}, 2, v{t}
        v_add_u32 v{t}, 512, v{t}
        v_cmp_gt_u32 vcc, 128, v{src}
        v_cndmask_b32 v{dst}, v{t}, v{dst}, vcc""")
    def finish(nst):
        if p.stamp == 3:
            Ls = a.newlabel('noenc'); Lw = a.newlabel('encw')
            a(f"""s_waitcnt lgkmcnt(0)
            s_lshl_b32 s{sT0}, s2, 3
            s_add_u32 s{sT0}, s{sT0}, s{sWave}
            s_cmp_eq_u32 s{sT0}, {p.encwave}
            s_cbranch_scc0 {Ls}
{Lw}:
            s_memrealtime s[{sT0}:{sT1}]
            s_waitcnt lgkmcnt(0)
            s_sub_u32 s{sT0}, s{sT0}, s{sStamp+2*p.enc}
            s_cmp_lt_u32 s{sT0}, 3000
            s_cbranch_scc1 {Lw}
{Ls}:
            s_endpgm""")
            return
        if p.stamp:
            a(f"""s_waitcnt lgkmcnt(0)
            s_lshl_b32 s{sT0}, s2, 3
            s_add_u32 s{sT0}, s{sT0}, s{sWave}
            s_lshl_b32 s{sT0}, s{sT0}, 6
            s_add_u32 s{sT0}, s{sT0}, {STAMP}
            s_mov_b64 exec, 1
            v_mov_b32 v9, 0""")
            for k in range(13):
                a(f"v_mov_b32 v{10+k}, s{sStamp+2*k}\nbuffer_store_dword v{10+k}, v9, {R(rWS)}, s{sT0} offen offset:{4*k}")
        if p.stamp == 2:
            Ls = a.newlabel('nosum')
            a(f"""s_lshl_b32 s{sT0}, s2, 3
            s_add_u32 s{sT0}, s{sT0}, s{sWave}
            s_cmp_eq_u32 s{sT0}, {4 if nst == 'X' else 1024}
            s_cbranch_scc0 {Ls}""")
            srd(rB, 30, 256)
            for n, k in enumerate((1,2,3,4,7,8,9,10) if nst == 'X' else (1,2,3,4,7,8,10,11)):
                a(f"s_sub_u32 s{sT1}, s{sStamp+2*k}, s{sStamp}\nv_mov_b32 v{30+n}, s{sT1}\nbuffer_store_dword v{30+n}, v9, {R(rB)}, 0 offen offset:{4*n + (0 if nst == 'X' else 32)}")
            a.label(Ls)
        a("s_endpgm")

    def slot_store(d, base_s, wave_is_half, toff):
        tag4(d)
        if wave_is_half: a("s_mov_b32 exec_lo, 0x00ff00ff\ns_mov_b32 exec_hi, 0x00ff00ff")
        a(f"buffer_store_dwordx4 {V(d)}, v{toff}, {R(rWS)}, s{base_s} offen sc1")
        if wave_is_half: a("s_mov_b64 exec, -1")
    def slot_voff(dst, half):
        a(f"""v_lshrrev_b32 v{dst}, 1, v{vG}
        v_mul_u32_u24 v{dst}, 2304, v{dst}
        v_lshl_add_u32 v{dst}, v{vJ}, 4, v{dst}
        v_and_b32 v9, 1, v{vG}""")
        if half:
            a(f"v_lshl_add_u32 v{dst}, v9, 7, v{dst}\nv_add_u32 v{dst}, 2048, v{dst}")
        else:
            a(f"v_lshl_add_u32 v{dst}, v9, 8, v{dst}\ns_lshl_b32 s{sT0}, s{sWave}, 9\nv_add_u32 v{dst}, s{sT0}, v{dst}")

    def common_late():
        a(f"s_load_dword s{sT[0]}, s[{pWS}:{pWS+1}], {EPOCH}")
        srd(rWS, pWS, WS_REC)
        masks()
    stamp(0)
    a(f"""s_load_dwordx16 s[4:19], s[0:1], 0
    s_load_dwordx2 s[32:33], s[0:1], 112
    s_load_dwordx8 s[20:27], s[0:1], 64
    s_load_dwordx4 s[28:31], s[0:1], 96
    v_lshrrev_b32 v{vL}, 6, v0
    v_and_b32 v{vJ}, 15, v0
    v_readfirstlane_b32 s{sWave}, v{vL}
    v_and_b32 v{vL}, 63, v0
    v_bfe_u32 v{vG}, v0, 4, 2
    v_lshlrev_b32 v{vL16}, 4, v{vL}
    s_and_b32 s{sXcd}, s2, 7
    s_bfe_u32 s{sT0}, s2, 0x20003
    s_lshl_b32 s{sH}, s{sXcd}, 2
    s_add_u32 s{sH}, s{sH}, s{sT0}
    s_lshr_b32 s{sJ}, s2, 5
    s_bfe_u32 s{sI}, s2, 0x40003
    s_cmp_ge_u32 s{sJ}, 8
    s_cbranch_scc1 L_exit
    s_cmp_ge_u32 s{sWave}, 4
    s_cbranch_scc1 L_w47
    s_cmp_lg_u32 s{sWave}, 0
    s_cbranch_scc1 L_w123""")
    def zstamps():
        if p.stamp:
            for k in range(1, 13): a(f"s_mov_b32 s{sStamp+2*k}, 0")
    vXP, vAP, vWP, vDP, vXF = 13, 20, 92, 164, 168
    a(f"""v_lshlrev_b32 v10, 13, v{vG}
    v_lshl_add_u32 v10, v{vJ}, 4, v10
    s_mul_i32 s{sT0}, s{sJ}, {72*8192}
    s_lshl_b32 s{sT1}, s{sH}, 8
    s_add_u32 s{sT0}, s{sT0}, s{sT1}
    s_mul_i32 s{sT1}, s{sJ}, 144
    s_mov_b32 s{sT2}, 32768
    s_mov_b32 s{rA+2}, {SZ['x']}
    s_mov_b32 s{rA+3}, 0x20000
    s_mov_b32 s{rB+2}, {SZ['wq']}
    s_mov_b32 s{rB+3}, 0x20000""")
    xoff(12)
    zstamps()
    a(f"""s_waitcnt lgkmcnt(0)
    s_mov_b64 s[{rA}:{rA+1}], s[{pX}:{pX+1}]
    s_mov_b64 s[{rB}:{rB+1}], s[{pWQ}:{pWQ+1}]""")
    for v in range(5):
        a(f"buffer_load_ushort v{vXP+v}, v12, {R(rA)}, s{sT1} offen offset:{32*v}")
    for t in range(18):
        a(f"buffer_load_dwordx4 {V(vWP+4*t)}, v10, {R(rB)}, s{sT0} offen {nt}")
        if t < 17: a(f"s_add_u32 s{sT0}, s{sT0}, s{sT2}")
    stamp(1)
    a("s_barrier")
    common_late()
    a("s_waitcnt vmcnt(18)")
    for v in range(5): a(f"v_lshl_or_b32 v{vXP+v}, v{vXP+v}, 16, v{vXP+v}")
    for t in range(18): buildA(vAP+4*t, vXP+t//4, t % 4)
    epoch_wait()
    a(f"""s_lshl_b32 s{sT0}, s{sH}, 3
    s_add_u32 s{sT0}, s{sT0}, s{sJ}
    s_lshl_b32 s{sT0}, s{sT0}, 10
    s_add_u32 s{sT0}, s{sT0}, {QP}""")
    for t in range(18):
        a(f"s_waitcnt vmcnt({17-t})")
        mfma(vDP, vAP+4*t, vWP+4*t, '0' if t == 0 else None)
    tag4(vDP)
    a(f"buffer_store_dwordx4 {V(vDP)}, v{vL16}, {R(rWS)}, s{sT0} offen sc1")
    stamp(2)
    a(f"""s_barrier
    s_cmp_ge_u32 s2, 128
    s_cbranch_scc1 L_Y_main
    s_branch L_X_main""")

    a.label("L_w123")
    zstamps()
    if p.prefetch:
        a(f"""s_cmp_lg_u32 s{sWave}, 2
        s_cbranch_scc1 L_nopf
        s_getpc_b64 s[{sT0}:{sT1}]
L_pc:
        s_sub_u32 s{sT0}, s{sT0}, L_pc-{KNAME}
        s_subb_u32 s{sT1}, s{sT1}, 0
        s_lshr_b32 s{sT2}, s2, 3
        s_lshl_b32 s{sT2}, s{sT2}, 9
        v_add_u32 v9, s{sT2}, v{vL16}
        v_cmp_gt_u32 vcc, L_exit-{KNAME}, v9
        s_and_b32 exec_lo, vcc_lo, 0x01010101
        s_mov_b32 exec_hi, 0
        s_cbranch_execz L_pfdone
        global_load_dword v20, v9, s[{sT0}:{sT1}]
L_pfdone:
        s_mov_b64 exec, -1
L_nopf:""")
    xoff(12)
    a("s_waitcnt lgkmcnt(0)")
    srd(rA, pX, SZ['x'])
    a("s_barrier")
    common_late()
    a(f"""s_cmp_lg_u32 s{sWave}, 1
    s_cbranch_scc1 L_notw1""")
    srd(rB, pGW, SZ['gw'])
    a(f"""v_and_b32 v9, 31, v{vL}
    v_mul_u32_u24 v9, 36, v9
    v_lshrrev_b32 v10, 5, v{vL}
    v_mul_u32_u24 v11, 1152, v10
    v_add_u32 v11, v11, v9
    buffer_load_dwordx4 v[20:23], v11, {R(rA)}, 0 offen
    buffer_load_dwordx4 v[24:27], v11, {R(rA)}, 0 offen offset:16
    buffer_load_dword v28, v11, {R(rA)}, 0 offen offset:32
    buffer_load_dwordx4 v[32:35], v9, {R(rB)}, 0 offen
    buffer_load_dwordx4 v[36:39], v9, {R(rB)}, 0 offen offset:16
    buffer_load_dword v40, v9, {R(rB)}, 0 offen offset:32
    v_mov_b32 v13, 0
    v_lshlrev_b32 v10, 2, v10
    v_add_u32 v10, {L_GATE}, v10
    s_barrier
    s_waitcnt vmcnt(0)""")
    for k in range(9): a(f"v_dot2_f32_bf16 v13, v{20+k}, v{32+k}, v13")
    for m in ("quad_perm:[1,0,3,2]", "quad_perm:[2,3,0,1]", "row_half_mirror", "row_mirror"):
        a(f"v_add_f32_dpp v13, v13, v13 {m} row_mask:0xf bank_mask:0xf")
    a(f"""v_mov_b32 v14, v13
    v_permlane16_swap_b32 v13, v14
    v_add_f32 v13, v13, v14
    v_mul_f32 v13, {f2u(-math.log2(math.e))}, v13
    v_exp_f32 v13, v13
    v_add_f32 v13, 1.0, v13
    v_rcp_f32 v13, v13
    ds_write_b32 v10, v13
    s_branch L_w123j""")
    a.label("L_notw1")
    a("s_barrier\ns_waitcnt vmcnt(0)")
    a.label("L_w123j")
    epoch_wait()
    a(f"""s_cmp_ge_u32 s2, 128
    s_cbranch_scc1 L_Y_main
    s_branch L_X_main""")

    a.label("L_w47")
    zstamps()
    a(f"""s_sub_u32 s{sT2}, s{sWave}, 4
    s_mov_b32 s{rB+3}, 0x20000
    s_cmp_lt_u32 s2, 128
    s_cbranch_scc1 L_X_w47""")
    a(f"""s_sub_u32 s{sT0}, s2, 128
    s_lshl_b32 s{sT0}, s{sT0}, 16
    s_lshl_b32 s{sT1}, s{sT2}, 14
    s_add_u32 s{sT0}, s{sT0}, s{sT1}
    s_mov_b32 m0, s{sT1}
    s_mov_b32 s{rB+2}, {SZ['ckv']}
    s_waitcnt lgkmcnt(0)
    s_mov_b64 s[{rB}:{rB+1}], s[{pCKV}:{pCKV+1}]
    s_barrier""")
    for i in range(16):
        f = ((i & 7) << 1) | (i >> 3)
        a(f"v_xor_b32 v{20+(i&1)}, {f*16}, v{vL16}")
        if i % 4 == 0 and i: a(f"s_add_u32 s{sT0}, s{sT0}, 4096\ns_add_u32 m0, m0, 4096")
        if i == 4:
            common_late()
            a("s_barrier")
        a(f"buffer_load_dwordx4 v{20+(i&1)}, {R(rB)}, s{sT0} offen offset:{1024*(i%4)} {nt} lds")
    stamp(1)
    epoch_wait()
    a("s_branch L_Y_main")

    a.label("L_X_w47")
    a(f"""s_lshl_b32 s{sT0}, s{sJ}, 2
    s_add_u32 s{sT0}, s{sT0}, s{sT2}
    s_lshl_b32 s{sT0}, s{sT0}, 18
    s_lshl_b32 s{sT1}, s{sH}, 8
    s_add_u32 s{sT0}, s{sT0}, s{sT1}
    s_lshl_b32 s{sT1}, s{sT2}, 13
    v_xor_b32 v19, v{vJ}, v{vG}
    v_lshlrev_b32 v19, 4, v19
    v_lshl_add_u32 v20, v{vG}, 13, v19
    v_xor_b32 v21, 64, v20
    v_xor_b32 v22, 0x80, v20
    v_xor_b32 v23, 0xc0, v20
    s_mov_b32 m0, s{sT1}
    s_mov_b32 s{rB+2}, {SZ['wuk']}
    s_waitcnt lgkmcnt(0)
    s_mov_b64 s[{rB}:{rB+1}], s[{pWUK}:{pWUK+1}]
    s_barrier""")
    for n in range(4):
        a(f"buffer_load_dwordx4 v{20+n%4}, {R(rB)}, s{sT0} offen {nt} lds")
        a(f"s_add_u32 m0, m0, 1024\ns_add_u32 s{sT0}, s{sT0}, 32768")
    a(f"s_mov_b32 s{sQ}, s{sT0}")
    common_late()
    srd(rA, pX, SZ['x'])
    xoff(12)
    a("v_mov_b32 v9, v19")
    epoch_wait()
    a(f"""s_lshl_b32 s{sT0}, s{sH}, 13
    s_lshl_b32 s{sT1}, s{sT2}, 8
    s_add_u32 s{sT0}, s{sT0}, s{sT1}
    s_add_u32 s{sT0}, s{sT0}, {QP}
    s_add_u32 s{sT1}, s{sT0}, 4096
    v_lshlrev_b32 v24, 10, v{vG}
    v_lshl_add_u32 v24, v{vJ}, 4, v24""")
    a(f"""s_lshr_b32 s{sT3}, s{sT2}, 1
    s_lshl_b32 s{sT3}, s{sT3}, 8
    s_bitcmp1_b32 s{sT2}, 0
    s_cselect_b32 vcc_lo, 8, 0
    s_add_u32 s{sT3}, s{sT3}, vcc_lo
    s_add_u32 s{sT3}, s{sT3}, {L_QV}
    v_lshlrev_b32 v25, 4, v{vJ}
    v_lshl_add_u32 v25, v{vG}, 1, v25
    v_add_u32 v25, s{sT3}, v25""")
    a(f"""s_lshl_b32 s{sT3}, s{sT2}, 13
    v_lshl_add_u32 v26, v{vJ}, 8, v9
    v_add_u32 v26, s{sT3}, v26
    v_xor_b32 v27, 64, v26
    v_xor_b32 v28, 0x80, v26
    v_xor_b32 v29, 0xc0, v26""")
    a(f"""v_lshrrev_b32 v30, 3, v{vJ}
    v_lshlrev_b32 v30, 8, v30
    v_lshl_add_u32 v30, v{vG}, 4, v30
    v_add_u32 v30, {L_QV}, v30""")
    a(f"""v_and_b32 v31, 31, v{vL}
    s_lshl_b32 s{sT3}, s{sT2}, 5
    v_add_u32 v31, s{sT3}, v31
    v_bfe_u32 v32, v31, 3, 3
    v_mul_u32_u24 v32, 37, v32
    v_add_u32 v32, s{sT[0]}, v32
    v_and_b32 v33, 7, v31
    v_lshrrev_b32 v32, v33, v32
    v_and_b32 v32, 1, v32
    v_lshlrev_b32 v32, 16, v32
    v_xor_b32 v33, 0x10000, v32
    v_lshlrev_b32 v31, 1, v31
    v_lshrrev_b32 v34, 5, v{vL}
    v_lshl_add_u32 v31, v34, 15, v31
    s_lshl_b32 s{sT3}, s{sH}, 10
    s_lshl_b32 vcc_lo, s{sJ}, 8
    s_add_u32 s{sT3}, s{sT3}, vcc_lo
    s_add_u32 s{sT3}, s{sT3}, {QL}
    v_mov_b32 v35, 0xfffe0000
    s_barrier""")
    stamp(1)
    for n in range(4, 8):
        a(f"buffer_load_dwordx4 v{20+n%4}, {R(rB)}, s{sQ} offen {nt} lds")
        if n < 7: a(f"s_add_u32 m0, m0, 1024\ns_add_u32 s{sQ}, s{sQ}, 32768")
    a(f"s_waitcnt vmcnt({p.pollA_wait})")
    stamp(2)
    L = poll_begin()
    a(f"""buffer_load_dwordx4 v[36:39], v24, {R(rWS)}, s{sT0} offen sc1
    buffer_load_dwordx4 v[40:43], v24, {R(rWS)}, s{sT1} offen sc1
    s_waitcnt vmcnt(1)""")
    chk4(44, 36, True)
    a("s_waitcnt vmcnt(0)")
    chk4(44, 40)
    poll_end(L, 44, '0xff')
    stamp(3)
    for tl in range(2):
        for ks in range(4):
            a(f"ds_read_b128 {V(48+16*tl+4*ks)}, v{26+ks} offset:{4096*tl}")
    for k in range(4): a(f"v_add_f32 v{36+k}, v{36+k}, v{40+k}")
    treduce(36)
    a(f"""v_cvt_pk_bf16_f32 v36, v36, v36
    ds_write_b16 v25, v36
    s_waitcnt lgkmcnt(0)
    s_barrier""")
    for ks in range(4): a(f"ds_read_b128 {V(80+4*ks)}, v30 offset:{64*ks}")
    for ks in range(4):
        a(f"s_waitcnt lgkmcnt({3-ks})")
        mfma(96, 80+4*ks, 48+4*ks, '0' if ks == 0 else None)
        mfma(100, 80+4*ks, 64+4*ks, '0' if ks == 0 else None)
    a(f"""s_mov_b32 vcc_lo, 0xffff0000
    s_mov_b32 vcc_hi, 0xffff0000
    v_cndmask_b32 v96, v96, v100, vcc
    v_mul_f32 v96, {f2u(128**-0.5*math.log2(math.e))}, v96
    v_add_u32 v96, v96, v33
    v_and_or_b32 v96, v96, v35, v32
    buffer_store_short_d16_hi v96, v31, {R(rWS)}, s{sT3} offen sc1""")
    stamp(4)
    a("s_branch L_X_b2")

    a.label("L_X_main")
    a("s_barrier")
    a.label("L_X_b2")
    a("s_barrier")
    a(f"""s_cmp_ge_u32 s{sWave}, 5
    s_cbranch_scc1 L_X_wuv""")
    vXF, vAF, vWF, vDF = 13, 20, 60, 100
    srd(rB, pW1, SZ['w1'])
    a(f"s_mul_i32 s{sT1}, s{sI}, 72")
    for v in range(3): a(f"buffer_load_ushort v{vXF+v}, v12, {R(rA)}, s{sT1} offen offset:{32*v}")
    a(f"""s_mul_i32 s{sT0}, s{sI}, {36*9216}
    s_mul_i32 s{sT1}, s{sXcd}, 1152
    s_add_u32 s{sT0}, s{sT0}, s{sT1}
    s_lshl_b32 s{sT1}, s{sWave}, 8
    s_add_u32 s{sT0}, s{sT0}, s{sT1}
    v_mul_u32_u24 v10, 9216, v{vG}
    s_lshl_b32 s{sT2}, s{sXcd}, 4
    s_add_u32 s{sT2}, s{sT2}, s{sI}
    s_mul_i32 s{sT2}, s{sT2}, 4608
    s_add_u32 s{sT2}, s{sT2}, {HP}
    s_cmp_eq_u32 s{sWave}, 4
    s_cbranch_scc1 L_X_f1half
    v_lshl_add_u32 v10, v{vJ}, 4, v10""")
    for t in range(9):
        a(f"buffer_load_dwordx4 {V(vWF+4*t)}, v10, {R(rB)}, s{sT0} offen {nt}")
        if t < 8: a(f"s_add_u32 s{sT0}, s{sT0}, {4*9216}")
    slot_voff(11, False)
    a("s_waitcnt vmcnt(9)")
    for v in range(3): a(f"v_lshl_or_b32 v{vXF+v}, v{vXF+v}, 16, v{vXF+v}")
    for t in range(9): buildA(vAF+4*t, vXF+t//4, t % 4)
    for t in range(9):
        a(f"s_waitcnt vmcnt({8-t})")
        mfma(vDF, vAF+4*t, vWF+4*t, '0' if t == 0 else None)
    slot_store(vDF, sT2, False, 11)
    stamp(5)
    a("s_branch L_X_v")
    a.label("L_X_f1half")
    a(f"""v_and_b32 v9, 7, v{vJ}
    v_lshl_add_u32 v10, v9, 4, v10
    v_lshrrev_b32 v9, 3, v{vJ}
    v_mul_u32_u24 v9, {4*9216}, v9
    v_add_u32 v10, v10, v9""")
    for n in range(5):
        if n == 4: a("s_mov_b32 exec_lo, 0x00ff00ff\ns_mov_b32 exec_hi, 0x00ff00ff")
        a(f"buffer_load_dwordx4 {V(vWF+4*n)}, v10, {R(rB)}, s{sT0} offen {nt}")
        if n < 4: a(f"s_add_u32 s{sT0}, s{sT0}, {8*9216}")
    a("s_mov_b64 exec, -1")
    slot_voff(11, True)
    a("s_waitcnt vmcnt(5)")
    for v in range(3): a(f"v_lshl_or_b32 v{vXF+v}, v{vXF+v}, 16, v{vXF+v}")
    for t in range(9): buildA(vAF+4*t, vXF+t//4, t % 4)
    for n in range(5):
        a(f"s_waitcnt vmcnt({4-n})")
        mfma(vDF, vAF+8*n, vWF+4*n, '0' if n == 0 else None)
        if n < 4: mfma(vDF+4, vAF+8*n+4, vWF+4*n, '0' if n == 0 else None)
    for r in range(4): a(f"v_add_f32_dpp v{vDF+r}, v{vDF+4+r}, v{vDF+r} row_ror:8 row_mask:0xf bank_mask:0xf")
    slot_store(vDF, sT2, True, 11)
    stamp(5)
    a("s_branch L_X_v")
    a.label("L_X_wuv")
    a(f"""s_cmp_eq_u32 s{sWave}, 5
    s_cbranch_scc1 L_X_v""")
    srd(rB, pWUV, SZ['wuv'])
    a(f"""s_sub_u32 s{sT2}, s{sWave}, 6
    s_lshl_b32 s{sT0}, s{sJ}, 20
    s_lshl_b32 s{sT1}, s{sT2}, 16
    s_add_u32 s{sT0}, s{sT0}, s{sT1}
    s_lshl_b32 s{sT1}, s{sH}, 8
    s_add_u32 s{sT0}, s{sT0}, s{sT1}
    s_lshl_b32 s{sT1}, s{sT2}, 14
    s_add_u32 m0, s{sT1}, {L_WUV}
    v_lshlrev_b32 v9, 1, v{vG}
    v_xor_b32 v9, v9, v{vJ}
    v_lshlrev_b32 v9, 4, v9
    v_lshl_add_u32 v20, v{vG}, 17, v9
    v_xor_b32 v21, 0x80, v20""")
    for n in range(16):
        off = (64*(n & 1) + (n >> 1))*8192
        a(f"s_add_u32 s{sT1}, s{sT0}, {off}")
        a(f"buffer_load_dwordx4 v{20+((n>>1)&1)}, {R(rB)}, s{sT1} offen {nt} lds")
        if n < 15: a("s_add_u32 m0, m0, 1024")
    a("s_waitcnt vmcnt(0)")
    stamp(5)
    a.label("L_X_v")
    a("s_barrier")
    vBV = 20
    a(f"""v_bfe_u32 v9, v{vL}, 2, 2
    v_lshl_add_u32 v10, v{vG}, 3, v9
    v_lshlrev_b32 v10, 8, v10
    v_and_b32 v11, 1, v{vG}
    v_lshl_add_u32 v9, v11, 2, v9
    v_lshlrev_b32 v9, 1, v9
    v_bfe_u32 v11, v{vL}, 1, 1
    s_lshl_b32 s{sT0}, s{sWave}, 1
    v_add_u32 v11, s{sT0}, v11
    v_xor_b32 v9, v9, v11
    v_lshl_add_u32 v10, v9, 4, v10
    v_and_b32 v9, 1, v{vL}
    v_lshl_add_u32 v10, v9, 3, v10""")
    for ks in range(4):
        for hf in range(2):
            a(f"ds_read_b64_tr_b16 {V(vBV+4*ks+2*hf, 2)}, v10 offset:{L_WUV + (32*ks+4*hf)*256}")
    a(f"""v_bfe_u32 v9, v{vL}, 3, 1
    v_lshlrev_b32 v36, 15, v9
    v_and_b32 v11, 3, v{vL}
    v_lshl_add_u32 v36, v11, 11, v36
    v_lshl_add_u32 v36, v{vG}, 9, v36
    s_and_b32 s{sT2}, s{sWave}, 3
    s_lshr_b32 s{sT3}, s{sWave}, 2
    s_lshl_b32 s{sT0}, s{sT2}, 13
    s_lshl_b32 s{sT1}, s{sH}, 4
    s_add_u32 s{sT0}, s{sT0}, s{sT1}
    s_add_u32 s{sT0}, s{sT0}, {ST}""")
    a(f"""v_lshlrev_b32 v37, 14, v9
    v_lshl_add_u32 v37, v{vG}, 8, v37
    v_and_b32 v11, 7, v{vL}
    v_lshl_add_u32 v37, v11, 4, v37
    s_lshl_b32 s{sT1}, s{sH}, 2
    s_add_u32 s{sT1}, s{sT1}, s{sJ}
    s_lshl_b32 s{sQ+1}, s{sT1}, 10
    s_add_u32 s{sQ+1}, s{sQ+1}, {CX}
    s_lshl_b32 s{sT1}, s{sT1}, 15
    s_lshl_b32 s{sQ}, s{sT2}, 12
    s_add_u32 s{sT1}, s{sT1}, s{sQ}
    s_lshl_b32 s{sQ}, s{sT3}, 7
    s_add_u32 s{sT1}, s{sT1}, s{sQ}
    s_add_u32 s{sT1}, s{sT1}, {OP}""")
    a(f"v_and_b32 v38, 1, v{vG}\nv_mul_u32_u24 v38, 0xff, v38")
    lsbtags(40, "v38")
    a(f"""v_mul_u32_u24 v38, {4*272}, v9
    v_lshl_add_u32 v38, v11, 4, v38
    v_and_b32 v39, 1, v{vG}
    v_lshl_add_u32 v38, v39, 3, v38
    s_mul_i32 s{sQ}, s{sT2}, 272
    s_lshl_b32 s{sQ+2}, s{sT3}, 7
    s_add_u32 s{sQ}, s{sQ}, s{sQ+2}
    s_add_u32 s{sQ}, s{sQ}, {L_AIMG}
    v_add_u32 v38, s{sQ}, v38""")
    a(f"""v_lshlrev_b32 v44, 5, v9
    s_lshl_b32 s{sQ}, s{sT2}, 2
    s_add_u32 s{sQ}, s{sQ}, {L_VST}
    v_add_u32 v44, s{sQ}, v44
    v_lshlrev_b32 v45, 5, v39
    v_add_u32 v45, {L_VST}, v45""")
    a(f"""v_mul_u32_u24 v46, 272, v11
    v_lshl_add_u32 v46, v{vG}, 4, v46
    v_add_u32 v46, {L_AIMG}, v46""")
    a(f"""v_lshlrev_b32 v47, 9, v{vG}
    v_lshl_add_u32 v47, v{vJ}, 2, v47
    s_lshl_b32 s{sQ}, s{sWave}, 6
    v_add_u32 v47, s{sQ}, v47
    v_and_b32 v48, 3, v{vL}
    v_mul_u32_u24 v48, 37, v48
    v_add_u32 v48, s{sT[0]}, v48""")
    stamp(6)
    L = poll_begin()
    a(f"""buffer_load_dwordx4 v[52:55], v36, {R(rWS)}, s{sT0} offen sc1
    s_waitcnt vmcnt(0)
    v_xor_b32 v49, s{sT[0]}, v54""")
    poll_end(L, 49, '-1')
    stamp(7)
    vOD = 56
    L = poll_begin()
    for u in range(4): a(f"buffer_load_dwordx4 {V(vOD+4*u)}, v37, {R(rWS)}, s{sT1} offen offset:{1024*u} sc1")
    a(f"""v_mov_b32 v50, v52
    v_max_f32_dpp v50, v50, v50 quad_perm:[1,0,3,2] row_mask:0xf bank_mask:0xf
    v_max_f32_dpp v50, v50, v50 quad_perm:[2,3,0,1] row_mask:0xf bank_mask:0xf""")
    allred_groups("v_max_f32", 50, 51)
    a(f"""v_sub_f32 v51, v52, v50
    v_exp_f32 v51, v51
    v_cvt_pk_bf16_f32 v51, v51, v51""")
    for u in range(4): buildA(72+4*u, 51, u)
    a(f"""v_and_b32 v51, 0xffff0000, v51
    v_mul_f32 v51, v51, v53
    v_add_f32_dpp v51, v51, v51 quad_perm:[1,0,3,2] row_mask:0xf bank_mask:0xf
    v_add_f32_dpp v51, v51, v51 quad_perm:[2,3,0,1] row_mask:0xf bank_mask:0xf""")
    allred_groups("v_add_f32", 51, 55)
    for u in range(4):
        a(f"s_waitcnt vmcnt({3-u})")
        mfma(88, 72+4*u, vOD+4*u, '0' if u == 0 else None)
        chkv(49, vOD+4*u, 40, u == 0)
    poll_end(L, 49, '0x10001')
    stamp(8)
    a(f"""ds_write2_b32 v44, v50, v51 offset0:0 offset1:4
    v_cvt_pk_bf16_f32 v88, v88, v89
    v_cvt_pk_bf16_f32 v89, v90, v91
    s_mov_b32 exec_lo, 0x00ff00ff
    s_mov_b32 exec_hi, 0xff00ff00
    ds_write_b64 v38, v[88:89]
    s_mov_b64 exec, -1
    s_waitcnt lgkmcnt(0)
    s_barrier""")
    for ks in range(4): a(f"ds_read_b128 {V(56+4*ks)}, v46 offset:{64*ks}")
    a(f"ds_read_b128 v[72:75], v45\nds_read_b128 v[76:79], v45 offset:16")
    for ks in range(4):
        a(f"s_waitcnt lgkmcnt({5-ks})")
        mfma(88, 56+4*ks, vBV+4*ks, '0' if ks == 0 else None)
    a(f"""s_waitcnt lgkmcnt(0)
    v_max3_f32 v50, v72, v73, v74
    v_max_f32 v50, v50, v75""")
    for r in range(4): a(f"v_sub_f32 v{72+r}, v{72+r}, v50")
    for r in range(4): a(f"v_exp_f32 v{72+r}, v{72+r}")
    a(f"""v_mul_f32 v51, v72, v76
    v_fmac_f32 v51, v73, v77
    v_fmac_f32 v51, v74, v78
    v_fmac_f32 v51, v75, v79
    v_rcp_f32 v51, v51
    v_mul_f32 v50, v72, v88
    v_fmac_f32 v50, v73, v89
    v_fmac_f32 v50, v74, v90
    v_fmac_f32 v50, v75, v91
    v_mul_f32 v50, v50, v51
    v_mov_b32_sdwa v50, v48 dst_sel:BYTE_0 dst_unused:UNUSED_PRESERVE src0_sel:BYTE_0
    s_mov_b32 exec_hi, 0
    buffer_store_dword v50, v47, {R(rWS)}, s{sQ+1} offen sc1
    s_mov_b64 exec, -1""")
    stamp(9)
    a(f"""s_cmp_ge_u32 s2, 72
    s_cbranch_scc1 L_X_end
    s_cmp_ge_u32 s2, 36
    s_cselect_b32 s{sT2}, 1, 0
    s_mul_i32 s{sT3}, s{sT2}, 36
    s_sub_u32 s{sT3}, s2, s{sT3}
    s_mul_i32 s{sT0}, s{sWave}, {16*4608}
    s_mul_i32 s{sT1}, s{sT2}, 2304
    s_add_u32 s{sT0}, s{sT0}, s{sT1}
    s_lshl_b32 s{sT1}, s{sT3}, 6
    s_add_u32 s{sT0}, s{sT0}, s{sT1}
    s_add_u32 s{sT0}, s{sT0}, {FP}
    v_lshrrev_b32 v9, 2, v{vL}
    v_mul_u32_u24 v10, 4608, v9
    v_and_b32 v11, 3, v{vL}
    v_lshl_add_u32 v10, v11, 4, v10
    v_lshl_add_u32 v13, v{vG}, 2, v11
    v_lshlrev_b32 v13, 5, v13
    s_lshl_b32 s{sT1}, s{sWave}, 2
    s_add_u32 s{sT1}, s{sT1}, {L_RED}
    v_add_u32 v13, s{sT1}, v13""")
    srd(rB, pB2, SZ['b2']); srd(rC, pOUT, SZ['out'])
    a(f"""s_lshl_b32 s{sT1}, s{sT3}, 2
    v_add_u32 v14, s{sT1}, v11""")
    decode_v(15, 14, 16)
    a(f"""v_bfe_u32 v14, v{vL}, 2, 2
    v_add_u32 v15, v15, v14
    v_lshlrev_b32 v15, 1, v15
    buffer_load_ushort v16, v15, {R(rB)}, 0 offen
    s_lshl_b32 s{sT1}, s{sT2}, 2
    s_add_u32 s{sT1}, s{sT1}, {L_GATE}
    v_mov_b32 v17, s{sT1}
    ds_read_b32 v17, v17
    v_lshlrev_b32 v18, 5, v{vJ}
    v_add_u32 v18, {L_RED}, v18
    s_mul_i32 s{sT2}, s{sT2}, 1152
    s_waitcnt vmcnt(0) lgkmcnt(0)
    v_lshlrev_b32 v16, 16, v16
    v_sub_f32 v17, 1.0, v17
    v_mul_f32 v16, v16, v17""")
    L = poll_begin()
    a(f"""buffer_load_dwordx4 v[20:23], v10, {R(rWS)}, s{sT0} offen sc1
    s_waitcnt vmcnt(0)""")
    chk4(24, 20, True)
    poll_end(L, 24, '0xff')
    stamp(10)
    treduce(20)
    a(f"""v_add_f32_dpp v20, v20, v20 row_ror:4 row_mask:0xf bank_mask:0xf
    v_add_f32_dpp v20, v20, v20 row_ror:8 row_mask:0xf bank_mask:0xf
    ds_write_b32 v13, v20
    s_waitcnt lgkmcnt(0)
    s_barrier
    s_cmp_lg_u32 s{sWave}, 0
    s_cbranch_scc1 L_X_end
    ds_read_b128 v[20:23], v18
    ds_read_b128 v[24:27], v18 offset:16
    s_waitcnt lgkmcnt(0)
    v_add_f32 v20, v20, v24
    v_add_f32 v21, v21, v25
    v_add_f32 v22, v22, v26
    v_add_f32 v23, v23, v27
    v_add_f32 v20, v20, v21
    v_add_f32 v22, v22, v23
    v_add_f32 v20, v20, v16
    v_add_f32 v20, v20, v22
    v_cvt_pk_bf16_f32 v20, v20, v20
    s_mov_b64 exec, 0xffff
    buffer_store_short v20, v15, {R(rC)}, s{sT2} offen
    s_cmp_lg_u32 s2, 0
    s_cbranch_scc1 L_X_end
    s_mov_b64 exec, 1
    v_mov_b32 v21, s{sT[0]}
    v_mov_b32 v22, 0
    buffer_store_dword v21, v22, {R(rWS)}, 0 offen offset:{EPOCH} sc1""")
    a.label("L_X_end")
    stamp(11)
    finish('X')

    a.label("L_Y_main")
    vQA, vPA, vSF, vPF, vACC = 20, 36, 48, 112, 176
    vTG, vTO = 208, 212
    vQG = 216
    a(f"""s_and_b32 s{sT2}, s{sWave}, 3
    s_lshr_b32 s{sT3}, s{sWave}, 2
    v_and_b32 v9, 7, v{vJ}
    v_lshlrev_b32 v9, 1, v9
    v_lshrrev_b32 v10, 3, v{vJ}
    v_or_b32 v9, v9, v10
    v_lshlrev_b32 v9, 4, v9
    v_lshl_add_u32 v9, v{vG}, 8, v9
    v_lshl_add_u32 v9, v{vJ}, 10, v9
    s_lshl_b32 s{sT0}, s{sT2}, 14
    v_add_u32 v13, s{sT0}, v9
    s_lshl_b32 s{sT0}, s{sT3}, 14
    s_add_u32 s{sT0}, s{sT0}, {L_QIMG}
    v_add_u32 v{vQA}, s{sT0}, v9""")
    for ks in range(1, 16): a(f"v_xor_b32 v{vQA+ks}, {16*ks}, v{vQA}")
    a(f"""v_lshrrev_b32 v9, 2, v{vL}
    v_and_b32 v10, 7, v9
    v_lshlrev_b32 v10, 1, v10
    v_lshrrev_b32 v11, 3, v9
    v_or_b32 v10, v10, v11
    v_bfe_u32 v11, v{vL}, 1, 1
    v_xor_b32 v10, v10, v11
    v_lshlrev_b32 v10, 4, v10
    v_lshl_add_u32 v10, v9, 10, v10
    v_and_b32 v11, 1, v{vL}
    v_lshl_add_u32 v10, v11, 3, v10
    s_lshl_b32 s{sT0}, s{sT2}, 8
    v_add_u32 v{vPA}, s{sT0}, v10""")
    for ct in range(1, 8): a(f"v_xor_b32 v{vPA+ct}, {32*ct}, v{vPA}")
    lsbtags(vTG)
    a(f"s_bitcmp1_b32 s2, 0\ns_cselect_b32 s{sT0}, 0xff, 0")
    lsbtags(vTO, f"s{sT0}")
    a(f"s_mul_i32 s{sT0}, s{sI}, 9\nv_add_u32 v9, s{sT0}, v{vJ}")
    decode_v(14, 9, 10)
    a(f"""s_mul_i32 s{sT0}, s{sXcd}, 576
    v_add_u32 v14, s{sT0}, v14
    v_mul_u32_u24 v15, 1152, v14""")
    for t in range(9): a(f"v_readlane_b32 s{sQ+t}, v15, {t}")
    a(f"""s_bfe_u32 s{sT0}, s2, 0x10006
    s_lshl_b32 s{sT0}, s{sT0}, 15
    s_lshl_b32 s{sT1}, s{sWave}, 12
    s_add_u32 s{sT0}, s{sT0}, s{sT1}
    s_add_u32 s{sT0}, s{sT0}, {QL}
    s_add_u32 s{sT1}, s{sT1}, {L_QIMG}
    s_and_b32 vcc_lo, s{sWave}, 1
    s_lshl_b32 vcc_lo, vcc_lo, 7
    s_bfe_u32 vcc_hi, s{sWave}, 0x10001
    s_lshl_b32 vcc_hi, vcc_hi, 4
    s_or_b32 vcc_lo, vcc_lo, vcc_hi
    v_xor_b32 v16, vcc_lo, v{vL16}
    v_add_u32 v16, s{sT1}, v16
    v_xor_b32 v17, 32, v16
    v_xor_b32 v18, 64, v16
    v_xor_b32 v19, 0x60, v16
    s_waitcnt vmcnt(0)
    s_barrier""")
    stamp(3)
    def qloads():
        for n in range(4): a(f"buffer_load_dwordx4 {V(vQG+4*n)}, v{vL16}, {R(rWS)}, s{sT0} offen offset:{1024*n} sc1")
    qloads()
    for ks in range(16):
        a(f"v_xor_b32 v9, {16*ks}, v13\nds_read_b128 {V(vSF+4*ks)}, v9")
    for ct in range(8):
        for T in range(4):
            a(f"ds_read_b64_tr_b16 {V(vPF+8*ct+2*T, 2)}, v{vPA+ct} offset:{16384*T}")
    Lq = a.newlabel('qchk')
    a(f"s_mov_b32 s{sCnt}, 0\ns_branch {Lq}")
    L = a.newlabel('poll'); a.label(L)
    qloads()
    a.label(Lq)
    for n in range(4):
        a(f"s_waitcnt vmcnt({3-n})")
        chkv(9, vQG+4*n, vTG, n == 0)
    poll_end(L, 9, '0x10001')
    stamp(4)
    for n in range(4): a(f"ds_write_b128 v{16+n}, {V(vQG+4*n)} offset:{1024*n}")
    a(f"""s_lshl_b32 s{sT0}, s{sT3}, 12
    s_add_u32 s{sT0}, s{sT0}, {L_SX}
    v_add_u32 v10, s{sT0}, v{vL16}
    s_lshl_b32 s{sT0}, s{sT2}, 10
    v_add_u32 v11, s{sT0}, v10
    s_waitcnt lgkmcnt(0)
    s_barrier""")
    stamp(5)
    NQ = 8
    for ks in range(NQ): a(f"ds_read_b128 {V(vQG+4*ks)}, v{vQA+ks}")
    for ks in range(16):
        rem = min(15, ks+NQ-1) - ks
        a(f"s_waitcnt lgkmcnt({rem})")
        mfma(vACC, vSF+4*ks, vQG+4*(ks % NQ), '0' if ks == 0 else None)
        if ks + NQ < 16: a(f"ds_read_b128 {V(vQG+4*(ks%NQ))}, v{vQA+ks+NQ}")
    a(f"""s_sub_u32 s{sT0}, s2, 128
    s_lshl_b32 s{sT1}, s{sT0}, 9
    s_lshl_b32 s{sT0}, s{sT0}, 8
    s_lshl_b32 vcc_lo, s{sT3}, 21
    s_add_u32 s{sT0}, s{sT0}, vcc_lo
    s_lshl_b32 vcc_lo, s{sT2}, 15
    s_add_u32 s{sT0}, s{sT0}, vcc_lo
    s_add_u32 s{sT0}, s{sT0}, {OP}
    s_lshl_b32 vcc_lo, s{sT3}, 8
    s_add_u32 s{sT1}, s{sT1}, vcc_lo
    s_add_u32 s{sT1}, s{sT1}, {ST}
    ds_write_b128 v11, {V(vACC)}
    v_lshlrev_b32 v12, 19, v{vG}
    v_lshl_add_u32 v12, v{vJ}, 4, v12
    s_waitcnt lgkmcnt(0)
    s_barrier""")
    stamp(6)
    vS = 48
    for T in range(4): a(f"ds_read_b128 {V(vS+4*T)}, v10 offset:{1024*T}")
    a(f"""s_waitcnt lgkmcnt(2)
    v_max3_f32 v64, v{vS}, v{vS+1}, v{vS+2}
    v_max3_f32 v65, v{vS+3}, v{vS+4}, v{vS+5}
    v_max3_f32 v64, v64, v{vS+6}, v{vS+7}
    s_waitcnt lgkmcnt(0)
    v_max3_f32 v65, v65, v{vS+8}, v{vS+9}
    v_max3_f32 v64, v64, v{vS+10}, v{vS+11}
    v_max3_f32 v65, v65, v{vS+12}, v{vS+13}
    v_max3_f32 v64, v64, v{vS+14}, v{vS+15}
    v_max_f32 v64, v64, v65""")
    allred_groups("v_max_f32", 64, 65)
    for k in range(16): a(f"v_sub_f32 v{vS+k}, v{vS+k}, v64")
    for k in range(16): a(f"v_exp_f32 v{vS+k}, v{vS+k}")
    vP = 72
    for k in range(8): a(f"v_cvt_pk_bf16_f32 v{vP+k}, v{vS+2*k}, v{vS+2*k+1}")
    for ct in range(8): mfma(vACC+4*ct, vP, vPF+8*ct, '0')
    for k in range(8): a(f"v_add_f32 v{vS+k}, v{vS+k}, v{vS+8+k}")
    for k in range(4): a(f"v_add_f32 v{vS+k}, v{vS+k}, v{vS+4+k}")
    a(f"v_add_f32 v{vS}, v{vS}, v{vS+2}\nv_add_f32 v{vS+1}, v{vS+1}, v{vS+3}\nv_add_f32 v65, v{vS}, v{vS+1}")
    allred_groups("v_add_f32", 65, 66)
    a(f"""v_mov_b32 v66, s{sT[0]}
    v_mov_b32 v67, 0
    s_cmp_eq_u32 s{sT2}, 0
    s_cselect_b32 exec_lo, 0xffff, 0
    s_mov_b32 exec_hi, 0
    buffer_store_dwordx4 v[64:67], v{vL16}, {R(rWS)}, s{sT1} offen sc1
    s_mov_b64 exec, -1""")
    for ct in range(8): mfma(vACC+4*ct, vP+4, vPF+8*ct+4)
    a("v_mov_b32 v9, 0x10001")
    for r in range(4):
        o = 80+4*r
        for k in range(4): a(f"v_cvt_pk_bf16_f32 v{o+k}, v{vACC+8*k+r}, v{vACC+8*k+4+r}")
        for k in range(4): a(f"v_bfi_b32 v{o+k}, v9, v{vTO+k}, v{o+k}")
        a(f"buffer_store_dwordx4 {V(o)}, v12, {R(rWS)}, s{sT0} offen sc1")
        if r < 3: a(f"s_add_u32 s{sT0}, s{sT0}, 0x20000")
    stamp(7)
    a(f"""s_cmp_ge_u32 s{sWave}, 5
    s_cbranch_scc1 L_Y_fg""")
    srd(rB, pW2, SZ['w2']); srd(rC, pWO, SZ['wo'])
    a("s_barrier")
    vW2, vWO, vA2, vD2 = 100, 136, 20, 60
    a(f"""s_lshl_b32 s{sT0}, s{sH}, 2
    s_add_u32 s{sT0}, s{sT0}, s{sJ}
    s_sub_u32 s{sT0}, s{sT0}, 4
    s_mul_i32 s{sT0}, s{sT0}, {32*1152}
    v_mul_u32_u24 v10, 1152, v{vG}
    s_lshl_b32 s{sT1}, s{sWave}, 8
    v_add_u32 v10, s{sT1}, v10
    s_cmp_eq_u32 s{sWave}, 4
    s_cbranch_scc1 L_Y_half
    v_lshl_add_u32 v10, v{vJ}, 4, v10""")
    for t in range(9): a(f"buffer_load_dwordx4 {V(vW2+4*t)}, v10, {R(rB)}, s{sQ+t} offen {nt}")
    for t in range(8):
        a(f"buffer_load_dwordx4 {V(vWO+4*t)}, v10, {R(rC)}, s{sT0} offen {nt}")
        if t < 7: a(f"s_add_u32 s{sT0}, s{sT0}, {4*1152}")
    slot_voff(11, False)
    a("s_branch L_Y_o2")
    a.label("L_Y_half")
    a(f"""v_and_b32 v9, 7, v{vJ}
    v_lshl_add_u32 v10, v9, 4, v10
    s_mov_b32 vcc_lo, 0xff00ff00
    s_mov_b32 vcc_hi, 0xff00ff00""")
    for n in range(5):
        if n < 4:
            a(f"v_mov_b32 v13, s{sQ+2*n}\nv_mov_b32 v14, s{sQ+2*n+1}\nv_cndmask_b32 v13, v13, v14, vcc\nv_add_u32 v13, v13, v10")
            a(f"buffer_load_dwordx4 {V(vW2+4*n)}, v13, {R(rB)}, 0 offen {nt}")
        else:
            a("s_mov_b32 exec_lo, 0x00ff00ff\ns_mov_b32 exec_hi, 0x00ff00ff")
            a(f"buffer_load_dwordx4 {V(vW2+4*n)}, v10, {R(rB)}, s{sQ+8} offen {nt}")
            a("s_mov_b64 exec, -1")
    a(f"v_lshrrev_b32 v9, 3, v{vJ}\nv_mul_u32_u24 v9, {4*1152}, v9\nv_add_u32 v10, v10, v9")
    for n in range(4):
        a(f"buffer_load_dwordx4 {V(vWO+4*n)}, v10, {R(rC)}, s{sT0} offen {nt}")
        if n < 3: a(f"s_add_u32 s{sT0}, s{sT0}, {8*1152}")
    slot_voff(11, True)
    a.label("L_Y_o2")
    a(f"""v_bfe_u32 v9, v{vL}, 3, 1
    v_and_b32 v13, 3, v{vL}
    v_lshl_add_u32 v13, v13, 2, v{vG}
    v_lshlrev_b32 v13, 2, v13
    v_mul_u32_u24 v14, 192, v9
    v_add_u32 v14, v14, v13
    v_add_u32 v14, {L_HX}, v14
    v_and_b32 v15, 7, v{vL}
    v_lshl_add_u32 v15, v15, 2, v{vG}
    v_lshlrev_b32 v15, 2, v15
    v_lshl_add_u32 v15, v9, 9, v15
    v_lshlrev_b32 v16, 2, v9
    v_add_u32 v16, {L_GATE}, v16
    ds_read_b32 v16, v16
    v_mul_u32_u24 v17, 37, v{vG}
    v_add_u32 v17, s{sT[0]}, v17
    s_lshl_b32 s{sT0}, s{sH}, 12
    s_sub_u32 s{sT1}, s{sJ}, 4
    s_lshl_b32 s{sT1}, s{sT1}, 7
    s_add_u32 s{sT0}, s{sT0}, s{sT1}
    s_add_u32 s{sT0}, s{sT0}, {CX}
    s_sub_u32 s{sT2}, s2, 128
    s_mul_i32 s{sT2}, s{sT2}, 4608
    s_add_u32 s{sT2}, s{sT2}, {FP}
    s_barrier""")
    stamp(8)
    for v in range(3): a(f"ds_read_b32 v{68+v}, v14 offset:{64*v}")
    a("s_waitcnt lgkmcnt(0)")
    for t in range(9): buildA(vA2+4*t, 68+t//4, t % 4)
    a(f"""s_cmp_eq_u32 s{sWave}, 4
    s_cbranch_scc1 L_Y_half2""")
    for t in range(9):
        a(f"s_waitcnt vmcnt({16-t})")
        mfma(vD2, vA2+4*t, vW2+4*t, '0' if t == 0 else None)
    a("s_branch L_Y_o3")
    a.label("L_Y_half2")
    for n in range(5):
        a(f"s_waitcnt vmcnt({8-n})")
        mfma(vD2, vA2+8*n, vW2+4*n, '0' if n == 0 else None)
        if n < 4: mfma(vD2+4, vA2+8*n+4, vW2+4*n, '0' if n == 0 else None)
    a.label("L_Y_o3")
    stamp(9)
    L = poll_begin()
    for cq in range(4): a(f"buffer_load_dword v{72+cq}, v15, {R(rWS)}, s{sT0} offen offset:{1024*cq} sc1")
    a("s_waitcnt vmcnt(0)")
    a("v_xor_b32 v76, v17, v72")
    for cq in range(1, 4): a(f"v_bitop3_b32 v76, v76, v{72+cq}, v17 bitop3:0xf6")
    poll_end(L, 76, '0xff')
    stamp(10)
    a(f"""v_add_f32 v72, v72, v73
    v_add_f32 v74, v74, v75
    v_add_f32 v72, v72, v74
    v_mul_f32 v72, v72, v16
    v_cvt_pk_bf16_f32 v72, v72, v72
    v_mov_b32 v73, v72
    v_mov_b32 v74, v72
    v_mov_b32_dpp v73, v72 row_shr:4 row_mask:0xf bank_mask:0xa
    v_mov_b32_dpp v74, v72 row_shl:4 row_mask:0xf bank_mask:0x5
    s_cmp_eq_u32 s{sWave}, 4
    s_cbranch_scc1 L_Y_half3""")
    for t in range(8):
        buildA(vA2+4*t, 73+t//4, t % 4)
        if t > 0: mfma(vD2, vA2+4*(t-1), vWO+4*(t-1))
    mfma(vD2, vA2+28, vWO+28)
    slot_store(vD2, sT2, False, 11)
    a("s_branch L_Y_end")
    a.label("L_Y_half3")
    for t in range(8):
        buildA(vA2+4*t, 73+t//4, t % 4)
        if t > 0: mfma(vD2+4*((t-1) & 1), vA2+4*(t-1), vWO+4*((t-1)//2))
    mfma(vD2+4, vA2+28, vWO+12)
    for r in range(4): a(f"v_add_f32_dpp v{vD2+r}, v{vD2+4+r}, v{vD2+r} row_ror:8 row_mask:0xf bank_mask:0xf")
    slot_store(vD2, sT2, True, 11)
    a("s_branch L_Y_end")
    a.label("L_Y_fg")
    a(f"""s_cmp_eq_u32 s{sWave}, 7
    s_cbranch_scc1 L_Y_fg7""")
    srd(rB, pB1, SZ['b1'])
    a(f"""s_sub_u32 s{sT2}, s{sWave}, 5
    s_mul_i32 s{sT0}, s{sXcd}, {16*4608}
    s_mul_i32 s{sT1}, s{sT2}, 2304
    s_add_u32 s{sT0}, s{sT0}, s{sT1}
    s_mul_i32 s{sT1}, s{sI}, 144
    s_add_u32 s{sT0}, s{sT0}, s{sT1}
    s_add_u32 s{sT0}, s{sT0}, {HP}
    s_add_u32 s{sQ}, s{sT0}, {4*4608}
    s_add_u32 s{sQ+1}, s{sT0}, {8*4608}
    s_add_u32 s{sQ+2}, s{sT0}, {12*4608}
    v_mul_u32_u24 v10, 4608, v{vG}
    v_lshl_add_u32 v10, v{vJ}, 4, v10
    v_add_u32 v14, v14, v{vG}
    v_lshlrev_b32 v14, 1, v14
    s_lshl_b32 s{sT1}, s{sT2}, 2
    s_add_u32 s{sT1}, s{sT1}, {L_GATE}
    v_mov_b32 v16, s{sT1}
    ds_read_b32 v16, v16
    s_mul_i32 s{sT1}, s{sT2}, 192
    s_add_u32 s{sT1}, s{sT1}, {L_HX}
    v_lshl_add_u32 v17, v{vJ}, 2, v{vG}
    v_lshlrev_b32 v17, 2, v17
    v_add_u32 v17, s{sT1}, v17
    s_mov_b32 exec_lo, 0x01ff01ff
    s_mov_b32 exec_hi, 0x01ff01ff
    buffer_load_ushort v15, v14, {R(rB)}, 0 offen""")
    def floads():
        for k, s in enumerate((sT0, sQ, sQ+1, sQ+2)):
            a(f"buffer_load_dwordx4 {V(20+4*k)}, v10, {R(rWS)}, s{s} offen sc1")
    floads()
    Lf = a.newlabel('fchk')
    a(f"s_barrier\ns_mov_b32 s{sCnt}, 0\ns_branch {Lf}")
    L = a.newlabel('poll'); a.label(L)
    floads()
    a.label(Lf)
    for k in range(4):
        a(f"s_waitcnt vmcnt({3-k})")
        chk4(36, 20+4*k, k == 0)
    poll_end(L, 36, '0xff')
    stamp(8)
    a("s_mov_b64 exec, -1")
    for k in range(4): a(f"v_add_f32 v{20+k}, v{20+k}, v{24+k}\nv_add_f32 v{28+k}, v{28+k}, v{32+k}")
    for k in range(4): a(f"v_add_f32 v{20+k}, v{20+k}, v{28+k}")
    treduce(20)
    c1 = -2*math.sqrt(2/math.pi)*math.log2(math.e)
    a(f"""v_lshlrev_b32 v15, 16, v15
    v_add_f32 v20, v20, v15
    v_mul_f32 v21, v20, v20
    v_mov_b32 v22, {f2u(c1)}
    v_fmac_f32 v22, {f2u(c1*0.044715)}, v21
    v_mul_f32 v21, v22, v20
    v_exp_f32 v21, v21
    v_add_f32 v21, 1.0, v21
    v_rcp_f32 v21, v21
    s_waitcnt lgkmcnt(0)
    v_sub_f32 v16, 1.0, v16
    v_mul_f32 v20, v20, v21
    v_mul_f32 v20, v20, v16
    v_cvt_pk_bf16_f32 v20, v20, v20
    s_mov_b32 exec_lo, 0x01ff01ff
    s_mov_b32 exec_hi, 0x01ff01ff
    ds_write_b32 v17, v20
    s_mov_b64 exec, -1
    s_waitcnt lgkmcnt(0)""")
    a("s_branch L_Y_fgend")
    a.label("L_Y_fg7")
    a("s_barrier")
    a.label("L_Y_fgend")
    a("s_barrier")
    a.label("L_Y_end")
    stamp(11)
    finish('Y')
    a.label("L_exit")
    a("s_endpgm")
    return a.finalize()

HEADER = open('gated_mix__compressed_kv_cla__dense_activation_gelu__decode.s.ref').read().split('; Override')[0]

def emit(path, p=P):
    body = build(p)
    s = HEADER + f"""; @launch grid=(256,1,1) block=(512,1,1) lds={LDS_BYTES}
.amdgcn_target "amdgcn-amd-amdhsa--gfx950"
.text
.globl {KNAME}
.p2align 8
.type {KNAME},@function
{KNAME}:
{body}.section .rodata,"a"
.p2align 6
.amdhsa_kernel {KNAME}
  .amdhsa_next_free_vgpr 256
  .amdhsa_next_free_sgpr 102
  .amdhsa_accum_offset 256
  .amdhsa_group_segment_fixed_size 0
  .amdhsa_kernarg_size 120
  .amdhsa_user_sgpr_count 2
  .amdhsa_user_sgpr_kernarg_segment_ptr 1
  .amdhsa_system_sgpr_workgroup_id_x 1
.end_amdhsa_kernel
"""
    open(path, 'w').write(s)

if __name__ == '__main__':
    out = sys.argv[1]
    for kv in sys.argv[2:]:
        k, v = kv.split('=')
        setattr(P, k, type(getattr(P, k))(v))
    emit(out)
```

```python
import sys, struct, math
from asmlib import Asm

KNAME = "gated_mix__compressed_kv_cla__dense_activation_gelu__decode_kernel"

def f2u(x): return struct.unpack('<I', struct.pack('<f', x))[0]

class P:
    stamp = 0
    nt = "nt"
    pollA_wait = 4
    maxspin = 200000
    prefetch = 1
    wsoff = 0
    fast = 1
    nlocal = 24
    hintpos = 2
    qpre = 4
    enc = -1
    encwave = 4

EPOCH, QP, QL, ST, CX, HP, FP, OP, STAMP = 0, 0x10000, 0x50000, 0x60000, 0x70000, 0x90000, 0x120000, 0x200000, 0x800000
QPL, CXL, HC = 0x600000, 0x640000, 0x660000
WS_REC = 0x1000000
L_CKV, L_QIMG, L_SX, L_HX, L_GATE = 0, 65536, 98304, 106496, 107008
L_WUK, L_WUV, L_QV, L_AIMG, L_VST, L_RED = 0, 32768, 65536, 66048, 68352, 68480
LDS_BYTES = 107520
pX, pCKV, pWQ, pWUK, pWUV, pWO, pW1, pB1, pW2, pB2, pGW, pOUT, pWS = 4, 6, 8, 10, 12, 14, 18, 20, 22, 24, 26, 28, 32
sWave, sH, sJ, sI, sXcd, sTag = 3, 34, 35, 56, 57, 58
sT = [58, 59, 60, 61]
rA, rB, rC, rWS = 36, 40, 44, 48
sT0, sT1, sT2, sT3 = 52, 53, 54, 55
sCnt = 62
sQ = 64
sStamp = 76
vL, vJ, vG, vM, vL16 = 1, 2, 3, 4, 8
SZ = dict(x=2304, ckv=8388608, wq=4718592, wuk=4194304, wuv=4194304, wo=4718592, w1=5308416, w2=5308416, b1=9216, b2=1152, gw=1152, out=2304)

def build(p=P):
    a = Asm()
    nt = p.nt
    def srd(r, ptr, size):
        if ptr == pWS and p.wsoff:
            a(f"s_add_u32 s{r}, s{ptr}, {p.wsoff}\ns_addc_u32 s{r+1}, s{ptr+1}, 0\ns_mov_b32 s{r+2}, {size}\ns_mov_b32 s{r+3}, 0x20000")
            return
        a(f"s_mov_b32 s{r}, s{ptr}\ns_mov_b32 s{r+1}, s{ptr+1}\ns_mov_b32 s{r+2}, {size}\ns_mov_b32 s{r+3}, 0x20000")
    def R(r): return f"s[{r}:{r+3}]"
    def V(r, n=4): return f"v[{r}:{r+n-1}]"
    def stamp(k):
        if p.stamp: a(f"s_memrealtime s[{sStamp+2*k}:{sStamp+2*k+1}]")
    def buildA(dst, x, u):
        for r in range(4):
            a(f"v_and_b32_dpp v{dst+r}, v{x}, v{vM+r} quad_perm:[{u},{u},{u},{u}] row_mask:0xf bank_mask:0xf")
    def mfma(d, A, B, c=None):
        a(f"v_mfma_f32_16x16x32_bf16 {V(d)}, {V(A)}, {V(B)}, {V(d) if c is None else c}")
    def tag4(d):
        for k in range(4):
            a(f"v_mov_b32_sdwa v{d+k}, s{sT[k]} dst_sel:BYTE_0 dst_unused:UNUSED_PRESERVE src0_sel:BYTE_0")
    def chk4(acc, d, first=False):
        for k in range(4):
            if first and k == 0: a(f"v_xor_b32 v{acc}, s{sT[0]}, v{d}")
            else: a(f"v_bitop3_b32 v{acc}, v{acc}, v{d+k}, s{sT[k]} bitop3:0xf6")
    def chkv(acc, d, t, first=False):
        for k in range(4):
            if first and k == 0: a(f"v_xor_b32 v{acc}, v{t}, v{d}")
            else: a(f"v_bitop3_b32 v{acc}, v{acc}, v{d+k}, v{t+k} bitop3:0xf6")
    def poll_begin():
        L = a.newlabel('poll')
        a(f"s_mov_b32 s{sCnt}, 0")
        a.label(L)
        return L
    def poll_end(L, acc, mask, fb=None, lim=None):
        D = a.newlabel('done')
        a(f"v_and_b32 v{acc}, {mask}, v{acc}\nv_cmp_ne_u32 vcc, 0, v{acc}\ns_add_u32 s{sCnt}, s{sCnt}, 1")
        a(f"s_cbranch_vccz {D}")
        if fb and p.fast:
            regs, delta = fb
            a(f"s_cmp_eq_u32 s{sCnt}, {p.nlocal}\ns_cselect_b32 vcc_lo, {delta}, 0")
            for r in regs: a(f"s_sub_u32 s{r}, s{r}, vcc_lo")
        a(f"s_cmp_lt_u32 s{sCnt}, {lim or p.maxspin}\ns_cbranch_scc1 {L}")
        a.label(D)
    def treduce(r):
        a(f"v_permlane32_swap_b32 v{r}, v{r+2}\nv_permlane32_swap_b32 v{r+1}, v{r+3}")
        a(f"v_add_f32 v{r}, v{r}, v{r+2}\nv_add_f32 v{r+1}, v{r+1}, v{r+3}")
        a(f"v_permlane16_swap_b32 v{r}, v{r+1}\nv_add_f32 v{r}, v{r}, v{r+1}")
    def allred_groups(op, r, t):
        a(f"v_mov_b32 v{t}, v{r}\nv_permlane32_swap_b32 v{r}, v{t}\n{op} v{r}, v{r}, v{t}")
        a(f"v_mov_b32 v{t}, v{r}\nv_permlane16_swap_b32 v{r}, v{t}\n{op} v{r}, v{r}, v{t}")
    def masks():
        a(f"""v_and_b32 v9, 3, v{vL}
        v_lshlrev_b32 v9, 4, v9
        v_mov_b32 v10, 0xffff
        v_mov_b32 v11, 0
        v_lshlrev_b64 v[10:11], v9, v[10:11]
        v_and_b32 v9, 4, v{vL}
        v_cmp_eq_u32 vcc, 0, v9
        v_cndmask_b32 v{vM}, 0, v10, vcc
        v_cndmask_b32 v{vM+1}, 0, v11, vcc
        v_cndmask_b32 v{vM+2}, v10, 0, vcc
        v_cndmask_b32 v{vM+3}, v11, 0, vcc""".replace('v_cndmask_b32 v%d, v10, 0, vcc' % (vM+2), 'v_cndmask_b32_e64 v%d, v10, 0, vcc' % (vM+2)).replace('v_cndmask_b32 v%d, v11, 0, vcc' % (vM+3), 'v_cndmask_b32_e64 v%d, v11, 0, vcc' % (vM+3)))
    def xoff(dst):
        a(f"""v_bfe_u32 v{dst}, v{vL}, 3, 1
        v_mul_u32_u24 v{dst}, 1152, v{dst}
        v_and_b32 v9, 3, v{vL}
        v_lshl_add_u32 v{dst}, v9, 3, v{dst}
        v_lshl_add_u32 v{dst}, v{vG}, 1, v{dst}""")
    def epoch_wait():
        a(f"""s_waitcnt lgkmcnt(0)
        s_add_u32 s{sT[0]}, s{sT[0]}, 1
        s_add_u32 s{sT[1]}, s{sT[0]}, 37
        s_add_u32 s{sT[2]}, s{sT[0]}, 74
        s_add_u32 s{sT[3]}, s{sT[0]}, 111""")
    def lsbtags(t, flip=None):
        a(f"""v_and_b32 v{t}, 7, v{vL}
        v_mul_u32_u24 v{t}, 37, v{t}
        v_add_u32 v{t}, s{sT[0]}, v{t}""")
        if flip: a(f"v_xor_b32 v{t}, {flip}, v{t}")
        a(f"""v_and_b32 v{t}, 0xff, v{t}
        v_lshl_or_b32 v{t}, v{t}, 15, v{t}
        v_lshrrev_b32 v{t+1}, 2, v{t}
        v_lshrrev_b32 v{t+2}, 4, v{t}
        v_lshrrev_b32 v{t+3}, 6, v{t}""")
    def decode_v(dst, src, t):
        a(f"""v_lshrrev_b32 v{dst}, 5, v{src}
        v_lshlrev_b32 v{dst}, 7, v{dst}
        v_and_b32 v{t}, 15, v{src}
        v_lshl_add_u32 v{dst}, v{t}, 3, v{dst}
        v_bfe_u32 v{t}, v{src}, 4, 1
        v_lshl_add_u32 v{dst}, v{t}, 2, v{dst}
        v_and_b32 v{t}, 7, v{src}
        v_lshlrev_b32 v{t}, 3, v{t}
        v_bfe_u32 v{t+1}, v{src}, 3, 1
        v_lshl_add_u32 v{t}, v{t+1}, 2, v{t}
        v_add_u32 v{t}, 512, v{t}
        v_cmp_gt_u32 vcc, 128, v{src}
        v_cndmask_b32 v{dst}, v{t}, v{dst}, vcc""")
    def finish(nst):
        if p.stamp == 3:
            Ls = a.newlabel('noenc'); Lw = a.newlabel('encw')
            a(f"""s_waitcnt lgkmcnt(0)
            s_lshl_b32 s{sT0}, s2, 3
            s_add_u32 s{sT0}, s{sT0}, s{sWave}
            s_cmp_eq_u32 s{sT0}, {p.encwave}
            s_cbranch_scc0 {Ls}
{Lw}:
            s_memrealtime s[{sT0}:{sT1}]
            s_waitcnt lgkmcnt(0)
            s_sub_u32 s{sT0}, s{sT0}, s{sStamp+2*p.enc}
            s_cmp_lt_u32 s{sT0}, 3000
            s_cbranch_scc1 {Lw}
{Ls}:
            s_endpgm""")
            return
        if p.stamp:
            a(f"""s_waitcnt lgkmcnt(0)
            s_lshl_b32 s{sT0}, s2, 3
            s_add_u32 s{sT0}, s{sT0}, s{sWave}
            s_lshl_b32 s{sT0}, s{sT0}, 6
            s_add_u32 s{sT0}, s{sT0}, {STAMP}
            s_mov_b64 exec, 1
            v_mov_b32 v9, 0""")
            for k in range(13):
                a(f"v_mov_b32 v{10+k}, s{sStamp+2*k}\nbuffer_store_dword v{10+k}, v9, {R(rWS)}, s{sT0} offen offset:{4*k}")
        if p.stamp == 2:
            Ls = a.newlabel('nosum')
            a(f"""s_lshl_b32 s{sT0}, s2, 3
            s_add_u32 s{sT0}, s{sT0}, s{sWave}
            s_cmp_eq_u32 s{sT0}, {4 if nst == 'X' else 1024}
            s_cbranch_scc0 {Ls}""")
            srd(rB, 30, 256)
            for n, k in enumerate((1,2,3,4,7,8,9,10) if nst == 'X' else (1,2,3,4,7,8,10,11)):
                a(f"s_sub_u32 s{sT1}, s{sStamp+2*k}, s{sStamp}\nv_mov_b32 v{30+n}, s{sT1}\nbuffer_store_dword v{30+n}, v9, {R(rB)}, 0 offen offset:{4*n + (0 if nst == 'X' else 32)}")
            a.label(Ls)
        a("s_endpgm")

    def slot_store(d, base_s, wave_is_half, toff):
        tag4(d)
        if wave_is_half: a("s_mov_b32 exec_lo, 0x00ff00ff\ns_mov_b32 exec_hi, 0x00ff00ff")
        a(f"buffer_store_dwordx4 {V(d)}, v{toff}, {R(rWS)}, s{base_s} offen sc1")
        if wave_is_half: a("s_mov_b64 exec, -1")
    def slot_voff(dst, half):
        a(f"""v_lshrrev_b32 v{dst}, 1, v{vG}
        v_mul_u32_u24 v{dst}, 2304, v{dst}
        v_lshl_add_u32 v{dst}, v{vJ}, 4, v{dst}
        v_and_b32 v9, 1, v{vG}""")
        if half:
            a(f"v_lshl_add_u32 v{dst}, v9, 7, v{dst}\nv_add_u32 v{dst}, 2048, v{dst}")
        else:
            a(f"v_lshl_add_u32 v{dst}, v9, 8, v{dst}\ns_lshl_b32 s{sT0}, s{sWave}, 9\nv_add_u32 v{dst}, s{sT0}, v{dst}")

    def common_late():
        srd(rWS, pWS, WS_REC)
        a(f"s_load_dword s{sT[0]}, s[{rWS}:{rWS+1}], {EPOCH}")
        masks()
    stamp(0)
    a(f"""s_load_dwordx16 s[4:19], s[0:1], 0
    s_load_dwordx2 s[32:33], s[0:1], 112
    s_load_dwordx8 s[20:27], s[0:1], 64
    s_load_dwordx4 s[28:31], s[0:1], 96
    v_lshrrev_b32 v{vL}, 6, v0
    v_and_b32 v{vJ}, 15, v0
    v_readfirstlane_b32 s{sWave}, v{vL}
    v_and_b32 v{vL}, 63, v0
    v_bfe_u32 v{vG}, v0, 4, 2
    v_lshlrev_b32 v{vL16}, 4, v{vL}
    s_and_b32 s{sXcd}, s2, 7
    s_bfe_u32 s{sT0}, s2, 0x20003
    s_lshl_b32 s{sH}, s{sXcd}, 2
    s_add_u32 s{sH}, s{sH}, s{sT0}
    s_lshr_b32 s{sJ}, s2, 5
    s_bfe_u32 s{sI}, s2, 0x40003
    s_cmp_ge_u32 s{sJ}, 8
    s_cbranch_scc1 L_exit
    s_cmp_ge_u32 s{sWave}, 4
    s_cbranch_scc1 L_w47
    s_cmp_lg_u32 s{sWave}, 0
    s_cbranch_scc1 L_w123""")
    def zstamps():
        if p.stamp:
            for k in range(1, 13): a(f"s_mov_b32 s{sStamp+2*k}, 0")
    vXP, vAP, vWP, vDP, vXF = 13, 20, 92, 164, 168
    a(f"""v_lshlrev_b32 v10, 13, v{vG}
    v_lshl_add_u32 v10, v{vJ}, 4, v10
    s_mul_i32 s{sT0}, s{sJ}, {72*8192}
    s_lshl_b32 s{sT1}, s{sH}, 8
    s_add_u32 s{sT0}, s{sT0}, s{sT1}
    s_mul_i32 s{sT1}, s{sJ}, 144
    s_mov_b32 s{sT2}, 32768
    s_mov_b32 s{rA+2}, {SZ['x']}
    s_mov_b32 s{rA+3}, 0x20000
    s_mov_b32 s{rB+2}, {SZ['wq']}
    s_mov_b32 s{rB+3}, 0x20000""")
    xoff(12)
    zstamps()
    a(f"""s_waitcnt lgkmcnt(0)
    s_mov_b64 s[{rA}:{rA+1}], s[{pX}:{pX+1}]
    s_mov_b64 s[{rB}:{rB+1}], s[{pWQ}:{pWQ+1}]""")
    for v in range(5):
        a(f"buffer_load_ushort v{vXP+v}, v12, {R(rA)}, s{sT1} offen offset:{32*v}")
    for t in range(18):
        a(f"buffer_load_dwordx4 {V(vWP+4*t)}, v10, {R(rB)}, s{sT0} offen {nt}")
        if t < 17: a(f"s_add_u32 s{sT0}, s{sT0}, s{sT2}")
    stamp(1)
    a("s_barrier")
    common_late()
    a("s_waitcnt vmcnt(18)")
    for v in range(5): a(f"v_lshl_or_b32 v{vXP+v}, v{vXP+v}, 16, v{vXP+v}")
    for t in range(18): buildA(vAP+4*t, vXP+t//4, t % 4)
    epoch_wait()
    a(f"""s_lshl_b32 s{sT0}, s{sH}, 3
    s_add_u32 s{sT0}, s{sT0}, s{sJ}
    s_lshl_b32 s{sT0}, s{sT0}, 10
    s_add_u32 s{sT1}, s{sT0}, {QPL}
    s_add_u32 s{sT0}, s{sT0}, {QP}""")
    for t in range(18):
        a(f"s_waitcnt vmcnt({17-t})")
        mfma(vDP, vAP+4*t, vWP+4*t, '0' if t == 0 else None)
    tag4(vDP)
    if p.fast: a(f"buffer_store_dwordx4 {V(vDP)}, v{vL16}, {R(rWS)}, s{sT1} offen")
    a(f"buffer_store_dwordx4 {V(vDP)}, v{vL16}, {R(rWS)}, s{sT0} offen sc1")
    stamp(2)
    a(f"""s_barrier
    s_cmp_ge_u32 s2, 128
    s_cbranch_scc1 L_Y_main
    s_branch L_X_main""")

    a.label("L_w123")
    zstamps()
    if p.prefetch:
        a(f"""s_cmp_lg_u32 s{sWave}, 2
        s_cbranch_scc1 L_nopf
        s_getpc_b64 s[{sT0}:{sT1}]
L_pc:
        s_sub_u32 s{sT0}, s{sT0}, L_pc-{KNAME}
        s_subb_u32 s{sT1}, s{sT1}, 0
        s_lshr_b32 s{sT2}, s2, 3
        s_lshl_b32 s{sT2}, s{sT2}, 9
        v_add_u32 v9, s{sT2}, v{vL16}
        v_cmp_gt_u32 vcc, L_exit-{KNAME}, v9
        s_and_b32 exec_lo, vcc_lo, 0x01010101
        s_mov_b32 exec_hi, 0
        s_cbranch_execz L_pfdone
        global_load_dword v20, v9, s[{sT0}:{sT1}]
L_pfdone:
        s_mov_b64 exec, -1
L_nopf:""")
    xoff(12)
    a("s_waitcnt lgkmcnt(0)")
    srd(rA, pX, SZ['x'])
    if p.fast:
        srd(rWS, pWS, WS_REC)
        a(f"""s_lshl_b32 s{sT0}, s{sH}, 3
        s_add_u32 s{sT0}, s{sT0}, s{sJ}
        s_lshl_b32 s{sT0}, s{sT0}, 10
        s_add_u32 s{sT0}, s{sT0}, {QPL}
        s_cmp_eq_u32 s{sWave}, 3
        s_cselect_b32 exec_lo, 0x01010101, 0
        s_cselect_b32 exec_hi, 0x01010101, 0
        buffer_load_dword v21, v{vL16}, {R(rWS)}, s{sT0} offen sc1
        s_mov_b64 exec, -1""")
    a("s_barrier")
    common_late()
    a(f"""s_cmp_lg_u32 s{sWave}, 1
    s_cbranch_scc1 L_notw1""")
    srd(rB, pGW, SZ['gw'])
    a(f"""v_and_b32 v9, 31, v{vL}
    v_mul_u32_u24 v9, 36, v9
    v_lshrrev_b32 v10, 5, v{vL}
    v_mul_u32_u24 v11, 1152, v10
    v_add_u32 v11, v11, v9
    buffer_load_dwordx4 v[20:23], v11, {R(rA)}, 0 offen
    buffer_load_dwordx4 v[24:27], v11, {R(rA)}, 0 offen offset:16
    buffer_load_dword v28, v11, {R(rA)}, 0 offen offset:32
    buffer_load_dwordx4 v[32:35], v9, {R(rB)}, 0 offen
    buffer_load_dwordx4 v[36:39], v9, {R(rB)}, 0 offen offset:16
    buffer_load_dword v40, v9, {R(rB)}, 0 offen offset:32
    v_mov_b32 v13, 0
    v_lshlrev_b32 v10, 2, v10
    v_add_u32 v10, {L_GATE}, v10
    s_barrier
    s_waitcnt vmcnt(0)""")
    for k in range(9): a(f"v_dot2_f32_bf16 v13, v{20+k}, v{32+k}, v13")
    for m in ("quad_perm:[1,0,3,2]", "quad_perm:[2,3,0,1]", "row_half_mirror", "row_mirror"):
        a(f"v_add_f32_dpp v13, v13, v13 {m} row_mask:0xf bank_mask:0xf")
    a(f"""v_mov_b32 v14, v13
    v_permlane16_swap_b32 v13, v14
    v_add_f32 v13, v13, v14
    v_mul_f32 v13, {f2u(-math.log2(math.e))}, v13
    v_exp_f32 v13, v13
    v_add_f32 v13, 1.0, v13
    v_rcp_f32 v13, v13
    ds_write_b32 v10, v13
    s_branch L_w123j""")
    a.label("L_notw1")
    a("s_barrier\ns_waitcnt vmcnt(0)")
    a.label("L_w123j")
    epoch_wait()
    a(f"""s_cmp_ge_u32 s2, 128
    s_cbranch_scc1 L_Y_main
    s_branch L_X_main""")

    a.label("L_w47")
    zstamps()
    a(f"""s_sub_u32 s{sT2}, s{sWave}, 4
    s_mov_b32 s{rB+3}, 0x20000
    s_cmp_lt_u32 s2, 128
    s_cbranch_scc1 L_X_w47""")
    a(f"""s_sub_u32 s{sT0}, s2, 128
    s_lshl_b32 s{sT0}, s{sT0}, 16
    s_lshl_b32 s{sT1}, s{sT2}, 14
    s_add_u32 s{sT0}, s{sT0}, s{sT1}
    s_mov_b32 m0, s{sT1}
    s_mov_b32 s{rB+2}, {SZ['ckv']}
    s_waitcnt lgkmcnt(0)
    s_mov_b64 s[{rB}:{rB+1}], s[{pCKV}:{pCKV+1}]
    s_barrier""")
    for i in range(16):
        f = ((i & 7) << 1) | (i >> 3)
        a(f"v_xor_b32 v{20+(i&1)}, {f*16}, v{vL16}")
        if i % 4 == 0 and i: a(f"s_add_u32 s{sT0}, s{sT0}, 4096\ns_add_u32 m0, m0, 4096")
        if i == 4:
            common_late()
            a("s_barrier")
        a(f"buffer_load_dwordx4 v{20+(i&1)}, {R(rB)}, s{sT0} offen offset:{1024*(i%4)} {nt} lds")
    stamp(1)
    epoch_wait()
    a("s_branch L_Y_main")

    a.label("L_X_w47")
    a(f"""s_lshl_b32 s{sT0}, s{sJ}, 2
    s_add_u32 s{sT0}, s{sT0}, s{sT2}
    s_lshl_b32 s{sT0}, s{sT0}, 18
    s_lshl_b32 s{sT1}, s{sH}, 8
    s_add_u32 s{sT0}, s{sT0}, s{sT1}
    s_lshl_b32 s{sT1}, s{sT2}, 13
    v_xor_b32 v19, v{vJ}, v{vG}
    v_lshlrev_b32 v19, 4, v19
    v_lshl_add_u32 v20, v{vG}, 13, v19
    v_xor_b32 v21, 64, v20
    v_xor_b32 v22, 0x80, v20
    v_xor_b32 v23, 0xc0, v20
    s_mov_b32 m0, s{sT1}
    s_mov_b32 s{rB+2}, {SZ['wuk']}
    s_waitcnt lgkmcnt(0)
    s_mov_b64 s[{rB}:{rB+1}], s[{pWUK}:{pWUK+1}]
    s_barrier""")
    for n in range(4):
        a(f"buffer_load_dwordx4 v{20+n%4}, {R(rB)}, s{sT0} offen {nt} lds")
        a(f"s_add_u32 m0, m0, 1024\ns_add_u32 s{sT0}, s{sT0}, 32768")
    a(f"s_mov_b32 s{sQ}, s{sT0}")
    common_late()
    srd(rA, pX, SZ['x'])
    xoff(12)
    a("v_mov_b32 v9, v19")
    epoch_wait()
    a(f"""s_lshl_b32 s{sT0}, s{sH}, 13
    s_lshl_b32 s{sT1}, s{sT2}, 8
    s_add_u32 s{sT0}, s{sT0}, s{sT1}
    s_add_u32 s{sT0}, s{sT0}, {QPL if p.fast else QP}
    s_add_u32 s{sT1}, s{sT0}, 4096
    v_lshlrev_b32 v24, 10, v{vG}
    v_lshl_add_u32 v24, v{vJ}, 4, v24""")
    a(f"""s_lshr_b32 s{sT3}, s{sT2}, 1
    s_lshl_b32 s{sT3}, s{sT3}, 8
    s_bitcmp1_b32 s{sT2}, 0
    s_cselect_b32 vcc_lo, 8, 0
    s_add_u32 s{sT3}, s{sT3}, vcc_lo
    s_add_u32 s{sT3}, s{sT3}, {L_QV}
    v_lshlrev_b32 v25, 4, v{vJ}
    v_lshl_add_u32 v25, v{vG}, 1, v25
    v_add_u32 v25, s{sT3}, v25""")
    a(f"""s_lshl_b32 s{sT3}, s{sT2}, 13
    v_lshl_add_u32 v26, v{vJ}, 8, v9
    v_add_u32 v26, s{sT3}, v26
    v_xor_b32 v27, 64, v26
    v_xor_b32 v28, 0x80, v26
    v_xor_b32 v29, 0xc0, v26""")
    a(f"""v_lshrrev_b32 v30, 3, v{vJ}
    v_lshlrev_b32 v30, 8, v30
    v_lshl_add_u32 v30, v{vG}, 4, v30
    v_add_u32 v30, {L_QV}, v30""")
    a(f"""v_and_b32 v31, 31, v{vL}
    s_lshl_b32 s{sT3}, s{sT2}, 5
    v_add_u32 v31, s{sT3}, v31
    v_bfe_u32 v32, v31, 3, 3
    v_mul_u32_u24 v32, 37, v32
    v_add_u32 v32, s{sT[0]}, v32
    v_and_b32 v33, 7, v31
    v_lshrrev_b32 v32, v33, v32
    v_and_b32 v32, 1, v32
    v_lshlrev_b32 v32, 16, v32
    v_xor_b32 v33, 0x10000, v32
    v_lshlrev_b32 v31, 1, v31
    v_lshrrev_b32 v34, 5, v{vL}
    v_lshl_add_u32 v31, v34, 15, v31
    s_lshl_b32 s{sT3}, s{sH}, 10
    s_lshl_b32 vcc_lo, s{sJ}, 8
    s_add_u32 s{sT3}, s{sT3}, vcc_lo
    s_add_u32 s{sT3}, s{sT3}, {QL}
    v_mov_b32 v35, 0xfffe0000
    s_barrier""")
    stamp(1)
    for n in range(4, 8):
        a(f"buffer_load_dwordx4 v{20+n%4}, {R(rB)}, s{sQ} offen {nt} lds")
        if n < 7: a(f"s_add_u32 m0, m0, 1024\ns_add_u32 s{sQ}, s{sQ}, 32768")
    a(f"s_waitcnt vmcnt({p.pollA_wait})")
    stamp(2)
    L = poll_begin()
    a(f"""buffer_load_dwordx4 v[36:39], v24, {R(rWS)}, s{sT0} offen sc1
    buffer_load_dwordx4 v[40:43], v24, {R(rWS)}, s{sT1} offen sc1
    s_waitcnt vmcnt(1)""")
    chk4(44, 36, True)
    a("s_waitcnt vmcnt(0)")
    chk4(44, 40)
    poll_end(L, 44, '0xff', ((sT0, sT1), QPL-QP))
    stamp(3)
    for tl in range(2):
        for ks in range(4):
            a(f"ds_read_b128 {V(48+16*tl+4*ks)}, v{26+ks} offset:{4096*tl}")
    for k in range(4): a(f"v_add_f32 v{36+k}, v{36+k}, v{40+k}")
    treduce(36)
    a(f"""v_cvt_pk_bf16_f32 v36, v36, v36
    ds_write_b16 v25, v36
    s_waitcnt lgkmcnt(0)
    s_barrier""")
    for ks in range(4): a(f"ds_read_b128 {V(80+4*ks)}, v30 offset:{64*ks}")
    for ks in range(4):
        a(f"s_waitcnt lgkmcnt({3-ks})")
        mfma(96, 80+4*ks, 48+4*ks, '0' if ks == 0 else None)
        mfma(100, 80+4*ks, 64+4*ks, '0' if ks == 0 else None)
    a(f"""s_mov_b32 vcc_lo, 0xffff0000
    s_mov_b32 vcc_hi, 0xffff0000
    v_cndmask_b32 v96, v96, v100, vcc
    v_mul_f32 v96, {f2u(128**-0.5*math.log2(math.e))}, v96
    v_add_u32 v96, v96, v33
    v_and_or_b32 v96, v96, v35, v32
    buffer_store_short_d16_hi v96, v31, {R(rWS)}, s{sT3} offen sc1""")
    stamp(4)
    a("s_branch L_X_b2")

    a.label("L_X_main")
    a("s_barrier")
    a.label("L_X_b2")
    a("s_barrier")
    a(f"""s_cmp_ge_u32 s{sWave}, 5
    s_cbranch_scc1 L_X_wuv""")
    vXF, vAF, vWF, vDF = 13, 20, 60, 100
    srd(rB, pW1, SZ['w1'])
    a(f"s_mul_i32 s{sT1}, s{sI}, 72")
    for v in range(3): a(f"buffer_load_ushort v{vXF+v}, v12, {R(rA)}, s{sT1} offen offset:{32*v}")
    a(f"""s_mul_i32 s{sT0}, s{sI}, {36*9216}
    s_mul_i32 s{sT1}, s{sXcd}, 1152
    s_add_u32 s{sT0}, s{sT0}, s{sT1}
    s_lshl_b32 s{sT1}, s{sWave}, 8
    s_add_u32 s{sT0}, s{sT0}, s{sT1}
    v_mul_u32_u24 v10, 9216, v{vG}
    s_lshl_b32 s{sT2}, s{sXcd}, 4
    s_add_u32 s{sT2}, s{sT2}, s{sI}
    s_mul_i32 s{sT2}, s{sT2}, 4608
    s_add_u32 s{sT2}, s{sT2}, {HP}
    s_cmp_eq_u32 s{sWave}, 4
    s_cbranch_scc1 L_X_f1half
    v_lshl_add_u32 v10, v{vJ}, 4, v10""")
    for t in range(9):
        a(f"buffer_load_dwordx4 {V(vWF+4*t)}, v10, {R(rB)}, s{sT0} offen {nt}")
        if t < 8: a(f"s_add_u32 s{sT0}, s{sT0}, {4*9216}")
    slot_voff(11, False)
    a("s_waitcnt vmcnt(9)")
    for v in range(3): a(f"v_lshl_or_b32 v{vXF+v}, v{vXF+v}, 16, v{vXF+v}")
    for t in range(9): buildA(vAF+4*t, vXF+t//4, t % 4)
    for t in range(9):
        a(f"s_waitcnt vmcnt({8-t})")
        mfma(vDF, vAF+4*t, vWF+4*t, '0' if t == 0 else None)
    slot_store(vDF, sT2, False, 11)
    stamp(5)
    a("s_branch L_X_v")
    a.label("L_X_f1half")
    a(f"""v_and_b32 v9, 7, v{vJ}
    v_lshl_add_u32 v10, v9, 4, v10
    v_lshrrev_b32 v9, 3, v{vJ}
    v_mul_u32_u24 v9, {4*9216}, v9
    v_add_u32 v10, v10, v9""")
    for n in range(5):
        if n == 4: a("s_mov_b32 exec_lo, 0x00ff00ff\ns_mov_b32 exec_hi, 0x00ff00ff")
        a(f"buffer_load_dwordx4 {V(vWF+4*n)}, v10, {R(rB)}, s{sT0} offen {nt}")
        if n < 4: a(f"s_add_u32 s{sT0}, s{sT0}, {8*9216}")
    a("s_mov_b64 exec, -1")
    slot_voff(11, True)
    a("s_waitcnt vmcnt(5)")
    for v in range(3): a(f"v_lshl_or_b32 v{vXF+v}, v{vXF+v}, 16, v{vXF+v}")
    for t in range(9): buildA(vAF+4*t, vXF+t//4, t % 4)
    for n in range(5):
        a(f"s_waitcnt vmcnt({4-n})")
        mfma(vDF, vAF+8*n, vWF+4*n, '0' if n == 0 else None)
        if n < 4: mfma(vDF+4, vAF+8*n+4, vWF+4*n, '0' if n == 0 else None)
    for r in range(4): a(f"v_add_f32_dpp v{vDF+r}, v{vDF+4+r}, v{vDF+r} row_ror:8 row_mask:0xf bank_mask:0xf")
    slot_store(vDF, sT2, True, 11)
    stamp(5)
    a("s_branch L_X_v")
    a.label("L_X_wuv")
    a(f"""s_cmp_eq_u32 s{sWave}, 5
    s_cbranch_scc1 L_X_v""")
    srd(rB, pWUV, SZ['wuv'])
    a(f"""s_sub_u32 s{sT2}, s{sWave}, 6
    s_lshl_b32 s{sT0}, s{sJ}, 20
    s_lshl_b32 s{sT1}, s{sT2}, 16
    s_add_u32 s{sT0}, s{sT0}, s{sT1}
    s_lshl_b32 s{sT1}, s{sH}, 8
    s_add_u32 s{sT0}, s{sT0}, s{sT1}
    s_lshl_b32 s{sT1}, s{sT2}, 14
    s_add_u32 m0, s{sT1}, {L_WUV}
    v_lshlrev_b32 v9, 1, v{vG}
    v_xor_b32 v9, v9, v{vJ}
    v_lshlrev_b32 v9, 4, v9
    v_lshl_add_u32 v20, v{vG}, 17, v9
    v_xor_b32 v21, 0x80, v20""")
    for n in range(16):
        off = (64*(n & 1) + (n >> 1))*8192
        a(f"s_add_u32 s{sT1}, s{sT0}, {off}")
        a(f"buffer_load_dwordx4 v{20+((n>>1)&1)}, {R(rB)}, s{sT1} offen {nt} lds")
        if n < 15: a("s_add_u32 m0, m0, 1024")
    a("s_waitcnt vmcnt(0)")
    stamp(5)
    a.label("L_X_v")
    a("s_barrier")
    vBV = 20
    a(f"""v_bfe_u32 v9, v{vL}, 2, 2
    v_lshl_add_u32 v10, v{vG}, 3, v9
    v_lshlrev_b32 v10, 8, v10
    v_and_b32 v11, 1, v{vG}
    v_lshl_add_u32 v9, v11, 2, v9
    v_lshlrev_b32 v9, 1, v9
    v_bfe_u32 v11, v{vL}, 1, 1
    s_lshl_b32 s{sT0}, s{sWave}, 1
    v_add_u32 v11, s{sT0}, v11
    v_xor_b32 v9, v9, v11
    v_lshl_add_u32 v10, v9, 4, v10
    v_and_b32 v9, 1, v{vL}
    v_lshl_add_u32 v10, v9, 3, v10""")
    for ks in range(4):
        for hf in range(2):
            a(f"ds_read_b64_tr_b16 {V(vBV+4*ks+2*hf, 2)}, v10 offset:{L_WUV + (32*ks+4*hf)*256}")
    a(f"""v_bfe_u32 v9, v{vL}, 3, 1
    v_lshlrev_b32 v36, 15, v9
    v_and_b32 v11, 3, v{vL}
    v_lshl_add_u32 v36, v11, 11, v36
    v_lshl_add_u32 v36, v{vG}, 9, v36
    s_and_b32 s{sT2}, s{sWave}, 3
    s_lshr_b32 s{sT3}, s{sWave}, 2
    s_lshl_b32 s{sT0}, s{sT2}, 13
    s_lshl_b32 s{sT1}, s{sH}, 4
    s_add_u32 s{sT0}, s{sT0}, s{sT1}
    s_add_u32 s{sT0}, s{sT0}, {ST}""")
    a(f"""v_lshlrev_b32 v37, 14, v9
    v_lshl_add_u32 v37, v{vG}, 8, v37
    v_and_b32 v11, 7, v{vL}
    v_lshl_add_u32 v37, v11, 4, v37
    s_lshl_b32 s{sT1}, s{sH}, 2
    s_add_u32 s{sT1}, s{sT1}, s{sJ}
    s_lshl_b32 s{sQ+1}, s{sT1}, 10
    s_add_u32 s{sQ+3}, s{sQ+1}, {CXL}
    s_add_u32 s{sQ+1}, s{sQ+1}, {CX}
    s_lshl_b32 s{sT1}, s{sT1}, 15
    s_lshl_b32 s{sQ}, s{sT2}, 12
    s_add_u32 s{sT1}, s{sT1}, s{sQ}
    s_lshl_b32 s{sQ}, s{sT3}, 7
    s_add_u32 s{sT1}, s{sT1}, s{sQ}
    s_add_u32 s{sT1}, s{sT1}, {OP}""")
    a(f"v_and_b32 v38, 1, v{vG}\nv_mul_u32_u24 v38, 0xff, v38")
    lsbtags(40, "v38")
    a(f"""v_mul_u32_u24 v38, {4*272}, v9
    v_lshl_add_u32 v38, v11, 4, v38
    v_and_b32 v39, 1, v{vG}
    v_lshl_add_u32 v38, v39, 3, v38
    s_mul_i32 s{sQ}, s{sT2}, 272
    s_lshl_b32 s{sQ+2}, s{sT3}, 7
    s_add_u32 s{sQ}, s{sQ}, s{sQ+2}
    s_add_u32 s{sQ}, s{sQ}, {L_AIMG}
    v_add_u32 v38, s{sQ}, v38""")
    a(f"""v_lshlrev_b32 v44, 5, v9
    s_lshl_b32 s{sQ}, s{sT2}, 2
    s_add_u32 s{sQ}, s{sQ}, {L_VST}
    v_add_u32 v44, s{sQ}, v44
    v_lshlrev_b32 v45, 5, v39
    v_add_u32 v45, {L_VST}, v45""")
    a(f"""v_mul_u32_u24 v46, 272, v11
    v_lshl_add_u32 v46, v{vG}, 4, v46
    v_add_u32 v46, {L_AIMG}, v46""")
    a(f"""v_lshlrev_b32 v47, 9, v{vG}
    v_lshl_add_u32 v47, v{vJ}, 2, v47
    s_lshl_b32 s{sQ}, s{sWave}, 6
    v_add_u32 v47, s{sQ}, v47
    v_and_b32 v48, 3, v{vL}
    v_mul_u32_u24 v48, 37, v48
    v_add_u32 v48, s{sT[0]}, v48""")
    a("v_mov_b32 v92, 1")
    stamp(6)
    a(f"""s_cmp_lg_u32 s{sWave}, 0
    s_cbranch_scc1 L_X_hinted
    s_lshl_b32 s{sQ}, s2, 7
    s_add_u32 s{sQ}, s{sQ}, {HC}
    s_mov_b64 exec, 1""")
    L = poll_begin()
    a(f"""buffer_load_dword v49, v{vL16}, {R(rWS)}, s{sQ} offen sc1
    s_waitcnt vmcnt(0)
    v_xor_b32 v49, s{sT[0]}, v49""")
    poll_end(L, 49, '-1')
    a("s_mov_b64 exec, -1")
    a.label("L_X_hinted")
    a("s_barrier")
    stamp(7)
    vOD = 56
    L = poll_begin()
    a(f"buffer_load_dwordx4 v[52:55], v36, {R(rWS)}, s{sT0} offen sc1")
    for u in range(4): a(f"buffer_load_dwordx4 {V(vOD+4*u)}, v37, {R(rWS)}, s{sT1} offen offset:{1024*u} sc1")
    a(f"""s_waitcnt vmcnt(4)
    v_max_f32_dpp v50, v52, v52 quad_perm:[1,0,3,2] row_mask:0xf bank_mask:0xf
    v_cmp_ne_u32 vcc, s{sT[0]}, v54
    v_max_f32_dpp v50, v50, v50 quad_perm:[2,3,0,1] row_mask:0xf bank_mask:0xf
    v_cndmask_b32 v49, 0, v92, vcc""")
    allred_groups("v_max_f32", 50, 51)
    a(f"""v_sub_f32 v51, v52, v50
    v_exp_f32 v51, v51
    v_cvt_pk_bf16_f32 v51, v51, v51""")
    for u in range(4):
        buildA(72+4*u, 51, u)
    for u in range(4):
        a(f"s_waitcnt vmcnt({3-u})")
        mfma(88, 72+4*u, vOD+4*u, '0' if u == 0 else None)
        chkv(49, vOD+4*u, 40)
    a(f"""v_and_b32 v51, 0xffff0000, v51
    v_mul_f32 v51, v51, v53
    v_add_f32_dpp v51, v51, v51 quad_perm:[1,0,3,2] row_mask:0xf bank_mask:0xf
    v_add_f32_dpp v51, v51, v51 quad_perm:[2,3,0,1] row_mask:0xf bank_mask:0xf""")
    allred_groups("v_add_f32", 51, 55)
    poll_end(L, 49, '0x10001')
    stamp(8)
    a(f"""ds_write2_b32 v44, v50, v51 offset0:0 offset1:4
    v_cvt_pk_bf16_f32 v88, v88, v89
    v_cvt_pk_bf16_f32 v89, v90, v91
    s_mov_b32 exec_lo, 0x00ff00ff
    s_mov_b32 exec_hi, 0xff00ff00
    ds_write_b64 v38, v[88:89]
    s_mov_b64 exec, -1
    s_waitcnt lgkmcnt(0)
    s_barrier""")
    for ks in range(4): a(f"ds_read_b128 {V(56+4*ks)}, v46 offset:{64*ks}")
    a(f"ds_read_b128 v[72:75], v45\nds_read_b128 v[76:79], v45 offset:16")
    for ks in range(4):
        a(f"s_waitcnt lgkmcnt({5-ks})")
        mfma(88, 56+4*ks, vBV+4*ks, '0' if ks == 0 else None)
    a(f"""s_waitcnt lgkmcnt(0)
    v_max3_f32 v50, v72, v73, v74
    v_max_f32 v50, v50, v75""")
    for r in range(4): a(f"v_sub_f32 v{72+r}, v{72+r}, v50")
    for r in range(4): a(f"v_exp_f32 v{72+r}, v{72+r}")
    a(f"""v_mul_f32 v51, v72, v76
    v_fmac_f32 v51, v73, v77
    v_fmac_f32 v51, v74, v78
    v_fmac_f32 v51, v75, v79
    v_rcp_f32 v51, v51
    v_mul_f32 v50, v72, v88
    v_fmac_f32 v50, v73, v89
    v_fmac_f32 v50, v74, v90
    v_fmac_f32 v50, v75, v91
    v_mul_f32 v50, v50, v51
    v_mov_b32_sdwa v50, v48 dst_sel:BYTE_0 dst_unused:UNUSED_PRESERVE src0_sel:BYTE_0
    s_mov_b32 exec_hi, 0""")
    if p.fast: a(f"buffer_store_dword v50, v47, {R(rWS)}, s{sQ+3} offen")
    a(f"""buffer_store_dword v50, v47, {R(rWS)}, s{sQ+1} offen sc1
    s_mov_b64 exec, -1""")
    stamp(9)
    a(f"""s_cmp_ge_u32 s2, 72
    s_cbranch_scc1 L_X_end
    s_cmp_ge_u32 s2, 36
    s_cselect_b32 s{sT2}, 1, 0
    s_mul_i32 s{sT3}, s{sT2}, 36
    s_sub_u32 s{sT3}, s2, s{sT3}
    s_mul_i32 s{sT0}, s{sWave}, {16*4608}
    s_mul_i32 s{sT1}, s{sT2}, 2304
    s_add_u32 s{sT0}, s{sT0}, s{sT1}
    s_lshl_b32 s{sT1}, s{sT3}, 6
    s_add_u32 s{sT0}, s{sT0}, s{sT1}
    s_add_u32 s{sT0}, s{sT0}, {FP}
    v_lshrrev_b32 v9, 2, v{vL}
    v_mul_u32_u24 v10, 4608, v9
    v_and_b32 v11, 3, v{vL}
    v_lshl_add_u32 v10, v11, 4, v10
    v_lshl_add_u32 v13, v{vG}, 2, v11
    v_lshlrev_b32 v13, 5, v13
    s_lshl_b32 s{sT1}, s{sWave}, 2
    s_add_u32 s{sT1}, s{sT1}, {L_RED}
    v_add_u32 v13, s{sT1}, v13""")
    srd(rB, pB2, SZ['b2']); srd(rC, pOUT, SZ['out'])
    a(f"""s_lshl_b32 s{sT1}, s{sT3}, 2
    v_add_u32 v14, s{sT1}, v11""")
    decode_v(15, 14, 16)
    a(f"""v_bfe_u32 v14, v{vL}, 2, 2
    v_add_u32 v15, v15, v14
    v_lshlrev_b32 v15, 1, v15
    buffer_load_ushort v16, v15, {R(rB)}, 0 offen
    s_lshl_b32 s{sT1}, s{sT2}, 2
    s_add_u32 s{sT1}, s{sT1}, {L_GATE}
    v_mov_b32 v17, s{sT1}
    ds_read_b32 v17, v17
    v_lshlrev_b32 v18, 5, v{vJ}
    v_add_u32 v18, {L_RED}, v18
    s_mul_i32 s{sT2}, s{sT2}, 1152
    s_waitcnt vmcnt(0) lgkmcnt(0)
    v_lshlrev_b32 v16, 16, v16
    v_sub_f32 v17, 1.0, v17
    v_mul_f32 v16, v16, v17""")
    L = poll_begin()
    a(f"""buffer_load_dwordx4 v[20:23], v10, {R(rWS)}, s{sT0} offen sc1
    s_waitcnt vmcnt(0)""")
    chk4(24, 20, True)
    poll_end(L, 24, '0xff')
    stamp(10)
    treduce(20)
    a(f"""v_add_f32_dpp v20, v20, v20 row_ror:4 row_mask:0xf bank_mask:0xf
    v_add_f32_dpp v20, v20, v20 row_ror:8 row_mask:0xf bank_mask:0xf
    ds_write_b32 v13, v20
    s_waitcnt lgkmcnt(0)
    s_barrier
    s_cmp_lg_u32 s{sWave}, 0
    s_cbranch_scc1 L_X_end
    ds_read_b128 v[20:23], v18
    ds_read_b128 v[24:27], v18 offset:16
    s_waitcnt lgkmcnt(0)
    v_add_f32 v20, v20, v24
    v_add_f32 v21, v21, v25
    v_add_f32 v22, v22, v26
    v_add_f32 v23, v23, v27
    v_add_f32 v20, v20, v21
    v_add_f32 v22, v22, v23
    v_add_f32 v20, v20, v16
    v_add_f32 v20, v20, v22
    v_cvt_pk_bf16_f32 v20, v20, v20
    s_mov_b64 exec, 0xffff
    buffer_store_short v20, v15, {R(rC)}, s{sT2} offen
    s_cmp_lg_u32 s2, 0
    s_cbranch_scc1 L_X_end
    s_mov_b64 exec, 1
    v_mov_b32 v21, s{sT[0]}
    v_mov_b32 v22, 0
    buffer_store_dword v21, v22, {R(rWS)}, 0 offen offset:{EPOCH} sc1""")
    a.label("L_X_end")
    stamp(11)
    finish('X')

    a.label("L_Y_main")
    vQA, vPA, vSF, vPF, vACC = 20, 36, 48, 112, 176
    vTG, vTO = 208, 212
    vQG = 216
    a(f"""s_and_b32 s{sT2}, s{sWave}, 3
    s_lshr_b32 s{sT3}, s{sWave}, 2
    v_and_b32 v9, 7, v{vJ}
    v_lshlrev_b32 v9, 1, v9
    v_lshrrev_b32 v10, 3, v{vJ}
    v_or_b32 v9, v9, v10
    v_lshlrev_b32 v9, 4, v9
    v_lshl_add_u32 v9, v{vG}, 8, v9
    v_lshl_add_u32 v9, v{vJ}, 10, v9
    s_lshl_b32 s{sT0}, s{sT2}, 14
    v_add_u32 v13, s{sT0}, v9
    s_lshl_b32 s{sT0}, s{sT3}, 14
    s_add_u32 s{sT0}, s{sT0}, {L_QIMG}
    v_add_u32 v{vQA}, s{sT0}, v9""")
    for ks in range(1, 16): a(f"v_xor_b32 v{vQA+ks}, {16*ks}, v{vQA}")
    a(f"""v_lshrrev_b32 v9, 2, v{vL}
    v_and_b32 v10, 7, v9
    v_lshlrev_b32 v10, 1, v10
    v_lshrrev_b32 v11, 3, v9
    v_or_b32 v10, v10, v11
    v_bfe_u32 v11, v{vL}, 1, 1
    v_xor_b32 v10, v10, v11
    v_lshlrev_b32 v10, 4, v10
    v_lshl_add_u32 v10, v9, 10, v10
    v_and_b32 v11, 1, v{vL}
    v_lshl_add_u32 v10, v11, 3, v10
    s_lshl_b32 s{sT0}, s{sT2}, 8
    v_add_u32 v{vPA}, s{sT0}, v10""")
    for ct in range(1, 8): a(f"v_xor_b32 v{vPA+ct}, {32*ct}, v{vPA}")
    lsbtags(vTG)
    a(f"s_bitcmp1_b32 s2, 0\ns_cselect_b32 s{sT0}, 0xff, 0")
    lsbtags(vTO, f"s{sT0}")
    a(f"s_mul_i32 s{sT0}, s{sI}, 9\nv_add_u32 v9, s{sT0}, v{vJ}")
    decode_v(14, 9, 10)
    a(f"""s_mul_i32 s{sT0}, s{sXcd}, 576
    v_add_u32 v14, s{sT0}, v14
    v_mul_u32_u24 v15, 1152, v14""")
    for t in range(9): a(f"v_readlane_b32 s{sQ+t}, v15, {t}")
    a(f"""s_bfe_u32 s{sT0}, s2, 0x10006
    s_lshl_b32 s{sT0}, s{sT0}, 15
    s_lshl_b32 s{sT1}, s{sWave}, 12
    s_add_u32 s{sT0}, s{sT0}, s{sT1}
    s_add_u32 s{sT0}, s{sT0}, {QL}
    s_add_u32 s{sT1}, s{sT1}, {L_QIMG}
    s_and_b32 vcc_lo, s{sWave}, 1
    s_lshl_b32 vcc_lo, vcc_lo, 7
    s_bfe_u32 vcc_hi, s{sWave}, 0x10001
    s_lshl_b32 vcc_hi, vcc_hi, 4
    s_or_b32 vcc_lo, vcc_lo, vcc_hi
    v_xor_b32 v16, vcc_lo, v{vL16}
    v_add_u32 v16, s{sT1}, v16
    v_xor_b32 v17, 32, v16
    v_xor_b32 v18, 64, v16
    v_xor_b32 v19, 0x60, v16
    s_waitcnt vmcnt(0)
    s_barrier""")
    stamp(3)
    def qloads():
        for n in range(4): a(f"buffer_load_dwordx4 {V(vQG+4*n)}, v{vL16}, {R(rWS)}, s{sT0} offen offset:{1024*n} sc1")
    qloads()
    for ks in range(16):
        a(f"v_xor_b32 v9, {16*ks}, v13\nds_read_b128 {V(vSF+4*ks)}, v9")
    for ct in range(8):
        for T in range(4):
            a(f"ds_read_b64_tr_b16 {V(vPF+8*ct+2*T, 2)}, v{vPA+ct} offset:{16384*T}")
    a(f"""s_lshl_b32 s{sQ+9}, s{sT3}, 12
    s_add_u32 s{sQ+9}, s{sQ+9}, {L_SX}
    v_add_u32 v10, s{sQ+9}, v{vL16}
    s_lshl_b32 s{sQ+9}, s{sT2}, 10
    v_add_u32 v11, s{sQ+9}, v10
    v_lshlrev_b32 v12, 19, v{vG}
    v_lshl_add_u32 v12, v{vJ}, 4, v12
    s_sub_u32 s{sQ+9}, s2, 128
    s_lshl_b32 s{sT1}, s{sQ+9}, 9
    s_lshl_b32 vcc_lo, s{sT3}, 8
    s_add_u32 s{sT1}, s{sT1}, vcc_lo
    s_add_u32 s{sT1}, s{sT1}, {ST}
    s_lshl_b32 s{sQ+10}, s{sQ+9}, 8
    s_lshl_b32 vcc_lo, s{sT3}, 21
    s_add_u32 s{sQ+10}, s{sQ+10}, vcc_lo
    s_lshl_b32 vcc_lo, s{sT2}, 15
    s_add_u32 s{sQ+10}, s{sQ+10}, vcc_lo
    s_add_u32 s{sQ+10}, s{sQ+10}, {OP}
    s_lshl_b32 s{sQ+9}, s{sQ+9}, 7
    s_add_u32 s{sQ+9}, s{sQ+9}, {HC}""")
    for k in range(4): a(f"v_mov_b32 v{248+k}, 0x3f803f80\nv_mov_b32 v{252+k}, s{sT[0]}")
    Lq = a.newlabel('qchk')
    a(f"s_mov_b32 s{sCnt}, 0\ns_branch {Lq}")
    L = a.newlabel('poll'); a.label(L)
    qloads()
    a.label(Lq)
    for n in range(4):
        a(f"s_waitcnt vmcnt({3-n})")
        chkv(9, vQG+4*n, vTG, n == 0)
    poll_end(L, 9, '0x10001')
    stamp(4)
    for n in range(4): a(f"ds_write_b128 v{16+n}, {V(vQG+4*n)} offset:{1024*n}")
    a(f"s_mov_b32 s{sT0}, s{sQ+10}\nv_mov_b32 v9, 0x10001")
    a("s_waitcnt lgkmcnt(0)\ns_barrier")
    stamp(5)
    def hint(pos):
        if p.hintpos == pos:
            a(f"""s_cmp_eq_u32 s{sWave}, 7
            s_cselect_b32 exec_lo, 0xff, 0
            s_mov_b32 exec_hi, 0
            buffer_store_dwordx4 v[252:255], v{vL16}, {R(rWS)}, s{sQ+9} offen sc1
            s_mov_b64 exec, -1""")
    NQ = 8
    for ks in range(p.qpre): a(f"ds_read_b128 {V(vQG+4*ks)}, v{vQA+ks}")
    a(f"""s_cmp_eq_u32 s{sT3}, 0
    s_cbranch_scc1 L_Y_s
    s_barrier""")
    a.label("L_Y_s")
    for ks in range(p.qpre, NQ): a(f"ds_read_b128 {V(vQG+4*ks)}, v{vQA+ks}")
    for ks in range(16):
        rem = min(15, ks+NQ-1) - ks
        a(f"s_waitcnt lgkmcnt({rem})")
        mfma(vACC, vSF+4*ks, vQG+4*(ks % NQ), '0' if ks == 0 else None)
        if ks + NQ < 16: a(f"ds_read_b128 {V(vQG+4*(ks%NQ))}, v{vQA+ks+NQ}")
    a(f"""ds_write_b128 v11, {V(vACC)}
    s_waitcnt lgkmcnt(0)
    s_barrier""")
    stamp(6)
    vS = 48
    for T in range(4): a(f"ds_read_b128 {V(vS+4*T)}, v10 offset:{1024*T}")
    hint(0)
    a(f"""s_waitcnt lgkmcnt(2)
    v_max3_f32 v64, v{vS}, v{vS+1}, v{vS+2}
    v_max3_f32 v65, v{vS+3}, v{vS+4}, v{vS+5}
    v_max3_f32 v64, v64, v{vS+6}, v{vS+7}
    s_waitcnt lgkmcnt(0)
    v_max3_f32 v65, v65, v{vS+8}, v{vS+9}
    v_max3_f32 v64, v64, v{vS+10}, v{vS+11}
    v_max3_f32 v65, v65, v{vS+12}, v{vS+13}
    v_max3_f32 v64, v64, v{vS+14}, v{vS+15}
    v_max_f32 v64, v64, v65""")
    allred_groups("v_max_f32", 64, 65)
    for k in range(8): a(f"v_pk_add_f32 v[{vS+2*k}:{vS+2*k+1}], v[{vS+2*k}:{vS+2*k+1}], v[64:65] op_sel_hi:[1,0] neg_lo:[0,1] neg_hi:[0,1]")
    for k in range(16): a(f"v_exp_f32 v{vS+k}, v{vS+k}")
    hint(1)
    a(f"""s_cmp_eq_u32 s{sT3}, 0
    s_cbranch_scc0 L_Y_p
    s_barrier""")
    a.label("L_Y_p")
    vP = 72
    for k in range(8): a(f"v_cvt_pk_bf16_f32 v{vP+k}, v{vS+2*k}, v{vS+2*k+1}")
    hint(2)
    a(f"""s_cmp_eq_u32 s{sT2}, 0
    s_cbranch_scc0 L_Y_nol""")
    mfma(68, 248, vP, '0')
    mfma(68, 248, vP+4)
    a.label("L_Y_nol")
    def epi(k):
        for r in range(4): a(f"v_cvt_pk_bf16_f32 v{80+4*r+k}, v{vACC+8*k+r}, v{vACC+8*k+4+r}")
        for r in range(4): a(f"v_bfi_b32 v{80+4*r+k}, v9, v{vTO+k}, v{80+4*r+k}")
    for k in range(4):
        mfma(vACC+8*k, vP, vPF+16*k, '0')
        mfma(vACC+8*k+4, vP, vPF+16*k+8, '0')
        mfma(vACC+8*k, vP+4, vPF+16*k+4)
        mfma(vACC+8*k+4, vP+4, vPF+16*k+12)
        if k == 1:
            a(f"""v_mov_b32 v66, s{sT[0]}
            v_mov_b32 v65, v68
            s_cmp_eq_u32 s{sT2}, 0
            s_cselect_b32 exec_lo, 0xffff, 0
            s_mov_b32 exec_hi, 0
            buffer_store_dwordx4 v[64:67], v{vL16}, {R(rWS)}, s{sT1} offen sc1
            s_mov_b64 exec, -1""")
        if k >= 2: epi(k-2)
    epi(2)
    for r in range(4):
        a(f"v_cvt_pk_bf16_f32 v{83+4*r}, v{vACC+24+r}, v{vACC+28+r}")
        a(f"v_bfi_b32 v{83+4*r}, v9, v{vTO+3}, v{83+4*r}")
        a(f"buffer_store_dwordx4 {V(80+4*r)}, v12, {R(rWS)}, s{sT0} offen sc1")
        if r < 3: a(f"s_add_u32 s{sT0}, s{sT0}, 0x20000")
    hint(3)
    stamp(7)
    a(f"""s_cmp_ge_u32 s{sWave}, 5
    s_cbranch_scc1 L_Y_fg""")
    srd(rB, pW2, SZ['w2']); srd(rC, pWO, SZ['wo'])
    a("s_barrier")
    vW2, vWO, vA2, vD2 = 100, 136, 20, 60
    a(f"""s_lshl_b32 s{sT0}, s{sH}, 2
    s_add_u32 s{sT0}, s{sT0}, s{sJ}
    s_sub_u32 s{sT0}, s{sT0}, 4
    s_mul_i32 s{sT0}, s{sT0}, {32*1152}
    v_mul_u32_u24 v10, 1152, v{vG}
    s_lshl_b32 s{sT1}, s{sWave}, 8
    v_add_u32 v10, s{sT1}, v10
    s_cmp_eq_u32 s{sWave}, 4
    s_cbranch_scc1 L_Y_half
    v_lshl_add_u32 v10, v{vJ}, 4, v10""")
    for t in range(9): a(f"buffer_load_dwordx4 {V(vW2+4*t)}, v10, {R(rB)}, s{sQ+t} offen {nt}")
    for t in range(8):
        a(f"buffer_load_dwordx4 {V(vWO+4*t)}, v10, {R(rC)}, s{sT0} offen {nt}")
        if t < 7: a(f"s_add_u32 s{sT0}, s{sT0}, {4*1152}")
    slot_voff(11, False)
    a("s_branch L_Y_o2")
    a.label("L_Y_half")
    a(f"""v_and_b32 v9, 7, v{vJ}
    v_lshl_add_u32 v10, v9, 4, v10
    s_mov_b32 vcc_lo, 0xff00ff00
    s_mov_b32 vcc_hi, 0xff00ff00""")
    for n in range(5):
        if n < 4:
            a(f"v_mov_b32 v13, s{sQ+2*n}\nv_mov_b32 v14, s{sQ+2*n+1}\nv_cndmask_b32 v13, v13, v14, vcc\nv_add_u32 v13, v13, v10")
            a(f"buffer_load_dwordx4 {V(vW2+4*n)}, v13, {R(rB)}, 0 offen {nt}")
        else:
            a("s_mov_b32 exec_lo, 0x00ff00ff\ns_mov_b32 exec_hi, 0x00ff00ff")
            a(f"buffer_load_dwordx4 {V(vW2+4*n)}, v10, {R(rB)}, s{sQ+8} offen {nt}")
            a("s_mov_b64 exec, -1")
    a(f"v_lshrrev_b32 v9, 3, v{vJ}\nv_mul_u32_u24 v9, {4*1152}, v9\nv_add_u32 v10, v10, v9")
    for n in range(4):
        a(f"buffer_load_dwordx4 {V(vWO+4*n)}, v10, {R(rC)}, s{sT0} offen {nt}")
        if n < 3: a(f"s_add_u32 s{sT0}, s{sT0}, {8*1152}")
    slot_voff(11, True)
    a.label("L_Y_o2")
    a(f"""v_bfe_u32 v9, v{vL}, 3, 1
    v_and_b32 v13, 3, v{vL}
    v_lshl_add_u32 v13, v13, 2, v{vG}
    v_lshlrev_b32 v13, 2, v13
    v_mul_u32_u24 v14, 192, v9
    v_add_u32 v14, v14, v13
    v_add_u32 v14, {L_HX}, v14
    v_and_b32 v15, 7, v{vL}
    v_lshl_add_u32 v15, v15, 2, v{vG}
    v_lshlrev_b32 v15, 2, v15
    v_lshl_add_u32 v15, v9, 9, v15
    v_lshlrev_b32 v16, 2, v9
    v_add_u32 v16, {L_GATE}, v16
    ds_read_b32 v16, v16
    v_mul_u32_u24 v17, 37, v{vG}
    v_add_u32 v17, s{sT[0]}, v17
    s_lshl_b32 s{sT0}, s{sH}, 12
    s_sub_u32 s{sT1}, s{sJ}, 4
    s_lshl_b32 s{sT1}, s{sT1}, 7
    s_add_u32 s{sT0}, s{sT0}, s{sT1}
    s_add_u32 s{sT0}, s{sT0}, {CXL if p.fast else CX}
    s_sub_u32 s{sT2}, s2, 128
    s_mul_i32 s{sT2}, s{sT2}, 4608
    s_add_u32 s{sT2}, s{sT2}, {FP}
    s_barrier""")
    stamp(8)
    for v in range(3): a(f"ds_read_b32 v{68+v}, v14 offset:{64*v}")
    a("s_waitcnt lgkmcnt(0)")
    for t in range(9): buildA(vA2+4*t, 68+t//4, t % 4)
    a(f"""s_cmp_eq_u32 s{sWave}, 4
    s_cbranch_scc1 L_Y_half2""")
    for t in range(9):
        a(f"s_waitcnt vmcnt({16-t})")
        mfma(vD2, vA2+4*t, vW2+4*t, '0' if t == 0 else None)
    a("s_branch L_Y_o3")
    a.label("L_Y_half2")
    for n in range(5):
        a(f"s_waitcnt vmcnt({8-n})")
        mfma(vD2, vA2+8*n, vW2+4*n, '0' if n == 0 else None)
        if n < 4: mfma(vD2+4, vA2+8*n+4, vW2+4*n, '0' if n == 0 else None)
    a.label("L_Y_o3")
    stamp(9)
    L = poll_begin()
    for cq in range(4): a(f"buffer_load_dword v{72+cq}, v15, {R(rWS)}, s{sT0} offen offset:{1024*cq} sc1")
    a("s_waitcnt vmcnt(0)")
    a("v_xor_b32 v76, v17, v72")
    for cq in range(1, 4): a(f"v_bitop3_b32 v76, v76, v{72+cq}, v17 bitop3:0xf6")
    poll_end(L, 76, '0xff', ((sT0,), CXL-CX))
    stamp(10)
    a(f"""v_add_f32 v72, v72, v73
    v_add_f32 v74, v74, v75
    v_add_f32 v72, v72, v74
    v_mul_f32 v72, v72, v16
    v_cvt_pk_bf16_f32 v72, v72, v72
    v_mov_b32 v73, v72
    v_mov_b32 v74, v72
    v_mov_b32_dpp v73, v72 row_shr:4 row_mask:0xf bank_mask:0xa
    v_mov_b32_dpp v74, v72 row_shl:4 row_mask:0xf bank_mask:0x5
    s_cmp_eq_u32 s{sWave}, 4
    s_cbranch_scc1 L_Y_half3""")
    for t in range(8):
        buildA(vA2+4*t, 73+t//4, t % 4)
        if t > 0: mfma(vD2, vA2+4*(t-1), vWO+4*(t-1))
    mfma(vD2, vA2+28, vWO+28)
    slot_store(vD2, sT2, False, 11)
    a("s_branch L_Y_end")
    a.label("L_Y_half3")
    for t in range(8):
        buildA(vA2+4*t, 73+t//4, t % 4)
        if t > 0: mfma(vD2+4*((t-1) & 1), vA2+4*(t-1), vWO+4*((t-1)//2))
    mfma(vD2+4, vA2+28, vWO+12)
    for r in range(4): a(f"v_add_f32_dpp v{vD2+r}, v{vD2+4+r}, v{vD2+r} row_ror:8 row_mask:0xf bank_mask:0xf")
    slot_store(vD2, sT2, True, 11)
    a("s_branch L_Y_end")
    a.label("L_Y_fg")
    a(f"""s_cmp_eq_u32 s{sWave}, 7
    s_cbranch_scc1 L_Y_fg7""")
    srd(rB, pB1, SZ['b1'])
    a(f"""s_sub_u32 s{sT2}, s{sWave}, 5
    s_mul_i32 s{sT0}, s{sXcd}, {16*4608}
    s_mul_i32 s{sT1}, s{sT2}, 2304
    s_add_u32 s{sT0}, s{sT0}, s{sT1}
    s_mul_i32 s{sT1}, s{sI}, 144
    s_add_u32 s{sT0}, s{sT0}, s{sT1}
    s_add_u32 s{sT0}, s{sT0}, {HP}
    s_add_u32 s{sQ}, s{sT0}, {4*4608}
    s_add_u32 s{sQ+1}, s{sT0}, {8*4608}
    s_add_u32 s{sQ+2}, s{sT0}, {12*4608}
    v_mul_u32_u24 v10, 4608, v{vG}
    v_lshl_add_u32 v10, v{vJ}, 4, v10
    v_add_u32 v14, v14, v{vG}
    v_lshlrev_b32 v14, 1, v14
    s_lshl_b32 s{sT1}, s{sT2}, 2
    s_add_u32 s{sT1}, s{sT1}, {L_GATE}
    v_mov_b32 v16, s{sT1}
    ds_read_b32 v16, v16
    s_mul_i32 s{sT1}, s{sT2}, 192
    s_add_u32 s{sT1}, s{sT1}, {L_HX}
    v_lshl_add_u32 v17, v{vJ}, 2, v{vG}
    v_lshlrev_b32 v17, 2, v17
    v_add_u32 v17, s{sT1}, v17
    s_mov_b32 exec_lo, 0x01ff01ff
    s_mov_b32 exec_hi, 0x01ff01ff
    buffer_load_ushort v15, v14, {R(rB)}, 0 offen""")
    def floads():
        for k, s in enumerate((sT0, sQ, sQ+1, sQ+2)):
            a(f"buffer_load_dwordx4 {V(20+4*k)}, v10, {R(rWS)}, s{s} offen sc1")
    floads()
    Lf = a.newlabel('fchk')
    a(f"s_barrier\ns_mov_b32 s{sCnt}, 0\ns_branch {Lf}")
    L = a.newlabel('poll'); a.label(L)
    floads()
    a.label(Lf)
    for k in range(4):
        a(f"s_waitcnt vmcnt({3-k})")
        chk4(36, 20+4*k, k == 0)
    poll_end(L, 36, '0xff')
    stamp(8)
    a("s_mov_b64 exec, -1")
    for k in range(4): a(f"v_add_f32 v{20+k}, v{20+k}, v{24+k}\nv_add_f32 v{28+k}, v{28+k}, v{32+k}")
    for k in range(4): a(f"v_add_f32 v{20+k}, v{20+k}, v{28+k}")
    treduce(20)
    c1 = -2*math.sqrt(2/math.pi)*math.log2(math.e)
    a(f"""v_lshlrev_b32 v15, 16, v15
    v_add_f32 v20, v20, v15
    v_mul_f32 v21, v20, v20
    v_mov_b32 v22, {f2u(c1)}
    v_fmac_f32 v22, {f2u(c1*0.044715)}, v21
    v_mul_f32 v21, v22, v20
    v_exp_f32 v21, v21
    v_add_f32 v21, 1.0, v21
    v_rcp_f32 v21, v21
    s_waitcnt lgkmcnt(0)
    v_sub_f32 v16, 1.0, v16
    v_mul_f32 v20, v20, v21
    v_mul_f32 v20, v20, v16
    v_cvt_pk_bf16_f32 v20, v20, v20
    s_mov_b32 exec_lo, 0x01ff01ff
    s_mov_b32 exec_hi, 0x01ff01ff
    ds_write_b32 v17, v20
    s_mov_b64 exec, -1
    s_waitcnt lgkmcnt(0)""")
    a("s_branch L_Y_fgend")
    a.label("L_Y_fg7")
    a("s_barrier")
    a.label("L_Y_fgend")
    a("s_barrier")
    a.label("L_Y_end")
    stamp(11)
    finish('Y')
    a.label("L_exit")
    a("s_endpgm")
    return a.finalize()

HEADER = open('gated_mix__compressed_kv_cla__dense_activation_gelu__decode.s.ref').read().split('; Override')[0]

def emit(path, p=P):
    body = build(p)
    s = HEADER + f"""; @launch grid=(256,1,1) block=(512,1,1) lds={LDS_BYTES}
.amdgcn_target "amdgcn-amd-amdhsa--gfx950"
.text
.globl {KNAME}
.p2align 8
.type {KNAME},@function
{KNAME}:
{body}.section .rodata,"a"
.p2align 6
.amdhsa_kernel {KNAME}
  .amdhsa_next_free_vgpr 256
  .amdhsa_next_free_sgpr 102
  .amdhsa_accum_offset 256
  .amdhsa_group_segment_fixed_size 0
  .amdhsa_kernarg_size 120
  .amdhsa_user_sgpr_count 2
  .amdhsa_user_sgpr_kernarg_segment_ptr 1
  .amdhsa_system_sgpr_workgroup_id_x 1
.end_amdhsa_kernel
"""
    open(path, 'w').write(s)

if __name__ == '__main__':
    out = sys.argv[1]
    for kv in sys.argv[2:]:
        k, v = kv.split('=')
        setattr(P, k, type(getattr(P, k))(v))
    emit(out)
```

```python
import sys, struct, math
from asmlib import Asm

KNAME = "gated_mix__compressed_kv_cla__dense_activation_gelu__decode_kernel"

def f2u(x): return struct.unpack('<I', struct.pack('<f', x))[0]

class P:
    stamp = 0
    nt = "nt"
    pollA_wait = 4
    maxspin = 200000
    prefetch = 1
    wsoff = 0
    fast = 1
    nlocal = 24
    hintpos = 2
    diag = 0
    xpre = 4
    ypre = 0
    gate = 12
    qat = 2
    bsleep = 0
    tlb = 1
    sparseC = 1
    qpre = 4
    enc = -1
    encwave = 4

EPOCH, QP, QL, ST, CX, HP, FP, OP, STAMP = 0, 0x10000, 0x50000, 0x60000, 0x70000, 0x90000, 0x120000, 0x200000, 0x800000
QPL, CXL, HC, HG = 0x600000, 0x640000, 0x660000, 0x668000
WS_REC = 0x1000000
L_CKV, L_QIMG, L_SX, L_HX, L_GATE = 0, 65536, 98304, 106496, 107008
L_WQ = 65536
L_WUK, L_WUV, L_QV, L_AIMG, L_VST, L_RED = 0, 32768, 86016, 86528, 88832, 88960
LDS_BYTES = 107520
pX, pCKV, pWQ, pWUK, pWUV, pWO, pW1, pB1, pW2, pB2, pGW, pOUT, pWS = 4, 6, 8, 10, 12, 14, 18, 20, 22, 24, 26, 28, 32
sWave, sH, sJ, sI, sXcd, sTag = 3, 34, 35, 56, 57, 58
sT = [58, 59, 60, 61]
rA, rB, rC, rWS = 36, 40, 44, 48
sT0, sT1, sT2, sT3 = 52, 53, 54, 55
sCnt = 62
sQ = 64
sStamp = 76
vL, vJ, vG, vM, vL16 = 1, 2, 3, 4, 8
SZ = dict(x=2304, ckv=8388608, wq=4718592, wuk=4194304, wuv=4194304, wo=4718592, w1=5308416, w2=5308416, b1=9216, b2=1152, gw=1152, out=2304)

def build(p=P):
    a = Asm()
    nt = p.nt
    def srd(r, ptr, size):
        if ptr == pWS and p.wsoff:
            a(f"s_add_u32 s{r}, s{ptr}, {p.wsoff}\ns_addc_u32 s{r+1}, s{ptr+1}, 0\ns_mov_b32 s{r+2}, {size}\ns_mov_b32 s{r+3}, 0x20000")
            return
        a(f"s_mov_b32 s{r}, s{ptr}\ns_mov_b32 s{r+1}, s{ptr+1}\ns_mov_b32 s{r+2}, {size}\ns_mov_b32 s{r+3}, 0x20000")
    def R(r): return f"s[{r}:{r+3}]"
    def V(r, n=4): return f"v[{r}:{r+n-1}]"
    def stamp(k):
        if p.stamp: a(f"s_memrealtime s[{sStamp+2*k}:{sStamp+2*k+1}]")
    def buildA(dst, x, u):
        for r in range(4):
            a(f"v_and_b32_dpp v{dst+r}, v{x}, v{vM+r} quad_perm:[{u},{u},{u},{u}] row_mask:0xf bank_mask:0xf")
    def mfma(d, A, B, c=None):
        a(f"v_mfma_f32_16x16x32_bf16 {V(d)}, {V(A)}, {V(B)}, {V(d) if c is None else c}")
    def tag4(d):
        for k in range(4):
            a(f"v_mov_b32_sdwa v{d+k}, s{sT[k]} dst_sel:BYTE_0 dst_unused:UNUSED_PRESERVE src0_sel:BYTE_0")
    def chk4(acc, d, first=False):
        for k in range(4):
            if first and k == 0: a(f"v_xor_b32 v{acc}, s{sT[0]}, v{d}")
            else: a(f"v_bitop3_b32 v{acc}, v{acc}, v{d+k}, s{sT[k]} bitop3:0xf6")
    def chkv(acc, d, t, first=False):
        for k in range(4):
            if first and k == 0: a(f"v_xor_b32 v{acc}, v{t}, v{d}")
            else: a(f"v_bitop3_b32 v{acc}, v{acc}, v{d+k}, v{t+k} bitop3:0xf6")
    def poll_begin():
        L = a.newlabel('poll')
        a(f"s_mov_b32 s{sCnt}, 0")
        a.label(L)
        return L
    def poll_end(L, acc, mask, fb=None, lim=None):
        D = a.newlabel('done')
        a(f"v_and_b32 v{acc}, {mask}, v{acc}\nv_cmp_ne_u32 vcc, 0, v{acc}\ns_add_u32 s{sCnt}, s{sCnt}, 1")
        a(f"s_cbranch_vccz {D}")
        if fb and p.fast:
            regs, delta = fb
            a(f"s_cmp_eq_u32 s{sCnt}, {p.nlocal}\ns_cselect_b32 vcc_lo, {delta}, 0")
            for r in regs: a(f"s_sub_u32 s{r}, s{r}, vcc_lo")
        a(f"s_cmp_lt_u32 s{sCnt}, {lim or p.maxspin}\ns_cbranch_scc1 {L}")
        a.label(D)
    def poll_end_masked(L, acc, mask, sleep=0):
        D = a.newlabel('done')
        a(f"""v_and_b32 v{acc}, {mask}, v{acc}
        v_cmp_ne_u32 vcc, 0, v{acc}
        s_add_u32 s{sCnt}, s{sCnt}, 1
        s_cbranch_vccz {D}
        s_wqm_b64 exec, vcc""")
        if sleep: a(f"s_sleep {sleep}")
        a(f"""s_cmp_lt_u32 s{sCnt}, {p.maxspin}
        s_cbranch_scc1 {L}
        s_mov_b64 exec, -1""")
        a.label(D)
    def treduce(r):
        a(f"v_permlane32_swap_b32 v{r}, v{r+2}\nv_permlane32_swap_b32 v{r+1}, v{r+3}")
        a(f"v_add_f32 v{r}, v{r}, v{r+2}\nv_add_f32 v{r+1}, v{r+1}, v{r+3}")
        a(f"v_permlane16_swap_b32 v{r}, v{r+1}\nv_add_f32 v{r}, v{r}, v{r+1}")
    def allred_groups(op, r, t):
        a(f"v_mov_b32 v{t}, v{r}\nv_permlane32_swap_b32 v{r}, v{t}\n{op} v{r}, v{r}, v{t}")
        a(f"v_mov_b32 v{t}, v{r}\nv_permlane16_swap_b32 v{r}, v{t}\n{op} v{r}, v{r}, v{t}")
    def masks():
        a(f"""v_and_b32 v9, 3, v{vL}
        v_lshlrev_b32 v9, 4, v9
        v_mov_b32 v10, 0xffff
        v_mov_b32 v11, 0
        v_lshlrev_b64 v[10:11], v9, v[10:11]
        v_and_b32 v9, 4, v{vL}
        v_cmp_eq_u32 vcc, 0, v9
        v_cndmask_b32 v{vM}, 0, v10, vcc
        v_cndmask_b32 v{vM+1}, 0, v11, vcc
        v_cndmask_b32 v{vM+2}, v10, 0, vcc
        v_cndmask_b32 v{vM+3}, v11, 0, vcc""".replace('v_cndmask_b32 v%d, v10, 0, vcc' % (vM+2), 'v_cndmask_b32_e64 v%d, v10, 0, vcc' % (vM+2)).replace('v_cndmask_b32 v%d, v11, 0, vcc' % (vM+3), 'v_cndmask_b32_e64 v%d, v11, 0, vcc' % (vM+3)))
    def xoff(dst):
        a(f"""v_bfe_u32 v{dst}, v{vL}, 3, 1
        v_mul_u32_u24 v{dst}, 1152, v{dst}
        v_and_b32 v9, 3, v{vL}
        v_lshl_add_u32 v{dst}, v9, 3, v{dst}
        v_lshl_add_u32 v{dst}, v{vG}, 1, v{dst}""")
    def epoch_wait():
        a(f"""s_waitcnt lgkmcnt(0)
        s_add_u32 s{sT[0]}, s{sT[0]}, 1
        s_add_u32 s{sT[1]}, s{sT[0]}, 37
        s_add_u32 s{sT[2]}, s{sT[0]}, 74
        s_add_u32 s{sT[3]}, s{sT[0]}, 111""")
    def lsbtags(t, flip=None):
        a(f"""v_and_b32 v{t}, 7, v{vL}
        v_mul_u32_u24 v{t}, 37, v{t}
        v_add_u32 v{t}, s{sT[0]}, v{t}""")
        if flip: a(f"v_xor_b32 v{t}, {flip}, v{t}")
        a(f"""v_and_b32 v{t}, 0xff, v{t}
        v_lshl_or_b32 v{t}, v{t}, 15, v{t}
        v_lshrrev_b32 v{t+1}, 2, v{t}
        v_lshrrev_b32 v{t+2}, 4, v{t}
        v_lshrrev_b32 v{t+3}, 6, v{t}""")
    def decode_v(dst, src, t):
        a(f"""v_lshrrev_b32 v{dst}, 5, v{src}
        v_lshlrev_b32 v{dst}, 7, v{dst}
        v_and_b32 v{t}, 15, v{src}
        v_lshl_add_u32 v{dst}, v{t}, 3, v{dst}
        v_bfe_u32 v{t}, v{src}, 4, 1
        v_lshl_add_u32 v{dst}, v{t}, 2, v{dst}
        v_and_b32 v{t}, 7, v{src}
        v_lshlrev_b32 v{t}, 3, v{t}
        v_bfe_u32 v{t+1}, v{src}, 3, 1
        v_lshl_add_u32 v{t}, v{t+1}, 2, v{t}
        v_add_u32 v{t}, 512, v{t}
        v_cmp_gt_u32 vcc, 128, v{src}
        v_cndmask_b32 v{dst}, v{t}, v{dst}, vcc""")
    def finish(nst):
        if p.stamp == 3:
            Ls = a.newlabel('noenc'); Lw = a.newlabel('encw')
            a(f"""s_waitcnt lgkmcnt(0)
            s_lshl_b32 s{sT0}, s2, 3
            s_add_u32 s{sT0}, s{sT0}, s{sWave}
            s_cmp_eq_u32 s{sT0}, {p.encwave}
            s_cbranch_scc0 {Ls}
{Lw}:
            s_memrealtime s[{sT0}:{sT1}]
            s_waitcnt lgkmcnt(0)
            s_sub_u32 s{sT0}, s{sT0}, s{sStamp+2*p.enc}
            s_cmp_lt_u32 s{sT0}, 3000
            s_cbranch_scc1 {Lw}
{Ls}:
            s_endpgm""")
            return
        if p.stamp:
            a(f"""s_waitcnt lgkmcnt(0)
            s_lshl_b32 s{sT0}, s2, 3
            s_add_u32 s{sT0}, s{sT0}, s{sWave}
            s_lshl_b32 s{sT0}, s{sT0}, 6
            s_add_u32 s{sT0}, s{sT0}, {STAMP}
            s_mov_b64 exec, 1
            v_mov_b32 v9, 0""")
            for k in range(13):
                a(f"v_mov_b32 v{10+k}, s{sStamp+2*k}\nbuffer_store_dword v{10+k}, v9, {R(rWS)}, s{sT0} offen offset:{4*k}")
        if p.stamp == 2:
            Ls = a.newlabel('nosum')
            a(f"""s_lshl_b32 s{sT0}, s2, 3
            s_add_u32 s{sT0}, s{sT0}, s{sWave}
            s_cmp_eq_u32 s{sT0}, {4 if nst == 'X' else 1024}
            s_cbranch_scc0 {Ls}""")
            srd(rB, 30, 256)
            for n, k in enumerate((1,2,3,4,7,8,9,10) if nst == 'X' else (1,2,3,4,7,8,10,11)):
                a(f"s_sub_u32 s{sT1}, s{sStamp+2*k}, s{sStamp}\nv_mov_b32 v{30+n}, s{sT1}\nbuffer_store_dword v{30+n}, v9, {R(rB)}, 0 offen offset:{4*n + (0 if nst == 'X' else 32)}")
            a.label(Ls)
        a("s_endpgm")

    def slot_store(d, base_s, wave_is_half, toff):
        tag4(d)
        if wave_is_half: a("s_mov_b32 exec_lo, 0x00ff00ff\ns_mov_b32 exec_hi, 0x00ff00ff")
        a(f"buffer_store_dwordx4 {V(d)}, v{toff}, {R(rWS)}, s{base_s} offen sc1")
        if wave_is_half: a("s_mov_b64 exec, -1")
    def slot_voff(dst, half):
        a(f"""v_lshrrev_b32 v{dst}, 1, v{vG}
        v_mul_u32_u24 v{dst}, 2304, v{dst}
        v_lshl_add_u32 v{dst}, v{vJ}, 4, v{dst}
        v_and_b32 v9, 1, v{vG}""")
        if half:
            a(f"v_lshl_add_u32 v{dst}, v9, 7, v{dst}\nv_add_u32 v{dst}, 2048, v{dst}")
        else:
            a(f"v_lshl_add_u32 v{dst}, v9, 8, v{dst}\ns_lshl_b32 s{sT0}, s{sWave}, 9\nv_add_u32 v{dst}, s{sT0}, v{dst}")

    def common_late():
        srd(rWS, pWS, WS_REC)
        a(f"s_load_dword s{sT[0]}, s[{rWS}:{rWS+1}], {EPOCH}")
        masks()
    def zstamps():
        if p.stamp:
            for k in range(1, 13): a(f"s_mov_b32 s{sStamp+2*k}, 0")
    def kargs():
        a(f"""s_load_dwordx16 s[4:19], s[0:1], 0
        s_load_dwordx2 s[32:33], s[0:1], 112
        s_load_dwordx8 s[20:27], s[0:1], 64
        s_load_dwordx4 s[28:31], s[0:1], 96""")
    def ids():
        a(f"""v_lshlrev_b32 v{vL16}, 4, v{vL}
        s_and_b32 s{sXcd}, s2, 7
        s_bfe_u32 s{sI}, s2, 0x40003""")
    vXP, vAP, vWP, vDP = 13, 20, 92, 164
    stamp(0)
    a(f"""s_load_dwordx2 s[{rB}:{rB+1}], s[0:1], 16
    s_load_dwordx2 s[{rA}:{rA+1}], s[0:1], 0
    v_readfirstlane_b32 s{sWave}, v0
    v_and_b32 v{vJ}, 15, v0
    s_lshr_b32 s{sJ}, s2, 5
    s_and_b32 s{sH}, s2, 31
    s_mov_b32 s{rB+3}, 0x20000
    s_cmp_lg_u32 s{sWave}, 0
    s_cbranch_scc1 L_rest""")
    a(f"""v_lshrrev_b32 v{vG}, 4, v0
    v_lshlrev_b32 v10, 13, v{vG}
    v_lshl_add_u32 v10, v{vJ}, 4, v10
    v_add_u32 v11, {32768-1024}, v10
    s_mul_i32 s{sT0}, s{sJ}, {72*32}
    s_add_u32 s{sT0}, s{sT0}, s{sH}
    s_lshl_b32 s{sT0}, s{sT0}, 8
    s_mov_b32 s{rB+2}, {SZ['wq']}
    s_mov_b32 m0, {L_WQ}
    v_lshrrev_b32 v12, 3, v{vJ}
    v_mul_u32_u24 v12, 576, v12
    v_and_b32 v9, 3, v0
    v_lshl_add_u32 v9, v9, 2, v{vG}
    v_add_lshl_u32 v12, v12, v9, 1
    s_mul_i32 s{sT1}, s{sJ}, 144
    s_movk_i32 s{rA+2}, {SZ['x']}
    s_mov_b32 s{rA+3}, s{rB+3}
    s_waitcnt lgkmcnt(0)""")
    for v in range(5):
        a(f"buffer_load_ushort v{vXP+v}, v12, {R(rA)}, s{sT1} offen offset:{32*v}")
    a(f"""L_wq:
    buffer_load_dwordx4 v10, {R(rB)}, s{sT0} offen {nt} lds
    buffer_load_dwordx4 v11, {R(rB)}, s{sT0} offen offset:1024 {nt} lds
    s_addk_i32 m0, 2048
    s_add_u32 s{sT0}, s{sT0}, 65536
    s_cmp_lt_u32 m0, {L_WQ+18432}
    s_cbranch_scc1 L_wq""")
    kargs()
    a(f"""s_cmp_ge_u32 s{sJ}, 8
    s_cbranch_scc1 L_exit""")
    zstamps()
    stamp(1)
    a(f"s_barrier\nv_mov_b32 v{vL}, v0")
    ids()
    a(f"v_add_u32 v18, {L_WQ}, v{vL16}\ns_waitcnt lgkmcnt(0)")
    common_late()
    a("s_waitcnt vmcnt(18)")
    for v in range(5): a(f"v_lshl_or_b32 v{vXP+v}, v{vXP+v}, 16, v{vXP+v}")
    for t in range(18): buildA(vAP+4*t, vXP+t//4, t % 4)
    epoch_wait()
    a(f"""s_lshl_b32 s{sT0}, s{sH}, 3
    s_add_u32 s{sT0}, s{sT0}, s{sJ}
    s_lshl_b32 s{sT0}, s{sT0}, 10
    s_add_u32 s{sT1}, s{sT0}, {QPL}
    s_add_u32 s{sT0}, s{sT0}, {QP}""")
    G = 3
    for t0 in range(0, 18, G):
        a(f"s_waitcnt vmcnt({18-t0-G})")
        for t in range(t0, t0+G): a(f"ds_read_b128 {V(vWP+4*t)}, v18 offset:{1024*t}")
        if t0:
            a(f"s_waitcnt lgkmcnt({G})")
            for t in range(t0-G, t0): mfma(vDP, vAP+4*t, vWP+4*t, '0' if t == 0 else None)
    for t in range(18-G, 18):
        a(f"s_waitcnt lgkmcnt({17-t})")
        mfma(vDP, vAP+4*t, vWP+4*t)
    tag4(vDP)
    if p.fast: a(f"buffer_store_dwordx4 {V(vDP)}, v{vL16}, {R(rWS)}, s{sT1} offen")
    a(f"buffer_store_dwordx4 {V(vDP)}, v{vL16}, {R(rWS)}, s{sT0} offen sc1")
    stamp(2)
    a(f"""s_barrier
    s_cmp_ge_u32 s2, 128
    s_cbranch_scc1 L_Y_main
    s_branch L_X_main""")

    a.label("L_rest")
    kargs()
    a(f"""s_lshr_b32 s{sWave}, s{sWave}, 6
    v_and_b32 v{vL}, 63, v0
    v_bfe_u32 v{vG}, v0, 4, 2
    s_cmp_ge_u32 s{sJ}, 8
    s_cbranch_scc1 L_exit""")
    ids()
    zstamps()
    a(f"""s_cmp_ge_u32 s{sWave}, 4
    s_cbranch_scc1 L_w47""")
    if p.prefetch:
        a(f"""s_cmp_lg_u32 s{sWave}, 2
        s_cbranch_scc1 L_nopf
        s_getpc_b64 s[{sT0}:{sT1}]
L_pc:
        s_sub_u32 s{sT0}, s{sT0}, L_pc-{KNAME}
        s_subb_u32 s{sT1}, s{sT1}, 0
        s_lshr_b32 s{sT2}, s2, 3
        s_lshl_b32 s{sT2}, s{sT2}, 9
        v_add_u32 v9, s{sT2}, v{vL16}
        v_cmp_gt_u32 vcc, L_exit-{KNAME}, v9
        s_and_b32 exec_lo, vcc_lo, 0x01010101
        s_mov_b32 exec_hi, 0
        s_cbranch_execz L_pfdone
        global_load_dword v20, v9, s[{sT0}:{sT1}]
L_pfdone:
        s_mov_b64 exec, -1
L_nopf:""")
    xoff(12)
    a("s_waitcnt lgkmcnt(0)")
    srd(rA, pX, SZ['x'])
    if p.fast:
        srd(rWS, pWS, WS_REC)
        a(f"""s_lshl_b32 s{sT0}, s{sH}, 3
        s_add_u32 s{sT0}, s{sT0}, s{sJ}
        s_lshl_b32 s{sT0}, s{sT0}, 10
        s_add_u32 s{sT0}, s{sT0}, {QPL}
        s_cmp_eq_u32 s{sWave}, 3
        s_cselect_b32 exec_lo, 0x01010101, 0
        s_cselect_b32 exec_hi, 0x01010101, 0
        buffer_load_dword v21, v{vL16}, {R(rWS)}, s{sT0} offen sc1
        s_mov_b64 exec, -1""")
    a("s_barrier")
    common_late()
    a(f"""s_cmp_lg_u32 s{sWave}, 1
    s_cbranch_scc1 L_notw1""")
    srd(rB, pGW, SZ['gw'])
    a(f"""v_and_b32 v9, 31, v{vL}
    v_mul_u32_u24 v9, 36, v9
    v_lshrrev_b32 v10, 5, v{vL}
    v_mul_u32_u24 v11, 1152, v10
    v_add_u32 v11, v11, v9
    buffer_load_dwordx4 v[20:23], v11, {R(rA)}, 0 offen
    buffer_load_dwordx4 v[24:27], v11, {R(rA)}, 0 offen offset:16
    buffer_load_dword v28, v11, {R(rA)}, 0 offen offset:32
    buffer_load_dwordx4 v[32:35], v9, {R(rB)}, 0 offen
    buffer_load_dwordx4 v[36:39], v9, {R(rB)}, 0 offen offset:16
    buffer_load_dword v40, v9, {R(rB)}, 0 offen offset:32
    v_mov_b32 v13, 0
    v_lshlrev_b32 v10, 2, v10
    v_add_u32 v10, {L_GATE}, v10
    s_barrier
    s_waitcnt vmcnt(0)""")
    for k in range(9): a(f"v_dot2_f32_bf16 v13, v{20+k}, v{32+k}, v13")
    for m in ("quad_perm:[1,0,3,2]", "quad_perm:[2,3,0,1]", "row_half_mirror", "row_mirror"):
        a(f"v_add_f32_dpp v13, v13, v13 {m} row_mask:0xf bank_mask:0xf")
    a(f"""v_mov_b32 v14, v13
    v_permlane16_swap_b32 v13, v14
    v_add_f32 v13, v13, v14
    v_mul_f32 v13, {f2u(-math.log2(math.e))}, v13
    v_exp_f32 v13, v13
    v_add_f32 v13, 1.0, v13
    v_rcp_f32 v13, v13
    ds_write_b32 v10, v13
    s_branch L_w123j""")
    a.label("L_notw1")
    if p.tlb:
        a(f"""s_cmp_lg_u32 s{sWave}, 3
        s_cbranch_scc1 L_notlb
        s_mov_b64 exec, 15
        v_lshlrev_b32 v22, 21, v{vL}
        buffer_load_dword v23, v22, {R(rWS)}, 0 offen offset:256
        s_mov_b64 exec, 7
        s_cmp_ge_u32 s2, 128
        s_cselect_b64 s[{sT0}:{sT1}], s[{pW2}:{pW2+1}], s[{pW1}:{pW1+1}]
        s_cselect_b64 s[{sT2}:{sT3}], s[{pWO}:{pWO+1}], s[{pWUV}:{pWUV+1}]
        global_load_dword v24, v22, s[{sT0}:{sT1}]
        s_cselect_b32 exec_lo, 7, 3
        global_load_dword v25, v22, s[{sT2}:{sT3}]
        s_mov_b64 exec, -1
L_notlb:""")
    a("s_barrier\ns_waitcnt vmcnt(0)")
    a.label("L_w123j")
    epoch_wait()
    a(f"""s_cmp_ge_u32 s2, 128
    s_cbranch_scc1 L_Y_main
    s_branch L_X_main""")

    a.label("L_w47")
    a(f"""s_sub_u32 s{sT2}, s{sWave}, 4
    s_cmp_lt_u32 s2, 128
    s_cbranch_scc1 L_X_w47""")
    a(f"""s_sub_u32 s{sT0}, s2, 128
    s_lshl_b32 s{sT3}, s{sT0}, 7
    s_add_u32 s{sT3}, s{sT3}, {HG}
    s_lshl_b32 s{sT0}, s{sT0}, 16
    s_lshl_b32 s{sT1}, s{sT2}, 12
    s_add_u32 s{sT0}, s{sT0}, s{sT1}
    s_mov_b32 m0, s{sT1}
    s_mov_b32 s{rB+2}, {SZ['ckv']}
    s_and_b32 vcc_lo, s{sT2}, 1
    s_lshl_b32 vcc_lo, vcc_lo, 7
    s_lshr_b32 vcc_hi, s{sT2}, 1
    s_lshl_b32 vcc_hi, vcc_hi, 4
    s_or_b32 vcc_lo, vcc_lo, vcc_hi
    v_xor_b32 v20, vcc_lo, v{vL16}
    v_xor_b32 v21, 32, v20
    v_xor_b32 v22, 64, v20
    v_xor_b32 v23, 0x60, v20
    s_waitcnt lgkmcnt(0)
    s_mov_b64 s[{rB}:{rB+1}], s[{pCKV}:{pCKV+1}]
    s_barrier""")
    for i in range(17):
        if i == p.ypre:
            common_late()
            epoch_wait()
            a(f"v_mov_b32 v24, s{sT[0]}")
            a("s_barrier")
        if i == p.gate:
            a(f"""s_cmp_eq_u32 s{sWave}, 4
            s_cselect_b32 exec_lo, -1, 0
            s_mov_b32 exec_hi, 0
            v_lshlrev_b32 v25, 2, v{vL}
            buffer_store_dword v24, v25, {R(rWS)}, s{sT3} offen sc1
            s_mov_b64 exec, -1""")
        if i == 16: break
        if i % 4 == 0 and i: a(f"s_add_u32 s{sT0}, s{sT0}, 16384\ns_add_u32 m0, m0, 16384")
        a(f"buffer_load_dwordx4 v{20+(i&3)}, {R(rB)}, s{sT0} offen offset:{1024*(i%4)} {nt} lds")
    stamp(1)
    a("s_branch L_Y_main")

    a.label("L_X_w47")
    a(f"""s_lshl_b32 s{sT0}, s{sJ}, 2
    s_add_u32 s{sT0}, s{sT0}, s{sT2}
    s_lshl_b32 s{sT0}, s{sT0}, 18
    s_lshl_b32 s{sT1}, s{sH}, 8
    s_add_u32 s{sT0}, s{sT0}, s{sT1}
    s_lshl_b32 s{sT1}, s{sT2}, 13
    v_xor_b32 v19, v{vJ}, v{vG}
    v_lshlrev_b32 v19, 4, v19
    v_lshl_add_u32 v20, v{vG}, 13, v19
    v_xor_b32 v21, 64, v20
    v_xor_b32 v22, 0x80, v20
    v_xor_b32 v23, 0xc0, v20
    s_mov_b32 m0, s{sT1}
    s_mov_b32 s{rB+2}, {SZ['wuk']}
    s_waitcnt lgkmcnt(0)
    s_mov_b64 s[{rB}:{rB+1}], s[{pWUK}:{pWUK+1}]
    s_barrier""")
    for n in range(p.xpre):
        a(f"buffer_load_dwordx4 v{20+n%4}, {R(rB)}, s{sT0} offen {nt} lds")
        a(f"s_add_u32 m0, m0, 1024\ns_add_u32 s{sT0}, s{sT0}, 32768")
    a(f"s_mov_b32 s{sQ}, s{sT0}")
    common_late()
    srd(rA, pX, SZ['x'])
    xoff(12)
    a("v_mov_b32 v9, v19")
    epoch_wait()
    a(f"""s_lshl_b32 s{sT0}, s{sH}, 13
    s_lshl_b32 s{sT1}, s{sT2}, 8
    s_add_u32 s{sT0}, s{sT0}, s{sT1}
    s_add_u32 s{sT0}, s{sT0}, {QPL if p.fast else QP}
    s_add_u32 s{sT1}, s{sT0}, 4096
    v_lshlrev_b32 v24, 10, v{vG}
    v_lshl_add_u32 v24, v{vJ}, 4, v24""")
    a(f"""s_lshr_b32 s{sT3}, s{sT2}, 1
    s_lshl_b32 s{sT3}, s{sT3}, 8
    s_bitcmp1_b32 s{sT2}, 0
    s_cselect_b32 vcc_lo, 8, 0
    s_add_u32 s{sT3}, s{sT3}, vcc_lo
    s_add_u32 s{sT3}, s{sT3}, {L_QV}
    v_lshlrev_b32 v25, 4, v{vJ}
    v_lshl_add_u32 v25, v{vG}, 1, v25
    v_add_u32 v25, s{sT3}, v25""")
    a(f"""s_lshl_b32 s{sT3}, s{sT2}, 13
    v_lshl_add_u32 v26, v{vJ}, 8, v9
    v_add_u32 v26, s{sT3}, v26
    v_xor_b32 v27, 64, v26
    v_xor_b32 v28, 0x80, v26
    v_xor_b32 v29, 0xc0, v26""")
    a(f"""v_lshrrev_b32 v30, 3, v{vJ}
    v_lshlrev_b32 v30, 8, v30
    v_lshl_add_u32 v30, v{vG}, 4, v30
    v_add_u32 v30, {L_QV}, v30""")
    a(f"""v_and_b32 v31, 31, v{vL}
    s_lshl_b32 s{sT3}, s{sT2}, 5
    v_add_u32 v31, s{sT3}, v31
    v_bfe_u32 v32, v31, 3, 3
    v_mul_u32_u24 v32, 37, v32
    v_add_u32 v32, s{sT[0]}, v32
    v_and_b32 v33, 7, v31
    v_lshrrev_b32 v32, v33, v32
    v_and_b32 v32, 1, v32
    v_lshlrev_b32 v32, 16, v32
    v_xor_b32 v33, 0x10000, v32
    v_lshlrev_b32 v31, 1, v31
    v_lshrrev_b32 v34, 5, v{vL}
    v_lshl_add_u32 v31, v34, 15, v31
    s_lshl_b32 s{sT3}, s{sH}, 10
    s_lshl_b32 vcc_lo, s{sJ}, 8
    s_add_u32 s{sT3}, s{sT3}, vcc_lo
    s_add_u32 s{sT3}, s{sT3}, {QL}
    v_mov_b32 v35, 0xfffe0000
    s_barrier""")
    stamp(1)
    for n in range(p.xpre, 8):
        a(f"buffer_load_dwordx4 v{20+n%4}, {R(rB)}, s{sQ} offen {nt} lds")
        if n < 7: a(f"s_add_u32 m0, m0, 1024\ns_add_u32 s{sQ}, s{sQ}, 32768")
    a(f"s_waitcnt vmcnt({p.pollA_wait})")
    stamp(2)
    L = poll_begin()
    a(f"""buffer_load_dwordx4 v[36:39], v24, {R(rWS)}, s{sT0} offen sc1
    buffer_load_dwordx4 v[40:43], v24, {R(rWS)}, s{sT1} offen sc1
    s_waitcnt vmcnt(1)""")
    chk4(44, 36, True)
    a("s_waitcnt vmcnt(0)")
    chk4(44, 40)
    poll_end(L, 44, '0xff', ((sT0, sT1), QPL-QP))
    stamp(3)
    for tl in range(2):
        for ks in range(4):
            a(f"ds_read_b128 {V(48+16*tl+4*ks)}, v{26+ks} offset:{4096*tl}")
    for k in range(4): a(f"v_add_f32 v{36+k}, v{36+k}, v{40+k}")
    treduce(36)
    a(f"""v_cvt_pk_bf16_f32 v36, v36, v36
    ds_write_b16 v25, v36
    s_waitcnt lgkmcnt(0)
    s_barrier""")
    for ks in range(4): a(f"ds_read_b128 {V(80+4*ks)}, v30 offset:{64*ks}")
    for ks in range(4):
        a(f"s_waitcnt lgkmcnt({3-ks})")
        mfma(96, 80+4*ks, 48+4*ks, '0' if ks == 0 else None)
        mfma(100, 80+4*ks, 64+4*ks, '0' if ks == 0 else None)
    a(f"""s_mov_b32 vcc_lo, 0xffff0000
    s_mov_b32 vcc_hi, 0xffff0000
    v_cndmask_b32 v96, v96, v100, vcc
    v_mul_f32 v96, {f2u(128**-0.5*math.log2(math.e))}, v96
    v_add_u32 v96, v96, v33
    v_and_or_b32 v96, v96, v35, v32
    buffer_store_short_d16_hi v96, v31, {R(rWS)}, s{sT3} offen sc1""")
    stamp(4)
    a("s_branch L_X_b2")

    a.label("L_X_main")
    a("s_barrier")
    if p.gate >= 0:
        a(f"""s_cmp_lg_u32 s{sWave}, 0
        s_cbranch_scc1 L_X_b2
        s_lshl_b32 s{sQ}, s2, 7
        s_add_u32 s{sQ}, s{sQ}, {HG}
        s_mov_b64 exec, 1""")
        L = poll_begin()
        a(f"""buffer_load_dword v49, v{vL16}, {R(rWS)}, s{sQ} offen sc1
        s_waitcnt vmcnt(0)
        v_xor_b32 v49, s{sT[0]}, v49""")
        poll_end(L, 49, '-1')
        a("s_mov_b64 exec, -1")
        stamp(3)
    a.label("L_X_b2")
    a("s_barrier")
    a(f"""s_cmp_ge_u32 s{sWave}, 5
    s_cbranch_scc1 L_X_wuv""")
    vXF, vAF, vWF, vDF = 13, 20, 60, 100
    srd(rB, pW1, SZ['w1'])
    a(f"s_mul_i32 s{sT1}, s{sI}, 72")
    for v in range(3): a(f"buffer_load_ushort v{vXF+v}, v12, {R(rA)}, s{sT1} offen offset:{32*v}")
    a(f"""s_mul_i32 s{sT0}, s{sI}, {36*9216}
    s_mul_i32 s{sT1}, s{sXcd}, 1152
    s_add_u32 s{sT0}, s{sT0}, s{sT1}
    s_lshl_b32 s{sT1}, s{sWave}, 8
    s_add_u32 s{sT0}, s{sT0}, s{sT1}
    v_mul_u32_u24 v10, 9216, v{vG}
    s_lshl_b32 s{sT2}, s{sXcd}, 4
    s_add_u32 s{sT2}, s{sT2}, s{sI}
    s_mul_i32 s{sT2}, s{sT2}, 4608
    s_add_u32 s{sT2}, s{sT2}, {HP}
    s_cmp_eq_u32 s{sWave}, 4
    s_cbranch_scc1 L_X_f1half
    v_lshl_add_u32 v10, v{vJ}, 4, v10""")
    for t in range(9):
        a(f"buffer_load_dwordx4 {V(vWF+4*t)}, v10, {R(rB)}, s{sT0} offen {nt}")
        if t < 8: a(f"s_add_u32 s{sT0}, s{sT0}, {4*9216}")
    slot_voff(11, False)
    a("s_waitcnt vmcnt(9)")
    for v in range(3): a(f"v_lshl_or_b32 v{vXF+v}, v{vXF+v}, 16, v{vXF+v}")
    for t in range(9): buildA(vAF+4*t, vXF+t//4, t % 4)
    for t in range(9):
        a(f"s_waitcnt vmcnt({8-t})")
        mfma(vDF, vAF+4*t, vWF+4*t, '0' if t == 0 else None)
    slot_store(vDF, sT2, False, 11)
    stamp(5)
    a("s_branch L_X_v")
    a.label("L_X_f1half")
    a(f"""v_and_b32 v9, 7, v{vJ}
    v_lshl_add_u32 v10, v9, 4, v10
    v_lshrrev_b32 v9, 3, v{vJ}
    v_mul_u32_u24 v9, {4*9216}, v9
    v_add_u32 v10, v10, v9""")
    for n in range(5):
        if n == 4: a("s_mov_b32 exec_lo, 0x00ff00ff\ns_mov_b32 exec_hi, 0x00ff00ff")
        a(f"buffer_load_dwordx4 {V(vWF+4*n)}, v10, {R(rB)}, s{sT0} offen {nt}")
        if n < 4: a(f"s_add_u32 s{sT0}, s{sT0}, {8*9216}")
    a("s_mov_b64 exec, -1")
    slot_voff(11, True)
    a("s_waitcnt vmcnt(5)")
    for v in range(3): a(f"v_lshl_or_b32 v{vXF+v}, v{vXF+v}, 16, v{vXF+v}")
    for t in range(9): buildA(vAF+4*t, vXF+t//4, t % 4)
    for n in range(5):
        a(f"s_waitcnt vmcnt({4-n})")
        mfma(vDF, vAF+8*n, vWF+4*n, '0' if n == 0 else None)
        if n < 4: mfma(vDF+4, vAF+8*n+4, vWF+4*n, '0' if n == 0 else None)
    for r in range(4): a(f"v_add_f32_dpp v{vDF+r}, v{vDF+4+r}, v{vDF+r} row_ror:8 row_mask:0xf bank_mask:0xf")
    slot_store(vDF, sT2, True, 11)
    stamp(5)
    a("s_branch L_X_v")
    a.label("L_X_wuv")
    a(f"""s_cmp_eq_u32 s{sWave}, 5
    s_cbranch_scc1 L_X_v""")
    srd(rB, pWUV, SZ['wuv'])
    a(f"""s_sub_u32 s{sT2}, s{sWave}, 6
    s_lshl_b32 s{sT0}, s{sJ}, 20
    s_lshl_b32 s{sT1}, s{sT2}, 16
    s_add_u32 s{sT0}, s{sT0}, s{sT1}
    s_lshl_b32 s{sT1}, s{sH}, 8
    s_add_u32 s{sT0}, s{sT0}, s{sT1}
    s_lshl_b32 s{sT1}, s{sT2}, 14
    s_add_u32 m0, s{sT1}, {L_WUV}
    v_lshlrev_b32 v9, 1, v{vG}
    v_xor_b32 v9, v9, v{vJ}
    v_lshlrev_b32 v9, 4, v9
    v_lshl_add_u32 v20, v{vG}, 17, v9
    v_xor_b32 v21, 0x80, v20""")
    for n in range(16):
        off = (64*(n & 1) + (n >> 1))*8192
        a(f"s_add_u32 s{sT1}, s{sT0}, {off}")
        a(f"buffer_load_dwordx4 v{20+((n>>1)&1)}, {R(rB)}, s{sT1} offen {nt} lds")
        if n < 15: a("s_add_u32 m0, m0, 1024")
    a("s_waitcnt vmcnt(0)")
    stamp(5)
    a.label("L_X_v")
    a("s_barrier")
    vBV = 20
    a(f"""v_bfe_u32 v9, v{vL}, 2, 2
    v_lshl_add_u32 v10, v{vG}, 3, v9
    v_lshlrev_b32 v10, 8, v10
    v_and_b32 v11, 1, v{vG}
    v_lshl_add_u32 v9, v11, 2, v9
    v_lshlrev_b32 v9, 1, v9
    v_bfe_u32 v11, v{vL}, 1, 1
    s_lshl_b32 s{sT0}, s{sWave}, 1
    v_add_u32 v11, s{sT0}, v11
    v_xor_b32 v9, v9, v11
    v_lshl_add_u32 v10, v9, 4, v10
    v_and_b32 v9, 1, v{vL}
    v_lshl_add_u32 v10, v9, 3, v10""")
    for ks in range(4):
        for hf in range(2):
            a(f"ds_read_b64_tr_b16 {V(vBV+4*ks+2*hf, 2)}, v10 offset:{L_WUV + (32*ks+4*hf)*256}")
    a(f"""v_bfe_u32 v9, v{vL}, 3, 1
    v_lshlrev_b32 v36, 15, v9
    v_and_b32 v11, 3, v{vL}
    v_lshl_add_u32 v36, v11, 11, v36
    v_lshl_add_u32 v36, v{vG}, 9, v36
    s_and_b32 s{sT2}, s{sWave}, 3
    s_lshr_b32 s{sT3}, s{sWave}, 2
    s_lshl_b32 s{sT0}, s{sT2}, 13
    s_lshl_b32 s{sT1}, s{sH}, 4
    s_add_u32 s{sT0}, s{sT0}, s{sT1}
    s_add_u32 s{sT0}, s{sT0}, {ST}""")
    a(f"""v_lshlrev_b32 v37, 14, v9
    v_lshl_add_u32 v37, v{vG}, 8, v37
    v_and_b32 v11, 7, v{vL}
    v_lshl_add_u32 v37, v11, 4, v37
    s_lshl_b32 s{sT1}, s{sH}, 2
    s_add_u32 s{sT1}, s{sT1}, s{sJ}
    s_lshl_b32 s{sQ+1}, s{sT1}, 10
    s_add_u32 s{sQ+3}, s{sQ+1}, {CXL}
    s_add_u32 s{sQ+1}, s{sQ+1}, {CX}
    s_lshl_b32 s{sT1}, s{sT1}, 15
    s_lshl_b32 s{sQ}, s{sT2}, 12
    s_add_u32 s{sT1}, s{sT1}, s{sQ}
    s_lshl_b32 s{sQ}, s{sT3}, 7
    s_add_u32 s{sT1}, s{sT1}, s{sQ}
    s_add_u32 s{sT1}, s{sT1}, {OP}""")
    a(f"v_and_b32 v38, 1, v{vG}\nv_mul_u32_u24 v38, 0xff, v38")
    lsbtags(40, "v38")
    a(f"""v_mul_u32_u24 v38, {4*272}, v9
    v_lshl_add_u32 v38, v11, 4, v38
    v_and_b32 v39, 1, v{vG}
    v_lshl_add_u32 v38, v39, 3, v38
    s_mul_i32 s{sQ}, s{sT2}, 272
    s_lshl_b32 s{sQ+2}, s{sT3}, 7
    s_add_u32 s{sQ}, s{sQ}, s{sQ+2}
    s_add_u32 s{sQ}, s{sQ}, {L_AIMG}
    v_add_u32 v38, s{sQ}, v38""")
    a(f"""v_lshlrev_b32 v44, 5, v9
    s_lshl_b32 s{sQ}, s{sT2}, 2
    s_add_u32 s{sQ}, s{sQ}, {L_VST}
    v_add_u32 v44, s{sQ}, v44
    v_lshlrev_b32 v45, 5, v39
    v_add_u32 v45, {L_VST}, v45""")
    a(f"""v_mul_u32_u24 v46, 272, v11
    v_lshl_add_u32 v46, v{vG}, 4, v46
    v_add_u32 v46, {L_AIMG}, v46""")
    a(f"""v_lshlrev_b32 v47, 9, v{vG}
    v_lshl_add_u32 v47, v{vJ}, 2, v47
    s_lshl_b32 s{sQ}, s{sWave}, 6
    v_add_u32 v47, s{sQ}, v47
    v_and_b32 v48, 3, v{vL}
    v_mul_u32_u24 v48, 37, v48
    v_add_u32 v48, s{sT[0]}, v48""")
    a("v_mov_b32 v92, 1")
    stamp(6)
    vOD = 56
    if p.sparseC:
        a(f"""s_and_b32 s{sQ}, s2, 7
        s_lshl_b32 s{sQ}, s{sQ}, 3
        s_lshl_b64 exec, 0xff, s{sQ}""")
        L = poll_begin()
        for u in range(p.sparseC): a(f"buffer_load_dwordx4 {V(vOD+4*u)}, v37, {R(rWS)}, s{sT1} offen offset:{1024*u} sc1")
        for u in range(p.sparseC):
            a(f"s_waitcnt vmcnt({p.sparseC-1-u})")
            chkv(49, vOD+4*u, 40, u == 0)
        poll_end(L, 49, '0x10001')
        a("s_mov_b64 exec, -1")
    else:
        a(f"""s_cmp_lg_u32 s{sWave}, 0
    s_cbranch_scc1 L_X_hinted
    s_lshl_b32 s{sQ}, s2, 7
    s_add_u32 s{sQ}, s{sQ}, {HC}
    s_mov_b64 exec, 1""")
        L = poll_begin()
        a(f"""buffer_load_dword v49, v{vL16}, {R(rWS)}, s{sQ} offen sc1
    s_waitcnt vmcnt(0)
    v_xor_b32 v49, s{sT[0]}, v49""")
        poll_end(L, 49, '-1')
        a("s_mov_b64 exec, -1")
        a.label("L_X_hinted")
    a("s_barrier")
    stamp(7)
    vOD = 56
    L = poll_begin()
    a(f"buffer_load_dwordx4 v[52:55], v36, {R(rWS)}, s{sT0} offen sc1")
    for u in range(4): a(f"buffer_load_dwordx4 {V(vOD+4*u)}, v37, {R(rWS)}, s{sT1} offen offset:{1024*u} sc1")
    a(f"""s_mov_b64 exec, -1
    s_waitcnt vmcnt(4)
    v_max_f32_dpp v50, v52, v52 quad_perm:[1,0,3,2] row_mask:0xf bank_mask:0xf
    v_cmp_ne_u32 vcc, s{sT[0]}, v54
    v_max_f32_dpp v50, v50, v50 quad_perm:[2,3,0,1] row_mask:0xf bank_mask:0xf
    v_cndmask_b32 v49, 0, v92, vcc""")
    allred_groups("v_max_f32", 50, 51)
    a(f"""v_sub_f32 v51, v52, v50
    v_exp_f32 v51, v51
    v_cvt_pk_bf16_f32 v51, v51, v51""")
    for u in range(4):
        buildA(72+4*u, 51, u)
    for u in range(4):
        a(f"s_waitcnt vmcnt({3-u})")
        mfma(88, 72+4*u, vOD+4*u, '0' if u == 0 else None)
        chkv(49, vOD+4*u, 40)
    a(f"""v_and_b32 v51, 0xffff0000, v51
    v_mul_f32 v51, v51, v53
    v_add_f32_dpp v51, v51, v51 quad_perm:[1,0,3,2] row_mask:0xf bank_mask:0xf
    v_add_f32_dpp v51, v51, v51 quad_perm:[2,3,0,1] row_mask:0xf bank_mask:0xf""")
    allred_groups("v_add_f32", 51, 55)
    poll_end_masked(L, 49, '0x10001')
    if p.stamp: a(f"s_mov_b32 s{sStamp+24}, s{sCnt}")
    stamp(8)
    a(f"""ds_write2_b32 v44, v50, v51 offset0:0 offset1:4
    v_cvt_pk_bf16_f32 v88, v88, v89
    v_cvt_pk_bf16_f32 v89, v90, v91
    s_mov_b32 exec_lo, 0x00ff00ff
    s_mov_b32 exec_hi, 0xff00ff00
    ds_write_b64 v38, v[88:89]
    s_mov_b64 exec, -1
    s_waitcnt lgkmcnt(0)
    s_barrier""")
    for ks in range(4): a(f"ds_read_b128 {V(56+4*ks)}, v46 offset:{64*ks}")
    a(f"ds_read_b128 v[72:75], v45\nds_read_b128 v[76:79], v45 offset:16")
    for ks in range(4):
        a(f"s_waitcnt lgkmcnt({5-ks})")
        mfma(88, 56+4*ks, vBV+4*ks, '0' if ks == 0 else None)
    a(f"""s_waitcnt lgkmcnt(0)
    v_max3_f32 v50, v72, v73, v74
    v_max_f32 v50, v50, v75""")
    for r in range(4): a(f"v_sub_f32 v{72+r}, v{72+r}, v50")
    for r in range(4): a(f"v_exp_f32 v{72+r}, v{72+r}")
    a(f"""v_mul_f32 v51, v72, v76
    v_fmac_f32 v51, v73, v77
    v_fmac_f32 v51, v74, v78
    v_fmac_f32 v51, v75, v79
    v_rcp_f32 v51, v51
    v_mul_f32 v50, v72, v88
    v_fmac_f32 v50, v73, v89
    v_fmac_f32 v50, v74, v90
    v_fmac_f32 v50, v75, v91
    v_mul_f32 v50, v50, v51
    v_mov_b32_sdwa v50, v48 dst_sel:BYTE_0 dst_unused:UNUSED_PRESERVE src0_sel:BYTE_0
    s_mov_b32 exec_hi, 0""")
    if p.fast: a(f"buffer_store_dword v50, v47, {R(rWS)}, s{sQ+3} offen")
    a(f"""buffer_store_dword v50, v47, {R(rWS)}, s{sQ+1} offen sc1
    s_mov_b64 exec, -1""")
    stamp(9)
    a(f"""s_cmp_ge_u32 s2, 72
    s_cbranch_scc1 L_X_end
    s_cmp_ge_u32 s2, 36
    s_cselect_b32 s{sT2}, 1, 0
    s_mul_i32 s{sT3}, s{sT2}, 36
    s_sub_u32 s{sT3}, s2, s{sT3}
    s_mul_i32 s{sT0}, s{sWave}, {16*4608}
    s_mul_i32 s{sT1}, s{sT2}, 2304
    s_add_u32 s{sT0}, s{sT0}, s{sT1}
    s_lshl_b32 s{sT1}, s{sT3}, 6
    s_add_u32 s{sT0}, s{sT0}, s{sT1}
    s_add_u32 s{sT0}, s{sT0}, {FP}
    v_lshrrev_b32 v9, 2, v{vL}
    v_mul_u32_u24 v10, 4608, v9
    v_and_b32 v11, 3, v{vL}
    v_lshl_add_u32 v10, v11, 4, v10
    v_lshl_add_u32 v13, v{vG}, 2, v11
    v_lshlrev_b32 v13, 5, v13
    s_lshl_b32 s{sT1}, s{sWave}, 2
    s_add_u32 s{sT1}, s{sT1}, {L_RED}
    v_add_u32 v13, s{sT1}, v13""")
    srd(rB, pB2, SZ['b2']); srd(rC, pOUT, SZ['out'])
    a(f"""s_lshl_b32 s{sT1}, s{sT3}, 2
    v_add_u32 v14, s{sT1}, v11""")
    decode_v(15, 14, 16)
    a(f"""v_bfe_u32 v14, v{vL}, 2, 2
    v_add_u32 v15, v15, v14
    v_lshlrev_b32 v15, 1, v15
    buffer_load_ushort v16, v15, {R(rB)}, 0 offen
    s_lshl_b32 s{sT1}, s{sT2}, 2
    s_add_u32 s{sT1}, s{sT1}, {L_GATE}
    v_mov_b32 v17, s{sT1}
    ds_read_b32 v17, v17
    v_lshlrev_b32 v18, 5, v{vJ}
    v_add_u32 v18, {L_RED}, v18
    s_mul_i32 s{sT2}, s{sT2}, 1152
    s_waitcnt vmcnt(0) lgkmcnt(0)
    v_lshlrev_b32 v16, 16, v16
    v_sub_f32 v17, 1.0, v17
    v_mul_f32 v16, v16, v17""")
    L = poll_begin()
    a(f"""buffer_load_dwordx4 v[20:23], v10, {R(rWS)}, s{sT0} offen sc1
    s_waitcnt vmcnt(0)""")
    chk4(24, 20, True)
    poll_end(L, 24, '0xff')
    stamp(10)
    treduce(20)
    a(f"""v_add_f32_dpp v20, v20, v20 row_ror:4 row_mask:0xf bank_mask:0xf
    v_add_f32_dpp v20, v20, v20 row_ror:8 row_mask:0xf bank_mask:0xf
    ds_write_b32 v13, v20
    s_waitcnt lgkmcnt(0)
    s_barrier
    s_cmp_lg_u32 s{sWave}, 0
    s_cbranch_scc1 L_X_end
    ds_read_b128 v[20:23], v18
    ds_read_b128 v[24:27], v18 offset:16
    s_waitcnt lgkmcnt(0)
    v_add_f32 v20, v20, v24
    v_add_f32 v21, v21, v25
    v_add_f32 v22, v22, v26
    v_add_f32 v23, v23, v27
    v_add_f32 v20, v20, v21
    v_add_f32 v22, v22, v23
    v_add_f32 v20, v20, v16
    v_add_f32 v20, v20, v22
    v_cvt_pk_bf16_f32 v20, v20, v20
    s_mov_b64 exec, 0xffff
    buffer_store_short v20, v15, {R(rC)}, s{sT2} offen
    s_cmp_lg_u32 s2, 0
    s_cbranch_scc1 L_X_end
    s_mov_b64 exec, 1
    v_mov_b32 v21, s{sT[0]}
    v_mov_b32 v22, 0
    buffer_store_dword v21, v22, {R(rWS)}, 0 offen offset:{EPOCH} sc1""")
    a.label("L_X_end")
    stamp(11)
    finish('X')

    a.label("L_Y_main")
    vQA, vPA, vSF, vPF, vACC = 20, 36, 48, 112, 176
    vTG, vTO = 208, 212
    vQG = 216
    a(f"""s_and_b32 s{sT2}, s{sWave}, 3
    s_lshr_b32 s{sT3}, s{sWave}, 2
    v_and_b32 v9, 7, v{vJ}
    v_lshlrev_b32 v9, 1, v9
    v_lshrrev_b32 v10, 3, v{vJ}
    v_or_b32 v9, v9, v10
    v_lshlrev_b32 v9, 4, v9
    v_lshl_add_u32 v9, v{vG}, 8, v9
    v_lshl_add_u32 v9, v{vJ}, 10, v9
    s_lshl_b32 s{sT0}, s{sT2}, 14
    v_add_u32 v13, s{sT0}, v9
    s_lshl_b32 s{sT0}, s{sT3}, 14
    s_add_u32 s{sT0}, s{sT0}, {L_QIMG}
    v_add_u32 v{vQA}, s{sT0}, v9""")
    for ks in range(1, 16): a(f"v_xor_b32 v{vQA+ks}, {16*ks}, v{vQA}")
    a(f"""v_lshrrev_b32 v9, 2, v{vL}
    v_and_b32 v10, 7, v9
    v_lshlrev_b32 v10, 1, v10
    v_lshrrev_b32 v11, 3, v9
    v_or_b32 v10, v10, v11
    v_bfe_u32 v11, v{vL}, 1, 1
    v_xor_b32 v10, v10, v11
    v_lshlrev_b32 v10, 4, v10
    v_lshl_add_u32 v10, v9, 10, v10
    v_and_b32 v11, 1, v{vL}
    v_lshl_add_u32 v10, v11, 3, v10
    s_lshl_b32 s{sT0}, s{sT2}, 8
    v_add_u32 v{vPA}, s{sT0}, v10""")
    for ct in range(1, 8): a(f"v_xor_b32 v{vPA+ct}, {32*ct}, v{vPA}")
    lsbtags(vTG)
    a(f"s_bitcmp1_b32 s2, 0\ns_cselect_b32 s{sT0}, 0xff, 0")
    lsbtags(vTO, f"s{sT0}")
    a(f"s_mul_i32 s{sT0}, s{sI}, 9\nv_add_u32 v9, s{sT0}, v{vJ}")
    decode_v(14, 9, 10)
    a(f"""s_mul_i32 s{sT0}, s{sXcd}, 576
    v_add_u32 v14, s{sT0}, v14
    v_mul_u32_u24 v15, 1152, v14""")
    for t in range(9): a(f"v_readlane_b32 s{sQ+t}, v15, {t}")
    a(f"""s_bfe_u32 s{sT0}, s2, 0x10006
    s_lshl_b32 s{sT0}, s{sT0}, 15
    s_lshl_b32 s{sT1}, s{sWave}, 12
    s_add_u32 s{sT0}, s{sT0}, s{sT1}
    s_add_u32 s{sT0}, s{sT0}, {QL}
    s_add_u32 s{sT1}, s{sT1}, {L_QIMG}
    s_and_b32 vcc_lo, s{sWave}, 1
    s_lshl_b32 vcc_lo, vcc_lo, 7
    s_bfe_u32 vcc_hi, s{sWave}, 0x10001
    s_lshl_b32 vcc_hi, vcc_hi, 4
    s_or_b32 vcc_lo, vcc_lo, vcc_hi
    v_xor_b32 v16, vcc_lo, v{vL16}
    v_add_u32 v16, s{sT1}, v16
    v_xor_b32 v17, 32, v16
    v_xor_b32 v18, 64, v16
    v_xor_b32 v19, 0x60, v16
    """)
    a(f"""s_lshl_b32 s{sQ+9}, s{sT3}, 12
    s_add_u32 s{sQ+9}, s{sQ+9}, {L_SX}
    v_add_u32 v10, s{sQ+9}, v{vL16}
    s_lshl_b32 s{sQ+9}, s{sT2}, 10
    v_add_u32 v11, s{sQ+9}, v10
    v_lshlrev_b32 v12, 19, v{vG}
    v_lshl_add_u32 v12, v{vJ}, 4, v12
    s_sub_u32 s{sQ+9}, s2, 128
    s_lshl_b32 s{sT1}, s{sQ+9}, 9
    s_lshl_b32 vcc_lo, s{sT3}, 8
    s_add_u32 s{sT1}, s{sT1}, vcc_lo
    s_add_u32 s{sT1}, s{sT1}, {ST}
    s_lshl_b32 s{sQ+10}, s{sQ+9}, 8
    s_lshl_b32 vcc_lo, s{sT3}, 21
    s_add_u32 s{sQ+10}, s{sQ+10}, vcc_lo
    s_lshl_b32 vcc_lo, s{sT2}, 15
    s_add_u32 s{sQ+10}, s{sQ+10}, vcc_lo
    s_add_u32 s{sQ+10}, s{sQ+10}, {OP}
    s_lshl_b32 s{sQ+9}, s{sQ+9}, 7
    s_add_u32 s{sQ+9}, s{sQ+9}, {HC}""")
    for k in range(4): a(f"v_mov_b32 v{248+k}, 0x3f803f80\nv_mov_b32 v{252+k}, s{sT[0]}")
    def qloads():
        for n in range(4): a(f"buffer_load_dwordx4 {V(vQG+4*n)}, v{vL16}, {R(rWS)}, s{sT0} offen offset:{1024*n} sc1")
    for T in range(4):
        if T == p.qat: qloads()
        a(f"s_waitcnt vmcnt({12-4*T + (4 if T >= p.qat else 0)})\ns_barrier")
        if T == 0: stamp(2)
        if T == 3:
            stamp(3)
            if p.qat == 4: qloads()
        Ls = a.newlabel('nos')
        a(f"s_cmp_lg_u32 s{sT2}, {T}\ns_cbranch_scc1 {Ls}")
        for ks in range(16):
            a(f"v_xor_b32 v9, {16*ks}, v13\nds_read_b128 {V(vSF+4*ks)}, v9")
        a.label(Ls)
        for ct in range(8):
            a(f"ds_read_b64_tr_b16 {V(vPF+8*ct+2*T, 2)}, v{vPA+ct} offset:{16384*T}")
    Lq = a.newlabel('qchk')
    a(f"s_mov_b32 s{sCnt}, 0\ns_branch {Lq}")
    L = a.newlabel('poll'); a.label(L)
    qloads()
    a("s_mov_b64 exec, -1")
    a.label(Lq)
    for n in range(4):
        a(f"s_waitcnt vmcnt({3-n})")
        chkv(9, vQG+4*n, vTG, n == 0)
    poll_end_masked(L, 9, '0x10001', p.bsleep)
    if p.stamp: a(f"s_mov_b32 s{sStamp+24}, s{sCnt}")
    stamp(4)
    for n in range(4): a(f"ds_write_b128 v{16+n}, {V(vQG+4*n)} offset:{1024*n}")
    a(f"s_mov_b32 s{sT0}, s{sQ+10}\nv_mov_b32 v9, 0x10001")
    a("s_waitcnt lgkmcnt(0)\ns_barrier")
    stamp(5)
    def hint(pos):
        if p.hintpos == pos and not p.sparseC:
            a(f"""s_cmp_eq_u32 s{sWave}, 7
            s_cselect_b32 exec_lo, 0xff, 0
            s_mov_b32 exec_hi, 0
            buffer_store_dwordx4 v[252:255], v{vL16}, {R(rWS)}, s{sQ+9} offen sc1
            s_mov_b64 exec, -1""")
    NQ = 8
    for ks in range(p.qpre): a(f"ds_read_b128 {V(vQG+4*ks)}, v{vQA+ks}")
    a(f"""s_cmp_eq_u32 s{sT3}, 0
    s_cbranch_scc1 L_Y_s
    s_barrier""")
    a.label("L_Y_s")
    for ks in range(p.qpre, NQ): a(f"ds_read_b128 {V(vQG+4*ks)}, v{vQA+ks}")
    for ks in range(16):
        rem = min(15, ks+NQ-1) - ks
        a(f"s_waitcnt lgkmcnt({rem})")
        mfma(vACC, vSF+4*ks, vQG+4*(ks % NQ), '0' if ks == 0 else None)
        if ks + NQ < 16: a(f"ds_read_b128 {V(vQG+4*(ks%NQ))}, v{vQA+ks+NQ}")
    a(f"""ds_write_b128 v11, {V(vACC)}
    s_waitcnt lgkmcnt(0)
    s_barrier""")
    stamp(6)
    vS = 48
    for T in range(4): a(f"ds_read_b128 {V(vS+4*T)}, v10 offset:{1024*T}")
    hint(0)
    a(f"""s_waitcnt lgkmcnt(2)
    v_max3_f32 v64, v{vS}, v{vS+1}, v{vS+2}
    v_max3_f32 v65, v{vS+3}, v{vS+4}, v{vS+5}
    v_max3_f32 v64, v64, v{vS+6}, v{vS+7}
    s_waitcnt lgkmcnt(0)
    v_max3_f32 v65, v65, v{vS+8}, v{vS+9}
    v_max3_f32 v64, v64, v{vS+10}, v{vS+11}
    v_max3_f32 v65, v65, v{vS+12}, v{vS+13}
    v_max3_f32 v64, v64, v{vS+14}, v{vS+15}
    v_max_f32 v64, v64, v65""")
    allred_groups("v_max_f32", 64, 65)
    for k in range(8): a(f"v_pk_add_f32 v[{vS+2*k}:{vS+2*k+1}], v[{vS+2*k}:{vS+2*k+1}], v[64:65] op_sel_hi:[1,0] neg_lo:[0,1] neg_hi:[0,1]")
    for k in range(16): a(f"v_exp_f32 v{vS+k}, v{vS+k}")
    hint(1)
    if p.diag == 1: stamp(1)
    a(f"""s_cmp_eq_u32 s{sT3}, 0
    s_cbranch_scc0 L_Y_p
    s_barrier""")
    a.label("L_Y_p")
    vP = 72
    for k in range(8): a(f"v_cvt_pk_bf16_f32 v{vP+k}, v{vS+2*k}, v{vS+2*k+1}")
    hint(2)
    if p.diag == 1: stamp(4)
    a(f"""s_cmp_eq_u32 s{sT2}, 0
    s_cbranch_scc0 L_Y_nol""")
    mfma(68, 248, vP, '0')
    mfma(68, 248, vP+4)
    a.label("L_Y_nol")
    def epi(k):
        for r in range(4): a(f"v_cvt_pk_bf16_f32 v{80+4*r+k}, v{vACC+8*k+r}, v{vACC+8*k+4+r}")
        for r in range(4): a(f"v_bfi_b32 v{80+4*r+k}, v9, v{vTO+k}, v{80+4*r+k}")
    for k in range(4):
        mfma(vACC+8*k, vP, vPF+16*k, '0')
        mfma(vACC+8*k+4, vP, vPF+16*k+8, '0')
        mfma(vACC+8*k, vP+4, vPF+16*k+4)
        mfma(vACC+8*k+4, vP+4, vPF+16*k+12)
        if k == 1:
            a(f"""v_mov_b32 v66, s{sT[0]}
            v_mov_b32 v65, v68
            s_cmp_eq_u32 s{sT2}, 0
            s_cselect_b32 exec_lo, 0xffff, 0
            s_mov_b32 exec_hi, 0
            buffer_store_dwordx4 v[64:67], v{vL16}, {R(rWS)}, s{sT1} offen sc1
            s_mov_b64 exec, -1""")
        if k >= 2: epi(k-2)
    if p.diag == 1: stamp(2)
    epi(2)
    if p.diag == 1: stamp(3)
    for r in range(4):
        a(f"v_cvt_pk_bf16_f32 v{83+4*r}, v{vACC+24+r}, v{vACC+28+r}")
        a(f"v_bfi_b32 v{83+4*r}, v9, v{vTO+3}, v{83+4*r}")
        a(f"buffer_store_dwordx4 {V(80+4*r)}, v12, {R(rWS)}, s{sT0} offen sc1")
        if r < 3: a(f"s_add_u32 s{sT0}, s{sT0}, 0x20000")
    hint(3)
    stamp(7)
    a(f"""s_cmp_ge_u32 s{sWave}, 5
    s_cbranch_scc1 L_Y_fg""")
    srd(rB, pW2, SZ['w2']); srd(rC, pWO, SZ['wo'])
    a("s_barrier")
    vW2, vWO, vA2, vD2 = 100, 136, 20, 60
    a(f"""s_lshl_b32 s{sT0}, s{sH}, 2
    s_add_u32 s{sT0}, s{sT0}, s{sJ}
    s_sub_u32 s{sT0}, s{sT0}, 4
    s_mul_i32 s{sT0}, s{sT0}, {32*1152}
    v_mul_u32_u24 v10, 1152, v{vG}
    s_lshl_b32 s{sT1}, s{sWave}, 8
    v_add_u32 v10, s{sT1}, v10
    s_cmp_eq_u32 s{sWave}, 4
    s_cbranch_scc1 L_Y_half
    v_lshl_add_u32 v10, v{vJ}, 4, v10""")
    for t in range(9): a(f"buffer_load_dwordx4 {V(vW2+4*t)}, v10, {R(rB)}, s{sQ+t} offen {nt}")
    for t in range(8):
        a(f"buffer_load_dwordx4 {V(vWO+4*t)}, v10, {R(rC)}, s{sT0} offen {nt}")
        if t < 7: a(f"s_add_u32 s{sT0}, s{sT0}, {4*1152}")
    slot_voff(11, False)
    a("s_branch L_Y_o2")
    a.label("L_Y_half")
    a(f"""v_and_b32 v9, 7, v{vJ}
    v_lshl_add_u32 v10, v9, 4, v10
    s_mov_b32 vcc_lo, 0xff00ff00
    s_mov_b32 vcc_hi, 0xff00ff00""")
    for n in range(5):
        if n < 4:
            a(f"v_mov_b32 v13, s{sQ+2*n}\nv_mov_b32 v14, s{sQ+2*n+1}\nv_cndmask_b32 v13, v13, v14, vcc\nv_add_u32 v13, v13, v10")
            a(f"buffer_load_dwordx4 {V(vW2+4*n)}, v13, {R(rB)}, 0 offen {nt}")
        else:
            a("s_mov_b32 exec_lo, 0x00ff00ff\ns_mov_b32 exec_hi, 0x00ff00ff")
            a(f"buffer_load_dwordx4 {V(vW2+4*n)}, v10, {R(rB)}, s{sQ+8} offen {nt}")
            a("s_mov_b64 exec, -1")
    a(f"v_lshrrev_b32 v9, 3, v{vJ}\nv_mul_u32_u24 v9, {4*1152}, v9\nv_add_u32 v10, v10, v9")
    for n in range(4):
        a(f"buffer_load_dwordx4 {V(vWO+4*n)}, v10, {R(rC)}, s{sT0} offen {nt}")
        if n < 3: a(f"s_add_u32 s{sT0}, s{sT0}, {8*1152}")
    slot_voff(11, True)
    a.label("L_Y_o2")
    a(f"""v_bfe_u32 v9, v{vL}, 3, 1
    v_and_b32 v13, 3, v{vL}
    v_lshl_add_u32 v13, v13, 2, v{vG}
    v_lshlrev_b32 v13, 2, v13
    v_mul_u32_u24 v14, 192, v9
    v_add_u32 v14, v14, v13
    v_add_u32 v14, {L_HX}, v14
    v_and_b32 v15, 7, v{vL}
    v_lshl_add_u32 v15, v15, 2, v{vG}
    v_lshlrev_b32 v15, 2, v15
    v_lshl_add_u32 v15, v9, 9, v15
    v_lshlrev_b32 v16, 2, v9
    v_add_u32 v16, {L_GATE}, v16
    ds_read_b32 v16, v16
    v_mul_u32_u24 v17, 37, v{vG}
    v_add_u32 v17, s{sT[0]}, v17
    s_lshl_b32 s{sT0}, s{sH}, 12
    s_sub_u32 s{sT1}, s{sJ}, 4
    s_lshl_b32 s{sT1}, s{sT1}, 7
    s_add_u32 s{sT0}, s{sT0}, s{sT1}
    s_add_u32 s{sT0}, s{sT0}, {CXL if p.fast else CX}
    s_sub_u32 s{sT2}, s2, 128
    s_mul_i32 s{sT2}, s{sT2}, 4608
    s_add_u32 s{sT2}, s{sT2}, {FP}
    s_barrier""")
    stamp(8)
    for v in range(3): a(f"ds_read_b32 v{68+v}, v14 offset:{64*v}")
    a("s_waitcnt lgkmcnt(0)")
    for t in range(9): buildA(vA2+4*t, 68+t//4, t % 4)
    a(f"""s_cmp_eq_u32 s{sWave}, 4
    s_cbranch_scc1 L_Y_half2""")
    for t in range(9):
        a(f"s_waitcnt vmcnt({16-t})")
        mfma(vD2, vA2+4*t, vW2+4*t, '0' if t == 0 else None)
    a("s_branch L_Y_o3")
    a.label("L_Y_half2")
    for n in range(5):
        a(f"s_waitcnt vmcnt({8-n})")
        mfma(vD2, vA2+8*n, vW2+4*n, '0' if n == 0 else None)
        if n < 4: mfma(vD2+4, vA2+8*n+4, vW2+4*n, '0' if n == 0 else None)
    a.label("L_Y_o3")
    stamp(9)
    L = poll_begin()
    for cq in range(4): a(f"buffer_load_dword v{72+cq}, v15, {R(rWS)}, s{sT0} offen offset:{1024*cq} sc1")
    a("s_waitcnt vmcnt(0)")
    a("v_xor_b32 v76, v17, v72")
    for cq in range(1, 4): a(f"v_bitop3_b32 v76, v76, v{72+cq}, v17 bitop3:0xf6")
    poll_end(L, 76, '0xff', ((sT0,), CXL-CX))
    stamp(10)
    a(f"""v_add_f32 v72, v72, v73
    v_add_f32 v74, v74, v75
    v_add_f32 v72, v72, v74
    v_mul_f32 v72, v72, v16
    v_cvt_pk_bf16_f32 v72, v72, v72
    v_mov_b32 v73, v72
    v_mov_b32 v74, v72
    v_mov_b32_dpp v73, v72 row_shr:4 row_mask:0xf bank_mask:0xa
    v_mov_b32_dpp v74, v72 row_shl:4 row_mask:0xf bank_mask:0x5
    s_cmp_eq_u32 s{sWave}, 4
    s_cbranch_scc1 L_Y_half3""")
    for t in range(8):
        buildA(vA2+4*t, 73+t//4, t % 4)
        if t > 0: mfma(vD2, vA2+4*(t-1), vWO+4*(t-1))
    mfma(vD2, vA2+28, vWO+28)
    slot_store(vD2, sT2, False, 11)
    a("s_branch L_Y_end")
    a.label("L_Y_half3")
    for t in range(8):
        buildA(vA2+4*t, 73+t//4, t % 4)
        if t > 0: mfma(vD2+4*((t-1) & 1), vA2+4*(t-1), vWO+4*((t-1)//2))
    mfma(vD2+4, vA2+28, vWO+12)
    for r in range(4): a(f"v_add_f32_dpp v{vD2+r}, v{vD2+4+r}, v{vD2+r} row_ror:8 row_mask:0xf bank_mask:0xf")
    slot_store(vD2, sT2, True, 11)
    a("s_branch L_Y_end")
    a.label("L_Y_fg")
    a(f"""s_cmp_eq_u32 s{sWave}, 7
    s_cbranch_scc1 L_Y_fg7""")
    srd(rB, pB1, SZ['b1'])
    a(f"""s_sub_u32 s{sT2}, s{sWave}, 5
    s_mul_i32 s{sT0}, s{sXcd}, {16*4608}
    s_mul_i32 s{sT1}, s{sT2}, 2304
    s_add_u32 s{sT0}, s{sT0}, s{sT1}
    s_mul_i32 s{sT1}, s{sI}, 144
    s_add_u32 s{sT0}, s{sT0}, s{sT1}
    s_add_u32 s{sT0}, s{sT0}, {HP}
    s_add_u32 s{sQ}, s{sT0}, {4*4608}
    s_add_u32 s{sQ+1}, s{sT0}, {8*4608}
    s_add_u32 s{sQ+2}, s{sT0}, {12*4608}
    v_mul_u32_u24 v10, 4608, v{vG}
    v_lshl_add_u32 v10, v{vJ}, 4, v10
    v_add_u32 v14, v14, v{vG}
    v_lshlrev_b32 v14, 1, v14
    s_lshl_b32 s{sT1}, s{sT2}, 2
    s_add_u32 s{sT1}, s{sT1}, {L_GATE}
    v_mov_b32 v16, s{sT1}
    ds_read_b32 v16, v16
    s_mul_i32 s{sT1}, s{sT2}, 192
    s_add_u32 s{sT1}, s{sT1}, {L_HX}
    v_lshl_add_u32 v17, v{vJ}, 2, v{vG}
    v_lshlrev_b32 v17, 2, v17
    v_add_u32 v17, s{sT1}, v17
    s_mov_b32 exec_lo, 0x01ff01ff
    s_mov_b32 exec_hi, 0x01ff01ff
    buffer_load_ushort v15, v14, {R(rB)}, 0 offen""")
    def floads():
        for k, s in enumerate((sT0, sQ, sQ+1, sQ+2)):
            a(f"buffer_load_dwordx4 {V(20+4*k)}, v10, {R(rWS)}, s{s} offen sc1")
    floads()
    Lf = a.newlabel('fchk')
    a(f"s_barrier\ns_mov_b32 s{sCnt}, 0\ns_branch {Lf}")
    L = a.newlabel('poll'); a.label(L)
    floads()
    a.label(Lf)
    for k in range(4):
        a(f"s_waitcnt vmcnt({3-k})")
        chk4(36, 20+4*k, k == 0)
    poll_end(L, 36, '0xff')
    stamp(8)
    a("s_mov_b64 exec, -1")
    for k in range(4): a(f"v_add_f32 v{20+k}, v{20+k}, v{24+k}\nv_add_f32 v{28+k}, v{28+k}, v{32+k}")
    for k in range(4): a(f"v_add_f32 v{20+k}, v{20+k}, v{28+k}")
    treduce(20)
    c1 = -2*math.sqrt(2/math.pi)*math.log2(math.e)
    a(f"""v_lshlrev_b32 v15, 16, v15
    v_add_f32 v20, v20, v15
    v_mul_f32 v21, v20, v20
    v_mov_b32 v22, {f2u(c1)}
    v_fmac_f32 v22, {f2u(c1*0.044715)}, v21
    v_mul_f32 v21, v22, v20
    v_exp_f32 v21, v21
    v_add_f32 v21, 1.0, v21
    v_rcp_f32 v21, v21
    s_waitcnt lgkmcnt(0)
    v_sub_f32 v16, 1.0, v16
    v_mul_f32 v20, v20, v21
    v_mul_f32 v20, v20, v16
    v_cvt_pk_bf16_f32 v20, v20, v20
    s_mov_b32 exec_lo, 0x01ff01ff
    s_mov_b32 exec_hi, 0x01ff01ff
    ds_write_b32 v17, v20
    s_mov_b64 exec, -1
    s_waitcnt lgkmcnt(0)""")
    a("s_branch L_Y_fgend")
    a.label("L_Y_fg7")
    a("s_barrier")
    a.label("L_Y_fgend")
    a("s_barrier")
    a.label("L_Y_end")
    stamp(11)
    finish('Y')
    a.label("L_exit")
    a("s_endpgm")
    return a.finalize()

HEADER = open('gated_mix__compressed_kv_cla__dense_activation_gelu__decode.s.ref').read().split('; Override')[0]

def emit(path, p=P):
    body = build(p)
    s = HEADER + f"""; @launch grid=(256,1,1) block=(512,1,1) lds={LDS_BYTES}
.amdgcn_target "amdgcn-amd-amdhsa--gfx950"
.text
.globl {KNAME}
.p2align 8
.type {KNAME},@function
{KNAME}:
{body}.section .rodata,"a"
.p2align 6
.amdhsa_kernel {KNAME}
  .amdhsa_next_free_vgpr 256
  .amdhsa_next_free_sgpr 102
  .amdhsa_accum_offset 256
  .amdhsa_group_segment_fixed_size 0
  .amdhsa_kernarg_size 120
  .amdhsa_user_sgpr_count 2
  .amdhsa_user_sgpr_kernarg_segment_ptr 1
  .amdhsa_system_sgpr_workgroup_id_x 1
.end_amdhsa_kernel
"""
    open(path, 'w').write(s)

if __name__ == '__main__':
    out = sys.argv[1]
    for kv in sys.argv[2:]:
        k, v = kv.split('=')
        setattr(P, k, type(getattr(P, k))(v))
    emit(out)
```

```python
import sys, struct, math
from asmlib import Asm

KNAME = "gated_mix__compressed_kv_cla__dense_activation_gelu__decode_kernel"

def f2u(x): return struct.unpack('<I', struct.pack('<f', x))[0]

class P:
    stamp = 0
    nt = "nt"
    pollA_wait = 4
    maxspin = 200000
    prefetch = 1
    wsoff = 0
    fast = 1
    nlocal = 256
    hintpos = 2
    diag = 0
    xpre = 4
    ypre = 0
    gate = 12
    qat = 2
    bsleep = 0
    tlb = 1
    cstat = 1
    dflag = 1
    drep = 18
    dsamp = 4
    dstr = 2304
    wopre = 1
    won = 9
    xg = -1
    xgn = 2
    gand = 0
    wofirst = 0
    odrain = 0
    warm = 1
    halfo = 0
    kint = 1
    b0pos = 1
    nsamp = 4
    prio = 1
    only = ""
    b0 = 1
    wqdma = 0
    nod1 = 0
    sparseC = 1
    qpre = 4
    enc = -1
    encwave = 4

EPOCH, QP, QL, ST, CX, HP, FP, OP, STAMP = 0, 0x10000, 0x50000, 0x60000, 0x70000, 0x90000, 0x120000, 0x200000, 0x800000
QPL, CXL, HC, HG, HD, HK = 0x600000, 0x640000, 0x660000, 0x670000, 0x690000, 0x680000
WS_REC = 0x1000000
L_CKV, L_QIMG, L_SX, L_HX, L_GATE = 0, 65536, 98304, 106496, 107008
L_WQ = 0x18000 - 20480
L_WUK, L_WUV, L_QV, L_AIMG, L_VST, L_RED = 0, 32768, 65536, 66048, 68352, 68480
L_WO = 107520
LDS_BYTES = 107520 + 36864
pX, pCKV, pWQ, pWUK, pWUV, pWO, pW1, pB1, pW2, pB2, pGW, pOUT, pWS = 4, 6, 8, 10, 12, 14, 18, 20, 22, 24, 26, 28, 32
sWave, sH, sJ, sI, sXcd, sTag = 3, 34, 35, 56, 57, 58
sT = [58, 59, 60, 61]
rA, rB, rC, rWS = 36, 40, 44, 48
sT0, sT1, sT2, sT3 = 52, 53, 54, 55
sCnt = 62
sQ = 64
sStamp = 76
vL, vJ, vG, vM, vL16 = 1, 2, 3, 4, 8
SZ = dict(x=2304, ckv=8388608, wq=4718592, wuk=4194304, wuv=4194304, wo=4718592, w1=5308416, w2=5308416, b1=9216, b2=1152, gw=1152, out=2304)

def build(p=P):
    a = Asm()
    nt = p.nt
    def srd(r, ptr, size):
        if ptr == pWS and p.wsoff:
            a(f"s_add_u32 s{r}, s{ptr}, {p.wsoff}\ns_addc_u32 s{r+1}, s{ptr+1}, 0\ns_mov_b32 s{r+2}, {size}\ns_mov_b32 s{r+3}, 0x20000")
            return
        a(f"s_mov_b32 s{r}, s{ptr}\ns_mov_b32 s{r+1}, s{ptr+1}\ns_mov_b32 s{r+2}, {size}\ns_mov_b32 s{r+3}, 0x20000")
    def R(r): return f"s[{r}:{r+3}]"
    def V(r, n=4): return f"v[{r}:{r+n-1}]"
    def stamp(k):
        if p.only and k not in [int(x) for x in p.only.split('.')]: return
        if p.stamp: a(f"s_memrealtime s[{sStamp+2*k}:{sStamp+2*k+1}]")
    def buildA(dst, x, u):
        for r in range(4):
            a(f"v_and_b32_dpp v{dst+r}, v{x}, v{vM+r} quad_perm:[{u},{u},{u},{u}] row_mask:0xf bank_mask:0xf")
    def mfma(d, A, B, c=None):
        a(f"v_mfma_f32_16x16x32_bf16 {V(d)}, {V(A)}, {V(B)}, {V(d) if c is None else c}")
    def tag4(d):
        for k in range(4):
            a(f"v_mov_b32_sdwa v{d+k}, s{sT[k]} dst_sel:BYTE_0 dst_unused:UNUSED_PRESERVE src0_sel:BYTE_0")
    def chk4(acc, d, first=False):
        for k in range(4):
            if first and k == 0: a(f"v_xor_b32 v{acc}, s{sT[0]}, v{d}")
            else: a(f"v_bitop3_b32 v{acc}, v{acc}, v{d+k}, s{sT[k]} bitop3:0xf6")
    def chkv(acc, d, t, first=False):
        for k in range(4):
            if first and k == 0: a(f"v_xor_b32 v{acc}, v{t}, v{d}")
            else: a(f"v_bitop3_b32 v{acc}, v{acc}, v{d+k}, v{t+k} bitop3:0xf6")
    def poll_begin():
        L = a.newlabel('poll')
        a(f"s_mov_b32 s{sCnt}, 0")
        a.label(L)
        return L
    def poll_end(L, acc, mask, fb=None, lim=None):
        D = a.newlabel('done')
        a(f"v_and_b32 v{acc}, {mask}, v{acc}\nv_cmp_ne_u32 vcc, 0, v{acc}\ns_add_u32 s{sCnt}, s{sCnt}, 1")
        a(f"s_cbranch_vccz {D}")
        if fb and p.fast:
            regs, delta = fb
            a(f"s_cmp_eq_u32 s{sCnt}, {p.nlocal}\ns_cselect_b32 vcc_lo, {delta}, 0")
            for r in regs: a(f"s_sub_u32 s{r}, s{r}, vcc_lo")
        a(f"s_cmp_lt_u32 s{sCnt}, {lim or p.maxspin}\ns_cbranch_scc1 {L}")
        a.label(D)
    def poll_end_masked(L, acc, mask, sleep=0):
        D = a.newlabel('done')
        a(f"""v_and_b32 v{acc}, {mask}, v{acc}
        v_cmp_ne_u32 vcc, 0, v{acc}
        s_add_u32 s{sCnt}, s{sCnt}, 1
        s_cbranch_vccz {D}
        s_wqm_b64 exec, vcc""")
        if sleep: a(f"s_sleep {sleep}")
        a(f"""s_cmp_lt_u32 s{sCnt}, {p.maxspin}
        s_cbranch_scc1 {L}
        s_mov_b64 exec, -1""")
        a.label(D)
    def spoll_all(off_regs, tmp):
        L = a.newlabel('sp'); D = a.newlabel('spd')
        a(f"s_mov_b32 s{sCnt}, 0")
        a.label(L)
        for k, r in enumerate(off_regs): a(f"s_load_dword s{tmp+k}, s[{rWS}:{rWS+1}], s{r} glc")
        a(f"s_add_u32 s{sCnt}, s{sCnt}, 1\ns_cmp_ge_u32 s{sCnt}, {p.maxspin}\ns_cbranch_scc1 {D}\ns_waitcnt lgkmcnt(0)")
        for k, r in enumerate(off_regs): a(f"s_cmp_lg_u32 s{tmp+k}, s{sT[0]}\ns_cbranch_scc1 {L}")
        a.label(D)
        a("s_waitcnt lgkmcnt(0)")
    def spoll(off_regs):
        L = a.newlabel('sp'); D = a.newlabel('spd')
        a(f"s_mov_b32 s{sCnt}, 0")
        a.label(L)
        for k, r in enumerate(off_regs): a(f"s_load_dword s{sT0+k}, s[{rWS}:{rWS+1}], s{r} glc")
        a(f"s_add_u32 s{sCnt}, s{sCnt}, 1\ns_waitcnt lgkmcnt(0)")
        for k, r in enumerate(off_regs): a(f"s_cmp_eq_u32 s{sT0+k}, s{sT[0]}\ns_cbranch_scc1 {D}")
        a(f"s_cmp_lt_u32 s{sCnt}, {p.maxspin}\ns_cbranch_scc1 {L}")
        a.label(D)
    def treduce(r):
        a(f"v_permlane32_swap_b32 v{r}, v{r+2}\nv_permlane32_swap_b32 v{r+1}, v{r+3}")
        a(f"v_add_f32 v{r}, v{r}, v{r+2}\nv_add_f32 v{r+1}, v{r+1}, v{r+3}")
        a(f"v_permlane16_swap_b32 v{r}, v{r+1}\nv_add_f32 v{r}, v{r}, v{r+1}")
    def allred_groups(op, r, t):
        a(f"v_mov_b32 v{t}, v{r}\nv_permlane32_swap_b32 v{r}, v{t}\n{op} v{r}, v{r}, v{t}")
        a(f"v_mov_b32 v{t}, v{r}\nv_permlane16_swap_b32 v{r}, v{t}\n{op} v{r}, v{r}, v{t}")
    def masks():
        a(f"""v_and_b32 v9, 3, v{vL}
        v_lshlrev_b32 v9, 4, v9
        v_mov_b32 v10, 0xffff
        v_mov_b32 v11, 0
        v_lshlrev_b64 v[10:11], v9, v[10:11]
        v_and_b32 v9, 4, v{vL}
        v_cmp_eq_u32 vcc, 0, v9
        v_cndmask_b32 v{vM}, 0, v10, vcc
        v_cndmask_b32 v{vM+1}, 0, v11, vcc
        v_cndmask_b32 v{vM+2}, v10, 0, vcc
        v_cndmask_b32 v{vM+3}, v11, 0, vcc""".replace('v_cndmask_b32 v%d, v10, 0, vcc' % (vM+2), 'v_cndmask_b32_e64 v%d, v10, 0, vcc' % (vM+2)).replace('v_cndmask_b32 v%d, v11, 0, vcc' % (vM+3), 'v_cndmask_b32_e64 v%d, v11, 0, vcc' % (vM+3)))
    def xoff(dst):
        a(f"""v_bfe_u32 v{dst}, v{vL}, 3, 1
        v_mul_u32_u24 v{dst}, 1152, v{dst}
        v_and_b32 v9, 3, v{vL}
        v_lshl_add_u32 v{dst}, v9, 3, v{dst}
        v_lshl_add_u32 v{dst}, v{vG}, 1, v{dst}""")
    def epoch_wait():
        a(f"""s_waitcnt lgkmcnt(0)
        s_add_u32 s{sT[0]}, s{sT[0]}, 1
        s_add_u32 s{sT[1]}, s{sT[0]}, 37
        s_add_u32 s{sT[2]}, s{sT[0]}, 74
        s_add_u32 s{sT[3]}, s{sT[0]}, 111""")
    def lsbtags(t, flip=None):
        a(f"""v_and_b32 v{t}, 7, v{vL}
        v_mul_u32_u24 v{t}, 37, v{t}
        v_add_u32 v{t}, s{sT[0]}, v{t}""")
        if flip: a(f"v_xor_b32 v{t}, {flip}, v{t}")
        a(f"""v_and_b32 v{t}, 0xff, v{t}
        v_lshl_or_b32 v{t}, v{t}, 15, v{t}
        v_lshrrev_b32 v{t+1}, 2, v{t}
        v_lshrrev_b32 v{t+2}, 4, v{t}
        v_lshrrev_b32 v{t+3}, 6, v{t}""")
    def decode_v(dst, src, t):
        a(f"""v_lshrrev_b32 v{dst}, 5, v{src}
        v_lshlrev_b32 v{dst}, 7, v{dst}
        v_and_b32 v{t}, 15, v{src}
        v_lshl_add_u32 v{dst}, v{t}, 3, v{dst}
        v_bfe_u32 v{t}, v{src}, 4, 1
        v_lshl_add_u32 v{dst}, v{t}, 2, v{dst}
        v_and_b32 v{t}, 7, v{src}
        v_lshlrev_b32 v{t}, 3, v{t}
        v_bfe_u32 v{t+1}, v{src}, 3, 1
        v_lshl_add_u32 v{t}, v{t+1}, 2, v{t}
        v_add_u32 v{t}, 512, v{t}
        v_cmp_gt_u32 vcc, 128, v{src}
        v_cndmask_b32 v{dst}, v{t}, v{dst}, vcc""")
    def finish(nst):
        if p.stamp == 3:
            Ls = a.newlabel('noenc'); Lw = a.newlabel('encw')
            a(f"""s_waitcnt lgkmcnt(0)
            s_lshl_b32 s{sT0}, s2, 3
            s_add_u32 s{sT0}, s{sT0}, s{sWave}
            s_cmp_eq_u32 s{sT0}, {p.encwave}
            s_cbranch_scc0 {Ls}
{Lw}:
            s_memrealtime s[{sT0}:{sT1}]
            s_waitcnt lgkmcnt(0)
            s_sub_u32 s{sT0}, s{sT0}, s{sStamp+2*p.enc}
            s_cmp_lt_u32 s{sT0}, 3000
            s_cbranch_scc1 {Lw}
{Ls}:
            s_endpgm""")
            return
        if p.stamp:
            a(f"""s_waitcnt lgkmcnt(0)
            s_lshl_b32 s{sT0}, s2, 3
            s_add_u32 s{sT0}, s{sT0}, s{sWave}
            s_lshl_b32 s{sT0}, s{sT0}, 6
            s_add_u32 s{sT0}, s{sT0}, {STAMP}
            s_mov_b64 exec, 1
            v_mov_b32 v9, 0""")
            for k in range(13):
                a(f"v_mov_b32 v{10+k}, s{sStamp+2*k}\nbuffer_store_dword v{10+k}, v9, {R(rWS)}, s{sT0} offen offset:{4*k}")
        if p.stamp == 2:
            Ls = a.newlabel('nosum')
            a(f"""s_lshl_b32 s{sT0}, s2, 3
            s_add_u32 s{sT0}, s{sT0}, s{sWave}
            s_cmp_eq_u32 s{sT0}, {4 if nst == 'X' else 1024}
            s_cbranch_scc0 {Ls}""")
            srd(rB, 30, 256)
            for n, k in enumerate((1,2,3,4,7,8,9,10) if nst == 'X' else (1,2,3,4,7,8,10,11)):
                a(f"s_sub_u32 s{sT1}, s{sStamp+2*k}, s{sStamp}\nv_mov_b32 v{30+n}, s{sT1}\nbuffer_store_dword v{30+n}, v9, {R(rB)}, 0 offen offset:{4*n + (0 if nst == 'X' else 32)}")
            a.label(Ls)
        a("s_endpgm")

    def slot_store(d, base_s, wave_is_half, toff):
        tag4(d)
        if wave_is_half: a("s_mov_b32 exec_lo, 0x00ff00ff\ns_mov_b32 exec_hi, 0x00ff00ff")
        a(f"buffer_store_dwordx4 {V(d)}, v{toff}, {R(rWS)}, s{base_s} offen sc1")
        if wave_is_half: a("s_mov_b64 exec, -1")
    def slot_voff(dst, half):
        a(f"""v_lshrrev_b32 v{dst}, 1, v{vG}
        v_mul_u32_u24 v{dst}, 2304, v{dst}
        v_lshl_add_u32 v{dst}, v{vJ}, 4, v{dst}
        v_and_b32 v9, 1, v{vG}""")
        if half:
            a(f"v_lshl_add_u32 v{dst}, v9, 7, v{dst}\nv_add_u32 v{dst}, 2048, v{dst}")
        else:
            a(f"v_lshl_add_u32 v{dst}, v9, 8, v{dst}\ns_lshl_b32 s{sT0}, s{sWave}, 9\nv_add_u32 v{dst}, s{sT0}, v{dst}")

    def zstamps():
        if p.stamp:
            for k in range(1, 13): a(f"s_mov_b32 s{sStamp+2*k}, 0")
    vXP, vAP, vWP, vDP = 12, 20, 100, 180
    assert p.wsoff == 0
    stamp(0)
    a(f"""s_load_dwordx8 s[36:43], s[0:1], 0
    s_load_dwordx2 s[{rWS}:{rWS+1}], s[0:1], 112
    v_readfirstlane_b32 s{sWave}, v0
    v_and_b32 v{vJ}, 15, v0
    s_lshr_b32 s{sJ}, s2, 5
    s_and_b32 s{sH}, s2, 31
    s_mov_b32 s{rWS+3}, 0x20000
    s_lshr_b32 s{sT0}, s2, 8
    s_or_b32 s{sT0}, s{sT0}, s{sWave}
    s_cbranch_scc1 L_rest""")
    a(f"""v_lshrrev_b32 v{vG}, 4, v0
    v_lshlrev_b32 v9, 15, v{vG}
    v_lshl_add_u32 v9, v{vJ}, 4, v9
    v_add_u32 v10, {8192-1024}, v9
    v_add_u32 v11, {2*(8192-1024)}, v9
    v_add_u32 v12, {3*(8192-1024)}, v9
    s_mul_i32 s{sT0}, s{sJ}, {72*32}
    s_add_u32 s{sT0}, s{sT0}, s{sH}
    s_lshl_b32 s{sT0}, s{sT0}, 8
    s_mov_b32 m0, {L_WQ}
    v_lshrrev_b32 v13, 3, v{vJ}
    v_mul_u32_u24 v13, 144, v13
    v_and_b32 v14, 3, v0
    v_lshl_add_u32 v14, v14, 2, v{vG}
    v_add_lshl_u32 v13, v13, v14, 3
    s_mul_i32 s{sT1}, s{sJ}, 144
    s_waitcnt lgkmcnt(0)
    s_movk_i32 s{rA+2}, {SZ['x']}
    s_mov_b32 s{rA+3}, s{rWS+3}
    s_add_u32 s{rB+2}, s{sT0}, {71*8192+256}
    s_mov_b32 s{rB+3}, s{rWS+3}""")
    if p.diag == 2: a(f"s_memrealtime s[{sQ+6}:{sQ+7}]")
    a(f"""buffer_load_dwordx2 v[186:187], v13, {R(rA)}, s{sT1} offen
    buffer_load_dwordx2 v[188:189], v13, {R(rA)}, s{sT1} offen offset:128
L_wq:
    buffer_load_dwordx4 v9, {R(rB)}, s{sT0} offen {nt} lds
    buffer_load_dwordx4 v10, {R(rB)}, s{sT0} offen offset:1024 {nt} lds
    buffer_load_dwordx4 v11, {R(rB)}, s{sT0} offen offset:2048 {nt} lds
    buffer_load_dwordx4 v12, {R(rB)}, s{sT0} offen offset:3072 {nt} lds
    s_addk_i32 m0, 4096
    s_add_u32 s{sT0}, s{sT0}, s{rWS+3}
    s_bitcmp0_b32 m0, 15
    s_cbranch_scc1 L_wq""")
    if p.diag == 2: a(f"s_memrealtime s[{sQ+8}:{sQ+9}]")
    if p.b0pos == 0: a("s_barrier")
    a.label("L_rest")
    a(f"""s_cmp_ge_u32 s{sJ}, 8
    s_cbranch_scc1 L_exit
    s_lshr_b32 s{sWave}, s{sWave}, 6
    v_and_b32 v{vL}, 63, v0
    v_bfe_u32 v{vG}, v0, 4, 2
    v_lshlrev_b32 v{vL16}, 4, v{vL}
    s_mov_b32 s{rWS+2}, {WS_REC}
    s_lshl_b32 s{sT0}, s{sH}, 3
    s_add_u32 s{sT0}, s{sT0}, s{sJ}
    s_lshl_b32 s{sT0}, s{sT0}, 10
    s_add_u32 s{sT1}, s{sT0}, {QPL}
    s_and_b32 s{sT2}, s{sWave}, 3
    s_mov_b32 s{rC+3}, s{rWS+3}
    s_cmp_eq_u32 s{sWave}, 3
    s_cselect_b32 exec_lo, 0x01010101, 0
    s_cselect_b32 exec_hi, 0x01010101, 0
    s_waitcnt lgkmcnt(0)""")
    if p.fast: a(f"buffer_load_dword v250, v{vL16}, {R(rWS)}, s{sT1} offen sc1")
    a(f"""s_mov_b64 exec, -1
    s_load_dword s{sT[0]}, s[{rWS}:{rWS+1}], {EPOCH}
    s_load_dwordx16 s[4:19], s[0:1], 0
    s_load_dwordx8 s[20:27], s[0:1], 64
    s_load_dwordx4 s[28:31], s[0:1], 96
    s_and_b32 s{sXcd}, s2, 7
    s_bfe_u32 s{sI}, s2, 0x40003
    s_cmp_lt_u32 s{sWave}, 4
    s_cbranch_scc1 L_w03
    s_cmp_ge_u32 s2, 128
    s_cbranch_scc1 L_Ydma""")
    a(f"""s_lshl_b32 s{sQ}, s{sJ}, 2
    s_add_u32 s{sQ}, s{sQ}, s{sT2}
    s_lshl_b32 s{sQ}, s{sQ}, 10
    s_add_u32 s{sQ}, s{sQ}, s{sH}
    s_lshl_b32 s{sQ}, s{sQ}, 8
    s_lshl_b32 m0, s{sT2}, 13
    v_xor_b32 v19, v{vJ}, v{vG}
    v_lshlrev_b32 v19, 4, v19
    v_lshl_add_u32 v20, v{vG}, 13, v19
    v_xor_b32 v21, 64, v20
    v_xor_b32 v22, 0x80, v20
    v_xor_b32 v23, 0xc0, v20
    v_add_u32 v21, {32768-1024}, v21
    v_add_u32 v22, {2*(32768-1024)}, v22
    v_add_u32 v23, {3*(32768-1024)}, v23
    s_mov_b64 s[{rC}:{rC+1}], s[42:43]
    s_mov_b32 s{rC+2}, {SZ['wuk']}""")
    if p.diag == 2: a(f"s_memrealtime s[{sQ+6}:{sQ+7}]")
    def wuk(n):
        if n == 4: a(f"s_addk_i32 m0, 4096\ns_add_u32 s{sQ}, s{sQ}, {4*32768}")
        a(f"buffer_load_dwordx4 v{20+n%4}, {R(rC)}, s{sQ} offen offset:{1024*(n%4)} {nt} lds")
    if p.xg >= 0:
        epoch_wait()
        a(f"""s_lshl_b32 s{sT3}, s2, 7
        s_add_u32 s{sT3}, s{sT3}, {HK}
        v_mov_b32 v14, s{sT[0]}
        v_lshlrev_b32 v15, 2, v{vL}""")
    a("s_barrier")
    for n in range(p.xpre+1):
        if n == p.xg:
            a(f"""s_cmp_eq_u32 s{sWave}, 4
            s_cselect_b32 exec_lo, 0xffff, 0
            s_mov_b32 exec_hi, 0
            buffer_store_dword v14, v15, {R(rWS)}, s{sT3} offen sc1
            s_mov_b64 exec, -1""")
        if n < p.xpre: wuk(n)
    if p.diag == 2: a(f"s_memrealtime s[{sQ+8}:{sQ+9}]")
    a("s_branch L_X_w47")
    a.label("L_Ydma")
    sCK = sQ + 11
    if p.kint:
        a(f"""s_bfe_u32 s{sCK}, s2, 0x10006
        s_lshl_b32 s{sCK}, s{sCK}, 4
        s_add_u32 s{sCK}, s{sCK}, s{sT2}
        s_lshl_b32 s{sCK}, s{sCK}, 8
        s_and_b32 vcc_lo, s2, 63
        s_add_u32 s{sCK}, s{sCK}, vcc_lo
        s_lshl_b32 s{sCK}, s{sCK}, 10
        s_lshl_b32 m0, s{sT2}, 12""")
    else:
        a(f"""s_sub_u32 s{sCK}, s2, 128
        s_lshl_b32 s{sCK}, s{sCK}, 16
        s_lshl_b32 m0, s{sT2}, 12
        s_add_u32 s{sCK}, s{sCK}, m0""")
    a(f"""
    s_and_b32 vcc_lo, s{sT2}, 1
    s_lshl_b32 vcc_lo, vcc_lo, 7
    s_lshr_b32 vcc_hi, s{sT2}, 1
    s_lshl_b32 vcc_hi, vcc_hi, 4
    s_or_b32 vcc_lo, vcc_lo, vcc_hi
    v_xor_b32 v216, vcc_lo, v{vL16}
    v_xor_b32 v217, 32, v216
    v_xor_b32 v218, 64, v216
    v_xor_b32 v219, 0x60, v216""")
    if p.kint:
        for n in range(1, 4): a(f"v_add_u32 v{216+n}, {n*(65536-1024)}, v{216+n}")
    a(f"""s_mov_b64 s[{rC}:{rC+1}], s[38:39]
    s_mov_b32 s{rC+2}, {SZ['ckv']}
    s_barrier""")
    def ckv(i):
        if i % 4 == 0 and i: a(f"s_add_u32 s{sCK}, s{sCK}, {16*65536 if p.kint else 16384}\ns_add_u32 m0, m0, 16384")
        a(f"buffer_load_dwordx4 v{216+(i&3)}, {R(rC)}, s{sCK} offen offset:{1024*(i%4)} {nt} lds")
    for i in range(p.ypre): ckv(i)
    zstamps()
    epoch_wait()
    a(f"""s_sub_u32 s{sT3}, s2, 128
    s_lshl_b32 s{sT3}, s{sT3}, 7
    s_add_u32 s{sT3}, s{sT3}, {HG}
    v_mov_b32 v14, s{sT[0]}
    v_lshlrev_b32 v15, 2, v{vL}""")
    if p.xg >= 0:
        a(f"s_cmp_lg_u32 s{sWave}, 4\ns_cbranch_scc1 L_nokg")
        for k in range(p.xgn):
            a(f"s_add_u32 s{sQ+k}, s2, {41*k}\ns_and_b32 s{sQ+k}, s{sQ+k}, 127\ns_lshl_b32 s{sQ+k}, s{sQ+k}, 7\ns_add_u32 s{sQ+k}, s{sQ+k}, {HK}")
        spoll_all([sQ+k for k in range(p.xgn)], sQ+4)
        a.label("L_nokg")
    if p.wofirst:
        srd(rB, pWO, SZ['wo'])
        a(f"""s_lshl_b32 s{sQ}, s{sH}, 2
        s_add_u32 s{sQ}, s{sQ}, s{sJ}
        s_sub_u32 s{sQ}, s{sQ}, 4
        s_lshl_b32 s{sQ}, s{sQ}, 2
        s_add_u32 s{sQ}, s{sQ}, s{sT2}
        s_mul_i32 s{sQ}, s{sQ}, 9216
        s_mov_b32 s{sQ+1}, m0
        s_mul_i32 vcc_lo, s{sT2}, 9216
        s_add_u32 m0, vcc_lo, {L_WO}""")
    a("s_barrier")
    stamp(10)
    if p.wofirst:
        for n in range(9):
            if n in (4, 8): a(f"s_addk_i32 m0, 4096\ns_add_u32 s{sQ}, s{sQ}, 4096")
            a(f"buffer_load_dwordx4 v{vL16}, {R(rB)}, s{sQ} offen offset:{1024*(n%4)} {nt} lds")
        a(f"s_mov_b32 m0, s{sQ+1}")
    for i in range(p.ypre, 17):
        if i == p.gate:
            a(f"""s_cmp_eq_u32 s{sWave}, 4
            s_cselect_b32 exec_lo, -1, 0
            s_mov_b32 exec_hi, 0
            buffer_store_dword v14, v15, {R(rWS)}, s{sT3} offen sc1
            s_mov_b64 exec, -1""")
        if i < 16: ckv(i)
    stamp(1)
    masks()
    a("s_branch L_Y_main")
    a.label("L_w03")
    a(f"""s_cmp_eq_u32 s{sWave}, 0
    s_cbranch_scc1 L_p1c
    s_barrier
    s_branch L_w13""")
    a.label("L_p1c")
    zstamps()
    masks()
    stamp(1)
    if p.diag == 2: a(f"s_mov_b32 s{sStamp+6}, s{sQ+6}\ns_mov_b32 s{sStamp+8}, s{sQ+8}")
    a(f"""s_add_u32 s{sT0}, s{sT0}, {QP}
    s_mov_b32 s{sT2}, 0x01000100
    s_mov_b32 s{sT3}, 0x03020302
    v_add_u32 v190, {L_WQ}, v{vL16}
    s_waitcnt vmcnt(20)""")
    if p.b0pos == 1: a("s_barrier")
    if p.diag == 2: a(f"s_memrealtime s[{sStamp+10}:{sStamp+11}]")
    for k in range(4):
        a(f"v_perm_b32 v{vXP+2*k}, v{186+k}, v{186+k}, s{sT2}\nv_perm_b32 v{vXP+2*k+1}, v{186+k}, v{186+k}, s{sT3}")
    for n in range(20): buildA(vAP+4*n, vXP+(n % 4)+(4 if n >= 16 else 0), (n//4) % 4)
    epoch_wait()
    if p.diag == 2: a(f"s_memrealtime s[{sStamp+12}:{sStamp+13}]")
    G = 4
    for t0 in range(0, 20, G):
        a(f"s_waitcnt vmcnt({20-t0-G})")
        if p.b0pos == 2 + t0//G: a("s_barrier")
        if p.diag == 2 and t0 == 0: a(f"s_memrealtime s[{sStamp+14}:{sStamp+15}]")
        if p.diag == 2 and t0 == 16: a(f"s_memrealtime s[{sStamp+16}:{sStamp+17}]")
        for t in range(t0, t0+G): a(f"ds_read_b128 {V(vWP+4*t)}, v190 offset:{1024*t}")
        if t0:
            a(f"s_waitcnt lgkmcnt({G})")
            for t in range(t0-G, t0): mfma(vDP, vAP+4*t, vWP+4*t, '0' if t == 0 else None)
    for t in range(20-G, 20):
        a(f"s_waitcnt lgkmcnt({19-t})")
        mfma(vDP, vAP+4*t, vWP+4*t)
    tag4(vDP)
    if p.fast: a(f"buffer_store_dwordx4 {V(vDP)}, v{vL16}, {R(rWS)}, s{sT1} offen")
    a(f"buffer_store_dwordx4 {V(vDP)}, v{vL16}, {R(rWS)}, s{sT0} offen sc1")
    stamp(2)
    a(f"""s_barrier
    s_cmp_ge_u32 s2, 128
    s_cbranch_scc1 L_Y_main
    s_branch L_X_main""")

    a.label("L_w13")
    zstamps()
    masks()
    a(f"""s_movk_i32 s{rA+2}, {SZ['x']}
    s_mov_b32 s{rA+3}, s{rWS+3}""")
    if p.prefetch:
        a(f"""s_cmp_lg_u32 s{sWave}, 2
        s_cbranch_scc1 L_nopf
        s_getpc_b64 s[{sT0}:{sT1}]
L_pc:
        s_sub_u32 s{sT0}, s{sT0}, L_pc-{KNAME}
        s_subb_u32 s{sT1}, s{sT1}, 0
        s_lshr_b32 s{sT2}, s2, 3
        s_lshl_b32 s{sT2}, s{sT2}, 9
        v_add_u32 v9, s{sT2}, v{vL16}
        v_cmp_gt_u32 vcc, L_exit-{KNAME}, v9
        s_and_b32 exec_lo, vcc_lo, 0x01010101
        s_mov_b32 exec_hi, 0
        s_cbranch_execz L_pfdone
        global_load_dword v250, v9, s[{sT0}:{sT1}]
L_pfdone:
        s_mov_b64 exec, -1
L_nopf:""")
    epoch_wait()
    if p.warm:
        per = 72 // p.drep
        a(f"""s_cmp_lg_u32 s{sWave}, 2
        s_cbranch_scc1 L_nowarm
        s_not_b32 s{sT0}, s{sT[0]}
        v_mov_b32 v24, s{sT0}
        v_mov_b32 v25, s{sT0}
        v_mov_b32 v26, s{sT0}
        v_mov_b32 v27, s{sT0}
        s_cmp_ge_u32 s2, 128
        s_cbranch_scc1 L_warmY
        s_mov_b32 exec_hi, 0
        s_lshl_b32 s{sT0}, s{sH}, 2
        s_add_u32 s{sT0}, s{sT0}, s{sJ}
        s_lshl_b32 s{sT1}, s{sT0}, 9
        s_add_u32 s{sT1}, s{sT1}, {ST}
        buffer_store_dwordx4 v[24:27], v{vL16}, {R(rWS)}, s{sT1} offen sc1
        s_lshl_b32 s{sT1}, s{sT0}, 8
        s_add_u32 s{sT1}, s{sT1}, {QL}
        v_lshlrev_b32 v28, 15, v{vG}
        v_lshl_add_u32 v28, v{vJ}, 4, v28
        buffer_store_dwordx4 v[24:27], v28, {R(rWS)}, s{sT1} offen sc1
        s_cmp_ge_u32 s2, {p.drep}
        s_cbranch_scc1 L_warmd
        v_lshrrev_b32 v28, 2, v{vL}
        v_mul_u32_u24 v28, {p.dstr}, v28
        v_and_b32 v29, 3, v{vL}
        v_lshl_add_u32 v28, v29, 4, v28
        s_mul_i32 s{sT1}, s2, {8*p.dstr}
        s_add_u32 s{sT1}, s{sT1}, {HD}
        buffer_store_dwordx4 v[24:27], v28, {R(rWS)}, s{sT1} offen sc1
        s_branch L_warmd
L_warmY:
        s_sub_u32 s{sT0}, s2, 128
        s_mul_i32 s{sT1}, s{sT0}, 4608
        s_add_u32 s{sT1}, s{sT1}, {FP}""")
        for k in range(4): a(f"buffer_store_dwordx4 v[24:27], v{vL16}, {R(rWS)}, s{sT1} offen offset:{1024*k} sc1")
        a(f"""s_add_u32 s{sT1}, s{sT1}, 4096
        s_mov_b32 exec_hi, 0
        buffer_store_dwordx4 v[24:27], v{vL16}, {R(rWS)}, s{sT1} offen sc1
        s_lshl_b32 s{sT1}, s{sT0}, 8
        s_add_u32 s{sT1}, s{sT1}, {HC}
        s_mov_b32 exec_lo, 0xffff
        buffer_store_dwordx4 v[24:27], v{vL16}, {R(rWS)}, s{sT1} offen sc1
L_warmd:
        s_mov_b64 exec, -1
L_nowarm:""")
    if p.tlb:
        a(f"""s_cmp_lg_u32 s{sWave}, 3
        s_cbranch_scc1 L_notlb
        s_mov_b64 exec, 15
        v_lshlrev_b32 v22, 21, v{vL}
        buffer_load_dword v251, v22, {R(rWS)}, 0 offen offset:256
        s_mov_b64 exec, 7
        s_cmp_ge_u32 s2, 128
        s_cselect_b64 s[{sT0}:{sT1}], s[{pW2}:{pW2+1}], s[{pW1}:{pW1+1}]
        s_cselect_b64 s[{sT2}:{sT3}], s[{pWO}:{pWO+1}], s[{pWUV}:{pWUV+1}]
        global_load_dword v252, v22, s[{sT0}:{sT1}]
        s_cselect_b32 exec_lo, 7, 3
        global_load_dword v253, v22, s[{sT2}:{sT3}]
        s_mov_b64 exec, -1
L_notlb:""")
    a(f"""s_cmp_lg_u32 s{sWave}, 1
    s_cbranch_scc1 L_notw1""")
    srd(rB, pGW, SZ['gw'])
    a(f"""v_and_b32 v9, 31, v{vL}
    v_mul_u32_u24 v9, 36, v9
    v_lshrrev_b32 v10, 5, v{vL}
    v_mul_u32_u24 v11, 1152, v10
    v_add_u32 v11, v11, v9
    buffer_load_dwordx4 v[20:23], v11, {R(rA)}, 0 offen
    buffer_load_dwordx4 v[24:27], v11, {R(rA)}, 0 offen offset:16
    buffer_load_dword v28, v11, {R(rA)}, 0 offen offset:32
    buffer_load_dwordx4 v[32:35], v9, {R(rB)}, 0 offen
    buffer_load_dwordx4 v[36:39], v9, {R(rB)}, 0 offen offset:16
    buffer_load_dword v40, v9, {R(rB)}, 0 offen offset:32
    v_mov_b32 v13, 0
    v_lshlrev_b32 v10, 2, v10
    v_add_u32 v10, {L_GATE}, v10
    s_barrier
    s_waitcnt vmcnt(0)""")
    for k in range(9): a(f"v_dot2_f32_bf16 v13, v{20+k}, v{32+k}, v13")
    for m in ("quad_perm:[1,0,3,2]", "quad_perm:[2,3,0,1]", "row_half_mirror", "row_mirror"):
        a(f"v_add_f32_dpp v13, v13, v13 {m} row_mask:0xf bank_mask:0xf")
    a(f"""v_mov_b32 v14, v13
    v_permlane16_swap_b32 v13, v14
    v_add_f32 v13, v13, v14
    v_mul_f32 v13, {f2u(-math.log2(math.e))}, v13
    v_exp_f32 v13, v13
    v_add_f32 v13, 1.0, v13
    v_rcp_f32 v13, v13
    ds_write_b32 v10, v13
    s_waitcnt lgkmcnt(0)
    s_cmp_ge_u32 s2, 128
    s_cbranch_scc1 L_Y_main
    s_branch L_X_main""")
    a.label("L_notw1")
    a(f"""s_barrier
    s_waitcnt vmcnt(0)
    s_cmp_ge_u32 s2, 128
    s_cbranch_scc1 L_Y_main
    s_branch L_X_main""")

    a.label("L_X_w47")
    zstamps()
    masks()
    a("v_mov_b32 v9, v19")
    if p.xg < 0: epoch_wait()
    if p.diag == 2: a(f"s_mov_b32 s{sStamp+10}, s{sQ+6}\ns_mov_b32 s{sStamp+12}, s{sQ+8}")
    a(f"""s_lshl_b32 s{sT0}, s{sH}, 13
    s_lshl_b32 s{sT1}, s{sT2}, 8
    s_add_u32 s{sT0}, s{sT0}, s{sT1}
    s_add_u32 s{sT0}, s{sT0}, {QPL if p.fast else QP}
    s_add_u32 s{sT1}, s{sT0}, 4096
    v_lshlrev_b32 v24, 10, v{vG}
    v_lshl_add_u32 v24, v{vJ}, 4, v24""")
    a(f"""s_lshr_b32 s{sT3}, s{sT2}, 1
    s_lshl_b32 s{sT3}, s{sT3}, 8
    s_bitcmp1_b32 s{sT2}, 0
    s_cselect_b32 vcc_lo, 8, 0
    s_add_u32 s{sT3}, s{sT3}, vcc_lo
    s_add_u32 s{sT3}, s{sT3}, {L_QV}
    v_lshlrev_b32 v25, 4, v{vJ}
    v_lshl_add_u32 v25, v{vG}, 1, v25
    v_add_u32 v25, s{sT3}, v25""")
    a(f"""s_lshl_b32 s{sT3}, s{sT2}, 13
    v_lshl_add_u32 v26, v{vJ}, 8, v9
    v_add_u32 v26, s{sT3}, v26
    v_xor_b32 v27, 64, v26
    v_xor_b32 v28, 0x80, v26
    v_xor_b32 v29, 0xc0, v26""")
    a(f"""v_lshrrev_b32 v30, 3, v{vJ}
    v_lshlrev_b32 v30, 8, v30
    v_lshl_add_u32 v30, v{vG}, 4, v30
    v_add_u32 v30, {L_QV}, v30""")
    a(f"""v_and_b32 v31, 31, v{vL}
    s_lshl_b32 s{sT3}, s{sT2}, 5
    v_add_u32 v31, s{sT3}, v31
    v_bfe_u32 v32, v31, 3, 3
    v_mul_u32_u24 v32, 37, v32
    v_add_u32 v32, s{sT[0]}, v32
    v_and_b32 v33, 7, v31
    v_lshrrev_b32 v32, v33, v32
    v_and_b32 v32, 1, v32
    v_lshlrev_b32 v32, 16, v32
    v_xor_b32 v33, 0x10000, v32
    v_lshlrev_b32 v31, 1, v31
    v_lshrrev_b32 v34, 5, v{vL}
    v_lshl_add_u32 v31, v34, 15, v31
    s_lshl_b32 s{sT3}, s{sH}, 10
    s_lshl_b32 vcc_lo, s{sJ}, 8
    s_add_u32 s{sT3}, s{sT3}, vcc_lo
    s_add_u32 s{sT3}, s{sT3}, {QL}
    v_mov_b32 v35, 0xfffe0000
    s_barrier""")
    stamp(1)
    for n in range(p.xpre, 8): wuk(n)
    a(f"s_waitcnt vmcnt({p.pollA_wait})")
    stamp(2)
    L = poll_begin()
    a(f"""buffer_load_dwordx4 v[36:39], v24, {R(rWS)}, s{sT0} offen sc1
    buffer_load_dwordx4 v[40:43], v24, {R(rWS)}, s{sT1} offen sc1
    s_waitcnt vmcnt(1)""")
    chk4(44, 36, True)
    a("s_waitcnt vmcnt(0)")
    chk4(44, 40)
    poll_end(L, 44, '0xff', ((sT0, sT1), QPL-QP))
    stamp(3)
    for tl in range(2):
        for ks in range(4):
            a(f"ds_read_b128 {V(48+16*tl+4*ks)}, v{26+ks} offset:{4096*tl}")
    for k in range(4): a(f"v_add_f32 v{36+k}, v{36+k}, v{40+k}")
    treduce(36)
    a(f"""v_cvt_pk_bf16_f32 v36, v36, v36
    ds_write_b16 v25, v36
    s_waitcnt lgkmcnt(0)
    s_barrier""")
    for ks in range(4): a(f"ds_read_b128 {V(80+4*ks)}, v30 offset:{64*ks}")
    for ks in range(4):
        a(f"s_waitcnt lgkmcnt({3-ks})")
        mfma(96, 80+4*ks, 48+4*ks, '0' if ks == 0 else None)
        mfma(100, 80+4*ks, 64+4*ks, '0' if ks == 0 else None)
    a(f"""s_mov_b32 vcc_lo, 0xffff0000
    s_mov_b32 vcc_hi, 0xffff0000
    v_cndmask_b32 v96, v96, v100, vcc
    v_mul_f32 v96, {f2u(128**-0.5*math.log2(math.e))}, v96
    v_add_u32 v96, v96, v33
    v_and_or_b32 v96, v96, v35, v32
    buffer_store_short_d16_hi v96, v31, {R(rWS)}, s{sT3} offen sc1""")
    stamp(4)

    a.label("L_X_main")
    a(f"""v_bfe_u32 v9, v{vL}, 2, 2
    v_lshl_add_u32 v134, v{vG}, 3, v9
    v_lshlrev_b32 v134, 8, v134
    v_and_b32 v11, 1, v{vG}
    v_lshl_add_u32 v9, v11, 2, v9
    v_lshlrev_b32 v9, 1, v9
    v_bfe_u32 v11, v{vL}, 1, 1
    s_lshl_b32 s{sT0}, s{sWave}, 1
    v_add_u32 v11, s{sT0}, v11
    v_xor_b32 v9, v9, v11
    v_lshl_add_u32 v134, v9, 4, v134
    v_and_b32 v9, 1, v{vL}
    v_lshl_add_u32 v134, v9, 3, v134""")
    a(f"""v_bfe_u32 v9, v{vL}, 3, 1
    v_lshlrev_b32 v120, {10 if p.cstat else 15}, v9
    v_and_b32 v11, 3, v{vL}
    v_lshl_add_u32 v120, v11, {6 if p.cstat else 11}, v120
    v_lshl_add_u32 v120, v{vG}, {4 if p.cstat else 9}, v120
    s_and_b32 s{sT2}, s{sWave}, 3
    s_lshr_b32 s{sT3}, s{sWave}, 2
    s_lshl_b32 s{sT0}, s{sT2}, {8 if p.cstat else 13}
    s_lshl_b32 s{sT1}, s{sH}, {11 if p.cstat else 4}
    s_add_u32 s{sT0}, s{sT0}, s{sT1}
    s_add_u32 s{sT0}, s{sT0}, {ST}""")
    a(f"""v_lshlrev_b32 v121, 14, v9
    v_lshl_add_u32 v121, v{vG}, 8, v121
    v_and_b32 v11, 7, v{vL}
    v_lshl_add_u32 v121, v11, 4, v121
    s_lshl_b32 s{sT1}, s{sH}, 2
    s_add_u32 s{sT1}, s{sT1}, s{sJ}
    s_lshl_b32 s{sQ+1}, s{sH}, 12
    s_lshl_b32 s{sQ+3}, s{sJ}, 8
    s_add_u32 s{sQ+1}, s{sQ+1}, s{sQ+3}
    s_add_u32 s{sQ+3}, s{sQ+1}, {CXL}
    s_add_u32 s{sQ+1}, s{sQ+1}, {CX}
    s_lshl_b32 s{sT1}, s{sT1}, 15
    s_lshl_b32 s{sQ}, s{sT2}, 12
    s_add_u32 s{sT1}, s{sT1}, s{sQ}
    s_lshl_b32 s{sQ}, s{sT3}, {7 if not p.halfo else 11}
    s_add_u32 s{sT1}, s{sT1}, s{sQ}
    s_add_u32 s{sT1}, s{sT1}, {OP}""")
    a(f"v_and_b32 v122, 1, v{vG}\nv_mul_u32_u24 v122, 0xff, v122")
    lsbtags(124, "v122")
    a(f"""v_mul_u32_u24 v122, {4*272}, v9
    v_lshl_add_u32 v122, v11, 4, v122
    v_and_b32 v123, 1, v{vG}
    v_lshl_add_u32 v122, v123, 3, v122
    s_mul_i32 s{sQ}, s{sT2}, 272
    s_lshl_b32 s{sQ+2}, s{sT3}, 7
    s_add_u32 s{sQ}, s{sQ}, s{sQ+2}
    s_add_u32 s{sQ}, s{sQ}, {L_AIMG}
    v_add_u32 v122, s{sQ}, v122""")
    a(f"""v_lshlrev_b32 v128, 5, v9
    s_lshl_b32 s{sQ}, s{sT2}, 2
    s_add_u32 s{sQ}, s{sQ}, {L_VST}
    v_add_u32 v128, s{sQ}, v128
    v_lshlrev_b32 v129, 5, v123
    v_add_u32 v129, {L_VST}, v129""")
    a(f"""v_mul_u32_u24 v130, 272, v11
    v_lshl_add_u32 v130, v{vG}, 4, v130
    v_add_u32 v130, {L_AIMG}, v130""")
    a(f"""v_lshlrev_b32 v131, 5, v{vG}
    v_lshl_add_u32 v131, v11, 2, v131
    v_lshl_add_u32 v131, v9, 6, v131
    s_lshr_b32 s{sQ}, s{sWave}, 1
    s_lshl_b32 s{sQ}, s{sQ}, 10
    s_and_b32 s{sQ+2}, s{sWave}, 1
    s_lshl_b32 s{sQ+2}, s{sQ+2}, 7
    s_add_u32 s{sQ}, s{sQ}, s{sQ+2}
    v_add_u32 v131, s{sQ}, v131
    v_and_b32 v132, 3, v{vL}
    v_mul_u32_u24 v132, 37, v132
    v_add_u32 v132, s{sT[0]}, v132""")
    a("v_mov_b32 v133, 1")
    a(f"s_mov_b32 s{sQ+4}, s{sT0}\ns_mov_b32 s{sQ+5}, s{sT1}")
    srd(rA, pX, SZ['x'])
    xoff(12)
    a(f"""s_cmp_ge_u32 s{sWave}, 4
    s_cbranch_scc1 L_X_b2
    s_barrier""")
    if p.gate >= 0:
        a(f"""s_cmp_lg_u32 s{sWave}, 0
        s_cbranch_scc1 L_X_b2
        s_lshl_b32 s{sQ}, s2, 7
        s_add_u32 s{sQ}, s{sQ}, {HG}
        s_xor_b32 s{sQ+2}, s{sQ}, {43*128}""")
        if p.gand:
            for k in range(p.gand):
                a(f"s_add_u32 s{sQ+6+k}, s2, {43*k}\ns_and_b32 s{sQ+6+k}, s{sQ+6+k}, 127\ns_lshl_b32 s{sQ+6+k}, s{sQ+6+k}, 7\ns_add_u32 s{sQ+6+k}, s{sQ+6+k}, {HG}")
            spoll_all([sQ+6+k for k in range(p.gand)], sT0)
        else:
            spoll((sQ, sQ+2))
        stamp(3)
    a.label("L_X_b2")
    a("s_barrier")
    a(f"""s_cmp_ge_u32 s{sWave}, 5
    s_cbranch_scc1 L_X_wuv""")
    vXF, vAF, vWF, vDF = 13, 20, 60, 100
    srd(rB, pW1, 0 if p.nod1 & 4 else SZ['w1'])
    a(f"s_mul_i32 s{sT1}, s{sI}, 72")
    for v in range(3): a(f"buffer_load_ushort v{vXF+v}, v12, {R(rA)}, s{sT1} offen offset:{32*v}")
    a(f"""s_mul_i32 s{sT0}, s{sI}, {36*9216}
    s_mul_i32 s{sT1}, s{sXcd}, 1152
    s_add_u32 s{sT0}, s{sT0}, s{sT1}
    s_lshl_b32 s{sT1}, s{sWave}, 8
    s_add_u32 s{sT0}, s{sT0}, s{sT1}
    v_mul_u32_u24 v10, 9216, v{vG}
    s_lshl_b32 s{sT2}, s{sXcd}, 4
    s_add_u32 s{sT2}, s{sT2}, s{sI}
    s_mul_i32 s{sT2}, s{sT2}, 4608
    s_add_u32 s{sT2}, s{sT2}, {HP}
    s_cmp_eq_u32 s{sWave}, 4
    s_cbranch_scc1 L_X_f1half
    v_lshl_add_u32 v10, v{vJ}, 4, v10""")
    for t in range(9):
        a(f"buffer_load_dwordx4 {V(vWF+4*t)}, v10, {R(rB)}, s{sT0} offen {nt}")
        if t < 8: a(f"s_add_u32 s{sT0}, s{sT0}, {4*9216}")
    slot_voff(11, False)
    a("s_waitcnt vmcnt(9)")
    for v in range(3): a(f"v_lshl_or_b32 v{vXF+v}, v{vXF+v}, 16, v{vXF+v}")
    for t in range(9): buildA(vAF+4*t, vXF+t//4, t % 4)
    for t in range(9):
        a(f"s_waitcnt vmcnt({8-t})")
        mfma(vDF, vAF+4*t, vWF+4*t, '0' if t == 0 else None)
    slot_store(vDF, sT2, False, 11)
    stamp(5)
    a("s_branch L_X_v")
    a.label("L_X_f1half")
    a(f"""v_and_b32 v9, 7, v{vJ}
    v_lshl_add_u32 v10, v9, 4, v10
    v_lshrrev_b32 v9, 3, v{vJ}
    v_mul_u32_u24 v9, {4*9216}, v9
    v_add_u32 v10, v10, v9""")
    for n in range(5):
        if n == 4: a("s_mov_b32 exec_lo, 0x00ff00ff\ns_mov_b32 exec_hi, 0x00ff00ff")
        a(f"buffer_load_dwordx4 {V(vWF+4*n)}, v10, {R(rB)}, s{sT0} offen {nt}")
        if n < 4: a(f"s_add_u32 s{sT0}, s{sT0}, {8*9216}")
    a("s_mov_b64 exec, -1")
    slot_voff(11, True)
    a("s_waitcnt vmcnt(5)")
    for v in range(3): a(f"v_lshl_or_b32 v{vXF+v}, v{vXF+v}, 16, v{vXF+v}")
    for t in range(9): buildA(vAF+4*t, vXF+t//4, t % 4)
    for n in range(5):
        a(f"s_waitcnt vmcnt({4-n})")
        mfma(vDF, vAF+8*n, vWF+4*n, '0' if n == 0 else None)
        if n < 4: mfma(vDF+4, vAF+8*n+4, vWF+4*n, '0' if n == 0 else None)
    for r in range(4): a(f"v_add_f32_dpp v{vDF+r}, v{vDF+4+r}, v{vDF+r} row_ror:8 row_mask:0xf bank_mask:0xf")
    slot_store(vDF, sT2, True, 11)
    stamp(5)
    a("s_branch L_X_v")
    a.label("L_X_wuv")
    a(f"""s_cmp_lg_u32 s{sWave}, 5
    s_cbranch_scc1 L_X_w67
    s_bfe_u32 s{sT0}, s2, 0x10004
    s_lshl_b32 s{sT0}, s{sT0}, 7
    s_add_u32 s{sT0}, s{sT0}, {HC}""")
    for k in range(p.nsamp):
        a(f"s_add_u32 s{4+k}, s2, {37*k}\ns_and_b32 s{4+k}, s{4+k}, 127\ns_lshl_b32 s{4+k}, s{4+k}, 8\ns_add_u32 s{4+k}, s{4+k}, s{sT0}")
    spoll_all([4+k for k in range(p.nsamp)], 12)
    stamp(5)
    a("s_branch L_X_v")
    a.label("L_X_w67")
    srd(rB, pWUV, 0 if p.nod1 & 8 else SZ['wuv'])
    a(f"""s_sub_u32 s{sT2}, s{sWave}, 6
    s_lshl_b32 s{sT0}, s{sJ}, 20
    s_lshl_b32 s{sT1}, s{sT2}, 16
    s_add_u32 s{sT0}, s{sT0}, s{sT1}
    s_lshl_b32 s{sT1}, s{sH}, 8
    s_add_u32 s{sT0}, s{sT0}, s{sT1}
    s_lshl_b32 s{sT1}, s{sT2}, 14
    s_add_u32 m0, s{sT1}, {L_WUV}
    v_lshlrev_b32 v9, 1, v{vG}
    v_xor_b32 v9, v9, v{vJ}
    v_lshlrev_b32 v9, 4, v9
    v_lshl_add_u32 v20, v{vG}, 17, v9
    v_xor_b32 v21, 0x80, v20""")
    for n in range(16):
        off = (64*(n & 1) + (n >> 1))*8192
        a(f"s_add_u32 s{sT1}, s{sT0}, {off}")
        a(f"buffer_load_dwordx4 v{20+((n>>1)&1)}, {R(rB)}, s{sT1} offen {nt} lds")
        if n < 15: a("s_add_u32 m0, m0, 1024")
    a("s_waitcnt vmcnt(0)")
    stamp(5)
    a.label("L_X_v")
    a("s_barrier")
    vBV = 20
    stamp(7)
    vOD = 56
    def cloads():
        a(f"buffer_load_dwordx4 v[52:55], v120, {R(rWS)}, s{sQ+4} offen sc1")
        for u in range(4): a(f"buffer_load_dwordx4 {V(vOD+4*u)}, v121, {R(rWS)}, s{sQ+5} offen offset:{1024*(u if not p.halfo else u&1)} sc1")
    cloads()
    for ks in range(4):
        for hf in range(2):
            a(f"ds_read_b64_tr_b16 {V(vBV+4*ks+2*hf, 2)}, v134 offset:{L_WUV + (32*ks+4*hf)*256}")
    if p.diag == 3:
        a(f"s_waitcnt vmcnt(4)\ns_memrealtime s[{sStamp+2}:{sStamp+3}]\ns_waitcnt vmcnt(0)\ns_memrealtime s[{sStamp+4}:{sStamp+5}]")
    Lc = a.newlabel('cchk')
    a(f"s_mov_b32 s{sCnt}, 0\ns_branch {Lc}")
    L = a.newlabel('poll'); a.label(L)
    cloads()
    a.label(Lc)
    a(f"""s_mov_b64 exec, -1
    s_waitcnt vmcnt(4)
    v_max_f32_dpp v50, v52, v52 quad_perm:[1,0,3,2] row_mask:0xf bank_mask:0xf
    v_cmp_ne_u32 vcc, s{sT[0]}, v54
    v_max_f32_dpp v50, v50, v50 quad_perm:[2,3,0,1] row_mask:0xf bank_mask:0xf
    v_cndmask_b32 v49, 0, v133, vcc""")
    allred_groups("v_max_f32", 50, 51)
    a(f"""v_sub_f32 v51, v52, v50
    v_exp_f32 v51, v51
    v_cvt_pk_bf16_f32 v51, v51, v51""")
    for u in range(4):
        buildA(72+4*u, 51, u)
    for u in range(4):
        a(f"s_waitcnt vmcnt({3-u})")
        mfma(88, 72+4*u, vOD+4*u, '0' if u == 0 else None)
        chkv(49, vOD+4*u, 124)
    a(f"""v_and_b32 v51, 0xffff0000, v51
    v_mul_f32 v51, v51, v53
    v_add_f32_dpp v51, v51, v51 quad_perm:[1,0,3,2] row_mask:0xf bank_mask:0xf
    v_add_f32_dpp v51, v51, v51 quad_perm:[2,3,0,1] row_mask:0xf bank_mask:0xf""")
    allred_groups("v_add_f32", 51, 55)
    poll_end_masked(L, 49, '0x10001')
    if p.stamp: a(f"s_mov_b32 s{sStamp+24}, s{sCnt}")
    stamp(8)
    a(f"""ds_write2_b32 v128, v50, v51 offset0:0 offset1:4
    v_cvt_pk_bf16_f32 v88, v88, v89
    v_cvt_pk_bf16_f32 v89, v90, v91
    s_mov_b32 exec_lo, 0x00ff00ff
    s_mov_b32 exec_hi, 0xff00ff00
    ds_write_b64 v122, v[88:89]
    s_mov_b64 exec, -1
    s_waitcnt lgkmcnt(0)
    s_barrier""")
    for ks in range(4): a(f"ds_read_b128 {V(56+4*ks)}, v130 offset:{64*ks}")
    a(f"ds_read_b128 v[72:75], v129\nds_read_b128 v[76:79], v129 offset:16")
    for ks in range(4):
        a(f"s_waitcnt lgkmcnt({5-ks})")
        mfma(88, 56+4*ks, vBV+4*ks, '0' if ks == 0 else None)
    a(f"""s_waitcnt lgkmcnt(0)
    v_max3_f32 v50, v72, v73, v74
    v_max_f32 v50, v50, v75""")
    for r in range(4): a(f"v_sub_f32 v{72+r}, v{72+r}, v50")
    for r in range(4): a(f"v_exp_f32 v{72+r}, v{72+r}")
    a(f"""v_mul_f32 v51, v72, v76
    v_fmac_f32 v51, v73, v77
    v_fmac_f32 v51, v74, v78
    v_fmac_f32 v51, v75, v79
    v_rcp_f32 v51, v51
    v_mul_f32 v50, v72, v88
    v_fmac_f32 v50, v73, v89
    v_fmac_f32 v50, v74, v90
    v_fmac_f32 v50, v75, v91
    v_mul_f32 v50, v50, v51
    v_mov_b32_sdwa v50, v132 dst_sel:BYTE_0 dst_unused:UNUSED_PRESERVE src0_sel:BYTE_0
    s_mov_b32 exec_hi, 0""")
    if p.fast: a(f"buffer_store_dword v50, v131, {R(rWS)}, s{sQ+3} offen")
    a(f"""buffer_store_dword v50, v131, {R(rWS)}, s{sQ+1} offen sc1
    s_mov_b64 exec, -1""")
    stamp(9)
    a(f"""s_cmp_ge_u32 s2, 72
    s_cbranch_scc1 L_X_end
    s_cmp_ge_u32 s2, 36
    s_cselect_b32 s{sT2}, 1, 0
    s_mul_i32 s{sT3}, s{sT2}, 36
    s_sub_u32 s{sT3}, s2, s{sT3}
    s_mul_i32 s{sT0}, s{sWave}, {16*4608}
    s_mul_i32 s{sT1}, s{sT2}, 2304
    s_add_u32 s{sT0}, s{sT0}, s{sT1}
    s_lshl_b32 s{sT1}, s{sT3}, 6
    s_add_u32 s{sT0}, s{sT0}, s{sT1}
    s_add_u32 s{sT0}, s{sT0}, {FP}
    v_lshrrev_b32 v9, 2, v{vL}
    v_mul_u32_u24 v10, 4608, v9
    v_and_b32 v11, 3, v{vL}
    v_lshl_add_u32 v10, v11, 4, v10
    v_lshl_add_u32 v13, v{vG}, 2, v11
    v_lshlrev_b32 v13, 5, v13
    s_lshl_b32 s{sT1}, s{sWave}, 2
    s_add_u32 s{sT1}, s{sT1}, {L_RED}
    v_add_u32 v13, s{sT1}, v13""")
    srd(rB, pB2, SZ['b2']); srd(rC, pOUT, SZ['out'])
    a(f"""s_lshl_b32 s{sT1}, s{sT3}, 2
    v_add_u32 v14, s{sT1}, v11""")
    decode_v(15, 14, 16)
    a(f"""v_bfe_u32 v14, v{vL}, 2, 2
    v_add_u32 v15, v15, v14
    v_lshlrev_b32 v15, 1, v15
    buffer_load_ushort v16, v15, {R(rB)}, 0 offen
    s_lshl_b32 s{sT1}, s{sT2}, 2
    s_add_u32 s{sT1}, s{sT1}, {L_GATE}
    v_mov_b32 v17, s{sT1}
    ds_read_b32 v17, v17
    v_lshlrev_b32 v18, 5, v{vJ}
    v_add_u32 v18, {L_RED}, v18
    s_mul_i32 s{sT2}, s{sT2}, 1152
    s_waitcnt vmcnt(0) lgkmcnt(0)
    v_lshlrev_b32 v16, 16, v16
    v_sub_f32 v17, 1.0, v17
    v_mul_f32 v16, v16, v17""")
    if p.dflag >= 3:
        for k in range(p.dsamp):
            a(f"s_add_u32 s{4+k}, s2, {(16//p.dsamp)*k}\ns_and_b32 s{4+k}, s{4+k}, 15\ns_lshl_b32 s{sQ}, s{sWave}, 4\ns_add_u32 s{4+k}, s{4+k}, s{sQ}\ns_lshl_b32 s{4+k}, s{4+k}, 8\ns_add_u32 s{4+k}, s{4+k}, {HC+64}")
        spoll_all([4+k for k in range(p.dsamp)], 12)
        stamp(6)
    elif p.dflag:
        per = 72 // p.drep
        Lf = a.newlabel('df'); Df = a.newlabel('dfd')
        a(f"""s_mul_hi_u32 s{sQ}, s2, {(1 << 32) // per + 1}
        s_lshl_b32 s{sQ}, s{sQ}, 3
        s_add_u32 s{sQ}, s{sQ}, s{sWave}
        s_mul_i32 s{sQ}, s{sQ}, {p.dstr}
        s_add_u32 s{sQ}, s{sQ}, {HD}
        s_mov_b32 s{sQ+2}, s{sT[0]}
        s_mov_b32 s{sQ+3}, s{sT[0]}
        s_mov_b32 s{sCnt}, 0
{Lf}:
        s_load_dwordx16 s[4:19], s[{rWS}:{rWS+1}], s{sQ} glc
        s_add_u32 s{sCnt}, s{sCnt}, 1
        s_cmp_ge_u32 s{sCnt}, {p.maxspin}
        s_cbranch_scc1 {Df}
        s_waitcnt lgkmcnt(0)""")
        for k in range(8): a(f"s_cmp_lg_u64 s[{4+2*k}:{5+2*k}], s[{sQ+2}:{sQ+3}]\ns_cbranch_scc1 {Lf}")
        a.label(Df)
        stamp(6)
    L = poll_begin()
    a(f"""buffer_load_dwordx4 v[20:23], v10, {R(rWS)}, s{sT0} offen sc1
    s_mov_b64 exec, -1
    s_waitcnt vmcnt(0)""")
    chk4(24, 20, True)
    poll_end_masked(L, 24, '0xff')
    stamp(10)
    treduce(20)
    a(f"""v_add_f32_dpp v20, v20, v20 row_ror:4 row_mask:0xf bank_mask:0xf
    v_add_f32_dpp v20, v20, v20 row_ror:8 row_mask:0xf bank_mask:0xf
    ds_write_b32 v13, v20
    s_waitcnt lgkmcnt(0)
    s_barrier
    s_cmp_lg_u32 s{sWave}, 0
    s_cbranch_scc1 L_X_end
    ds_read_b128 v[20:23], v18
    ds_read_b128 v[24:27], v18 offset:16
    s_waitcnt lgkmcnt(0)
    v_add_f32 v20, v20, v24
    v_add_f32 v21, v21, v25
    v_add_f32 v22, v22, v26
    v_add_f32 v23, v23, v27
    v_add_f32 v20, v20, v21
    v_add_f32 v22, v22, v23
    v_add_f32 v20, v20, v16
    v_add_f32 v20, v20, v22
    v_cvt_pk_bf16_f32 v20, v20, v20
    s_mov_b64 exec, 0xffff
    buffer_store_short v20, v15, {R(rC)}, s{sT2} offen
    s_cmp_lg_u32 s2, 0
    s_cbranch_scc1 L_X_end
    s_mov_b64 exec, 1
    v_mov_b32 v21, s{sT[0]}
    v_mov_b32 v22, 0
    buffer_store_dword v21, v22, {R(rWS)}, 0 offen offset:{EPOCH} sc1""")
    a.label("L_X_end")
    stamp(11)
    finish('X')

    a.label("L_Y_main")
    vQA, vPA, vSF, vPF, vACC = 20, 36, 48, 112, 176
    vTG, vTO = 208, 212
    vQG = 216
    a(f"""s_and_b32 s{sT2}, s{sWave}, 3
    s_lshr_b32 s{sT3}, s{sWave}, 2
    v_and_b32 v9, 7, v{vJ}
    v_lshlrev_b32 v9, 1, v9
    v_lshrrev_b32 v10, 3, v{vJ}
    v_or_b32 v9, v9, v10
    v_lshlrev_b32 v9, 4, v9
    v_lshl_add_u32 v9, v{vG}, 8, v9
    v_lshl_add_u32 v9, v{vJ}, 10, v9
    s_lshl_b32 s{sT0}, s{sT2}, 14
    v_add_u32 v13, s{sT0}, v9
    s_lshl_b32 s{sT0}, s{sT3}, 14
    s_add_u32 s{sT0}, s{sT0}, {L_QIMG}
    v_add_u32 v{vQA}, s{sT0}, v9""")
    for ks in range(1, 16): a(f"v_xor_b32 v{vQA+ks}, {16*ks}, v{vQA}")
    a(f"""v_lshrrev_b32 v9, 2, v{vL}
    v_and_b32 v10, 7, v9
    v_lshlrev_b32 v10, 1, v10
    v_lshrrev_b32 v11, 3, v9
    v_or_b32 v10, v10, v11
    v_bfe_u32 v11, v{vL}, 1, 1
    v_xor_b32 v10, v10, v11
    v_lshlrev_b32 v10, 4, v10
    v_lshl_add_u32 v10, v9, 10, v10
    v_and_b32 v11, 1, v{vL}
    v_lshl_add_u32 v10, v11, 3, v10
    s_lshl_b32 s{sT0}, s{sT2}, 8
    v_add_u32 v{vPA}, s{sT0}, v10""")
    for ct in range(1, 8): a(f"v_xor_b32 v{vPA+ct}, {32*ct}, v{vPA}")
    lsbtags(vTG)
    a(f"s_bitcmp1_b32 s2, 0\ns_cselect_b32 s{sT0}, 0xff, 0")
    lsbtags(vTO, f"s{sT0}")
    a(f"s_mul_i32 s{sT0}, s{sI}, 9\nv_add_u32 v9, s{sT0}, v{vJ}")
    decode_v(14, 9, 10)
    a(f"""s_mul_i32 s{sT0}, s{sXcd}, 576
    v_add_u32 v14, s{sT0}, v14
    v_mul_u32_u24 v15, 1152, v14""")
    for t in range(9): a(f"v_readlane_b32 s{sQ+t}, v15, {t}")
    a(f"""s_bfe_u32 s{sT0}, s2, 0x10006
    s_lshl_b32 s{sT0}, s{sT0}, 15
    s_lshl_b32 s{sT1}, s{sWave}, 12
    s_add_u32 s{sT0}, s{sT0}, s{sT1}
    s_add_u32 s{sT0}, s{sT0}, {QL}
    s_add_u32 s{sT1}, s{sT1}, {L_QIMG}
    s_and_b32 vcc_lo, s{sWave}, 1
    s_lshl_b32 vcc_lo, vcc_lo, 7
    s_bfe_u32 vcc_hi, s{sWave}, 0x10001
    s_lshl_b32 vcc_hi, vcc_hi, 4
    s_or_b32 vcc_lo, vcc_lo, vcc_hi
    v_xor_b32 v16, vcc_lo, v{vL16}
    v_add_u32 v16, s{sT1}, v16
    v_xor_b32 v17, 32, v16
    v_xor_b32 v18, 64, v16
    v_xor_b32 v19, 0x60, v16
    """)
    a(f"""s_lshl_b32 s{sQ+9}, s{sT3}, 12
    s_add_u32 s{sQ+9}, s{sQ+9}, {L_SX}
    v_add_u32 v10, s{sQ+9}, v{vL16}
    s_lshl_b32 s{sQ+9}, s{sT2}, 10
    v_add_u32 v11, s{sQ+9}, v10
    v_lshlrev_b32 v12, 19, v{vG}
    v_lshl_add_u32 v12, v{vJ}, 4, v12
    s_sub_u32 s{sQ+9}, s2, 128
    s_lshl_b32 s{sT1}, s{sQ+9}, {4 if p.cstat else 9}
    v_lshlrev_b32 v15, {11 if p.cstat else 4}, v{vL}
    s_lshl_b32 vcc_lo, s{sT3}, {15 if p.cstat else 8}
    s_add_u32 s{sT1}, s{sT1}, vcc_lo
    s_add_u32 s{sT1}, s{sT1}, {ST}
    s_lshl_b32 s{sQ+10}, s{sQ+9}, 8
    s_lshl_b32 vcc_lo, s{sT3}, 21
    s_add_u32 s{sQ+10}, s{sQ+10}, vcc_lo
    s_lshl_b32 vcc_lo, s{sT2}, 15
    s_add_u32 s{sQ+10}, s{sQ+10}, vcc_lo
    s_add_u32 s{sQ+10}, s{sQ+10}, {OP}
    s_lshl_b32 s{sQ+9}, s{sQ+9}, 8
    s_lshl_b32 vcc_lo, s{sT3}, 7
    s_add_u32 s{sQ+9}, s{sQ+9}, vcc_lo
    s_add_u32 s{sQ+9}, s{sQ+9}, {HC}""")
    srd(rC, pWO, 0 if p.nod1 & 2 else SZ['wo'])
    a(f"""s_lshl_b32 s{sCK}, s{sH}, 2
    s_add_u32 s{sCK}, s{sCK}, s{sJ}
    s_sub_u32 s{sCK}, s{sCK}, 4
    s_lshl_b32 s{sCK}, s{sCK}, 2
    s_add_u32 s{sCK}, s{sCK}, s{sT2}
    s_mul_i32 s{sCK}, s{sCK}, 9216
    s_mul_i32 vcc_lo, s{sT2}, 9216
    s_add_u32 m0, vcc_lo, {L_WO}""")
    for k in range(4): a(f"v_mov_b32 v{248+k}, 0x3f803f80\nv_mov_b32 v{252+k}, s{sT[0]}")
    def qloads():
        for n in range(4): a(f"buffer_load_dwordx4 {V(vQG+4*n)}, v{vL16}, {R(rWS)}, s{sT0} offen offset:{1024*n} sc1")
    for T in range(4):
        if T == p.qat: qloads()
        a(f"s_waitcnt vmcnt({12-4*T + (4 if T >= p.qat else 0)})\ns_barrier")
        if T == 0: stamp(2)
        if T == 3:
            stamp(3)
            if p.qat == 4: qloads()
        Ls = a.newlabel('nos')
        a(f"s_cmp_lg_u32 s{sT2}, {T}\ns_cbranch_scc1 {Ls}")
        for ks in range(16):
            a(f"v_xor_b32 v9, {16*ks}, v13\nds_read_b128 {V(vSF+4*ks)}, v9")
        a.label(Ls)
        for ct in range(8):
            a(f"ds_read_b64_tr_b16 {V(vPF+8*ct+2*T, 2)}, v{vPA+ct} offset:{16384*T}")
    Lq = a.newlabel('qchk')
    a(f"s_mov_b32 s{sCnt}, 0\ns_branch {Lq}")
    L = a.newlabel('poll'); a.label(L)
    qloads()
    a("s_mov_b64 exec, -1")
    a.label(Lq)
    for n in range(4):
        a(f"s_waitcnt vmcnt({3-n})")
        chkv(9, vQG+4*n, vTG, n == 0)
    poll_end_masked(L, 9, '0x10001', p.bsleep)
    if p.stamp: a(f"s_mov_b32 s{sStamp+24}, s{sCnt}")
    stamp(4)
    for n in range(4): a(f"ds_write_b128 v{16+n}, {V(vQG+4*n)} offset:{1024*n}")
    a(f"s_mov_b32 s{sT0}, s{sQ+10}\nv_mov_b32 v9, 0x10001")
    a("s_waitcnt lgkmcnt(0)\ns_barrier")
    stamp(5)
    def hint(pos):
        if p.hintpos == pos:
            a(f"""s_cmp_eq_u32 s{sT2}, 3
            s_cselect_b32 exec_lo, 0xf, 0
            s_mov_b32 exec_hi, 0
            buffer_store_dwordx4 v[252:255], v{vL16}, {R(rWS)}, s{sQ+9} offen sc1
            s_mov_b64 exec, -1""")
    NQ = 8
    for ks in range(p.qpre): a(f"ds_read_b128 {V(vQG+4*ks)}, v{vQA+ks}")
    a(f"""s_cmp_eq_u32 s{sT3}, 0
    s_cbranch_scc1 L_Y_s""")
    def wodma(n):
        if n in (4, 8): a(f"s_addk_i32 m0, 4096\ns_add_u32 s{sCK}, s{sCK}, 4096")
        a(f"buffer_load_dwordx4 v{vL16}, {R(rC)}, s{sCK} offen offset:{1024*(n%4)} {nt} lds")
    def worest():
        if p.wopre and not p.wofirst:
            for n in range(p.won, 9): wodma(n)
    if p.wopre and not p.wofirst:
        for n in range(p.won): wodma(n)
    a("s_barrier")
    if p.prio: a(f"s_setprio {p.prio}")
    a.label("L_Y_s")
    for ks in range(p.qpre, NQ): a(f"ds_read_b128 {V(vQG+4*ks)}, v{vQA+ks}")
    for ks in range(16):
        rem = min(15, ks+NQ-1) - ks
        a(f"s_waitcnt lgkmcnt({rem})")
        mfma(vACC, vSF+4*ks, vQG+4*(ks % NQ), '0' if ks == 0 else None)
        if ks + NQ < 16: a(f"ds_read_b128 {V(vQG+4*(ks%NQ))}, v{vQA+ks+NQ}")
    a(f"""ds_write_b128 v11, {V(vACC)}
    s_waitcnt lgkmcnt(0)
    s_barrier""")
    stamp(6)
    vS = 48
    for T in range(4): a(f"ds_read_b128 {V(vS+4*T)}, v10 offset:{1024*T}")
    hint(0)
    a(f"""s_waitcnt lgkmcnt(2)
    v_max3_f32 v64, v{vS}, v{vS+1}, v{vS+2}
    v_max3_f32 v65, v{vS+3}, v{vS+4}, v{vS+5}
    v_max3_f32 v64, v64, v{vS+6}, v{vS+7}
    s_waitcnt lgkmcnt(0)
    v_max3_f32 v65, v65, v{vS+8}, v{vS+9}
    v_max3_f32 v64, v64, v{vS+10}, v{vS+11}
    v_max3_f32 v65, v65, v{vS+12}, v{vS+13}
    v_max3_f32 v64, v64, v{vS+14}, v{vS+15}
    v_max_f32 v64, v64, v65""")
    allred_groups("v_max_f32", 64, 65)
    for k in range(8): a(f"v_pk_add_f32 v[{vS+2*k}:{vS+2*k+1}], v[{vS+2*k}:{vS+2*k+1}], v[64:65] op_sel_hi:[1,0] neg_lo:[0,1] neg_hi:[0,1]")
    for k in range(16): a(f"v_exp_f32 v{vS+k}, v{vS+k}")
    hint(1)
    if p.diag == 1: stamp(1)
    a(f"""s_cmp_eq_u32 s{sT3}, 0
    s_cbranch_scc0 L_Y_p
    s_barrier""")
    a.label("L_Y_p")
    vP = 72
    for k in range(8): a(f"v_cvt_pk_bf16_f32 v{vP+k}, v{vS+2*k}, v{vS+2*k+1}")
    hint(2)
    if p.diag == 1: stamp(4)
    a(f"""s_cmp_eq_u32 s{sT2}, 0
    s_cbranch_scc0 L_Y_nol""")
    mfma(68, 248, vP, '0')
    mfma(68, 248, vP+4)
    a.label("L_Y_nol")
    def epi(k):
        for r in range(4): a(f"v_cvt_pk_bf16_f32 v{80+4*r+k}, v{vACC+8*k+r}, v{vACC+8*k+4+r}")
        for r in range(4): a(f"v_bfi_b32 v{80+4*r+k}, v9, v{vTO+k}, v{80+4*r+k}")
    for k in range(4):
        mfma(vACC+8*k, vP, vPF+16*k, '0')
        mfma(vACC+8*k+4, vP, vPF+16*k+8, '0')
        mfma(vACC+8*k, vP+4, vPF+16*k+4)
        mfma(vACC+8*k+4, vP+4, vPF+16*k+12)
        if k == 1:
            a(f"""v_mov_b32 v66, s{sT[0]}
            v_mov_b32 v65, v68
            s_cmp_eq_u32 s{sT2}, 0
            s_cselect_b32 exec_lo, 0xffff, 0
            s_mov_b32 exec_hi, 0
            buffer_store_dwordx4 v[64:67], v15, {R(rWS)}, s{sT1} offen sc1
            s_mov_b64 exec, -1""")
        if k >= 2: epi(k-2)
    if p.diag == 1: stamp(2)
    epi(2)
    if p.diag == 1: stamp(3)
    for r in range(4):
        a(f"v_cvt_pk_bf16_f32 v{83+4*r}, v{vACC+24+r}, v{vACC+28+r}")
        a(f"v_bfi_b32 v{83+4*r}, v9, v{vTO+3}, v{83+4*r}")
        if p.halfo: a("s_mov_b32 exec_lo, 0x00ff00ff\ns_mov_b32 exec_hi, 0x00ff00ff")
        a(f"buffer_store_dwordx4 {V(80+4*r)}, v12, {R(rWS)}, s{sT0} offen sc1")
        if p.halfo: a("s_mov_b64 exec, -1")
        if r < 3: a(f"s_add_u32 s{sT0}, s{sT0}, 0x20000")
    hint(3)
    stamp(7)
    if p.odrain: a("s_waitcnt vmcnt(0)")
    if p.diag == 3: a(f"s_memrealtime s[{sStamp+2}:{sStamp+3}]")
    if p.prio: a("s_setprio 0")
    a(f"""s_cmp_ge_u32 s{sWave}, 5
    s_cbranch_scc1 L_Y_fg""")
    srd(rB, pW2, 0 if p.nod1 & 1 else SZ['w2'])
    a("s_barrier")
    vW2, vWO, vA2, vD2 = 100, 136, 20, 60
    a(f"""s_lshl_b32 s{sT0}, s{sH}, 2
    s_add_u32 s{sT0}, s{sT0}, s{sJ}
    s_sub_u32 s{sT0}, s{sT0}, 4
    s_mul_i32 s{sT0}, s{sT0}, {32*1152}
    v_mul_u32_u24 v10, 1152, v{vG}
    s_lshl_b32 s{sT1}, s{sWave}, 8
    v_add_u32 v10, s{sT1}, v10
    s_cmp_eq_u32 s{sWave}, 4
    s_cbranch_scc1 L_Y_half
    v_lshl_add_u32 v10, v{vJ}, 4, v10""")
    for t in range(9): a(f"buffer_load_dwordx4 {V(vW2+4*t)}, v10, {R(rB)}, s{sQ+t} offen {nt}")
    a(f"v_mul_u32_u24 v9, {7*1152}, v{vG}\nv_add_u32 v10, v10, v9")
    for t in range(8):
        if p.wopre: break
        a(f"buffer_load_dwordx4 {V(vWO+4*t)}, v10, {R(rC)}, s{sT0} offen {nt}")
        if t < 7: a(f"s_add_u32 s{sT0}, s{sT0}, 1152")
    slot_voff(11, False)
    a("s_branch L_Y_o2")
    a.label("L_Y_half")
    worest()
    a(f"""v_and_b32 v9, 7, v{vJ}
    v_lshl_add_u32 v10, v9, 4, v10
    s_mov_b32 vcc_lo, 0xff00ff00
    s_mov_b32 vcc_hi, 0xff00ff00""")
    for n in range(5):
        if n < 4:
            a(f"v_mov_b32 v13, s{sQ+2*n}\nv_mov_b32 v14, s{sQ+2*n+1}\nv_cndmask_b32 v13, v13, v14, vcc\nv_add_u32 v13, v13, v10")
            a(f"buffer_load_dwordx4 {V(vW2+4*n)}, v13, {R(rB)}, 0 offen {nt}")
        else:
            a("s_mov_b32 exec_lo, 0x00ff00ff\ns_mov_b32 exec_hi, 0x00ff00ff")
            a(f"buffer_load_dwordx4 {V(vW2+4*n)}, v10, {R(rB)}, s{sQ+8} offen {nt}")
            a("s_mov_b64 exec, -1")
    a(f"v_lshrrev_b32 v9, 3, v{vJ}\nv_mul_u32_u24 v9, 1152, v9\nv_add_u32 v10, v10, v9")
    a(f"v_mul_u32_u24 v9, {7*1152}, v{vG}\nv_add_u32 v10, v10, v9")
    for n in range(4):
        if p.wopre: break
        a(f"buffer_load_dwordx4 {V(vWO+4*n)}, v10, {R(rC)}, s{sT0} offen {nt}")
        if n < 3: a(f"s_add_u32 s{sT0}, s{sT0}, {2*1152}")
    if p.wopre: a("s_waitcnt vmcnt(5)")
    slot_voff(11, True)
    a.label("L_Y_o2")
    a(f"""v_bfe_u32 v9, v{vL}, 3, 1
    v_and_b32 v13, 3, v{vL}
    v_lshl_add_u32 v13, v13, 2, v{vG}
    v_lshlrev_b32 v13, 2, v13
    v_mul_u32_u24 v14, 192, v9
    v_add_u32 v14, v14, v13
    v_add_u32 v14, {L_HX}, v14
    v_lshlrev_b32 v15, 2, v{vL}
    v_lshlrev_b32 v16, 2, v9
    v_add_u32 v16, {L_GATE}, v16
    ds_read_b32 v16, v16
    v_and_b32 v17, 3, v{vL}
    v_mul_u32_u24 v17, 37, v17
    v_add_u32 v17, s{sT[0]}, v17
    s_lshl_b32 s{sT0}, s{sH}, 12
    s_sub_u32 s{sT1}, s{sJ}, 4
    s_lshl_b32 s{sT1}, s{sT1}, 10
    s_add_u32 s{sT0}, s{sT0}, s{sT1}
    s_add_u32 s{sT0}, s{sT0}, {CXL if p.fast else CX}
    s_sub_u32 s{sT2}, s2, 128
    s_lshr_b32 s{sT3}, s{sT2}, 4
    s_mul_i32 s{sT3}, s{sT3}, {p.dstr}
    s_and_b32 vcc_lo, s{sT2}, 15
    s_lshl_b32 vcc_lo, vcc_lo, 2
    s_add_u32 s{sT3}, s{sT3}, vcc_lo
    s_add_u32 s{sT3}, s{sT3}, {HD}
    v_mul_u32_u24 v18, {8*p.dstr}, v{vL}
    s_mul_i32 s{sT2}, s{sT2}, 4608
    s_add_u32 s{sT2}, s{sT2}, {FP}
    v_add_u32 v10, {L_WO}, v10
    s_barrier""")
    stamp(8)
    for v in range(3): a(f"ds_read_b32 v{68+v}, v14 offset:{64*v}")
    a("s_waitcnt lgkmcnt(0)")
    for t in range(9): buildA(vA2+4*t, 68+t//4, t % 4)
    a(f"""s_cmp_eq_u32 s{sWave}, 4
    s_cbranch_scc1 L_Y_half2""")
    if p.wopre:
        for t in range(8): a(f"ds_read_b128 {V(vWO+4*t)}, v10 offset:{1152*t}")
    for t in range(9):
        a(f"s_waitcnt vmcnt({(8 if p.wopre else 16)-t})")
        mfma(vD2, vA2+4*t, vW2+4*t, '0' if t == 0 else None)
    a("s_branch L_Y_o3")
    a.label("L_Y_half2")
    if p.wopre:
        for n in range(4): a(f"ds_read_b128 {V(vWO+4*n)}, v10 offset:{2304*n}")
    for n in range(5):
        a(f"s_waitcnt vmcnt({(4 if p.wopre else 8)-n})")
        mfma(vD2, vA2+8*n, vW2+4*n, '0' if n == 0 else None)
        if n < 4: mfma(vD2+4, vA2+8*n+4, vW2+4*n, '0' if n == 0 else None)
    a.label("L_Y_o3")
    a("s_waitcnt lgkmcnt(0)")
    stamp(9)
    L = poll_begin()
    for cq in range(4): a(f"buffer_load_dword v{72+cq}, v15, {R(rWS)}, s{sT0} offen offset:{256*cq} sc1")
    a("s_waitcnt vmcnt(0)")
    a("v_xor_b32 v76, v17, v72")
    for cq in range(1, 4): a(f"v_bitop3_b32 v76, v76, v{72+cq}, v17 bitop3:0xf6")
    poll_end(L, 76, '0xff', ((sT0,), CXL-CX))
    stamp(10)
    def dflag():
        if p.dflag >= 3:
            a(f"""s_cmp_eq_u32 s{sWave}, 1
            s_cselect_b32 exec_lo, 0xffff, 0
            s_mov_b32 exec_hi, 0
            buffer_store_dword v252, v15, {R(rWS)}, s{sQ+9} offen offset:64 sc1
            s_mov_b64 exec, -1""")
            return
        a(f"""s_cmp_eq_u32 s{sWave}, 1
        s_cselect_b32 exec_lo, {((1 << p.drep) - 1) & 0xffffffff}, 0
        s_cselect_b32 exec_hi, {((1 << p.drep) - 1) >> 32}, 0
        buffer_store_dword v252, v18, {R(rWS)}, s{sT3} offen sc1
        s_mov_b64 exec, -1""")
    if p.dflag in (1, 3): dflag()
    a(f"""v_add_f32 v72, v72, v73
    v_add_f32 v74, v74, v75
    v_add_f32 v72, v72, v74
    v_mul_f32 v72, v72, v16
    v_cvt_pk_bf16_f32 v72, v72, v72
    v_mov_b32 v73, v72
    v_mov_b32 v74, v72
    v_mov_b32_dpp v73, v72 row_shr:4 row_mask:0xf bank_mask:0xa
    v_mov_b32_dpp v74, v72 row_shl:4 row_mask:0xf bank_mask:0x5
    s_cmp_eq_u32 s{sWave}, 4
    s_cbranch_scc1 L_Y_half3""")
    for t in range(8):
        buildA(vA2+4*t, 73+t//4, t % 4)
        if t > 0: mfma(vD2, vA2+4*(t-1), vWO+4*(t-1))
    mfma(vD2, vA2+28, vWO+28)
    slot_store(vD2, sT2, False, 11)
    if p.dflag in (2, 4): dflag()
    a("s_branch L_Y_end")
    a.label("L_Y_half3")
    for t in range(8):
        buildA(vA2+4*t, 73+t//4, t % 4)
        if t > 0: mfma(vD2+4*((t-1) & 1), vA2+4*(t-1), vWO+4*((t-1)//2))
    mfma(vD2+4, vA2+28, vWO+12)
    for r in range(4): a(f"v_add_f32_dpp v{vD2+r}, v{vD2+4+r}, v{vD2+r} row_ror:8 row_mask:0xf bank_mask:0xf")
    slot_store(vD2, sT2, True, 11)
    a("s_branch L_Y_end")
    a.label("L_Y_fg")
    a(f"""s_cmp_eq_u32 s{sWave}, 7
    s_cbranch_scc1 L_Y_fg7""")
    srd(rB, pB1, SZ['b1'])
    a(f"""s_sub_u32 s{sT2}, s{sWave}, 5
    s_mul_i32 s{sT0}, s{sXcd}, {16*4608}
    s_mul_i32 s{sT1}, s{sT2}, 2304
    s_add_u32 s{sT0}, s{sT0}, s{sT1}
    s_mul_i32 s{sT1}, s{sI}, 144
    s_add_u32 s{sT0}, s{sT0}, s{sT1}
    s_add_u32 s{sT0}, s{sT0}, {HP}
    s_add_u32 s{sQ}, s{sT0}, {4*4608}
    s_add_u32 s{sQ+1}, s{sT0}, {8*4608}
    s_add_u32 s{sQ+2}, s{sT0}, {12*4608}
    v_mul_u32_u24 v10, 4608, v{vG}
    v_lshl_add_u32 v10, v{vJ}, 4, v10
    v_add_u32 v14, v14, v{vG}
    v_lshlrev_b32 v14, 1, v14
    s_lshl_b32 s{sT1}, s{sT2}, 2
    s_add_u32 s{sT1}, s{sT1}, {L_GATE}
    v_mov_b32 v16, s{sT1}
    ds_read_b32 v16, v16
    s_mul_i32 s{sT1}, s{sT2}, 192
    s_add_u32 s{sT1}, s{sT1}, {L_HX}
    v_lshl_add_u32 v17, v{vJ}, 2, v{vG}
    v_lshlrev_b32 v17, 2, v17
    v_add_u32 v17, s{sT1}, v17
    s_mov_b32 exec_lo, 0x01ff01ff
    s_mov_b32 exec_hi, 0x01ff01ff
    buffer_load_ushort v15, v14, {R(rB)}, 0 offen""")
    def floads():
        for k, s in enumerate((sT0, sQ, sQ+1, sQ+2)):
            a(f"buffer_load_dwordx4 {V(20+4*k)}, v10, {R(rWS)}, s{s} offen sc1")
    floads()
    Lf = a.newlabel('fchk')
    a(f"s_barrier\ns_mov_b64 exec, -1")
    worest()
    a(f"s_mov_b32 exec_lo, 0x01ff01ff\ns_mov_b32 exec_hi, 0x01ff01ff\ns_mov_b32 s{sCnt}, 0\ns_branch {Lf}")
    L = a.newlabel('poll'); a.label(L)
    floads()
    a.label(Lf)
    for k in range(4):
        a(f"s_waitcnt vmcnt({3-k})")
        chk4(36, 20+4*k, k == 0)
    poll_end(L, 36, '0xff')
    stamp(8)
    a("s_mov_b64 exec, -1")
    for k in range(4): a(f"v_add_f32 v{20+k}, v{20+k}, v{24+k}\nv_add_f32 v{28+k}, v{28+k}, v{32+k}")
    for k in range(4): a(f"v_add_f32 v{20+k}, v{20+k}, v{28+k}")
    treduce(20)
    c1 = -2*math.sqrt(2/math.pi)*math.log2(math.e)
    a(f"""v_lshlrev_b32 v15, 16, v15
    v_add_f32 v20, v20, v15
    v_mul_f32 v21, v20, v20
    v_mov_b32 v22, {f2u(c1)}
    v_fmac_f32 v22, {f2u(c1*0.044715)}, v21
    v_mul_f32 v21, v22, v20
    v_exp_f32 v21, v21
    v_add_f32 v21, 1.0, v21
    v_rcp_f32 v21, v21
    s_waitcnt lgkmcnt(0)
    v_sub_f32 v16, 1.0, v16
    v_mul_f32 v20, v20, v21
    v_mul_f32 v20, v20, v16
    v_cvt_pk_bf16_f32 v20, v20, v20
    s_mov_b32 exec_lo, 0x01ff01ff
    s_mov_b32 exec_hi, 0x01ff01ff
    ds_write_b32 v17, v20
    s_mov_b64 exec, -1
    s_waitcnt lgkmcnt(0)""")
    a("s_branch L_Y_fgend")
    a.label("L_Y_fg7")
    a("s_barrier")
    worest()
    a("s_waitcnt vmcnt(0)")
    a.label("L_Y_fgend")
    a("s_barrier")
    a.label("L_Y_end")
    stamp(11)
    finish('Y')
    a.label("L_exit")
    a("s_endpgm")
    return a.finalize()

HEADER = open('gated_mix__compressed_kv_cla__dense_activation_gelu__decode.s.ref').read().split('; Override')[0]

def emit(path, p=P):
    body = build(p)
    s = HEADER + f"""; @launch grid=(256,1,1) block=(512,1,1) lds={LDS_BYTES}
.amdgcn_target "amdgcn-amd-amdhsa--gfx950"
.text
.globl {KNAME}
.p2align 8
.type {KNAME},@function
{KNAME}:
{body}.section .rodata,"a"
.p2align 6
.amdhsa_kernel {KNAME}
  .amdhsa_next_free_vgpr 256
  .amdhsa_next_free_sgpr 102
  .amdhsa_accum_offset 256
  .amdhsa_group_segment_fixed_size 0
  .amdhsa_kernarg_size 120
  .amdhsa_user_sgpr_count 2
  .amdhsa_user_sgpr_kernarg_segment_ptr 1
  .amdhsa_system_sgpr_workgroup_id_x 1
.end_amdhsa_kernel
"""
    open(path, 'w').write(s)

if __name__ == '__main__':
    out = sys.argv[1]
    for kv in sys.argv[2:]:
        k, v = kv.split('=')
        setattr(P, k, type(getattr(P, k))(v))
    emit(out)
```

```python
import sys, struct, math
from asmlib import Asm

KNAME = "gated_mix__compressed_kv_cla__dense_activation_gelu__decode_kernel"

def f2u(x): return struct.unpack('<I', struct.pack('<f', x))[0]

class P:
    stamp = 0
    nt = "nt"
    pollA_wait = 4
    maxspin = 200000
    prefetch = 1
    wsoff = 0
    fast = 1
    nlocal = 256
    hintpos = 3
    diag = 0
    xpre = 8
    ypre = 0
    gate = 8
    qat = 2
    bsleep = 0
    tlb = 1
    cstat = 1
    dflag = 3
    drep = 18
    dsamp = 2
    dstr = 2304
    wopre = 1
    won = 9
    xg = -1
    xgn = 2
    gand = 0
    wofirst = 1
    odrain = 0
    warm = 1
    halfo = 0
    outf = ""
    outpre = 0
    kint = 1
    b0pos = 1
    nsamp = 4
    prio = 1
    only = ""
    b0 = 1
    wqdma = 0
    nod1 = 0
    sparseC = 1
    qpre = 4
    enc = -1
    encwave = 4

EPOCH, QP, QL, ST, CX, HP, FP, OP, STAMP = 0, 0x10000, 0x50000, 0x60000, 0x70000, 0x90000, 0x120000, 0x200000, 0x800000
QPL, CXL, HC, HG, HD, HK = 0x600000, 0x640000, 0x660000, 0x670000, 0x690000, 0x680000
WS_REC = 0x1000000
L_CKV, L_QIMG, L_SX, L_HX, L_GATE = 0, 65536, 98304, 106496, 107008
L_WQ = 0x18000 - 20480
L_WUK, L_WUV, L_QV, L_AIMG, L_VST, L_RED = 0, 32768, 65536, 66048, 68352, 68480
L_WO = 107520
LDS_BYTES = 107520 + 36864
pX, pCKV, pWQ, pWUK, pWUV, pWO, pW1, pB1, pW2, pB2, pGW, pOUT, pWS = 4, 6, 8, 10, 12, 14, 18, 20, 22, 24, 26, 28, 32
sWave, sH, sJ, sI, sXcd, sTag = 3, 34, 35, 56, 57, 58
sT = [58, 59, 60, 61]
rA, rB, rC, rWS = 36, 40, 44, 48
sT0, sT1, sT2, sT3 = 52, 53, 54, 55
sCnt = 62
sQ = 64
sStamp = 76
vL, vJ, vG, vM, vL16 = 1, 2, 3, 4, 8
SZ = dict(x=2304, ckv=8388608, wq=4718592, wuk=4194304, wuv=4194304, wo=4718592, w1=5308416, w2=5308416, b1=9216, b2=1152, gw=1152, out=2304)

def build(p=P):
    a = Asm()
    nt = p.nt
    def srd(r, ptr, size):
        if ptr == pWS and p.wsoff:
            a(f"s_add_u32 s{r}, s{ptr}, {p.wsoff}\ns_addc_u32 s{r+1}, s{ptr+1}, 0\ns_mov_b32 s{r+2}, {size}\ns_mov_b32 s{r+3}, 0x20000")
            return
        a(f"s_mov_b32 s{r}, s{ptr}\ns_mov_b32 s{r+1}, s{ptr+1}\ns_mov_b32 s{r+2}, {size}\ns_mov_b32 s{r+3}, 0x20000")
    def R(r): return f"s[{r}:{r+3}]"
    def V(r, n=4): return f"v[{r}:{r+n-1}]"
    def stamp(k):
        if p.only and k not in [int(x) for x in p.only.split('.')]: return
        if p.stamp: a(f"s_memrealtime s[{sStamp+2*k}:{sStamp+2*k+1}]")
    def buildA(dst, x, u):
        for r in range(4):
            a(f"v_and_b32_dpp v{dst+r}, v{x}, v{vM+r} quad_perm:[{u},{u},{u},{u}] row_mask:0xf bank_mask:0xf")
    def mfma(d, A, B, c=None):
        a(f"v_mfma_f32_16x16x32_bf16 {V(d)}, {V(A)}, {V(B)}, {V(d) if c is None else c}")
    def tag4(d):
        for k in range(4):
            a(f"v_mov_b32_sdwa v{d+k}, s{sT[k]} dst_sel:BYTE_0 dst_unused:UNUSED_PRESERVE src0_sel:BYTE_0")
    def chk4(acc, d, first=False):
        for k in range(4):
            if first and k == 0: a(f"v_xor_b32 v{acc}, s{sT[0]}, v{d}")
            else: a(f"v_bitop3_b32 v{acc}, v{acc}, v{d+k}, s{sT[k]} bitop3:0xf6")
    def chkv(acc, d, t, first=False):
        for k in range(4):
            if first and k == 0: a(f"v_xor_b32 v{acc}, v{t}, v{d}")
            else: a(f"v_bitop3_b32 v{acc}, v{acc}, v{d+k}, v{t+k} bitop3:0xf6")
    def poll_begin():
        L = a.newlabel('poll')
        a(f"s_mov_b32 s{sCnt}, 0")
        a.label(L)
        return L
    def poll_end(L, acc, mask, fb=None, lim=None):
        D = a.newlabel('done')
        a(f"v_and_b32 v{acc}, {mask}, v{acc}\nv_cmp_ne_u32 vcc, 0, v{acc}\ns_add_u32 s{sCnt}, s{sCnt}, 1")
        a(f"s_cbranch_vccz {D}")
        if fb and p.fast:
            regs, delta = fb
            a(f"s_cmp_eq_u32 s{sCnt}, {p.nlocal}\ns_cselect_b32 vcc_lo, {delta}, 0")
            for r in regs: a(f"s_sub_u32 s{r}, s{r}, vcc_lo")
        a(f"s_cmp_lt_u32 s{sCnt}, {lim or p.maxspin}\ns_cbranch_scc1 {L}")
        a.label(D)
    def poll_end_masked(L, acc, mask, sleep=0):
        D = a.newlabel('done')
        a(f"""v_and_b32 v{acc}, {mask}, v{acc}
        v_cmp_ne_u32 vcc, 0, v{acc}
        s_add_u32 s{sCnt}, s{sCnt}, 1
        s_cbranch_vccz {D}
        s_wqm_b64 exec, vcc""")
        if sleep: a(f"s_sleep {sleep}")
        a(f"""s_cmp_lt_u32 s{sCnt}, {p.maxspin}
        s_cbranch_scc1 {L}
        s_mov_b64 exec, -1""")
        a.label(D)
    def spoll_all(off_regs, tmp):
        L = a.newlabel('sp'); D = a.newlabel('spd')
        a(f"s_mov_b32 s{sCnt}, 0")
        a.label(L)
        for k, r in enumerate(off_regs): a(f"s_load_dword s{tmp+k}, s[{rWS}:{rWS+1}], s{r} glc")
        a(f"s_add_u32 s{sCnt}, s{sCnt}, 1\ns_cmp_ge_u32 s{sCnt}, {p.maxspin}\ns_cbranch_scc1 {D}\ns_waitcnt lgkmcnt(0)")
        for k, r in enumerate(off_regs): a(f"s_cmp_lg_u32 s{tmp+k}, s{sT[0]}\ns_cbranch_scc1 {L}")
        a.label(D)
        a("s_waitcnt lgkmcnt(0)")
    def spoll(off_regs):
        L = a.newlabel('sp'); D = a.newlabel('spd')
        a(f"s_mov_b32 s{sCnt}, 0")
        a.label(L)
        for k, r in enumerate(off_regs): a(f"s_load_dword s{sT0+k}, s[{rWS}:{rWS+1}], s{r} glc")
        a(f"s_add_u32 s{sCnt}, s{sCnt}, 1\ns_waitcnt lgkmcnt(0)")
        for k, r in enumerate(off_regs): a(f"s_cmp_eq_u32 s{sT0+k}, s{sT[0]}\ns_cbranch_scc1 {D}")
        a(f"s_cmp_lt_u32 s{sCnt}, {p.maxspin}\ns_cbranch_scc1 {L}")
        a.label(D)
    def treduce(r):
        a(f"v_permlane32_swap_b32 v{r}, v{r+2}\nv_permlane32_swap_b32 v{r+1}, v{r+3}")
        a(f"v_add_f32 v{r}, v{r}, v{r+2}\nv_add_f32 v{r+1}, v{r+1}, v{r+3}")
        a(f"v_permlane16_swap_b32 v{r}, v{r+1}\nv_add_f32 v{r}, v{r}, v{r+1}")
    def allred_groups(op, r, t):
        a(f"v_mov_b32 v{t}, v{r}\nv_permlane32_swap_b32 v{r}, v{t}\n{op} v{r}, v{r}, v{t}")
        a(f"v_mov_b32 v{t}, v{r}\nv_permlane16_swap_b32 v{r}, v{t}\n{op} v{r}, v{r}, v{t}")
    def masks():
        a(f"""v_and_b32 v9, 3, v{vL}
        v_lshlrev_b32 v9, 4, v9
        v_mov_b32 v10, 0xffff
        v_mov_b32 v11, 0
        v_lshlrev_b64 v[10:11], v9, v[10:11]
        v_and_b32 v9, 4, v{vL}
        v_cmp_eq_u32 vcc, 0, v9
        v_cndmask_b32 v{vM}, 0, v10, vcc
        v_cndmask_b32 v{vM+1}, 0, v11, vcc
        v_cndmask_b32 v{vM+2}, v10, 0, vcc
        v_cndmask_b32 v{vM+3}, v11, 0, vcc""".replace('v_cndmask_b32 v%d, v10, 0, vcc' % (vM+2), 'v_cndmask_b32_e64 v%d, v10, 0, vcc' % (vM+2)).replace('v_cndmask_b32 v%d, v11, 0, vcc' % (vM+3), 'v_cndmask_b32_e64 v%d, v11, 0, vcc' % (vM+3)))
    def xoff(dst):
        a(f"""v_bfe_u32 v{dst}, v{vL}, 3, 1
        v_mul_u32_u24 v{dst}, 1152, v{dst}
        v_and_b32 v9, 3, v{vL}
        v_lshl_add_u32 v{dst}, v9, 3, v{dst}
        v_lshl_add_u32 v{dst}, v{vG}, 1, v{dst}""")
    def epoch_wait():
        a(f"""s_waitcnt lgkmcnt(0)
        s_add_u32 s{sT[0]}, s{sT[0]}, 1
        s_add_u32 s{sT[1]}, s{sT[0]}, 37
        s_add_u32 s{sT[2]}, s{sT[0]}, 74
        s_add_u32 s{sT[3]}, s{sT[0]}, 111""")
    def lsbtags(t, flip=None):
        a(f"""v_and_b32 v{t}, 7, v{vL}
        v_mul_u32_u24 v{t}, 37, v{t}
        v_add_u32 v{t}, s{sT[0]}, v{t}""")
        if flip: a(f"v_xor_b32 v{t}, {flip}, v{t}")
        a(f"""v_and_b32 v{t}, 0xff, v{t}
        v_lshl_or_b32 v{t}, v{t}, 15, v{t}
        v_lshrrev_b32 v{t+1}, 2, v{t}
        v_lshrrev_b32 v{t+2}, 4, v{t}
        v_lshrrev_b32 v{t+3}, 6, v{t}""")
    def decode_v(dst, src, t):
        a(f"""v_lshrrev_b32 v{dst}, 5, v{src}
        v_lshlrev_b32 v{dst}, 7, v{dst}
        v_and_b32 v{t}, 15, v{src}
        v_lshl_add_u32 v{dst}, v{t}, 3, v{dst}
        v_bfe_u32 v{t}, v{src}, 4, 1
        v_lshl_add_u32 v{dst}, v{t}, 2, v{dst}
        v_and_b32 v{t}, 7, v{src}
        v_lshlrev_b32 v{t}, 3, v{t}
        v_bfe_u32 v{t+1}, v{src}, 3, 1
        v_lshl_add_u32 v{t}, v{t+1}, 2, v{t}
        v_add_u32 v{t}, 512, v{t}
        v_cmp_gt_u32 vcc, 128, v{src}
        v_cndmask_b32 v{dst}, v{t}, v{dst}, vcc""")
    def finish(nst):
        if p.stamp == 3:
            Ls = a.newlabel('noenc'); Lw = a.newlabel('encw')
            a(f"""s_waitcnt lgkmcnt(0)
            s_lshl_b32 s{sT0}, s2, 3
            s_add_u32 s{sT0}, s{sT0}, s{sWave}
            s_cmp_eq_u32 s{sT0}, {p.encwave}
            s_cbranch_scc0 {Ls}
{Lw}:
            s_memrealtime s[{sT0}:{sT1}]
            s_waitcnt lgkmcnt(0)
            s_sub_u32 s{sT0}, s{sT0}, s{sStamp+2*p.enc}
            s_cmp_lt_u32 s{sT0}, 3000
            s_cbranch_scc1 {Lw}
{Ls}:
            s_endpgm""")
            return
        if p.stamp:
            a(f"""s_waitcnt lgkmcnt(0)
            s_lshl_b32 s{sT0}, s2, 3
            s_add_u32 s{sT0}, s{sT0}, s{sWave}
            s_lshl_b32 s{sT0}, s{sT0}, 6
            s_add_u32 s{sT0}, s{sT0}, {STAMP}
            s_mov_b64 exec, 1
            v_mov_b32 v9, 0""")
            for k in range(13):
                a(f"v_mov_b32 v{10+k}, s{sStamp+2*k}\nbuffer_store_dword v{10+k}, v9, {R(rWS)}, s{sT0} offen offset:{4*k}")
        if p.stamp == 2:
            Ls = a.newlabel('nosum')
            a(f"""s_lshl_b32 s{sT0}, s2, 3
            s_add_u32 s{sT0}, s{sT0}, s{sWave}
            s_cmp_eq_u32 s{sT0}, {4 if nst == 'X' else 1024}
            s_cbranch_scc0 {Ls}""")
            srd(rB, 30, 256)
            for n, k in enumerate((1,2,3,4,7,8,9,10) if nst == 'X' else (1,2,3,4,7,8,10,11)):
                a(f"s_sub_u32 s{sT1}, s{sStamp+2*k}, s{sStamp}\nv_mov_b32 v{30+n}, s{sT1}\nbuffer_store_dword v{30+n}, v9, {R(rB)}, 0 offen offset:{4*n + (0 if nst == 'X' else 32)}")
            a.label(Ls)
        a("s_endpgm")

    def slot_store(d, base_s, wave_is_half, toff):
        tag4(d)
        if wave_is_half: a("s_mov_b32 exec_lo, 0x00ff00ff\ns_mov_b32 exec_hi, 0x00ff00ff")
        a(f"buffer_store_dwordx4 {V(d)}, v{toff}, {R(rWS)}, s{base_s} offen sc1")
        if wave_is_half: a("s_mov_b64 exec, -1")
    def slot_voff(dst, half):
        a(f"""v_lshrrev_b32 v{dst}, 1, v{vG}
        v_mul_u32_u24 v{dst}, 2304, v{dst}
        v_lshl_add_u32 v{dst}, v{vJ}, 4, v{dst}
        v_and_b32 v9, 1, v{vG}""")
        if half:
            a(f"v_lshl_add_u32 v{dst}, v9, 7, v{dst}\nv_add_u32 v{dst}, 2048, v{dst}")
        else:
            a(f"v_lshl_add_u32 v{dst}, v9, 8, v{dst}\ns_lshl_b32 s{sT0}, s{sWave}, 9\nv_add_u32 v{dst}, s{sT0}, v{dst}")

    def zstamps():
        if p.stamp:
            for k in range(1, 13): a(f"s_mov_b32 s{sStamp+2*k}, 0")
    vXP, vAP, vWP, vDP = 12, 20, 100, 180
    assert p.wsoff == 0
    stamp(0)
    a(f"""s_load_dwordx8 s[36:43], s[0:1], 0
    s_load_dwordx2 s[{rWS}:{rWS+1}], s[0:1], 112
    v_readfirstlane_b32 s{sWave}, v0
    v_and_b32 v{vJ}, 15, v0
    s_lshr_b32 s{sJ}, s2, 5
    s_and_b32 s{sH}, s2, 31
    s_mov_b32 s{rWS+3}, 0x20000
    s_lshr_b32 s{sT0}, s2, 8
    s_or_b32 s{sT0}, s{sT0}, s{sWave}
    s_cbranch_scc1 L_rest""")
    a(f"""v_lshrrev_b32 v{vG}, 4, v0
    v_lshlrev_b32 v9, 15, v{vG}
    v_lshl_add_u32 v9, v{vJ}, 4, v9
    v_add_u32 v10, {8192-1024}, v9
    v_add_u32 v11, {2*(8192-1024)}, v9
    v_add_u32 v12, {3*(8192-1024)}, v9
    s_mul_i32 s{sT0}, s{sJ}, {72*32}
    s_add_u32 s{sT0}, s{sT0}, s{sH}
    s_lshl_b32 s{sT0}, s{sT0}, 8
    s_mov_b32 m0, {L_WQ}
    v_lshrrev_b32 v13, 3, v{vJ}
    v_mul_u32_u24 v13, 144, v13
    v_and_b32 v14, 3, v0
    v_lshl_add_u32 v14, v14, 2, v{vG}
    v_add_lshl_u32 v13, v13, v14, 3
    s_mul_i32 s{sT1}, s{sJ}, 144
    s_waitcnt lgkmcnt(0)
    s_movk_i32 s{rA+2}, {SZ['x']}
    s_mov_b32 s{rA+3}, s{rWS+3}
    s_add_u32 s{rB+2}, s{sT0}, {71*8192+256}
    s_mov_b32 s{rB+3}, s{rWS+3}""")
    if p.diag == 2: a(f"s_memrealtime s[{sQ+6}:{sQ+7}]")
    a(f"""buffer_load_dwordx2 v[186:187], v13, {R(rA)}, s{sT1} offen
    buffer_load_dwordx2 v[188:189], v13, {R(rA)}, s{sT1} offen offset:128
L_wq:
    buffer_load_dwordx4 v9, {R(rB)}, s{sT0} offen {nt} lds
    buffer_load_dwordx4 v10, {R(rB)}, s{sT0} offen offset:1024 {nt} lds
    buffer_load_dwordx4 v11, {R(rB)}, s{sT0} offen offset:2048 {nt} lds
    buffer_load_dwordx4 v12, {R(rB)}, s{sT0} offen offset:3072 {nt} lds
    s_addk_i32 m0, 4096
    s_add_u32 s{sT0}, s{sT0}, s{rWS+3}
    s_bitcmp0_b32 m0, 15
    s_cbranch_scc1 L_wq""")
    if p.diag == 2: a(f"s_memrealtime s[{sQ+8}:{sQ+9}]")
    if p.b0pos == 0: a("s_barrier")
    a.label("L_rest")
    a(f"""s_cmp_ge_u32 s{sJ}, 8
    s_cbranch_scc1 L_exit
    s_lshr_b32 s{sWave}, s{sWave}, 6
    v_and_b32 v{vL}, 63, v0
    v_bfe_u32 v{vG}, v0, 4, 2
    v_lshlrev_b32 v{vL16}, 4, v{vL}
    s_mov_b32 s{rWS+2}, {WS_REC}
    s_lshl_b32 s{sT0}, s{sH}, 3
    s_add_u32 s{sT0}, s{sT0}, s{sJ}
    s_lshl_b32 s{sT0}, s{sT0}, 10
    s_add_u32 s{sT1}, s{sT0}, {QPL}
    s_and_b32 s{sT2}, s{sWave}, 3
    s_mov_b32 s{rC+3}, s{rWS+3}
    s_cmp_eq_u32 s{sWave}, 3
    s_cselect_b32 exec_lo, 0x01010101, 0
    s_cselect_b32 exec_hi, 0x01010101, 0
    s_waitcnt lgkmcnt(0)""")
    if p.fast: a(f"buffer_load_dword v250, v{vL16}, {R(rWS)}, s{sT1} offen sc1")
    a(f"""s_mov_b64 exec, -1
    s_load_dword s{sT[0]}, s[{rWS}:{rWS+1}], {EPOCH}
    s_load_dwordx16 s[4:19], s[0:1], 0
    s_load_dwordx8 s[20:27], s[0:1], 64
    s_load_dwordx4 s[28:31], s[0:1], 96
    s_and_b32 s{sXcd}, s2, 7
    s_bfe_u32 s{sI}, s2, 0x40003
    s_cmp_lt_u32 s{sWave}, 4
    s_cbranch_scc1 L_w03
    s_cmp_ge_u32 s2, 128
    s_cbranch_scc1 L_Ydma""")
    a(f"""s_lshl_b32 s{sQ}, s{sJ}, 2
    s_add_u32 s{sQ}, s{sQ}, s{sT2}
    s_lshl_b32 s{sQ}, s{sQ}, 10
    s_add_u32 s{sQ}, s{sQ}, s{sH}
    s_lshl_b32 s{sQ}, s{sQ}, 8
    s_lshl_b32 m0, s{sT2}, 13
    v_xor_b32 v19, v{vJ}, v{vG}
    v_lshlrev_b32 v19, 4, v19
    v_lshl_add_u32 v20, v{vG}, 13, v19
    v_xor_b32 v21, 64, v20
    v_xor_b32 v22, 0x80, v20
    v_xor_b32 v23, 0xc0, v20
    v_add_u32 v21, {32768-1024}, v21
    v_add_u32 v22, {2*(32768-1024)}, v22
    v_add_u32 v23, {3*(32768-1024)}, v23
    s_mov_b64 s[{rC}:{rC+1}], s[42:43]
    s_mov_b32 s{rC+2}, {SZ['wuk']}""")
    if p.diag == 2: a(f"s_memrealtime s[{sQ+6}:{sQ+7}]")
    def wuk(n):
        if n == 4: a(f"s_addk_i32 m0, 4096\ns_add_u32 s{sQ}, s{sQ}, {4*32768}")
        a(f"buffer_load_dwordx4 v{20+n%4}, {R(rC)}, s{sQ} offen offset:{1024*(n%4)} {nt} lds")
    if p.xg >= 0:
        epoch_wait()
        a(f"""s_lshl_b32 s{sT3}, s2, 7
        s_add_u32 s{sT3}, s{sT3}, {HK}
        v_mov_b32 v14, s{sT[0]}
        v_lshlrev_b32 v15, 2, v{vL}""")
    a("s_barrier")
    for n in range(p.xpre+1):
        if n == p.xg:
            a(f"""s_cmp_eq_u32 s{sWave}, 4
            s_cselect_b32 exec_lo, 0xffff, 0
            s_mov_b32 exec_hi, 0
            buffer_store_dword v14, v15, {R(rWS)}, s{sT3} offen sc1
            s_mov_b64 exec, -1""")
        if n < p.xpre: wuk(n)
    if p.diag == 2: a(f"s_memrealtime s[{sQ+8}:{sQ+9}]")
    a("s_branch L_X_w47")
    a.label("L_Ydma")
    sCK = sQ + 11
    if p.kint:
        a(f"""s_bfe_u32 s{sCK}, s2, 0x10006
        s_lshl_b32 s{sCK}, s{sCK}, 4
        s_add_u32 s{sCK}, s{sCK}, s{sT2}
        s_lshl_b32 s{sCK}, s{sCK}, 8
        s_and_b32 vcc_lo, s2, 63
        s_add_u32 s{sCK}, s{sCK}, vcc_lo
        s_lshl_b32 s{sCK}, s{sCK}, 10
        s_lshl_b32 m0, s{sT2}, 12""")
    else:
        a(f"""s_sub_u32 s{sCK}, s2, 128
        s_lshl_b32 s{sCK}, s{sCK}, 16
        s_lshl_b32 m0, s{sT2}, 12
        s_add_u32 s{sCK}, s{sCK}, m0""")
    a(f"""
    s_and_b32 vcc_lo, s{sT2}, 1
    s_lshl_b32 vcc_lo, vcc_lo, 7
    s_lshr_b32 vcc_hi, s{sT2}, 1
    s_lshl_b32 vcc_hi, vcc_hi, 4
    s_or_b32 vcc_lo, vcc_lo, vcc_hi
    v_xor_b32 v216, vcc_lo, v{vL16}
    v_xor_b32 v217, 32, v216
    v_xor_b32 v218, 64, v216
    v_xor_b32 v219, 0x60, v216""")
    if p.kint:
        for n in range(1, 4): a(f"v_add_u32 v{216+n}, {n*(65536-1024)}, v{216+n}")
    a(f"""s_mov_b64 s[{rC}:{rC+1}], s[38:39]
    s_mov_b32 s{rC+2}, {SZ['ckv']}
    s_barrier""")
    def ckv(i):
        if i % 4 == 0 and i: a(f"s_add_u32 s{sCK}, s{sCK}, {16*65536 if p.kint else 16384}\ns_add_u32 m0, m0, 16384")
        a(f"buffer_load_dwordx4 v{216+(i&3)}, {R(rC)}, s{sCK} offen offset:{1024*(i%4)} {nt} lds")
    for i in range(p.ypre): ckv(i)
    zstamps()
    epoch_wait()
    a(f"""s_sub_u32 s{sT3}, s2, 128
    s_lshl_b32 s{sT3}, s{sT3}, 7
    s_add_u32 s{sT3}, s{sT3}, {HG}
    v_mov_b32 v14, s{sT[0]}
    v_lshlrev_b32 v15, 2, v{vL}""")
    if p.xg >= 0:
        a(f"s_cmp_lg_u32 s{sWave}, 4\ns_cbranch_scc1 L_nokg")
        for k in range(p.xgn):
            a(f"s_add_u32 s{sQ+k}, s2, {41*k}\ns_and_b32 s{sQ+k}, s{sQ+k}, 127\ns_lshl_b32 s{sQ+k}, s{sQ+k}, 7\ns_add_u32 s{sQ+k}, s{sQ+k}, {HK}")
        spoll_all([sQ+k for k in range(p.xgn)], sQ+4)
        a.label("L_nokg")
    if p.wofirst:
        srd(rB, pWO, SZ['wo'])
        a(f"""s_lshl_b32 s{sQ}, s{sH}, 2
        s_add_u32 s{sQ}, s{sQ}, s{sJ}
        s_sub_u32 s{sQ}, s{sQ}, 4
        s_lshl_b32 s{sQ}, s{sQ}, 2
        s_add_u32 s{sQ}, s{sQ}, s{sT2}
        s_mul_i32 s{sQ}, s{sQ}, 9216
        s_mov_b32 s{sQ+1}, m0
        s_mul_i32 vcc_lo, s{sT2}, 9216
        s_add_u32 m0, vcc_lo, {L_WO}""")
    a("s_barrier")
    stamp(10)
    if p.wofirst:
        for n in range(9):
            if n in (4, 8): a(f"s_addk_i32 m0, 4096\ns_add_u32 s{sQ}, s{sQ}, 4096")
            a(f"buffer_load_dwordx4 v{vL16}, {R(rB)}, s{sQ} offen offset:{1024*(n%4)} {nt} lds")
        a(f"s_mov_b32 m0, s{sQ+1}")
    for i in range(p.ypre, 17):
        if i == p.gate:
            a(f"""s_cmp_eq_u32 s{sWave}, 4
            s_cselect_b32 exec_lo, -1, 0
            s_mov_b32 exec_hi, 0
            buffer_store_dword v14, v15, {R(rWS)}, s{sT3} offen sc1
            s_mov_b64 exec, -1""")
        if i < 16: ckv(i)
    stamp(1)
    masks()
    a("s_branch L_Y_main")
    a.label("L_w03")
    a(f"""s_cmp_eq_u32 s{sWave}, 0
    s_cbranch_scc1 L_p1c
    s_barrier
    s_branch L_w13""")
    a.label("L_p1c")
    zstamps()
    masks()
    stamp(1)
    if p.diag == 2: a(f"s_mov_b32 s{sStamp+6}, s{sQ+6}\ns_mov_b32 s{sStamp+8}, s{sQ+8}")
    a(f"""s_add_u32 s{sT0}, s{sT0}, {QP}
    s_mov_b32 s{sT2}, 0x01000100
    s_mov_b32 s{sT3}, 0x03020302
    v_add_u32 v190, {L_WQ}, v{vL16}
    s_waitcnt vmcnt(20)""")
    if p.b0pos == 1: a("s_barrier")
    if p.diag == 2: a(f"s_memrealtime s[{sStamp+10}:{sStamp+11}]")
    for k in range(4):
        a(f"v_perm_b32 v{vXP+2*k}, v{186+k}, v{186+k}, s{sT2}\nv_perm_b32 v{vXP+2*k+1}, v{186+k}, v{186+k}, s{sT3}")
    for n in range(20): buildA(vAP+4*n, vXP+(n % 4)+(4 if n >= 16 else 0), (n//4) % 4)
    epoch_wait()
    if p.diag == 2: a(f"s_memrealtime s[{sStamp+12}:{sStamp+13}]")
    G = 4
    for t0 in range(0, 20, G):
        a(f"s_waitcnt vmcnt({20-t0-G})")
        if p.b0pos == 2 + t0//G: a("s_barrier")
        if p.diag == 2 and t0 == 0: a(f"s_memrealtime s[{sStamp+14}:{sStamp+15}]")
        if p.diag == 2 and t0 == 16: a(f"s_memrealtime s[{sStamp+16}:{sStamp+17}]")
        for t in range(t0, t0+G): a(f"ds_read_b128 {V(vWP+4*t)}, v190 offset:{1024*t}")
        if t0:
            a(f"s_waitcnt lgkmcnt({G})")
            for t in range(t0-G, t0): mfma(vDP, vAP+4*t, vWP+4*t, '0' if t == 0 else None)
    for t in range(20-G, 20):
        a(f"s_waitcnt lgkmcnt({19-t})")
        mfma(vDP, vAP+4*t, vWP+4*t)
    tag4(vDP)
    if p.fast: a(f"buffer_store_dwordx4 {V(vDP)}, v{vL16}, {R(rWS)}, s{sT1} offen")
    a(f"buffer_store_dwordx4 {V(vDP)}, v{vL16}, {R(rWS)}, s{sT0} offen sc1")
    stamp(2)
    a(f"""s_barrier
    s_cmp_ge_u32 s2, 128
    s_cbranch_scc1 L_Y_main
    s_branch L_X_main""")

    a.label("L_w13")
    zstamps()
    masks()
    a(f"""s_movk_i32 s{rA+2}, {SZ['x']}
    s_mov_b32 s{rA+3}, s{rWS+3}""")
    if p.prefetch:
        a(f"""s_cmp_lg_u32 s{sWave}, 2
        s_cbranch_scc1 L_nopf
        s_getpc_b64 s[{sT0}:{sT1}]
L_pc:
        s_sub_u32 s{sT0}, s{sT0}, L_pc-{KNAME}
        s_subb_u32 s{sT1}, s{sT1}, 0
        s_lshr_b32 s{sT2}, s2, 3
        s_lshl_b32 s{sT2}, s{sT2}, 9
        v_add_u32 v9, s{sT2}, v{vL16}
        v_cmp_gt_u32 vcc, L_exit-{KNAME}, v9
        s_and_b32 exec_lo, vcc_lo, 0x01010101
        s_mov_b32 exec_hi, 0
        s_cbranch_execz L_pfdone
        global_load_dword v250, v9, s[{sT0}:{sT1}]
L_pfdone:
        s_mov_b64 exec, -1
L_nopf:""")
    epoch_wait()
    if p.warm:
        per = 72 // p.drep
        a(f"""s_cmp_lg_u32 s{sWave}, 2
        s_cbranch_scc1 L_nowarm
        s_not_b32 s{sT0}, s{sT[0]}
        v_mov_b32 v24, s{sT0}
        v_mov_b32 v25, s{sT0}
        v_mov_b32 v26, s{sT0}
        v_mov_b32 v27, s{sT0}
        s_cmp_ge_u32 s2, 128
        s_cbranch_scc1 L_warmY
        s_mov_b32 exec_hi, 0
        s_lshl_b32 s{sT0}, s{sH}, 2
        s_add_u32 s{sT0}, s{sT0}, s{sJ}
        s_lshl_b32 s{sT1}, s{sT0}, 9
        s_add_u32 s{sT1}, s{sT1}, {ST}
        buffer_store_dwordx4 v[24:27], v{vL16}, {R(rWS)}, s{sT1} offen sc1
        s_lshl_b32 s{sT1}, s{sT0}, 8
        s_add_u32 s{sT1}, s{sT1}, {QL}
        v_lshlrev_b32 v28, 15, v{vG}
        v_lshl_add_u32 v28, v{vJ}, 4, v28
        buffer_store_dwordx4 v[24:27], v28, {R(rWS)}, s{sT1} offen sc1
        s_cmp_ge_u32 s2, {p.drep}
        s_cbranch_scc1 L_warmd
        v_lshrrev_b32 v28, 2, v{vL}
        v_mul_u32_u24 v28, {p.dstr}, v28
        v_and_b32 v29, 3, v{vL}
        v_lshl_add_u32 v28, v29, 4, v28
        s_mul_i32 s{sT1}, s2, {8*p.dstr}
        s_add_u32 s{sT1}, s{sT1}, {HD}
        buffer_store_dwordx4 v[24:27], v28, {R(rWS)}, s{sT1} offen sc1
        s_branch L_warmd
L_warmY:
        s_sub_u32 s{sT0}, s2, 128
        s_mul_i32 s{sT1}, s{sT0}, 4608
        s_add_u32 s{sT1}, s{sT1}, {FP}""")
        for k in range(4): a(f"buffer_store_dwordx4 v[24:27], v{vL16}, {R(rWS)}, s{sT1} offen offset:{1024*k} sc1")
        a(f"""s_add_u32 s{sT1}, s{sT1}, 4096
        s_mov_b32 exec_hi, 0
        buffer_store_dwordx4 v[24:27], v{vL16}, {R(rWS)}, s{sT1} offen sc1
        s_lshl_b32 s{sT1}, s{sT0}, 8
        s_add_u32 s{sT1}, s{sT1}, {HC}
        s_mov_b32 exec_lo, 0xffff
        buffer_store_dwordx4 v[24:27], v{vL16}, {R(rWS)}, s{sT1} offen sc1
L_warmd:
        s_mov_b64 exec, -1
L_nowarm:""")
    if p.tlb:
        a(f"""s_cmp_lg_u32 s{sWave}, 3
        s_cbranch_scc1 L_notlb
        s_mov_b64 exec, 15
        v_lshlrev_b32 v22, 21, v{vL}
        buffer_load_dword v251, v22, {R(rWS)}, 0 offen offset:256
        s_mov_b64 exec, 7
        s_cmp_ge_u32 s2, 128
        s_cselect_b64 s[{sT0}:{sT1}], s[{pW2}:{pW2+1}], s[{pW1}:{pW1+1}]
        s_cselect_b64 s[{sT2}:{sT3}], s[{pWO}:{pWO+1}], s[{pWUV}:{pWUV+1}]
        global_load_dword v252, v22, s[{sT0}:{sT1}]
        s_cselect_b32 exec_lo, 7, 3
        global_load_dword v253, v22, s[{sT2}:{sT3}]
        s_mov_b64 exec, -1
L_notlb:""")
    a(f"""s_cmp_lg_u32 s{sWave}, 1
    s_cbranch_scc1 L_notw1""")
    srd(rB, pGW, SZ['gw'])
    a(f"""v_and_b32 v9, 31, v{vL}
    v_mul_u32_u24 v9, 36, v9
    v_lshrrev_b32 v10, 5, v{vL}
    v_mul_u32_u24 v11, 1152, v10
    v_add_u32 v11, v11, v9
    buffer_load_dwordx4 v[20:23], v11, {R(rA)}, 0 offen
    buffer_load_dwordx4 v[24:27], v11, {R(rA)}, 0 offen offset:16
    buffer_load_dword v28, v11, {R(rA)}, 0 offen offset:32
    buffer_load_dwordx4 v[32:35], v9, {R(rB)}, 0 offen
    buffer_load_dwordx4 v[36:39], v9, {R(rB)}, 0 offen offset:16
    buffer_load_dword v40, v9, {R(rB)}, 0 offen offset:32
    v_mov_b32 v13, 0
    v_lshlrev_b32 v10, 2, v10
    v_add_u32 v10, {L_GATE}, v10
    s_barrier
    s_waitcnt vmcnt(0)""")
    for k in range(9): a(f"v_dot2_f32_bf16 v13, v{20+k}, v{32+k}, v13")
    for m in ("quad_perm:[1,0,3,2]", "quad_perm:[2,3,0,1]", "row_half_mirror", "row_mirror"):
        a(f"v_add_f32_dpp v13, v13, v13 {m} row_mask:0xf bank_mask:0xf")
    a(f"""v_mov_b32 v14, v13
    v_permlane16_swap_b32 v13, v14
    v_add_f32 v13, v13, v14
    v_mul_f32 v13, {f2u(-math.log2(math.e))}, v13
    v_exp_f32 v13, v13
    v_add_f32 v13, 1.0, v13
    v_rcp_f32 v13, v13
    ds_write_b32 v10, v13
    s_waitcnt lgkmcnt(0)
    s_cmp_ge_u32 s2, 128
    s_cbranch_scc1 L_Y_main
    s_branch L_X_main""")
    a.label("L_notw1")
    a(f"""s_barrier
    s_waitcnt vmcnt(0)
    s_cmp_ge_u32 s2, 128
    s_cbranch_scc1 L_Y_main
    s_branch L_X_main""")

    a.label("L_X_w47")
    zstamps()
    masks()
    a("v_mov_b32 v9, v19")
    if p.xg < 0: epoch_wait()
    if p.diag == 2: a(f"s_mov_b32 s{sStamp+10}, s{sQ+6}\ns_mov_b32 s{sStamp+12}, s{sQ+8}")
    a(f"""s_lshl_b32 s{sT0}, s{sH}, 13
    s_lshl_b32 s{sT1}, s{sT2}, 8
    s_add_u32 s{sT0}, s{sT0}, s{sT1}
    s_add_u32 s{sT0}, s{sT0}, {QPL if p.fast else QP}
    s_add_u32 s{sT1}, s{sT0}, 4096
    v_lshlrev_b32 v24, 10, v{vG}
    v_lshl_add_u32 v24, v{vJ}, 4, v24""")
    a(f"""s_lshr_b32 s{sT3}, s{sT2}, 1
    s_lshl_b32 s{sT3}, s{sT3}, 8
    s_bitcmp1_b32 s{sT2}, 0
    s_cselect_b32 vcc_lo, 8, 0
    s_add_u32 s{sT3}, s{sT3}, vcc_lo
    s_add_u32 s{sT3}, s{sT3}, {L_QV}
    v_lshlrev_b32 v25, 4, v{vJ}
    v_lshl_add_u32 v25, v{vG}, 1, v25
    v_add_u32 v25, s{sT3}, v25""")
    a(f"""s_lshl_b32 s{sT3}, s{sT2}, 13
    v_lshl_add_u32 v26, v{vJ}, 8, v9
    v_add_u32 v26, s{sT3}, v26
    v_xor_b32 v27, 64, v26
    v_xor_b32 v28, 0x80, v26
    v_xor_b32 v29, 0xc0, v26""")
    a(f"""v_lshrrev_b32 v30, 3, v{vJ}
    v_lshlrev_b32 v30, 8, v30
    v_lshl_add_u32 v30, v{vG}, 4, v30
    v_add_u32 v30, {L_QV}, v30""")
    a(f"""v_and_b32 v31, 31, v{vL}
    s_lshl_b32 s{sT3}, s{sT2}, 5
    v_add_u32 v31, s{sT3}, v31
    v_bfe_u32 v32, v31, 3, 3
    v_mul_u32_u24 v32, 37, v32
    v_add_u32 v32, s{sT[0]}, v32
    v_and_b32 v33, 7, v31
    v_lshrrev_b32 v32, v33, v32
    v_and_b32 v32, 1, v32
    v_lshlrev_b32 v32, 16, v32
    v_xor_b32 v33, 0x10000, v32
    v_lshlrev_b32 v31, 1, v31
    v_lshrrev_b32 v34, 5, v{vL}
    v_lshl_add_u32 v31, v34, 15, v31
    s_lshl_b32 s{sT3}, s{sH}, 10
    s_lshl_b32 vcc_lo, s{sJ}, 8
    s_add_u32 s{sT3}, s{sT3}, vcc_lo
    s_add_u32 s{sT3}, s{sT3}, {QL}
    v_mov_b32 v35, 0xfffe0000
    s_barrier""")
    stamp(1)
    for n in range(p.xpre, 8): wuk(n)
    a(f"s_waitcnt vmcnt({p.pollA_wait})")
    stamp(2)
    L = poll_begin()
    a(f"""buffer_load_dwordx4 v[36:39], v24, {R(rWS)}, s{sT0} offen sc1
    buffer_load_dwordx4 v[40:43], v24, {R(rWS)}, s{sT1} offen sc1
    s_waitcnt vmcnt(1)""")
    chk4(44, 36, True)
    a("s_waitcnt vmcnt(0)")
    chk4(44, 40)
    poll_end(L, 44, '0xff', ((sT0, sT1), QPL-QP))
    stamp(3)
    for tl in range(2):
        for ks in range(4):
            a(f"ds_read_b128 {V(48+16*tl+4*ks)}, v{26+ks} offset:{4096*tl}")
    for k in range(4): a(f"v_add_f32 v{36+k}, v{36+k}, v{40+k}")
    treduce(36)
    a(f"""v_cvt_pk_bf16_f32 v36, v36, v36
    ds_write_b16 v25, v36
    s_waitcnt lgkmcnt(0)
    s_barrier""")
    for ks in range(4): a(f"ds_read_b128 {V(80+4*ks)}, v30 offset:{64*ks}")
    for ks in range(4):
        a(f"s_waitcnt lgkmcnt({3-ks})")
        mfma(96, 80+4*ks, 48+4*ks, '0' if ks == 0 else None)
        mfma(100, 80+4*ks, 64+4*ks, '0' if ks == 0 else None)
    a(f"""s_mov_b32 vcc_lo, 0xffff0000
    s_mov_b32 vcc_hi, 0xffff0000
    v_cndmask_b32 v96, v96, v100, vcc
    v_mul_f32 v96, {f2u(128**-0.5*math.log2(math.e))}, v96
    v_add_u32 v96, v96, v33
    v_and_or_b32 v96, v96, v35, v32
    buffer_store_short_d16_hi v96, v31, {R(rWS)}, s{sT3} offen sc1""")
    stamp(4)

    a.label("L_X_main")
    a(f"""v_bfe_u32 v9, v{vL}, 2, 2
    v_lshl_add_u32 v134, v{vG}, 3, v9
    v_lshlrev_b32 v134, 8, v134
    v_and_b32 v11, 1, v{vG}
    v_lshl_add_u32 v9, v11, 2, v9
    v_lshlrev_b32 v9, 1, v9
    v_bfe_u32 v11, v{vL}, 1, 1
    s_lshl_b32 s{sT0}, s{sWave}, 1
    v_add_u32 v11, s{sT0}, v11
    v_xor_b32 v9, v9, v11
    v_lshl_add_u32 v134, v9, 4, v134
    v_and_b32 v9, 1, v{vL}
    v_lshl_add_u32 v134, v9, 3, v134""")
    a(f"""v_bfe_u32 v9, v{vL}, 3, 1
    v_lshlrev_b32 v120, {10 if p.cstat else 15}, v9
    v_and_b32 v11, 3, v{vL}
    v_lshl_add_u32 v120, v11, {6 if p.cstat else 11}, v120
    v_lshl_add_u32 v120, v{vG}, {4 if p.cstat else 9}, v120
    s_and_b32 s{sT2}, s{sWave}, 3
    s_lshr_b32 s{sT3}, s{sWave}, 2
    s_lshl_b32 s{sT0}, s{sT2}, {8 if p.cstat else 13}
    s_lshl_b32 s{sT1}, s{sH}, {11 if p.cstat else 4}
    s_add_u32 s{sT0}, s{sT0}, s{sT1}
    s_add_u32 s{sT0}, s{sT0}, {ST}""")
    a(f"""v_lshlrev_b32 v121, 14, v9
    v_lshl_add_u32 v121, v{vG}, 8, v121
    v_and_b32 v11, 7, v{vL}
    v_lshl_add_u32 v121, v11, 4, v121
    s_lshl_b32 s{sT1}, s{sH}, 2
    s_add_u32 s{sT1}, s{sT1}, s{sJ}
    s_lshl_b32 s{sQ+1}, s{sH}, 12
    s_lshl_b32 s{sQ+3}, s{sJ}, 8
    s_add_u32 s{sQ+1}, s{sQ+1}, s{sQ+3}
    s_add_u32 s{sQ+3}, s{sQ+1}, {CXL}
    s_add_u32 s{sQ+1}, s{sQ+1}, {CX}
    s_lshl_b32 s{sT1}, s{sT1}, 15
    s_lshl_b32 s{sQ}, s{sT2}, 12
    s_add_u32 s{sT1}, s{sT1}, s{sQ}
    s_lshl_b32 s{sQ}, s{sT3}, {7 if not p.halfo else 11}
    s_add_u32 s{sT1}, s{sT1}, s{sQ}
    s_add_u32 s{sT1}, s{sT1}, {OP}""")
    a(f"v_and_b32 v122, 1, v{vG}\nv_mul_u32_u24 v122, 0xff, v122")
    lsbtags(124, "v122")
    a(f"""v_mul_u32_u24 v122, {4*272}, v9
    v_lshl_add_u32 v122, v11, 4, v122
    v_and_b32 v123, 1, v{vG}
    v_lshl_add_u32 v122, v123, 3, v122
    s_mul_i32 s{sQ}, s{sT2}, 272
    s_lshl_b32 s{sQ+2}, s{sT3}, 7
    s_add_u32 s{sQ}, s{sQ}, s{sQ+2}
    s_add_u32 s{sQ}, s{sQ}, {L_AIMG}
    v_add_u32 v122, s{sQ}, v122""")
    a(f"""v_lshlrev_b32 v128, 5, v9
    s_lshl_b32 s{sQ}, s{sT2}, 2
    s_add_u32 s{sQ}, s{sQ}, {L_VST}
    v_add_u32 v128, s{sQ}, v128
    v_lshlrev_b32 v129, 5, v123
    v_add_u32 v129, {L_VST}, v129""")
    a(f"""v_mul_u32_u24 v130, 272, v11
    v_lshl_add_u32 v130, v{vG}, 4, v130
    v_add_u32 v130, {L_AIMG}, v130""")
    a(f"""v_lshlrev_b32 v131, 5, v{vG}
    v_lshl_add_u32 v131, v11, 2, v131
    v_lshl_add_u32 v131, v9, 6, v131
    s_lshr_b32 s{sQ}, s{sWave}, 1
    s_lshl_b32 s{sQ}, s{sQ}, 10
    s_and_b32 s{sQ+2}, s{sWave}, 1
    s_lshl_b32 s{sQ+2}, s{sQ+2}, 7
    s_add_u32 s{sQ}, s{sQ}, s{sQ+2}
    v_add_u32 v131, s{sQ}, v131
    v_and_b32 v132, 3, v{vL}
    v_mul_u32_u24 v132, 37, v132
    v_add_u32 v132, s{sT[0]}, v132""")
    a("v_mov_b32 v133, 1")
    a(f"s_mov_b32 s{sQ+4}, s{sT0}\ns_mov_b32 s{sQ+5}, s{sT1}")
    srd(rA, pX, SZ['x'])
    xoff(12)
    a(f"""s_cmp_ge_u32 s{sWave}, 4
    s_cbranch_scc1 L_X_b2
    s_barrier""")
    if p.gate >= 0:
        a(f"""s_cmp_lg_u32 s{sWave}, 0
        s_cbranch_scc1 L_X_b2
        s_lshl_b32 s{sQ}, s2, 7
        s_add_u32 s{sQ}, s{sQ}, {HG}
        s_xor_b32 s{sQ+2}, s{sQ}, {43*128}""")
        if p.gand:
            for k in range(p.gand):
                a(f"s_add_u32 s{sQ+6+k}, s2, {43*k}\ns_and_b32 s{sQ+6+k}, s{sQ+6+k}, 127\ns_lshl_b32 s{sQ+6+k}, s{sQ+6+k}, 7\ns_add_u32 s{sQ+6+k}, s{sQ+6+k}, {HG}")
            spoll_all([sQ+6+k for k in range(p.gand)], sT0)
        else:
            spoll((sQ, sQ+2))
        stamp(3)
    a.label("L_X_b2")
    a("s_barrier")
    a(f"""s_cmp_ge_u32 s{sWave}, 5
    s_cbranch_scc1 L_X_wuv""")
    vXF, vAF, vWF, vDF = 13, 20, 60, 100
    srd(rB, pW1, 0 if p.nod1 & 4 else SZ['w1'])
    a(f"s_mul_i32 s{sT1}, s{sI}, 72")
    for v in range(3): a(f"buffer_load_ushort v{vXF+v}, v12, {R(rA)}, s{sT1} offen offset:{32*v}")
    a(f"""s_mul_i32 s{sT0}, s{sI}, {36*9216}
    s_mul_i32 s{sT1}, s{sXcd}, 1152
    s_add_u32 s{sT0}, s{sT0}, s{sT1}
    s_lshl_b32 s{sT1}, s{sWave}, 8
    s_add_u32 s{sT0}, s{sT0}, s{sT1}
    v_mul_u32_u24 v10, 9216, v{vG}
    s_lshl_b32 s{sT2}, s{sXcd}, 4
    s_add_u32 s{sT2}, s{sT2}, s{sI}
    s_mul_i32 s{sT2}, s{sT2}, 4608
    s_add_u32 s{sT2}, s{sT2}, {HP}
    s_cmp_eq_u32 s{sWave}, 4
    s_cbranch_scc1 L_X_f1half
    v_lshl_add_u32 v10, v{vJ}, 4, v10""")
    for t in range(9):
        a(f"buffer_load_dwordx4 {V(vWF+4*t)}, v10, {R(rB)}, s{sT0} offen {nt}")
        if t < 8: a(f"s_add_u32 s{sT0}, s{sT0}, {4*9216}")
    slot_voff(11, False)
    a("s_waitcnt vmcnt(9)")
    for v in range(3): a(f"v_lshl_or_b32 v{vXF+v}, v{vXF+v}, 16, v{vXF+v}")
    for t in range(9): buildA(vAF+4*t, vXF+t//4, t % 4)
    for t in range(9):
        a(f"s_waitcnt vmcnt({8-t})")
        mfma(vDF, vAF+4*t, vWF+4*t, '0' if t == 0 else None)
    slot_store(vDF, sT2, False, 11)
    stamp(5)
    a("s_branch L_X_v")
    a.label("L_X_f1half")
    a(f"""v_and_b32 v9, 7, v{vJ}
    v_lshl_add_u32 v10, v9, 4, v10
    v_lshrrev_b32 v9, 3, v{vJ}
    v_mul_u32_u24 v9, {4*9216}, v9
    v_add_u32 v10, v10, v9""")
    for n in range(5):
        if n == 4: a("s_mov_b32 exec_lo, 0x00ff00ff\ns_mov_b32 exec_hi, 0x00ff00ff")
        a(f"buffer_load_dwordx4 {V(vWF+4*n)}, v10, {R(rB)}, s{sT0} offen {nt}")
        if n < 4: a(f"s_add_u32 s{sT0}, s{sT0}, {8*9216}")
    a("s_mov_b64 exec, -1")
    slot_voff(11, True)
    a("s_waitcnt vmcnt(5)")
    for v in range(3): a(f"v_lshl_or_b32 v{vXF+v}, v{vXF+v}, 16, v{vXF+v}")
    for t in range(9): buildA(vAF+4*t, vXF+t//4, t % 4)
    for n in range(5):
        a(f"s_waitcnt vmcnt({4-n})")
        mfma(vDF, vAF+8*n, vWF+4*n, '0' if n == 0 else None)
        if n < 4: mfma(vDF+4, vAF+8*n+4, vWF+4*n, '0' if n == 0 else None)
    for r in range(4): a(f"v_add_f32_dpp v{vDF+r}, v{vDF+4+r}, v{vDF+r} row_ror:8 row_mask:0xf bank_mask:0xf")
    slot_store(vDF, sT2, True, 11)
    stamp(5)
    a("s_branch L_X_v")
    a.label("L_X_wuv")
    a(f"""s_cmp_lg_u32 s{sWave}, 5
    s_cbranch_scc1 L_X_w67
    s_bfe_u32 s{sT0}, s2, 0x10004
    s_lshl_b32 s{sT0}, s{sT0}, 7
    s_add_u32 s{sT0}, s{sT0}, {HC}""")
    for k in range(p.nsamp):
        a(f"s_add_u32 s{4+k}, s2, {37*k}\ns_and_b32 s{4+k}, s{4+k}, 127\ns_lshl_b32 s{4+k}, s{4+k}, 8\ns_add_u32 s{4+k}, s{4+k}, s{sT0}")
    spoll_all([4+k for k in range(p.nsamp)], 12)
    stamp(5)
    a("s_branch L_X_v")
    a.label("L_X_w67")
    srd(rB, pWUV, 0 if p.nod1 & 8 else SZ['wuv'])
    a(f"""s_sub_u32 s{sT2}, s{sWave}, 6
    s_lshl_b32 s{sT0}, s{sJ}, 20
    s_lshl_b32 s{sT1}, s{sT2}, 16
    s_add_u32 s{sT0}, s{sT0}, s{sT1}
    s_lshl_b32 s{sT1}, s{sH}, 8
    s_add_u32 s{sT0}, s{sT0}, s{sT1}
    s_lshl_b32 s{sT1}, s{sT2}, 14
    s_add_u32 m0, s{sT1}, {L_WUV}
    v_lshlrev_b32 v9, 1, v{vG}
    v_xor_b32 v9, v9, v{vJ}
    v_lshlrev_b32 v9, 4, v9
    v_lshl_add_u32 v20, v{vG}, 17, v9
    v_xor_b32 v21, 0x80, v20""")
    for n in range(16):
        off = (64*(n & 1) + (n >> 1))*8192
        a(f"s_add_u32 s{sT1}, s{sT0}, {off}")
        a(f"buffer_load_dwordx4 v{20+((n>>1)&1)}, {R(rB)}, s{sT1} offen {nt} lds")
        if n < 15: a("s_add_u32 m0, m0, 1024")
    a("s_waitcnt vmcnt(0)")
    stamp(5)
    a.label("L_X_v")
    a("s_barrier")
    vBV = 20
    stamp(7)
    vOD = 56
    def cloads():
        a(f"buffer_load_dwordx4 v[52:55], v120, {R(rWS)}, s{sQ+4} offen sc1")
        for u in range(4): a(f"buffer_load_dwordx4 {V(vOD+4*u)}, v121, {R(rWS)}, s{sQ+5} offen offset:{1024*(u if not p.halfo else u&1)} sc1")
    cloads()
    for ks in range(4):
        for hf in range(2):
            a(f"ds_read_b64_tr_b16 {V(vBV+4*ks+2*hf, 2)}, v134 offset:{L_WUV + (32*ks+4*hf)*256}")
    if p.diag == 3:
        a(f"s_waitcnt vmcnt(4)\ns_memrealtime s[{sStamp+2}:{sStamp+3}]\ns_waitcnt vmcnt(0)\ns_memrealtime s[{sStamp+4}:{sStamp+5}]")
    Lc = a.newlabel('cchk')
    a(f"s_mov_b32 s{sCnt}, 0\ns_branch {Lc}")
    L = a.newlabel('poll'); a.label(L)
    cloads()
    a.label(Lc)
    a(f"""s_mov_b64 exec, -1
    s_waitcnt vmcnt(4)
    v_max_f32_dpp v50, v52, v52 quad_perm:[1,0,3,2] row_mask:0xf bank_mask:0xf
    v_cmp_ne_u32 vcc, s{sT[0]}, v54
    v_max_f32_dpp v50, v50, v50 quad_perm:[2,3,0,1] row_mask:0xf bank_mask:0xf
    v_cndmask_b32 v49, 0, v133, vcc""")
    allred_groups("v_max_f32", 50, 51)
    a(f"""v_sub_f32 v51, v52, v50
    v_exp_f32 v51, v51
    v_cvt_pk_bf16_f32 v51, v51, v51""")
    for u in range(4):
        buildA(72+4*u, 51, u)
    for u in range(4):
        a(f"s_waitcnt vmcnt({3-u})")
        mfma(88, 72+4*u, vOD+4*u, '0' if u == 0 else None)
        chkv(49, vOD+4*u, 124)
    a(f"""v_and_b32 v51, 0xffff0000, v51
    v_mul_f32 v51, v51, v53
    v_add_f32_dpp v51, v51, v51 quad_perm:[1,0,3,2] row_mask:0xf bank_mask:0xf
    v_add_f32_dpp v51, v51, v51 quad_perm:[2,3,0,1] row_mask:0xf bank_mask:0xf""")
    allred_groups("v_add_f32", 51, 55)
    poll_end_masked(L, 49, '0x10001')
    if p.stamp: a(f"s_mov_b32 s{sStamp+24}, s{sCnt}")
    stamp(8)
    a(f"""ds_write2_b32 v128, v50, v51 offset0:0 offset1:4
    v_cvt_pk_bf16_f32 v88, v88, v89
    v_cvt_pk_bf16_f32 v89, v90, v91
    s_mov_b32 exec_lo, 0x00ff00ff
    s_mov_b32 exec_hi, 0xff00ff00
    ds_write_b64 v122, v[88:89]
    s_mov_b64 exec, -1
    s_waitcnt lgkmcnt(0)
    s_barrier""")
    for ks in range(4): a(f"ds_read_b128 {V(56+4*ks)}, v130 offset:{64*ks}")
    a(f"ds_read_b128 v[72:75], v129\nds_read_b128 v[76:79], v129 offset:16")
    for ks in range(4):
        a(f"s_waitcnt lgkmcnt({5-ks})")
        mfma(88, 56+4*ks, vBV+4*ks, '0' if ks == 0 else None)
    a(f"""s_waitcnt lgkmcnt(0)
    v_max3_f32 v50, v72, v73, v74
    v_max_f32 v50, v50, v75""")
    for r in range(4): a(f"v_sub_f32 v{72+r}, v{72+r}, v50")
    for r in range(4): a(f"v_exp_f32 v{72+r}, v{72+r}")
    a(f"""v_mul_f32 v51, v72, v76
    v_fmac_f32 v51, v73, v77
    v_fmac_f32 v51, v74, v78
    v_fmac_f32 v51, v75, v79
    v_rcp_f32 v51, v51
    v_mul_f32 v50, v72, v88
    v_fmac_f32 v50, v73, v89
    v_fmac_f32 v50, v74, v90
    v_fmac_f32 v50, v75, v91
    v_mul_f32 v50, v50, v51
    v_mov_b32_sdwa v50, v132 dst_sel:BYTE_0 dst_unused:UNUSED_PRESERVE src0_sel:BYTE_0
    s_mov_b32 exec_hi, 0""")
    if p.fast: a(f"buffer_store_dword v50, v131, {R(rWS)}, s{sQ+3} offen")
    a(f"""buffer_store_dword v50, v131, {R(rWS)}, s{sQ+1} offen sc1
    s_mov_b64 exec, -1""")
    stamp(9)
    a(f"""s_cmp_ge_u32 s2, 72
    s_cbranch_scc1 L_X_end
    s_cmp_ge_u32 s2, 36
    s_cselect_b32 s{sT2}, 1, 0
    s_mul_i32 s{sT3}, s{sT2}, 36
    s_sub_u32 s{sT3}, s2, s{sT3}
    s_mul_i32 s{sT0}, s{sWave}, {16*4608}
    s_mul_i32 s{sT1}, s{sT2}, 2304
    s_add_u32 s{sT0}, s{sT0}, s{sT1}
    s_lshl_b32 s{sT1}, s{sT3}, 6
    s_add_u32 s{sT0}, s{sT0}, s{sT1}
    s_add_u32 s{sT0}, s{sT0}, {FP}
    v_lshrrev_b32 v9, 2, v{vL}
    v_mul_u32_u24 v10, 4608, v9
    v_and_b32 v11, 3, v{vL}
    v_lshl_add_u32 v10, v11, 4, v10
    v_lshl_add_u32 v13, v{vG}, 2, v11
    v_lshlrev_b32 v13, 5, v13
    s_lshl_b32 s{sT1}, s{sWave}, 2
    s_add_u32 s{sT1}, s{sT1}, {L_RED}
    v_add_u32 v13, s{sT1}, v13""")
    srd(rB, pB2, SZ['b2']); srd(rC, pOUT, SZ['out'])
    a(f"""s_lshl_b32 s{sT1}, s{sT3}, 2
    v_add_u32 v14, s{sT1}, v11""")
    decode_v(15, 14, 16)
    a(f"""v_bfe_u32 v14, v{vL}, 2, 2
    v_add_u32 v15, v15, v14
    v_lshlrev_b32 v15, 1, v15
    buffer_load_ushort v16, v15, {R(rB)}, 0 offen
    s_lshl_b32 s{sT1}, s{sT2}, 2
    s_add_u32 s{sT1}, s{sT1}, {L_GATE}
    v_mov_b32 v17, s{sT1}
    ds_read_b32 v17, v17
    v_lshlrev_b32 v18, 5, v{vJ}
    v_add_u32 v18, {L_RED}, v18
    s_mul_i32 s{sT2}, s{sT2}, 1152""")
    if p.outpre: a(f"buffer_load_ushort v19, v15, {R(rC)}, s{sT2} offen")
    a(f"""s_waitcnt vmcnt(0) lgkmcnt(0)
    v_lshlrev_b32 v16, 16, v16
    v_sub_f32 v17, 1.0, v17
    v_mul_f32 v16, v16, v17""")
    if p.dflag >= 3:
        for k in range(p.dsamp):
            a(f"s_add_u32 s{4+k}, s2, {(16//p.dsamp)*k}\ns_and_b32 s{4+k}, s{4+k}, 15\ns_lshl_b32 s{sQ}, s{sWave}, 4\ns_add_u32 s{4+k}, s{4+k}, s{sQ}\ns_lshl_b32 s{4+k}, s{4+k}, 8\ns_add_u32 s{4+k}, s{4+k}, {HC+64}")
        spoll_all([4+k for k in range(p.dsamp)], 12)
        stamp(6)
    elif p.dflag:
        per = 72 // p.drep
        Lf = a.newlabel('df'); Df = a.newlabel('dfd')
        a(f"""s_mul_hi_u32 s{sQ}, s2, {(1 << 32) // per + 1}
        s_lshl_b32 s{sQ}, s{sQ}, 3
        s_add_u32 s{sQ}, s{sQ}, s{sWave}
        s_mul_i32 s{sQ}, s{sQ}, {p.dstr}
        s_add_u32 s{sQ}, s{sQ}, {HD}
        s_mov_b32 s{sQ+2}, s{sT[0]}
        s_mov_b32 s{sQ+3}, s{sT[0]}
        s_mov_b32 s{sCnt}, 0
{Lf}:
        s_load_dwordx16 s[4:19], s[{rWS}:{rWS+1}], s{sQ} glc
        s_add_u32 s{sCnt}, s{sCnt}, 1
        s_cmp_ge_u32 s{sCnt}, {p.maxspin}
        s_cbranch_scc1 {Df}
        s_waitcnt lgkmcnt(0)""")
        for k in range(8): a(f"s_cmp_lg_u64 s[{4+2*k}:{5+2*k}], s[{sQ+2}:{sQ+3}]\ns_cbranch_scc1 {Lf}")
        a.label(Df)
        stamp(6)
    L = poll_begin()
    a(f"""buffer_load_dwordx4 v[20:23], v10, {R(rWS)}, s{sT0} offen sc1
    s_mov_b64 exec, -1
    s_waitcnt vmcnt(0)""")
    chk4(24, 20, True)
    poll_end_masked(L, 24, '0xff')
    stamp(10)
    treduce(20)
    a(f"""v_add_f32_dpp v20, v20, v20 row_ror:4 row_mask:0xf bank_mask:0xf
    v_add_f32_dpp v20, v20, v20 row_ror:8 row_mask:0xf bank_mask:0xf
    ds_write_b32 v13, v20
    s_waitcnt lgkmcnt(0)
    s_barrier
    s_cmp_lg_u32 s{sWave}, 0
    s_cbranch_scc1 L_X_end
    ds_read_b128 v[20:23], v18
    ds_read_b128 v[24:27], v18 offset:16
    s_waitcnt lgkmcnt(0)
    v_add_f32 v20, v20, v24
    v_add_f32 v21, v21, v25
    v_add_f32 v22, v22, v26
    v_add_f32 v23, v23, v27
    v_add_f32 v20, v20, v21
    v_add_f32 v22, v22, v23
    v_add_f32 v20, v20, v16
    v_add_f32 v20, v20, v22
    v_cvt_pk_bf16_f32 v20, v20, v20
    s_mov_b64 exec, 0xffff
    buffer_store_short v20, v15, {R(rC)}, s{sT2} offen {p.outf.replace('_',' ')}
    s_cmp_lg_u32 s2, 0
    s_cbranch_scc1 L_X_end
    s_mov_b64 exec, 1
    v_mov_b32 v21, s{sT[0]}
    v_mov_b32 v22, 0
    buffer_store_dword v21, v22, {R(rWS)}, 0 offen offset:{EPOCH} sc1""")
    a.label("L_X_end")
    stamp(11)
    finish('X')

    a.label("L_Y_main")
    vQA, vPA, vSF, vPF, vACC = 20, 36, 48, 112, 176
    vTG, vTO = 208, 212
    vQG = 216
    a(f"""s_and_b32 s{sT2}, s{sWave}, 3
    s_lshr_b32 s{sT3}, s{sWave}, 2
    v_and_b32 v9, 7, v{vJ}
    v_lshlrev_b32 v9, 1, v9
    v_lshrrev_b32 v10, 3, v{vJ}
    v_or_b32 v9, v9, v10
    v_lshlrev_b32 v9, 4, v9
    v_lshl_add_u32 v9, v{vG}, 8, v9
    v_lshl_add_u32 v9, v{vJ}, 10, v9
    s_lshl_b32 s{sT0}, s{sT2}, 14
    v_add_u32 v13, s{sT0}, v9
    s_lshl_b32 s{sT0}, s{sT3}, 14
    s_add_u32 s{sT0}, s{sT0}, {L_QIMG}
    v_add_u32 v{vQA}, s{sT0}, v9""")
    for ks in range(1, 16): a(f"v_xor_b32 v{vQA+ks}, {16*ks}, v{vQA}")
    a(f"""v_lshrrev_b32 v9, 2, v{vL}
    v_and_b32 v10, 7, v9
    v_lshlrev_b32 v10, 1, v10
    v_lshrrev_b32 v11, 3, v9
    v_or_b32 v10, v10, v11
    v_bfe_u32 v11, v{vL}, 1, 1
    v_xor_b32 v10, v10, v11
    v_lshlrev_b32 v10, 4, v10
    v_lshl_add_u32 v10, v9, 10, v10
    v_and_b32 v11, 1, v{vL}
    v_lshl_add_u32 v10, v11, 3, v10
    s_lshl_b32 s{sT0}, s{sT2}, 8
    v_add_u32 v{vPA}, s{sT0}, v10""")
    for ct in range(1, 8): a(f"v_xor_b32 v{vPA+ct}, {32*ct}, v{vPA}")
    lsbtags(vTG)
    a(f"s_bitcmp1_b32 s2, 0\ns_cselect_b32 s{sT0}, 0xff, 0")
    lsbtags(vTO, f"s{sT0}")
    a(f"s_mul_i32 s{sT0}, s{sI}, 9\nv_add_u32 v9, s{sT0}, v{vJ}")
    decode_v(14, 9, 10)
    a(f"""s_mul_i32 s{sT0}, s{sXcd}, 576
    v_add_u32 v14, s{sT0}, v14
    v_mul_u32_u24 v15, 1152, v14""")
    for t in range(9): a(f"v_readlane_b32 s{sQ+t}, v15, {t}")
    a(f"""s_bfe_u32 s{sT0}, s2, 0x10006
    s_lshl_b32 s{sT0}, s{sT0}, 15
    s_lshl_b32 s{sT1}, s{sWave}, 12
    s_add_u32 s{sT0}, s{sT0}, s{sT1}
    s_add_u32 s{sT0}, s{sT0}, {QL}
    s_add_u32 s{sT1}, s{sT1}, {L_QIMG}
    s_and_b32 vcc_lo, s{sWave}, 1
    s_lshl_b32 vcc_lo, vcc_lo, 7
    s_bfe_u32 vcc_hi, s{sWave}, 0x10001
    s_lshl_b32 vcc_hi, vcc_hi, 4
    s_or_b32 vcc_lo, vcc_lo, vcc_hi
    v_xor_b32 v16, vcc_lo, v{vL16}
    v_add_u32 v16, s{sT1}, v16
    v_xor_b32 v17, 32, v16
    v_xor_b32 v18, 64, v16
    v_xor_b32 v19, 0x60, v16
    """)
    a(f"""s_lshl_b32 s{sQ+9}, s{sT3}, 12
    s_add_u32 s{sQ+9}, s{sQ+9}, {L_SX}
    v_add_u32 v10, s{sQ+9}, v{vL16}
    s_lshl_b32 s{sQ+9}, s{sT2}, 10
    v_add_u32 v11, s{sQ+9}, v10
    v_lshlrev_b32 v12, 19, v{vG}
    v_lshl_add_u32 v12, v{vJ}, 4, v12
    s_sub_u32 s{sQ+9}, s2, 128
    s_lshl_b32 s{sT1}, s{sQ+9}, {4 if p.cstat else 9}
    v_lshlrev_b32 v15, {11 if p.cstat else 4}, v{vL}
    s_lshl_b32 vcc_lo, s{sT3}, {15 if p.cstat else 8}
    s_add_u32 s{sT1}, s{sT1}, vcc_lo
    s_add_u32 s{sT1}, s{sT1}, {ST}
    s_lshl_b32 s{sQ+10}, s{sQ+9}, 8
    s_lshl_b32 vcc_lo, s{sT3}, 21
    s_add_u32 s{sQ+10}, s{sQ+10}, vcc_lo
    s_lshl_b32 vcc_lo, s{sT2}, 15
    s_add_u32 s{sQ+10}, s{sQ+10}, vcc_lo
    s_add_u32 s{sQ+10}, s{sQ+10}, {OP}
    s_lshl_b32 s{sQ+9}, s{sQ+9}, 8
    s_lshl_b32 vcc_lo, s{sT3}, 7
    s_add_u32 s{sQ+9}, s{sQ+9}, vcc_lo
    s_add_u32 s{sQ+9}, s{sQ+9}, {HC}""")
    srd(rC, pWO, 0 if p.nod1 & 2 else SZ['wo'])
    a(f"""s_lshl_b32 s{sCK}, s{sH}, 2
    s_add_u32 s{sCK}, s{sCK}, s{sJ}
    s_sub_u32 s{sCK}, s{sCK}, 4
    s_lshl_b32 s{sCK}, s{sCK}, 2
    s_add_u32 s{sCK}, s{sCK}, s{sT2}
    s_mul_i32 s{sCK}, s{sCK}, 9216
    s_mul_i32 vcc_lo, s{sT2}, 9216
    s_add_u32 m0, vcc_lo, {L_WO}""")
    for k in range(4): a(f"v_mov_b32 v{248+k}, 0x3f803f80\nv_mov_b32 v{252+k}, s{sT[0]}")
    def qloads():
        for n in range(4): a(f"buffer_load_dwordx4 {V(vQG+4*n)}, v{vL16}, {R(rWS)}, s{sT0} offen offset:{1024*n} sc1")
    for T in range(4):
        if T == p.qat: qloads()
        a(f"s_waitcnt vmcnt({12-4*T + (4 if T >= p.qat else 0)})\ns_barrier")
        if T == 0: stamp(2)
        if T == 3:
            stamp(3)
            if p.qat == 4: qloads()
        Ls = a.newlabel('nos')
        a(f"s_cmp_lg_u32 s{sT2}, {T}\ns_cbranch_scc1 {Ls}")
        for ks in range(16):
            a(f"v_xor_b32 v9, {16*ks}, v13\nds_read_b128 {V(vSF+4*ks)}, v9")
        a.label(Ls)
        for ct in range(8):
            a(f"ds_read_b64_tr_b16 {V(vPF+8*ct+2*T, 2)}, v{vPA+ct} offset:{16384*T}")
    Lq = a.newlabel('qchk')
    a(f"s_mov_b32 s{sCnt}, 0\ns_branch {Lq}")
    L = a.newlabel('poll'); a.label(L)
    qloads()
    a("s_mov_b64 exec, -1")
    a.label(Lq)
    for n in range(4):
        a(f"s_waitcnt vmcnt({3-n})")
        chkv(9, vQG+4*n, vTG, n == 0)
    poll_end_masked(L, 9, '0x10001', p.bsleep)
    if p.stamp: a(f"s_mov_b32 s{sStamp+24}, s{sCnt}")
    stamp(4)
    for n in range(4): a(f"ds_write_b128 v{16+n}, {V(vQG+4*n)} offset:{1024*n}")
    a(f"s_mov_b32 s{sT0}, s{sQ+10}\nv_mov_b32 v9, 0x10001")
    a("s_waitcnt lgkmcnt(0)\ns_barrier")
    stamp(5)
    def hint(pos):
        if p.hintpos == pos:
            a(f"""s_cmp_eq_u32 s{sT2}, 3
            s_cselect_b32 exec_lo, 0xf, 0
            s_mov_b32 exec_hi, 0
            buffer_store_dwordx4 v[252:255], v{vL16}, {R(rWS)}, s{sQ+9} offen sc1
            s_mov_b64 exec, -1""")
    NQ = 8
    for ks in range(p.qpre): a(f"ds_read_b128 {V(vQG+4*ks)}, v{vQA+ks}")
    a(f"""s_cmp_eq_u32 s{sT3}, 0
    s_cbranch_scc1 L_Y_s""")
    def wodma(n):
        if n in (4, 8): a(f"s_addk_i32 m0, 4096\ns_add_u32 s{sCK}, s{sCK}, 4096")
        a(f"buffer_load_dwordx4 v{vL16}, {R(rC)}, s{sCK} offen offset:{1024*(n%4)} {nt} lds")
    def worest():
        if p.wopre and not p.wofirst:
            for n in range(p.won, 9): wodma(n)
    if p.wopre and not p.wofirst:
        for n in range(p.won): wodma(n)
    a("s_barrier")
    if p.prio: a(f"s_setprio {p.prio}")
    a.label("L_Y_s")
    for ks in range(p.qpre, NQ): a(f"ds_read_b128 {V(vQG+4*ks)}, v{vQA+ks}")
    for ks in range(16):
        rem = min(15, ks+NQ-1) - ks
        a(f"s_waitcnt lgkmcnt({rem})")
        mfma(vACC, vSF+4*ks, vQG+4*(ks % NQ), '0' if ks == 0 else None)
        if ks + NQ < 16: a(f"ds_read_b128 {V(vQG+4*(ks%NQ))}, v{vQA+ks+NQ}")
    a(f"""ds_write_b128 v11, {V(vACC)}
    s_waitcnt lgkmcnt(0)
    s_barrier""")
    stamp(6)
    vS = 48
    for T in range(4): a(f"ds_read_b128 {V(vS+4*T)}, v10 offset:{1024*T}")
    hint(0)
    a(f"""s_waitcnt lgkmcnt(2)
    v_max3_f32 v64, v{vS}, v{vS+1}, v{vS+2}
    v_max3_f32 v65, v{vS+3}, v{vS+4}, v{vS+5}
    v_max3_f32 v64, v64, v{vS+6}, v{vS+7}
    s_waitcnt lgkmcnt(0)
    v_max3_f32 v65, v65, v{vS+8}, v{vS+9}
    v_max3_f32 v64, v64, v{vS+10}, v{vS+11}
    v_max3_f32 v65, v65, v{vS+12}, v{vS+13}
    v_max3_f32 v64, v64, v{vS+14}, v{vS+15}
    v_max_f32 v64, v64, v65""")
    allred_groups("v_max_f32", 64, 65)
    for k in range(8): a(f"v_pk_add_f32 v[{vS+2*k}:{vS+2*k+1}], v[{vS+2*k}:{vS+2*k+1}], v[64:65] op_sel_hi:[1,0] neg_lo:[0,1] neg_hi:[0,1]")
    for k in range(16): a(f"v_exp_f32 v{vS+k}, v{vS+k}")
    hint(1)
    if p.diag == 1: stamp(1)
    a(f"""s_cmp_eq_u32 s{sT3}, 0
    s_cbranch_scc0 L_Y_p
    s_barrier""")
    a.label("L_Y_p")
    vP = 72
    for k in range(8): a(f"v_cvt_pk_bf16_f32 v{vP+k}, v{vS+2*k}, v{vS+2*k+1}")
    hint(2)
    if p.diag == 1: stamp(4)
    a(f"""s_cmp_eq_u32 s{sT2}, 0
    s_cbranch_scc0 L_Y_nol""")
    mfma(68, 248, vP, '0')
    mfma(68, 248, vP+4)
    a.label("L_Y_nol")
    def epi(k):
        for r in range(4): a(f"v_cvt_pk_bf16_f32 v{80+4*r+k}, v{vACC+8*k+r}, v{vACC+8*k+4+r}")
        for r in range(4): a(f"v_bfi_b32 v{80+4*r+k}, v9, v{vTO+k}, v{80+4*r+k}")
    for k in range(4):
        mfma(vACC+8*k, vP, vPF+16*k, '0')
        mfma(vACC+8*k+4, vP, vPF+16*k+8, '0')
        mfma(vACC+8*k, vP+4, vPF+16*k+4)
        mfma(vACC+8*k+4, vP+4, vPF+16*k+12)
        if k == 1:
            a(f"""v_mov_b32 v66, s{sT[0]}
            v_mov_b32 v65, v68
            s_cmp_eq_u32 s{sT2}, 0
            s_cselect_b32 exec_lo, 0xffff, 0
            s_mov_b32 exec_hi, 0
            buffer_store_dwordx4 v[64:67], v15, {R(rWS)}, s{sT1} offen sc1
            s_mov_b64 exec, -1""")
        if k >= 2: epi(k-2)
    if p.diag == 1: stamp(2)
    epi(2)
    if p.diag == 1: stamp(3)
    for r in range(4):
        a(f"v_cvt_pk_bf16_f32 v{83+4*r}, v{vACC+24+r}, v{vACC+28+r}")
        a(f"v_bfi_b32 v{83+4*r}, v9, v{vTO+3}, v{83+4*r}")
        if p.halfo: a("s_mov_b32 exec_lo, 0x00ff00ff\ns_mov_b32 exec_hi, 0x00ff00ff")
        a(f"buffer_store_dwordx4 {V(80+4*r)}, v12, {R(rWS)}, s{sT0} offen sc1")
        if p.halfo: a("s_mov_b64 exec, -1")
        if r < 3: a(f"s_add_u32 s{sT0}, s{sT0}, 0x20000")
    hint(3)
    stamp(7)
    if p.odrain: a("s_waitcnt vmcnt(0)")
    if p.diag == 3: a(f"s_memrealtime s[{sStamp+2}:{sStamp+3}]")
    if p.prio: a("s_setprio 0")
    a(f"""s_cmp_ge_u32 s{sWave}, 5
    s_cbranch_scc1 L_Y_fg""")
    srd(rB, pW2, 0 if p.nod1 & 1 else SZ['w2'])
    a("s_barrier")
    vW2, vWO, vA2, vD2 = 100, 136, 20, 60
    a(f"""s_lshl_b32 s{sT0}, s{sH}, 2
    s_add_u32 s{sT0}, s{sT0}, s{sJ}
    s_sub_u32 s{sT0}, s{sT0}, 4
    s_mul_i32 s{sT0}, s{sT0}, {32*1152}
    v_mul_u32_u24 v10, 1152, v{vG}
    s_lshl_b32 s{sT1}, s{sWave}, 8
    v_add_u32 v10, s{sT1}, v10
    s_cmp_eq_u32 s{sWave}, 4
    s_cbranch_scc1 L_Y_half
    v_lshl_add_u32 v10, v{vJ}, 4, v10""")
    for t in range(9): a(f"buffer_load_dwordx4 {V(vW2+4*t)}, v10, {R(rB)}, s{sQ+t} offen {nt}")
    a(f"v_mul_u32_u24 v9, {7*1152}, v{vG}\nv_add_u32 v10, v10, v9")
    for t in range(8):
        if p.wopre: break
        a(f"buffer_load_dwordx4 {V(vWO+4*t)}, v10, {R(rC)}, s{sT0} offen {nt}")
        if t < 7: a(f"s_add_u32 s{sT0}, s{sT0}, 1152")
    slot_voff(11, False)
    a("s_branch L_Y_o2")
    a.label("L_Y_half")
    worest()
    a(f"""v_and_b32 v9, 7, v{vJ}
    v_lshl_add_u32 v10, v9, 4, v10
    s_mov_b32 vcc_lo, 0xff00ff00
    s_mov_b32 vcc_hi, 0xff00ff00""")
    for n in range(5):
        if n < 4:
            a(f"v_mov_b32 v13, s{sQ+2*n}\nv_mov_b32 v14, s{sQ+2*n+1}\nv_cndmask_b32 v13, v13, v14, vcc\nv_add_u32 v13, v13, v10")
            a(f"buffer_load_dwordx4 {V(vW2+4*n)}, v13, {R(rB)}, 0 offen {nt}")
        else:
            a("s_mov_b32 exec_lo, 0x00ff00ff\ns_mov_b32 exec_hi, 0x00ff00ff")
            a(f"buffer_load_dwordx4 {V(vW2+4*n)}, v10, {R(rB)}, s{sQ+8} offen {nt}")
            a("s_mov_b64 exec, -1")
    a(f"v_lshrrev_b32 v9, 3, v{vJ}\nv_mul_u32_u24 v9, 1152, v9\nv_add_u32 v10, v10, v9")
    a(f"v_mul_u32_u24 v9, {7*1152}, v{vG}\nv_add_u32 v10, v10, v9")
    for n in range(4):
        if p.wopre: break
        a(f"buffer_load_dwordx4 {V(vWO+4*n)}, v10, {R(rC)}, s{sT0} offen {nt}")
        if n < 3: a(f"s_add_u32 s{sT0}, s{sT0}, {2*1152}")
    if p.wopre: a("s_waitcnt vmcnt(5)")
    slot_voff(11, True)
    a.label("L_Y_o2")
    a(f"""v_bfe_u32 v9, v{vL}, 3, 1
    v_and_b32 v13, 3, v{vL}
    v_lshl_add_u32 v13, v13, 2, v{vG}
    v_lshlrev_b32 v13, 2, v13
    v_mul_u32_u24 v14, 192, v9
    v_add_u32 v14, v14, v13
    v_add_u32 v14, {L_HX}, v14
    v_lshlrev_b32 v15, 2, v{vL}
    v_lshlrev_b32 v16, 2, v9
    v_add_u32 v16, {L_GATE}, v16
    ds_read_b32 v16, v16
    v_and_b32 v17, 3, v{vL}
    v_mul_u32_u24 v17, 37, v17
    v_add_u32 v17, s{sT[0]}, v17
    s_lshl_b32 s{sT0}, s{sH}, 12
    s_sub_u32 s{sT1}, s{sJ}, 4
    s_lshl_b32 s{sT1}, s{sT1}, 10
    s_add_u32 s{sT0}, s{sT0}, s{sT1}
    s_add_u32 s{sT0}, s{sT0}, {CXL if p.fast else CX}
    s_sub_u32 s{sT2}, s2, 128
    s_lshr_b32 s{sT3}, s{sT2}, 4
    s_mul_i32 s{sT3}, s{sT3}, {p.dstr}
    s_and_b32 vcc_lo, s{sT2}, 15
    s_lshl_b32 vcc_lo, vcc_lo, 2
    s_add_u32 s{sT3}, s{sT3}, vcc_lo
    s_add_u32 s{sT3}, s{sT3}, {HD}
    v_mul_u32_u24 v18, {8*p.dstr}, v{vL}
    s_mul_i32 s{sT2}, s{sT2}, 4608
    s_add_u32 s{sT2}, s{sT2}, {FP}
    v_add_u32 v10, {L_WO}, v10
    s_barrier""")
    stamp(8)
    for v in range(3): a(f"ds_read_b32 v{68+v}, v14 offset:{64*v}")
    a("s_waitcnt lgkmcnt(0)")
    for t in range(9): buildA(vA2+4*t, 68+t//4, t % 4)
    a(f"""s_cmp_eq_u32 s{sWave}, 4
    s_cbranch_scc1 L_Y_half2""")
    if p.wopre:
        for t in range(8): a(f"ds_read_b128 {V(vWO+4*t)}, v10 offset:{1152*t}")
    for t in range(9):
        a(f"s_waitcnt vmcnt({(8 if p.wopre else 16)-t})")
        mfma(vD2, vA2+4*t, vW2+4*t, '0' if t == 0 else None)
    a("s_branch L_Y_o3")
    a.label("L_Y_half2")
    if p.wopre:
        for n in range(4): a(f"ds_read_b128 {V(vWO+4*n)}, v10 offset:{2304*n}")
    for n in range(5):
        a(f"s_waitcnt vmcnt({(4 if p.wopre else 8)-n})")
        mfma(vD2, vA2+8*n, vW2+4*n, '0' if n == 0 else None)
        if n < 4: mfma(vD2+4, vA2+8*n+4, vW2+4*n, '0' if n == 0 else None)
    a.label("L_Y_o3")
    a("s_waitcnt lgkmcnt(0)")
    stamp(9)
    L = poll_begin()
    for cq in range(4): a(f"buffer_load_dword v{72+cq}, v15, {R(rWS)}, s{sT0} offen offset:{256*cq} sc1")
    a("s_waitcnt vmcnt(0)")
    a("v_xor_b32 v76, v17, v72")
    for cq in range(1, 4): a(f"v_bitop3_b32 v76, v76, v{72+cq}, v17 bitop3:0xf6")
    poll_end(L, 76, '0xff', ((sT0,), CXL-CX))
    stamp(10)
    def dflag():
        if p.dflag >= 3:
            a(f"""s_cmp_eq_u32 s{sWave}, 1
            s_cselect_b32 exec_lo, 0xffff, 0
            s_mov_b32 exec_hi, 0
            buffer_store_dword v252, v15, {R(rWS)}, s{sQ+9} offen offset:64 sc1
            s_mov_b64 exec, -1""")
            return
        a(f"""s_cmp_eq_u32 s{sWave}, 1
        s_cselect_b32 exec_lo, {((1 << p.drep) - 1) & 0xffffffff}, 0
        s_cselect_b32 exec_hi, {((1 << p.drep) - 1) >> 32}, 0
        buffer_store_dword v252, v18, {R(rWS)}, s{sT3} offen sc1
        s_mov_b64 exec, -1""")
    if p.dflag in (1, 3): dflag()
    a(f"""v_add_f32 v72, v72, v73
    v_add_f32 v74, v74, v75
    v_add_f32 v72, v72, v74
    v_mul_f32 v72, v72, v16
    v_cvt_pk_bf16_f32 v72, v72, v72
    v_mov_b32 v73, v72
    v_mov_b32 v74, v72
    v_mov_b32_dpp v73, v72 row_shr:4 row_mask:0xf bank_mask:0xa
    v_mov_b32_dpp v74, v72 row_shl:4 row_mask:0xf bank_mask:0x5
    s_cmp_eq_u32 s{sWave}, 4
    s_cbranch_scc1 L_Y_half3""")
    for t in range(8):
        buildA(vA2+4*t, 73+t//4, t % 4)
        if t > 0: mfma(vD2, vA2+4*(t-1), vWO+4*(t-1))
    mfma(vD2, vA2+28, vWO+28)
    slot_store(vD2, sT2, False, 11)
    if p.dflag in (2, 4): dflag()
    a("s_branch L_Y_end")
    a.label("L_Y_half3")
    for t in range(8):
        buildA(vA2+4*t, 73+t//4, t % 4)
        if t > 0: mfma(vD2+4*((t-1) & 1), vA2+4*(t-1), vWO+4*((t-1)//2))
    mfma(vD2+4, vA2+28, vWO+12)
    for r in range(4): a(f"v_add_f32_dpp v{vD2+r}, v{vD2+4+r}, v{vD2+r} row_ror:8 row_mask:0xf bank_mask:0xf")
    slot_store(vD2, sT2, True, 11)
    a("s_branch L_Y_end")
    a.label("L_Y_fg")
    a(f"""s_cmp_eq_u32 s{sWave}, 7
    s_cbranch_scc1 L_Y_fg7""")
    srd(rB, pB1, SZ['b1'])
    a(f"""s_sub_u32 s{sT2}, s{sWave}, 5
    s_mul_i32 s{sT0}, s{sXcd}, {16*4608}
    s_mul_i32 s{sT1}, s{sT2}, 2304
    s_add_u32 s{sT0}, s{sT0}, s{sT1}
    s_mul_i32 s{sT1}, s{sI}, 144
    s_add_u32 s{sT0}, s{sT0}, s{sT1}
    s_add_u32 s{sT0}, s{sT0}, {HP}
    s_add_u32 s{sQ}, s{sT0}, {4*4608}
    s_add_u32 s{sQ+1}, s{sT0}, {8*4608}
    s_add_u32 s{sQ+2}, s{sT0}, {12*4608}
    v_mul_u32_u24 v10, 4608, v{vG}
    v_lshl_add_u32 v10, v{vJ}, 4, v10
    v_add_u32 v14, v14, v{vG}
    v_lshlrev_b32 v14, 1, v14
    s_lshl_b32 s{sT1}, s{sT2}, 2
    s_add_u32 s{sT1}, s{sT1}, {L_GATE}
    v_mov_b32 v16, s{sT1}
    ds_read_b32 v16, v16
    s_mul_i32 s{sT1}, s{sT2}, 192
    s_add_u32 s{sT1}, s{sT1}, {L_HX}
    v_lshl_add_u32 v17, v{vJ}, 2, v{vG}
    v_lshlrev_b32 v17, 2, v17
    v_add_u32 v17, s{sT1}, v17
    s_mov_b32 exec_lo, 0x01ff01ff
    s_mov_b32 exec_hi, 0x01ff01ff
    buffer_load_ushort v15, v14, {R(rB)}, 0 offen""")
    def floads():
        for k, s in enumerate((sT0, sQ, sQ+1, sQ+2)):
            a(f"buffer_load_dwordx4 {V(20+4*k)}, v10, {R(rWS)}, s{s} offen sc1")
    floads()
    Lf = a.newlabel('fchk')
    a(f"s_barrier\ns_mov_b64 exec, -1")
    worest()
    a(f"s_mov_b32 exec_lo, 0x01ff01ff\ns_mov_b32 exec_hi, 0x01ff01ff\ns_mov_b32 s{sCnt}, 0\ns_branch {Lf}")
    L = a.newlabel('poll'); a.label(L)
    floads()
    a.label(Lf)
    for k in range(4):
        a(f"s_waitcnt vmcnt({3-k})")
        chk4(36, 20+4*k, k == 0)
    poll_end(L, 36, '0xff')
    stamp(8)
    a("s_mov_b64 exec, -1")
    for k in range(4): a(f"v_add_f32 v{20+k}, v{20+k}, v{24+k}\nv_add_f32 v{28+k}, v{28+k}, v{32+k}")
    for k in range(4): a(f"v_add_f32 v{20+k}, v{20+k}, v{28+k}")
    treduce(20)
    c1 = -2*math.sqrt(2/math.pi)*math.log2(math.e)
    a(f"""v_lshlrev_b32 v15, 16, v15
    v_add_f32 v20, v20, v15
    v_mul_f32 v21, v20, v20
    v_mov_b32 v22, {f2u(c1)}
    v_fmac_f32 v22, {f2u(c1*0.044715)}, v21
    v_mul_f32 v21, v22, v20
    v_exp_f32 v21, v21
    v_add_f32 v21, 1.0, v21
    v_rcp_f32 v21, v21
    s_waitcnt lgkmcnt(0)
    v_sub_f32 v16, 1.0, v16
    v_mul_f32 v20, v20, v21
    v_mul_f32 v20, v20, v16
    v_cvt_pk_bf16_f32 v20, v20, v20
    s_mov_b32 exec_lo, 0x01ff01ff
    s_mov_b32 exec_hi, 0x01ff01ff
    ds_write_b32 v17, v20
    s_mov_b64 exec, -1
    s_waitcnt lgkmcnt(0)""")
    a("s_branch L_Y_fgend")
    a.label("L_Y_fg7")
    a("s_barrier")
    worest()
    a("s_waitcnt vmcnt(0)")
    a.label("L_Y_fgend")
    a("s_barrier")
    a.label("L_Y_end")
    stamp(11)
    finish('Y')
    a.label("L_exit")
    a("s_endpgm")
    return a.finalize()

HEADER = open('gated_mix__compressed_kv_cla__dense_activation_gelu__decode.s.ref').read().split('; Override')[0]

def emit(path, p=P):
    body = build(p)
    s = HEADER + f"""; @launch grid=(256,1,1) block=(512,1,1) lds={LDS_BYTES}
.amdgcn_target "amdgcn-amd-amdhsa--gfx950"
.text
.globl {KNAME}
.p2align 8
.type {KNAME},@function
{KNAME}:
{body}.section .rodata,"a"
.p2align 6
.amdhsa_kernel {KNAME}
  .amdhsa_next_free_vgpr 256
  .amdhsa_next_free_sgpr 102
  .amdhsa_accum_offset 256
  .amdhsa_group_segment_fixed_size 0
  .amdhsa_kernarg_size 120
  .amdhsa_user_sgpr_count 2
  .amdhsa_user_sgpr_kernarg_segment_ptr 1
  .amdhsa_system_sgpr_workgroup_id_x 1
.end_amdhsa_kernel
"""
    open(path, 'w').write(s)

if __name__ == '__main__':
    out = sys.argv[1]
    for kv in sys.argv[2:]:
        k, v = kv.split('=')
        setattr(P, k, type(getattr(P, k))(v))
    emit(out)
```

```python
import sys, struct, math
from asmlib import Asm

KNAME = "gated_mix__compressed_kv_cla__dense_activation_gelu__decode_kernel"

def f2u(x): return struct.unpack('<I', struct.pack('<f', x))[0]

class P:
    stamp = 0
    nt = "nt"
    pollA_wait = 4
    maxspin = 200000
    prefetch = 1
    wsoff = 0
    fast = 1
    nlocal = 256
    hintpos = 3
    diag = 0
    xpre = 8
    ypre = 0
    gate = 11
    qat = 3
    bsleep = 0
    tlb = 1
    cstat = 1
    dflag = 3
    drep = 18
    dsamp = 2
    dstr = 2304
    wopre = 1
    won = 9
    xg = -1
    xgn = 2
    gand = 0
    wofirst = 1
    odrain = 0
    warm = 1
    halfo = 0
    outf = ""
    outpre = 0
    wopos = 0
    w2gate = 0
    uv1 = 4
    xord = 1
    wosplit = 20
    kint = 1
    b0pos = 1
    nsamp = 4
    need = 0
    prio = 1
    only = ""
    b0 = 1
    wqdma = 0
    nod1 = 0
    sparseC = 1
    qpre = 4
    enc = -1
    encwave = 4

EPOCH, QP, QL, ST, CX, HP, FP, OP, STAMP = 0, 0x10000, 0x50000, 0x60000, 0x70000, 0x90000, 0x120000, 0x200000, 0x800000
QPL, CXL, HC, HG, HD, HK, FP2 = 0x600000, 0x640000, 0x660000, 0x670000, 0x678000, 0x680000, 0x690000
WS_REC = 0x1000000
L_CKV, L_QIMG, L_SX, L_HX, L_GATE = 0, 65536, 98304, 106496, 107008
L_WQ = 0x18000 - 20480
L_WUK, L_WUV, L_QV, L_AIMG, L_VST, L_RED = 0, 32768, 65536, 66048, 68352, 68480
L_WUVY = 107520
LDS_BYTES = 107520 + 32768
L_AIMGY, L_VSTY, L_REDY = 98304, 100608, 100736
pX, pCKV, pWQ, pWUK, pWUV, pWO, pW1, pB1, pW2, pB2, pGW, pOUT, pWS = 4, 6, 8, 10, 12, 14, 18, 20, 22, 24, 26, 28, 32
sWave, sH, sJ, sI, sXcd, sTag = 3, 34, 35, 56, 57, 58
sT = [58, 59, 60, 61]
rA, rB, rC, rWS = 36, 40, 44, 48
sT0, sT1, sT2, sT3 = 52, 53, 54, 55
sCnt = 62
sQ = 64
sStamp = 76
vL, vJ, vG, vM, vL16 = 1, 2, 3, 4, 8
SZ = dict(x=2304, ckv=8388608, wq=4718592, wuk=4194304, wuv=4194304, wo=4718592, w1=5308416, w2=5308416, b1=9216, b2=1152, gw=1152, out=2304)

def build(p=P):
    a = Asm()
    nt = p.nt
    def srd(r, ptr, size):
        if ptr == pWS and p.wsoff:
            a(f"s_add_u32 s{r}, s{ptr}, {p.wsoff}\ns_addc_u32 s{r+1}, s{ptr+1}, 0\ns_mov_b32 s{r+2}, {size}\ns_mov_b32 s{r+3}, 0x20000")
            return
        a(f"s_mov_b32 s{r}, s{ptr}\ns_mov_b32 s{r+1}, s{ptr+1}\ns_mov_b32 s{r+2}, {size}\ns_mov_b32 s{r+3}, 0x20000")
    def R(r): return f"s[{r}:{r+3}]"
    def V(r, n=4): return f"v[{r}:{r+n-1}]"
    def stamp(k):
        if p.only and k not in [int(x) for x in p.only.split('.')]: return
        if p.stamp: a(f"s_memrealtime s[{sStamp+2*k}:{sStamp+2*k+1}]")
    def buildA(dst, x, u):
        for r in range(4):
            a(f"v_and_b32_dpp v{dst+r}, v{x}, v{vM+r} quad_perm:[{u},{u},{u},{u}] row_mask:0xf bank_mask:0xf")
    def mfma(d, A, B, c=None):
        a(f"v_mfma_f32_16x16x32_bf16 {V(d)}, {V(A)}, {V(B)}, {V(d) if c is None else c}")
    def tag4(d):
        for k in range(4):
            a(f"v_mov_b32_sdwa v{d+k}, s{sT[k]} dst_sel:BYTE_0 dst_unused:UNUSED_PRESERVE src0_sel:BYTE_0")
    def chk4(acc, d, first=False):
        for k in range(4):
            if first and k == 0: a(f"v_xor_b32 v{acc}, s{sT[0]}, v{d}")
            else: a(f"v_bitop3_b32 v{acc}, v{acc}, v{d+k}, s{sT[k]} bitop3:0xf6")
    def chkv(acc, d, t, first=False):
        for k in range(4):
            if first and k == 0: a(f"v_xor_b32 v{acc}, v{t}, v{d}")
            else: a(f"v_bitop3_b32 v{acc}, v{acc}, v{d+k}, v{t+k} bitop3:0xf6")
    def poll_begin():
        L = a.newlabel('poll')
        a(f"s_mov_b32 s{sCnt}, 0")
        a.label(L)
        return L
    def poll_end(L, acc, mask, fb=None, lim=None):
        D = a.newlabel('done')
        a(f"v_and_b32 v{acc}, {mask}, v{acc}\nv_cmp_ne_u32 vcc, 0, v{acc}\ns_add_u32 s{sCnt}, s{sCnt}, 1")
        a(f"s_cbranch_vccz {D}")
        if fb and p.fast:
            regs, delta = fb
            a(f"s_cmp_eq_u32 s{sCnt}, {p.nlocal}\ns_cselect_b32 vcc_lo, {delta}, 0")
            for r in regs: a(f"s_sub_u32 s{r}, s{r}, vcc_lo")
        a(f"s_cmp_lt_u32 s{sCnt}, {lim or p.maxspin}\ns_cbranch_scc1 {L}")
        a.label(D)
    def poll_end_masked(L, acc, mask, sleep=0):
        D = a.newlabel('done')
        a(f"""v_and_b32 v{acc}, {mask}, v{acc}
        v_cmp_ne_u32 vcc, 0, v{acc}
        s_add_u32 s{sCnt}, s{sCnt}, 1
        s_cbranch_vccz {D}
        s_wqm_b64 exec, vcc""")
        if sleep: a(f"s_sleep {sleep}")
        a(f"""s_cmp_lt_u32 s{sCnt}, {p.maxspin}
        s_cbranch_scc1 {L}
        s_mov_b64 exec, -1""")
        a.label(D)
    def spoll_cnt(off_regs, tmp, need):
        L = a.newlabel('sp'); D = a.newlabel('spd')
        a(f"s_mov_b32 s{sCnt}, 0")
        a.label(L)
        for k, r in enumerate(off_regs): a(f"s_load_dword s{tmp+k}, s[{rWS}:{rWS+1}], s{r} glc")
        a(f"s_add_u32 s{sCnt}, s{sCnt}, 1\ns_cmp_ge_u32 s{sCnt}, {p.maxspin}\ns_cbranch_scc1 {D}\ns_mov_b32 vcc_lo, 0\ns_waitcnt lgkmcnt(0)")
        for k, r in enumerate(off_regs): a(f"s_cmp_eq_u32 s{tmp+k}, s{sT[0]}\ns_addc_u32 vcc_lo, vcc_lo, 0")
        a(f"s_cmp_lt_u32 vcc_lo, {need}\ns_cbranch_scc1 {L}")
        a.label(D)
        a("s_waitcnt lgkmcnt(0)")
    def spoll_all(off_regs, tmp):
        L = a.newlabel('sp'); D = a.newlabel('spd')
        a(f"s_mov_b32 s{sCnt}, 0")
        a.label(L)
        for k, r in enumerate(off_regs): a(f"s_load_dword s{tmp+k}, s[{rWS}:{rWS+1}], s{r} glc")
        a(f"s_add_u32 s{sCnt}, s{sCnt}, 1\ns_cmp_ge_u32 s{sCnt}, {p.maxspin}\ns_cbranch_scc1 {D}\ns_waitcnt lgkmcnt(0)")
        for k, r in enumerate(off_regs): a(f"s_cmp_lg_u32 s{tmp+k}, s{sT[0]}\ns_cbranch_scc1 {L}")
        a.label(D)
        a("s_waitcnt lgkmcnt(0)")
    def spoll(off_regs):
        L = a.newlabel('sp'); D = a.newlabel('spd')
        a(f"s_mov_b32 s{sCnt}, 0")
        a.label(L)
        for k, r in enumerate(off_regs): a(f"s_load_dword s{sT0+k}, s[{rWS}:{rWS+1}], s{r} glc")
        a(f"s_add_u32 s{sCnt}, s{sCnt}, 1\ns_waitcnt lgkmcnt(0)")
        for k, r in enumerate(off_regs): a(f"s_cmp_eq_u32 s{sT0+k}, s{sT[0]}\ns_cbranch_scc1 {D}")
        a(f"s_cmp_lt_u32 s{sCnt}, {p.maxspin}\ns_cbranch_scc1 {L}")
        a.label(D)
    def treduce(r):
        a(f"v_permlane32_swap_b32 v{r}, v{r+2}\nv_permlane32_swap_b32 v{r+1}, v{r+3}")
        a(f"v_add_f32 v{r}, v{r}, v{r+2}\nv_add_f32 v{r+1}, v{r+1}, v{r+3}")
        a(f"v_permlane16_swap_b32 v{r}, v{r+1}\nv_add_f32 v{r}, v{r}, v{r+1}")
    def allred_groups(op, r, t):
        a(f"v_mov_b32 v{t}, v{r}\nv_permlane32_swap_b32 v{r}, v{t}\n{op} v{r}, v{r}, v{t}")
        a(f"v_mov_b32 v{t}, v{r}\nv_permlane16_swap_b32 v{r}, v{t}\n{op} v{r}, v{r}, v{t}")
    def masks():
        a(f"""v_and_b32 v9, 3, v{vL}
        v_lshlrev_b32 v9, 4, v9
        v_mov_b32 v10, 0xffff
        v_mov_b32 v11, 0
        v_lshlrev_b64 v[10:11], v9, v[10:11]
        v_and_b32 v9, 4, v{vL}
        v_cmp_eq_u32 vcc, 0, v9
        v_cndmask_b32 v{vM}, 0, v10, vcc
        v_cndmask_b32 v{vM+1}, 0, v11, vcc
        v_cndmask_b32 v{vM+2}, v10, 0, vcc
        v_cndmask_b32 v{vM+3}, v11, 0, vcc""".replace('v_cndmask_b32 v%d, v10, 0, vcc' % (vM+2), 'v_cndmask_b32_e64 v%d, v10, 0, vcc' % (vM+2)).replace('v_cndmask_b32 v%d, v11, 0, vcc' % (vM+3), 'v_cndmask_b32_e64 v%d, v11, 0, vcc' % (vM+3)))
    def xoff(dst):
        a(f"""v_bfe_u32 v{dst}, v{vL}, 3, 1
        v_mul_u32_u24 v{dst}, 1152, v{dst}
        v_and_b32 v9, 3, v{vL}
        v_lshl_add_u32 v{dst}, v9, 3, v{dst}
        v_lshl_add_u32 v{dst}, v{vG}, 1, v{dst}""")
    def epoch_wait():
        a(f"""s_waitcnt lgkmcnt(0)
        s_add_u32 s{sT[0]}, s{sT[0]}, 1
        s_add_u32 s{sT[1]}, s{sT[0]}, 37
        s_add_u32 s{sT[2]}, s{sT[0]}, 74
        s_add_u32 s{sT[3]}, s{sT[0]}, 111""")
    def lsbtags(t, flip=None):
        a(f"""v_and_b32 v{t}, 7, v{vL}
        v_mul_u32_u24 v{t}, 37, v{t}
        v_add_u32 v{t}, s{sT[0]}, v{t}""")
        if flip: a(f"v_xor_b32 v{t}, {flip}, v{t}")
        a(f"""v_and_b32 v{t}, 0xff, v{t}
        v_lshl_or_b32 v{t}, v{t}, 15, v{t}
        v_lshrrev_b32 v{t+1}, 2, v{t}
        v_lshrrev_b32 v{t+2}, 4, v{t}
        v_lshrrev_b32 v{t+3}, 6, v{t}""")
    def decode_v(dst, src, t):
        a(f"""v_lshrrev_b32 v{dst}, 5, v{src}
        v_lshlrev_b32 v{dst}, 7, v{dst}
        v_and_b32 v{t}, 15, v{src}
        v_lshl_add_u32 v{dst}, v{t}, 3, v{dst}
        v_bfe_u32 v{t}, v{src}, 4, 1
        v_lshl_add_u32 v{dst}, v{t}, 2, v{dst}
        v_and_b32 v{t}, 7, v{src}
        v_lshlrev_b32 v{t}, 3, v{t}
        v_bfe_u32 v{t+1}, v{src}, 3, 1
        v_lshl_add_u32 v{t}, v{t+1}, 2, v{t}
        v_add_u32 v{t}, 512, v{t}
        v_cmp_gt_u32 vcc, 128, v{src}
        v_cndmask_b32 v{dst}, v{t}, v{dst}, vcc""")
    def finish(nst):
        if p.stamp == 5:
            a("s_endpgm"); return
        if p.stamp == 3:
            Ls = a.newlabel('noenc'); Lw = a.newlabel('encw')
            a(f"""s_waitcnt lgkmcnt(0)
            s_lshl_b32 s{sT0}, s2, 3
            s_add_u32 s{sT0}, s{sT0}, s{sWave}
            s_cmp_eq_u32 s{sT0}, {p.encwave}
            s_cbranch_scc0 {Ls}
{Lw}:
            s_memrealtime s[{sT0}:{sT1}]
            s_waitcnt lgkmcnt(0)
            s_sub_u32 s{sT0}, s{sT0}, s{sStamp+2*p.enc}
            s_cmp_lt_u32 s{sT0}, 3000
            s_cbranch_scc1 {Lw}
{Ls}:
            s_endpgm""")
            return
        if p.stamp:
            a(f"""s_waitcnt lgkmcnt(0)
            s_lshl_b32 s{sT0}, s2, 3
            s_add_u32 s{sT0}, s{sT0}, s{sWave}
            s_lshl_b32 s{sT0}, s{sT0}, 6
            s_add_u32 s{sT0}, s{sT0}, {STAMP}
            s_mov_b64 exec, 1
            v_mov_b32 v9, 0""")
            for k in range(13):
                a(f"v_mov_b32 v{10+k}, s{sStamp+2*k}\nbuffer_store_dword v{10+k}, v9, {R(rWS)}, s{sT0} offen offset:{4*k}")
        if p.stamp == 2:
            Ls = a.newlabel('nosum')
            a(f"""s_lshl_b32 s{sT0}, s2, 3
            s_add_u32 s{sT0}, s{sT0}, s{sWave}
            s_cmp_eq_u32 s{sT0}, {4 if nst == 'X' else 1024}
            s_cbranch_scc0 {Ls}""")
            srd(rB, 30, 256)
            for n, k in enumerate((1,2,3,4,7,8,9,10) if nst == 'X' else (1,2,3,4,7,8,10,11)):
                a(f"s_sub_u32 s{sT1}, s{sStamp+2*k}, s{sStamp}\nv_mov_b32 v{30+n}, s{sT1}\nbuffer_store_dword v{30+n}, v9, {R(rB)}, 0 offen offset:{4*n + (0 if nst == 'X' else 32)}")
            a.label(Ls)
        a("s_endpgm")

    def slot_store(d, base_s, wave_is_half, toff):
        tag4(d)
        if wave_is_half: a("s_mov_b32 exec_lo, 0x00ff00ff\ns_mov_b32 exec_hi, 0x00ff00ff")
        a(f"buffer_store_dwordx4 {V(d)}, v{toff}, {R(rWS)}, s{base_s} offen sc1")
        if wave_is_half: a("s_mov_b64 exec, -1")
    def slot_voff(dst, half):
        a(f"""v_lshrrev_b32 v{dst}, 1, v{vG}
        v_mul_u32_u24 v{dst}, 2304, v{dst}
        v_lshl_add_u32 v{dst}, v{vJ}, 4, v{dst}
        v_and_b32 v9, 1, v{vG}""")
        if half:
            a(f"v_lshl_add_u32 v{dst}, v9, 7, v{dst}\nv_add_u32 v{dst}, 2048, v{dst}")
        else:
            a(f"v_lshl_add_u32 v{dst}, v9, 8, v{dst}\ns_lshl_b32 s{sT0}, s{sWave}, 9\nv_add_u32 v{dst}, s{sT0}, v{dst}")

    def zstamps():
        if p.stamp:
            for k in range(1, 13): a(f"s_mov_b32 s{sStamp+2*k}, 0")
    vXP, vAP, vWP, vDP = 12, 20, 100, 180
    assert p.wsoff == 0
    stamp(0)
    a(f"""s_load_dwordx8 s[36:43], s[0:1], 0
    s_load_dwordx2 s[{rWS}:{rWS+1}], s[0:1], 112
    v_readfirstlane_b32 s{sWave}, v0
    v_and_b32 v{vJ}, 15, v0
    s_lshr_b32 s{sJ}, s2, 5
    s_and_b32 s{sH}, s2, 31
    s_mov_b32 s{rWS+3}, 0x20000
    s_lshr_b32 s{sT0}, s2, 8
    s_or_b32 s{sT0}, s{sT0}, s{sWave}
    s_cbranch_scc1 L_rest""")
    a(f"""v_lshrrev_b32 v{vG}, 4, v0
    v_lshlrev_b32 v9, 15, v{vG}
    v_lshl_add_u32 v9, v{vJ}, 4, v9
    v_add_u32 v10, {8192-1024}, v9
    v_add_u32 v11, {2*(8192-1024)}, v9
    v_add_u32 v12, {3*(8192-1024)}, v9
    s_mul_i32 s{sT0}, s{sJ}, {72*32}
    s_add_u32 s{sT0}, s{sT0}, s{sH}
    s_lshl_b32 s{sT0}, s{sT0}, 8
    s_mov_b32 m0, {L_WQ}
    v_lshrrev_b32 v13, 3, v{vJ}
    v_mul_u32_u24 v13, 144, v13
    v_and_b32 v14, 3, v0
    v_lshl_add_u32 v14, v14, 2, v{vG}
    v_add_lshl_u32 v13, v13, v14, 3
    s_mul_i32 s{sT1}, s{sJ}, 144
    s_waitcnt lgkmcnt(0)
    s_movk_i32 s{rA+2}, {SZ['x']}
    s_mov_b32 s{rA+3}, s{rWS+3}
    s_add_u32 s{rB+2}, s{sT0}, {71*8192+256}
    s_mov_b32 s{rB+3}, s{rWS+3}""")
    if p.diag == 2: a(f"s_memrealtime s[{sQ+6}:{sQ+7}]")
    a(f"""buffer_load_dwordx2 v[186:187], v13, {R(rA)}, s{sT1} offen
    buffer_load_dwordx2 v[188:189], v13, {R(rA)}, s{sT1} offen offset:128
L_wq:
    buffer_load_dwordx4 v9, {R(rB)}, s{sT0} offen {nt} lds
    buffer_load_dwordx4 v10, {R(rB)}, s{sT0} offen offset:1024 {nt} lds
    buffer_load_dwordx4 v11, {R(rB)}, s{sT0} offen offset:2048 {nt} lds
    buffer_load_dwordx4 v12, {R(rB)}, s{sT0} offen offset:3072 {nt} lds
    s_addk_i32 m0, 4096
    s_add_u32 s{sT0}, s{sT0}, s{rWS+3}
    s_bitcmp0_b32 m0, 15
    s_cbranch_scc1 L_wq""")
    if p.diag == 2: a(f"s_memrealtime s[{sQ+8}:{sQ+9}]")
    if p.b0pos == 0: a("s_barrier")
    a.label("L_rest")
    a(f"""s_cmp_ge_u32 s{sJ}, 8
    s_cbranch_scc1 L_exit
    s_lshr_b32 s{sWave}, s{sWave}, 6
    v_and_b32 v{vL}, 63, v0
    v_bfe_u32 v{vG}, v0, 4, 2
    v_lshlrev_b32 v{vL16}, 4, v{vL}
    s_mov_b32 s{rWS+2}, {WS_REC}
    s_lshl_b32 s{sT0}, s{sH}, 3
    s_add_u32 s{sT0}, s{sT0}, s{sJ}
    s_lshl_b32 s{sT0}, s{sT0}, 10
    s_add_u32 s{sT1}, s{sT0}, {QPL}
    s_and_b32 s{sT2}, s{sWave}, 3
    s_mov_b32 s{rC+3}, s{rWS+3}
    s_cmp_eq_u32 s{sWave}, 3
    s_cselect_b32 exec_lo, 0x01010101, 0
    s_cselect_b32 exec_hi, 0x01010101, 0
    s_waitcnt lgkmcnt(0)""")
    if p.fast: a(f"buffer_load_dword v250, v{vL16}, {R(rWS)}, s{sT1} offen sc1")
    a(f"""s_mov_b64 exec, -1
    s_load_dword s{sT[0]}, s[{rWS}:{rWS+1}], {EPOCH}
    s_load_dwordx16 s[4:19], s[0:1], 0
    s_load_dwordx8 s[20:27], s[0:1], 64
    s_load_dwordx4 s[28:31], s[0:1], 96
    s_and_b32 s{sXcd}, s2, 7
    s_bfe_u32 s{sI}, s2, 0x40003
    s_cmp_lt_u32 s{sWave}, 4
    s_cbranch_scc1 L_w03
    s_cmp_ge_u32 s2, 128
    s_cbranch_scc1 L_Ydma""")
    a(f"""s_lshl_b32 s{sQ}, s{sJ}, 2
    s_add_u32 s{sQ}, s{sQ}, s{sT2}
    s_lshl_b32 s{sQ}, s{sQ}, 10
    s_add_u32 s{sQ}, s{sQ}, s{sH}
    s_lshl_b32 s{sQ}, s{sQ}, 8
    s_lshl_b32 m0, s{sT2}, 13
    v_xor_b32 v19, v{vJ}, v{vG}
    v_lshlrev_b32 v19, 4, v19
    v_lshl_add_u32 v20, v{vG}, 13, v19
    v_xor_b32 v21, 64, v20
    v_xor_b32 v22, 0x80, v20
    v_xor_b32 v23, 0xc0, v20
    v_add_u32 v21, {32768-1024}, v21
    v_add_u32 v22, {2*(32768-1024)}, v22
    v_add_u32 v23, {3*(32768-1024)}, v23
    s_mov_b64 s[{rC}:{rC+1}], s[42:43]
    s_mov_b32 s{rC+2}, {SZ['wuk']}""")
    if p.diag == 2: a(f"s_memrealtime s[{sQ+6}:{sQ+7}]")
    def wuk(n):
        if n == 4: a(f"s_addk_i32 m0, 4096\ns_add_u32 s{sQ}, s{sQ}, {4*32768}")
        a(f"buffer_load_dwordx4 v{20+n%4}, {R(rC)}, s{sQ} offen offset:{1024*(n%4)} {nt} lds")
    if p.xg >= 0:
        epoch_wait()
        a(f"""s_lshl_b32 s{sT3}, s2, 7
        s_add_u32 s{sT3}, s{sT3}, {HK}
        v_mov_b32 v14, s{sT[0]}
        v_lshlrev_b32 v15, 2, v{vL}""")
    a("s_barrier")
    for n in range(p.xpre+1):
        if n == p.xg:
            a(f"""s_cmp_eq_u32 s{sWave}, 4
            s_cselect_b32 exec_lo, 0xffff, 0
            s_mov_b32 exec_hi, 0
            buffer_store_dword v14, v15, {R(rWS)}, s{sT3} offen sc1
            s_mov_b64 exec, -1""")
        if n < p.xpre: wuk(n)
    if p.diag == 2: a(f"s_memrealtime s[{sQ+8}:{sQ+9}]")
    a("s_branch L_X_w47")
    a.label("L_Ydma")
    sCK = sQ + 11
    if p.kint:
        a(f"""s_bfe_u32 s{sCK}, s2, 0x10006
        s_lshl_b32 s{sCK}, s{sCK}, 4
        s_add_u32 s{sCK}, s{sCK}, s{sT2}
        s_lshl_b32 s{sCK}, s{sCK}, 8
        s_and_b32 vcc_lo, s2, 63
        s_add_u32 s{sCK}, s{sCK}, vcc_lo
        s_lshl_b32 s{sCK}, s{sCK}, 10
        s_lshl_b32 m0, s{sT2}, 12""")
    else:
        a(f"""s_sub_u32 s{sCK}, s2, 128
        s_lshl_b32 s{sCK}, s{sCK}, 16
        s_lshl_b32 m0, s{sT2}, 12
        s_add_u32 s{sCK}, s{sCK}, m0""")
    a(f"""
    s_and_b32 vcc_lo, s{sT2}, 1
    s_lshl_b32 vcc_lo, vcc_lo, 7
    s_lshr_b32 vcc_hi, s{sT2}, 1
    s_lshl_b32 vcc_hi, vcc_hi, 4
    s_or_b32 vcc_lo, vcc_lo, vcc_hi
    v_xor_b32 v216, vcc_lo, v{vL16}
    v_xor_b32 v217, 32, v216
    v_xor_b32 v218, 64, v216
    v_xor_b32 v219, 0x60, v216""")
    if p.kint:
        for n in range(1, 4): a(f"v_add_u32 v{216+n}, {n*(65536-1024)}, v{216+n}")
    a(f"""s_mov_b64 s[{rC}:{rC+1}], s[38:39]
    s_mov_b32 s{rC+2}, {SZ['ckv']}
    s_barrier""")
    def ckv(i):
        if i % 4 == 0 and i: a(f"s_add_u32 s{sCK}, s{sCK}, {16*65536 if p.kint else 16384}\ns_add_u32 m0, m0, 16384")
        a(f"buffer_load_dwordx4 v{216+(i&3)}, {R(rC)}, s{sCK} offen offset:{1024*(i%4)} {nt} lds")
    for i in range(p.ypre): ckv(i)
    zstamps()
    epoch_wait()
    a(f"""s_sub_u32 s{sT3}, s2, 128
    s_lshl_b32 s{sT3}, s{sT3}, 7
    s_add_u32 s{sT3}, s{sT3}, {HG}
    v_mov_b32 v14, s{sT[0]}
    v_lshlrev_b32 v15, 2, v{vL}""")
    if p.xg >= 0:
        a(f"s_cmp_lg_u32 s{sWave}, 4\ns_cbranch_scc1 L_nokg")
        for k in range(p.xgn):
            a(f"s_add_u32 s{sQ+k}, s2, {41*k}\ns_and_b32 s{sQ+k}, s{sQ+k}, 127\ns_lshl_b32 s{sQ+k}, s{sQ+k}, 7\ns_add_u32 s{sQ+k}, s{sQ+k}, {HK}")
        spoll_all([sQ+k for k in range(p.xgn)], sQ+4)
        a.label("L_nokg")
    def uvsetup(r):
        srd(rB, pWUV, 0 if p.nod1 & 8 else SZ['wuv'])
        a(f"""s_sub_u32 s{r}, s{sJ}, 4
        s_lshl_b32 s{r}, s{r}, 20
        s_lshl_b32 s{r+1}, s{sT2}, 15
        s_add_u32 s{r}, s{r}, s{r+1}
        s_lshl_b32 s{r+1}, s{sH}, 8
        s_add_u32 s{r}, s{r}, s{r+1}
        s_lshl_b32 s{r+1}, s{sT2}, 13
        s_add_u32 s{r+1}, s{r+1}, {L_WUVY}
        v_lshlrev_b32 v9, 1, v{vG}
        v_xor_b32 v9, v9, v{vJ}
        v_lshlrev_b32 v9, 4, v9
        v_lshl_add_u32 v44, v{vG}, 17, v9
        v_xor_b32 v45, 0x80, v44""")
    def uvdma(r, n0, n1):
        if n0 >= n1: return
        a("s_mov_b32 vcc_hi, m0")
        for n in range(n0, n1):
            off = (64*(n & 1) + (n >> 1))*8192
            a(f"s_add_u32 m0, s{r+1}, {1024*n}\ns_add_u32 vcc_lo, s{r}, {off}")
            a(f"buffer_load_dwordx4 v{44+((n>>1)&1)}, {R(rB)}, vcc_lo offen {nt} lds")
        a("s_mov_b32 m0, vcc_hi")
    uvsetup(sQ)
    a("s_barrier")
    stamp(10)
    uvdma(sQ, 0, p.uv1)
    for i in range(p.ypre, 17):
        if i == p.gate:
            a(f"""s_cmp_eq_u32 s{sWave}, 4
            s_cselect_b32 exec_lo, -1, 0
            s_mov_b32 exec_hi, 0
            buffer_store_dword v14, v15, {R(rWS)}, s{sT3} offen sc1
            s_mov_b64 exec, -1""")
        if i < 16: ckv(i)
    stamp(1)
    masks()
    a("s_branch L_Y_main")
    a.label("L_w03")
    a(f"""s_cmp_eq_u32 s{sWave}, 0
    s_cbranch_scc1 L_p1c
    s_barrier
    s_branch L_w13""")
    a.label("L_p1c")
    zstamps()
    masks()
    stamp(1)
    if p.diag == 2: a(f"s_mov_b32 s{sStamp+6}, s{sQ+6}\ns_mov_b32 s{sStamp+8}, s{sQ+8}")
    a(f"""s_add_u32 s{sT0}, s{sT0}, {QP}
    s_mov_b32 s{sT2}, 0x01000100
    s_mov_b32 s{sT3}, 0x03020302
    v_add_u32 v190, {L_WQ}, v{vL16}
    s_waitcnt vmcnt(20)""")
    if p.b0pos == 1: a("s_barrier")
    if p.diag == 2: a(f"s_memrealtime s[{sStamp+10}:{sStamp+11}]")
    for k in range(4):
        a(f"v_perm_b32 v{vXP+2*k}, v{186+k}, v{186+k}, s{sT2}\nv_perm_b32 v{vXP+2*k+1}, v{186+k}, v{186+k}, s{sT3}")
    for n in range(20): buildA(vAP+4*n, vXP+(n % 4)+(4 if n >= 16 else 0), (n//4) % 4)
    epoch_wait()
    if p.diag == 2: a(f"s_memrealtime s[{sStamp+12}:{sStamp+13}]")
    G = 4
    for t0 in range(0, 20, G):
        a(f"s_waitcnt vmcnt({20-t0-G})")
        if p.b0pos == 2 + t0//G: a("s_barrier")
        if p.diag == 2 and t0 == 0: a(f"s_memrealtime s[{sStamp+14}:{sStamp+15}]")
        if p.diag == 2 and t0 == 16: a(f"s_memrealtime s[{sStamp+16}:{sStamp+17}]")
        for t in range(t0, t0+G): a(f"ds_read_b128 {V(vWP+4*t)}, v190 offset:{1024*t}")
        if t0:
            a(f"s_waitcnt lgkmcnt({G})")
            for t in range(t0-G, t0): mfma(vDP, vAP+4*t, vWP+4*t, '0' if t == 0 else None)
    for t in range(20-G, 20):
        a(f"s_waitcnt lgkmcnt({19-t})")
        mfma(vDP, vAP+4*t, vWP+4*t)
    tag4(vDP)
    if p.fast: a(f"buffer_store_dwordx4 {V(vDP)}, v{vL16}, {R(rWS)}, s{sT1} offen")
    a(f"buffer_store_dwordx4 {V(vDP)}, v{vL16}, {R(rWS)}, s{sT0} offen sc1")
    stamp(2)
    a(f"""s_barrier
    s_cmp_ge_u32 s2, 128
    s_cbranch_scc1 L_Y_main
    s_branch L_X_main""")

    a.label("L_w13")
    zstamps()
    masks()
    a(f"""s_movk_i32 s{rA+2}, {SZ['x']}
    s_mov_b32 s{rA+3}, s{rWS+3}""")
    if p.prefetch:
        a(f"""s_cmp_lg_u32 s{sWave}, 2
        s_cbranch_scc1 L_nopf
        s_getpc_b64 s[{sT0}:{sT1}]
L_pc:
        s_sub_u32 s{sT0}, s{sT0}, L_pc-{KNAME}
        s_subb_u32 s{sT1}, s{sT1}, 0
        s_lshr_b32 s{sT2}, s2, 3
        s_lshl_b32 s{sT2}, s{sT2}, 9
        v_add_u32 v9, s{sT2}, v{vL16}
        v_cmp_gt_u32 vcc, L_exit-{KNAME}, v9
        s_and_b32 exec_lo, vcc_lo, 0x01010101
        s_mov_b32 exec_hi, 0
        s_cbranch_execz L_pfdone
        global_load_dword v250, v9, s[{sT0}:{sT1}]
L_pfdone:
        s_mov_b64 exec, -1
L_nopf:""")
    epoch_wait()
    if p.stamp == 5:
        a(f"""s_lshl_b32 s{sT0}, s2, 3
        s_add_u32 s{sT0}, s{sT0}, s{sWave}
        s_lshl_b32 s{sT0}, s{sT0}, 6
        s_add_u32 s{sT0}, s{sT0}, {STAMP}
        v_mov_b32 v24, s{sStamp}
        v_mov_b32 v25, 0
        s_cmp_lt_u32 s2, 8
        s_cselect_b32 exec_lo, 1, 0
        s_mov_b32 exec_hi, 0
        buffer_store_dword v24, v25, {R(rWS)}, s{sT0} offen sc1
        s_mov_b64 exec, -1""")
    if p.warm:
        per = 72 // p.drep
        a(f"""s_cmp_lg_u32 s{sWave}, 2
        s_cbranch_scc1 L_nowarm
        s_not_b32 s{sT0}, s{sT[0]}
        v_mov_b32 v24, s{sT0}
        v_mov_b32 v25, s{sT0}
        v_mov_b32 v26, s{sT0}
        v_mov_b32 v27, s{sT0}
        s_cmp_ge_u32 s2, 128
        s_cbranch_scc1 L_warmY
        s_mov_b32 exec_hi, 0
        s_lshl_b32 s{sT0}, s{sH}, 2
        s_add_u32 s{sT0}, s{sT0}, s{sJ}
        s_lshl_b32 s{sT1}, s{sT0}, 9
        s_add_u32 s{sT1}, s{sT1}, {ST}
        buffer_store_dwordx4 v[24:27], v{vL16}, {R(rWS)}, s{sT1} offen sc1
        s_lshl_b32 s{sT1}, s{sT0}, 8
        s_add_u32 s{sT1}, s{sT1}, {QL}
        v_lshlrev_b32 v28, 15, v{vG}
        v_lshl_add_u32 v28, v{vJ}, 4, v28
        buffer_store_dwordx4 v[24:27], v28, {R(rWS)}, s{sT1} offen sc1
        s_lshl_b32 s{sT1}, s2, 7
        s_add_u32 s{sT1}, s{sT1}, {HD}
        s_mov_b32 exec_lo, 0xff
        buffer_store_dwordx4 v[24:27], v{vL16}, {R(rWS)}, s{sT1} offen sc1
        s_lshl_b32 s{sT1}, s{sT0}, 10
        s_add_u32 s{sT1}, s{sT1}, {CXL}
        s_mov_b32 exec_lo, 0x01010101
        s_mov_b32 exec_hi, 0x01010101
        buffer_load_dword v251, v{vL16}, {R(rWS)}, s{sT1} offen sc1
        s_branch L_warmd
L_warmY:
        s_sub_u32 s{sT0}, s2, 128
        s_lshl_b32 s{sT1}, s{sT0}, 8
        s_add_u32 s{sT1}, s{sT1}, {HC}
        s_mov_b64 exec, 0xffff
        buffer_store_dwordx4 v[24:27], v{vL16}, {R(rWS)}, s{sT1} offen sc1
L_warmd:
        s_mov_b64 exec, -1
L_nowarm:""")
    if p.tlb:
        a(f"""s_cmp_lg_u32 s{sWave}, 3
        s_cbranch_scc1 L_notlb
        s_mov_b64 exec, 15
        v_lshlrev_b32 v22, 21, v{vL}
        buffer_load_dword v251, v22, {R(rWS)}, 0 offen offset:256
        s_mov_b64 exec, 7
        s_cmp_ge_u32 s2, 128
        s_cbranch_scc1 L_tlbd
        global_load_dword v252, v22, s[{pW1}:{pW1+1}]
        global_load_dword v253, v22, s[{pWO}:{pWO+1}]
        global_load_dword v254, v22, s[{pW2}:{pW2+1}]
L_tlbd:
        s_mov_b64 exec, -1
L_notlb:""")
    a(f"""s_cmp_lg_u32 s{sWave}, 1
    s_cbranch_scc1 L_notw1""")
    srd(rB, pGW, SZ['gw'])
    a(f"""v_and_b32 v9, 31, v{vL}
    v_mul_u32_u24 v9, 36, v9
    v_lshrrev_b32 v10, 5, v{vL}
    v_mul_u32_u24 v11, 1152, v10
    v_add_u32 v11, v11, v9
    buffer_load_dwordx4 v[20:23], v11, {R(rA)}, 0 offen
    buffer_load_dwordx4 v[24:27], v11, {R(rA)}, 0 offen offset:16
    buffer_load_dword v28, v11, {R(rA)}, 0 offen offset:32
    buffer_load_dwordx4 v[32:35], v9, {R(rB)}, 0 offen
    buffer_load_dwordx4 v[36:39], v9, {R(rB)}, 0 offen offset:16
    buffer_load_dword v40, v9, {R(rB)}, 0 offen offset:32
    v_mov_b32 v13, 0
    v_lshlrev_b32 v10, 2, v10
    v_add_u32 v10, {L_GATE}, v10
    s_barrier
    s_waitcnt vmcnt(0)""")
    for k in range(9): a(f"v_dot2_f32_bf16 v13, v{20+k}, v{32+k}, v13")
    for m in ("quad_perm:[1,0,3,2]", "quad_perm:[2,3,0,1]", "row_half_mirror", "row_mirror"):
        a(f"v_add_f32_dpp v13, v13, v13 {m} row_mask:0xf bank_mask:0xf")
    a(f"""v_mov_b32 v14, v13
    v_permlane16_swap_b32 v13, v14
    v_add_f32 v13, v13, v14
    v_mul_f32 v13, {f2u(-math.log2(math.e))}, v13
    v_exp_f32 v13, v13
    v_add_f32 v13, 1.0, v13
    v_rcp_f32 v13, v13
    ds_write_b32 v10, v13
    s_waitcnt lgkmcnt(0)
    s_cmp_ge_u32 s2, 128
    s_cbranch_scc1 L_Y_main
    s_branch L_X_main""")
    a.label("L_notw1")
    a(f"""s_barrier
    s_waitcnt vmcnt(0)
    s_cmp_ge_u32 s2, 128
    s_cbranch_scc1 L_Y_main
    s_branch L_X_main""")

    a.label("L_X_w47")
    zstamps()
    masks()
    a("v_mov_b32 v9, v19")
    if p.xg < 0: epoch_wait()
    if p.diag == 2: a(f"s_mov_b32 s{sStamp+10}, s{sQ+6}\ns_mov_b32 s{sStamp+12}, s{sQ+8}")
    a(f"""s_lshl_b32 s{sT0}, s{sH}, 13
    s_lshl_b32 s{sT1}, s{sT2}, 8
    s_add_u32 s{sT0}, s{sT0}, s{sT1}
    s_add_u32 s{sT0}, s{sT0}, {QPL if p.fast else QP}
    s_add_u32 s{sT1}, s{sT0}, 4096
    v_lshlrev_b32 v24, 10, v{vG}
    v_lshl_add_u32 v24, v{vJ}, 4, v24""")
    a(f"""s_lshr_b32 s{sT3}, s{sT2}, 1
    s_lshl_b32 s{sT3}, s{sT3}, 8
    s_bitcmp1_b32 s{sT2}, 0
    s_cselect_b32 vcc_lo, 8, 0
    s_add_u32 s{sT3}, s{sT3}, vcc_lo
    s_add_u32 s{sT3}, s{sT3}, {L_QV}
    v_lshlrev_b32 v25, 4, v{vJ}
    v_lshl_add_u32 v25, v{vG}, 1, v25
    v_add_u32 v25, s{sT3}, v25""")
    a(f"""s_lshl_b32 s{sT3}, s{sT2}, 13
    v_lshl_add_u32 v26, v{vJ}, 8, v9
    v_add_u32 v26, s{sT3}, v26
    v_xor_b32 v27, 64, v26
    v_xor_b32 v28, 0x80, v26
    v_xor_b32 v29, 0xc0, v26""")
    a(f"""v_lshrrev_b32 v30, 3, v{vJ}
    v_lshlrev_b32 v30, 8, v30
    v_lshl_add_u32 v30, v{vG}, 4, v30
    v_add_u32 v30, {L_QV}, v30""")
    a(f"""v_and_b32 v31, 31, v{vL}
    s_lshl_b32 s{sT3}, s{sT2}, 5
    v_add_u32 v31, s{sT3}, v31
    v_bfe_u32 v32, v31, 3, 3
    v_mul_u32_u24 v32, 37, v32
    v_add_u32 v32, s{sT[0]}, v32
    v_and_b32 v33, 7, v31
    v_lshrrev_b32 v32, v33, v32
    v_and_b32 v32, 1, v32
    v_lshlrev_b32 v32, 16, v32
    v_xor_b32 v33, 0x10000, v32
    v_lshlrev_b32 v31, 1, v31
    v_lshrrev_b32 v34, 5, v{vL}
    v_lshl_add_u32 v31, v34, 15, v31
    s_lshl_b32 s{sT3}, s{sH}, 10
    s_lshl_b32 vcc_lo, s{sJ}, 8
    s_add_u32 s{sT3}, s{sT3}, vcc_lo
    s_add_u32 s{sT3}, s{sT3}, {QL}
    v_mov_b32 v35, 0xfffe0000
    s_barrier""")
    stamp(1)
    for n in range(p.xpre, 8): wuk(n)
    a(f"s_waitcnt vmcnt({p.pollA_wait})")
    stamp(2)
    L = poll_begin()
    a(f"""buffer_load_dwordx4 v[36:39], v24, {R(rWS)}, s{sT0} offen sc1
    buffer_load_dwordx4 v[40:43], v24, {R(rWS)}, s{sT1} offen sc1
    s_waitcnt vmcnt(1)""")
    chk4(44, 36, True)
    a("s_waitcnt vmcnt(0)")
    chk4(44, 40)
    poll_end(L, 44, '0xff', ((sT0, sT1), QPL-QP))
    stamp(3)
    for tl in range(2):
        for ks in range(4):
            a(f"ds_read_b128 {V(48+16*tl+4*ks)}, v{26+ks} offset:{4096*tl}")
    for k in range(4): a(f"v_add_f32 v{36+k}, v{36+k}, v{40+k}")
    treduce(36)
    a(f"""v_cvt_pk_bf16_f32 v36, v36, v36
    ds_write_b16 v25, v36
    s_waitcnt lgkmcnt(0)
    s_barrier""")
    for ks in range(4): a(f"ds_read_b128 {V(80+4*ks)}, v30 offset:{64*ks}")
    for ks in range(4):
        a(f"s_waitcnt lgkmcnt({3-ks})")
        mfma(96, 80+4*ks, 48+4*ks, '0' if ks == 0 else None)
        mfma(100, 80+4*ks, 64+4*ks, '0' if ks == 0 else None)
    a(f"""s_mov_b32 vcc_lo, 0xffff0000
    s_mov_b32 vcc_hi, 0xffff0000
    v_cndmask_b32 v96, v96, v100, vcc
    v_mul_f32 v96, {f2u(128**-0.5*math.log2(math.e))}, v96
    v_add_u32 v96, v96, v33
    v_and_or_b32 v96, v96, v35, v32
    buffer_store_short_d16_hi v96, v31, {R(rWS)}, s{sT3} offen sc1""")
    stamp(4)

    a.label("L_X_main")
    sX = sQ + 9
    a(f"s_mul_i32 s{sT0}, s{sI}, 9\nv_add_u32 v9, s{sT0}, v{vJ}")
    decode_v(139, 9, 10)
    a(f"""s_mul_i32 s{sT0}, s{sXcd}, 576
    v_add_u32 v139, s{sT0}, v139
    v_mul_u32_u24 v10, 1152, v139""")
    for t in range(9): a(f"v_readlane_b32 s{sQ+t}, v10, {t}")
    a(f"""v_bfe_u32 v9, v{vL}, 3, 1
    v_lshlrev_b32 v135, 2, v{vL}
    v_lshlrev_b32 v136, 2, v9
    v_add_u32 v136, {L_GATE}, v136
    v_mov_b32 v137, s{sT[0]}
    v_mov_b32 v138, 0
    v_and_b32 v132, 3, v{vL}
    v_lshl_add_u32 v134, v132, 2, v{vG}
    v_lshlrev_b32 v134, 2, v134
    v_mul_u32_u24 v9, 192, v9
    v_add_u32 v134, v134, v9
    v_add_u32 v134, {L_HX}, v134
    v_mul_u32_u24 v132, 37, v132
    v_add_u32 v132, s{sT[0]}, v132
    s_lshl_b32 s{sX}, s{sH}, 2
    s_add_u32 s{sX}, s{sX}, s{sJ}
    s_mul_i32 s{sX+2}, s{sX}, {32*1152}
    s_lshl_b32 s{sX}, s{sX}, 10
    s_add_u32 s{sX}, s{sX}, {CXL if p.fast else CX}
    s_mul_i32 s{sX+1}, s2, 4608
    s_add_u32 s{sX+1}, s{sX+1}, {FP}""")
    srd(rA, pX, SZ['x'])
    xoff(12)
    a(f"""s_cmp_ge_u32 s{sWave}, 4
    s_cbranch_scc1 L_X_b2
    s_barrier""")
    if p.gate >= 0:
        a(f"""s_cmp_lg_u32 s{sWave}, 0
        s_cbranch_scc1 L_X_b2
        s_lshl_b32 s{sT2}, s2, 7
        s_add_u32 s{sT2}, s{sT2}, {HG}
        s_xor_b32 s{sT3}, s{sT2}, {43*128}""")
        if p.gand:
            for k in range(p.gand):
                a(f"s_add_u32 s{6+k}, s2, {43*k}\ns_and_b32 s{6+k}, s{6+k}, 127\ns_lshl_b32 s{6+k}, s{6+k}, 7\ns_add_u32 s{6+k}, s{6+k}, {HG}")
            spoll_all([6+k for k in range(p.gand)], sT0)
        else:
            spoll((sT2, sT3))
        stamp(3)
    a.label("L_X_b2")
    a("s_barrier")
    a(f"""s_cmp_ge_u32 s{sWave}, 5
    s_cbranch_scc1 L_X_fg""")
    vXF, vAF, vWF, vDF, vWO, vW2 = 13, 20, 60, 100, 140, 176
    srd(rB, pW1, 0 if p.nod1 & 4 else SZ['w1'])
    a(f"s_mul_i32 s{sT1}, s{sI}, 72")
    for v in range(3): a(f"buffer_load_ushort v{vXF+v}, v12, {R(rA)}, s{sT1} offen offset:{32*v}")
    srd(rA, pW2, 0 if p.nod1 & 1 else SZ['w2'])
    srd(rC, pWO, 0 if p.nod1 & 2 else SZ['wo'])
    a(f"""s_mul_i32 s{sT0}, s{sI}, {36*9216}
    s_mul_i32 s{sT1}, s{sXcd}, 1152
    s_add_u32 s{sT0}, s{sT0}, s{sT1}
    s_lshl_b32 s{sT1}, s{sWave}, 8
    s_add_u32 s{sT0}, s{sT0}, s{sT1}
    v_mul_u32_u24 v10, 9216, v{vG}
    v_mul_u32_u24 v17, 1152, v{vG}
    v_add_u32 v17, s{sT1}, v17
    v_add_u32 v16, s{sT1}, v10
    s_lshl_b32 s{sT2}, s{sXcd}, 4
    s_add_u32 s{sT2}, s{sT2}, s{sI}
    s_mul_i32 s{sT2}, s{sT2}, 4608
    s_add_u32 s{sT2}, s{sT2}, {HP}
    s_cmp_eq_u32 s{sWave}, 4
    s_cbranch_scc1 L_X_f1half
    v_lshl_add_u32 v10, v{vJ}, 4, v10
    v_lshl_add_u32 v16, v{vJ}, 4, v16
    v_lshl_add_u32 v17, v{vJ}, 4, v17""")
    def wo_full():
        for t in range(8):
            if t == 4: a(f"s_add_u32 s{sX+2}, s{sX+2}, {4*1152}")
            a(f"buffer_load_dwordx4 {V(vWO+4*t)}, v16, {R(rC)}, s{sX+2} offen offset:{1152*(t&3)} {nt}")
    def wo_half():
        for n in range(4):
            if n == 2: a(f"s_add_u32 s{sX+2}, s{sX+2}, {4*1152}")
            a(f"buffer_load_dwordx4 {V(vWO+4*n)}, v16, {R(rC)}, s{sX+2} offen offset:{2304*(n&1)} {nt}")
    for t in range(9):
        a(f"buffer_load_dwordx4 {V(vWF+4*t)}, v10, {R(rB)}, s{sT0} offen {nt}")
        if t < 8: a(f"s_add_u32 s{sT0}, s{sT0}, {4*9216}")
    def w2_full():
        for t in range(9): a(f"buffer_load_dwordx4 {V(vW2+4*t)}, v17, {R(rA)}, s{sQ+t} offen {nt}")
    if p.xord < 2: w2_full()
    else: a("s_barrier")
    ex = {0: 17, 1: 9, 2: 0}[p.xord]
    if p.xord == 0: wo_full()
    slot_voff(138, False)
    a(f"s_waitcnt vmcnt({9+ex})")
    for v in range(3): a(f"v_lshl_or_b32 v{vXF+v}, v{vXF+v}, 16, v{vXF+v}")
    for t in range(9): buildA(vAF+4*t, vXF+t//4, t % 4)
    for t in range(9):
        a(f"s_waitcnt vmcnt({8-t+ex})")
        mfma(vDF, vAF+4*t, vWF+4*t, '0' if t == 0 else None)
    slot_store(vDF, sT2, False, 138)
    stamp(5)
    a("s_barrier")
    if p.xord == 1: wo_full()
    if p.xord == 2: w2_full()
    a("s_branch L_X_o2")
    a.label("L_X_f1half")
    a(f"""v_and_b32 v9, 7, v{vJ}
    v_lshl_add_u32 v10, v9, 4, v10
    v_lshl_add_u32 v16, v9, 4, v16
    v_lshl_add_u32 v17, v9, 4, v17
    v_lshrrev_b32 v9, 3, v{vJ}
    v_mul_u32_u24 v11, {4*9216}, v9
    v_add_u32 v10, v10, v11
    v_mul_u32_u24 v11, 1152, v9
    v_add_u32 v16, v16, v11""")
    for n in range(5):
        if n == 4: a("s_mov_b32 exec_lo, 0x00ff00ff\ns_mov_b32 exec_hi, 0x00ff00ff")
        a(f"buffer_load_dwordx4 {V(vWF+4*n)}, v10, {R(rB)}, s{sT0} offen {nt}")
        if n < 4: a(f"s_add_u32 s{sT0}, s{sT0}, {8*9216}")
    a("s_mov_b64 exec, -1")
    def w2_half():
        a("s_mov_b32 exec_lo, 0x00ff00ff\ns_mov_b32 exec_hi, 0x00ff00ff")
        a(f"buffer_load_dwordx4 {V(vW2+16)}, v17, {R(rA)}, s{sQ+8} offen {nt}")
        a("s_mov_b64 exec, -1\ns_mov_b32 vcc_lo, 0xff00ff00\ns_mov_b32 vcc_hi, 0xff00ff00")
        for n in range(4):
            a(f"v_mov_b32 v18, s{sQ+2*n}\nv_mov_b32 v19, s{sQ+2*n+1}\nv_cndmask_b32 v18, v18, v19, vcc\nv_add_u32 v18, v18, v17")
            a(f"buffer_load_dwordx4 {V(vW2+4*n)}, v18, {R(rA)}, 0 offen {nt}")
    if p.xord < 2: w2_half()
    else: a("s_barrier")
    ex = {0: 9, 1: 5, 2: 0}[p.xord]
    if p.xord == 0: wo_half()
    slot_voff(138, True)
    a(f"s_waitcnt vmcnt({5+ex})")
    for v in range(3): a(f"v_lshl_or_b32 v{vXF+v}, v{vXF+v}, 16, v{vXF+v}")
    for t in range(9): buildA(vAF+4*t, vXF+t//4, t % 4)
    for n in range(5):
        a(f"s_waitcnt vmcnt({4-n+ex})")
        mfma(vDF, vAF+8*n, vWF+4*n, '0' if n == 0 else None)
        if n < 4: mfma(vDF+4, vAF+8*n+4, vWF+4*n, '0' if n == 0 else None)
    for r in range(4): a(f"v_add_f32_dpp v{vDF+r}, v{vDF+4+r}, v{vDF+r} row_ror:8 row_mask:0xf bank_mask:0xf")
    slot_store(vDF, sT2, True, 138)
    stamp(5)
    a("s_barrier")
    if p.xord == 1: wo_half()
    if p.xord == 2: w2_half()
    a.label("L_X_o2")
    vA2, vD2 = 20, 60
    a(f"""ds_read_b32 v136, v136
    s_lshl_b32 s{sT3}, s2, 7
    s_add_u32 s{sT3}, s{sT3}, {HD}
    s_barrier""")
    stamp(8)
    for v in range(3): a(f"ds_read_b32 v{68+v}, v134 offset:{64*v}")
    a("s_waitcnt lgkmcnt(0)")
    for t in range(9): buildA(vA2+4*t, 68+t//4, t % 4)
    a(f"""s_waitcnt vmcnt({8 if p.xord == 1 else 0})
    s_cmp_eq_u32 s{sWave}, 4
    s_cbranch_scc1 L_X_half2""")
    if p.xord == 2:
        for t in range(8): a(f"ds_read_b128 {V(vWO+4*t)}, v16 offset:{1152*t}")
    for t in range(9): mfma(vD2, vA2+4*t, vW2+4*t, '0' if t == 0 else None)
    a("s_branch L_X_o3")
    a.label("L_X_half2")
    a("s_waitcnt vmcnt(4)")
    if p.xord == 2:
        for n in range(4): a(f"ds_read_b128 {V(vWO+4*n)}, v16 offset:{2304*n}")
    for n in range(5):
        mfma(vD2, vA2+8*n, vW2+4*n, '0' if n == 0 else None)
        if n < 4: mfma(vD2+4, vA2+8*n+4, vW2+4*n, '0' if n == 0 else None)
    a.label("L_X_o3")
    a("s_waitcnt lgkmcnt(0)")
    stamp(9)
    L = poll_begin()
    for cq in range(4): a(f"buffer_load_dword v{72+cq}, v135, {R(rWS)}, s{sX} offen offset:{256*cq} sc1")
    a("s_waitcnt vmcnt(0)")
    a("v_xor_b32 v76, v132, v72")
    for cq in range(1, 4): a(f"v_bitop3_b32 v76, v76, v{72+cq}, v132 bitop3:0xf6")
    poll_end(L, 76, '0xff', ((sX,), CXL-CX))
    stamp(10)
    def dflag():
        a(f"""s_cmp_eq_u32 s{sWave}, 1
        s_cselect_b32 exec_lo, 0xffff, 0
        s_mov_b32 exec_hi, 0
        buffer_store_dword v137, v135, {R(rWS)}, s{sT3} offen sc1
        s_mov_b64 exec, -1""")
    if p.dflag == 3: dflag()
    a(f"""v_add_f32 v72, v72, v73
    v_add_f32 v74, v74, v75
    v_add_f32 v72, v72, v74
    v_mul_f32 v72, v72, v136
    v_cvt_pk_bf16_f32 v72, v72, v72
    v_mov_b32 v73, v72
    v_mov_b32 v74, v72
    v_mov_b32_dpp v73, v72 row_shr:4 row_mask:0xf bank_mask:0xa
    v_mov_b32_dpp v74, v72 row_shl:4 row_mask:0xf bank_mask:0x5
    s_cmp_eq_u32 s{sWave}, 4
    s_cbranch_scc1 L_X_half3""")
    for t in range(8):
        buildA(vA2+4*t, 73+t//4, t % 4)
        if t > 0: mfma(vD2, vA2+4*(t-1), vWO+4*(t-1))
    mfma(vD2, vA2+28, vWO+28)
    slot_store(vD2, sX+1, False, 138)
    if p.dflag == 4: dflag()
    a("s_branch L_X_end")
    a.label("L_X_half3")
    for t in range(8):
        buildA(vA2+4*t, 73+t//4, t % 4)
        if t > 0: mfma(vD2+4*((t-1) & 1), vA2+4*(t-1), vWO+4*((t-1)//2))
    mfma(vD2+4, vA2+28, vWO+12)
    for r in range(4): a(f"v_add_f32_dpp v{vD2+r}, v{vD2+4+r}, v{vD2+r} row_ror:8 row_mask:0xf bank_mask:0xf")
    slot_store(vD2, sX+1, True, 138)
    a("s_branch L_X_end")
    a.label("L_X_fg")
    a(f"""s_cmp_eq_u32 s{sWave}, 7
    s_cbranch_scc1 L_X_fg7""")
    srd(rB, pB1, SZ['b1'])
    a(f"""s_sub_u32 s{sT2}, s{sWave}, 5
    s_mul_i32 s{sT0}, s{sXcd}, {16*4608}
    s_mul_i32 s{sT1}, s{sT2}, 2304
    s_add_u32 s{sT0}, s{sT0}, s{sT1}
    s_mul_i32 s{sT1}, s{sI}, 144
    s_add_u32 s{sT0}, s{sT0}, s{sT1}
    s_add_u32 s{sT0}, s{sT0}, {HP}
    s_add_u32 s{sQ}, s{sT0}, {4*4608}
    s_add_u32 s{sQ+1}, s{sT0}, {8*4608}
    s_add_u32 s{sQ+2}, s{sT0}, {12*4608}
    v_mul_u32_u24 v10, 4608, v{vG}
    v_lshl_add_u32 v10, v{vJ}, 4, v10
    v_add_u32 v14, v139, v{vG}
    v_lshlrev_b32 v14, 1, v14
    s_lshl_b32 s{sT1}, s{sT2}, 2
    s_add_u32 s{sT1}, s{sT1}, {L_GATE}
    v_mov_b32 v16, s{sT1}
    ds_read_b32 v16, v16
    s_mul_i32 s{sT1}, s{sT2}, 192
    s_add_u32 s{sT1}, s{sT1}, {L_HX}
    v_lshl_add_u32 v17, v{vJ}, 2, v{vG}
    v_lshlrev_b32 v17, 2, v17
    v_add_u32 v17, s{sT1}, v17
    s_mov_b32 exec_lo, 0x01ff01ff
    s_mov_b32 exec_hi, 0x01ff01ff
    buffer_load_ushort v15, v14, {R(rB)}, 0 offen""")
    def floads():
        for k, s in enumerate((sT0, sQ, sQ+1, sQ+2)):
            a(f"buffer_load_dwordx4 {V(20+4*k)}, v10, {R(rWS)}, s{s} offen sc1")
    if p.xord == 2: a("s_barrier")
    a("s_barrier")
    L = poll_begin()
    floads()
    for k in range(4):
        a(f"s_waitcnt vmcnt({3-k})")
        chk4(36, 20+4*k, k == 0)
    poll_end(L, 36, '0xff')
    stamp(8)
    a("s_mov_b64 exec, -1")
    for k in range(4): a(f"v_add_f32 v{20+k}, v{20+k}, v{24+k}\nv_add_f32 v{28+k}, v{28+k}, v{32+k}")
    for k in range(4): a(f"v_add_f32 v{20+k}, v{20+k}, v{28+k}")
    treduce(20)
    c1 = -2*math.sqrt(2/math.pi)*math.log2(math.e)
    a(f"""v_lshlrev_b32 v15, 16, v15
    v_add_f32 v20, v20, v15
    v_mul_f32 v21, v20, v20
    v_mov_b32 v22, {f2u(c1)}
    v_fmac_f32 v22, {f2u(c1*0.044715)}, v21
    v_mul_f32 v21, v22, v20
    v_exp_f32 v21, v21
    v_add_f32 v21, 1.0, v21
    v_rcp_f32 v21, v21
    s_waitcnt lgkmcnt(0)
    v_sub_f32 v16, 1.0, v16
    v_mul_f32 v20, v20, v21
    v_mul_f32 v20, v20, v16
    v_cvt_pk_bf16_f32 v20, v20, v20
    s_mov_b32 exec_lo, 0x01ff01ff
    s_mov_b32 exec_hi, 0x01ff01ff
    ds_write_b32 v17, v20
    s_mov_b64 exec, -1
    s_waitcnt lgkmcnt(0)""")
    a("s_branch L_X_fgend")
    a.label("L_X_fg7")
    if p.xord == 2:
        srd(rC, pWO, 0 if p.nod1 & 2 else SZ['wo'])
        a("s_mov_b32 m0, 0\ns_barrier")
        for n in range(36):
            if n % 4 == 0 and n: a(f"s_addk_i32 m0, 4096\ns_add_u32 s{sX+2}, s{sX+2}, 4096")
            if n == p.wosplit: a("s_barrier")
            a(f"buffer_load_dwordx4 v{vL16}, {R(rC)}, s{sX+2} offen offset:{1024*(n%4)} {nt} lds")
        if p.wosplit >= 36: a("s_barrier")
        a("s_waitcnt vmcnt(0)\ns_branch L_X_fgend")
    a("s_barrier")
    a("s_waitcnt vmcnt(0)")
    a.label("L_X_fgend")
    a("s_barrier")
    a.label("L_X_end")
    stamp(11)
    finish('X')

    a.label("L_Y_main")
    vQA, vPA, vSF, vPF, vACC = 20, 36, 48, 112, 176
    vTG, vTO = 208, 212
    vQG = 216
    a(f"""s_and_b32 s{sT2}, s{sWave}, 3
    s_lshr_b32 s{sT3}, s{sWave}, 2
    v_and_b32 v9, 7, v{vJ}
    v_lshlrev_b32 v9, 1, v9
    v_lshrrev_b32 v10, 3, v{vJ}
    v_or_b32 v9, v9, v10
    v_lshlrev_b32 v9, 4, v9
    v_lshl_add_u32 v9, v{vG}, 8, v9
    v_lshl_add_u32 v9, v{vJ}, 10, v9
    s_lshl_b32 s{sT0}, s{sT2}, 14
    v_add_u32 v13, s{sT0}, v9
    s_lshl_b32 s{sT0}, s{sT3}, 14
    s_add_u32 s{sT0}, s{sT0}, {L_QIMG}
    v_add_u32 v{vQA}, s{sT0}, v9""")
    for ks in range(1, 16): a(f"v_xor_b32 v{vQA+ks}, {16*ks}, v{vQA}")
    a(f"""v_lshrrev_b32 v9, 2, v{vL}
    v_and_b32 v10, 7, v9
    v_lshlrev_b32 v10, 1, v10
    v_lshrrev_b32 v11, 3, v9
    v_or_b32 v10, v10, v11
    v_bfe_u32 v11, v{vL}, 1, 1
    v_xor_b32 v10, v10, v11
    v_lshlrev_b32 v10, 4, v10
    v_lshl_add_u32 v10, v9, 10, v10
    v_and_b32 v11, 1, v{vL}
    v_lshl_add_u32 v10, v11, 3, v10
    s_lshl_b32 s{sT0}, s{sT2}, 8
    v_add_u32 v{vPA}, s{sT0}, v10""")
    for ct in range(1, 8): a(f"v_xor_b32 v{vPA+ct}, {32*ct}, v{vPA}")
    lsbtags(vTG)
    a(f"s_bitcmp1_b32 s2, 0\ns_cselect_b32 s{sT0}, 0xff, 0")
    lsbtags(vTO, f"s{sT0}")
    a(f"""s_bfe_u32 s{sT0}, s2, 0x10006
    s_lshl_b32 s{sT0}, s{sT0}, 15
    s_lshl_b32 s{sT1}, s{sWave}, 12
    s_add_u32 s{sT0}, s{sT0}, s{sT1}
    s_add_u32 s{sT0}, s{sT0}, {QL}
    s_add_u32 s{sT1}, s{sT1}, {L_QIMG}
    s_and_b32 vcc_lo, s{sWave}, 1
    s_lshl_b32 vcc_lo, vcc_lo, 7
    s_bfe_u32 vcc_hi, s{sWave}, 0x10001
    s_lshl_b32 vcc_hi, vcc_hi, 4
    s_or_b32 vcc_lo, vcc_lo, vcc_hi
    v_xor_b32 v16, vcc_lo, v{vL16}
    v_add_u32 v16, s{sT1}, v16
    v_xor_b32 v17, 32, v16
    v_xor_b32 v18, 64, v16
    v_xor_b32 v19, 0x60, v16
    """)
    a(f"""s_lshl_b32 s{sQ+9}, s{sT3}, 12
    s_add_u32 s{sQ+9}, s{sQ+9}, {L_SX}
    v_add_u32 v10, s{sQ+9}, v{vL16}
    s_lshl_b32 s{sQ+9}, s{sT2}, 10
    v_add_u32 v11, s{sQ+9}, v10
    v_lshlrev_b32 v12, 19, v{vG}
    v_lshl_add_u32 v12, v{vJ}, 4, v12
    s_sub_u32 s{sQ+9}, s2, 128
    s_lshl_b32 s{sT1}, s{sQ+9}, {4 if p.cstat else 9}
    v_lshlrev_b32 v15, {11 if p.cstat else 4}, v{vL}
    s_lshl_b32 vcc_lo, s{sT3}, {15 if p.cstat else 8}
    s_add_u32 s{sT1}, s{sT1}, vcc_lo
    s_add_u32 s{sT1}, s{sT1}, {ST}
    s_lshl_b32 s{sQ+10}, s{sQ+9}, 8
    s_lshl_b32 vcc_lo, s{sT3}, 21
    s_add_u32 s{sQ+10}, s{sQ+10}, vcc_lo
    s_lshl_b32 vcc_lo, s{sT2}, 15
    s_add_u32 s{sQ+10}, s{sQ+10}, vcc_lo
    s_add_u32 s{sQ+10}, s{sQ+10}, {OP}
    s_lshl_b32 s{sQ+9}, s{sQ+9}, 8
    s_lshl_b32 vcc_lo, s{sT3}, 7
    s_add_u32 s{sQ+9}, s{sQ+9}, vcc_lo
    s_add_u32 s{sQ+9}, s{sQ+9}, {HC}""")
    if p.uv1 < 8: uvsetup(sQ)
    for k in range(4): a(f"v_mov_b32 v{248+k}, 0x3f803f80\nv_mov_b32 v{252+k}, s{sT[0]}")
    def qloads():
        for n in range(4): a(f"buffer_load_dwordx4 {V(vQG+4*n)}, v{vL16}, {R(rWS)}, s{sT0} offen offset:{1024*n} sc1")
    for T in range(4):
        if T == p.qat: qloads()
        a(f"s_waitcnt vmcnt({12-4*T + (4 if T >= p.qat else 0)})\ns_barrier")
        if p.gate == 17 + T:
            a(f"""s_sub_u32 vcc_lo, s2, 128
            s_lshl_b32 vcc_lo, vcc_lo, 7
            s_add_u32 vcc_lo, vcc_lo, {HG}
            s_cmp_eq_u32 s{sWave}, 1
            s_cselect_b32 exec_lo, 0xf, 0
            s_mov_b32 exec_hi, 0
            buffer_store_dwordx4 v[252:255], v{vL16}, {R(rWS)}, vcc_lo offen sc1
            s_mov_b64 exec, -1""")
        if T == 3:
            stamp(3)
            if p.qat == 4: qloads()
        Ls = a.newlabel('nos')
        a(f"s_cmp_lg_u32 s{sT2}, {T}\ns_cbranch_scc1 {Ls}")
        for ks in range(16):
            a(f"v_xor_b32 v9, {16*ks}, v13\nds_read_b128 {V(vSF+4*ks)}, v9")
        a.label(Ls)
        for ct in range(8):
            a(f"ds_read_b64_tr_b16 {V(vPF+8*ct+2*T, 2)}, v{vPA+ct} offset:{16384*T}")
    Lq = a.newlabel('qchk')
    a(f"s_mov_b32 s{sCnt}, 0\ns_branch {Lq}")
    L = a.newlabel('poll'); a.label(L)
    qloads()
    a("s_mov_b64 exec, -1")
    a.label(Lq)
    for n in range(4):
        a(f"s_waitcnt vmcnt({3-n})")
        chkv(9, vQG+4*n, vTG, n == 0)
    poll_end_masked(L, 9, '0x10001', p.bsleep)
    if p.stamp: a(f"s_mov_b32 s{sStamp+24}, s{sCnt}")
    stamp(4)
    for n in range(4): a(f"ds_write_b128 v{16+n}, {V(vQG+4*n)} offset:{1024*n}")
    a(f"s_mov_b32 s{sT0}, s{sQ+10}\nv_mov_b32 v9, 0x10001")
    a("s_waitcnt lgkmcnt(0)\ns_barrier")
    stamp(5)
    def hint(pos):
        if p.hintpos == pos:
            a(f"""s_cmp_eq_u32 s{sT2}, 3
            s_cselect_b32 exec_lo, 0xf, 0
            s_mov_b32 exec_hi, 0
            buffer_store_dwordx4 v[252:255], v{vL16}, {R(rWS)}, s{sQ+9} offen sc1
            s_mov_b64 exec, -1""")
    NQ = 8
    for ks in range(p.qpre): a(f"ds_read_b128 {V(vQG+4*ks)}, v{vQA+ks}")
    a(f"""s_cmp_eq_u32 s{sT3}, 0
    s_cbranch_scc1 L_Y_s""")
    uvdma(sQ, p.uv1, 8)
    a("s_barrier")
    if p.prio: a(f"s_setprio {p.prio}")
    a.label("L_Y_s")
    for ks in range(p.qpre, NQ): a(f"ds_read_b128 {V(vQG+4*ks)}, v{vQA+ks}")
    for ks in range(16):
        rem = min(15, ks+NQ-1) - ks
        a(f"s_waitcnt lgkmcnt({rem})")
        mfma(vACC, vSF+4*ks, vQG+4*(ks % NQ), '0' if ks == 0 else None)
        if ks + NQ < 16: a(f"ds_read_b128 {V(vQG+4*(ks%NQ))}, v{vQA+ks+NQ}")
    a(f"""ds_write_b128 v11, {V(vACC)}
    s_waitcnt lgkmcnt(0)
    s_barrier""")
    stamp(6)
    vS = 48
    for T in range(4): a(f"ds_read_b128 {V(vS+4*T)}, v10 offset:{1024*T}")
    hint(0)
    a(f"""s_waitcnt lgkmcnt(2)
    v_max3_f32 v64, v{vS}, v{vS+1}, v{vS+2}
    v_max3_f32 v65, v{vS+3}, v{vS+4}, v{vS+5}
    v_max3_f32 v64, v64, v{vS+6}, v{vS+7}
    s_waitcnt lgkmcnt(0)
    v_max3_f32 v65, v65, v{vS+8}, v{vS+9}
    v_max3_f32 v64, v64, v{vS+10}, v{vS+11}
    v_max3_f32 v65, v65, v{vS+12}, v{vS+13}
    v_max3_f32 v64, v64, v{vS+14}, v{vS+15}
    v_max_f32 v64, v64, v65""")
    allred_groups("v_max_f32", 64, 65)
    for k in range(8): a(f"v_pk_add_f32 v[{vS+2*k}:{vS+2*k+1}], v[{vS+2*k}:{vS+2*k+1}], v[64:65] op_sel_hi:[1,0] neg_lo:[0,1] neg_hi:[0,1]")
    for k in range(16): a(f"v_exp_f32 v{vS+k}, v{vS+k}")
    hint(1)
    if p.diag == 1: stamp(1)
    a(f"""s_cmp_eq_u32 s{sT3}, 0
    s_cbranch_scc0 L_Y_p
    s_barrier""")
    a.label("L_Y_p")
    vP = 72
    for k in range(8): a(f"v_cvt_pk_bf16_f32 v{vP+k}, v{vS+2*k}, v{vS+2*k+1}")
    hint(2)
    if p.diag == 1: stamp(4)
    a(f"""s_cmp_eq_u32 s{sT2}, 0
    s_cbranch_scc0 L_Y_nol""")
    mfma(68, 248, vP, '0')
    mfma(68, 248, vP+4)
    a.label("L_Y_nol")
    def epi(k):
        for r in range(4): a(f"v_cvt_pk_bf16_f32 v{80+4*r+k}, v{vACC+8*k+r}, v{vACC+8*k+4+r}")
        for r in range(4): a(f"v_bfi_b32 v{80+4*r+k}, v9, v{vTO+k}, v{80+4*r+k}")
    for k in range(4):
        mfma(vACC+8*k, vP, vPF+16*k, '0')
        mfma(vACC+8*k+4, vP, vPF+16*k+8, '0')
        mfma(vACC+8*k, vP+4, vPF+16*k+4)
        mfma(vACC+8*k+4, vP+4, vPF+16*k+12)
        if k == 1:
            a(f"""v_mov_b32 v66, s{sT[0]}
            v_mov_b32 v65, v68
            s_cmp_eq_u32 s{sT2}, 0
            s_cselect_b32 exec_lo, 0xffff, 0
            s_mov_b32 exec_hi, 0
            buffer_store_dwordx4 v[64:67], v15, {R(rWS)}, s{sT1} offen sc1
            s_mov_b64 exec, -1""")
        if k >= 2: epi(k-2)
    if p.diag == 1: stamp(2)
    epi(2)
    if p.diag == 1: stamp(3)
    for r in range(4):
        a(f"v_cvt_pk_bf16_f32 v{83+4*r}, v{vACC+24+r}, v{vACC+28+r}")
        a(f"v_bfi_b32 v{83+4*r}, v9, v{vTO+3}, v{83+4*r}")
        if p.halfo: a("s_mov_b32 exec_lo, 0x00ff00ff\ns_mov_b32 exec_hi, 0x00ff00ff")
        a(f"buffer_store_dwordx4 {V(80+4*r)}, v12, {R(rWS)}, s{sT0} offen sc1")
        if p.halfo: a("s_mov_b64 exec, -1")
        if r < 3: a(f"s_add_u32 s{sT0}, s{sT0}, 0x20000")
    hint(3)
    stamp(7)
    if p.prio: a("s_setprio 0")
    a(f"s_sub_u32 s{sI}, s{sJ}, 4")
    a(f"""v_bfe_u32 v9, v{vL}, 2, 2
    v_lshl_add_u32 v134, v{vG}, 3, v9
    v_lshlrev_b32 v134, 8, v134
    v_and_b32 v11, 1, v{vG}
    v_lshl_add_u32 v9, v11, 2, v9
    v_lshlrev_b32 v9, 1, v9
    v_bfe_u32 v11, v{vL}, 1, 1
    s_lshl_b32 s{sT0}, s{sWave}, 1
    v_add_u32 v11, s{sT0}, v11
    v_xor_b32 v9, v9, v11
    v_lshl_add_u32 v134, v9, 4, v134
    v_and_b32 v9, 1, v{vL}
    v_lshl_add_u32 v134, v9, 3, v134
    v_add_u32 v134, {L_WUVY}, v134""")
    a(f"""v_bfe_u32 v9, v{vL}, 3, 1
    v_lshlrev_b32 v120, {10 if p.cstat else 15}, v9
    v_and_b32 v11, 3, v{vL}
    v_lshl_add_u32 v120, v11, {6 if p.cstat else 11}, v120
    v_lshl_add_u32 v120, v{vG}, {4 if p.cstat else 9}, v120
    s_and_b32 s{sT2}, s{sWave}, 3
    s_lshr_b32 s{sT3}, s{sWave}, 2
    s_lshl_b32 s{sT0}, s{sT2}, {8 if p.cstat else 13}
    s_lshl_b32 s{sT1}, s{sH}, {11 if p.cstat else 4}
    s_add_u32 s{sT0}, s{sT0}, s{sT1}
    s_add_u32 s{sT0}, s{sT0}, {ST}""")
    a(f"""v_lshlrev_b32 v121, 14, v9
    v_lshl_add_u32 v121, v{vG}, 8, v121
    v_and_b32 v11, 7, v{vL}
    v_lshl_add_u32 v121, v11, 4, v121
    s_lshl_b32 s{sT1}, s{sH}, 2
    s_add_u32 s{sT1}, s{sT1}, s{sI}
    s_lshl_b32 s{sQ+1}, s{sH}, 12
    s_lshl_b32 s{sQ+3}, s{sI}, 8
    s_add_u32 s{sQ+1}, s{sQ+1}, s{sQ+3}
    s_add_u32 s{sQ+3}, s{sQ+1}, {CXL}
    s_add_u32 s{sQ+1}, s{sQ+1}, {CX}
    s_lshl_b32 s{sT1}, s{sT1}, 15
    s_lshl_b32 s{sQ}, s{sT2}, 12
    s_add_u32 s{sT1}, s{sT1}, s{sQ}
    s_lshl_b32 s{sQ}, s{sT3}, {7 if not p.halfo else 11}
    s_add_u32 s{sT1}, s{sT1}, s{sQ}
    s_add_u32 s{sT1}, s{sT1}, {OP}""")
    a(f"v_and_b32 v122, 1, v{vG}\nv_mul_u32_u24 v122, 0xff, v122")
    lsbtags(124, "v122")
    a(f"""v_mul_u32_u24 v122, {4*272}, v9
    v_lshl_add_u32 v122, v11, 4, v122
    v_and_b32 v123, 1, v{vG}
    v_lshl_add_u32 v122, v123, 3, v122
    s_mul_i32 s{sQ}, s{sT2}, 272
    s_lshl_b32 s{sQ+2}, s{sT3}, 7
    s_add_u32 s{sQ}, s{sQ}, s{sQ+2}
    s_add_u32 s{sQ}, s{sQ}, {L_AIMGY}
    v_add_u32 v122, s{sQ}, v122""")
    a(f"""v_lshlrev_b32 v128, 5, v9
    s_lshl_b32 s{sQ}, s{sT2}, 2
    s_add_u32 s{sQ}, s{sQ}, {L_VSTY}
    v_add_u32 v128, s{sQ}, v128
    v_lshlrev_b32 v129, 5, v123
    v_add_u32 v129, {L_VSTY}, v129""")
    a(f"""v_mul_u32_u24 v130, 272, v11
    v_lshl_add_u32 v130, v{vG}, 4, v130
    v_add_u32 v130, {L_AIMGY}, v130""")
    a(f"""v_lshlrev_b32 v131, 5, v{vG}
    v_lshl_add_u32 v131, v11, 2, v131
    v_lshl_add_u32 v131, v9, 6, v131
    s_lshr_b32 s{sQ}, s{sWave}, 1
    s_lshl_b32 s{sQ}, s{sQ}, 10
    s_and_b32 s{sQ+2}, s{sWave}, 1
    s_lshl_b32 s{sQ+2}, s{sQ+2}, 7
    s_add_u32 s{sQ}, s{sQ}, s{sQ+2}
    v_add_u32 v131, s{sQ}, v131
    v_and_b32 v132, 3, v{vL}
    v_mul_u32_u24 v132, 37, v132
    v_add_u32 v132, s{sT[0]}, v132""")
    a("v_mov_b32 v133, 1")
    a(f"s_mov_b32 s{sQ+4}, s{sT0}\ns_mov_b32 s{sQ+5}, s{sT1}")
    a(f"""s_cmp_lg_u32 s{sWave}, 0
    s_cbranch_scc1 L_Y_v
    s_bfe_u32 s{sT0}, s2, 0x10004
    s_lshl_b32 s{sT0}, s{sT0}, 7
    s_add_u32 s{sT0}, s{sT0}, {HC}""")
    for k in range(p.nsamp):
        a(f"s_add_u32 s{4+k}, s2, {37*k}\ns_and_b32 s{4+k}, s{4+k}, 127\ns_lshl_b32 s{4+k}, s{4+k}, 8\ns_add_u32 s{4+k}, s{4+k}, s{sT0}")
    if p.need: spoll_cnt([4+k for k in range(p.nsamp)], 12, p.need)
    else: spoll_all([4+k for k in range(p.nsamp)], 12)
    a.label("L_Y_v")
    a(f"s_waitcnt vmcnt({0 if p.odrain else 4})\ns_barrier")
    vBV = 20
    stamp(1)
    vOD = 56
    def cloads():
        a(f"buffer_load_dwordx4 v[52:55], v120, {R(rWS)}, s{sQ+4} offen sc1")
        for u in range(4): a(f"buffer_load_dwordx4 {V(vOD+4*u)}, v121, {R(rWS)}, s{sQ+5} offen offset:{1024*(u if not p.halfo else u&1)} sc1")
    cloads()
    for ks in range(4):
        for hf in range(2):
            a(f"ds_read_b64_tr_b16 {V(vBV+4*ks+2*hf, 2)}, v134 offset:{(32*ks+4*hf)*256}")
    if p.diag == 3:
        a(f"s_waitcnt vmcnt(4)\ns_memrealtime s[{sStamp+2}:{sStamp+3}]\ns_waitcnt vmcnt(0)\ns_memrealtime s[{sStamp+4}:{sStamp+5}]")
    Lc = a.newlabel('cchk')
    a(f"s_mov_b32 s{sCnt}, 0\ns_branch {Lc}")
    L = a.newlabel('poll'); a.label(L)
    cloads()
    a.label(Lc)
    a(f"""s_mov_b64 exec, -1
    s_waitcnt vmcnt(4)
    v_max_f32_dpp v50, v52, v52 quad_perm:[1,0,3,2] row_mask:0xf bank_mask:0xf
    v_cmp_ne_u32 vcc, s{sT[0]}, v54
    v_max_f32_dpp v50, v50, v50 quad_perm:[2,3,0,1] row_mask:0xf bank_mask:0xf
    v_cndmask_b32 v49, 0, v133, vcc""")
    allred_groups("v_max_f32", 50, 51)
    a(f"""v_sub_f32 v51, v52, v50
    v_exp_f32 v51, v51
    v_cvt_pk_bf16_f32 v51, v51, v51""")
    for u in range(4):
        buildA(72+4*u, 51, u)
    for u in range(4):
        a(f"s_waitcnt vmcnt({3-u})")
        mfma(88, 72+4*u, vOD+4*u, '0' if u == 0 else None)
        chkv(49, vOD+4*u, 124)
    a(f"""v_and_b32 v51, 0xffff0000, v51
    v_mul_f32 v51, v51, v53
    v_add_f32_dpp v51, v51, v51 quad_perm:[1,0,3,2] row_mask:0xf bank_mask:0xf
    v_add_f32_dpp v51, v51, v51 quad_perm:[2,3,0,1] row_mask:0xf bank_mask:0xf""")
    allred_groups("v_add_f32", 51, 55)
    poll_end_masked(L, 49, '0x10001')
    if p.stamp: a(f"s_mov_b32 s{sStamp+24}, s{sCnt}")
    stamp(8)
    a(f"""ds_write2_b32 v128, v50, v51 offset0:0 offset1:4
    v_cvt_pk_bf16_f32 v88, v88, v89
    v_cvt_pk_bf16_f32 v89, v90, v91
    s_mov_b32 exec_lo, 0x00ff00ff
    s_mov_b32 exec_hi, 0xff00ff00
    ds_write_b64 v122, v[88:89]
    s_mov_b64 exec, -1
    s_waitcnt lgkmcnt(0)
    s_barrier""")
    for ks in range(4): a(f"ds_read_b128 {V(56+4*ks)}, v130 offset:{64*ks}")
    a(f"ds_read_b128 v[72:75], v129\nds_read_b128 v[76:79], v129 offset:16")
    for ks in range(4):
        a(f"s_waitcnt lgkmcnt({5-ks})")
        mfma(88, 56+4*ks, vBV+4*ks, '0' if ks == 0 else None)
    a(f"""s_waitcnt lgkmcnt(0)
    v_max3_f32 v50, v72, v73, v74
    v_max_f32 v50, v50, v75""")
    for r in range(4): a(f"v_sub_f32 v{72+r}, v{72+r}, v50")
    for r in range(4): a(f"v_exp_f32 v{72+r}, v{72+r}")
    a(f"""v_mul_f32 v51, v72, v76
    v_fmac_f32 v51, v73, v77
    v_fmac_f32 v51, v74, v78
    v_fmac_f32 v51, v75, v79
    v_rcp_f32 v51, v51
    v_mul_f32 v50, v72, v88
    v_fmac_f32 v50, v73, v89
    v_fmac_f32 v50, v74, v90
    v_fmac_f32 v50, v75, v91
    v_mul_f32 v50, v50, v51
    v_mov_b32_sdwa v50, v132 dst_sel:BYTE_0 dst_unused:UNUSED_PRESERVE src0_sel:BYTE_0
    s_mov_b32 exec_hi, 0""")
    if p.fast: a(f"buffer_store_dword v50, v131, {R(rWS)}, s{sQ+3} offen")
    a(f"""buffer_store_dword v50, v131, {R(rWS)}, s{sQ+1} offen sc1
    s_mov_b64 exec, -1""")
    stamp(2)
    a(f"""s_sub_u32 s2, s2, 128
    s_cmp_ge_u32 s2, 72
    s_cbranch_scc1 L_Y_end
    s_cmp_ge_u32 s2, 36
    s_cselect_b32 s{sT2}, 1, 0
    s_mul_i32 s{sT3}, s{sT2}, 36
    s_sub_u32 s{sT3}, s2, s{sT3}
    s_mul_i32 s{sT0}, s{sWave}, {16*4608}
    s_mul_i32 s{sT1}, s{sT2}, 2304
    s_add_u32 s{sT0}, s{sT0}, s{sT1}
    s_lshl_b32 s{sT1}, s{sT3}, 6
    s_add_u32 s{sT0}, s{sT0}, s{sT1}
    s_add_u32 s{sT0}, s{sT0}, {FP}
    v_lshrrev_b32 v9, 2, v{vL}
    v_mul_u32_u24 v10, 4608, v9
    v_and_b32 v11, 3, v{vL}
    v_lshl_add_u32 v10, v11, 4, v10
    v_lshl_add_u32 v13, v{vG}, 2, v11
    v_lshlrev_b32 v13, 5, v13
    s_lshl_b32 s{sT1}, s{sWave}, 2
    s_add_u32 s{sT1}, s{sT1}, {L_REDY}
    v_add_u32 v13, s{sT1}, v13""")
    srd(rB, pB2, SZ['b2']); srd(rC, pOUT, SZ['out'])
    a(f"""s_lshl_b32 s{sT1}, s{sT3}, 2
    v_add_u32 v14, s{sT1}, v11""")
    decode_v(15, 14, 16)
    a(f"""v_bfe_u32 v14, v{vL}, 2, 2
    v_add_u32 v15, v15, v14
    v_lshlrev_b32 v15, 1, v15
    buffer_load_ushort v16, v15, {R(rB)}, 0 offen
    s_lshl_b32 s{sT1}, s{sT2}, 2
    s_add_u32 s{sT1}, s{sT1}, {L_GATE}
    v_mov_b32 v17, s{sT1}
    ds_read_b32 v17, v17
    v_lshlrev_b32 v18, 5, v{vJ}
    v_add_u32 v18, {L_REDY}, v18
    s_mul_i32 s{sT2}, s{sT2}, 1152
    s_add_u32 s{sT3}, s{sT0}, {FP2-FP}""")
    if p.outpre: a(f"buffer_load_ushort v19, v15, {R(rC)}, s{sT2} offen")
    a(f"""s_waitcnt vmcnt(0) lgkmcnt(0)
    v_lshlrev_b32 v16, 16, v16
    v_sub_f32 v17, 1.0, v17
    v_mul_f32 v16, v16, v17""")
    if p.dflag >= 3:
        for k in range(p.dsamp):
            a(f"s_add_u32 s{4+k}, s2, {(16//p.dsamp)*k}\ns_and_b32 s{4+k}, s{4+k}, 15\ns_lshl_b32 s{sQ}, s{sWave}, 4\ns_add_u32 s{4+k}, s{4+k}, s{sQ}\ns_lshl_b32 s{4+k}, s{4+k}, 7\ns_add_u32 s{4+k}, s{4+k}, {HD}")
        spoll_all([4+k for k in range(p.dsamp)], 12)
        stamp(9)
    L = poll_begin()
    a(f"""buffer_load_dwordx4 v[20:23], v10, {R(rWS)}, s{sT0} offen sc1
    s_mov_b64 exec, -1
    s_waitcnt vmcnt(0)""")
    chk4(24, 20, True)
    poll_end_masked(L, 24, '0xff')
    stamp(10)
    treduce(20)
    a(f"""v_add_f32_dpp v20, v20, v20 row_ror:4 row_mask:0xf bank_mask:0xf
    v_add_f32_dpp v20, v20, v20 row_ror:8 row_mask:0xf bank_mask:0xf
    ds_write_b32 v13, v20
    s_waitcnt lgkmcnt(0)
    s_barrier
    s_cmp_lg_u32 s{sWave}, 0
    s_cbranch_scc1 L_Y_end
    ds_read_b128 v[20:23], v18
    ds_read_b128 v[24:27], v18 offset:16
    s_waitcnt lgkmcnt(0)
    v_add_f32 v20, v20, v24
    v_add_f32 v21, v21, v25
    v_add_f32 v22, v22, v26
    v_add_f32 v23, v23, v27
    v_add_f32 v20, v20, v21
    v_add_f32 v22, v22, v23
    v_add_f32 v20, v20, v16
    v_add_f32 v20, v20, v22
    v_cvt_pk_bf16_f32 v20, v20, v20
    s_mov_b64 exec, 0xffff
    buffer_store_short v20, v15, {R(rC)}, s{sT2} offen {p.outf.replace('_',' ')}
    s_cmp_lg_u32 s2, 0
    s_cbranch_scc1 L_Y_end
    s_mov_b64 exec, 1
    v_mov_b32 v21, s{sT[0]}
    v_mov_b32 v22, 0
    buffer_store_dword v21, v22, {R(rWS)}, 0 offen offset:{EPOCH} sc1""")
    a.label("L_Y_end")
    if p.stamp: a("s_add_u32 s2, s2, 128")
    stamp(11)
    finish('Y')
    a.label("L_exit")
    a("s_endpgm")
    return a.finalize()

HEADER = open('gated_mix__compressed_kv_cla__dense_activation_gelu__decode.s.ref').read().split('; Override')[0]

def emit(path, p=P):
    body = build(p)
    s = HEADER + f"""; @launch grid=(256,1,1) block=(512,1,1) lds={LDS_BYTES}
.amdgcn_target "amdgcn-amd-amdhsa--gfx950"
.text
.globl {KNAME}
.p2align 8
.type {KNAME},@function
{KNAME}:
{body}.section .rodata,"a"
.p2align 6
.amdhsa_kernel {KNAME}
  .amdhsa_next_free_vgpr 256
  .amdhsa_next_free_sgpr 102
  .amdhsa_accum_offset 256
  .amdhsa_group_segment_fixed_size 0
  .amdhsa_kernarg_size 120
  .amdhsa_user_sgpr_count 2
  .amdhsa_user_sgpr_kernarg_segment_ptr 1
  .amdhsa_system_sgpr_workgroup_id_x 1
.end_amdhsa_kernel
"""
    open(path, 'w').write(s)

if __name__ == '__main__':
    out = sys.argv[1]
    for kv in sys.argv[2:]:
        k, v = kv.split('=')
        setattr(P, k, type(getattr(P, k))(v))
    emit(out)
```

```python
import sys, struct, math
from asmlib import Asm

KNAME = "gated_mix__compressed_kv_cla__dense_activation_gelu__decode_kernel"

def f2u(x): return struct.unpack('<I', struct.pack('<f', x))[0]

class P:
    stamp = 0
    nt = "nt"
    pollA_wait = 4
    maxspin = 200000
    prefetch = 1
    wsoff = 0
    fast = 1
    nlocal = 256
    hintpos = 3
    diag = 0
    xpre = 8
    ypre = 0
    gate = 11
    qat = 3
    bsleep = 0
    tlb = 1
    cstat = 1
    dflag = 3
    drep = 18
    dsamp = 2
    dstr = 2304
    wopre = 1
    won = 9
    xg = -1
    xgn = 2
    gand = 0
    wofirst = 1
    odrain = 0
    warm = 3
    halfo = 0
    outf = ""
    outpre = 0
    wopos = 0
    w2gate = 0
    uv1 = 4
    xord = 3
    wosplit = 20
    emub = 0
    ckvf = "nt"
    fpos = 0
    wogate = 0
    wgpos = 0
    uv2 = 0
    hmix = 0
    qsplit = 0
    bpos = 1
    kint = 1
    b0pos = 1
    nsamp = 4
    need = 0
    prio = 1
    only = ""
    b0 = 1
    wqdma = 0
    nod1 = 0
    sparseC = 1
    qpre = 4
    enc = -1
    encwave = 4

EPOCH, QP, QL, ST, CX, HP, FP, OP, STAMP = 0, 0x10000, 0x50000, 0x60000, 0x70000, 0x90000, 0x120000, 0x200000, 0x800000
QPL, CXL, HC, HG, HD, HK, FP2 = 0x600000, 0x640000, 0x660000, 0x670000, 0x678000, 0x680000, 0x690000
WS_REC = 0x1000000
L_CKV, L_QIMG, L_SX, L_HX, L_GATE = 0, 65536, 98304, 106496, 107008
L_WQ = 0x18000 - 20480
L_WUK, L_WUV, L_QV, L_AIMG, L_VST, L_RED = 0, 32768, 65536, 66048, 68352, 68480
L_WUVY = 107520
LDS_BYTES = 107520 + 32768
L_AIMGY, L_VSTY, L_REDY = 98304, 100608, 100736
pX, pCKV, pWQ, pWUK, pWUV, pWO, pW1, pB1, pW2, pB2, pGW, pOUT, pWS = 4, 6, 8, 10, 12, 14, 18, 20, 22, 24, 26, 28, 32
sWave, sH, sJ, sI, sXcd, sTag = 3, 34, 35, 56, 57, 58
sT = [58, 59, 60, 61]
rA, rB, rC, rWS = 36, 40, 44, 48
sT0, sT1, sT2, sT3 = 52, 53, 54, 55
sCnt = 62
sQ = 64
sStamp = 76
vL, vJ, vG, vM, vL16 = 1, 2, 3, 4, 8
SZ = dict(x=2304, ckv=8388608, wq=4718592, wuk=4194304, wuv=4194304, wo=4718592, w1=5308416, w2=5308416, b1=9216, b2=1152, gw=1152, out=2304)

def build(p=P):
    a = Asm()
    nt = p.nt
    def srd(r, ptr, size):
        if ptr == pWS and p.wsoff:
            a(f"s_add_u32 s{r}, s{ptr}, {p.wsoff}\ns_addc_u32 s{r+1}, s{ptr+1}, 0\ns_mov_b32 s{r+2}, {size}\ns_mov_b32 s{r+3}, 0x20000")
            return
        a(f"s_mov_b32 s{r}, s{ptr}\ns_mov_b32 s{r+1}, s{ptr+1}\ns_mov_b32 s{r+2}, {size}\ns_mov_b32 s{r+3}, 0x20000")
    def R(r): return f"s[{r}:{r+3}]"
    def V(r, n=4): return f"v[{r}:{r+n-1}]"
    def stamp(k):
        if p.only and k not in [int(x) for x in p.only.split('.')]: return
        if p.stamp: a(f"s_memrealtime s[{sStamp+2*k}:{sStamp+2*k+1}]")
    def cyc(k):
        if p.diag == 5: a(f"s_memtime s[{sStamp+2*k}:{sStamp+2*k+1}]")
    def buildA(dst, x, u):
        for r in range(4):
            a(f"v_and_b32_dpp v{dst+r}, v{x}, v{vM+r} quad_perm:[{u},{u},{u},{u}] row_mask:0xf bank_mask:0xf")
    def mfma(d, A, B, c=None):
        a(f"v_mfma_f32_16x16x32_bf16 {V(d)}, {V(A)}, {V(B)}, {V(d) if c is None else c}")
    def tag4(d):
        for k in range(4):
            a(f"v_mov_b32_sdwa v{d+k}, s{sT[k]} dst_sel:BYTE_0 dst_unused:UNUSED_PRESERVE src0_sel:BYTE_0")
    def chk4(acc, d, first=False):
        for k in range(4):
            if first and k == 0: a(f"v_xor_b32 v{acc}, s{sT[0]}, v{d}")
            else: a(f"v_bitop3_b32 v{acc}, v{acc}, v{d+k}, s{sT[k]} bitop3:0xf6")
    def chkv(acc, d, t, first=False):
        for k in range(4):
            if first and k == 0: a(f"v_xor_b32 v{acc}, v{t}, v{d}")
            else: a(f"v_bitop3_b32 v{acc}, v{acc}, v{d+k}, v{t+k} bitop3:0xf6")
    def poll_begin():
        L = a.newlabel('poll')
        a(f"s_mov_b32 s{sCnt}, 0")
        a.label(L)
        return L
    def poll_end(L, acc, mask, fb=None, lim=None):
        D = a.newlabel('done')
        a(f"v_and_b32 v{acc}, {mask}, v{acc}\nv_cmp_ne_u32 vcc, 0, v{acc}\ns_add_u32 s{sCnt}, s{sCnt}, 1")
        a(f"s_cbranch_vccz {D}")
        if fb and p.fast:
            regs, delta = fb
            a(f"s_cmp_eq_u32 s{sCnt}, {p.nlocal}\ns_cselect_b32 vcc_lo, {delta}, 0")
            for r in regs: a(f"s_sub_u32 s{r}, s{r}, vcc_lo")
        a(f"s_cmp_lt_u32 s{sCnt}, {lim or p.maxspin}\ns_cbranch_scc1 {L}")
        a.label(D)
    def poll_end_masked(L, acc, mask, sleep=0):
        D = a.newlabel('done')
        a(f"""v_and_b32 v{acc}, {mask}, v{acc}
        v_cmp_ne_u32 vcc, 0, v{acc}
        s_add_u32 s{sCnt}, s{sCnt}, 1
        s_cbranch_vccz {D}
        s_wqm_b64 exec, vcc""")
        if sleep: a(f"s_sleep {sleep}")
        a(f"""s_cmp_lt_u32 s{sCnt}, {p.maxspin}
        s_cbranch_scc1 {L}
        s_mov_b64 exec, -1""")
        a.label(D)
    def spoll_cnt(off_regs, tmp, need):
        L = a.newlabel('sp'); D = a.newlabel('spd')
        a(f"s_mov_b32 s{sCnt}, 0")
        a.label(L)
        for k, r in enumerate(off_regs): a(f"s_load_dword s{tmp+k}, s[{rWS}:{rWS+1}], s{r} glc")
        a(f"s_add_u32 s{sCnt}, s{sCnt}, 1\ns_cmp_ge_u32 s{sCnt}, {p.maxspin}\ns_cbranch_scc1 {D}\ns_mov_b32 vcc_lo, 0\ns_waitcnt lgkmcnt(0)")
        for k, r in enumerate(off_regs): a(f"s_cmp_eq_u32 s{tmp+k}, s{sT[0]}\ns_addc_u32 vcc_lo, vcc_lo, 0")
        a(f"s_cmp_lt_u32 vcc_lo, {need}\ns_cbranch_scc1 {L}")
        a.label(D)
        a("s_waitcnt lgkmcnt(0)")
    def spoll_all(off_regs, tmp):
        L = a.newlabel('sp'); D = a.newlabel('spd')
        a(f"s_mov_b32 s{sCnt}, 0")
        a.label(L)
        for k, r in enumerate(off_regs): a(f"s_load_dword s{tmp+k}, s[{rWS}:{rWS+1}], s{r} glc")
        a(f"s_add_u32 s{sCnt}, s{sCnt}, 1\ns_cmp_ge_u32 s{sCnt}, {p.maxspin}\ns_cbranch_scc1 {D}\ns_waitcnt lgkmcnt(0)")
        for k, r in enumerate(off_regs): a(f"s_cmp_lg_u32 s{tmp+k}, s{sT[0]}\ns_cbranch_scc1 {L}")
        a.label(D)
        a("s_waitcnt lgkmcnt(0)")
    def spoll(off_regs):
        L = a.newlabel('sp'); D = a.newlabel('spd')
        a(f"s_mov_b32 s{sCnt}, 0")
        a.label(L)
        for k, r in enumerate(off_regs): a(f"s_load_dword s{sT0+k}, s[{rWS}:{rWS+1}], s{r} glc")
        a(f"s_add_u32 s{sCnt}, s{sCnt}, 1\ns_waitcnt lgkmcnt(0)")
        for k, r in enumerate(off_regs): a(f"s_cmp_eq_u32 s{sT0+k}, s{sT[0]}\ns_cbranch_scc1 {D}")
        a(f"s_cmp_lt_u32 s{sCnt}, {p.maxspin}\ns_cbranch_scc1 {L}")
        a.label(D)
    def treduce(r):
        a(f"v_permlane32_swap_b32 v{r}, v{r+2}\nv_permlane32_swap_b32 v{r+1}, v{r+3}")
        a(f"v_add_f32 v{r}, v{r}, v{r+2}\nv_add_f32 v{r+1}, v{r+1}, v{r+3}")
        a(f"v_permlane16_swap_b32 v{r}, v{r+1}\nv_add_f32 v{r}, v{r}, v{r+1}")
    def allred_groups(op, r, t):
        a(f"v_mov_b32 v{t}, v{r}\nv_permlane32_swap_b32 v{r}, v{t}\n{op} v{r}, v{r}, v{t}")
        a(f"v_mov_b32 v{t}, v{r}\nv_permlane16_swap_b32 v{r}, v{t}\n{op} v{r}, v{r}, v{t}")
    def masks():
        a(f"""v_and_b32 v9, 3, v{vL}
        v_lshlrev_b32 v9, 4, v9
        v_mov_b32 v10, 0xffff
        v_mov_b32 v11, 0
        v_lshlrev_b64 v[10:11], v9, v[10:11]
        v_and_b32 v9, 4, v{vL}
        v_cmp_eq_u32 vcc, 0, v9
        v_cndmask_b32 v{vM}, 0, v10, vcc
        v_cndmask_b32 v{vM+1}, 0, v11, vcc
        v_cndmask_b32 v{vM+2}, v10, 0, vcc
        v_cndmask_b32 v{vM+3}, v11, 0, vcc""".replace('v_cndmask_b32 v%d, v10, 0, vcc' % (vM+2), 'v_cndmask_b32_e64 v%d, v10, 0, vcc' % (vM+2)).replace('v_cndmask_b32 v%d, v11, 0, vcc' % (vM+3), 'v_cndmask_b32_e64 v%d, v11, 0, vcc' % (vM+3)))
    def xoff(dst):
        a(f"""v_bfe_u32 v{dst}, v{vL}, 3, 1
        v_mul_u32_u24 v{dst}, 1152, v{dst}
        v_and_b32 v9, 3, v{vL}
        v_lshl_add_u32 v{dst}, v9, 3, v{dst}
        v_lshl_add_u32 v{dst}, v{vG}, 1, v{dst}""")
    def epoch_wait():
        a(f"""s_waitcnt lgkmcnt(0)
        s_add_u32 s{sT[0]}, s{sT[0]}, 1
        s_addc_u32 s{sT[0]}, s{sT[0]}, 0
        s_add_u32 s{sT[1]}, s{sT[0]}, 37
        s_add_u32 s{sT[2]}, s{sT[0]}, 74
        s_add_u32 s{sT[3]}, s{sT[0]}, 111""")
    def lsbtags(t, flip=None):
        a(f"""v_and_b32 v{t}, 7, v{vL}
        v_mul_u32_u24 v{t}, 37, v{t}
        v_add_u32 v{t}, s{sT[0]}, v{t}""")
        if flip: a(f"v_xor_b32 v{t}, {flip}, v{t}")
        a(f"""v_and_b32 v{t}, 0xff, v{t}
        v_lshl_or_b32 v{t}, v{t}, 15, v{t}
        v_lshrrev_b32 v{t+1}, 2, v{t}
        v_lshrrev_b32 v{t+2}, 4, v{t}
        v_lshrrev_b32 v{t+3}, 6, v{t}""")
    def decode_v(dst, src, t):
        a(f"""v_lshrrev_b32 v{dst}, 5, v{src}
        v_lshlrev_b32 v{dst}, 7, v{dst}
        v_and_b32 v{t}, 15, v{src}
        v_lshl_add_u32 v{dst}, v{t}, 3, v{dst}
        v_bfe_u32 v{t}, v{src}, 4, 1
        v_lshl_add_u32 v{dst}, v{t}, 2, v{dst}
        v_and_b32 v{t}, 7, v{src}
        v_lshlrev_b32 v{t}, 3, v{t}
        v_bfe_u32 v{t+1}, v{src}, 3, 1
        v_lshl_add_u32 v{t}, v{t+1}, 2, v{t}
        v_add_u32 v{t}, 512, v{t}
        v_cmp_gt_u32 vcc, 128, v{src}
        v_cndmask_b32 v{dst}, v{t}, v{dst}, vcc""")
    def finish(nst):
        if p.stamp == 5:
            a("s_endpgm"); return
        if p.stamp == 3:
            Ls = a.newlabel('noenc'); Lw = a.newlabel('encw')
            a(f"""s_waitcnt lgkmcnt(0)
            s_lshl_b32 s{sT0}, s2, 3
            s_add_u32 s{sT0}, s{sT0}, s{sWave}
            s_cmp_eq_u32 s{sT0}, {p.encwave}
            s_cbranch_scc0 {Ls}
{Lw}:
            s_memrealtime s[{sT0}:{sT1}]
            s_waitcnt lgkmcnt(0)
            s_sub_u32 s{sT0}, s{sT0}, s{sStamp+2*p.enc}
            s_cmp_lt_u32 s{sT0}, 3000
            s_cbranch_scc1 {Lw}
{Ls}:
            s_endpgm""")
            return
        if p.stamp:
            a(f"""s_waitcnt lgkmcnt(0)
            s_lshl_b32 s{sT0}, s2, 3
            s_add_u32 s{sT0}, s{sT0}, s{sWave}
            s_lshl_b32 s{sT0}, s{sT0}, 6
            s_add_u32 s{sT0}, s{sT0}, {STAMP}
            s_mov_b64 exec, 1
            v_mov_b32 v9, 0""")
            for k in range(13):
                a(f"v_mov_b32 v{10+k}, s{sStamp+2*k}\nbuffer_store_dword v{10+k}, v9, {R(rWS)}, s{sT0} offen offset:{4*k}")
        if p.stamp == 2:
            Ls = a.newlabel('nosum')
            a(f"""s_lshl_b32 s{sT0}, s2, 3
            s_add_u32 s{sT0}, s{sT0}, s{sWave}
            s_cmp_eq_u32 s{sT0}, {4 if nst == 'X' else 1024}
            s_cbranch_scc0 {Ls}""")
            srd(rB, 30, 256)
            for n, k in enumerate((1,2,3,4,7,8,9,10) if nst == 'X' else (1,2,3,4,7,8,10,11)):
                a(f"s_sub_u32 s{sT1}, s{sStamp+2*k}, s{sStamp}\nv_mov_b32 v{30+n}, s{sT1}\nbuffer_store_dword v{30+n}, v9, {R(rB)}, 0 offen offset:{4*n + (0 if nst == 'X' else 32)}")
            a.label(Ls)
        a("s_endpgm")

    def slot_store(d, base_s, wave_is_half, toff):
        tag4(d)
        if wave_is_half: a("s_mov_b32 exec_lo, 0x00ff00ff\ns_mov_b32 exec_hi, 0x00ff00ff")
        a(f"buffer_store_dwordx4 {V(d)}, v{toff}, {R(rWS)}, s{base_s} offen sc1")
        if wave_is_half: a("s_mov_b64 exec, -1")
    def slot_voff(dst, half):
        a(f"""v_lshrrev_b32 v{dst}, 1, v{vG}
        v_mul_u32_u24 v{dst}, 2304, v{dst}
        v_lshl_add_u32 v{dst}, v{vJ}, 4, v{dst}
        v_and_b32 v9, 1, v{vG}""")
        if half:
            a(f"v_lshl_add_u32 v{dst}, v9, 7, v{dst}\nv_add_u32 v{dst}, 2048, v{dst}")
        else:
            a(f"v_lshl_add_u32 v{dst}, v9, 8, v{dst}\ns_lshl_b32 s{sT0}, s{sWave}, 9\nv_add_u32 v{dst}, s{sT0}, v{dst}")

    def zstamps():
        if p.stamp:
            for k in range(1, 13): a(f"s_mov_b32 s{sStamp+2*k}, 0")
    vXP, vAP, vWP, vDP = 12, 20, 100, 180
    assert p.wsoff == 0
    stamp(0)
    a(f"""s_load_dwordx8 s[36:43], s[0:1], 0
    s_load_dwordx2 s[{rWS}:{rWS+1}], s[0:1], 112
    v_readfirstlane_b32 s{sWave}, v0
    v_and_b32 v{vJ}, 15, v0
    s_lshr_b32 s{sJ}, s2, 5
    s_and_b32 s{sH}, s2, 31""")
    if p.hmix == 1: a(f"s_lshr_b32 s{sT0}, s{sH}, 3\ns_xor_b32 s{sH}, s{sH}, s{sT0}")
    if p.hmix == 2: a(f"s_lshr_b32 s{sT0}, s{sH}, 2\ns_and_b32 s{sT0}, s{sT0}, 6\ns_xor_b32 s{sH}, s{sH}, s{sT0}")
    if p.hmix == 3: a(f"s_lshr_b32 s{sT0}, s{sH}, 3\ns_mul_i32 s{sT0}, s{sT0}, 5\ns_and_b32 s{sT0}, s{sT0}, 7\ns_xor_b32 s{sH}, s{sH}, s{sT0}")
    a(f"""s_mov_b32 s{rWS+3}, 0x20000
    s_lshr_b32 s{sT0}, s2, 8
    s_or_b32 s{sT0}, s{sT0}, s{sWave}
    s_cbranch_scc1 L_rest""")
    a(f"""v_lshrrev_b32 v{vG}, 4, v0
    v_lshlrev_b32 v9, 15, v{vG}
    v_lshl_add_u32 v9, v{vJ}, 4, v9
    v_add_u32 v10, {8192-1024}, v9
    v_add_u32 v11, {2*(8192-1024)}, v9
    v_add_u32 v12, {3*(8192-1024)}, v9
    s_mul_i32 s{sT0}, s{sJ}, {72*32}
    s_add_u32 s{sT0}, s{sT0}, s{sH}
    s_lshl_b32 s{sT0}, s{sT0}, 8
    s_mov_b32 m0, {L_WQ}
    v_lshrrev_b32 v13, 3, v{vJ}
    v_mul_u32_u24 v13, 144, v13
    v_and_b32 v14, 3, v0
    v_lshl_add_u32 v14, v14, 2, v{vG}
    v_add_lshl_u32 v13, v13, v14, 3
    s_mul_i32 s{sT1}, s{sJ}, 144
    s_waitcnt lgkmcnt(0)
    s_movk_i32 s{rA+2}, {SZ['x']}
    s_mov_b32 s{rA+3}, s{rWS+3}
    s_add_u32 s{rB+2}, s{sT0}, {71*8192+256}
    s_mov_b32 s{rB+3}, s{rWS+3}""")
    if p.diag == 2: a(f"s_memrealtime s[{sQ+6}:{sQ+7}]")
    a(f"""buffer_load_dwordx2 v[186:187], v13, {R(rA)}, s{sT1} offen
    buffer_load_dwordx2 v[188:189], v13, {R(rA)}, s{sT1} offen offset:128
L_wq:
    buffer_load_dwordx4 v9, {R(rB)}, s{sT0} offen {nt} lds
    buffer_load_dwordx4 v10, {R(rB)}, s{sT0} offen offset:1024 {nt} lds
    buffer_load_dwordx4 v11, {R(rB)}, s{sT0} offen offset:2048 {nt} lds
    buffer_load_dwordx4 v12, {R(rB)}, s{sT0} offen offset:3072 {nt} lds
    s_addk_i32 m0, 4096
    s_add_u32 s{sT0}, s{sT0}, s{rWS+3}
    s_bitcmp0_b32 m0, 15
    s_cbranch_scc1 L_wq""")
    if p.diag == 2: a(f"s_memrealtime s[{sQ+8}:{sQ+9}]")
    if p.b0pos == 0: a("s_barrier")
    a.label("L_rest")
    a(f"""s_cmp_ge_u32 s{sJ}, 8
    s_cbranch_scc1 L_exit
    s_lshr_b32 s{sWave}, s{sWave}, 6
    v_and_b32 v{vL}, 63, v0
    v_bfe_u32 v{vG}, v0, 4, 2
    v_lshlrev_b32 v{vL16}, 4, v{vL}
    s_mov_b32 s{rWS+2}, {WS_REC}
    s_lshl_b32 s{sT0}, s{sH}, 3
    s_add_u32 s{sT0}, s{sT0}, s{sJ}
    s_lshl_b32 s{sT0}, s{sT0}, 10
    s_add_u32 s{sT1}, s{sT0}, {QPL}
    s_and_b32 s{sT2}, s{sWave}, 3
    s_mov_b32 s{rC+3}, s{rWS+3}
    s_cmp_eq_u32 s{sWave}, 3
    s_cselect_b32 exec_lo, 0x01010101, 0
    s_cselect_b32 exec_hi, 0x01010101, 0
    s_waitcnt lgkmcnt(0)""")
    if p.fast: a(f"buffer_load_dword v250, v{vL16}, {R(rWS)}, s{sT1} offen sc1")
    a(f"""s_mov_b64 exec, -1
    s_load_dwordx16 s[4:19], s[0:1], 0
    s_load_dwordx8 s[20:27], s[0:1], 64
    s_load_dwordx4 s[28:31], s[0:1], 96
    s_and_b32 s{sXcd}, s2, 7
    s_bfe_u32 s{sI}, s2, 0x40003
    s_cmp_lt_u32 s{sWave}, 4
    s_cbranch_scc1 L_w03
    s_load_dword s{sT[0]}, s[{rWS}:{rWS+1}], {EPOCH}
    s_cmp_ge_u32 s2, 128
    s_cbranch_scc1 L_Ydma""")
    a(f"""s_lshl_b32 s{sQ}, s{sJ}, 2
    s_add_u32 s{sQ}, s{sQ}, s{sT2}
    s_lshl_b32 s{sQ}, s{sQ}, 10
    s_add_u32 s{sQ}, s{sQ}, s{sH}
    s_lshl_b32 s{sQ}, s{sQ}, 8
    s_lshl_b32 m0, s{sT2}, 13
    v_xor_b32 v19, v{vJ}, v{vG}
    v_lshlrev_b32 v19, 4, v19
    v_lshl_add_u32 v20, v{vG}, 13, v19
    v_xor_b32 v21, 64, v20
    v_xor_b32 v22, 0x80, v20
    v_xor_b32 v23, 0xc0, v20
    v_add_u32 v21, {32768-1024}, v21
    v_add_u32 v22, {2*(32768-1024)}, v22
    v_add_u32 v23, {3*(32768-1024)}, v23
    s_mov_b64 s[{rC}:{rC+1}], s[42:43]
    s_mov_b32 s{rC+2}, {SZ['wuk']}""")
    if p.diag == 2: a(f"s_memrealtime s[{sQ+6}:{sQ+7}]")
    def wuk(n):
        if n == 4: a(f"s_addk_i32 m0, 4096\ns_add_u32 s{sQ}, s{sQ}, {4*32768}")
        a(f"buffer_load_dwordx4 v{20+n%4}, {R(rC)}, s{sQ} offen offset:{1024*(n%4)} {nt} lds")
    if p.xg >= 0:
        epoch_wait()
        a(f"""s_lshl_b32 s{sT3}, s2, 7
        s_add_u32 s{sT3}, s{sT3}, {HK}
        v_mov_b32 v14, s{sT[0]}
        v_lshlrev_b32 v15, 2, v{vL}""")
    a("s_barrier")
    for n in range(p.xpre+1):
        if n == p.xg:
            a(f"""s_cmp_eq_u32 s{sWave}, 4
            s_cselect_b32 exec_lo, 0xffff, 0
            s_mov_b32 exec_hi, 0
            buffer_store_dword v14, v15, {R(rWS)}, s{sT3} offen sc1
            s_mov_b64 exec, -1""")
        if n < p.xpre: wuk(n)
    if p.diag == 2: a(f"s_memrealtime s[{sQ+8}:{sQ+9}]")
    a("s_branch L_X_w47")
    a.label("L_Ydma")
    sCK = sQ + 11
    if p.kint:
        a(f"""s_bfe_u32 s{sCK}, s2, 0x10006
        s_lshl_b32 s{sCK}, s{sCK}, 4
        s_add_u32 s{sCK}, s{sCK}, s{sT2}
        s_lshl_b32 s{sCK}, s{sCK}, 8
        s_and_b32 vcc_lo, s2, 63
        s_add_u32 s{sCK}, s{sCK}, vcc_lo
        s_lshl_b32 s{sCK}, s{sCK}, 10
        s_lshl_b32 m0, s{sT2}, 12""")
    else:
        a(f"""s_sub_u32 s{sCK}, s2, 128
        s_lshl_b32 s{sCK}, s{sCK}, 16
        s_lshl_b32 m0, s{sT2}, 12
        s_add_u32 s{sCK}, s{sCK}, m0""")
    a(f"""
    s_and_b32 vcc_lo, s{sT2}, 1
    s_lshl_b32 vcc_lo, vcc_lo, 7
    s_lshr_b32 vcc_hi, s{sT2}, 1
    s_lshl_b32 vcc_hi, vcc_hi, 4
    s_or_b32 vcc_lo, vcc_lo, vcc_hi
    v_xor_b32 v216, vcc_lo, v{vL16}
    v_xor_b32 v217, 32, v216
    v_xor_b32 v218, 64, v216
    v_xor_b32 v219, 0x60, v216""")
    if p.kint:
        for n in range(1, 4): a(f"v_add_u32 v{216+n}, {n*(65536-1024)}, v{216+n}")
    a(f"""s_mov_b64 s[{rC}:{rC+1}], s[38:39]
    s_mov_b32 s{rC+2}, {SZ['ckv']}
    s_barrier""")
    def ckv(i):
        if i % 4 == 0 and i: a(f"s_add_u32 s{sCK}, s{sCK}, {16*65536 if p.kint else 16384}\ns_add_u32 m0, m0, 16384")
        a(f"buffer_load_dwordx4 v{216+(i&3)}, {R(rC)}, s{sCK} offen offset:{1024*(i%4)} {p.ckvf} lds")
    for i in range(p.ypre): ckv(i)
    zstamps()
    epoch_wait()
    a(f"""s_sub_u32 s{sT3}, s2, 128
    s_lshl_b32 s{sT3}, s{sT3}, 7
    s_add_u32 s{sT3}, s{sT3}, {HG}
    v_mov_b32 v14, s{sT[0]}
    v_lshlrev_b32 v15, 2, v{vL}""")
    if p.xg >= 0:
        a(f"s_cmp_lg_u32 s{sWave}, 4\ns_cbranch_scc1 L_nokg")
        for k in range(p.xgn):
            a(f"s_add_u32 s{sQ+k}, s2, {41*k}\ns_and_b32 s{sQ+k}, s{sQ+k}, 127\ns_lshl_b32 s{sQ+k}, s{sQ+k}, 7\ns_add_u32 s{sQ+k}, s{sQ+k}, {HK}")
        spoll_all([sQ+k for k in range(p.xgn)], sQ+4)
        a.label("L_nokg")
    def uvsetup(r):
        srd(rB, pWUV, 0 if p.nod1 & 8 else SZ['wuv'])
        a(f"""s_sub_u32 s{r}, s{sJ}, 4
        s_lshl_b32 s{r}, s{r}, 20
        s_lshl_b32 s{r+1}, s{sT2}, 15
        s_add_u32 s{r}, s{r}, s{r+1}
        s_lshl_b32 s{r+1}, s{sH}, 8
        s_add_u32 s{r}, s{r}, s{r+1}
        s_lshl_b32 s{r+1}, s{sT2}, 13
        s_add_u32 s{r+1}, s{r+1}, {L_WUVY}
        v_lshlrev_b32 v9, 1, v{vG}
        v_xor_b32 v9, v9, v{vJ}
        v_lshlrev_b32 v9, 4, v9
        v_lshl_add_u32 v44, v{vG}, 17, v9
        v_xor_b32 v45, 0x80, v44""")
    def uvdma(r, n0, n1):
        if n0 >= n1: return
        a("s_mov_b32 vcc_hi, m0")
        for n in range(n0, n1):
            off = (64*(n & 1) + (n >> 1))*8192
            a(f"s_add_u32 m0, s{r+1}, {1024*n}\ns_add_u32 vcc_lo, s{r}, {off}")
            a(f"buffer_load_dwordx4 v{44+((n>>1)&1)}, {R(rB)}, vcc_lo offen {nt} lds")
        a("s_mov_b32 m0, vcc_hi")
    uvsetup(sQ)
    a("s_barrier")
    stamp(10)
    uvdma(sQ, 0, p.uv1)
    for i in range(p.ypre, 17):
        if i == p.gate:
            a(f"""s_cmp_eq_u32 s{sWave}, 4
            s_cselect_b32 exec_lo, -1, 0
            s_mov_b32 exec_hi, 0
            buffer_store_dword v14, v15, {R(rWS)}, s{sT3} offen sc1
            s_mov_b64 exec, -1""")
        if i < 16: ckv(i)
    if p.emub:
        a(f"s_sub_u32 s{sCK}, s{sCK}, {3*16*65536}\ns_xor_b32 s{sCK}, s{sCK}, {8*1024}\ns_sub_u32 m0, m0, {3*16384}")
        for i in range(16): ckv(i)
    stamp(1)
    masks()
    a("s_branch L_Y_main")
    a.label("L_w03")
    a(f"""s_cmp_lg_u32 s{sWave}, 0
    s_cbranch_scc1 L_w13
    s_load_dword s{sT[0]}, s[{rWS}:{rWS+1}], {EPOCH}""")
    zstamps()
    masks()
    stamp(1)
    if p.diag == 2: a(f"s_mov_b32 s{sStamp+6}, s{sQ+6}\ns_mov_b32 s{sStamp+8}, s{sQ+8}")
    a(f"""s_add_u32 s{sT0}, s{sT0}, {QP}
    s_mov_b32 s{sT2}, 0x01000100
    s_mov_b32 s{sT3}, 0x03020302
    v_add_u32 v190, {L_WQ}, v{vL16}
    s_waitcnt vmcnt(20)""")
    if p.b0pos == 1: a("s_barrier")
    if p.diag == 2: a(f"s_memrealtime s[{sStamp+10}:{sStamp+11}]")
    for k in range(4):
        a(f"v_perm_b32 v{vXP+2*k}, v{186+k}, v{186+k}, s{sT2}\nv_perm_b32 v{vXP+2*k+1}, v{186+k}, v{186+k}, s{sT3}")
    for n in range(20): buildA(vAP+4*n, vXP+(n % 4)+(4 if n >= 16 else 0), (n//4) % 4)
    epoch_wait()
    if p.diag == 2: a(f"s_memrealtime s[{sStamp+12}:{sStamp+13}]")
    G = 4
    for t0 in range(0, 20, G):
        a(f"s_waitcnt vmcnt({20-t0-G})")
        if p.b0pos == 2 + t0//G: a("s_barrier")
        if p.diag == 2 and t0 == 0: a(f"s_memrealtime s[{sStamp+14}:{sStamp+15}]")
        if p.diag == 2 and t0 == 16: a(f"s_memrealtime s[{sStamp+16}:{sStamp+17}]")
        for t in range(t0, t0+G): a(f"ds_read_b128 {V(vWP+4*t)}, v190 offset:{1024*t}")
        if t0:
            a(f"s_waitcnt lgkmcnt({G})")
            for t in range(t0-G, t0): mfma(vDP, vAP+4*t, vWP+4*t, '0' if t == 0 else None)
    for t in range(20-G, 20):
        a(f"s_waitcnt lgkmcnt({19-t})")
        mfma(vDP, vAP+4*t, vWP+4*t)
    tag4(vDP)
    if p.fast: a(f"buffer_store_dwordx4 {V(vDP)}, v{vL16}, {R(rWS)}, s{sT1} offen")
    a(f"buffer_store_dwordx4 {V(vDP)}, v{vL16}, {R(rWS)}, s{sT0} offen sc1")
    stamp(2)
    a(f"""s_barrier
    s_cmp_ge_u32 s2, 128
    s_cbranch_scc1 L_Y_main
    s_branch L_X_main""")

    a.label("L_w13")
    a(f"""s_cmp_eq_u32 s{sWave}, 3
    s_cbranch_scc1 L_w3
    s_cmp_eq_u32 s{sWave}, 2
    s_cbranch_scc1 L_w2
    s_cmp_ge_u32 s2, 128
    s_cbranch_scc1 L_w1
    s_branch L_w23
L_w2:""")
    if p.warm:
        a(f"""v_mov_b32 v24, 0
        v_mov_b32 v25, 0
        v_mov_b32 v26, 0
        v_mov_b32 v27, 0
        s_cmp_ge_u32 s2, 128
        s_cbranch_scc1 L_warmY
        s_mov_b32 exec_hi, 0
        s_lshl_b32 s{sT0}, s{sH}, 2
        s_add_u32 s{sT0}, s{sT0}, s{sJ}
        s_lshl_b32 s{sT1}, s{sT0}, 9
        s_add_u32 s{sT1}, s{sT1}, {ST}
        buffer_store_dwordx4 v[24:27], v{vL16}, {R(rWS)}, s{sT1} offen sc1""")
        if p.warm & 2:
            a(f"""s_lshl_b32 s{sT1}, s{sT0}, 8
            s_add_u32 s{sT1}, s{sT1}, {QL}
            v_lshlrev_b32 v28, 15, v{vG}
            v_lshl_add_u32 v28, v{vJ}, 4, v28
            buffer_store_dwordx4 v[24:27], v28, {R(rWS)}, s{sT1} offen sc1""")
        a(f"""s_lshl_b32 s{sT1}, s2, 7
        s_add_u32 s{sT1}, s{sT1}, {HD}
        s_mov_b32 exec_lo, 0xf
        buffer_store_dwordx4 v[24:27], v{vL16}, {R(rWS)}, s{sT1} offen sc1
        s_mov_b64 exec, -1
        s_branch L_w23
L_warmY:
        s_sub_u32 s{sT0}, s2, 128
        s_lshl_b32 s{sT1}, s{sT0}, 8
        s_add_u32 s{sT1}, s{sT1}, {HC}
        s_mov_b64 exec, 0xffff
        buffer_store_dwordx4 v[24:27], v{vL16}, {R(rWS)}, s{sT1} offen sc1
        s_mov_b64 exec, -1""")
    if p.prefetch:
        a(f"""s_getpc_b64 s[{sT0}:{sT1}]
L_pc:
        s_sub_u32 s{sT0}, s{sT0}, L_pc-{KNAME}
        s_subb_u32 s{sT1}, s{sT1}, 0
        s_lshl_b32 s{sT2}, s{sI}, 10
        v_add_u32 v9, s{sT2}, v{vL16}
        v_cmp_gt_u32 vcc, L_exit-{KNAME}, v9
        s_and_b32 exec_lo, vcc_lo, 0x01010101
        s_and_b32 exec_hi, vcc_hi, 0x01010101
        s_cbranch_execz L_pfdone
        global_load_dword v250, v9, s[{sT0}:{sT1}]
L_pfdone:
        s_mov_b64 exec, -1""")
    a("s_branch L_w23")
    a.label("L_w3")
    if p.stamp == 5:
        a(f"""s_lshl_b32 s{sT0}, s2, 3
        s_add_u32 s{sT0}, s{sT0}, s{sWave}
        s_lshl_b32 s{sT0}, s{sT0}, 6
        s_add_u32 s{sT0}, s{sT0}, {STAMP}
        v_mov_b32 v24, s{sStamp}
        v_mov_b32 v25, 0
        s_cmp_lt_u32 s2, 8
        s_cselect_b32 exec_lo, 1, 0
        s_mov_b32 exec_hi, 0
        buffer_store_dword v24, v25, {R(rWS)}, s{sT0} offen sc1
        s_mov_b64 exec, -1""")
    if p.tlb:
        a(f"""s_cmp_ge_u32 s2, 128
        s_cselect_b32 exec_lo, 15, 0
        s_mov_b32 exec_hi, 0
        v_lshlrev_b32 v22, 21, v{vL}
        s_cbranch_execz L_tlbd
        buffer_load_dword v251, v22, {R(rWS)}, 0 offen offset:256
L_tlbd:
        s_mov_b64 exec, -1""")
    a.label("L_w23")
    a(f"""s_load_dword s{sT[0]}, s[{rWS}:{rWS+1}], {EPOCH}
    s_barrier""")
    zstamps()
    masks()
    epoch_wait()
    a(f"""s_barrier
    s_waitcnt vmcnt(0)
    s_cmp_ge_u32 s2, 128
    s_cbranch_scc1 L_Y_main
    s_branch L_X_main""")
    a.label("L_w1")
    a(f"""s_movk_i32 s{rA+2}, {SZ['x']}
    s_mov_b32 s{rA+3}, s{rWS+3}
    v_and_b32 v9, 31, v{vL}
    v_mul_u32_u24 v9, 36, v9
    v_lshrrev_b32 v12, 5, v{vL}
    v_mul_u32_u24 v11, 1152, v12
    v_add_u32 v11, v11, v9
    buffer_load_dwordx4 v[20:23], v11, {R(rA)}, 0 offen
    buffer_load_dwordx4 v[24:27], v11, {R(rA)}, 0 offen offset:16
    buffer_load_dword v28, v11, {R(rA)}, 0 offen offset:32
    s_waitcnt lgkmcnt(0)""")
    srd(rB, pGW, SZ['gw'])
    a(f"""buffer_load_dwordx4 v[32:35], v9, {R(rB)}, 0 offen
    buffer_load_dwordx4 v[36:39], v9, {R(rB)}, 0 offen offset:16
    buffer_load_dword v40, v9, {R(rB)}, 0 offen offset:32
    s_load_dword s{sT[0]}, s[{rWS}:{rWS+1}], {EPOCH}
    s_barrier""")
    zstamps()
    masks()
    epoch_wait()
    a(f"""v_mov_b32 v13, 0
    v_lshlrev_b32 v10, 2, v12
    v_add_u32 v10, {L_GATE}, v10
    s_barrier
    s_waitcnt vmcnt(0)""")
    def gatemath():
        for k in range(9): a(f"v_dot2_f32_bf16 v13, v{20+k}, v{32+k}, v13")
        for m in ("quad_perm:[1,0,3,2]", "quad_perm:[2,3,0,1]", "row_half_mirror", "row_mirror"):
            a(f"v_add_f32_dpp v13, v13, v13 {m} row_mask:0xf bank_mask:0xf")
        a(f"""v_mov_b32 v14, v13
        v_permlane16_swap_b32 v13, v14
        v_add_f32 v13, v13, v14
        v_mul_f32 v13, {f2u(-math.log2(math.e))}, v13
        v_exp_f32 v13, v13
        v_add_f32 v13, 1.0, v13
        v_rcp_f32 v13, v13
        ds_write_b32 v10, v13
        s_waitcnt lgkmcnt(0)""")
    gatemath()
    a("s_branch L_Y_main")

    a.label("L_X_w47")
    zstamps()
    masks()
    a("v_mov_b32 v9, v19")
    if p.xg < 0: epoch_wait()
    if p.diag == 2: a(f"s_mov_b32 s{sStamp+10}, s{sQ+6}\ns_mov_b32 s{sStamp+12}, s{sQ+8}")
    a(f"""s_lshl_b32 s{sT0}, s{sH}, 13
    s_lshl_b32 s{sT1}, s{sT2}, 8
    s_add_u32 s{sT0}, s{sT0}, s{sT1}
    s_add_u32 s{sT0}, s{sT0}, {QPL if p.fast else QP}
    s_add_u32 s{sT1}, s{sT0}, 4096
    v_lshlrev_b32 v24, 10, v{vG}
    v_lshl_add_u32 v24, v{vJ}, 4, v24""")
    a(f"""s_lshr_b32 s{sT3}, s{sT2}, 1
    s_lshl_b32 s{sT3}, s{sT3}, 8
    s_bitcmp1_b32 s{sT2}, 0
    s_cselect_b32 vcc_lo, 8, 0
    s_add_u32 s{sT3}, s{sT3}, vcc_lo
    s_add_u32 s{sT3}, s{sT3}, {L_QV}
    v_lshlrev_b32 v25, 4, v{vJ}
    v_lshl_add_u32 v25, v{vG}, 1, v25
    v_add_u32 v25, s{sT3}, v25""")
    a(f"""s_lshl_b32 s{sT3}, s{sT2}, 13
    v_lshl_add_u32 v26, v{vJ}, 8, v9
    v_add_u32 v26, s{sT3}, v26
    v_xor_b32 v27, 64, v26
    v_xor_b32 v28, 0x80, v26
    v_xor_b32 v29, 0xc0, v26""")
    a(f"""v_lshrrev_b32 v30, 3, v{vJ}
    v_lshlrev_b32 v30, 8, v30
    v_lshl_add_u32 v30, v{vG}, 4, v30
    v_add_u32 v30, {L_QV}, v30""")
    a(f"""v_and_b32 v31, 31, v{vL}
    s_lshl_b32 s{sT3}, s{sT2}, 5
    v_add_u32 v31, s{sT3}, v31
    v_bfe_u32 v32, v31, 3, 3
    v_mul_u32_u24 v32, 37, v32
    v_add_u32 v32, s{sT[0]}, v32
    v_and_b32 v33, 7, v31
    v_lshrrev_b32 v32, v33, v32
    v_and_b32 v32, 1, v32
    v_lshlrev_b32 v32, 16, v32
    v_xor_b32 v33, 0x10000, v32
    v_lshlrev_b32 v31, 1, v31
    v_lshrrev_b32 v34, 5, v{vL}
    v_lshl_add_u32 v31, v34, 15, v31
    s_lshl_b32 s{sT3}, s{sH}, 10
    s_lshl_b32 vcc_lo, s{sJ}, 8
    s_add_u32 s{sT3}, s{sT3}, vcc_lo
    s_add_u32 s{sT3}, s{sT3}, {QL}
    v_mov_b32 v35, 0xfffe0000
    s_barrier""")
    stamp(1)
    for n in range(p.xpre, 8): wuk(n)
    a(f"s_waitcnt vmcnt({p.pollA_wait})")
    stamp(2)
    L = poll_begin()
    a(f"""buffer_load_dwordx4 v[36:39], v24, {R(rWS)}, s{sT0} offen sc1
    buffer_load_dwordx4 v[40:43], v24, {R(rWS)}, s{sT1} offen sc1
    s_waitcnt vmcnt(1)""")
    chk4(44, 36, True)
    a("s_waitcnt vmcnt(0)")
    chk4(44, 40)
    if p.diag == 4: a(f"s_cmp_eq_u32 s{sCnt}, 0\ns_cbranch_scc0 L_d4\ns_memrealtime s[{sStamp+12}:{sStamp+13}]\nL_d4:")
    poll_end(L, 44, '0xff', ((sT0, sT1), QPL-QP))
    if p.stamp: a(f"s_mov_b32 s{sStamp+24}, s{sCnt}")
    stamp(3)
    for tl in range(2):
        for ks in range(4):
            a(f"ds_read_b128 {V(48+16*tl+4*ks)}, v{26+ks} offset:{4096*tl}")
    for k in range(4): a(f"v_add_f32 v{36+k}, v{36+k}, v{40+k}")
    treduce(36)
    a(f"""v_cvt_pk_bf16_f32 v36, v36, v36
    ds_write_b16 v25, v36
    s_waitcnt lgkmcnt(0)
    s_barrier""")
    if p.diag == 4: stamp(7)
    for ks in range(4): a(f"ds_read_b128 {V(80+4*ks)}, v30 offset:{64*ks}")
    for ks in range(4):
        a(f"s_waitcnt lgkmcnt({3-ks})")
        mfma(96, 80+4*ks, 48+4*ks, '0' if ks == 0 else None)
        mfma(100, 80+4*ks, 64+4*ks, '0' if ks == 0 else None)
    a(f"""s_mov_b32 vcc_lo, 0xffff0000
    s_mov_b32 vcc_hi, 0xffff0000
    v_cndmask_b32 v96, v96, v100, vcc
    v_mul_f32 v96, {f2u(128**-0.5*math.log2(math.e))}, v96
    v_add_u32 v96, v96, v33
    v_and_or_b32 v96, v96, v35, v32
    buffer_store_short_d16_hi v96, v31, {R(rWS)}, s{sT3} offen sc1""")
    stamp(4)

    a.label("L_X_main")
    sX = sQ + 9
    a(f"s_mul_i32 s{sT0}, s{sI}, 9\nv_add_u32 v9, s{sT0}, v{vJ}")
    decode_v(139, 9, 10)
    a(f"""s_mul_i32 s{sT0}, s{sXcd}, 576
    v_add_u32 v139, s{sT0}, v139
    v_mul_u32_u24 v10, 1152, v139""")
    for t in range(9): a(f"v_readlane_b32 s{sQ+t}, v10, {t}")
    a(f"""v_bfe_u32 v9, v{vL}, 3, 1
    v_lshlrev_b32 v135, 2, v{vL}
    v_lshlrev_b32 v136, 2, v9
    v_add_u32 v136, {L_GATE}, v136
    v_mov_b32 v137, s{sT[0]}
    v_mov_b32 v138, 0
    v_and_b32 v132, 3, v{vL}
    v_lshl_add_u32 v134, v132, 2, v{vG}
    v_lshlrev_b32 v134, 2, v134
    v_mul_u32_u24 v9, 192, v9
    v_add_u32 v134, v134, v9
    v_add_u32 v134, {L_HX}, v134
    v_mul_u32_u24 v132, 37, v132
    v_add_u32 v132, s{sT[0]}, v132
    s_lshl_b32 s{sX}, s{sH}, 2
    s_add_u32 s{sX}, s{sX}, s{sJ}
    s_mul_i32 s{sX+2}, s{sX}, {32*1152}
    s_lshl_b32 s{sX}, s{sX}, 10
    s_add_u32 s{sX}, s{sX}, {CXL if p.fast else CX}
    s_mul_i32 s{sX+1}, s2, 4608
    s_add_u32 s{sX+1}, s{sX+1}, {FP}""")
    srd(rA, pX, SZ['x'])
    xoff(12)
    a(f"""s_cmp_ge_u32 s{sWave}, 4
    s_cbranch_scc1 L_X_b2
    s_barrier""")
    if p.tlb:
        a(f"""s_cmp_lg_u32 s{sWave}, 3
        s_cbranch_scc1 L_X_notlb
        s_mov_b64 exec, 7
        v_lshlrev_b32 v22, 21, v{vL}
        global_load_dword v252, v22, s[{pW1}:{pW1+1}]
        global_load_dword v253, v22, s[{pW2}:{pW2+1}]
        global_load_dword v254, v22, s[{pWO}:{pWO+1}]
        s_mov_b64 exec, -1
L_X_notlb:""")
    if p.gate >= 0:
        a(f"""s_cmp_lg_u32 s{sWave}, 0
        s_cbranch_scc1 L_X_b2
        s_lshl_b32 s{sT2}, s2, 7
        s_add_u32 s{sT2}, s{sT2}, {HG}
        s_xor_b32 s{sT3}, s{sT2}, {43*128}""")
        if p.gand:
            for k in range(p.gand):
                a(f"s_add_u32 s{6+k}, s2, {43*k}\ns_and_b32 s{6+k}, s{6+k}, 127\ns_lshl_b32 s{6+k}, s{6+k}, 7\ns_add_u32 s{6+k}, s{6+k}, {HG}")
            spoll_all([6+k for k in range(p.gand)], sT0)
        else:
            spoll((sT2, sT3))
        stamp(3)
    a.label("L_X_b2")
    a("s_barrier")
    a(f"""s_cmp_ge_u32 s{sWave}, 5
    s_cbranch_scc1 L_X_fg""")
    vXF, vAF, vWF, vDF, vWO, vW2 = 13, 20, 60, 100, 140, 176
    srd(rB, pW1, 0 if p.nod1 & 4 else SZ['w1'])
    a(f"s_mul_i32 s{sT1}, s{sI}, 72")
    for v in range(3): a(f"buffer_load_ushort v{vXF+v}, v12, {R(rA)}, s{sT1} offen offset:{32*v}")
    srd(rA, pW2, 0 if p.nod1 & 1 else SZ['w2'])
    srd(rC, pWO, 0 if p.nod1 & 2 else SZ['wo'])
    a(f"""s_mul_i32 s{sT0}, s{sI}, {36*9216}
    s_mul_i32 s{sT1}, s{sXcd}, 1152
    s_add_u32 s{sT0}, s{sT0}, s{sT1}
    s_lshl_b32 s{sT1}, s{sWave}, 8
    s_add_u32 s{sT0}, s{sT0}, s{sT1}
    v_mul_u32_u24 v10, 9216, v{vG}
    v_mul_u32_u24 v17, 1152, v{vG}
    v_add_u32 v17, s{sT1}, v17
    v_add_u32 v16, s{sT1}, v10
    s_lshl_b32 s{sT2}, s{sXcd}, 4
    s_add_u32 s{sT2}, s{sT2}, s{sI}
    s_mul_i32 s{sT2}, s{sT2}, 4608
    s_add_u32 s{sT2}, s{sT2}, {HP}
    s_cmp_eq_u32 s{sWave}, 4
    s_cbranch_scc1 L_X_f1half
    v_lshl_add_u32 v10, v{vJ}, 4, v10
    v_lshl_add_u32 v16, v{vJ}, 4, v16
    v_lshl_add_u32 v17, v{vJ}, 4, v17""")
    def wo_full():
        for t in range(8):
            if t == 4: a(f"s_add_u32 s{sX+2}, s{sX+2}, {4*1152}")
            a(f"buffer_load_dwordx4 {V(vWO+4*t)}, v16, {R(rC)}, s{sX+2} offen offset:{1152*(t&3)} {nt}")
    def wo_half():
        for n in range(4):
            if n == 2: a(f"s_add_u32 s{sX+2}, s{sX+2}, {4*1152}")
            a(f"buffer_load_dwordx4 {V(vWO+4*n)}, v16, {R(rC)}, s{sX+2} offen offset:{2304*(n&1)} {nt}")
    for t in range(9):
        a(f"buffer_load_dwordx4 {V(vWF+4*t)}, v10, {R(rB)}, s{sT0} offen {nt}")
        if t < 8: a(f"s_add_u32 s{sT0}, s{sT0}, {4*9216}")
    def w2_full():
        for t in range(9): a(f"buffer_load_dwordx4 {V(vW2+4*t)}, v17, {R(rA)}, s{sQ+t} offen {nt}")
    if p.xord < 2: w2_full()
    elif p.xord == 2: a("s_barrier")
    ex = {0: 17, 1: 9, 2: 0, 3: 0}[p.xord]
    if p.xord == 0: wo_full()
    slot_voff(138, False)
    a(f"s_waitcnt vmcnt({9+ex})")
    for v in range(3): a(f"v_lshl_or_b32 v{vXF+v}, v{vXF+v}, 16, v{vXF+v}")
    for t in range(9): buildA(vAF+4*t, vXF+t//4, t % 4)
    for t in range(9):
        a(f"s_waitcnt vmcnt({8 if p.xord == 3 else 8-t+ex})")
        mfma(vDF, vAF+4*t, vWF+4*t, '0' if t == 0 else None)
        if p.xord == 3 and t < 8: a(f"buffer_load_dwordx4 {V(vW2+4*t)}, v17, {R(rA)}, s{sQ+t} offen {nt}")
    slot_store(vDF, sT2, False, 138)
    if p.xord == 3: a(f"buffer_load_dwordx4 {V(vW2+32)}, v17, {R(rA)}, s{sQ+8} offen {nt}")
    stamp(5)
    if p.fpos == 0: a("s_barrier")
    if p.xord in (1, 3): wo_full()
    if p.fpos == 1: a("s_barrier")
    if p.xord == 2: w2_full()
    a("s_branch L_X_o2")
    a.label("L_X_f1half")
    a(f"""v_and_b32 v9, 7, v{vJ}
    v_lshl_add_u32 v10, v9, 4, v10
    v_lshl_add_u32 v16, v9, 4, v16
    v_lshl_add_u32 v17, v9, 4, v17
    v_lshrrev_b32 v9, 3, v{vJ}
    v_mul_u32_u24 v11, {4*9216}, v9
    v_add_u32 v10, v10, v11
    v_mul_u32_u24 v11, 1152, v9
    v_add_u32 v16, v16, v11""")
    for n in range(5):
        if n == 4: a("s_mov_b32 exec_lo, 0x00ff00ff\ns_mov_b32 exec_hi, 0x00ff00ff")
        a(f"buffer_load_dwordx4 {V(vWF+4*n)}, v10, {R(rB)}, s{sT0} offen {nt}")
        if n < 4: a(f"s_add_u32 s{sT0}, s{sT0}, {8*9216}")
    a("s_mov_b64 exec, -1")
    def w2_half():
        a("s_mov_b32 exec_lo, 0x00ff00ff\ns_mov_b32 exec_hi, 0x00ff00ff")
        a(f"buffer_load_dwordx4 {V(vW2+16)}, v17, {R(rA)}, s{sQ+8} offen {nt}")
        a("s_mov_b64 exec, -1\ns_mov_b32 vcc_lo, 0xff00ff00\ns_mov_b32 vcc_hi, 0xff00ff00")
        for n in range(4):
            a(f"v_mov_b32 v18, s{sQ+2*n}\nv_mov_b32 v19, s{sQ+2*n+1}\nv_cndmask_b32 v18, v18, v19, vcc\nv_add_u32 v18, v18, v17")
            a(f"buffer_load_dwordx4 {V(vW2+4*n)}, v18, {R(rA)}, 0 offen {nt}")
    if p.xord < 2: w2_half()
    elif p.xord == 2: a("s_barrier")
    ex = {0: 9, 1: 5, 2: 0, 3: 0}[p.xord]
    if p.xord == 0: wo_half()
    slot_voff(138, True)
    a(f"s_waitcnt vmcnt({5+ex})")
    for v in range(3): a(f"v_lshl_or_b32 v{vXF+v}, v{vXF+v}, 16, v{vXF+v}")
    for t in range(9): buildA(vAF+4*t, vXF+t//4, t % 4)
    for n in range(5):
        a(f"s_waitcnt vmcnt({4-n+ex})")
        mfma(vDF, vAF+8*n, vWF+4*n, '0' if n == 0 else None)
        if n < 4: mfma(vDF+4, vAF+8*n+4, vWF+4*n, '0' if n == 0 else None)
    for r in range(4): a(f"v_add_f32_dpp v{vDF+r}, v{vDF+4+r}, v{vDF+r} row_ror:8 row_mask:0xf bank_mask:0xf")
    slot_store(vDF, sT2, True, 138)
    if p.xord == 3: w2_half()
    stamp(5)
    if p.fpos == 0: a("s_barrier")
    if p.xord in (1, 3): wo_half()
    if p.fpos == 1: a("s_barrier")
    if p.xord == 2: w2_half()
    a.label("L_X_o2")
    vA2, vD2 = 20, 60
    a(f"""ds_read_b32 v136, v136
    s_lshl_b32 s{sT3}, s2, 7
    s_add_u32 s{sT3}, s{sT3}, {HD}
    s_barrier""")
    stamp(8)
    for v in range(3): a(f"ds_read_b32 v{68+v}, v134 offset:{64*v}")
    a("s_waitcnt lgkmcnt(0)")
    for t in range(9): buildA(vA2+4*t, 68+t//4, t % 4)
    a(f"""s_waitcnt vmcnt({8 if p.xord in (1, 3) else 0})
    s_cmp_eq_u32 s{sWave}, 4
    s_cbranch_scc1 L_X_half2""")
    if p.xord == 2:
        for t in range(8): a(f"ds_read_b128 {V(vWO+4*t)}, v16 offset:{1152*t}")
    for t in range(9): mfma(vD2, vA2+4*t, vW2+4*t, '0' if t == 0 else None)
    a("s_branch L_X_o3")
    a.label("L_X_half2")
    a("s_waitcnt vmcnt(4)")
    if p.xord == 2:
        for n in range(4): a(f"ds_read_b128 {V(vWO+4*n)}, v16 offset:{2304*n}")
    for n in range(5):
        mfma(vD2, vA2+8*n, vW2+4*n, '0' if n == 0 else None)
        if n < 4: mfma(vD2+4, vA2+8*n+4, vW2+4*n, '0' if n == 0 else None)
    a.label("L_X_o3")
    a("s_waitcnt lgkmcnt(0)")
    stamp(9)
    L = poll_begin()
    for cq in range(4): a(f"buffer_load_dword v{72+cq}, v135, {R(rWS)}, s{sX} offen offset:{256*cq} sc1")
    a("s_waitcnt vmcnt(0)")
    a("v_xor_b32 v76, v132, v72")
    for cq in range(1, 4): a(f"v_bitop3_b32 v76, v76, v{72+cq}, v132 bitop3:0xf6")
    poll_end(L, 76, '0xff', ((sX,), CXL-CX))
    stamp(10)
    def dflag():
        a(f"""s_cmp_eq_u32 s{sWave}, 1
        s_cselect_b32 exec_lo, 0xffff, 0
        s_mov_b32 exec_hi, 0
        buffer_store_dword v137, v135, {R(rWS)}, s{sT3} offen sc1
        s_mov_b64 exec, -1""")
    if p.dflag == 3: dflag()
    a(f"""v_add_f32 v72, v72, v73
    v_add_f32 v74, v74, v75
    v_add_f32 v72, v72, v74
    v_mul_f32 v72, v72, v136
    v_cvt_pk_bf16_f32 v72, v72, v72
    v_mov_b32 v73, v72
    v_mov_b32 v74, v72
    v_mov_b32_dpp v73, v72 row_shr:4 row_mask:0xf bank_mask:0xa
    v_mov_b32_dpp v74, v72 row_shl:4 row_mask:0xf bank_mask:0x5
    s_cmp_eq_u32 s{sWave}, 4
    s_cbranch_scc1 L_X_half3""")
    for t in range(8):
        buildA(vA2+4*t, 73+t//4, t % 4)
        if t > 0: mfma(vD2, vA2+4*(t-1), vWO+4*(t-1))
    mfma(vD2, vA2+28, vWO+28)
    slot_store(vD2, sX+1, False, 138)
    if p.dflag == 4: dflag()
    a("s_branch L_X_end")
    a.label("L_X_half3")
    for t in range(8):
        buildA(vA2+4*t, 73+t//4, t % 4)
        if t > 0: mfma(vD2+4*((t-1) & 1), vA2+4*(t-1), vWO+4*((t-1)//2))
    mfma(vD2+4, vA2+28, vWO+12)
    for r in range(4): a(f"v_add_f32_dpp v{vD2+r}, v{vD2+4+r}, v{vD2+r} row_ror:8 row_mask:0xf bank_mask:0xf")
    slot_store(vD2, sX+1, True, 138)
    a("s_branch L_X_end")
    a.label("L_X_fg")
    a(f"""s_cmp_eq_u32 s{sWave}, 7
    s_cbranch_scc1 L_X_fg7""")
    srd(rB, pB1, SZ['b1'])
    a(f"""s_sub_u32 s{sT2}, s{sWave}, 5
    s_mul_i32 s{sT0}, s{sXcd}, {16*4608}
    s_mul_i32 s{sT1}, s{sT2}, 2304
    s_add_u32 s{sT0}, s{sT0}, s{sT1}
    s_mul_i32 s{sT1}, s{sI}, 144
    s_add_u32 s{sT0}, s{sT0}, s{sT1}
    s_add_u32 s{sT0}, s{sT0}, {HP}
    s_add_u32 s{sQ}, s{sT0}, {4*4608}
    s_add_u32 s{sQ+1}, s{sT0}, {8*4608}
    s_add_u32 s{sQ+2}, s{sT0}, {12*4608}
    v_mul_u32_u24 v10, 4608, v{vG}
    v_lshl_add_u32 v10, v{vJ}, 4, v10
    v_add_u32 v14, v139, v{vG}
    v_lshlrev_b32 v14, 1, v14
    s_lshl_b32 s{sT1}, s{sT2}, 2
    s_add_u32 s{sT1}, s{sT1}, {L_GATE}
    v_mov_b32 v16, s{sT1}
    s_mul_i32 s{sT1}, s{sT2}, 192
    s_add_u32 s{sT1}, s{sT1}, {L_HX}
    v_lshl_add_u32 v17, v{vJ}, 2, v{vG}
    v_lshlrev_b32 v17, 2, v17
    v_add_u32 v17, s{sT1}, v17
    s_mov_b32 exec_lo, 0x01ff01ff
    s_mov_b32 exec_hi, 0x01ff01ff
    buffer_load_ushort v15, v14, {R(rB)}, 0 offen""")
    def floads():
        for k, s in enumerate((sT0, sQ, sQ+1, sQ+2)):
            a(f"buffer_load_dwordx4 {V(20+4*k)}, v10, {R(rWS)}, s{s} offen sc1")
    if p.xord == 2: a("s_barrier")
    a("s_barrier\nds_read_b32 v16, v16")
    L = poll_begin()
    floads()
    for k in range(4):
        a(f"s_waitcnt vmcnt({3-k})")
        chk4(36, 20+4*k, k == 0)
    poll_end(L, 36, '0xff')
    stamp(8)
    a("s_mov_b64 exec, -1")
    for k in range(4): a(f"v_add_f32 v{20+k}, v{20+k}, v{24+k}\nv_add_f32 v{28+k}, v{28+k}, v{32+k}")
    for k in range(4): a(f"v_add_f32 v{20+k}, v{20+k}, v{28+k}")
    treduce(20)
    c1 = -2*math.sqrt(2/math.pi)*math.log2(math.e)
    a(f"""v_lshlrev_b32 v15, 16, v15
    v_add_f32 v20, v20, v15
    v_mul_f32 v21, v20, v20
    v_mov_b32 v22, {f2u(c1)}
    v_fmac_f32 v22, {f2u(c1*0.044715)}, v21
    v_mul_f32 v21, v22, v20
    v_exp_f32 v21, v21
    v_add_f32 v21, 1.0, v21
    v_rcp_f32 v21, v21
    s_waitcnt lgkmcnt(0)
    v_sub_f32 v16, 1.0, v16
    v_mul_f32 v20, v20, v21
    v_mul_f32 v20, v20, v16
    v_cvt_pk_bf16_f32 v20, v20, v20
    s_mov_b32 exec_lo, 0x01ff01ff
    s_mov_b32 exec_hi, 0x01ff01ff
    ds_write_b32 v17, v20
    s_mov_b64 exec, -1
    s_waitcnt lgkmcnt(0)""")
    a("s_branch L_X_fgend")
    a.label("L_X_fg7")
    srd(rB, pGW, SZ['gw'])
    a(f"""v_and_b32 v9, 31, v{vL}
    v_mul_u32_u24 v9, 36, v9
    v_lshrrev_b32 v12, 5, v{vL}
    v_mul_u32_u24 v11, 1152, v12
    v_add_u32 v11, v11, v9
    buffer_load_dwordx4 v[20:23], v11, {R(rA)}, 0 offen
    buffer_load_dwordx4 v[24:27], v11, {R(rA)}, 0 offen offset:16
    buffer_load_dword v28, v11, {R(rA)}, 0 offen offset:32
    buffer_load_dwordx4 v[32:35], v9, {R(rB)}, 0 offen
    buffer_load_dwordx4 v[36:39], v9, {R(rB)}, 0 offen offset:16
    buffer_load_dword v40, v9, {R(rB)}, 0 offen offset:32
    v_mov_b32 v13, 0
    v_lshlrev_b32 v10, 2, v12
    v_add_u32 v10, {L_GATE}, v10
    s_waitcnt vmcnt(0)""")
    gatemath()
    if p.fast:
        a(f"""s_mov_b32 exec_lo, 0x01010101
        s_mov_b32 exec_hi, 0x01010101
        buffer_load_dword v20, v{vL16}, {R(rWS)}, s{sX} offen sc1
        s_mov_b64 exec, -1""")
    if p.wogate:
        for k in range(p.wogate):
            a(f"s_add_u32 s{4+k}, s2, {53*k+11}\ns_and_b32 s{4+k}, s{4+k}, 127\ns_lshl_b32 s{4+k}, s{4+k}, 8\ns_add_u32 s{4+k}, s{4+k}, {HC + (128 if p.wgpos == 0 else 64)}")
        spoll_all([4+k for k in range(p.wogate)], 8)
    if p.xord == 2:
        srd(rC, pWO, 0 if p.nod1 & 2 else SZ['wo'])
        a("s_mov_b32 m0, 0\ns_barrier")
        for n in range(36):
            if n % 4 == 0 and n: a(f"s_addk_i32 m0, 4096\ns_add_u32 s{sX+2}, s{sX+2}, 4096")
            if n == p.wosplit: a("s_barrier")
            a(f"buffer_load_dwordx4 v{vL16}, {R(rC)}, s{sX+2} offen offset:{1024*(n%4)} {nt} lds")
        if p.wosplit >= 36: a("s_barrier")
        a("s_waitcnt vmcnt(0)\ns_branch L_X_fgend")
    a("s_barrier")
    a("s_waitcnt vmcnt(0)")
    a.label("L_X_fgend")
    a("s_barrier")
    a.label("L_X_end")
    stamp(11)
    finish('X')

    a.label("L_Y_main")
    vQA, vPA, vSF, vPF, vACC = 20, 36, 48, 112, 176
    vTG, vTO = 208, 212
    vQG = 216
    a(f"""s_and_b32 s{sT2}, s{sWave}, 3
    s_lshr_b32 s{sT3}, s{sWave}, 2
    v_and_b32 v9, 7, v{vJ}
    v_lshlrev_b32 v9, 1, v9
    v_lshrrev_b32 v10, 3, v{vJ}
    v_or_b32 v9, v9, v10
    v_lshlrev_b32 v9, 4, v9
    v_lshl_add_u32 v9, v{vG}, 8, v9
    v_lshl_add_u32 v9, v{vJ}, 10, v9
    s_lshl_b32 s{sT0}, s{sT2}, 14
    v_add_u32 v13, s{sT0}, v9
    s_lshl_b32 s{sT0}, s{sT3}, 14
    s_add_u32 s{sT0}, s{sT0}, {L_QIMG}
    v_add_u32 v{vQA}, s{sT0}, v9""")
    for ks in range(1, 16): a(f"v_xor_b32 v{vQA+ks}, {16*ks}, v{vQA}")
    a(f"""v_lshrrev_b32 v9, 2, v{vL}
    v_and_b32 v10, 7, v9
    v_lshlrev_b32 v10, 1, v10
    v_lshrrev_b32 v11, 3, v9
    v_or_b32 v10, v10, v11
    v_bfe_u32 v11, v{vL}, 1, 1
    v_xor_b32 v10, v10, v11
    v_lshlrev_b32 v10, 4, v10
    v_lshl_add_u32 v10, v9, 10, v10
    v_and_b32 v11, 1, v{vL}
    v_lshl_add_u32 v10, v11, 3, v10
    s_lshl_b32 s{sT0}, s{sT2}, 8
    v_add_u32 v{vPA}, s{sT0}, v10""")
    for ct in range(1, 8): a(f"v_xor_b32 v{vPA+ct}, {32*ct}, v{vPA}")
    lsbtags(vTG)
    a(f"s_bitcmp1_b32 s2, 0\ns_cselect_b32 s{sT0}, 0xff, 0")
    lsbtags(vTO, f"s{sT0}")
    a(f"""s_bfe_u32 s{sT0}, s2, 0x10006
    s_lshl_b32 s{sT0}, s{sT0}, 15
    s_lshl_b32 s{sT1}, s{sWave}, 12
    s_add_u32 s{sT0}, s{sT0}, s{sT1}
    s_add_u32 s{sT0}, s{sT0}, {QL}
    s_add_u32 s{sT1}, s{sT1}, {L_QIMG}
    s_and_b32 vcc_lo, s{sWave}, 1
    s_lshl_b32 vcc_lo, vcc_lo, 7
    s_bfe_u32 vcc_hi, s{sWave}, 0x10001
    s_lshl_b32 vcc_hi, vcc_hi, 4
    s_or_b32 vcc_lo, vcc_lo, vcc_hi
    v_xor_b32 v16, vcc_lo, v{vL16}
    v_add_u32 v16, s{sT1}, v16
    v_xor_b32 v17, 32, v16
    v_xor_b32 v18, 64, v16
    v_xor_b32 v19, 0x60, v16
    """)
    a(f"""s_lshl_b32 s{sQ+9}, s{sT3}, 12
    s_add_u32 s{sQ+9}, s{sQ+9}, {L_SX}
    v_add_u32 v10, s{sQ+9}, v{vL16}
    s_lshl_b32 s{sQ+9}, s{sT2}, 10
    v_add_u32 v11, s{sQ+9}, v10
    v_lshlrev_b32 v12, 19, v{vG}
    v_lshl_add_u32 v12, v{vJ}, 4, v12
    s_sub_u32 s{sQ+9}, s2, 128
    s_lshl_b32 s{sT1}, s{sQ+9}, {4 if p.cstat else 9}
    v_lshlrev_b32 v15, {11 if p.cstat else 4}, v{vL}
    s_lshl_b32 vcc_lo, s{sT3}, {15 if p.cstat else 8}
    s_add_u32 s{sT1}, s{sT1}, vcc_lo
    s_add_u32 s{sT1}, s{sT1}, {ST}
    s_lshl_b32 s{sQ+10}, s{sQ+9}, 8
    s_lshl_b32 vcc_lo, s{sT3}, 21
    s_add_u32 s{sQ+10}, s{sQ+10}, vcc_lo
    s_lshl_b32 vcc_lo, s{sT2}, 15
    s_add_u32 s{sQ+10}, s{sQ+10}, vcc_lo
    s_add_u32 s{sQ+10}, s{sQ+10}, {OP}
    s_lshl_b32 s{sQ+9}, s{sQ+9}, 8
    s_lshl_b32 vcc_lo, s{sT3}, 7
    s_add_u32 s{sQ+9}, s{sQ+9}, vcc_lo
    s_add_u32 s{sQ+9}, s{sQ+9}, {HC}""")
    if p.uv1 < 8: uvsetup(sQ)
    for k in range(4): a(f"v_mov_b32 v{248+k}, 0x3f803f80\nv_mov_b32 v{252+k}, s{sT[0]}")
    def qloads():
        for n in range(4): a(f"buffer_load_dwordx4 {V(vQG+4*n)}, v{vL16}, {R(rWS)}, s{sT0} offen offset:{1024*(n if not p.emub else n&1)} sc1")
    for T in range(4):
        if T == p.qat:
            qloads()
            if p.uv2:
                a(f"s_cmp_lt_u32 s{sWave}, 4\ns_cbranch_scc1 L_Y_nouv2")
                uvdma(sQ, p.uv1, p.uv1 + p.uv2)
                a.label("L_Y_nouv2")
        a(f"s_waitcnt vmcnt({12-4*T + (4+p.uv2 if T >= p.qat else 0)})\ns_barrier")
        if p.gate == 17 + T:
            a(f"""s_sub_u32 vcc_lo, s2, 128
            s_lshl_b32 vcc_lo, vcc_lo, 7
            s_add_u32 vcc_lo, vcc_lo, {HG}
            s_cmp_eq_u32 s{sWave}, 1
            s_cselect_b32 exec_lo, 0xf, 0
            s_mov_b32 exec_hi, 0
            buffer_store_dwordx4 v[252:255], v{vL16}, {R(rWS)}, vcc_lo offen sc1
            s_mov_b64 exec, -1""")
        if T == 3:
            stamp(3); cyc(1)
            if p.qat == 4: qloads()
        Ls = a.newlabel('nos')
        a(f"s_cmp_lg_u32 s{sT2}, {T}\ns_cbranch_scc1 {Ls}")
        for ks in range(16):
            a(f"v_xor_b32 v9, {16*ks}, v13\nds_read_b128 {V(vSF+4*ks)}, v9")
        a.label(Ls)
        for ct in range(8):
            a(f"ds_read_b64_tr_b16 {V(vPF+8*ct+2*T, 2)}, v{vPA+ct} offset:{16384*T}")
    if p.qsplit: a(f"s_cmp_eq_u32 s{sT3}, 0\ns_cbranch_scc1 L_Y_q\ns_barrier\nL_Y_q:")
    Lq = a.newlabel('qchk'); L = a.newlabel('poll'); Lw = a.newlabel('qw')
    def qw(n): a(f"ds_write_b128 v{16+n}, {V(vQG+4*n)} offset:{1024*n}")
    a(f"s_mov_b32 s{sCnt}, 0")
    if p.uv2:
        a(f"s_cmp_lt_u32 s{sWave}, 4\ns_cbranch_scc1 {Lw}")
        for n in range(4):
            a(f"s_waitcnt vmcnt({3-n+p.uv2})"); qw(n); chkv(9, vQG+4*n, vTG, n == 0)
        a(f"s_branch {Lq}")
    else:
        a(f"s_branch {Lw}")
    a.label(L)
    qloads()
    a("s_mov_b64 exec, -1")
    a.label(Lw)
    for n in range(4):
        a(f"s_waitcnt vmcnt({3-n})"); qw(n); chkv(9, vQG+4*n, vTG, n == 0)
    a.label(Lq)
    poll_end_masked(L, 9, '0x10001', p.bsleep)
    if p.stamp: a(f"s_mov_b32 s{sStamp+24}, s{sCnt}")
    stamp(4)
    a(f"s_mov_b32 s{sT0}, s{sQ+10}\nv_mov_b32 v9, 0x10001")
    def hint(pos):
        if p.hintpos == pos:
            a(f"""s_cmp_eq_u32 s{sT2}, 3
            s_cselect_b32 exec_lo, 0xf, 0
            s_mov_b32 exec_hi, 0
            buffer_store_dwordx4 v[252:255], v{vL16}, {R(rWS)}, s{sQ+9} offen sc1
            s_mov_b64 exec, -1""")
    NQ = 8
    if p.qsplit:
        p.qpre = 0
        a(f"s_cmp_eq_u32 s{sT3}, 0\ns_cbranch_scc1 L_Y_s")
        uvdma(sQ, p.uv1 + p.uv2, 8)
        if p.prio: a(f"s_setprio {p.prio}")
        a.label("L_Y_s")
        a("s_waitcnt lgkmcnt(0)\ns_barrier")
        stamp(5)
    else:
        cyc(2)
        a("s_waitcnt lgkmcnt(0)\ns_barrier")
        stamp(5); cyc(3)
        for ks in range(p.qpre): a(f"ds_read_b128 {V(vQG+4*ks)}, v{vQA+ks}")
        a(f"""s_cmp_eq_u32 s{sT3}, 0
    s_cbranch_scc1 L_Y_s""")
        uvdma(sQ, p.uv1 + p.uv2, 8)
        a("s_barrier")
        if p.prio: a(f"s_setprio {p.prio}")
        a.label("L_Y_s")
    cyc(4)
    for ks in range(p.qpre, NQ): a(f"ds_read_b128 {V(vQG+4*ks)}, v{vQA+ks}")
    for ks in range(16):
        rem = min(15, ks+NQ-1) - ks
        a(f"s_waitcnt lgkmcnt({rem})")
        mfma(vACC, vSF+4*ks, vQG+4*(ks % NQ), '0' if ks == 0 else None)
        if ks + NQ < 16: a(f"ds_read_b128 {V(vQG+4*(ks%NQ))}, v{vQA+ks+NQ}")
    cyc(5)
    a(f"""ds_write_b128 v11, {V(vACC)}
    s_waitcnt lgkmcnt(0)
    s_barrier""")
    stamp(6); cyc(6)
    vS = 48
    for T in range(4): a(f"ds_read_b128 {V(vS+4*T)}, v10 offset:{1024*T}")
    hint(0)
    a(f"""s_waitcnt lgkmcnt(2)
    v_max3_f32 v64, v{vS}, v{vS+1}, v{vS+2}
    v_max3_f32 v65, v{vS+3}, v{vS+4}, v{vS+5}
    v_max3_f32 v64, v64, v{vS+6}, v{vS+7}
    s_waitcnt lgkmcnt(0)
    v_max3_f32 v65, v65, v{vS+8}, v{vS+9}
    v_max3_f32 v64, v64, v{vS+10}, v{vS+11}
    v_max3_f32 v65, v65, v{vS+12}, v{vS+13}
    v_max3_f32 v64, v64, v{vS+14}, v{vS+15}
    v_max_f32 v64, v64, v65""")
    allred_groups("v_max_f32", 64, 65)
    cyc(7)
    def lead_bar():
        a(f"s_cmp_eq_u32 s{sT3}, 0\ns_cbranch_scc0 L_Y_p\ns_barrier\nL_Y_p:")
    if p.bpos == 1: lead_bar()
    vP = 72
    def pksub(r): return f"v_pk_add_f32 v[{r}:{r+1}], v[{r}:{r+1}], v[64:65] op_sel_hi:[1,0] neg_lo:[0,1] neg_hi:[0,1]"
    for k in range(4): a(pksub(vS+2*k))
    for k in range(8): a(f"v_exp_f32 v{vS+k}, v{vS+k}")
    for k in range(4, 8): a(pksub(vS+2*k))
    for k in range(4): a(f"v_cvt_pk_bf16_f32 v{vP+k}, v{vS+2*k}, v{vS+2*k+1}")
    hint(1); cyc(8)
    if p.diag == 1: stamp(1)
    if p.bpos == 0: lead_bar()
    for ct in range(8):
        mfma(vACC+4*ct, vP, vPF+8*ct, '0')
        a(f"v_exp_f32 v{vS+8+ct}, v{vS+8+ct}")
        if ct in (3, 5, 7): a(f"v_cvt_pk_bf16_f32 v{vP+4+(ct-3)//2}, v{vS+8+ct-3}, v{vS+8+ct-2}")
    a(f"v_mov_b32 v66, s{sT[0]}\nv_cvt_pk_bf16_f32 v{vP+7}, v{vS+14}, v{vS+15}")
    hint(2)
    if p.diag == 1: stamp(4)
    a(f"""s_cmp_eq_u32 s{sT2}, 0
    s_cbranch_scc0 L_Y_nol""")
    mfma(68, 248, vP, '0')
    mfma(68, 248, vP+4)
    a.label("L_Y_nol")
    def epi(k):
        return [f"v_cvt_pk_bf16_f32 v{80+4*r+k}, v{vACC+8*k+r}, v{vACC+8*k+4+r}" for r in range(4)] + \
               [f"v_bfi_b32 v{80+4*r+k}, v9, v{vTO+k}, v{80+4*r+k}" for r in range(4)]
    for ct in range(4): mfma(vACC+4*ct, vP+4, vPF+8*ct+4)
    a(f"""s_cmp_eq_u32 s{sT2}, 0
    s_cselect_b32 vcc_lo, 0xffff, 0""")
    mfma(vACC+16, vP+4, vPF+36)
    a("s_nop 0\nv_mov_b32 v65, v68")
    mfma(vACC+20, vP+4, vPF+44)
    a(f"""s_mov_b32 exec_lo, vcc_lo
    s_mov_b32 exec_hi, 0
    buffer_store_dwordx4 v[64:67], v15, {R(rWS)}, s{sT1} offen sc1
    s_mov_b64 exec, -1""")
    e = epi(0)
    mfma(vACC+24, vP+4, vPF+52)
    for x in e[:3]: a(x)
    mfma(vACC+28, vP+4, vPF+60)
    if p.diag == 1: stamp(2)
    cyc(9)
    for x in e[3:] + epi(1) + epi(2): a(x)
    cyc(10)
    for r in range(4):
        a(f"v_cvt_pk_bf16_f32 v{83+4*r}, v{vACC+24+r}, v{vACC+28+r}")
        a(f"v_bfi_b32 v{83+4*r}, v9, v{vTO+3}, v{83+4*r}")
        if p.halfo: a("s_mov_b32 exec_lo, 0x00ff00ff\ns_mov_b32 exec_hi, 0x00ff00ff")
        a(f"buffer_store_dwordx4 {V(80+4*r)}, v12, {R(rWS)}, s{sT0} offen sc1")
        if p.halfo: a("s_mov_b64 exec, -1")
        if r < 3: a(f"s_add_u32 s{sT0}, s{sT0}, 0x20000")
    hint(3)
    stamp(7); cyc(11)
    if p.prio: a("s_setprio 0")
    a(f"s_sub_u32 s{sI}, s{sJ}, 4")
    a(f"""v_bfe_u32 v9, v{vL}, 2, 2
    v_lshl_add_u32 v134, v{vG}, 3, v9
    v_lshlrev_b32 v134, 8, v134
    v_and_b32 v11, 1, v{vG}
    v_lshl_add_u32 v9, v11, 2, v9
    v_lshlrev_b32 v9, 1, v9
    v_bfe_u32 v11, v{vL}, 1, 1
    s_lshl_b32 s{sT0}, s{sWave}, 1
    v_add_u32 v11, s{sT0}, v11
    v_xor_b32 v9, v9, v11
    v_lshl_add_u32 v134, v9, 4, v134
    v_and_b32 v9, 1, v{vL}
    v_lshl_add_u32 v134, v9, 3, v134
    v_add_u32 v134, {L_WUVY}, v134""")
    a(f"""v_bfe_u32 v9, v{vL}, 3, 1
    v_lshlrev_b32 v120, {10 if p.cstat else 15}, v9
    v_and_b32 v11, 3, v{vL}
    v_lshl_add_u32 v120, v11, {6 if p.cstat else 11}, v120
    v_lshl_add_u32 v120, v{vG}, {4 if p.cstat else 9}, v120
    s_and_b32 s{sT2}, s{sWave}, 3
    s_lshr_b32 s{sT3}, s{sWave}, 2
    s_lshl_b32 s{sT0}, s{sT2}, {8 if p.cstat else 13}
    s_lshl_b32 s{sT1}, s{sH}, {11 if p.cstat else 4}
    s_add_u32 s{sT0}, s{sT0}, s{sT1}
    s_add_u32 s{sT0}, s{sT0}, {ST}""")
    a(f"""v_lshlrev_b32 v121, 14, v9
    v_lshl_add_u32 v121, v{vG}, 8, v121
    v_and_b32 v11, 7, v{vL}
    v_lshl_add_u32 v121, v11, 4, v121
    s_lshl_b32 s{sT1}, s{sH}, 2
    s_add_u32 s{sT1}, s{sT1}, s{sI}
    s_lshl_b32 s{sQ+1}, s{sH}, 12
    s_lshl_b32 s{sQ+3}, s{sI}, 8
    s_add_u32 s{sQ+1}, s{sQ+1}, s{sQ+3}
    s_add_u32 s{sQ+3}, s{sQ+1}, {CXL}
    s_add_u32 s{sQ+1}, s{sQ+1}, {CX}
    s_lshl_b32 s{sT1}, s{sT1}, 15
    s_lshl_b32 s{sQ}, s{sT2}, 12
    s_add_u32 s{sT1}, s{sT1}, s{sQ}
    s_lshl_b32 s{sQ}, s{sT3}, {7 if not p.halfo else 11}
    s_add_u32 s{sT1}, s{sT1}, s{sQ}
    s_add_u32 s{sT1}, s{sT1}, {OP}""")
    a(f"v_and_b32 v122, 1, v{vG}\nv_mul_u32_u24 v122, 0xff, v122")
    lsbtags(124, "v122")
    a(f"""v_mul_u32_u24 v122, {4*272}, v9
    v_lshl_add_u32 v122, v11, 4, v122
    v_and_b32 v123, 1, v{vG}
    v_lshl_add_u32 v122, v123, 3, v122
    s_mul_i32 s{sQ}, s{sT2}, 272
    s_lshl_b32 s{sQ+2}, s{sT3}, 7
    s_add_u32 s{sQ}, s{sQ}, s{sQ+2}
    s_add_u32 s{sQ}, s{sQ}, {L_AIMGY}
    v_add_u32 v122, s{sQ}, v122""")
    a(f"""v_lshlrev_b32 v128, 5, v9
    s_lshl_b32 s{sQ}, s{sT2}, 2
    s_add_u32 s{sQ}, s{sQ}, {L_VSTY}
    v_add_u32 v128, s{sQ}, v128
    v_lshlrev_b32 v129, 5, v123
    v_add_u32 v129, {L_VSTY}, v129""")
    a(f"""v_mul_u32_u24 v130, 272, v11
    v_lshl_add_u32 v130, v{vG}, 4, v130
    v_add_u32 v130, {L_AIMGY}, v130""")
    a(f"""v_lshlrev_b32 v131, 5, v{vG}
    v_lshl_add_u32 v131, v11, 2, v131
    v_lshl_add_u32 v131, v9, 6, v131
    s_lshr_b32 s{sQ}, s{sWave}, 1
    s_lshl_b32 s{sQ}, s{sQ}, 10
    s_and_b32 s{sQ+2}, s{sWave}, 1
    s_lshl_b32 s{sQ+2}, s{sQ+2}, 7
    s_add_u32 s{sQ}, s{sQ}, s{sQ+2}
    v_add_u32 v131, s{sQ}, v131
    v_and_b32 v132, 3, v{vL}
    v_mul_u32_u24 v132, 37, v132
    v_add_u32 v132, s{sT[0]}, v132""")
    a("v_mov_b32 v133, 1")
    a(f"s_mov_b32 s{sQ+4}, s{sT0}\ns_mov_b32 s{sQ+5}, s{sT1}")
    a(f"""s_cmp_lg_u32 s{sWave}, 0
    s_cbranch_scc1 L_Y_v
    s_bfe_u32 s{sT0}, s2, 0x10004
    s_lshl_b32 s{sT0}, s{sT0}, 7
    s_add_u32 s{sT0}, s{sT0}, {HC}""")
    for k in range(p.nsamp):
        a(f"s_add_u32 s{4+k}, s2, {37*k}\ns_and_b32 s{4+k}, s{4+k}, 127\ns_lshl_b32 s{4+k}, s{4+k}, 8\ns_add_u32 s{4+k}, s{4+k}, s{sT0}")
    if p.need: spoll_cnt([4+k for k in range(p.nsamp)], 12, p.need)
    else: spoll_all([4+k for k in range(p.nsamp)], 12)
    a.label("L_Y_v")
    a(f"s_waitcnt vmcnt({0 if p.odrain else 4})\ns_barrier")
    vBV = 20
    stamp(1)
    if p.wogate and p.wgpos == 1:
        a(f"""s_cmp_eq_u32 s{sWave}, 1
        s_cselect_b32 exec_lo, 0xf, 0
        s_mov_b32 exec_hi, 0
        buffer_store_dwordx4 v[252:255], v{vL16}, {R(rWS)}, s{sQ+9} offen offset:64 sc1
        s_mov_b64 exec, -1""")
    vOD = 56
    def cloads():
        a(f"buffer_load_dwordx4 v[52:55], v120, {R(rWS)}, s{sQ+4} offen sc1")
        for u in range(4): a(f"buffer_load_dwordx4 {V(vOD+4*u)}, v121, {R(rWS)}, s{sQ+5} offen offset:{1024*(u if not p.halfo else u&1)} sc1")
    cloads()
    for ks in range(4):
        for hf in range(2):
            a(f"ds_read_b64_tr_b16 {V(vBV+4*ks+2*hf, 2)}, v134 offset:{(32*ks+4*hf)*256}")
    if p.diag == 3:
        a(f"s_waitcnt vmcnt(4)\ns_memrealtime s[{sStamp+2}:{sStamp+3}]\ns_waitcnt vmcnt(0)\ns_memrealtime s[{sStamp+4}:{sStamp+5}]")
    Lc = a.newlabel('cchk')
    a(f"s_mov_b32 s{sCnt}, 0\ns_branch {Lc}")
    L = a.newlabel('poll'); a.label(L)
    cloads()
    a.label(Lc)
    a(f"""s_mov_b64 exec, -1
    s_waitcnt vmcnt(4)
    v_max_f32_dpp v50, v52, v52 quad_perm:[1,0,3,2] row_mask:0xf bank_mask:0xf
    v_cmp_ne_u32 vcc, s{sT[0]}, v54
    v_max_f32_dpp v50, v50, v50 quad_perm:[2,3,0,1] row_mask:0xf bank_mask:0xf
    v_cndmask_b32 v49, 0, v133, vcc""")
    allred_groups("v_max_f32", 50, 51)
    a(f"""v_sub_f32 v51, v52, v50
    v_exp_f32 v51, v51
    v_cvt_pk_bf16_f32 v51, v51, v51""")
    for u in range(4):
        buildA(72+4*u, 51, u)
    a(f"""v_and_b32 v51, 0xffff0000, v51
    v_mul_f32 v51, v51, v53
    s_waitcnt vmcnt(3)""")
    mfma(88, 72, vOD, '0')
    a("v_add_f32_dpp v51, v51, v51 quad_perm:[1,0,3,2] row_mask:0xf bank_mask:0xf")
    chkv(49, vOD, 124)
    a("v_add_f32_dpp v51, v51, v51 quad_perm:[2,3,0,1] row_mask:0xf bank_mask:0xf\ns_waitcnt vmcnt(2)")
    mfma(88, 76, vOD+4)
    a("v_mov_b32 v55, v51")
    chkv(49, vOD+4, 124)
    a("v_permlane32_swap_b32 v51, v55\nv_add_f32 v51, v51, v55\ns_waitcnt vmcnt(1)")
    mfma(88, 80, vOD+8)
    a("v_mov_b32 v55, v51")
    chkv(49, vOD+8, 124)
    a("v_permlane16_swap_b32 v51, v55\nv_add_f32 v51, v51, v55\ns_waitcnt vmcnt(0)")
    mfma(88, 84, vOD+12)
    a("ds_write2_b32 v128, v50, v51 offset0:0 offset1:4")
    chkv(49, vOD+12, 124)
    poll_end_masked(L, 49, '0x10001')
    if p.stamp: a(f"s_mov_b32 s{sStamp+24}, s{sCnt}")
    stamp(8)
    if p.wogate and p.wgpos == 2:
        a(f"""s_cmp_eq_u32 s{sWave}, 1
        s_cselect_b32 exec_lo, 0xf, 0
        s_mov_b32 exec_hi, 0
        buffer_store_dwordx4 v[252:255], v{vL16}, {R(rWS)}, s{sQ+9} offen offset:64 sc1
        s_mov_b64 exec, -1""")
    a(f"""v_cvt_pk_bf16_f32 v88, v88, v89
    v_cvt_pk_bf16_f32 v89, v90, v91
    s_mov_b32 exec_lo, 0x00ff00ff
    s_mov_b32 exec_hi, 0xff00ff00
    ds_write_b64 v122, v[88:89]
    s_mov_b64 exec, -1
    s_waitcnt lgkmcnt(0)
    s_barrier""")
    for ks in range(4): a(f"ds_read_b128 {V(56+4*ks)}, v130 offset:{64*ks}")
    a(f"ds_read_b128 v[72:75], v129\nds_read_b128 v[76:79], v129 offset:16")
    for ks in range(4):
        a(f"s_waitcnt lgkmcnt({5-ks})")
        mfma(88, 56+4*ks, vBV+4*ks, '0' if ks == 0 else None)
    a(f"""s_waitcnt lgkmcnt(0)
    v_max3_f32 v50, v72, v73, v74
    v_max_f32 v50, v50, v75""")
    for r in range(4): a(f"v_sub_f32 v{72+r}, v{72+r}, v50")
    for r in range(4): a(f"v_exp_f32 v{72+r}, v{72+r}")
    a(f"""v_mul_f32 v51, v72, v76
    v_fmac_f32 v51, v73, v77
    v_fmac_f32 v51, v74, v78
    v_fmac_f32 v51, v75, v79
    v_rcp_f32 v51, v51
    v_mul_f32 v50, v72, v88
    v_fmac_f32 v50, v73, v89
    v_fmac_f32 v50, v74, v90
    v_fmac_f32 v50, v75, v91
    v_mul_f32 v50, v50, v51
    v_mov_b32_sdwa v50, v132 dst_sel:BYTE_0 dst_unused:UNUSED_PRESERVE src0_sel:BYTE_0
    s_mov_b32 exec_hi, 0""")
    if p.fast: a(f"buffer_store_dword v50, v131, {R(rWS)}, s{sQ+3} offen")
    a(f"""buffer_store_dword v50, v131, {R(rWS)}, s{sQ+1} offen sc1
    s_mov_b64 exec, -1""")
    stamp(2)
    a(f"""s_sub_u32 s2, s2, 128
    s_cmp_ge_u32 s2, 72
    s_cbranch_scc1 L_Y_end
    s_cmp_ge_u32 s2, 36
    s_cselect_b32 s{sT2}, 1, 0
    s_mul_i32 s{sT3}, s{sT2}, 36
    s_sub_u32 s{sT3}, s2, s{sT3}
    s_mul_i32 s{sT0}, s{sWave}, {16*4608}
    s_mul_i32 s{sT1}, s{sT2}, 2304
    s_add_u32 s{sT0}, s{sT0}, s{sT1}
    s_lshl_b32 s{sT1}, s{sT3}, 6
    s_add_u32 s{sT0}, s{sT0}, s{sT1}
    s_add_u32 s{sT0}, s{sT0}, {FP}
    v_lshrrev_b32 v9, 2, v{vL}
    v_mul_u32_u24 v10, 4608, v9
    v_and_b32 v11, 3, v{vL}
    v_lshl_add_u32 v10, v11, 4, v10
    v_lshl_add_u32 v13, v{vG}, 2, v11
    v_lshlrev_b32 v13, 5, v13
    s_lshl_b32 s{sT1}, s{sWave}, 2
    s_add_u32 s{sT1}, s{sT1}, {L_REDY}
    v_add_u32 v13, s{sT1}, v13""")
    srd(rB, pB2, SZ['b2']); srd(rC, pOUT, SZ['out'])
    a(f"""s_lshl_b32 s{sT1}, s{sT3}, 2
    v_add_u32 v14, s{sT1}, v11""")
    decode_v(15, 14, 16)
    a(f"""v_bfe_u32 v14, v{vL}, 2, 2
    v_add_u32 v15, v15, v14
    v_lshlrev_b32 v15, 1, v15
    buffer_load_ushort v16, v15, {R(rB)}, 0 offen
    s_lshl_b32 s{sT1}, s{sT2}, 2
    s_add_u32 s{sT1}, s{sT1}, {L_GATE}
    v_mov_b32 v17, s{sT1}
    ds_read_b32 v17, v17
    v_lshlrev_b32 v18, 5, v{vJ}
    v_add_u32 v18, {L_REDY}, v18
    s_mul_i32 s{sT2}, s{sT2}, 1152
    s_add_u32 s{sT3}, s{sT0}, {FP2-FP}""")
    if p.outpre: a(f"buffer_load_ushort v19, v15, {R(rC)}, s{sT2} offen")
    a(f"""s_waitcnt vmcnt(0) lgkmcnt(0)
    v_lshlrev_b32 v16, 16, v16
    v_sub_f32 v17, 1.0, v17
    v_mul_f32 v16, v16, v17""")
    if p.dflag >= 3:
        for k in range(p.dsamp):
            a(f"s_add_u32 s{4+k}, s2, {(16//p.dsamp)*k}\ns_and_b32 s{4+k}, s{4+k}, 15\ns_lshl_b32 s{sQ}, s{sWave}, 4\ns_add_u32 s{4+k}, s{4+k}, s{sQ}\ns_lshl_b32 s{4+k}, s{4+k}, 7\ns_add_u32 s{4+k}, s{4+k}, {HD}")
        spoll_all([4+k for k in range(p.dsamp)], 12)
        stamp(9)
    L = poll_begin()
    a(f"""buffer_load_dwordx4 v[20:23], v10, {R(rWS)}, s{sT0} offen sc1
    s_mov_b64 exec, -1
    s_waitcnt vmcnt(0)""")
    chk4(24, 20, True)
    poll_end_masked(L, 24, '0xff')
    stamp(10)
    treduce(20)
    a(f"""v_add_f32_dpp v20, v20, v20 row_ror:4 row_mask:0xf bank_mask:0xf
    v_add_f32_dpp v20, v20, v20 row_ror:8 row_mask:0xf bank_mask:0xf
    ds_write_b32 v13, v20
    s_waitcnt lgkmcnt(0)
    s_barrier
    s_cmp_lg_u32 s{sWave}, 0
    s_cbranch_scc1 L_Y_end
    ds_read_b128 v[20:23], v18
    ds_read_b128 v[24:27], v18 offset:16
    s_waitcnt lgkmcnt(0)
    v_add_f32 v20, v20, v24
    v_add_f32 v21, v21, v25
    v_add_f32 v22, v22, v26
    v_add_f32 v23, v23, v27
    v_add_f32 v20, v20, v21
    v_add_f32 v22, v22, v23
    v_add_f32 v20, v20, v16
    v_add_f32 v20, v20, v22
    v_cvt_pk_bf16_f32 v20, v20, v20
    s_mov_b64 exec, 0xffff
    buffer_store_short v20, v15, {R(rC)}, s{sT2} offen {p.outf.replace('_',' ')}
    s_cmp_lg_u32 s2, 0
    s_cbranch_scc1 L_Y_end
    s_mov_b64 exec, 1
    v_mov_b32 v21, s{sT[0]}
    v_mov_b32 v22, 0
    buffer_store_dword v21, v22, {R(rWS)}, 0 offen offset:{EPOCH} sc1""")
    a.label("L_Y_end")
    if p.stamp: a("s_add_u32 s2, s2, 128")
    stamp(11)
    finish('Y')
    a.label("L_exit")
    a("s_endpgm")
    return a.finalize()

HEADER = open('gated_mix__compressed_kv_cla__dense_activation_gelu__decode.s.ref').read().split('; Override')[0]

def emit(path, p=P):
    body = build(p)
    s = HEADER + f"""; @launch grid=(256,1,1) block=(512,1,1) lds={LDS_BYTES}
.amdgcn_target "amdgcn-amd-amdhsa--gfx950"
.text
.globl {KNAME}
.p2align 8
.type {KNAME},@function
{KNAME}:
{body}.section .rodata,"a"
.p2align 6
.amdhsa_kernel {KNAME}
  .amdhsa_next_free_vgpr 256
  .amdhsa_next_free_sgpr 102
  .amdhsa_accum_offset 256
  .amdhsa_group_segment_fixed_size 0
  .amdhsa_kernarg_size 120
  .amdhsa_user_sgpr_count 2
  .amdhsa_user_sgpr_kernarg_segment_ptr 1
  .amdhsa_system_sgpr_workgroup_id_x 1
.end_amdhsa_kernel
"""
    open(path, 'w').write(s)

if __name__ == '__main__':
    out = sys.argv[1]
    for kv in sys.argv[2:]:
        k, v = kv.split('=')
        setattr(P, k, type(getattr(P, k))(v))
    emit(out)
```

```python
import sys, struct, math
from asmlib import Asm

KNAME = "gated_mix__compressed_kv_cla__dense_activation_gelu__decode_kernel"

def f2u(x): return struct.unpack('<I', struct.pack('<f', x))[0]

class P:
    stamp = 0
    nt = "nt"
    pollA_wait = 4
    maxspin = 200000
    prefetch = 1
    wsoff = 0
    fast = 1
    nlocal = 256
    hintpos = 4
    diag = 0
    xpre = 8
    ypre = 0
    gate = 11
    qat = 3
    bsleep = 0
    tlb = 1
    cstat = 1
    dflag = 3
    drep = 18
    dsamp = 2
    dstr = 2304
    wopre = 1
    won = 9
    xg = -1
    xgn = 2
    gand = 0
    wofirst = 1
    odrain = 0
    warm = 3
    halfo = 0
    outf = ""
    outpre = 0
    wopos = 0
    w2gate = 0
    uv1 = 4
    xord = 3
    wosplit = 20
    emub = 0
    ckvf = "nt"
    fpos = 0
    wogate = 0
    wgpos = 0
    uv2 = 0
    hmix = 0
    qsplit = 0
    bpos = 0
    opstr = 32896
    fdel = 1
    asleep = 0
    fsleep = 0
    uvlin = 0
    nof = 0
    fflag = 0
    cflag = 1
    crep = 16
    cstr = 2304
    cw = 7
    cprog = 0
    oplay = 0
    qpf = 0
    qpfs = 0
    bflag = 0
    uv3 = 0
    xramp = 0
    xrn = 4
    fmid = 4
    floc = 1
    clean = 0
    wrow = 0
    p5h = 0
    kint = 1
    b0pos = 1
    nsamp = 4
    need = 0
    prio = 1
    only = ""
    b0 = 1
    wqdma = 0
    nod1 = 0
    sparseC = 1
    qpre = 4
    enc = -1
    encwave = 4

EPOCH, QP, QL, ST, CX, HP, FP, OP, STAMP = 0, 0x10000, 0x50000, 0x60000, 0x70000, 0x90000, 0x120000, 0x200000, 0x800000
QPL, CXL, HC, HG, HD, HK, FP2 = 0x700000, 0x740000, 0x760000, 0x770000, 0x778000, 0x780000, 0x790000
HPL = 0x610000
WS_REC = 0x1000000
L_CKV, L_QIMG, L_SX, L_HX, L_GATE = 0, 65536, 98304, 106496, 107008
L_WQ = 0x18000 - 20480
L_WUK, L_WUV, L_QV, L_AIMG, L_VST, L_RED = 0, 32768, 65536, 66048, 68352, 68480
L_WUVY = 107520
LDS_BYTES = 107520 + 32768
L_AIMGY, L_VSTY, L_REDY = 65536, 67840, 67968
pX, pCKV, pWQ, pWUK, pWUV, pWO, pW1, pB1, pW2, pB2, pGW, pOUT, pWS = 4, 6, 8, 10, 12, 14, 18, 20, 22, 24, 26, 28, 32
sWave, sH, sJ, sI, sXcd, sTag = 3, 34, 35, 56, 57, 58
sT = [58, 59, 60, 61]
rA, rB, rC, rWS = 36, 40, 44, 48
sT0, sT1, sT2, sT3 = 52, 53, 54, 55
sCnt = 62
sQ = 64
sStamp = 76
vL, vJ, vG, vM, vL16 = 1, 2, 3, 4, 8
SZ = dict(x=2304, ckv=8388608, wq=4718592, wuk=4194304, wuv=4194304, wo=4718592, w1=5308416, w2=5308416, b1=9216, b2=1152, gw=1152, out=2304)

def build(p=P):
    a = Asm()
    nt = p.nt
    def srd(r, ptr, size):
        if ptr == pWS and p.wsoff:
            a(f"s_add_u32 s{r}, s{ptr}, {p.wsoff}\ns_addc_u32 s{r+1}, s{ptr+1}, 0\ns_mov_b32 s{r+2}, {size}\ns_mov_b32 s{r+3}, 0x20000")
            return
        a(f"s_mov_b32 s{r}, s{ptr}\ns_mov_b32 s{r+1}, s{ptr+1}\ns_mov_b32 s{r+2}, {size}\ns_mov_b32 s{r+3}, 0x20000")
    def R(r): return f"s[{r}:{r+3}]"
    def V(r, n=4): return f"v[{r}:{r+n-1}]"
    def stamp(k):
        if p.only and k not in [int(x) for x in p.only.split('.')]: return
        if p.stamp: a(f"s_memrealtime s[{sStamp+2*k}:{sStamp+2*k+1}]")
    def cyc(k):
        if p.diag == 5: a(f"s_memtime s[{sStamp+2*k}:{sStamp+2*k+1}]")
    def buildA(dst, x, u):
        for r in range(4):
            a(f"v_and_b32_dpp v{dst+r}, v{x}, v{vM+r} quad_perm:[{u},{u},{u},{u}] row_mask:0xf bank_mask:0xf")
    def mfma(d, A, B, c=None):
        a(f"v_mfma_f32_16x16x32_bf16 {V(d)}, {V(A)}, {V(B)}, {V(d) if c is None else c}")
    def tag4(d):
        for k in range(4):
            a(f"v_mov_b32_sdwa v{d+k}, s{sT[k]} dst_sel:BYTE_0 dst_unused:UNUSED_PRESERVE src0_sel:BYTE_0")
    def chk4(acc, d, first=False):
        for k in range(4):
            if first and k == 0: a(f"v_xor_b32 v{acc}, s{sT[0]}, v{d}")
            else: a(f"v_bitop3_b32 v{acc}, v{acc}, v{d+k}, s{sT[k]} bitop3:0xf6")
    def chkv(acc, d, t, first=False):
        for k in range(4):
            if first and k == 0: a(f"v_xor_b32 v{acc}, v{t}, v{d}")
            else: a(f"v_bitop3_b32 v{acc}, v{acc}, v{d+k}, v{t+k} bitop3:0xf6")
    def poll_begin():
        L = a.newlabel('poll')
        a(f"s_mov_b32 s{sCnt}, 0")
        a.label(L)
        return L
    def poll_end(L, acc, mask, fb=None, lim=None, sleep=0):
        D = a.newlabel('done')
        a(f"v_and_b32 v{acc}, {mask}, v{acc}\nv_cmp_ne_u32 vcc, 0, v{acc}\ns_add_u32 s{sCnt}, s{sCnt}, 1")
        a(f"s_cbranch_vccz {D}")
        if sleep: a(f"s_sleep {sleep}")
        if fb and p.fast:
            regs, delta = fb
            a(f"s_cmp_eq_u32 s{sCnt}, {p.nlocal}\ns_cselect_b32 vcc_lo, {delta}, 0")
            for r in regs: a(f"s_sub_u32 s{r}, s{r}, vcc_lo")
        a(f"s_cmp_lt_u32 s{sCnt}, {lim or p.maxspin}\ns_cbranch_scc1 {L}")
        a.label(D)
    def poll_end_masked(L, acc, mask, sleep=0):
        D = a.newlabel('done')
        a(f"""v_and_b32 v{acc}, {mask}, v{acc}
        v_cmp_ne_u32 vcc, 0, v{acc}
        s_add_u32 s{sCnt}, s{sCnt}, 1
        s_cbranch_vccz {D}
        s_wqm_b64 exec, vcc""")
        if sleep: a(f"s_sleep {sleep}")
        a(f"""s_cmp_lt_u32 s{sCnt}, {p.maxspin}
        s_cbranch_scc1 {L}
        s_mov_b64 exec, -1""")
        a.label(D)
    def spoll_cnt(off_regs, tmp, need):
        L = a.newlabel('sp'); D = a.newlabel('spd')
        a(f"s_mov_b32 s{sCnt}, 0")
        a.label(L)
        for k, r in enumerate(off_regs): a(f"s_load_dword s{tmp+k}, s[{rWS}:{rWS+1}], s{r} glc")
        a(f"s_add_u32 s{sCnt}, s{sCnt}, 1\ns_cmp_ge_u32 s{sCnt}, {p.maxspin}\ns_cbranch_scc1 {D}\ns_mov_b32 vcc_lo, 0\ns_waitcnt lgkmcnt(0)")
        for k, r in enumerate(off_regs): a(f"s_cmp_eq_u32 s{tmp+k}, s{sT[0]}\ns_addc_u32 vcc_lo, vcc_lo, 0")
        a(f"s_cmp_lt_u32 vcc_lo, {need}\ns_cbranch_scc1 {L}")
        a.label(D)
        a("s_waitcnt lgkmcnt(0)")
    def spoll_all(off_regs, tmp):
        L = a.newlabel('sp'); D = a.newlabel('spd')
        a(f"s_mov_b32 s{sCnt}, 0")
        a.label(L)
        for k, r in enumerate(off_regs): a(f"s_load_dword s{tmp+k}, s[{rWS}:{rWS+1}], s{r} glc")
        a(f"s_add_u32 s{sCnt}, s{sCnt}, 1\ns_cmp_ge_u32 s{sCnt}, {p.maxspin}\ns_cbranch_scc1 {D}\ns_waitcnt lgkmcnt(0)")
        for k, r in enumerate(off_regs): a(f"s_cmp_lg_u32 s{tmp+k}, s{sT[0]}\ns_cbranch_scc1 {L}")
        a.label(D)
        a("s_waitcnt lgkmcnt(0)")
    def spoll(off_regs):
        L = a.newlabel('sp'); D = a.newlabel('spd')
        a(f"s_mov_b32 s{sCnt}, 0")
        a.label(L)
        for k, r in enumerate(off_regs): a(f"s_load_dword s{sT0+k}, s[{rWS}:{rWS+1}], s{r} glc")
        a(f"s_add_u32 s{sCnt}, s{sCnt}, 1\ns_waitcnt lgkmcnt(0)")
        for k, r in enumerate(off_regs): a(f"s_cmp_eq_u32 s{sT0+k}, s{sT[0]}\ns_cbranch_scc1 {D}")
        a(f"s_cmp_lt_u32 s{sCnt}, {p.maxspin}\ns_cbranch_scc1 {L}")
        a.label(D)
    def treduce(r):
        a(f"v_permlane32_swap_b32 v{r}, v{r+2}\nv_permlane32_swap_b32 v{r+1}, v{r+3}")
        a(f"v_add_f32 v{r}, v{r}, v{r+2}\nv_add_f32 v{r+1}, v{r+1}, v{r+3}")
        a(f"v_permlane16_swap_b32 v{r}, v{r+1}\nv_add_f32 v{r}, v{r}, v{r+1}")
    def allred_groups(op, r, t):
        a(f"v_mov_b32 v{t}, v{r}\nv_permlane32_swap_b32 v{r}, v{t}\n{op} v{r}, v{r}, v{t}")
        a(f"v_mov_b32 v{t}, v{r}\nv_permlane16_swap_b32 v{r}, v{t}\n{op} v{r}, v{r}, v{t}")
    def masks():
        a(f"""v_and_b32 v9, 3, v{vL}
        v_lshlrev_b32 v9, 4, v9
        v_mov_b32 v10, 0xffff
        v_mov_b32 v11, 0
        v_lshlrev_b64 v[10:11], v9, v[10:11]
        v_and_b32 v9, 4, v{vL}
        v_cmp_eq_u32 vcc, 0, v9
        v_cndmask_b32 v{vM}, 0, v10, vcc
        v_cndmask_b32 v{vM+1}, 0, v11, vcc
        v_cndmask_b32 v{vM+2}, v10, 0, vcc
        v_cndmask_b32 v{vM+3}, v11, 0, vcc""".replace('v_cndmask_b32 v%d, v10, 0, vcc' % (vM+2), 'v_cndmask_b32_e64 v%d, v10, 0, vcc' % (vM+2)).replace('v_cndmask_b32 v%d, v11, 0, vcc' % (vM+3), 'v_cndmask_b32_e64 v%d, v11, 0, vcc' % (vM+3)))
    def xoff(dst):
        a(f"""v_bfe_u32 v{dst}, v{vL}, 3, 1
        v_mul_u32_u24 v{dst}, 1152, v{dst}
        v_and_b32 v9, 3, v{vL}
        v_lshl_add_u32 v{dst}, v9, 3, v{dst}
        v_lshl_add_u32 v{dst}, v{vG}, 1, v{dst}""")
    def epoch_wait():
        a(f"""s_waitcnt lgkmcnt(0)
        s_add_u32 s{sT[0]}, s{sT[0]}, 1
        s_addc_u32 s{sT[0]}, s{sT[0]}, 0
        s_add_u32 s{sT[1]}, s{sT[0]}, 37
        s_add_u32 s{sT[2]}, s{sT[0]}, 74
        s_add_u32 s{sT[3]}, s{sT[0]}, 111""")
    def lsbtags(t, flip=None):
        a(f"""v_and_b32 v{t}, 7, v{vL}
        v_mul_u32_u24 v{t}, 37, v{t}
        v_add_u32 v{t}, s{sT[0]}, v{t}""")
        if flip: a(f"v_xor_b32 v{t}, {flip}, v{t}")
        a(f"""v_and_b32 v{t}, 0xff, v{t}
        v_lshl_or_b32 v{t}, v{t}, 15, v{t}
        v_lshrrev_b32 v{t+1}, 2, v{t}
        v_lshrrev_b32 v{t+2}, 4, v{t}
        v_lshrrev_b32 v{t+3}, 6, v{t}""")
    def decode_v(dst, src, t):
        a(f"""v_lshrrev_b32 v{dst}, 5, v{src}
        v_lshlrev_b32 v{dst}, 7, v{dst}
        v_and_b32 v{t}, 15, v{src}
        v_lshl_add_u32 v{dst}, v{t}, 3, v{dst}
        v_bfe_u32 v{t}, v{src}, 4, 1
        v_lshl_add_u32 v{dst}, v{t}, 2, v{dst}
        v_and_b32 v{t}, 7, v{src}
        v_lshlrev_b32 v{t}, 3, v{t}
        v_bfe_u32 v{t+1}, v{src}, 3, 1
        v_lshl_add_u32 v{t}, v{t+1}, 2, v{t}
        v_add_u32 v{t}, 512, v{t}
        v_cmp_gt_u32 vcc, 128, v{src}
        v_cndmask_b32 v{dst}, v{t}, v{dst}, vcc""")
    def finish(nst):
        if p.stamp == 5:
            a("s_endpgm"); return
        if p.stamp == 3:
            Ls = a.newlabel('noenc'); Lw = a.newlabel('encw')
            a(f"""s_waitcnt lgkmcnt(0)
            s_lshl_b32 s{sT0}, s2, 3
            s_add_u32 s{sT0}, s{sT0}, s{sWave}
            s_cmp_eq_u32 s{sT0}, {p.encwave}
            s_cbranch_scc0 {Ls}
{Lw}:
            s_memrealtime s[{sT0}:{sT1}]
            s_waitcnt lgkmcnt(0)
            s_sub_u32 s{sT0}, s{sT0}, s{sStamp+2*p.enc}
            s_cmp_lt_u32 s{sT0}, 3000
            s_cbranch_scc1 {Lw}
{Ls}:
            s_endpgm""")
            return
        if p.stamp:
            a(f"""s_waitcnt lgkmcnt(0)
            s_lshl_b32 s{sT0}, s2, 3
            s_add_u32 s{sT0}, s{sT0}, s{sWave}
            s_lshl_b32 s{sT0}, s{sT0}, 6
            s_add_u32 s{sT0}, s{sT0}, {STAMP}
            s_mov_b64 exec, 1
            v_mov_b32 v9, 0""")
            for k in range(13):
                a(f"v_mov_b32 v{10+k}, s{sStamp+2*k}\nbuffer_store_dword v{10+k}, v9, {R(rWS)}, s{sT0} offen offset:{4*k}")
        if p.stamp == 2:
            Ls = a.newlabel('nosum')
            a(f"""s_lshl_b32 s{sT0}, s2, 3
            s_add_u32 s{sT0}, s{sT0}, s{sWave}
            s_cmp_eq_u32 s{sT0}, {4 if nst == 'X' else 1024}
            s_cbranch_scc0 {Ls}""")
            srd(rB, 30, 256)
            for n, k in enumerate((1,2,3,4,7,8,9,10) if nst == 'X' else (1,2,3,4,7,8,10,11)):
                a(f"s_sub_u32 s{sT1}, s{sStamp+2*k}, s{sStamp}\nv_mov_b32 v{30+n}, s{sT1}\nbuffer_store_dword v{30+n}, v9, {R(rB)}, 0 offen offset:{4*n + (0 if nst == 'X' else 32)}")
            a.label(Ls)
        a("s_endpgm")

    def slot_store(d, base_s, wave_is_half, toff, local=None):
        tag4(d)
        if wave_is_half: a("s_mov_b32 exec_lo, 0x00ff00ff\ns_mov_b32 exec_hi, 0x00ff00ff")
        if local: a(f"s_add_u32 vcc_lo, s{base_s}, {local}\nbuffer_store_dwordx4 {V(d)}, v{toff}, {R(rWS)}, vcc_lo offen")
        a(f"buffer_store_dwordx4 {V(d)}, v{toff}, {R(rWS)}, s{base_s} offen sc1")
        if wave_is_half: a("s_mov_b64 exec, -1")
    def slot_voff(dst, half):
        a(f"""v_lshrrev_b32 v{dst}, 1, v{vG}
        v_mul_u32_u24 v{dst}, 2304, v{dst}
        v_lshl_add_u32 v{dst}, v{vJ}, 4, v{dst}
        v_and_b32 v9, 1, v{vG}""")
        if half:
            a(f"v_lshl_add_u32 v{dst}, v9, 7, v{dst}\nv_add_u32 v{dst}, 2048, v{dst}")
        else:
            a(f"v_lshl_add_u32 v{dst}, v9, 8, v{dst}\ns_lshl_b32 s{sT0}, s{sWave}, 9\nv_add_u32 v{dst}, s{sT0}, v{dst}")

    def zstamps():
        if p.stamp:
            for k in range(1, 13): a(f"s_mov_b32 s{sStamp+2*k}, 0")
    vXP, vAP, vWP, vDP = 12, 20, 100, 180
    assert p.wsoff == 0
    stamp(0)
    a(f"""s_load_dwordx8 s[36:43], s[0:1], 0
    s_load_dwordx2 s[{rWS}:{rWS+1}], s[0:1], 112
    v_readfirstlane_b32 s{sWave}, v0
    v_and_b32 v{vJ}, 15, v0
    s_lshr_b32 s{sJ}, s2, 5
    s_and_b32 s{sH}, s2, 31""")
    if p.hmix == 1: a(f"s_lshr_b32 s{sT0}, s{sH}, 3\ns_xor_b32 s{sH}, s{sH}, s{sT0}")
    if p.hmix == 2: a(f"s_lshr_b32 s{sT0}, s{sH}, 2\ns_and_b32 s{sT0}, s{sT0}, 6\ns_xor_b32 s{sH}, s{sH}, s{sT0}")
    if p.hmix == 3: a(f"s_lshr_b32 s{sT0}, s{sH}, 3\ns_mul_i32 s{sT0}, s{sT0}, 5\ns_and_b32 s{sT0}, s{sT0}, 7\ns_xor_b32 s{sH}, s{sH}, s{sT0}")
    a(f"""s_mov_b32 s{rWS+3}, 0x20000
    s_lshr_b32 s{sT0}, s2, 8
    s_or_b32 s{sT0}, s{sT0}, s{sWave}
    s_cbranch_scc1 L_rest""")
    a(f"""v_lshrrev_b32 v{vG}, 4, v0
    v_lshlrev_b32 v9, 15, v{vG}
    v_lshl_add_u32 v9, v{vJ}, 4, v9
    v_add_u32 v10, {8192-1024}, v9
    v_add_u32 v11, {2*(8192-1024)}, v9
    v_add_u32 v12, {3*(8192-1024)}, v9
    s_mul_i32 s{sT0}, s{sJ}, {72*32}
    s_add_u32 s{sT0}, s{sT0}, s{sH}
    s_lshl_b32 s{sT0}, s{sT0}, 8
    s_mov_b32 m0, {L_WQ}
    v_lshrrev_b32 v13, 3, v{vJ}
    v_mul_u32_u24 v13, 144, v13
    v_and_b32 v14, 3, v0
    v_lshl_add_u32 v14, v14, 2, v{vG}
    v_add_lshl_u32 v13, v13, v14, 3
    s_mul_i32 s{sT1}, s{sJ}, 144
    s_waitcnt lgkmcnt(0)
    s_movk_i32 s{rA+2}, {SZ['x']}
    s_mov_b32 s{rA+3}, s{rWS+3}
    s_add_u32 s{rB+2}, s{sT0}, {71*8192+256}
    s_mov_b32 s{rB+3}, s{rWS+3}""")
    if p.diag == 2: a(f"s_memrealtime s[{sQ+6}:{sQ+7}]")
    a(f"""buffer_load_dwordx2 v[186:187], v13, {R(rA)}, s{sT1} offen
    buffer_load_dwordx2 v[188:189], v13, {R(rA)}, s{sT1} offen offset:128
L_wq:
    buffer_load_dwordx4 v9, {R(rB)}, s{sT0} offen {nt} lds
    buffer_load_dwordx4 v10, {R(rB)}, s{sT0} offen offset:1024 {nt} lds
    buffer_load_dwordx4 v11, {R(rB)}, s{sT0} offen offset:2048 {nt} lds
    buffer_load_dwordx4 v12, {R(rB)}, s{sT0} offen offset:3072 {nt} lds
    s_addk_i32 m0, 4096
    s_add_u32 s{sT0}, s{sT0}, s{rWS+3}
    s_bitcmp0_b32 m0, 15
    s_cbranch_scc1 L_wq""")
    if p.diag == 2: a(f"s_memrealtime s[{sQ+8}:{sQ+9}]")
    if p.b0pos == 0: a("s_barrier")
    a.label("L_rest")
    a(f"""s_cmp_ge_u32 s{sJ}, 8
    s_cbranch_scc1 L_exit
    s_lshr_b32 s{sWave}, s{sWave}, 6
    v_and_b32 v{vL}, 63, v0
    v_bfe_u32 v{vG}, v0, 4, 2
    v_lshlrev_b32 v{vL16}, 4, v{vL}
    s_mov_b32 s{rWS+2}, {WS_REC}
    s_lshl_b32 s{sT0}, s{sH}, 3
    s_add_u32 s{sT0}, s{sT0}, s{sJ}
    s_lshl_b32 s{sT0}, s{sT0}, 10
    s_add_u32 s{sT1}, s{sT0}, {QPL}
    s_and_b32 s{sT2}, s{sWave}, 3
    s_mov_b32 s{rC+3}, s{rWS+3}
    s_cmp_eq_u32 s{sWave}, 3
    s_cselect_b32 exec_lo, 0x01010101, 0
    s_cselect_b32 exec_hi, 0x01010101, 0
    s_waitcnt lgkmcnt(0)""")
    if p.fast: a(f"buffer_load_dword v250, v{vL16}, {R(rWS)}, s{sT1} offen sc1")
    a(f"""s_mov_b64 exec, -1
    s_load_dwordx16 s[4:19], s[0:1], 0
    s_load_dwordx8 s[20:27], s[0:1], 64
    s_load_dwordx4 s[28:31], s[0:1], 96
    s_and_b32 s{sXcd}, s2, 7
    s_bfe_u32 s{sI}, s2, 0x40003
    s_cmp_lt_u32 s{sWave}, 4
    s_cbranch_scc1 L_w03
    s_load_dword s{sT[0]}, s[{rWS}:{rWS+1}], {EPOCH}
    s_cmp_ge_u32 s2, 128
    s_cbranch_scc1 L_Ydma""")
    a(f"""s_lshl_b32 s{sQ}, s{sJ}, 2
    s_add_u32 s{sQ}, s{sQ}, s{sT2}
    s_lshl_b32 s{sQ}, s{sQ}, 10
    s_add_u32 s{sQ}, s{sQ}, s{sH}
    s_lshl_b32 s{sQ}, s{sQ}, 8
    s_lshl_b32 m0, s{sT2}, 13
    v_xor_b32 v19, v{vJ}, v{vG}
    v_lshlrev_b32 v19, 4, v19
    v_lshl_add_u32 v20, v{vG}, 13, v19
    v_xor_b32 v21, 64, v20
    v_xor_b32 v22, 0x80, v20
    v_xor_b32 v23, 0xc0, v20
    v_add_u32 v21, {32768-1024}, v21
    v_add_u32 v22, {2*(32768-1024)}, v22
    v_add_u32 v23, {3*(32768-1024)}, v23
    s_mov_b64 s[{rC}:{rC+1}], s[42:43]
    s_mov_b32 s{rC+2}, {SZ['wuk']}""")
    if p.diag == 2: a(f"s_memrealtime s[{sQ+6}:{sQ+7}]")
    def wuk(n):
        if n == 4: a(f"s_addk_i32 m0, 4096\ns_add_u32 s{sQ}, s{sQ}, {4*32768}")
        a(f"buffer_load_dwordx4 v{20+n%4}, {R(rC)}, s{sQ} offen offset:{1024*(n%4)} {nt} lds")
    if p.xg >= 0:
        epoch_wait()
        a(f"""s_lshl_b32 s{sT3}, s2, 7
        s_add_u32 s{sT3}, s{sT3}, {HK}
        v_mov_b32 v14, s{sT[0]}
        v_lshlrev_b32 v15, 2, v{vL}""")
    a("s_barrier")
    for n in range(p.xpre+1):
        if n == p.xg:
            a(f"""s_cmp_eq_u32 s{sWave}, 4
            s_cselect_b32 exec_lo, 0xffff, 0
            s_mov_b32 exec_hi, 0
            buffer_store_dword v14, v15, {R(rWS)}, s{sT3} offen sc1
            s_mov_b64 exec, -1""")
        if n < p.xpre: wuk(n)
    if p.diag == 2: a(f"s_memrealtime s[{sQ+8}:{sQ+9}]")
    a("s_branch L_X_w47")
    a.label("L_Ydma")
    sCK = sQ + 11
    if p.kint:
        a(f"""s_bfe_u32 s{sCK}, s2, 0x10006
        s_lshl_b32 s{sCK}, s{sCK}, 4
        s_add_u32 s{sCK}, s{sCK}, s{sT2}
        s_lshl_b32 s{sCK}, s{sCK}, 8
        s_and_b32 vcc_lo, s2, 63
        s_add_u32 s{sCK}, s{sCK}, vcc_lo
        s_lshl_b32 s{sCK}, s{sCK}, 10
        s_lshl_b32 m0, s{sT2}, 12""")
    else:
        a(f"""s_sub_u32 s{sCK}, s2, 128
        s_lshl_b32 s{sCK}, s{sCK}, 16
        s_lshl_b32 m0, s{sT2}, 12
        s_add_u32 s{sCK}, s{sCK}, m0""")
    a(f"""
    s_and_b32 vcc_lo, s{sT2}, 1
    s_lshl_b32 vcc_lo, vcc_lo, 7
    s_lshr_b32 vcc_hi, s{sT2}, 1
    s_lshl_b32 vcc_hi, vcc_hi, 4
    s_or_b32 vcc_lo, vcc_lo, vcc_hi
    v_xor_b32 v216, vcc_lo, v{vL16}
    v_xor_b32 v217, 32, v216
    v_xor_b32 v218, 64, v216
    v_xor_b32 v219, 0x60, v216""")
    if p.kint:
        for n in range(1, 4): a(f"v_add_u32 v{216+n}, {n*(65536-1024)}, v{216+n}")
    a(f"""s_mov_b64 s[{rC}:{rC+1}], s[38:39]
    s_mov_b32 s{rC+2}, {SZ['ckv']}
    s_barrier""")
    def ckv(i):
        if i % 4 == 0 and i: a(f"s_add_u32 s{sCK}, s{sCK}, {16*65536 if p.kint else 16384}\ns_add_u32 m0, m0, 16384")
        a(f"buffer_load_dwordx4 v{216+(i&3)}, {R(rC)}, s{sCK} offen offset:{1024*(i%4)} {p.ckvf} lds")
    for i in range(p.ypre): ckv(i)
    zstamps()
    epoch_wait()
    a(f"""s_sub_u32 s{sT3}, s2, 128
    s_lshl_b32 s{sT3}, s{sT3}, 7
    s_add_u32 s{sT3}, s{sT3}, {HG}
    v_mov_b32 v14, s{sT[0]}
    v_lshlrev_b32 v15, 2, v{vL}""")
    if p.xg >= 0:
        a(f"s_cmp_lg_u32 s{sWave}, 4\ns_cbranch_scc1 L_nokg")
        for k in range(p.xgn):
            a(f"s_add_u32 s{sQ+k}, s2, {41*k}\ns_and_b32 s{sQ+k}, s{sQ+k}, 127\ns_lshl_b32 s{sQ+k}, s{sQ+k}, 7\ns_add_u32 s{sQ+k}, s{sQ+k}, {HK}")
        spoll_all([sQ+k for k in range(p.xgn)], sQ+4)
        a.label("L_nokg")
    def uvsetup(r):
        srd(rB, pWUV, 0 if p.nod1 & 8 else SZ['wuv'])
        a(f"""s_sub_u32 s{r}, s{sJ}, 4
        s_lshl_b32 s{r}, s{r}, 20
        s_lshl_b32 s{r+1}, s{sT2}, {18 if p.uvlin else 15}
        s_add_u32 s{r}, s{r}, s{r+1}
        s_lshl_b32 s{r+1}, s{sH}, 8
        s_add_u32 s{r}, s{r}, s{r+1}""")
        if p.uvlin:
            a(f"""s_lshl_b32 s{r+1}, s{sT2}, 6
            s_and_b32 s{r+1}, s{r+1}, 64
            v_and_b32 v9, 1, v{vG}
            v_lshlrev_b32 v9, 3, v9
            v_xor_b32 v9, v9, v{vJ}
            v_lshlrev_b32 v9, 4, v9
            v_xor_b32 v9, s{r+1}, v9
            v_lshl_add_u32 v44, v{vG}, 13, v9
            v_xor_b32 v45, 32, v44""")
        else:
            a(f"""v_lshlrev_b32 v9, 1, v{vG}
            v_xor_b32 v9, v9, v{vJ}
            v_lshlrev_b32 v9, 4, v9
            v_lshl_add_u32 v44, v{vG}, 17, v9
            v_xor_b32 v45, 0x80, v44""")
        a(f"""s_lshl_b32 s{r+1}, s{sT2}, 13
        s_add_u32 s{r+1}, s{r+1}, {L_WUVY}""")
    def uvdma(r, n0, n1):
        if n0 >= n1: return
        a("s_mov_b32 vcc_hi, m0")
        for n in range(n0, n1):
            off = 4*n*8192 if p.uvlin else (64*(n & 1) + (n >> 1))*8192
            a(f"s_add_u32 m0, s{r+1}, {1024*n}\ns_add_u32 vcc_lo, s{r}, {off}")
            a(f"buffer_load_dwordx4 v{44+((n>>2) if p.uvlin else ((n>>1)&1))}, {R(rB)}, vcc_lo offen {nt} lds")
        a("s_mov_b32 m0, vcc_hi")
    uvsetup(sQ)
    a("s_barrier")
    stamp(10)
    uvdma(sQ, 0, p.uv1)
    for i in range(p.ypre, 17):
        if i == p.gate:
            a(f"""s_cmp_eq_u32 s{sWave}, 4
            s_cselect_b32 exec_lo, -1, 0
            s_mov_b32 exec_hi, 0
            buffer_store_dword v14, v15, {R(rWS)}, s{sT3} offen sc1
            s_mov_b64 exec, -1""")
        if i < 16: ckv(i)
    if p.emub:
        a(f"s_sub_u32 s{sCK}, s{sCK}, {3*16*65536}\ns_xor_b32 s{sCK}, s{sCK}, {8*1024}\ns_sub_u32 m0, m0, {3*16384}")
        for i in range(16): ckv(i)
    stamp(1)
    masks()
    a("s_branch L_Y_main")
    a.label("L_w03")
    a(f"""s_cmp_lg_u32 s{sWave}, 0
    s_cbranch_scc1 L_w13
    s_load_dword s{sT[0]}, s[{rWS}:{rWS+1}], {EPOCH}""")
    zstamps()
    masks()
    stamp(1)
    if p.diag == 2: a(f"s_mov_b32 s{sStamp+6}, s{sQ+6}\ns_mov_b32 s{sStamp+8}, s{sQ+8}")
    a(f"""s_add_u32 s{sT0}, s{sT0}, {QP}
    s_mov_b32 s{sT2}, 0x01000100
    s_mov_b32 s{sT3}, 0x03020302
    v_add_u32 v190, {L_WQ}, v{vL16}
    s_waitcnt vmcnt(20)""")
    if p.b0pos == 1: a("s_barrier")
    if p.diag == 2: a(f"s_memrealtime s[{sStamp+10}:{sStamp+11}]")
    for k in range(4):
        a(f"v_perm_b32 v{vXP+2*k}, v{186+k}, v{186+k}, s{sT2}\nv_perm_b32 v{vXP+2*k+1}, v{186+k}, v{186+k}, s{sT3}")
    for n in range(20): buildA(vAP+4*n, vXP+(n % 4)+(4 if n >= 16 else 0), (n//4) % 4)
    epoch_wait()
    if p.diag == 2: a(f"s_memrealtime s[{sStamp+12}:{sStamp+13}]")
    G = 4
    for t0 in range(0, 20, G):
        a(f"s_waitcnt vmcnt({20-t0-G})")
        if p.b0pos == 2 + t0//G: a("s_barrier")
        if p.diag == 2 and t0 == 0: a(f"s_memrealtime s[{sStamp+14}:{sStamp+15}]")
        if p.diag == 2 and t0 == 16: a(f"s_memrealtime s[{sStamp+16}:{sStamp+17}]")
        for t in range(t0, t0+G): a(f"ds_read_b128 {V(vWP+4*t)}, v190 offset:{1024*t}")
        if t0:
            a(f"s_waitcnt lgkmcnt({G})")
            for t in range(t0-G, t0): mfma(vDP, vAP+4*t, vWP+4*t, '0' if t == 0 else None)
    for t in range(20-G, 20):
        a(f"s_waitcnt lgkmcnt({19-t})")
        mfma(vDP, vAP+4*t, vWP+4*t)
    tag4(vDP)
    if p.fast: a(f"buffer_store_dwordx4 {V(vDP)}, v{vL16}, {R(rWS)}, s{sT1} offen")
    a(f"buffer_store_dwordx4 {V(vDP)}, v{vL16}, {R(rWS)}, s{sT0} offen sc1")
    stamp(2)
    a(f"""s_barrier
    s_cmp_ge_u32 s2, 128
    s_cbranch_scc1 L_Y_main
    s_branch L_X_main""")

    a.label("L_w13")
    a(f"""s_cmp_eq_u32 s{sWave}, 3
    s_cbranch_scc1 L_w3
    s_cmp_eq_u32 s{sWave}, 2
    s_cbranch_scc1 L_w2
    s_cmp_ge_u32 s2, 128
    s_cbranch_scc1 L_w1
    s_branch L_w23
L_w2:""")
    if p.warm:
        a(f"""v_mov_b32 v24, 0
        v_mov_b32 v25, 0
        v_mov_b32 v26, 0
        v_mov_b32 v27, 0
        s_cmp_ge_u32 s2, 128
        s_cbranch_scc1 L_warmY
        s_mov_b32 exec_hi, 0
        s_lshl_b32 s{sT0}, s{sH}, 2
        s_add_u32 s{sT0}, s{sT0}, s{sJ}
        s_lshl_b32 s{sT1}, s{sT0}, 9
        s_add_u32 s{sT1}, s{sT1}, {ST}
        buffer_store_dwordx4 v[24:27], v{vL16}, {R(rWS)}, s{sT1} offen sc1""")
        if p.warm & 2:
            a(f"""s_lshl_b32 s{sT1}, s{sT0}, 8
            s_add_u32 s{sT1}, s{sT1}, {QL}
            v_lshlrev_b32 v28, 15, v{vG}
            v_lshl_add_u32 v28, v{vJ}, 4, v28
            buffer_store_dwordx4 v[24:27], v28, {R(rWS)}, s{sT1} offen sc1""")
        if p.cflag:
            a(f"""v_lshrrev_b32 v28, 2, v{vL}
            v_mul_u32_u24 v28, {p.cstr}, v28
            v_and_b32 v29, 3, v{vL}
            v_lshl_add_u32 v28, v29, 4, v28
            s_mul_i32 s{sT1}, s2, {8*p.cstr}
            s_add_u32 s{sT1}, s{sT1}, {FP2}
            s_cmp_lt_u32 s2, {p.crep}
            s_cselect_b32 exec_lo, -1, 0
            buffer_store_dwordx4 v[24:27], v28, {R(rWS)}, s{sT1} offen sc1""")
        a(f"""s_lshl_b32 s{sT1}, s2, 7
        s_add_u32 s{sT1}, s{sT1}, {HD}
        s_mov_b32 exec_lo, 0xff
        buffer_store_dwordx4 v[24:27], v{vL16}, {R(rWS)}, s{sT1} offen sc1
        s_mov_b64 exec, -1
        s_branch L_w23
L_warmY:
        s_sub_u32 s{sT0}, s2, 128
        s_lshl_b32 s{sT1}, s{sT0}, 8
        s_add_u32 s{sT1}, s{sT1}, {HC}
        s_mov_b64 exec, 0xffff
        buffer_store_dwordx4 v[24:27], v{vL16}, {R(rWS)}, s{sT1} offen sc1
        s_mov_b64 exec, -1""")
    if p.prefetch:
        a(f"""s_getpc_b64 s[{sT0}:{sT1}]
L_pc:
        s_sub_u32 s{sT0}, s{sT0}, L_pc-{KNAME}
        s_subb_u32 s{sT1}, s{sT1}, 0
        s_lshl_b32 s{sT2}, s{sI}, 10
        v_add_u32 v9, s{sT2}, v{vL16}
        v_cmp_gt_u32 vcc, L_exit-{KNAME}, v9
        s_and_b32 exec_lo, vcc_lo, 0x01010101
        s_and_b32 exec_hi, vcc_hi, 0x01010101
        s_cbranch_execz L_pfdone
        global_load_dword v250, v9, s[{sT0}:{sT1}]
L_pfdone:
        s_mov_b64 exec, -1""")
    a("s_branch L_w23")
    a.label("L_w3")
    if p.stamp == 5:
        a(f"""s_lshl_b32 s{sT0}, s2, 3
        s_add_u32 s{sT0}, s{sT0}, s{sWave}
        s_lshl_b32 s{sT0}, s{sT0}, 6
        s_add_u32 s{sT0}, s{sT0}, {STAMP}
        v_mov_b32 v24, s{sStamp}
        v_mov_b32 v25, 0
        s_cmp_lt_u32 s2, 8
        s_cselect_b32 exec_lo, 1, 0
        s_mov_b32 exec_hi, 0
        buffer_store_dword v24, v25, {R(rWS)}, s{sT0} offen sc1
        s_mov_b64 exec, -1""")
    if p.tlb:
        a(f"""s_cmp_ge_u32 s2, 128
        s_cselect_b32 exec_lo, 15, 0
        s_mov_b32 exec_hi, 0
        v_lshlrev_b32 v22, 21, v{vL}
        s_cbranch_execz L_tlbd
        buffer_load_dword v251, v22, {R(rWS)}, 0 offen offset:256
L_tlbd:
        s_mov_b64 exec, -1""")
    a.label("L_w23")
    a(f"""s_load_dword s{sT[0]}, s[{rWS}:{rWS+1}], {EPOCH}
    s_barrier""")
    zstamps()
    masks()
    epoch_wait()
    a(f"""s_barrier
    s_waitcnt vmcnt(0)
    s_cmp_ge_u32 s2, 128
    s_cbranch_scc1 L_Y_main
    s_branch L_X_main""")
    a.label("L_w1")
    a(f"""s_movk_i32 s{rA+2}, {SZ['x']}
    s_mov_b32 s{rA+3}, s{rWS+3}
    v_and_b32 v9, 31, v{vL}
    v_mul_u32_u24 v9, 36, v9
    v_lshrrev_b32 v12, 5, v{vL}
    v_mul_u32_u24 v11, 1152, v12
    v_add_u32 v11, v11, v9
    buffer_load_dwordx4 v[20:23], v11, {R(rA)}, 0 offen
    buffer_load_dwordx4 v[24:27], v11, {R(rA)}, 0 offen offset:16
    buffer_load_dword v28, v11, {R(rA)}, 0 offen offset:32
    s_waitcnt lgkmcnt(0)""")
    srd(rB, pGW, SZ['gw'])
    a(f"""buffer_load_dwordx4 v[32:35], v9, {R(rB)}, 0 offen
    buffer_load_dwordx4 v[36:39], v9, {R(rB)}, 0 offen offset:16
    buffer_load_dword v40, v9, {R(rB)}, 0 offen offset:32
    s_load_dword s{sT[0]}, s[{rWS}:{rWS+1}], {EPOCH}
    s_barrier""")
    zstamps()
    masks()
    epoch_wait()
    a(f"""v_mov_b32 v13, 0
    v_lshlrev_b32 v10, 2, v12
    v_add_u32 v10, {L_GATE}, v10
    s_barrier
    s_waitcnt vmcnt(0)""")
    def gatemath():
        for k in range(9): a(f"v_dot2_f32_bf16 v13, v{20+k}, v{32+k}, v13")
        for m in ("quad_perm:[1,0,3,2]", "quad_perm:[2,3,0,1]", "row_half_mirror", "row_mirror"):
            a(f"v_add_f32_dpp v13, v13, v13 {m} row_mask:0xf bank_mask:0xf")
        a(f"""v_mov_b32 v14, v13
        v_permlane16_swap_b32 v13, v14
        v_add_f32 v13, v13, v14
        v_mul_f32 v13, {f2u(-math.log2(math.e))}, v13
        v_exp_f32 v13, v13
        v_add_f32 v13, 1.0, v13
        v_rcp_f32 v13, v13
        ds_write_b32 v10, v13
        s_waitcnt lgkmcnt(0)""")
    gatemath()
    a("s_branch L_Y_main")

    a.label("L_X_w47")
    zstamps()
    masks()
    a("v_mov_b32 v9, v19")
    if p.xg < 0: epoch_wait()
    if p.diag == 2: a(f"s_mov_b32 s{sStamp+10}, s{sQ+6}\ns_mov_b32 s{sStamp+12}, s{sQ+8}")
    a(f"""s_lshl_b32 s{sT0}, s{sH}, 13
    s_lshl_b32 s{sT1}, s{sT2}, 8
    s_add_u32 s{sT0}, s{sT0}, s{sT1}
    s_add_u32 s{sT0}, s{sT0}, {QPL if p.fast else QP}
    s_add_u32 s{sT1}, s{sT0}, 4096
    v_lshlrev_b32 v24, 10, v{vG}
    v_lshl_add_u32 v24, v{vJ}, 4, v24""")
    a(f"""s_lshr_b32 s{sT3}, s{sT2}, 1
    s_lshl_b32 s{sT3}, s{sT3}, 8
    s_bitcmp1_b32 s{sT2}, 0
    s_cselect_b32 vcc_lo, 8, 0
    s_add_u32 s{sT3}, s{sT3}, vcc_lo
    s_add_u32 s{sT3}, s{sT3}, {L_QV}
    v_lshlrev_b32 v25, 4, v{vJ}
    v_lshl_add_u32 v25, v{vG}, 1, v25
    v_add_u32 v25, s{sT3}, v25""")
    a(f"""s_lshl_b32 s{sT3}, s{sT2}, 13
    v_lshl_add_u32 v26, v{vJ}, 8, v9
    v_add_u32 v26, s{sT3}, v26
    v_xor_b32 v27, 64, v26
    v_xor_b32 v28, 0x80, v26
    v_xor_b32 v29, 0xc0, v26""")
    a(f"""v_lshrrev_b32 v30, 3, v{vJ}
    v_lshlrev_b32 v30, 8, v30
    v_lshl_add_u32 v30, v{vG}, 4, v30
    v_add_u32 v30, {L_QV}, v30""")
    a(f"""v_and_b32 v31, 31, v{vL}
    s_lshl_b32 s{sT3}, s{sT2}, 5
    v_add_u32 v31, s{sT3}, v31
    v_bfe_u32 v32, v31, 3, 3
    v_mul_u32_u24 v32, 37, v32
    v_add_u32 v32, s{sT[0]}, v32
    v_and_b32 v33, 7, v31
    v_lshrrev_b32 v32, v33, v32
    v_and_b32 v32, 1, v32
    v_lshlrev_b32 v32, 16, v32
    v_xor_b32 v33, 0x10000, v32
    v_lshlrev_b32 v31, 1, v31
    v_lshrrev_b32 v34, 5, v{vL}
    v_lshl_add_u32 v31, v34, 15, v31
    s_lshl_b32 s{sT3}, s{sH}, 10
    s_lshl_b32 vcc_lo, s{sJ}, 8
    s_add_u32 s{sT3}, s{sT3}, vcc_lo
    s_add_u32 s{sT3}, s{sT3}, {QL}
    v_mov_b32 v35, 0xfffe0000
    s_lshr_b32 s{sQ+2}, s{sH}, 2
    s_mul_i32 s{sQ+2}, s{sQ+2}, {p.cstr}
    s_and_b32 vcc_lo, s{sH}, 3
    s_lshl_b32 vcc_lo, vcc_lo, 2
    s_add_u32 vcc_lo, vcc_lo, s{sJ}
    s_lshl_b32 vcc_lo, vcc_lo, 2
    s_add_u32 s{sQ+2}, s{sQ+2}, vcc_lo
    s_add_u32 s{sQ+2}, s{sQ+2}, {FP2 + 0x80000}
    v_mul_u32_u24 v104, {8*p.cstr}, v{vL}
    v_mov_b32 v105, s{sT[0]}
    s_barrier""")
    stamp(1)
    for n in range(p.xpre, 8): wuk(n)
    a(f"s_waitcnt vmcnt({p.pollA_wait})")
    stamp(2)
    L = poll_begin()
    a(f"""buffer_load_dwordx4 v[36:39], v24, {R(rWS)}, s{sT0} offen sc1
    buffer_load_dwordx4 v[40:43], v24, {R(rWS)}, s{sT1} offen sc1
    s_waitcnt vmcnt(1)""")
    chk4(44, 36, True)
    a("s_waitcnt vmcnt(0)")
    chk4(44, 40)
    if p.diag == 4: a(f"s_cmp_eq_u32 s{sCnt}, 0\ns_cbranch_scc0 L_d4\ns_memrealtime s[{sStamp+12}:{sStamp+13}]\nL_d4:")
    poll_end(L, 44, '0xff', ((sT0, sT1), QPL-QP))
    if p.stamp: a(f"s_mov_b32 s{sStamp+24}, s{sCnt}")
    stamp(3)
    for tl in range(2):
        for ks in range(4):
            a(f"ds_read_b128 {V(48+16*tl+4*ks)}, v{26+ks} offset:{4096*tl}")
    for k in range(4): a(f"v_add_f32 v{36+k}, v{36+k}, v{40+k}")
    treduce(36)
    a(f"""v_cvt_pk_bf16_f32 v36, v36, v36
    ds_write_b16 v25, v36
    s_waitcnt lgkmcnt(0)
    s_barrier""")
    if p.diag == 4: stamp(7)
    for ks in range(4): a(f"ds_read_b128 {V(80+4*ks)}, v30 offset:{64*ks}")
    if p.bflag == 1:
        a(f"""s_cmp_eq_u32 s{sWave}, 4
        s_cselect_b32 exec_lo, 0xffff, 0
        s_mov_b32 exec_hi, 0
        buffer_store_dword v105, v104, {R(rWS)}, s{sQ+2} offen sc1
        s_mov_b64 exec, -1""")
    for ks in range(4):
        a(f"s_waitcnt lgkmcnt({3-ks})")
        mfma(96, 80+4*ks, 48+4*ks, '0' if ks == 0 else None)
        mfma(100, 80+4*ks, 64+4*ks, '0' if ks == 0 else None)
    a(f"""s_mov_b32 vcc_lo, 0xffff0000
    s_mov_b32 vcc_hi, 0xffff0000
    v_cndmask_b32 v96, v96, v100, vcc
    v_mul_f32 v96, {f2u(128**-0.5*math.log2(math.e))}, v96
    v_add_u32 v96, v96, v33
    v_and_or_b32 v96, v96, v35, v32
    buffer_store_short_d16_hi v96, v31, {R(rWS)}, s{sT3} offen sc1""")
    if p.bflag == 2:
        a(f"""s_cmp_eq_u32 s{sWave}, 4
        s_cselect_b32 exec_lo, 0xffff, 0
        s_mov_b32 exec_hi, 0
        buffer_store_dword v105, v104, {R(rWS)}, s{sQ+2} offen sc1
        s_mov_b64 exec, -1""")
    stamp(4)

    a.label("L_X_main")
    sX = sQ + 9
    a(f"s_mul_i32 s{sT0}, s{sI}, 9\nv_add_u32 v9, s{sT0}, v{vJ}")
    decode_v(139, 9, 10)
    a(f"""s_mul_i32 s{sT0}, s{sXcd}, 576
    v_add_u32 v139, s{sT0}, v139
    v_mul_u32_u24 v10, 1152, v139""")
    for t in range(9): a(f"v_readlane_b32 s{sQ+t}, v10, {t}")
    a(f"""v_bfe_u32 v9, v{vL}, 3, 1
    v_lshlrev_b32 v135, 2, v{vL}
    v_lshlrev_b32 v136, 2, v9
    v_add_u32 v136, {L_GATE}, v136
    v_mov_b32 v137, s{sT[0]}
    v_mov_b32 v138, 0
    v_mov_b32 v133, 0
    v_and_b32 v132, 3, v{vL}
    v_lshl_add_u32 v134, v132, 2, v{vG}
    v_lshlrev_b32 v134, 2, v134
    v_mul_u32_u24 v9, 192, v9
    v_add_u32 v134, v134, v9
    v_add_u32 v134, {L_HX}, v134
    v_mul_u32_u24 v132, 37, v132
    v_add_u32 v132, s{sT[0]}, v132
    s_lshl_b32 s{sX}, s{sH}, 2
    s_add_u32 s{sX}, s{sX}, s{sJ}
    s_mul_i32 s{sX+2}, s{sX}, {32*1152}
    s_lshl_b32 s{sX}, s{sX}, 10
    s_add_u32 s{sX}, s{sX}, {CXL if p.fast else CX}
    s_mul_i32 s{sX+1}, s2, 4608
    s_add_u32 s{sX+1}, s{sX+1}, {FP}""")
    if p.p5h: a(f"v_mov_b32 v9, {L_RED}\nds_write_b32 v9, v138\ns_waitcnt lgkmcnt(0)")
    srd(rA, pX, SZ['x'])
    xoff(12)
    a(f"""s_cmp_ge_u32 s{sWave}, 4
    s_cbranch_scc1 L_X_b2
    s_barrier""")
    if p.tlb:
        a(f"""s_cmp_lg_u32 s{sWave}, 3
        s_cbranch_scc1 L_X_notlb
        s_mov_b64 exec, 7
        v_lshlrev_b32 v22, 21, v{vL}
        global_load_dword v252, v22, s[{pW1}:{pW1+1}]
        global_load_dword v253, v22, s[{pW2}:{pW2+1}]
        global_load_dword v254, v22, s[{pWO}:{pWO+1}]
        s_mov_b64 exec, -1
L_X_notlb:""")
    if p.qpf:
        a(f"""s_cmp_lg_u32 s{sWave}, 1
        s_cbranch_scc1 L_X_noqpf
        s_lshl_b32 s{sT0}, s{sI}, 12
        s_add_u32 s{sT0}, s{sT0}, {QL}""")
        lsbtags(40)
        if p.qpfs: a(f"s_sleep {p.qpfs}")
        L = poll_begin()
        for n in range(4): a(f"buffer_load_dwordx4 {V(20+4*n)}, v{vL16}, {R(rWS)}, s{sT0} offen offset:{1024*n} sc1")
        a("s_mov_b64 exec, -1\ns_waitcnt vmcnt(0)")
        for n in range(4): chkv(9, 20+4*n, 40, n == 0)
        sv = p.maxspin; p.maxspin = p.qpf
        poll_end_masked(L, 9, '0x10001')
        p.maxspin = sv
        a.label("L_X_noqpf")
    if p.gate >= 0:
        a(f"""s_cmp_lg_u32 s{sWave}, 0
        s_cbranch_scc1 L_X_b2
        s_lshl_b32 s{sT2}, s2, 7
        s_add_u32 s{sT2}, s{sT2}, {HG}
        s_xor_b32 s{sT3}, s{sT2}, {43*128}""")
        if p.gand:
            for k in range(p.gand):
                a(f"s_add_u32 s{6+k}, s2, {43*k}\ns_and_b32 s{6+k}, s{6+k}, 127\ns_lshl_b32 s{6+k}, s{6+k}, 7\ns_add_u32 s{6+k}, s{6+k}, {HG}")
            spoll_all([6+k for k in range(p.gand)], sT0)
        else:
            spoll((sT2, sT3))
        stamp(3)
    a.label("L_X_b2")
    a("s_barrier")
    a(f"""s_cmp_ge_u32 s{sWave}, 5
    s_cbranch_scc1 L_X_fg""")
    vXF, vAF, vWF, vDF, vWO, vW2 = 13, 20, 60, 100, 140, 176
    srd(rB, pW1, 0 if p.nod1 & 4 else SZ['w1'])
    a(f"s_mul_i32 s{sT1}, s{sI}, 72")
    for v in range(3): a(f"buffer_load_ushort v{vXF+v}, v12, {R(rA)}, s{sT1} offen offset:{32*v}")
    srd(rA, pW2, 0 if p.nod1 & 1 else SZ['w2'])
    srd(rC, pWO, 0 if p.nod1 & 2 else SZ['wo'])
    a(f"""s_mul_i32 s{sT0}, s{sI}, {36*9216}
    s_mul_i32 s{sT1}, s{sXcd}, 1152
    s_add_u32 s{sT0}, s{sT0}, s{sT1}
    s_lshl_b32 s{sT1}, s{sWave}, 8
    s_add_u32 s{sT0}, s{sT0}, s{sT1}
    v_mul_u32_u24 v10, 9216, v{vG}
    v_mul_u32_u24 v17, 1152, v{vG}
    v_add_u32 v17, s{sT1}, v17
    v_add_u32 v16, s{sT1}, v10
    s_lshl_b32 s{sT2}, s{sXcd}, 4
    s_add_u32 s{sT2}, s{sT2}, s{sI}
    s_mul_i32 s{sT2}, s{sT2}, 4608
    s_add_u32 s{sT2}, s{sT2}, {HP}
    s_cmp_eq_u32 s{sWave}, 4
    s_cbranch_scc1 L_X_f1half
    v_lshl_add_u32 v10, v{vJ}, 4, v10
    v_lshl_add_u32 v16, v{vJ}, 4, v16
    v_lshl_add_u32 v17, v{vJ}, 4, v17""")
    def wo_full():
        for t in range(8):
            if t == 4: a(f"s_add_u32 s{sX+2}, s{sX+2}, {4*1152}")
            if t == p.fmid: a("s_barrier\ns_barrier")
            a(f"buffer_load_dwordx4 {V(vWO+4*t)}, v16, {R(rC)}, s{sX+2} offen offset:{1152*(t&3)} {nt}")
    def wo_half():
        for n in range(4):
            if n == 2: a(f"s_add_u32 s{sX+2}, s{sX+2}, {4*1152}")
            if p.fmid < 8 and n == p.fmid//2: a("s_barrier\ns_barrier")
            a(f"buffer_load_dwordx4 {V(vWO+4*n)}, v16, {R(rC)}, s{sX+2} offen offset:{2304*(n&1)} {nt}")
    for t in range(9):
        if p.xramp and p.xramp <= t <= p.xrn: a(f"s_waitcnt vmcnt({p.xramp-1})")
        a(f"buffer_load_dwordx4 {V(vWF+4*t)}, v10, {R(rB)}, s{sT0} offen {nt}")
        if t < 8: a(f"s_add_u32 s{sT0}, s{sT0}, {4*9216}")
    def w2_full():
        for t in range(9): a(f"buffer_load_dwordx4 {V(vW2+4*t)}, v17, {R(rA)}, s{sQ+t} offen {nt}")
    if p.xord < 2: w2_full()
    elif p.xord == 2: a("s_barrier")
    ex = {0: 17, 1: 9, 2: 0, 3: 0}[p.xord]
    if p.xord == 0: wo_full()
    slot_voff(138, False)
    a(f"s_waitcnt vmcnt({9+ex})")
    for v in range(3): a(f"v_lshl_or_b32 v{vXF+v}, v{vXF+v}, 16, v{vXF+v}")
    for t in range(9): buildA(vAF+4*t, vXF+t//4, t % 4)
    for t in range(9):
        a(f"s_waitcnt vmcnt({8 if p.xord == 3 else 8-t+ex})")
        mfma(vDF, vAF+4*t, vWF+4*t, '0' if t == 0 else None)
        if p.xord == 3 and t < 8: a(f"buffer_load_dwordx4 {V(vW2+4*t)}, v17, {R(rA)}, s{sQ+t} offen {nt}")
    if not p.nof: slot_store(vDF, sT2, False, 138, HPL-HP if p.floc else None)
    if p.xord == 3: a(f"buffer_load_dwordx4 {V(vW2+32)}, v17, {R(rA)}, s{sQ+8} offen {nt}")
    stamp(5)
    if p.fpos == 0: a("s_barrier")
    if p.xord in (1, 3): wo_full()
    if p.fpos == 1: a("s_barrier")
    if p.xord == 2: w2_full()
    a("s_branch L_X_o2")
    a.label("L_X_f1half")
    a(f"""v_and_b32 v9, 7, v{vJ}
    v_lshl_add_u32 v10, v9, 4, v10
    v_lshl_add_u32 v16, v9, 4, v16
    v_lshl_add_u32 v17, v9, 4, v17
    v_lshrrev_b32 v9, 3, v{vJ}
    v_mul_u32_u24 v11, {4*9216}, v9
    v_add_u32 v10, v10, v11
    v_mul_u32_u24 v11, 1152, v9
    v_add_u32 v16, v16, v11""")
    for n in range(5):
        if n == 4: a("s_mov_b32 exec_lo, 0x00ff00ff\ns_mov_b32 exec_hi, 0x00ff00ff")
        if p.xramp and n in (1, 2): a("s_waitcnt vmcnt(0)")
        a(f"buffer_load_dwordx4 {V(vWF+4*n)}, v10, {R(rB)}, s{sT0} offen {nt}")
        if n < 4: a(f"s_add_u32 s{sT0}, s{sT0}, {8*9216}")
    a("s_mov_b64 exec, -1")
    def w2_half():
        a("s_mov_b32 exec_lo, 0x00ff00ff\ns_mov_b32 exec_hi, 0x00ff00ff")
        a(f"buffer_load_dwordx4 {V(vW2+16)}, v17, {R(rA)}, s{sQ+8} offen {nt}")
        a("s_mov_b64 exec, -1\ns_mov_b32 vcc_lo, 0xff00ff00\ns_mov_b32 vcc_hi, 0xff00ff00")
        for n in range(4):
            a(f"v_mov_b32 v18, s{sQ+2*n}\nv_mov_b32 v19, s{sQ+2*n+1}\nv_cndmask_b32 v18, v18, v19, vcc\nv_add_u32 v18, v18, v17")
            a(f"buffer_load_dwordx4 {V(vW2+4*n)}, v18, {R(rA)}, 0 offen {nt}")
    if p.xord < 2: w2_half()
    elif p.xord == 2: a("s_barrier")
    ex = {0: 9, 1: 5, 2: 0, 3: 0}[p.xord]
    if p.xord == 0: wo_half()
    slot_voff(138, True)
    a(f"s_waitcnt vmcnt({5+ex})")
    for v in range(3): a(f"v_lshl_or_b32 v{vXF+v}, v{vXF+v}, 16, v{vXF+v}")
    for t in range(9): buildA(vAF+4*t, vXF+t//4, t % 4)
    for n in range(5):
        a(f"s_waitcnt vmcnt({4-n+ex})")
        mfma(vDF, vAF+8*n, vWF+4*n, '0' if n == 0 else None)
        if n < 4: mfma(vDF+4, vAF+8*n+4, vWF+4*n, '0' if n == 0 else None)
    for r in range(4): a(f"v_add_f32_dpp v{vDF+r}, v{vDF+4+r}, v{vDF+r} row_ror:8 row_mask:0xf bank_mask:0xf")
    if not p.nof: slot_store(vDF, sT2, True, 138, HPL-HP if p.floc else None)
    if p.xord == 3: w2_half()
    stamp(5)
    if p.fpos == 0: a("s_barrier")
    if p.xord in (1, 3): wo_half()
    if p.fpos == 1: a("s_barrier")
    if p.xord == 2: w2_half()
    a.label("L_X_o2")
    if p.fdel and p.fmid >= 8: a("s_barrier")
    vA2, vD2 = 20, 60
    a(f"""ds_read_b32 v136, v136
    s_lshl_b32 s{sT3}, s2, 7
    s_add_u32 s{sT3}, s{sT3}, {HD}
    s_barrier""")
    stamp(8)
    for v in range(3): a(f"ds_read_b32 v{68+v}, v134 offset:{64*v}")
    a("s_waitcnt lgkmcnt(0)")
    for t in range(9): buildA(vA2+4*t, 68+t//4, t % 4)
    a(f"""s_waitcnt vmcnt({8 if p.xord in (1, 3) else 0})
    s_cmp_eq_u32 s{sWave}, 4
    s_cbranch_scc1 L_X_half2""")
    if p.xord == 2:
        for t in range(8): a(f"ds_read_b128 {V(vWO+4*t)}, v16 offset:{1152*t}")
    for t in range(9): mfma(vD2, vA2+4*t, vW2+4*t, '0' if t == 0 else None)
    if p.p5h:
        a(f"""s_cmp_lg_u32 s{sWave}, 0
        s_cbranch_scc1 L_X_o3
        v_mov_b32 v9, {L_RED}
        s_mov_b32 s{sCnt}, 0
L_X_hw:
        ds_read_b32 v10, v9
        s_add_u32 s{sCnt}, s{sCnt}, 1
        s_cmp_ge_u32 s{sCnt}, {16*p.maxspin}
        s_cbranch_scc1 L_X_hwd
        s_waitcnt lgkmcnt(0)
        v_cmp_ne_u32 vcc, s{sT[0]}, v10
        s_cbranch_vccnz L_X_hw
L_X_hwd:""")
        for n in range(5): a(f"ds_read_b128 {V(108+4*n)}, v{vL16} offset:{1024*n}")
        slot_voff(133, True)
    a("s_branch L_X_o3")
    a.label("L_X_half2")
    a("s_waitcnt vmcnt(4)")
    if p.xord == 2:
        for n in range(4): a(f"ds_read_b128 {V(vWO+4*n)}, v16 offset:{2304*n}")
    for n in range(5):
        mfma(vD2, vA2+8*n, vW2+4*n, '0' if n == 0 else None)
        if n < 4: mfma(vD2+4, vA2+8*n+4, vW2+4*n, '0' if n == 0 else None)
    if p.p5h:
        for r in range(4): a(f"v_add_f32_dpp v{vD2+r}, v{vD2+4+r}, v{vD2+r} row_ror:8 row_mask:0xf bank_mask:0xf")
        a(f"ds_write_b128 v{vL16}, {V(vD2)} offset:4096\ns_waitcnt vmcnt(0)")
        for n in range(4): a(f"ds_write_b128 v{vL16}, {V(vWO+4*n)} offset:{1024*n}")
        a(f"v_mov_b32 v9, {L_RED}\ns_waitcnt lgkmcnt(0)\nds_write_b32 v9, v137\ns_branch L_X_end")
    a.label("L_X_o3")
    a("s_waitcnt lgkmcnt(0)")
    stamp(9)
    L = poll_begin()
    for cq in range(4): a(f"buffer_load_dword v{72+cq}, v135, {R(rWS)}, s{sX} offen offset:{256*cq} sc1")
    a("s_waitcnt vmcnt(0)")
    a("v_xor_b32 v76, v132, v72")
    for cq in range(1, 4): a(f"v_bitop3_b32 v76, v76, v{72+cq}, v132 bitop3:0xf6")
    poll_end(L, 76, '0xff', ((sX,), CXL-CX), sleep=p.asleep)
    stamp(10)
    def dflag():
        a(f"""s_cmp_eq_u32 s{sWave}, 1
        s_cselect_b32 exec_lo, 0xffff, 0
        s_mov_b32 exec_hi, 0
        buffer_store_dword v137, v135, {R(rWS)}, s{sT3} offen sc1
        s_mov_b64 exec, -1""")
    if p.dflag == 3: dflag()
    a(f"""v_add_f32 v72, v72, v73
    v_add_f32 v74, v74, v75
    v_add_f32 v72, v72, v74
    v_mul_f32 v72, v72, v136
    v_cvt_pk_bf16_f32 v72, v72, v72
    v_mov_b32 v73, v72
    v_mov_b32 v74, v72
    v_mov_b32_dpp v73, v72 row_shr:4 row_mask:0xf bank_mask:0xa
    v_mov_b32_dpp v74, v72 row_shl:4 row_mask:0xf bank_mask:0x5
    s_cmp_eq_u32 s{sWave}, {0 if p.p5h else 4}
    s_cbranch_scc1 L_X_half3""")
    for t in range(8):
        buildA(vA2+4*t, 73+t//4, t % 4)
        if t > 0: mfma(vD2, vA2+4*(t-1), vWO+4*(t-1))
    mfma(vD2, vA2+28, vWO+28)
    slot_store(vD2, sX+1, False, 138)
    def qclean(w):
        a(f"""s_lshl_b32 vcc_lo, s{sH}, 3
        s_add_u32 vcc_lo, vcc_lo, s{sJ}
        s_lshl_b32 vcc_lo, vcc_lo, 10
        s_add_u32 vcc_lo, vcc_lo, {QPL}
        s_cmp_eq_u32 s{sWave}, {w}
        s_cselect_b64 exec, -1, 0
        buffer_store_dwordx4 v[4:7], v{vL16}, {R(rWS)}, vcc_lo offen sc1
        s_mov_b64 exec, -1""")
    if p.clean & 1: a(f"s_add_u32 vcc_lo, s{sT2}, {HPL-HP}\nbuffer_store_dwordx4 {V(vDF)}, v138, {R(rWS)}, vcc_lo offen sc1")
    if p.clean & 2: qclean(2)
    if p.dflag == 4: dflag()
    a("s_branch L_X_end")
    a.label("L_X_half3")
    if p.p5h:
        for t in range(9):
            if t < 8: buildA(vA2+4*t, 73+t//4, t % 4)
            if t > 0:
                u = t - 1
                mfma(124+4*(u & 1), vA2+4*u, 108+4*(u//2), '0' if u == 1 else None)
                mfma(vD2, vA2+4*u, vWO+4*u)
        for r in range(4): a(f"v_add_f32_dpp v{124+r}, v{128+r}, v{124+r} row_ror:8 row_mask:0xf bank_mask:0xf")
        slot_store(vD2, sX+1, False, 138)
        slot_store(124, sX+1, True, 133)
        a("s_branch L_X_end")
    else:
        for t in range(8):
            buildA(vA2+4*t, 73+t//4, t % 4)
            if t > 0: mfma(vD2+4*((t-1) & 1), vA2+4*(t-1), vWO+4*((t-1)//2))
        mfma(vD2+4, vA2+28, vWO+12)
        for r in range(4): a(f"v_add_f32_dpp v{vD2+r}, v{vD2+4+r}, v{vD2+r} row_ror:8 row_mask:0xf bank_mask:0xf")
        slot_store(vD2, sX+1, True, 138)
        if p.clean & 1: a(f"s_add_u32 vcc_lo, s{sT2}, {HPL-HP}\ns_mov_b32 exec_lo, 0x00ff00ff\ns_mov_b32 exec_hi, 0x00ff00ff\nbuffer_store_dwordx4 {V(vDF)}, v138, {R(rWS)}, vcc_lo offen sc1\ns_mov_b64 exec, -1")
        a("s_branch L_X_end")
    a.label("L_X_fg")
    a(f"""s_cmp_eq_u32 s{sWave}, 7
    s_cbranch_scc1 L_X_fg7""")
    srd(rB, pB1, SZ['b1'])
    a(f"""s_sub_u32 s{sT2}, s{sWave}, 5
    s_mul_i32 s{sT0}, s{sXcd}, {16*4608}
    s_mul_i32 s{sT1}, s{sT2}, 2304
    s_add_u32 s{sT0}, s{sT0}, s{sT1}
    s_mul_i32 s{sT1}, s{sI}, 144
    s_add_u32 s{sT0}, s{sT0}, s{sT1}
    s_add_u32 s{sT0}, s{sT0}, {HPL if p.floc else HP}
    s_add_u32 s{sQ}, s{sT0}, {4*4608}
    s_add_u32 s{sQ+1}, s{sT0}, {8*4608}
    s_add_u32 s{sQ+2}, s{sT0}, {12*4608}
    v_mul_u32_u24 v10, 4608, v{vG}
    v_lshl_add_u32 v10, v{vJ}, 4, v10
    v_add_u32 v14, v139, v{vG}
    v_lshlrev_b32 v14, 1, v14
    s_lshl_b32 s{sT1}, s{sT2}, 2
    s_add_u32 s{sT1}, s{sT1}, {L_GATE}
    v_mov_b32 v16, s{sT1}
    s_mul_i32 s{sT1}, s{sT2}, 192
    s_add_u32 s{sT1}, s{sT1}, {L_HX}
    v_lshl_add_u32 v17, v{vJ}, 2, v{vG}
    v_lshlrev_b32 v17, 2, v17
    v_add_u32 v17, s{sT1}, v17
    s_mov_b32 exec_lo, 0x01ff01ff
    s_mov_b32 exec_hi, 0x01ff01ff
    buffer_load_ushort v15, v14, {R(rB)}, 0 offen""")
    def floads():
        for k, s in enumerate((sT0, sQ, sQ+1, sQ+2)):
            if not p.nof: a(f"buffer_load_dwordx4 {V(20+4*k)}, v10, {R(rWS)}, s{s} offen sc1")
    if p.xord == 2: a("s_barrier")
    if p.fdel: a("s_barrier")
    a("s_barrier\nds_read_b32 v16, v16")
    if p.fmid < 8:
        floads()
        Lf = a.newlabel('fchk')
        a(f"s_barrier\ns_mov_b32 s{sCnt}, 0\ns_branch {Lf}")
        L = a.newlabel('poll'); a.label(L)
        floads()
        a.label(Lf)
    else:
        L = poll_begin()
        floads()
    for k in range(4):
        a(f"s_waitcnt vmcnt({3-k})")
        chk4(36, 20+4*k, k == 0)
    poll_end(L, 36, '0' if p.nof else '0xff', ((sT0, sQ, sQ+1, sQ+2), HPL-HP) if p.floc else None, sleep=p.fsleep)
    stamp(8)
    a("s_mov_b64 exec, -1")
    for k in range(4): a(f"v_add_f32 v{20+k}, v{20+k}, v{24+k}\nv_add_f32 v{28+k}, v{28+k}, v{32+k}")
    for k in range(4): a(f"v_add_f32 v{20+k}, v{20+k}, v{28+k}")
    treduce(20)
    c1 = -2*math.sqrt(2/math.pi)*math.log2(math.e)
    a(f"""v_lshlrev_b32 v15, 16, v15
    v_add_f32 v20, v20, v15
    v_mul_f32 v21, v20, v20
    v_mov_b32 v22, {f2u(c1)}
    v_fmac_f32 v22, {f2u(c1*0.044715)}, v21
    v_mul_f32 v21, v22, v20
    v_exp_f32 v21, v21
    v_add_f32 v21, 1.0, v21
    v_rcp_f32 v21, v21
    s_waitcnt lgkmcnt(0)
    v_sub_f32 v16, 1.0, v16
    v_mul_f32 v20, v20, v21
    v_mul_f32 v20, v20, v16
    v_cvt_pk_bf16_f32 v20, v20, v20
    s_mov_b32 exec_lo, 0x01ff01ff
    s_mov_b32 exec_hi, 0x01ff01ff
    ds_write_b32 v17, v20
    s_mov_b64 exec, -1
    s_waitcnt lgkmcnt(0)""")
    a("s_branch L_X_fgend")
    a.label("L_X_fg7")
    if p.floc:
        a(f"""s_lshl_b32 s{sT2}, s{sXcd}, 4
        s_add_u32 s{sT2}, s{sT2}, s{sI}
        s_mul_i32 s{sT2}, s{sT2}, 4608
        s_add_u32 s{sT2}, s{sT2}, {HPL}
        v_lshlrev_b32 v41, 7, v{vL}
        s_mov_b32 exec_hi, 15
        buffer_load_dword v42, v41, {R(rWS)}, s{sT2} offen sc1
        s_mov_b64 exec, -1""")
    srd(rB, pGW, SZ['gw'])
    a(f"""v_and_b32 v9, 31, v{vL}
    v_mul_u32_u24 v9, 36, v9
    v_lshrrev_b32 v12, 5, v{vL}
    v_mul_u32_u24 v11, 1152, v12
    v_add_u32 v11, v11, v9
    buffer_load_dwordx4 v[20:23], v11, {R(rA)}, 0 offen
    buffer_load_dwordx4 v[24:27], v11, {R(rA)}, 0 offen offset:16
    buffer_load_dword v28, v11, {R(rA)}, 0 offen offset:32
    buffer_load_dwordx4 v[32:35], v9, {R(rB)}, 0 offen
    buffer_load_dwordx4 v[36:39], v9, {R(rB)}, 0 offen offset:16
    buffer_load_dword v40, v9, {R(rB)}, 0 offen offset:32
    v_mov_b32 v13, 0
    v_lshlrev_b32 v10, 2, v12
    v_add_u32 v10, {L_GATE}, v10
    s_waitcnt vmcnt(0)""")
    gatemath()
    if p.fast:
        a(f"""s_mov_b32 exec_lo, 0x01010101
        s_mov_b32 exec_hi, 0x01010101
        buffer_load_dword v20, v{vL16}, {R(rWS)}, s{sX} offen sc1
        s_mov_b64 exec, -1""")
    if p.wogate:
        for k in range(p.wogate):
            a(f"s_add_u32 s{4+k}, s2, {53*k+11}\ns_and_b32 s{4+k}, s{4+k}, 127\ns_lshl_b32 s{4+k}, s{4+k}, 8\ns_add_u32 s{4+k}, s{4+k}, {HC + (128 if p.wgpos == 0 else 64)}")
        spoll_all([4+k for k in range(p.wogate)], 8)
    if p.xord == 2:
        srd(rC, pWO, 0 if p.nod1 & 2 else SZ['wo'])
        a("s_mov_b32 m0, 0\ns_barrier")
        for n in range(36):
            if n % 4 == 0 and n: a(f"s_addk_i32 m0, 4096\ns_add_u32 s{sX+2}, s{sX+2}, 4096")
            if n == p.wosplit: a("s_barrier")
            a(f"buffer_load_dwordx4 v{vL16}, {R(rC)}, s{sX+2} offen offset:{1024*(n%4)} {nt} lds")
        if p.wosplit >= 36: a("s_barrier")
        a("s_waitcnt vmcnt(0)\ns_branch L_X_fgend")
    a("s_barrier")
    if p.fflag:
        a(f"""s_lshl_b32 s{sT3}, s2, 7
        s_add_u32 s{sT3}, s{sT3}, {HD+64}
        s_mov_b64 exec, 0xffff
        buffer_store_dword v137, v135, {R(rWS)}, s{sT3} offen sc1
        s_mov_b64 exec, -1
        s_lshl_b32 s{sT3}, s{sXcd}, 7
        s_add_u32 s{sT3}, s{sT3}, {HD+64}
        s_add_u32 s{sQ}, s{rWS}, s{sT3}
        s_addc_u32 s{sQ+1}, s{rWS+1}, 0
        s_mov_b32 s{sCnt}, 0
L_ff:""")
        for k in range(16): a(f"s_load_dword s{4+k}, s[{sQ}:{sQ+1}], {1024*k} glc")
        a(f"s_add_u32 s{sCnt}, s{sCnt}, 1\ns_cmp_ge_u32 s{sCnt}, {p.maxspin}\ns_cbranch_scc1 L_ffd\ns_waitcnt lgkmcnt(0)")
        for k in range(16): a(f"s_cmp_lg_u32 s{4+k}, s{sT[0]}\ns_cbranch_scc1 L_ff")
        a("L_ffd:\ns_waitcnt lgkmcnt(0)")
    if p.fdel: a("s_barrier")
    if p.fmid < 8: a("s_barrier")
    a("s_waitcnt vmcnt(0)")
    a.label("L_X_fgend")
    a("s_barrier")
    a.label("L_X_end")
    stamp(11)
    finish('X')

    a.label("L_Y_main")
    vQA, vPA, vSF, vPF, vACC = 20, 36, 48, 112, 176
    vTG, vTO = 208, 212
    vQG = 216
    a(f"""s_and_b32 s{sT2}, s{sWave}, 3
    s_lshr_b32 s{sT3}, s{sWave}, 2
    v_and_b32 v9, 7, v{vJ}
    v_lshlrev_b32 v9, 1, v9
    v_lshrrev_b32 v10, 3, v{vJ}
    v_or_b32 v9, v9, v10
    v_lshlrev_b32 v9, 4, v9
    v_lshl_add_u32 v9, v{vG}, 8, v9
    v_lshl_add_u32 v9, v{vJ}, 10, v9
    s_lshl_b32 s{sT0}, s{sT2}, 14
    v_add_u32 v13, s{sT0}, v9
    s_lshl_b32 s{sT0}, s{sT3}, 14
    s_add_u32 s{sT0}, s{sT0}, {L_QIMG}
    v_add_u32 v{vQA}, s{sT0}, v9""")
    for ks in range(1, 16): a(f"v_xor_b32 v{vQA+ks}, {16*ks}, v{vQA}")
    a(f"""v_lshrrev_b32 v9, 2, v{vL}
    v_and_b32 v10, 7, v9
    v_lshlrev_b32 v10, 1, v10
    v_lshrrev_b32 v11, 3, v9
    v_or_b32 v10, v10, v11
    v_bfe_u32 v11, v{vL}, 1, 1
    v_xor_b32 v10, v10, v11
    v_lshlrev_b32 v10, 4, v10
    v_lshl_add_u32 v10, v9, 10, v10
    v_and_b32 v11, 1, v{vL}
    v_lshl_add_u32 v10, v11, 3, v10
    s_lshl_b32 s{sT0}, s{sT2}, 8
    v_add_u32 v{vPA}, s{sT0}, v10""")
    for ct in range(1, 8): a(f"v_xor_b32 v{vPA+ct}, {32*ct}, v{vPA}")
    lsbtags(vTG)
    a(f"s_bitcmp1_b32 s2, 0\ns_cselect_b32 s{sT0}, 0xff, 0")
    lsbtags(vTO, f"s{sT0}")
    a(f"s_sub_u32 s{sI}, s{sJ}, 4")
    if p.wrow:
        a(f"""v_and_b32 v11, 3, v{vL}
        v_lshlrev_b32 v14, 6, v11
        v_lshl_add_u32 v14, v{vG}, 4, v14
        s_lshl_b32 s{sQ+4}, s{sWave}, 8
        s_lshl_b32 s{sQ+5}, s{sH}, 11
        s_add_u32 s{sQ+4}, s{sQ+4}, s{sQ+5}
        s_add_u32 s{sQ+4}, s{sQ+4}, {ST}
        v_mov_b32 v47, v{vL16}
        s_lshl_b32 s{sQ+5}, s{sH}, 2
        s_add_u32 s{sQ+5}, s{sQ+5}, s{sI}
        s_lshl_b32 s{sQ+2}, s{sH}, 12
        s_lshl_b32 s{sQ+3}, s{sI}, 8
        s_add_u32 s{sQ+2}, s{sQ+2}, s{sQ+3}
        s_add_u32 s{sQ+3}, s{sQ+2}, {CXL}
        s_add_u32 s{sQ+2}, s{sQ+2}, {CX}
        s_mul_i32 s{sQ+5}, s{sQ+5}, {p.opstr}
        s_lshl_b32 vcc_lo, s{sWave}, 12
        s_add_u32 s{sQ+5}, s{sQ+5}, vcc_lo
        s_add_u32 s{sQ+5}, s{sQ+5}, {OP}""")
    else:
        a(f"""v_bfe_u32 v9, v{vL}, 3, 1
    v_lshlrev_b32 v14, {10 if p.cstat else 15}, v9
    v_and_b32 v11, 3, v{vL}
    v_lshl_add_u32 v14, v11, {6 if p.cstat else 11}, v14
    v_lshl_add_u32 v14, v{vG}, {4 if p.cstat else 9}, v14
    s_and_b32 s{sT2}, s{sWave}, 3
    s_lshr_b32 s{sT3}, s{sWave}, 2
    s_lshl_b32 s{sQ+4}, s{sT2}, {8 if p.cstat else 13}
    s_lshl_b32 s{sQ+5}, s{sH}, {11 if p.cstat else 4}
    s_add_u32 s{sQ+4}, s{sQ+4}, s{sQ+5}
    s_add_u32 s{sQ+4}, s{sQ+4}, {ST}""")
        a(f"""v_lshl_add_u32 v47, v9, 6, v{vG}
    v_mul_u32_u24 v47, {p.opstr if p.oplay else 256}, v47
    v_and_b32 v11, 7, v{vL}
    v_lshl_add_u32 v47, v11, 4, v47
    s_lshl_b32 s{sQ+5}, s{sH}, 2
    s_add_u32 s{sQ+5}, s{sQ+5}, s{sI}
    s_lshl_b32 s{sQ+2}, s{sH}, 12
    s_lshl_b32 s{sQ+3}, s{sI}, 8
    s_add_u32 s{sQ+2}, s{sQ+2}, s{sQ+3}
    s_add_u32 s{sQ+3}, s{sQ+2}, {CXL}
    s_add_u32 s{sQ+2}, s{sQ+2}, {CX}
    s_mul_i32 s{sQ+5}, s{sQ+5}, {256 if p.oplay else p.opstr}
    s_mul_i32 vcc_lo, s{sT2}, {16*p.opstr if p.oplay else 4096}
    s_add_u32 s{sQ+5}, s{sQ+5}, vcc_lo
    s_lshl_b32 vcc_lo, s{sT3}, {7 if not p.halfo else 11}
    s_add_u32 s{sQ+5}, s{sQ+5}, vcc_lo
    s_add_u32 s{sQ+5}, s{sQ+5}, {OP}""")
    a(f"""s_bfe_u32 s{sT0}, s2, 0x10006
    s_lshl_b32 s{sT0}, s{sT0}, 15
    s_lshl_b32 s{sT1}, s{sWave}, 12
    s_add_u32 s{sT0}, s{sT0}, s{sT1}
    s_add_u32 s{sT0}, s{sT0}, {QL}
    s_add_u32 s{sT1}, s{sT1}, {L_QIMG}
    s_and_b32 vcc_lo, s{sWave}, 1
    s_lshl_b32 vcc_lo, vcc_lo, 7
    s_bfe_u32 vcc_hi, s{sWave}, 0x10001
    s_lshl_b32 vcc_hi, vcc_hi, 4
    s_or_b32 vcc_lo, vcc_lo, vcc_hi
    v_xor_b32 v16, vcc_lo, v{vL16}
    v_add_u32 v16, s{sT1}, v16
    v_xor_b32 v17, 32, v16
    v_xor_b32 v18, 64, v16
    v_xor_b32 v19, 0x60, v16
    """)
    a(f"""s_lshl_b32 s{sQ+9}, s{sT3}, 12
    s_add_u32 s{sQ+9}, s{sQ+9}, {L_SX}
    v_add_u32 v10, s{sQ+9}, v{vL16}
    s_lshl_b32 s{sQ+9}, s{sT2}, 10
    v_add_u32 v11, s{sQ+9}, v10
    v_mul_u32_u24 v12, {4096 if p.oplay else 16*p.opstr}, v{vG}
    v_lshl_add_u32 v12, v{vJ}, 4, v12
    s_sub_u32 s{sQ+9}, s2, 128
    s_lshl_b32 s{sT1}, s{sQ+9}, {4 if p.cstat else 9}
    v_lshlrev_b32 v15, {11 if p.cstat else 4}, v{vL}
    s_lshl_b32 vcc_lo, s{sT3}, {15 if p.cstat else 8}
    s_add_u32 s{sT1}, s{sT1}, vcc_lo
    s_add_u32 s{sT1}, s{sT1}, {ST}
    s_mul_i32 s{sQ+10}, s{sQ+9}, {p.opstr if p.oplay else 256}
    s_mul_i32 vcc_lo, s{sT3}, {16384 if p.oplay else 64*p.opstr}
    s_add_u32 s{sQ+10}, s{sQ+10}, vcc_lo
    s_mul_i32 vcc_lo, s{sT2}, {256 if p.oplay else p.opstr}
    s_add_u32 s{sQ+10}, s{sQ+10}, vcc_lo
    s_add_u32 s{sQ+10}, s{sQ+10}, {OP}
    s_lshl_b32 s{sQ+9}, s{sQ+9}, 8
    s_lshl_b32 vcc_lo, s{sT3}, 7
    s_add_u32 s{sQ+9}, s{sQ+9}, vcc_lo
    s_add_u32 s{sQ+9}, s{sQ+9}, {HC}""")
    if p.uv1 < 8: uvsetup(sQ)
    if p.cflag and p.cprog:
        a(f"""s_bfe_u32 s{sQ+9}, s2, 0x20004
        s_mul_i32 s{sQ+9}, s{sQ+9}, {p.cstr}
        s_and_b32 vcc_lo, s2, 15
        s_lshl_b32 vcc_lo, vcc_lo, 1
        s_add_u32 s{sQ+9}, s{sQ+9}, vcc_lo
        s_bfe_u32 vcc_lo, s2, 0x10006
        s_lshl_b32 vcc_lo, vcc_lo, 5
        s_add_u32 s{sQ+9}, s{sQ+9}, vcc_lo
        s_add_u32 s{sQ+9}, s{sQ+9}, {FP2}
        v_mul_u32_u24 v46, {8*p.cstr}, v{vL}""")
    elif p.cflag:
        a(f"""s_bfe_u32 s{sQ+9}, s2, 0x30004
        s_mul_i32 s{sQ+9}, s{sQ+9}, {p.cstr}
        s_and_b32 vcc_lo, s2, 15
        s_lshl_b32 vcc_lo, vcc_lo, 2
        s_add_u32 s{sQ+9}, s{sQ+9}, vcc_lo
        s_add_u32 s{sQ+9}, s{sQ+9}, {FP2}
        v_mul_u32_u24 v46, {8*p.cstr}, v{vL}""")
    for k in range(4): a(f"v_mov_b32 v{248+k}, 0x3f803f80\nv_mov_b32 v{252+k}, s{sT[0]}")
    def qloads():
        for n in range(4): a(f"buffer_load_dwordx4 {V(vQG+4*n)}, v{vL16}, {R(rWS)}, s{sT0} offen offset:{1024*(n if not p.emub else n&1)} sc1")
    for T in range(4):
        if T == p.qat:
            if p.bflag:
                a(f"""s_and_b32 s{sQ+8}, s2, 15
                s_lshl_b32 s{sQ+8}, s{sQ+8}, 3
                s_add_u32 s{sQ+8}, s{sQ+8}, s{sWave}
                s_mul_i32 s{sQ+8}, s{sQ+8}, {p.cstr}
                s_add_u32 s{sQ+8}, s{sQ+8}, {FP2 + 0x80000}
                s_mov_b32 s{sQ+6}, s{sT[0]}
                s_mov_b32 s{sQ+7}, s{sT[0]}
                s_mov_b32 s{sCnt}, 0
L_bf:
                s_load_dwordx16 s[4:19], s[{rWS}:{rWS+1}], s{sQ+8} glc
                s_add_u32 s{sCnt}, s{sCnt}, 1
                s_cmp_ge_u32 s{sCnt}, {p.maxspin}
                s_cbranch_scc1 L_bfd
                s_waitcnt lgkmcnt(0)""")
                for k in range(8): a(f"s_cmp_lg_u64 s[{4+2*k}:{5+2*k}], s[{sQ+6}:{sQ+7}]\ns_cbranch_scc1 L_bf")
                a("L_bfd:\ns_waitcnt lgkmcnt(0)")
            qloads()
            if p.uv2:
                a(f"s_cmp_lt_u32 s{sWave}, 4\ns_cbranch_scc1 L_Y_nouv2")
                uvdma(sQ, p.uv1, p.uv1 + p.uv2)
                a.label("L_Y_nouv2")
        a(f"s_waitcnt vmcnt({12-4*T + (4+p.uv2 if T >= p.qat else 0)})\ns_barrier")
        if p.gate == 17 + T:
            a(f"""s_sub_u32 vcc_lo, s2, 128
            s_lshl_b32 vcc_lo, vcc_lo, 7
            s_add_u32 vcc_lo, vcc_lo, {HG}
            s_cmp_eq_u32 s{sWave}, 1
            s_cselect_b32 exec_lo, 0xf, 0
            s_mov_b32 exec_hi, 0
            buffer_store_dwordx4 v[252:255], v{vL16}, {R(rWS)}, vcc_lo offen sc1
            s_mov_b64 exec, -1""")
        if T == 3:
            stamp(3); cyc(1)
            if p.qat == 4: qloads()
        Ls = a.newlabel('nos')
        a(f"s_cmp_lg_u32 s{sT2}, {T}\ns_cbranch_scc1 {Ls}")
        for ks in range(16):
            a(f"v_xor_b32 v9, {16*ks}, v13\nds_read_b128 {V(vSF+4*ks)}, v9")
        a.label(Ls)
        for ct in range(8):
            a(f"ds_read_b64_tr_b16 {V(vPF+8*ct+2*T, 2)}, v{vPA+ct} offset:{16384*T}")
    if p.qsplit: a(f"s_cmp_eq_u32 s{sT3}, 0\ns_cbranch_scc1 L_Y_q\ns_barrier\nL_Y_q:")
    Lq = a.newlabel('qchk'); L = a.newlabel('poll'); Lw = a.newlabel('qw')
    def qw(n): a(f"ds_write_b128 v{16+n}, {V(vQG+4*n)} offset:{1024*n}")
    a(f"s_mov_b32 s{sCnt}, 0")
    if p.uv2:
        a(f"s_cmp_lt_u32 s{sWave}, 4\ns_cbranch_scc1 {Lw}")
        for n in range(4):
            a(f"s_waitcnt vmcnt({3-n+p.uv2})"); qw(n); chkv(9, vQG+4*n, vTG, n == 0)
        a(f"s_branch {Lq}")
    else:
        a(f"s_branch {Lw}")
    a.label(L)
    qloads()
    a("s_mov_b64 exec, -1")
    a.label(Lw)
    for n in range(4):
        a(f"s_waitcnt vmcnt({3-n})"); qw(n); chkv(9, vQG+4*n, vTG, n == 0)
    a.label(Lq)
    poll_end_masked(L, 9, '0x10001', p.bsleep)
    if p.stamp: a(f"s_mov_b32 s{sStamp+24}, s{sCnt}")
    stamp(4)
    a(f"s_mov_b32 s{sT0}, s{sQ+10}\nv_mov_b32 v9, 0x10001")
    def hint(pos):
        if p.hintpos == pos and p.cflag:
            a(f"""s_cmp_eq_u32 s{sWave}, {p.cw}
            s_cselect_b32 exec_lo, {((1 << p.crep) - 1) & 0xffffffff}, 0
            s_cselect_b32 exec_hi, {((1 << p.crep) - 1) >> 32}, 0
            buffer_store_{'short' if p.cprog else 'dword'} v252, v46, {R(rWS)}, s{sQ+9} offen sc1
            s_mov_b64 exec, -1""")
        elif p.hintpos == pos:
            a(f"""s_cmp_eq_u32 s{sT2}, 3
            s_cselect_b32 exec_lo, 0xf, 0
            s_mov_b32 exec_hi, 0
            buffer_store_dwordx4 v[252:255], v{vL16}, {R(rWS)}, s{sQ+9} offen sc1
            s_mov_b64 exec, -1""")
    NQ = 8
    if p.qsplit:
        p.qpre = 0
        a(f"s_cmp_eq_u32 s{sT3}, 0\ns_cbranch_scc1 L_Y_s")
        uvdma(sQ, p.uv1 + p.uv2, 8 - p.uv3)
        if p.prio: a(f"s_setprio {p.prio}")
        a.label("L_Y_s")
        a("s_waitcnt lgkmcnt(0)\ns_barrier")
        stamp(5)
    else:
        cyc(2)
        a("s_waitcnt lgkmcnt(0)\ns_barrier")
        stamp(5); cyc(3)
        for ks in range(p.qpre): a(f"ds_read_b128 {V(vQG+4*ks)}, v{vQA+ks}")
        a(f"""s_cmp_eq_u32 s{sT3}, 0
    s_cbranch_scc1 L_Y_s""")
        uvdma(sQ, p.uv1 + p.uv2, 8 - p.uv3)
        a("s_barrier")
        if p.prio: a(f"s_setprio {p.prio}")
        a.label("L_Y_s")
    cyc(4)
    for ks in range(p.qpre, NQ): a(f"ds_read_b128 {V(vQG+4*ks)}, v{vQA+ks}")
    for ks in range(16):
        rem = min(15, ks+NQ-1) - ks
        a(f"s_waitcnt lgkmcnt({rem})")
        mfma(vACC, vSF+4*ks, vQG+4*(ks % NQ), '0' if ks == 0 else None)
        if ks + NQ < 16: a(f"ds_read_b128 {V(vQG+4*(ks%NQ))}, v{vQA+ks+NQ}")
    cyc(5)
    a(f"""ds_write_b128 v11, {V(vACC)}
    s_waitcnt lgkmcnt(0)
    s_barrier""")
    stamp(6); cyc(6)
    vS = 48
    for T in range(4): a(f"ds_read_b128 {V(vS+4*T)}, v10 offset:{1024*T}")
    hint(0)
    a(f"""s_waitcnt lgkmcnt(2)
    v_max3_f32 v64, v{vS}, v{vS+1}, v{vS+2}
    v_max3_f32 v65, v{vS+3}, v{vS+4}, v{vS+5}
    v_max3_f32 v64, v64, v{vS+6}, v{vS+7}
    s_waitcnt lgkmcnt(0)
    v_max3_f32 v65, v65, v{vS+8}, v{vS+9}
    v_max3_f32 v64, v64, v{vS+10}, v{vS+11}
    v_max3_f32 v65, v65, v{vS+12}, v{vS+13}
    v_max3_f32 v64, v64, v{vS+14}, v{vS+15}
    v_max_f32 v64, v64, v65""")
    allred_groups("v_max_f32", 64, 65)
    cyc(7)
    def lead_bar():
        a(f"s_cmp_eq_u32 s{sT3}, 0\ns_cbranch_scc0 L_Y_p\ns_barrier\nL_Y_p:")
    if p.bpos == 1: lead_bar()
    vP = 72
    def pksub(r): return f"v_pk_add_f32 v[{r}:{r+1}], v[{r}:{r+1}], v[64:65] op_sel_hi:[1,0] neg_lo:[0,1] neg_hi:[0,1]"
    for k in range(4): a(pksub(vS+2*k))
    for k in range(8): a(f"v_exp_f32 v{vS+k}, v{vS+k}")
    for k in range(4, 8): a(pksub(vS+2*k))
    for k in range(4): a(f"v_cvt_pk_bf16_f32 v{vP+k}, v{vS+2*k}, v{vS+2*k+1}")
    hint(1); cyc(8)
    if p.diag == 1: stamp(1)
    if p.bpos == 0: lead_bar()
    for ct in range(8):
        mfma(vACC+4*ct, vP, vPF+8*ct, '0')
        a(f"v_exp_f32 v{vS+8+ct}, v{vS+8+ct}")
        if ct in (3, 5, 7): a(f"v_cvt_pk_bf16_f32 v{vP+4+(ct-3)//2}, v{vS+8+ct-3}, v{vS+8+ct-2}")
    a(f"v_mov_b32 v66, s{sT[0]}\nv_cvt_pk_bf16_f32 v{vP+7}, v{vS+14}, v{vS+15}")
    hint(2)
    if p.diag == 1: stamp(4)
    a(f"""s_cmp_eq_u32 s{sT2}, 0
    s_cbranch_scc0 L_Y_nol""")
    mfma(68, 248, vP, '0')
    mfma(68, 248, vP+4)
    a.label("L_Y_nol")
    def epi(k):
        return [f"v_cvt_pk_bf16_f32 v{80+4*r+k}, v{vACC+8*k+r}, v{vACC+8*k+4+r}" for r in range(4)] + \
               [f"v_bfi_b32 v{80+4*r+k}, v9, v{vTO+k}, v{80+4*r+k}" for r in range(4)]
    for ct in range(4): mfma(vACC+4*ct, vP+4, vPF+8*ct+4)
    a(f"""s_cmp_eq_u32 s{sT2}, 0
    s_cselect_b32 vcc_lo, 0xffff, 0""")
    mfma(vACC+16, vP+4, vPF+36)
    a("s_nop 0\nv_mov_b32 v65, v68")
    mfma(vACC+20, vP+4, vPF+44)
    a(f"""s_mov_b32 exec_lo, vcc_lo
    s_mov_b32 exec_hi, 0
    buffer_store_dwordx4 v[64:67], v15, {R(rWS)}, s{sT1} offen sc1
    s_mov_b64 exec, -1""")
    e = epi(0)
    mfma(vACC+24, vP+4, vPF+52)
    for x in e[:3]: a(x)
    mfma(vACC+28, vP+4, vPF+60)
    if p.diag == 1: stamp(2)
    cyc(9)
    for x in e[3:] + epi(1) + epi(2): a(x)
    cyc(10)
    if p.diag == 6: a(f"s_memrealtime s[{sStamp+6}:{sStamp+7}]")
    hint(4)
    for r in range(4):
        a(f"v_cvt_pk_bf16_f32 v{83+4*r}, v{vACC+24+r}, v{vACC+28+r}")
        a(f"v_bfi_b32 v{83+4*r}, v9, v{vTO+3}, v{83+4*r}")
        if p.halfo: a("s_mov_b32 exec_lo, 0x00ff00ff\ns_mov_b32 exec_hi, 0x00ff00ff")
        a(f"buffer_store_dwordx4 {V(80+4*r)}, v12, {R(rWS)}, s{sT0} offen sc1")
        if p.halfo: a("s_mov_b64 exec, -1")
        if r < 3: a(f"s_add_u32 s{sT0}, s{sT0}, {1024 if p.oplay else 4*p.opstr}")
    hint(3)
    stamp(7); cyc(11)
    if p.diag == 6: a(f"s_waitcnt vmcnt(0)\ns_memrealtime s[{sStamp+8}:{sStamp+9}]")
    if p.uv3:
        a(f"s_cmp_lt_u32 s{sWave}, 4\ns_cbranch_scc1 L_Y_nouv3")
        uvdma(sQ, 8 - p.uv3, 8)
        a.label("L_Y_nouv3")
    if p.prio: a("s_setprio 0")
    if p.cflag:
        a(f"""s_and_b32 s{sQ}, s2, {p.crep-1}
        s_lshl_b32 s{sQ}, s{sQ}, 3
        s_add_u32 s{sQ}, s{sQ}, s{sT2 if p.cprog else sWave}
        s_mul_i32 s{sQ}, s{sQ}, {p.cstr}
        s_add_u32 s{sQ}, s{sQ}, {FP2}
        {f's_pack_ll_b32_b16 s{sQ+6}, s{sT[0]}, s{sT[0]}' if p.cprog else f's_mov_b32 s{sQ+6}, s{sT[0]}'}
        s_mov_b32 s{sQ+7}, s{sQ+6}
        s_mov_b32 s{sCnt}, 0
L_cf:
        s_load_dwordx16 s[4:19], s[{rWS}:{rWS+1}], s{sQ} glc
        s_add_u32 s{sCnt}, s{sCnt}, 1
        s_cmp_ge_u32 s{sCnt}, {p.maxspin}
        s_cbranch_scc1 L_cfd
        s_waitcnt lgkmcnt(0)""")
        for k in range(8): a(f"s_cmp_lg_u64 s[{4+2*k}:{5+2*k}], s[{sQ+6}:{sQ+7}]\ns_cbranch_scc1 L_cf")
        a("L_cfd:\ns_waitcnt lgkmcnt(0)")
    else:
        a(f"""s_cmp_lg_u32 s{sWave}, 0
    s_cbranch_scc1 L_Y_v
    s_bfe_u32 s{sT0}, s2, 0x10004
    s_lshl_b32 s{sT0}, s{sT0}, 7
    s_add_u32 s{sT0}, s{sT0}, {HC}""")
        for k in range(p.nsamp):
            a(f"s_add_u32 s{4+k}, s2, {37*k}\ns_and_b32 s{4+k}, s{4+k}, 127\ns_lshl_b32 s{4+k}, s{4+k}, 8\ns_add_u32 s{4+k}, s{4+k}, s{sT0}")
        if p.need: spoll_cnt([4+k for k in range(p.nsamp)], 12, p.need)
        else: spoll_all([4+k for k in range(p.nsamp)], 12)
    a.label("L_Y_v")
    if p.uv3: a("s_barrier")
    elif not (p.cprog or p.wrow in (1, 3)): a(f"s_waitcnt vmcnt({0 if p.odrain else 4})\ns_barrier")
    vBV = 20
    stamp(1)
    if p.wogate and p.wgpos == 1:
        a(f"""s_cmp_eq_u32 s{sWave}, 1
        s_cselect_b32 exec_lo, 0xf, 0
        s_mov_b32 exec_hi, 0
        buffer_store_dwordx4 v[252:255], v{vL16}, {R(rWS)}, s{sQ+9} offen offset:64 sc1
        s_mov_b64 exec, -1""")
    vOD = 56
    def cloads():
        a(f"buffer_load_dwordx4 v[52:55], v14, {R(rWS)}, s{sQ+4} offen sc1")
        for u in range(4):
            if p.oplay: a(f"s_add_u32 s{sQ+1}, s{sQ+5}, {4*u*p.opstr}\nbuffer_load_dwordx4 {V(vOD+4*u)}, v47, {R(rWS)}, s{sQ+1} offen sc1")
            else: a(f"buffer_load_dwordx4 {V(vOD+4*u)}, v47, {R(rWS)}, s{sQ+5} offen offset:{1024*(u if not p.halfo else u&1)} sc1")
    cloads()
    a(f"""v_bfe_u32 v9, v{vL}, 2, 2
    v_lshl_add_u32 v134, {'v9, 4, v%d' % vG if p.uvlin else 'v%d, 3, v9' % vG}
    v_lshlrev_b32 v134, 8, v134
    v_and_b32 v11, 1, v{vG}
    v_lshl_add_u32 v9, v11, 2, v9
    v_lshlrev_b32 v9, 1, v9
    v_bfe_u32 v11, v{vL}, 1, 1
    s_lshl_b32 s{sT0}, s{sWave}, 1
    v_add_u32 v11, s{sT0}, v11
    v_xor_b32 v9, v9, v11
    v_lshl_add_u32 v134, v9, 4, v134
    v_and_b32 v9, 1, v{vL}
    v_lshl_add_u32 v134, v9, 3, v134
    v_add_u32 v134, {L_WUVY}, v134""")
    a(f"v_bfe_u32 v9, v{vL}, 3, 1\nv_and_b32 v11, 7, v{vL}")
    a(f"v_and_b32 v122, 1, v{vG}\nv_mul_u32_u24 v122, 0xff, v122")
    lsbtags(124, "v122")
    if p.wrow:
        a(f"""v_and_b32 v123, 1, v{vG}
        v_lshlrev_b32 v122, 4, v{vJ}
        v_lshl_add_u32 v122, v123, 3, v122
        s_mul_i32 s{sQ+7}, s{sWave}, 272
        s_add_u32 s{sQ+7}, s{sQ+7}, {L_AIMGY}
        v_add_u32 v122, s{sQ+7}, v122
        s_lshl_b32 s{sQ+7}, s{sT3}, 5
        s_lshl_b32 s{sQ+8}, s{sT2}, 2
        s_add_u32 s{sQ+7}, s{sQ+7}, s{sQ+8}
        s_add_u32 s{sQ+7}, s{sQ+7}, {L_VSTY}
        v_mov_b32 v128, s{sQ+7}
        v_lshlrev_b32 v129, 5, v123
        v_add_u32 v129, {L_VSTY}, v129""")
    else:
        a(f"""v_mul_u32_u24 v122, {4*272}, v9
    v_lshl_add_u32 v122, v11, 4, v122
    v_and_b32 v123, 1, v{vG}
    v_lshl_add_u32 v122, v123, 3, v122
    s_mul_i32 s{sQ+7}, s{sT2}, 272
    s_lshl_b32 s{sQ+8}, s{sT3}, 7
    s_add_u32 s{sQ+7}, s{sQ+7}, s{sQ+8}
    s_add_u32 s{sQ+7}, s{sQ+7}, {L_AIMGY}
    v_add_u32 v122, s{sQ+7}, v122""")
        a(f"""v_lshlrev_b32 v128, 5, v9
    s_lshl_b32 s{sQ+7}, s{sT2}, 2
    s_add_u32 s{sQ+7}, s{sQ+7}, {L_VSTY}
    v_add_u32 v128, s{sQ+7}, v128
    v_lshlrev_b32 v129, 5, v123
    v_add_u32 v129, {L_VSTY}, v129""")
    a(f"""v_mul_u32_u24 v130, 272, v11
    v_lshl_add_u32 v130, v{vG}, 4, v130
    v_add_u32 v130, {L_AIMGY}, v130""")
    a(f"""v_lshlrev_b32 v131, 5, v{vG}
    v_lshl_add_u32 v131, v11, 2, v131
    v_lshl_add_u32 v131, v9, 6, v131
    s_lshr_b32 s{sQ+7}, s{sWave}, 1
    s_lshl_b32 s{sQ+7}, s{sQ+7}, 10
    s_and_b32 s{sQ+8}, s{sWave}, 1
    s_lshl_b32 s{sQ+8}, s{sQ+8}, 7
    s_add_u32 s{sQ+7}, s{sQ+7}, s{sQ+8}
    v_add_u32 v131, s{sQ+7}, v131
    v_and_b32 v132, 3, v{vL}
    v_mul_u32_u24 v132, 37, v132
    v_add_u32 v132, s{sT[0]}, v132""")
    a("v_mov_b32 v133, 1")
    if p.cprog or p.wrow == 1: a(f"s_waitcnt vmcnt(9)\ns_barrier")
    def uvfr(ks):
        for hf in range(2):
            a(f"ds_read_b64_tr_b16 {V(vBV+4*ks+2*hf, 2)}, v134 offset:{(4*ks+64*hf)*256 if p.uvlin else (32*ks+4*hf)*256}")
    late_uv = p.uv3 or p.wrow == 3
    if not late_uv:
        for ks in range(4): uvfr(ks)
    if p.diag == 3:
        a(f"s_waitcnt vmcnt(4)\ns_memrealtime s[{sStamp+2}:{sStamp+3}]\ns_waitcnt vmcnt(0)\ns_memrealtime s[{sStamp+4}:{sStamp+5}]")
    Lc = a.newlabel('cchk')
    a(f"s_mov_b32 s{sCnt}, 0\ns_branch {Lc}")
    L = a.newlabel('poll'); a.label(L)
    cloads()
    a.label(Lc)
    a(f"""s_mov_b64 exec, -1
    s_waitcnt vmcnt(4)
    v_max_f32_dpp v50, v52, v52 quad_perm:[1,0,3,2] row_mask:0xf bank_mask:0xf
    v_cmp_ne_u32 vcc, s{sT[0]}, v54
    v_max_f32_dpp v50, v50, v50 quad_perm:[2,3,0,1] row_mask:0xf bank_mask:0xf
    v_cndmask_b32 v49, 0, v133, vcc""")
    allred_groups("v_max_f32", 50, 51)
    a(f"""v_sub_f32 v51, v52, v50
    v_exp_f32 v51, v51
    v_cvt_pk_bf16_f32 v51, v51, v51""")
    for u in range(4):
        buildA(72+4*u, 51, u)
    a(f"""v_and_b32 v51, 0xffff0000, v51
    v_mul_f32 v51, v51, v53
    s_waitcnt vmcnt(3)""")
    mfma(88, 72, vOD, '0')
    a("v_add_f32_dpp v51, v51, v51 quad_perm:[1,0,3,2] row_mask:0xf bank_mask:0xf")
    chkv(49, vOD, 124)
    a("v_add_f32_dpp v51, v51, v51 quad_perm:[2,3,0,1] row_mask:0xf bank_mask:0xf\ns_waitcnt vmcnt(2)")
    mfma(88, 76, vOD+4)
    a("v_mov_b32 v55, v51")
    chkv(49, vOD+4, 124)
    a("v_permlane32_swap_b32 v51, v55\nv_add_f32 v51, v51, v55\ns_waitcnt vmcnt(1)")
    mfma(88, 80, vOD+8)
    a("v_mov_b32 v55, v51")
    chkv(49, vOD+8, 124)
    a("v_permlane16_swap_b32 v51, v55\nv_add_f32 v51, v51, v55\ns_waitcnt vmcnt(0)")
    mfma(88, 84, vOD+12)
    a("ds_write2_b32 v128, v50, v51 offset0:0 offset1:4")
    chkv(49, vOD+12, 124)
    poll_end_masked(L, 49, '0x10001')
    if p.stamp: a(f"s_mov_b32 s{sStamp+24}, s{sCnt}")
    stamp(8)
    if p.wogate and p.wgpos == 2:
        a(f"""s_cmp_eq_u32 s{sWave}, 1
        s_cselect_b32 exec_lo, 0xf, 0
        s_mov_b32 exec_hi, 0
        buffer_store_dwordx4 v[252:255], v{vL16}, {R(rWS)}, s{sQ+9} offen offset:64 sc1
        s_mov_b64 exec, -1""")
    a(f"""v_cvt_pk_bf16_f32 v88, v88, v89
    v_cvt_pk_bf16_f32 v89, v90, v91
    s_mov_b32 exec_lo, {'-1' if p.wrow else '0x00ff00ff'}
    s_mov_b32 exec_hi, {'0' if p.wrow else '0xff00ff00'}
    ds_write_b64 v122, v[88:89]
    s_mov_b64 exec, -1
    s_waitcnt lgkmcnt(0)
    s_barrier""")
    for ks in range(4):
        a(f"ds_read_b128 {V(56+4*ks)}, v130 offset:{64*ks}")
        if late_uv: uvfr(ks)
    a(f"ds_read_b128 v[72:75], v129\nds_read_b128 v[76:79], v129 offset:16")
    for ks in range(4):
        a(f"s_waitcnt lgkmcnt({11-3*ks if late_uv else 5-ks})")
        mfma(88, 56+4*ks, vBV+4*ks, '0' if ks == 0 else None)
    a(f"""s_waitcnt lgkmcnt(0)
    v_max3_f32 v50, v72, v73, v74
    v_max_f32 v50, v50, v75""")
    for r in range(4): a(f"v_sub_f32 v{72+r}, v{72+r}, v50")
    for r in range(4): a(f"v_exp_f32 v{72+r}, v{72+r}")
    a(f"""v_mul_f32 v51, v72, v76
    v_fmac_f32 v51, v73, v77
    v_fmac_f32 v51, v74, v78
    v_fmac_f32 v51, v75, v79
    v_rcp_f32 v51, v51
    v_mul_f32 v50, v72, v88
    v_fmac_f32 v50, v73, v89
    v_fmac_f32 v50, v74, v90
    v_fmac_f32 v50, v75, v91
    v_mul_f32 v50, v50, v51
    v_mov_b32_sdwa v50, v132 dst_sel:BYTE_0 dst_unused:UNUSED_PRESERVE src0_sel:BYTE_0
    s_mov_b32 exec_hi, 0""")
    if p.fast: a(f"buffer_store_dword v50, v131, {R(rWS)}, s{sQ+3} offen")
    a(f"""buffer_store_dword v50, v131, {R(rWS)}, s{sQ+2} offen sc1
    s_mov_b64 exec, -1""")
    stamp(2)
    if p.clean & 2: qclean(7)
    a(f"""s_sub_u32 s2, s2, 128
    s_cmp_ge_u32 s2, 72
    s_cbranch_scc1 L_Y_end
    s_cmp_ge_u32 s2, 36
    s_cselect_b32 s{sT2}, 1, 0
    s_mul_i32 s{sT3}, s{sT2}, 36
    s_sub_u32 s{sT3}, s2, s{sT3}
    s_mul_i32 s{sT0}, s{sWave}, {16*4608}
    s_mul_i32 s{sT1}, s{sT2}, 2304
    s_add_u32 s{sT0}, s{sT0}, s{sT1}
    s_lshl_b32 s{sT1}, s{sT3}, 6
    s_add_u32 s{sT0}, s{sT0}, s{sT1}
    s_add_u32 s{sT0}, s{sT0}, {FP}
    v_lshrrev_b32 v9, 2, v{vL}
    v_mul_u32_u24 v10, 4608, v9
    v_and_b32 v11, 3, v{vL}
    v_lshl_add_u32 v10, v11, 4, v10
    v_lshl_add_u32 v13, v{vG}, 2, v11
    v_lshlrev_b32 v13, 5, v13
    s_lshl_b32 s{sT1}, s{sWave}, 2
    s_add_u32 s{sT1}, s{sT1}, {L_REDY}
    v_add_u32 v13, s{sT1}, v13""")
    srd(rB, pB2, SZ['b2']); srd(rC, pOUT, SZ['out'])
    a(f"""v_mov_b32 v15, 0
    s_cmp_lg_u32 s{sWave}, 0
    s_cbranch_scc1 L_Y_rx
    s_lshl_b32 s{sT1}, s{sT3}, 2
    v_add_u32 v14, s{sT1}, v11""")
    decode_v(15, 14, 16)
    a(f"""v_bfe_u32 v14, v{vL}, 2, 2
    v_add_u32 v15, v15, v14
    v_lshlrev_b32 v15, 1, v15
    buffer_load_ushort v16, v15, {R(rB)}, 0 offen
    s_lshl_b32 s{sT1}, s{sT2}, 2
    s_add_u32 s{sT1}, s{sT1}, {L_GATE}
    v_mov_b32 v17, s{sT1}
    ds_read_b32 v17, v17
    v_lshlrev_b32 v18, 5, v{vJ}
    v_add_u32 v18, {L_REDY}, v18
    s_mul_i32 s{sT2}, s{sT2}, 1152
L_Y_rx:""")
    if p.dflag >= 3:
        for k in range(p.dsamp):
            a(f"s_add_u32 s{4+k}, s2, {(16//p.dsamp)*k}\ns_and_b32 s{4+k}, s{4+k}, 15\ns_lshl_b32 s{sQ}, s{sWave}, 4\ns_add_u32 s{4+k}, s{4+k}, s{sQ}\ns_lshl_b32 s{4+k}, s{4+k}, 7\ns_add_u32 s{4+k}, s{4+k}, {HD}")
        spoll_all([4+k for k in range(p.dsamp)], 12)
        stamp(9)
    L = poll_begin()
    a(f"""buffer_load_dwordx4 v[20:23], v10, {R(rWS)}, s{sT0} offen sc1
    s_mov_b64 exec, -1
    s_waitcnt vmcnt(0)""")
    chk4(24, 20, True)
    poll_end_masked(L, 24, '0xff')
    stamp(10)
    treduce(20)
    a(f"""v_add_f32_dpp v20, v20, v20 row_ror:4 row_mask:0xf bank_mask:0xf
    v_add_f32_dpp v20, v20, v20 row_ror:8 row_mask:0xf bank_mask:0xf
    ds_write_b32 v13, v20
    s_waitcnt lgkmcnt(0)
    s_barrier
    s_cmp_lg_u32 s{sWave}, 0
    s_cbranch_scc1 L_Y_end
    ds_read_b128 v[20:23], v18
    ds_read_b128 v[24:27], v18 offset:16
    v_lshlrev_b32 v16, 16, v16
    v_sub_f32 v17, 1.0, v17
    v_mul_f32 v16, v16, v17
    s_waitcnt lgkmcnt(0)
    v_add_f32 v20, v20, v24
    v_add_f32 v21, v21, v25
    v_add_f32 v22, v22, v26
    v_add_f32 v23, v23, v27
    v_add_f32 v20, v20, v21
    v_add_f32 v22, v22, v23
    v_add_f32 v20, v20, v16
    v_add_f32 v20, v20, v22
    v_cvt_pk_bf16_f32 v20, v20, v20
    s_mov_b64 exec, 0xffff
    buffer_store_short v20, v15, {R(rC)}, s{sT2} offen {p.outf.replace('_',' ')}
    s_cmp_lg_u32 s2, 0
    s_cbranch_scc1 L_Y_end
    s_mov_b64 exec, 1
    v_mov_b32 v21, s{sT[0]}
    v_mov_b32 v22, 0
    buffer_store_dword v21, v22, {R(rWS)}, 0 offen offset:{EPOCH} sc1""")
    a.label("L_Y_end")
    if p.stamp: a("s_add_u32 s2, s2, 128")
    stamp(11)
    finish('Y')
    a.label("L_exit")
    a("s_endpgm")
    return a.finalize()

HEADER = open('gated_mix__compressed_kv_cla__dense_activation_gelu__decode.s.ref').read().split('; Override')[0]

def emit(path, p=P):
    body = build(p)
    s = HEADER + f"""; @launch grid=(256,1,1) block=(512,1,1) lds={LDS_BYTES}
.amdgcn_target "amdgcn-amd-amdhsa--gfx950"
.text
.globl {KNAME}
.p2align 8
.type {KNAME},@function
{KNAME}:
{body}.section .rodata,"a"
.p2align 6
.amdhsa_kernel {KNAME}
  .amdhsa_next_free_vgpr 256
  .amdhsa_next_free_sgpr 102
  .amdhsa_accum_offset 256
  .amdhsa_group_segment_fixed_size 0
  .amdhsa_kernarg_size 120
  .amdhsa_user_sgpr_count 2
  .amdhsa_user_sgpr_kernarg_segment_ptr 1
  .amdhsa_system_sgpr_workgroup_id_x 1
.end_amdhsa_kernel
"""
    open(path, 'w').write(s)

if __name__ == '__main__':
    out = sys.argv[1]
    for kv in sys.argv[2:]:
        k, v = kv.split('=')
        setattr(P, k, type(getattr(P, k))(v))
    emit(out)
```

```python
import sys, struct, math
from asmlib import Asm

KNAME = "gated_mix__compressed_kv_cla__dense_activation_gelu__decode_kernel"

def f2u(x): return struct.unpack('<I', struct.pack('<f', x))[0]

class P:
    stamp = 0
    nt = "nt"
    pollA_wait = 2
    maxspin = 200000
    prefetch = 1
    wsoff = 0
    fast = 1
    nlocal = 256
    hintpos = 2
    diag = 0
    xpre = 8
    ypre = 0
    gate = 9
    qat = 3
    bsleep = 0
    tlb = 0
    cstat = 1
    dflag = 3
    drep = 18
    dsamp = 2
    dstr = 2304
    wopre = 1
    won = 9
    xg = -1
    xgn = 2
    gand = 0
    wofirst = 1
    odrain = 0
    warm = 0
    halfo = 0
    outf = ""
    outpre = 0
    wopos = 0
    w2gate = 0
    uv1 = 4
    xord = 3
    wosplit = 20
    emub = 0
    ckvf = "nt"
    fpos = 0
    wogate = 0
    wgpos = 0
    uv2 = 0
    hmix = 0
    qsplit = 0
    bpos = 0
    opstr = 32896
    fdel = 1
    asleep = 0
    fsleep = 0
    uvlin = 0
    nof = 0
    fflag = 0
    cflag = 1
    crep = 16
    cstr = 2304
    cw = 7
    cprog = 0
    oplay = 0
    qpf = 0
    qpfs = 0
    bflag = 0
    uv3 = 0
    xramp = 0
    xrn = 4
    fmid = 4
    floc = 1
    clean = 0
    wrow = 0
    p5h = 0
    cfine = 0
    early = 1
    kint = 1
    b0pos = 1
    nsamp = 4
    need = 0
    prio = 1
    only = ""
    b0 = 1
    wqdma = 0
    nod1 = 0
    sparseC = 1
    qpre = 2
    enc = -1
    encwave = 4

EPOCH, QP, QL, ST, CX, HP, FP, OP, STAMP = 0, 0x10000, 0x50000, 0x60000, 0x70000, 0x90000, 0x120000, 0x200000, 0x800000
QPL, CXL, HC, HG, HD, HK, FP2 = 0x700000, 0x740000, 0x760000, 0x770000, 0x778000, 0x780000, 0x790000
HPL = 0x610000
WS_REC = 0x1000000
L_CKV, L_QIMG, L_SX, L_HX, L_GATE = 0, 65536, 98304, 106496, 107008
L_WQ = 0x18000 - 20480
L_WUK, L_WUV, L_QV, L_AIMG, L_VST, L_RED = 0, 32768, 65536, 66048, 68352, 68480
L_WUVY = 107520
LDS_BYTES = 107520 + 32768
L_AIMGY, L_VSTY, L_REDY = 65536, 67840, 67968
pX, pCKV, pWQ, pWUK, pWUV, pWO, pW1, pB1, pW2, pB2, pGW, pOUT, pWS = 4, 6, 8, 10, 12, 14, 18, 20, 22, 24, 26, 28, 32
sWave, sH, sJ, sI, sXcd, sTag = 3, 34, 35, 56, 57, 58
sT = [58, 59, 60, 61]
rA, rB, rC, rWS = 36, 40, 44, 48
sT0, sT1, sT2, sT3 = 52, 53, 54, 55
sCnt = 62
sQ = 64
sStamp = 76
vL, vJ, vG, vM, vL16 = 1, 2, 3, 4, 8
SZ = dict(x=2304, ckv=8388608, wq=4718592, wuk=4194304, wuv=4194304, wo=4718592, w1=5308416, w2=5308416, b1=9216, b2=1152, gw=1152, out=2304)

def build(p=P):
    a = Asm()
    nt = p.nt
    def srd(r, ptr, size):
        if ptr == pWS and p.wsoff:
            a(f"s_add_u32 s{r}, s{ptr}, {p.wsoff}\ns_addc_u32 s{r+1}, s{ptr+1}, 0\ns_mov_b32 s{r+2}, {size}\ns_mov_b32 s{r+3}, 0x20000")
            return
        a(f"s_mov_b32 s{r}, s{ptr}\ns_mov_b32 s{r+1}, s{ptr+1}\ns_mov_b32 s{r+2}, {size}\ns_mov_b32 s{r+3}, 0x20000")
    def R(r): return f"s[{r}:{r+3}]"
    def V(r, n=4): return f"v[{r}:{r+n-1}]"
    def stamp(k):
        if p.only and k not in [int(x) for x in p.only.split('.')]: return
        if p.stamp: a(f"s_memrealtime s[{sStamp+2*k}:{sStamp+2*k+1}]")
    def cyc(k):
        if p.diag == 5: a(f"s_memtime s[{sStamp+2*k}:{sStamp+2*k+1}]")
    def buildA(dst, x, u):
        for r in range(4):
            a(f"v_and_b32_dpp v{dst+r}, v{x}, v{vM+r} quad_perm:[{u},{u},{u},{u}] row_mask:0xf bank_mask:0xf")
    def mfma(d, A, B, c=None):
        a(f"v_mfma_f32_16x16x32_bf16 {V(d)}, {V(A)}, {V(B)}, {V(d) if c is None else c}")
    def tag4(d):
        for k in range(4):
            a(f"v_mov_b32_sdwa v{d+k}, s{sT[k]} dst_sel:BYTE_0 dst_unused:UNUSED_PRESERVE src0_sel:BYTE_0")
    def chk4(acc, d, first=False):
        for k in range(4):
            if first and k == 0: a(f"v_xor_b32 v{acc}, s{sT[0]}, v{d}")
            else: a(f"v_bitop3_b32 v{acc}, v{acc}, v{d+k}, s{sT[k]} bitop3:0xf6")
    def chkv(acc, d, t, first=False):
        for k in range(4):
            if first and k == 0: a(f"v_xor_b32 v{acc}, v{t}, v{d}")
            else: a(f"v_bitop3_b32 v{acc}, v{acc}, v{d+k}, v{t+k} bitop3:0xf6")
    def poll_begin():
        L = a.newlabel('poll')
        a(f"s_mov_b32 s{sCnt}, 0")
        a.label(L)
        return L
    def poll_end(L, acc, mask, fb=None, lim=None, sleep=0):
        D = a.newlabel('done')
        a(f"v_and_b32 v{acc}, {mask}, v{acc}\nv_cmp_ne_u32 vcc, 0, v{acc}\ns_add_u32 s{sCnt}, s{sCnt}, 1")
        a(f"s_cbranch_vccz {D}")
        if sleep: a(f"s_sleep {sleep}")
        if fb and p.fast:
            regs, delta = fb
            a(f"s_cmp_eq_u32 s{sCnt}, {p.nlocal}\ns_cselect_b32 vcc_lo, {delta}, 0")
            for r in regs: a(f"s_sub_u32 s{r}, s{r}, vcc_lo")
        a(f"s_cmp_lt_u32 s{sCnt}, {lim or p.maxspin}\ns_cbranch_scc1 {L}")
        a.label(D)
    def poll_end_masked(L, acc, mask, sleep=0):
        D = a.newlabel('done')
        a(f"""v_and_b32 v{acc}, {mask}, v{acc}
        v_cmp_ne_u32 vcc, 0, v{acc}
        s_add_u32 s{sCnt}, s{sCnt}, 1
        s_cbranch_vccz {D}
        s_wqm_b64 exec, vcc""")
        if sleep: a(f"s_sleep {sleep}")
        a(f"""s_cmp_lt_u32 s{sCnt}, {p.maxspin}
        s_cbranch_scc1 {L}
        s_mov_b64 exec, -1""")
        a.label(D)
    def spoll_cnt(off_regs, tmp, need):
        L = a.newlabel('sp'); D = a.newlabel('spd')
        a(f"s_mov_b32 s{sCnt}, 0")
        a.label(L)
        for k, r in enumerate(off_regs): a(f"s_load_dword s{tmp+k}, s[{rWS}:{rWS+1}], s{r} glc")
        a(f"s_add_u32 s{sCnt}, s{sCnt}, 1\ns_cmp_ge_u32 s{sCnt}, {p.maxspin}\ns_cbranch_scc1 {D}\ns_mov_b32 vcc_lo, 0\ns_waitcnt lgkmcnt(0)")
        for k, r in enumerate(off_regs): a(f"s_cmp_eq_u32 s{tmp+k}, s{sT[0]}\ns_addc_u32 vcc_lo, vcc_lo, 0")
        a(f"s_cmp_lt_u32 vcc_lo, {need}\ns_cbranch_scc1 {L}")
        a.label(D)
        a("s_waitcnt lgkmcnt(0)")
    def spoll_all(off_regs, tmp):
        L = a.newlabel('sp'); D = a.newlabel('spd')
        a(f"s_mov_b32 s{sCnt}, 0")
        a.label(L)
        for k, r in enumerate(off_regs): a(f"s_load_dword s{tmp+k}, s[{rWS}:{rWS+1}], s{r} glc")
        a(f"s_add_u32 s{sCnt}, s{sCnt}, 1\ns_cmp_ge_u32 s{sCnt}, {p.maxspin}\ns_cbranch_scc1 {D}\ns_waitcnt lgkmcnt(0)")
        for k, r in enumerate(off_regs): a(f"s_cmp_lg_u32 s{tmp+k}, s{sT[0]}\ns_cbranch_scc1 {L}")
        a.label(D)
        a("s_waitcnt lgkmcnt(0)")
    def spoll(off_regs):
        L = a.newlabel('sp'); D = a.newlabel('spd')
        a(f"s_mov_b32 s{sCnt}, 0")
        a.label(L)
        for k, r in enumerate(off_regs): a(f"s_load_dword s{sT0+k}, s[{rWS}:{rWS+1}], s{r} glc")
        a(f"s_add_u32 s{sCnt}, s{sCnt}, 1\ns_waitcnt lgkmcnt(0)")
        for k, r in enumerate(off_regs): a(f"s_cmp_eq_u32 s{sT0+k}, s{sT[0]}\ns_cbranch_scc1 {D}")
        a(f"s_cmp_lt_u32 s{sCnt}, {p.maxspin}\ns_cbranch_scc1 {L}")
        a.label(D)
    def treduce(r):
        a(f"v_permlane32_swap_b32 v{r}, v{r+2}\nv_permlane32_swap_b32 v{r+1}, v{r+3}")
        a(f"v_add_f32 v{r}, v{r}, v{r+2}\nv_add_f32 v{r+1}, v{r+1}, v{r+3}")
        a(f"v_permlane16_swap_b32 v{r}, v{r+1}\nv_add_f32 v{r}, v{r}, v{r+1}")
    def allred_groups(op, r, t):
        a(f"v_mov_b32 v{t}, v{r}\nv_permlane32_swap_b32 v{r}, v{t}\n{op} v{r}, v{r}, v{t}")
        a(f"v_mov_b32 v{t}, v{r}\nv_permlane16_swap_b32 v{r}, v{t}\n{op} v{r}, v{r}, v{t}")
    def masks():
        a(f"""v_and_b32 v9, 3, v{vL}
        v_lshlrev_b32 v9, 4, v9
        v_mov_b32 v10, 0xffff
        v_mov_b32 v11, 0
        v_lshlrev_b64 v[10:11], v9, v[10:11]
        v_and_b32 v9, 4, v{vL}
        v_cmp_eq_u32 vcc, 0, v9
        v_cndmask_b32 v{vM}, 0, v10, vcc
        v_cndmask_b32 v{vM+1}, 0, v11, vcc
        v_cndmask_b32 v{vM+2}, v10, 0, vcc
        v_cndmask_b32 v{vM+3}, v11, 0, vcc""".replace('v_cndmask_b32 v%d, v10, 0, vcc' % (vM+2), 'v_cndmask_b32_e64 v%d, v10, 0, vcc' % (vM+2)).replace('v_cndmask_b32 v%d, v11, 0, vcc' % (vM+3), 'v_cndmask_b32_e64 v%d, v11, 0, vcc' % (vM+3)))
    def xoff(dst):
        a(f"""v_bfe_u32 v{dst}, v{vL}, 3, 1
        v_mul_u32_u24 v{dst}, 1152, v{dst}
        v_and_b32 v9, 3, v{vL}
        v_lshl_add_u32 v{dst}, v9, 3, v{dst}
        v_lshl_add_u32 v{dst}, v{vG}, 1, v{dst}""")
    def epoch_wait():
        a(f"""s_waitcnt lgkmcnt(0)
        s_add_u32 s{sT[0]}, s{sT[0]}, 1
        s_addc_u32 s{sT[0]}, s{sT[0]}, 0
        s_add_u32 s{sT[1]}, s{sT[0]}, 37
        s_add_u32 s{sT[2]}, s{sT[0]}, 74
        s_add_u32 s{sT[3]}, s{sT[0]}, 111""")
    def lsbtags(t, flip=None):
        a(f"""v_and_b32 v{t}, 7, v{vL}
        v_mul_u32_u24 v{t}, 37, v{t}
        v_add_u32 v{t}, s{sT[0]}, v{t}""")
        if flip: a(f"v_xor_b32 v{t}, {flip}, v{t}")
        a(f"""v_and_b32 v{t}, 0xff, v{t}
        v_lshl_or_b32 v{t}, v{t}, 15, v{t}
        v_lshrrev_b32 v{t+1}, 2, v{t}
        v_lshrrev_b32 v{t+2}, 4, v{t}
        v_lshrrev_b32 v{t+3}, 6, v{t}""")
    def decode_v(dst, src, t):
        a(f"""v_lshrrev_b32 v{dst}, 5, v{src}
        v_lshlrev_b32 v{dst}, 7, v{dst}
        v_and_b32 v{t}, 15, v{src}
        v_lshl_add_u32 v{dst}, v{t}, 3, v{dst}
        v_bfe_u32 v{t}, v{src}, 4, 1
        v_lshl_add_u32 v{dst}, v{t}, 2, v{dst}
        v_and_b32 v{t}, 7, v{src}
        v_lshlrev_b32 v{t}, 3, v{t}
        v_bfe_u32 v{t+1}, v{src}, 3, 1
        v_lshl_add_u32 v{t}, v{t+1}, 2, v{t}
        v_add_u32 v{t}, 512, v{t}
        v_cmp_gt_u32 vcc, 128, v{src}
        v_cndmask_b32 v{dst}, v{t}, v{dst}, vcc""")
    def finish(nst):
        if p.stamp == 5:
            a("s_endpgm"); return
        if p.stamp == 3:
            Ls = a.newlabel('noenc'); Lw = a.newlabel('encw')
            a(f"""s_waitcnt lgkmcnt(0)
            s_lshl_b32 s{sT0}, s2, 3
            s_add_u32 s{sT0}, s{sT0}, s{sWave}
            s_cmp_eq_u32 s{sT0}, {p.encwave}
            s_cbranch_scc0 {Ls}
{Lw}:
            s_memrealtime s[{sT0}:{sT1}]
            s_waitcnt lgkmcnt(0)
            s_sub_u32 s{sT0}, s{sT0}, s{sStamp+2*p.enc}
            s_cmp_lt_u32 s{sT0}, 3000
            s_cbranch_scc1 {Lw}
{Ls}:
            s_endpgm""")
            return
        if p.stamp:
            a(f"""s_waitcnt lgkmcnt(0)
            s_lshl_b32 s{sT0}, s2, 3
            s_add_u32 s{sT0}, s{sT0}, s{sWave}
            s_lshl_b32 s{sT0}, s{sT0}, 6
            s_add_u32 s{sT0}, s{sT0}, {STAMP}
            s_mov_b64 exec, 1
            v_mov_b32 v9, 0""")
            for k in range(13):
                a(f"v_mov_b32 v{10+k}, s{sStamp+2*k}\nbuffer_store_dword v{10+k}, v9, {R(rWS)}, s{sT0} offen offset:{4*k}")
        if p.stamp == 2:
            Ls = a.newlabel('nosum')
            a(f"""s_lshl_b32 s{sT0}, s2, 3
            s_add_u32 s{sT0}, s{sT0}, s{sWave}
            s_cmp_eq_u32 s{sT0}, {4 if nst == 'X' else 1024}
            s_cbranch_scc0 {Ls}""")
            srd(rB, 30, 256)
            for n, k in enumerate((1,2,3,4,7,8,9,10) if nst == 'X' else (1,2,3,4,7,8,10,11)):
                a(f"s_sub_u32 s{sT1}, s{sStamp+2*k}, s{sStamp}\nv_mov_b32 v{30+n}, s{sT1}\nbuffer_store_dword v{30+n}, v9, {R(rB)}, 0 offen offset:{4*n + (0 if nst == 'X' else 32)}")
            a.label(Ls)
        a("s_endpgm")

    def slot_store(d, base_s, wave_is_half, toff, local=None):
        tag4(d)
        if wave_is_half: a("s_mov_b32 exec_lo, 0x00ff00ff\ns_mov_b32 exec_hi, 0x00ff00ff")
        if local: a(f"s_add_u32 vcc_lo, s{base_s}, {local}\nbuffer_store_dwordx4 {V(d)}, v{toff}, {R(rWS)}, vcc_lo offen")
        a(f"buffer_store_dwordx4 {V(d)}, v{toff}, {R(rWS)}, s{base_s} offen sc1")
        if wave_is_half: a("s_mov_b64 exec, -1")
    def slot_voff(dst, half):
        a(f"""v_lshrrev_b32 v{dst}, 1, v{vG}
        v_mul_u32_u24 v{dst}, 2304, v{dst}
        v_lshl_add_u32 v{dst}, v{vJ}, 4, v{dst}
        v_and_b32 v9, 1, v{vG}""")
        if half:
            a(f"v_lshl_add_u32 v{dst}, v9, 7, v{dst}\nv_add_u32 v{dst}, 2048, v{dst}")
        else:
            a(f"v_lshl_add_u32 v{dst}, v9, 8, v{dst}\ns_lshl_b32 s{sT0}, s{sWave}, 9\nv_add_u32 v{dst}, s{sT0}, v{dst}")

    def zstamps():
        if p.stamp:
            for k in range(1, 13): a(f"s_mov_b32 s{sStamp+2*k}, 0")
    vXP, vAP, vWP, vDP = 12, 20, 100, 180
    assert p.wsoff == 0
    stamp(0)
    a(f"""s_load_dwordx8 s[36:43], s[0:1], 0
    s_load_dwordx2 s[{rWS}:{rWS+1}], s[0:1], 112
    v_readfirstlane_b32 s{sWave}, v0
    v_and_b32 v{vJ}, 15, v0
    s_lshr_b32 s{sJ}, s2, 5
    s_and_b32 s{sH}, s2, 31""")
    if p.hmix == 1: a(f"s_lshr_b32 s{sT0}, s{sH}, 3\ns_xor_b32 s{sH}, s{sH}, s{sT0}")
    if p.hmix == 2: a(f"s_lshr_b32 s{sT0}, s{sH}, 2\ns_and_b32 s{sT0}, s{sT0}, 6\ns_xor_b32 s{sH}, s{sH}, s{sT0}")
    if p.hmix == 3: a(f"s_lshr_b32 s{sT0}, s{sH}, 3\ns_mul_i32 s{sT0}, s{sT0}, 5\ns_and_b32 s{sT0}, s{sT0}, 7\ns_xor_b32 s{sH}, s{sH}, s{sT0}")
    a(f"""s_mov_b32 s{rWS+3}, 0x20000
    s_lshr_b32 s{sT0}, s2, 8
    s_or_b32 s{sT0}, s{sT0}, s{sWave}
    s_cbranch_scc1 L_rest""")
    a(f"""v_lshrrev_b32 v{vG}, 4, v0
    v_lshlrev_b32 v9, 15, v{vG}
    v_lshl_add_u32 v9, v{vJ}, 4, v9
    v_add_u32 v10, {8192-1024}, v9
    v_add_u32 v11, {2*(8192-1024)}, v9
    v_add_u32 v12, {3*(8192-1024)}, v9
    s_mul_i32 s{sT0}, s{sJ}, {72*32}
    s_add_u32 s{sT0}, s{sT0}, s{sH}
    s_lshl_b32 s{sT0}, s{sT0}, 8
    s_mov_b32 m0, {L_WQ}
    v_lshrrev_b32 v13, 3, v{vJ}
    v_mul_u32_u24 v13, 144, v13
    v_and_b32 v14, 3, v0
    v_lshl_add_u32 v14, v14, 2, v{vG}
    v_add_lshl_u32 v13, v13, v14, 3
    s_mul_i32 s{sT1}, s{sJ}, 144
    s_waitcnt lgkmcnt(0)
    s_movk_i32 s{rA+2}, {SZ['x']}
    s_mov_b32 s{rA+3}, s{rWS+3}
    s_add_u32 s{rB+2}, s{sT0}, {71*8192+256}
    s_mov_b32 s{rB+3}, s{rWS+3}""")
    if p.diag == 2: a(f"s_memrealtime s[{sQ+6}:{sQ+7}]")
    a(f"""buffer_load_dwordx2 v[186:187], v13, {R(rA)}, s{sT1} offen
    buffer_load_dwordx2 v[188:189], v13, {R(rA)}, s{sT1} offen offset:128
L_wq:
    buffer_load_dwordx4 v9, {R(rB)}, s{sT0} offen {nt} lds
    buffer_load_dwordx4 v10, {R(rB)}, s{sT0} offen offset:1024 {nt} lds
    buffer_load_dwordx4 v11, {R(rB)}, s{sT0} offen offset:2048 {nt} lds
    buffer_load_dwordx4 v12, {R(rB)}, s{sT0} offen offset:3072 {nt} lds
    s_addk_i32 m0, 4096
    s_add_u32 s{sT0}, s{sT0}, s{rWS+3}
    s_bitcmp0_b32 m0, 15
    s_cbranch_scc1 L_wq""")
    if p.diag == 2: a(f"s_memrealtime s[{sQ+8}:{sQ+9}]")
    if p.b0pos == 0: a("s_barrier")
    a.label("L_rest")
    a(f"""s_cmp_ge_u32 s{sJ}, 8
    s_cbranch_scc1 L_exit
    s_lshr_b32 s{sWave}, s{sWave}, 6
    v_and_b32 v{vL}, 63, v0
    v_bfe_u32 v{vG}, v0, 4, 2
    v_lshlrev_b32 v{vL16}, 4, v{vL}""")
    if p.prefetch:
        a(f"""s_getpc_b64 s[{sQ}:{sQ+1}]
L_pc:
        s_lshr_b32 s{sQ+2}, s2, 3
        s_lshl_b32 s{sQ+2}, s{sQ+2}, 9
        s_min_u32 s{sQ+2}, s{sQ+2}, L_exit-L_pc-512
        v_add_u32 v249, s{sQ+2}, v{vL16}
        s_cmp_eq_u32 s{sWave}, 2
        s_cbranch_scc0 L_nopf
        s_mov_b64 exec, 0x01010101
        global_load_dword v250, v249, s[{sQ}:{sQ+1}]
        s_mov_b64 exec, -1
L_nopf:""")
    a(f"""s_mov_b32 s{rWS+2}, {WS_REC}
    s_lshl_b32 s{sT0}, s{sH}, 3
    s_add_u32 s{sT0}, s{sT0}, s{sJ}
    s_lshl_b32 s{sT0}, s{sT0}, 10
    s_add_u32 s{sT1}, s{sT0}, {QPL}
    s_and_b32 s{sT2}, s{sWave}, 3
    s_mov_b32 s{rC+3}, s{rWS+3}
    s_cmp_eq_u32 s{sWave}, 3
    s_cselect_b32 exec_lo, 0x01010101, 0
    s_cselect_b32 exec_hi, 0x01010101, 0
    s_waitcnt lgkmcnt(0)""")
    if p.fast: a(f"buffer_load_dword v250, v{vL16}, {R(rWS)}, s{sT1} offen sc1")
    a(f"""s_mov_b64 exec, -1
    s_load_dwordx16 s[4:19], s[0:1], 0
    s_load_dwordx8 s[20:27], s[0:1], 64
    s_load_dwordx4 s[28:31], s[0:1], 96
    s_and_b32 s{sXcd}, s2, 7
    s_bfe_u32 s{sI}, s2, 0x40003
    s_cmp_lt_u32 s{sWave}, 4
    s_cbranch_scc1 L_w03
    s_load_dword s{sT[0]}, s[{rWS}:{rWS+1}], {EPOCH}
    s_cmp_ge_u32 s2, 128
    s_cbranch_scc1 L_Ydma""")
    a(f"""s_lshl_b32 s{sQ}, s{sJ}, 2
    s_add_u32 s{sQ}, s{sQ}, s{sT2}
    s_lshl_b32 s{sQ}, s{sQ}, 10
    s_add_u32 s{sQ}, s{sQ}, s{sH}
    s_lshl_b32 s{sQ}, s{sQ}, 8
    s_lshl_b32 m0, s{sT2}, 13
    v_xor_b32 v19, v{vJ}, v{vG}
    v_lshlrev_b32 v19, 4, v19
    v_lshl_add_u32 v20, v{vG}, 13, v19
    v_xor_b32 v21, 64, v20
    v_xor_b32 v22, 0x80, v20
    v_xor_b32 v23, 0xc0, v20
    v_add_u32 v21, {32768-1024}, v21
    v_add_u32 v22, {2*(32768-1024)}, v22
    v_add_u32 v23, {3*(32768-1024)}, v23
    s_mov_b64 s[{rC}:{rC+1}], s[42:43]
    s_mov_b32 s{rC+2}, {SZ['wuk']}""")
    if p.diag == 2: a(f"s_memrealtime s[{sQ+6}:{sQ+7}]")
    def wuk(n):
        if n == 4: a(f"s_addk_i32 m0, 4096\ns_add_u32 s{sQ}, s{sQ}, {4*32768}")
        a(f"buffer_load_dwordx4 v{20+n%4}, {R(rC)}, s{sQ} offen offset:{1024*(n%4)} {nt} lds")
    if p.xg >= 0:
        epoch_wait()
        a(f"""s_lshl_b32 s{sT3}, s2, 7
        s_add_u32 s{sT3}, s{sT3}, {HK}
        v_mov_b32 v14, s{sT[0]}
        v_lshlrev_b32 v15, 2, v{vL}""")
    a("s_barrier")
    for n in range(p.xpre+1):
        if n == p.xg:
            a(f"""s_cmp_eq_u32 s{sWave}, 4
            s_cselect_b32 exec_lo, 0xffff, 0
            s_mov_b32 exec_hi, 0
            buffer_store_dword v14, v15, {R(rWS)}, s{sT3} offen sc1
            s_mov_b64 exec, -1""")
        if n < p.xpre: wuk(n)
    if p.diag == 2: a(f"s_memrealtime s[{sQ+8}:{sQ+9}]")
    a("s_branch L_X_w47")
    a.label("L_w03")
    a(f"""s_load_dword s{sT[0]}, s[{rWS}:{rWS+1}], {EPOCH}
    s_cmp_eq_u32 s{sWave}, 0
    s_cbranch_scc1 L_p1c
    s_cmp_ge_u32 s2, 128
    s_cbranch_scc1 L_w13
    s_cmp_lg_u32 s{sWave}, 2
    s_cbranch_scc1 L_xb0""")
    if p.warm:
        a(f"""v_mov_b32 v24, 0
        v_mov_b32 v25, 0
        v_mov_b32 v26, 0
        v_mov_b32 v27, 0
        s_mov_b32 exec_hi, 0
        s_lshl_b32 s{sT0}, s{sH}, 2
        s_add_u32 s{sT0}, s{sT0}, s{sJ}
        s_lshl_b32 s{sT1}, s{sT0}, 9
        s_add_u32 s{sT1}, s{sT1}, {ST}
        buffer_store_dwordx4 v[24:27], v{vL16}, {R(rWS)}, s{sT1} offen sc1""")
        if p.warm & 2:
            a(f"""s_lshl_b32 s{sT1}, s{sT0}, 8
            s_add_u32 s{sT1}, s{sT1}, {QL}
            v_lshlrev_b32 v28, 15, v{vG}
            v_lshl_add_u32 v28, v{vJ}, 4, v28
            buffer_store_dwordx4 v[24:27], v28, {R(rWS)}, s{sT1} offen sc1""")
        if p.cflag:
            a(f"""v_lshrrev_b32 v28, 2, v{vL}
            v_mul_u32_u24 v28, {p.cstr}, v28
            v_and_b32 v29, 3, v{vL}
            v_lshl_add_u32 v28, v29, 4, v28
            s_mul_i32 s{sT1}, s2, {8*p.cstr}
            s_add_u32 s{sT1}, s{sT1}, {FP2}
            s_cmp_lt_u32 s2, {p.crep}
            s_cselect_b32 exec_lo, -1, 0
            buffer_store_dwordx4 v[24:27], v28, {R(rWS)}, s{sT1} offen sc1""")
        a(f"""s_lshl_b32 s{sT1}, s2, 7
        s_add_u32 s{sT1}, s{sT1}, {HD}
        s_mov_b32 exec_lo, 0xff
        buffer_store_dwordx4 v[24:27], v{vL16}, {R(rWS)}, s{sT1} offen sc1
        s_mov_b64 exec, -1
""")
    a("L_xb0:\ns_barrier\ns_branch L_w3\nL_p1c:")
    zstamps()
    masks()
    stamp(1)
    if p.diag == 2: a(f"s_mov_b32 s{sStamp+6}, s{sQ+6}\ns_mov_b32 s{sStamp+8}, s{sQ+8}")
    a(f"""s_add_u32 s{sT0}, s{sT0}, {QP}
    s_mov_b32 s{sT2}, 0x01000100
    s_mov_b32 s{sT3}, 0x03020302
    v_add_u32 v190, {L_WQ}, v{vL16}
    s_waitcnt vmcnt(20)""")
    assert p.b0pos == 1 and p.ypre == 0
    a("s_cmp_ge_u32 s2, 128\ns_cbranch_scc1 L_nob0\ns_barrier\nL_nob0:")
    if p.diag == 2: a(f"s_memrealtime s[{sStamp+10}:{sStamp+11}]")
    for k in range(4):
        a(f"v_perm_b32 v{vXP+2*k}, v{186+k}, v{186+k}, s{sT2}\nv_perm_b32 v{vXP+2*k+1}, v{186+k}, v{186+k}, s{sT3}")
    for n in range(20): buildA(vAP+4*n, vXP+(n % 4)+(4 if n >= 16 else 0), (n//4) % 4)
    epoch_wait()
    if p.diag == 2: a(f"s_memrealtime s[{sStamp+12}:{sStamp+13}]")
    G = 4
    for t0 in range(0, 20, G):
        a(f"s_waitcnt vmcnt({20-t0-G})")
        if p.b0pos == 2 + t0//G: a("s_barrier")
        if p.diag == 2 and t0 == 0: a(f"s_memrealtime s[{sStamp+14}:{sStamp+15}]")
        if p.diag == 2 and t0 == 16: a(f"s_memrealtime s[{sStamp+16}:{sStamp+17}]")
        for t in range(t0, t0+G): a(f"ds_read_b128 {V(vWP+4*t)}, v190 offset:{1024*t}")
        if t0:
            a(f"s_waitcnt lgkmcnt({G})")
            for t in range(t0-G, t0): mfma(vDP, vAP+4*t, vWP+4*t, '0' if t == 0 else None)
    for t in range(20-G, 20):
        a(f"s_waitcnt lgkmcnt({19-t})")
        mfma(vDP, vAP+4*t, vWP+4*t)
    tag4(vDP)
    if p.fast: a(f"buffer_store_dwordx4 {V(vDP)}, v{vL16}, {R(rWS)}, s{sT1} offen")
    a(f"buffer_store_dwordx4 {V(vDP)}, v{vL16}, {R(rWS)}, s{sT0} offen sc1")
    stamp(2)
    a(f"""s_barrier
    s_cmp_ge_u32 s2, 128
    s_cbranch_scc1 L_Y_main
    s_branch L_X_main""")

    a.label("L_Ydma")
    sCK = sQ + 11
    if p.kint:
        a(f"""s_bfe_u32 s{sCK}, s2, 0x10006
        s_lshl_b32 s{sCK}, s{sCK}, 4
        s_add_u32 s{sCK}, s{sCK}, s{sT2}
        s_lshl_b32 s{sCK}, s{sCK}, 8
        s_and_b32 vcc_lo, s2, 63
        s_add_u32 s{sCK}, s{sCK}, vcc_lo
        s_lshl_b32 s{sCK}, s{sCK}, 10
        s_lshl_b32 m0, s{sT2}, 12""")
    else:
        a(f"""s_sub_u32 s{sCK}, s2, 128
        s_lshl_b32 s{sCK}, s{sCK}, 16
        s_lshl_b32 m0, s{sT2}, 12
        s_add_u32 s{sCK}, s{sCK}, m0""")
    a(f"""
    s_and_b32 vcc_lo, s{sT2}, 1
    s_lshl_b32 vcc_lo, vcc_lo, 7
    s_lshr_b32 vcc_hi, s{sT2}, 1
    s_lshl_b32 vcc_hi, vcc_hi, 4
    s_or_b32 vcc_lo, vcc_lo, vcc_hi
    v_xor_b32 v216, vcc_lo, v{vL16}
    v_xor_b32 v217, 32, v216
    v_xor_b32 v218, 64, v216
    v_xor_b32 v219, 0x60, v216""")
    if p.kint:
        for n in range(1, 4): a(f"v_add_u32 v{216+n}, {n*(65536-1024)}, v{216+n}")
    a(f"""s_mov_b64 s[{rC}:{rC+1}], s[38:39]
    s_mov_b32 s{rC+2}, {SZ['ckv']}""")
    def ckv(i):
        if i % 4 == 0 and i: a(f"s_add_u32 s{sCK}, s{sCK}, {16*65536 if p.kint else 16384}\ns_add_u32 m0, m0, 16384")
        a(f"buffer_load_dwordx4 v{216+(i&3)}, {R(rC)}, s{sCK} offen offset:{1024*(i%4)} {p.ckvf} lds")
    for i in range(p.ypre): ckv(i)
    zstamps()
    epoch_wait()
    a(f"""s_sub_u32 s{sT3}, s2, 128
    s_lshl_b32 s{sT3}, s{sT3}, 7
    s_add_u32 s{sT3}, s{sT3}, {HG}
    v_mov_b32 v14, s{sT[0]}
    v_lshlrev_b32 v15, 2, v{vL}""")
    if p.xg >= 0:
        a(f"s_cmp_lg_u32 s{sWave}, 4\ns_cbranch_scc1 L_nokg")
        for k in range(p.xgn):
            a(f"s_add_u32 s{sQ+k}, s2, {41*k}\ns_and_b32 s{sQ+k}, s{sQ+k}, 127\ns_lshl_b32 s{sQ+k}, s{sQ+k}, 7\ns_add_u32 s{sQ+k}, s{sQ+k}, {HK}")
        spoll_all([sQ+k for k in range(p.xgn)], sQ+4)
        a.label("L_nokg")
    def uvsetup(r):
        srd(rB, pWUV, 0 if p.nod1 & 8 else SZ['wuv'])
        a(f"""s_sub_u32 s{r}, s{sJ}, 4
        s_lshl_b32 s{r}, s{r}, 20
        s_lshl_b32 s{r+1}, s{sT2}, {18 if p.uvlin else 15}
        s_add_u32 s{r}, s{r}, s{r+1}
        s_lshl_b32 s{r+1}, s{sH}, 8
        s_add_u32 s{r}, s{r}, s{r+1}""")
        if p.uvlin:
            a(f"""s_lshl_b32 s{r+1}, s{sT2}, 6
            s_and_b32 s{r+1}, s{r+1}, 64
            v_and_b32 v9, 1, v{vG}
            v_lshlrev_b32 v9, 3, v9
            v_xor_b32 v9, v9, v{vJ}
            v_lshlrev_b32 v9, 4, v9
            v_xor_b32 v9, s{r+1}, v9
            v_lshl_add_u32 v44, v{vG}, 13, v9
            v_xor_b32 v45, 32, v44""")
        else:
            a(f"""v_lshlrev_b32 v9, 1, v{vG}
            v_xor_b32 v9, v9, v{vJ}
            v_lshlrev_b32 v9, 4, v9
            v_lshl_add_u32 v44, v{vG}, 17, v9
            v_xor_b32 v45, 0x80, v44""")
        a(f"""s_lshl_b32 s{r+1}, s{sT2}, 13
        s_add_u32 s{r+1}, s{r+1}, {L_WUVY}""")
    def uvdma(r, n0, n1):
        if n0 >= n1: return
        a("s_mov_b32 vcc_hi, m0")
        for n in range(n0, n1):
            off = 4*n*8192 if p.uvlin else (64*(n & 1) + (n >> 1))*8192
            a(f"s_add_u32 m0, s{r+1}, {1024*n}\ns_add_u32 vcc_lo, s{r}, {off}")
            a(f"buffer_load_dwordx4 v{44+((n>>2) if p.uvlin else ((n>>1)&1))}, {R(rB)}, vcc_lo offen {nt} lds")
        a("s_mov_b32 m0, vcc_hi")
    uvsetup(sQ)
    a("s_barrier")
    stamp(10)
    uvdma(sQ, 0, p.uv1)
    for i in range(p.ypre, 17):
        if i == p.gate:
            a(f"""s_cmp_eq_u32 s{sWave}, 4
            s_cselect_b32 exec_lo, -1, 0
            s_mov_b32 exec_hi, 0
            buffer_store_dword v14, v15, {R(rWS)}, s{sT3} offen sc1
            s_mov_b64 exec, -1""")
        if i < 16: ckv(i)
    if p.emub:
        a(f"s_sub_u32 s{sCK}, s{sCK}, {3*16*65536}\ns_xor_b32 s{sCK}, s{sCK}, {8*1024}\ns_sub_u32 m0, m0, {3*16384}")
        for i in range(16): ckv(i)
    stamp(1)
    masks()
    a("s_branch L_Y_main")
    a.label("L_w13")
    a(f"""s_cmp_eq_u32 s{sWave}, 1
    s_cbranch_scc1 L_w1""")
    a.label("L_w3")
    if p.stamp == 5:
        a(f"""s_lshl_b32 s{sT0}, s2, 3
        s_add_u32 s{sT0}, s{sT0}, s{sWave}
        s_lshl_b32 s{sT0}, s{sT0}, 6
        s_add_u32 s{sT0}, s{sT0}, {STAMP}
        v_mov_b32 v24, s{sStamp}
        v_mov_b32 v25, 0
        s_waitcnt lgkmcnt(0)
        v_mov_b32 v24, s{sStamp}
        s_cmp_lt_u32 s2, 8
        s_cselect_b32 exec_lo, 1, 0
        s_mov_b32 exec_hi, 0
        buffer_store_dword v24, v25, {R(rWS)}, s{sT0} offen sc1
        s_mov_b64 exec, -1""")
    if p.tlb:
        a(f"""s_cmp_ge_u32 s2, 128
        s_cselect_b32 exec_lo, {7 if p.tlb & 2 else 0}, 0
        s_mov_b32 exec_hi, 0
        v_mul_u32_u24 v22, {63*p.opstr}, v{vL}
        s_mov_b32 s{sT0}, {OP + p.opstr + 32768}
        s_cbranch_execz L_tlbd
        buffer_load_dword v251, v22, {R(rWS)}, s{sT0} offen
L_tlbd:
        s_mov_b64 exec, -1""")
    a.label("L_w23")
    zstamps()
    masks()
    epoch_wait()
    a(f"""s_barrier
    s_waitcnt vmcnt(0)
    s_cmp_ge_u32 s2, 128
    s_cbranch_scc1 L_Y_main
    s_branch L_X_main""")
    a.label("L_w1")
    a(f"""s_movk_i32 s{rA+2}, {SZ['x']}
    s_mov_b32 s{rA+3}, s{rWS+3}
    v_and_b32 v9, 31, v{vL}
    v_mul_u32_u24 v9, 36, v9
    v_lshrrev_b32 v12, 5, v{vL}
    v_mul_u32_u24 v11, 1152, v12
    v_add_u32 v11, v11, v9
    buffer_load_dwordx4 v[20:23], v11, {R(rA)}, 0 offen
    buffer_load_dwordx4 v[24:27], v11, {R(rA)}, 0 offen offset:16
    buffer_load_dword v28, v11, {R(rA)}, 0 offen offset:32
    s_waitcnt lgkmcnt(0)""")
    srd(rB, pGW, SZ['gw'])
    a(f"""buffer_load_dwordx4 v[32:35], v9, {R(rB)}, 0 offen
    buffer_load_dwordx4 v[36:39], v9, {R(rB)}, 0 offen offset:16
    buffer_load_dword v40, v9, {R(rB)}, 0 offen offset:32
    """)
    zstamps()
    masks()
    epoch_wait()
    a(f"""v_mov_b32 v13, 0
    v_lshlrev_b32 v10, 2, v12
    v_add_u32 v10, {L_GATE}, v10
    s_barrier
    s_waitcnt vmcnt(0)""")
    def gatemath():
        for k in range(9): a(f"v_dot2_f32_bf16 v13, v{20+k}, v{32+k}, v13")
        for m in ("quad_perm:[1,0,3,2]", "quad_perm:[2,3,0,1]", "row_half_mirror", "row_mirror"):
            a(f"v_add_f32_dpp v13, v13, v13 {m} row_mask:0xf bank_mask:0xf")
        a(f"""v_mov_b32 v14, v13
        v_permlane16_swap_b32 v13, v14
        v_add_f32 v13, v13, v14
        v_mul_f32 v13, {f2u(-math.log2(math.e))}, v13
        v_exp_f32 v13, v13
        v_add_f32 v13, 1.0, v13
        v_rcp_f32 v13, v13
        ds_write_b32 v10, v13
        s_waitcnt lgkmcnt(0)""")
    gatemath()
    a("s_branch L_Y_main")

    a.label("L_X_w47")
    zstamps()
    masks()
    a("v_mov_b32 v9, v19")
    if p.xg < 0: epoch_wait()
    if p.diag == 2: a(f"s_mov_b32 s{sStamp+10}, s{sQ+6}\ns_mov_b32 s{sStamp+12}, s{sQ+8}")
    a(f"""s_lshl_b32 s{sT0}, s{sH}, 13
    s_lshl_b32 s{sT1}, s{sT2}, 8
    s_add_u32 s{sT0}, s{sT0}, s{sT1}
    s_add_u32 s{sT0}, s{sT0}, {QPL if p.fast else QP}
    s_add_u32 s{sT1}, s{sT0}, 4096
    v_lshlrev_b32 v24, 10, v{vG}
    v_lshl_add_u32 v24, v{vJ}, 4, v24""")
    a(f"""s_lshr_b32 s{sT3}, s{sT2}, 1
    s_lshl_b32 s{sT3}, s{sT3}, 8
    s_bitcmp1_b32 s{sT2}, 0
    s_cselect_b32 vcc_lo, 8, 0
    s_add_u32 s{sT3}, s{sT3}, vcc_lo
    s_add_u32 s{sT3}, s{sT3}, {L_QV}
    v_lshlrev_b32 v25, 4, v{vJ}
    v_lshl_add_u32 v25, v{vG}, 1, v25
    v_add_u32 v25, s{sT3}, v25""")
    a(f"""s_lshl_b32 s{sT3}, s{sT2}, 13
    v_lshl_add_u32 v26, v{vJ}, 8, v9
    v_add_u32 v26, s{sT3}, v26
    v_xor_b32 v27, 64, v26
    v_xor_b32 v28, 0x80, v26
    v_xor_b32 v29, 0xc0, v26""")
    a(f"""v_lshrrev_b32 v30, 3, v{vJ}
    v_lshlrev_b32 v30, 8, v30
    v_lshl_add_u32 v30, v{vG}, 4, v30
    v_add_u32 v30, {L_QV}, v30""")
    a(f"""v_and_b32 v31, 31, v{vL}
    s_lshl_b32 s{sT3}, s{sT2}, 5
    v_add_u32 v31, s{sT3}, v31
    v_bfe_u32 v32, v31, 3, 3
    v_mul_u32_u24 v32, 37, v32
    v_add_u32 v32, s{sT[0]}, v32
    v_and_b32 v33, 7, v31
    v_lshrrev_b32 v32, v33, v32
    v_and_b32 v32, 1, v32
    v_lshlrev_b32 v32, 16, v32
    v_xor_b32 v33, 0x10000, v32
    v_lshlrev_b32 v31, 1, v31
    v_lshrrev_b32 v34, 5, v{vL}
    v_lshl_add_u32 v31, v34, 15, v31
    s_lshl_b32 s{sT3}, s{sH}, 10
    s_lshl_b32 vcc_lo, s{sJ}, 8
    s_add_u32 s{sT3}, s{sT3}, vcc_lo
    s_add_u32 s{sT3}, s{sT3}, {QL}
    v_mov_b32 v35, 0xfffe0000
    s_lshr_b32 s{sQ+2}, s{sH}, 2
    s_mul_i32 s{sQ+2}, s{sQ+2}, {p.cstr}
    s_and_b32 vcc_lo, s{sH}, 3
    s_lshl_b32 vcc_lo, vcc_lo, 2
    s_add_u32 vcc_lo, vcc_lo, s{sJ}
    s_lshl_b32 vcc_lo, vcc_lo, 2
    s_add_u32 s{sQ+2}, s{sQ+2}, vcc_lo
    s_add_u32 s{sQ+2}, s{sQ+2}, {FP2 + 0x80000}
    v_mul_u32_u24 v104, {8*p.cstr}, v{vL}
    v_mov_b32 v105, s{sT[0]}
    s_barrier""")
    stamp(1)
    for n in range(p.xpre, 8): wuk(n)
    a(f"s_waitcnt vmcnt({p.pollA_wait})")
    stamp(2)
    L = poll_begin()
    a(f"""buffer_load_dwordx4 v[36:39], v24, {R(rWS)}, s{sT0} offen sc1
    buffer_load_dwordx4 v[40:43], v24, {R(rWS)}, s{sT1} offen sc1
    s_waitcnt vmcnt(1)""")
    chk4(44, 36, True)
    a("s_waitcnt vmcnt(0)")
    chk4(44, 40)
    if p.diag == 4: a(f"s_cmp_eq_u32 s{sCnt}, 0\ns_cbranch_scc0 L_d4\ns_memrealtime s[{sStamp+12}:{sStamp+13}]\nL_d4:")
    poll_end(L, 44, '0xff', ((sT0, sT1), QPL-QP))
    if p.stamp: a(f"s_mov_b32 s{sStamp+24}, s{sCnt}")
    stamp(3)
    for tl in range(2):
        for ks in range(4):
            a(f"ds_read_b128 {V(48+16*tl+4*ks)}, v{26+ks} offset:{4096*tl}")
    for k in range(4): a(f"v_add_f32 v{36+k}, v{36+k}, v{40+k}")
    treduce(36)
    a(f"""v_cvt_pk_bf16_f32 v36, v36, v36
    ds_write_b16 v25, v36
    s_waitcnt lgkmcnt(0)
    s_barrier""")
    if p.diag == 4: stamp(7)
    for ks in range(4): a(f"ds_read_b128 {V(80+4*ks)}, v30 offset:{64*ks}")
    if p.bflag == 1:
        a(f"""s_cmp_eq_u32 s{sWave}, 4
        s_cselect_b32 exec_lo, 0xffff, 0
        s_mov_b32 exec_hi, 0
        buffer_store_dword v105, v104, {R(rWS)}, s{sQ+2} offen sc1
        s_mov_b64 exec, -1""")
    for ks in range(4):
        a(f"s_waitcnt lgkmcnt({3-ks})")
        mfma(96, 80+4*ks, 48+4*ks, '0' if ks == 0 else None)
        mfma(100, 80+4*ks, 64+4*ks, '0' if ks == 0 else None)
    a(f"""s_mov_b32 vcc_lo, 0xffff0000
    s_mov_b32 vcc_hi, 0xffff0000
    v_cndmask_b32 v96, v96, v100, vcc
    v_mul_f32 v96, {f2u(128**-0.5*math.log2(math.e))}, v96
    v_add_u32 v96, v96, v33
    v_and_or_b32 v96, v96, v35, v32
    buffer_store_short_d16_hi v96, v31, {R(rWS)}, s{sT3} offen sc1""")
    if p.bflag == 2:
        a(f"""s_cmp_eq_u32 s{sWave}, 4
        s_cselect_b32 exec_lo, 0xffff, 0
        s_mov_b32 exec_hi, 0
        buffer_store_dword v105, v104, {R(rWS)}, s{sQ+2} offen sc1
        s_mov_b64 exec, -1""")
    stamp(4)

    a.label("L_X_main")
    sX = sQ + 9
    a(f"s_mul_i32 s{sT0}, s{sI}, 9\nv_add_u32 v9, s{sT0}, v{vJ}")
    decode_v(139, 9, 10)
    a(f"""s_mul_i32 s{sT0}, s{sXcd}, 576
    v_add_u32 v139, s{sT0}, v139
    v_mul_u32_u24 v10, 1152, v139""")
    for t in range(9): a(f"v_readlane_b32 s{sQ+t}, v10, {t}")
    a(f"""v_bfe_u32 v9, v{vL}, 3, 1
    v_lshlrev_b32 v135, 2, v{vL}
    v_lshlrev_b32 v136, 2, v9
    v_add_u32 v136, {L_GATE}, v136
    v_mov_b32 v137, s{sT[0]}
    v_mov_b32 v138, 0
    v_mov_b32 v133, 0
    v_and_b32 v132, 3, v{vL}
    v_lshl_add_u32 v134, v132, 2, v{vG}
    v_lshlrev_b32 v134, 2, v134
    v_mul_u32_u24 v9, 192, v9
    v_add_u32 v134, v134, v9
    v_add_u32 v134, {L_HX}, v134
    v_mul_u32_u24 v132, 37, v132
    v_add_u32 v132, s{sT[0]}, v132
    s_lshl_b32 s{sX}, s{sH}, 2
    s_add_u32 s{sX}, s{sX}, s{sJ}
    s_mul_i32 s{sX+2}, s{sX}, {32*1152}
    s_lshl_b32 s{sX}, s{sX}, 10
    s_add_u32 s{sX}, s{sX}, {CXL if p.fast else CX}
    s_mul_i32 s{sX+1}, s2, 4608
    s_add_u32 s{sX+1}, s{sX+1}, {FP}""")
    if p.p5h: a(f"v_mov_b32 v9, {L_RED}\nds_write_b32 v9, v138\ns_waitcnt lgkmcnt(0)")
    srd(rA, pX, SZ['x'])
    xoff(12)
    a(f"""s_cmp_ge_u32 s{sWave}, 4
    s_cbranch_scc1 L_X_b2
    s_barrier""")
    if p.tlb:
        a(f"""s_cmp_lg_u32 s{sWave}, 3
        s_cbranch_scc1 L_X_notlb
        s_mov_b64 exec, 7
        v_lshlrev_b32 v22, 21, v{vL}
        global_load_dword v252, v22, s[{pW1}:{pW1+1}]
        global_load_dword v253, v22, s[{pW2}:{pW2+1}]
        global_load_dword v254, v22, s[{pWO}:{pWO+1}]
        s_mov_b64 exec, -1
L_X_notlb:""")
    if p.qpf:
        a(f"""s_cmp_lg_u32 s{sWave}, 1
        s_cbranch_scc1 L_X_noqpf
        s_lshl_b32 s{sT0}, s{sI}, 12
        s_add_u32 s{sT0}, s{sT0}, {QL}""")
        lsbtags(40)
        if p.qpfs: a(f"s_sleep {p.qpfs}")
        L = poll_begin()
        for n in range(4): a(f"buffer_load_dwordx4 {V(20+4*n)}, v{vL16}, {R(rWS)}, s{sT0} offen offset:{1024*n} sc1")
        a("s_mov_b64 exec, -1\ns_waitcnt vmcnt(0)")
        for n in range(4): chkv(9, 20+4*n, 40, n == 0)
        sv = p.maxspin; p.maxspin = p.qpf
        poll_end_masked(L, 9, '0x10001')
        p.maxspin = sv
        a.label("L_X_noqpf")
    if p.gate >= 0:
        a(f"""s_cmp_lg_u32 s{sWave}, 0
        s_cbranch_scc1 L_X_b2
        s_lshl_b32 s{sT2}, s2, 7
        s_add_u32 s{sT2}, s{sT2}, {HG}
        s_xor_b32 s{sT3}, s{sT2}, {43*128}""")
        if p.gand:
            for k in range(p.gand):
                a(f"s_add_u32 s{6+k}, s2, {43*k}\ns_and_b32 s{6+k}, s{6+k}, 127\ns_lshl_b32 s{6+k}, s{6+k}, 7\ns_add_u32 s{6+k}, s{6+k}, {HG}")
            spoll_all([6+k for k in range(p.gand)], sT0)
        else:
            spoll((sT2, sT3))
        stamp(3)
    a.label("L_X_b2")
    a("s_barrier")
    a(f"""s_cmp_ge_u32 s{sWave}, 5
    s_cbranch_scc1 L_X_fg""")
    vXF, vAF, vWF, vDF, vWO, vW2 = 13, 20, 60, 100, 140, 176
    srd(rB, pW1, 0 if p.nod1 & 4 else SZ['w1'])
    a(f"s_mul_i32 s{sT1}, s{sI}, 72")
    for v in range(3): a(f"buffer_load_ushort v{vXF+v}, v12, {R(rA)}, s{sT1} offen offset:{32*v}")
    srd(rA, pW2, 0 if p.nod1 & 1 else SZ['w2'])
    srd(rC, pWO, 0 if p.nod1 & 2 else SZ['wo'])
    a(f"""s_mul_i32 s{sT0}, s{sI}, {36*9216}
    s_mul_i32 s{sT1}, s{sXcd}, 1152
    s_add_u32 s{sT0}, s{sT0}, s{sT1}
    s_lshl_b32 s{sT1}, s{sWave}, 8
    s_add_u32 s{sT0}, s{sT0}, s{sT1}
    v_mul_u32_u24 v10, 9216, v{vG}
    v_mul_u32_u24 v17, 1152, v{vG}
    v_add_u32 v17, s{sT1}, v17
    v_add_u32 v16, s{sT1}, v10
    s_lshl_b32 s{sT2}, s{sXcd}, 4
    s_add_u32 s{sT2}, s{sT2}, s{sI}
    s_mul_i32 s{sT2}, s{sT2}, 4608
    s_add_u32 s{sT2}, s{sT2}, {HP}
    s_cmp_eq_u32 s{sWave}, 4
    s_cbranch_scc1 L_X_f1half
    v_lshl_add_u32 v10, v{vJ}, 4, v10
    v_lshl_add_u32 v16, v{vJ}, 4, v16
    v_lshl_add_u32 v17, v{vJ}, 4, v17""")
    def wo_full():
        for t in range(8):
            if t == 4: a(f"s_add_u32 s{sX+2}, s{sX+2}, {4*1152}")
            if t == p.fmid: a("s_barrier\ns_barrier")
            a(f"buffer_load_dwordx4 {V(vWO+4*t)}, v16, {R(rC)}, s{sX+2} offen offset:{1152*(t&3)} {nt}")
    def wo_half():
        for n in range(4):
            if n == 2: a(f"s_add_u32 s{sX+2}, s{sX+2}, {4*1152}")
            if p.fmid < 8 and n == p.fmid//2: a("s_barrier\ns_barrier")
            a(f"buffer_load_dwordx4 {V(vWO+4*n)}, v16, {R(rC)}, s{sX+2} offen offset:{2304*(n&1)} {nt}")
    for t in range(9):
        if p.xramp and p.xramp <= t <= p.xrn: a(f"s_waitcnt vmcnt({p.xramp-1})")
        a(f"buffer_load_dwordx4 {V(vWF+4*t)}, v10, {R(rB)}, s{sT0} offen {nt}")
        if t < 8: a(f"s_add_u32 s{sT0}, s{sT0}, {4*9216}")
    def w2_full():
        for t in range(9): a(f"buffer_load_dwordx4 {V(vW2+4*t)}, v17, {R(rA)}, s{sQ+t} offen {nt}")
    if p.xord < 2: w2_full()
    elif p.xord == 2: a("s_barrier")
    ex = {0: 17, 1: 9, 2: 0, 3: 0}[p.xord]
    if p.xord == 0: wo_full()
    slot_voff(138, False)
    a(f"s_waitcnt vmcnt({9+ex})")
    for v in range(3): a(f"v_lshl_or_b32 v{vXF+v}, v{vXF+v}, 16, v{vXF+v}")
    for t in range(9): buildA(vAF+4*t, vXF+t//4, t % 4)
    for t in range(9):
        a(f"s_waitcnt vmcnt({8 if p.xord == 3 else 8-t+ex})")
        mfma(vDF, vAF+4*t, vWF+4*t, '0' if t == 0 else None)
        if p.xord == 3 and t < 8: a(f"buffer_load_dwordx4 {V(vW2+4*t)}, v17, {R(rA)}, s{sQ+t} offen {nt}")
    if not p.nof: slot_store(vDF, sT2, False, 138, HPL-HP if p.floc else None)
    if p.xord == 3: a(f"buffer_load_dwordx4 {V(vW2+32)}, v17, {R(rA)}, s{sQ+8} offen {nt}")
    stamp(5)
    if p.fpos == 0: a("s_barrier")
    if p.xord in (1, 3): wo_full()
    if p.fpos == 1: a("s_barrier")
    if p.xord == 2: w2_full()
    a("s_branch L_X_o2")
    a.label("L_X_f1half")
    a(f"""v_and_b32 v9, 7, v{vJ}
    v_lshl_add_u32 v10, v9, 4, v10
    v_lshl_add_u32 v16, v9, 4, v16
    v_lshl_add_u32 v17, v9, 4, v17
    v_lshrrev_b32 v9, 3, v{vJ}
    v_mul_u32_u24 v11, {4*9216}, v9
    v_add_u32 v10, v10, v11
    v_mul_u32_u24 v11, 1152, v9
    v_add_u32 v16, v16, v11""")
    for n in range(5):
        if n == 4: a("s_mov_b32 exec_lo, 0x00ff00ff\ns_mov_b32 exec_hi, 0x00ff00ff")
        if p.xramp and n in (1, 2): a("s_waitcnt vmcnt(0)")
        a(f"buffer_load_dwordx4 {V(vWF+4*n)}, v10, {R(rB)}, s{sT0} offen {nt}")
        if n < 4: a(f"s_add_u32 s{sT0}, s{sT0}, {8*9216}")
    a("s_mov_b64 exec, -1")
    def w2_half():
        a("s_mov_b32 exec_lo, 0x00ff00ff\ns_mov_b32 exec_hi, 0x00ff00ff")
        a(f"buffer_load_dwordx4 {V(vW2+16)}, v17, {R(rA)}, s{sQ+8} offen {nt}")
        a("s_mov_b64 exec, -1\ns_mov_b32 vcc_lo, 0xff00ff00\ns_mov_b32 vcc_hi, 0xff00ff00")
        for n in range(4):
            a(f"v_mov_b32 v18, s{sQ+2*n}\nv_mov_b32 v19, s{sQ+2*n+1}\nv_cndmask_b32 v18, v18, v19, vcc\nv_add_u32 v18, v18, v17")
            a(f"buffer_load_dwordx4 {V(vW2+4*n)}, v18, {R(rA)}, 0 offen {nt}")
    if p.xord < 2: w2_half()
    elif p.xord == 2: a("s_barrier")
    ex = {0: 9, 1: 5, 2: 0, 3: 0}[p.xord]
    if p.xord == 0: wo_half()
    slot_voff(138, True)
    a(f"s_waitcnt vmcnt({5+ex})")
    for v in range(3): a(f"v_lshl_or_b32 v{vXF+v}, v{vXF+v}, 16, v{vXF+v}")
    for t in range(9): buildA(vAF+4*t, vXF+t//4, t % 4)
    for n in range(5):
        a(f"s_waitcnt vmcnt({4-n+ex})")
        mfma(vDF, vAF+8*n, vWF+4*n, '0' if n == 0 else None)
        if n < 4: mfma(vDF+4, vAF+8*n+4, vWF+4*n, '0' if n == 0 else None)
    for r in range(4): a(f"v_add_f32_dpp v{vDF+r}, v{vDF+4+r}, v{vDF+r} row_ror:8 row_mask:0xf bank_mask:0xf")
    if not p.nof: slot_store(vDF, sT2, True, 138, HPL-HP if p.floc else None)
    if p.xord == 3: w2_half()
    stamp(5)
    if p.fpos == 0: a("s_barrier")
    if p.xord in (1, 3): wo_half()
    if p.fpos == 1: a("s_barrier")
    if p.xord == 2: w2_half()
    a.label("L_X_o2")
    if p.fdel and p.fmid >= 8: a("s_barrier")
    vA2, vD2 = 20, 60
    a(f"""ds_read_b32 v136, v136
    s_lshl_b32 s{sT3}, s2, 7
    s_add_u32 s{sT3}, s{sT3}, {HD}
    s_barrier""")
    stamp(8)
    for v in range(3): a(f"ds_read_b32 v{68+v}, v134 offset:{64*v}")
    a("s_waitcnt lgkmcnt(0)")
    for t in range(9): buildA(vA2+4*t, 68+t//4, t % 4)
    a(f"""s_waitcnt vmcnt({8 if p.xord in (1, 3) else 0})
    s_cmp_eq_u32 s{sWave}, 4
    s_cbranch_scc1 L_X_half2""")
    if p.xord == 2:
        for t in range(8): a(f"ds_read_b128 {V(vWO+4*t)}, v16 offset:{1152*t}")
    for t in range(9): mfma(vD2, vA2+4*t, vW2+4*t, '0' if t == 0 else None)
    if p.p5h:
        a(f"""s_cmp_lg_u32 s{sWave}, 0
        s_cbranch_scc1 L_X_o3
        v_mov_b32 v9, {L_RED}
        s_mov_b32 s{sCnt}, 0
L_X_hw:
        ds_read_b32 v10, v9
        s_add_u32 s{sCnt}, s{sCnt}, 1
        s_cmp_ge_u32 s{sCnt}, {16*p.maxspin}
        s_cbranch_scc1 L_X_hwd
        s_waitcnt lgkmcnt(0)
        v_cmp_ne_u32 vcc, s{sT[0]}, v10
        s_cbranch_vccnz L_X_hw
L_X_hwd:""")
        for n in range(5): a(f"ds_read_b128 {V(108+4*n)}, v{vL16} offset:{1024*n}")
        slot_voff(133, True)
    a("s_branch L_X_o3")
    a.label("L_X_half2")
    a("s_waitcnt vmcnt(4)")
    if p.xord == 2:
        for n in range(4): a(f"ds_read_b128 {V(vWO+4*n)}, v16 offset:{2304*n}")
    for n in range(5):
        mfma(vD2, vA2+8*n, vW2+4*n, '0' if n == 0 else None)
        if n < 4: mfma(vD2+4, vA2+8*n+4, vW2+4*n, '0' if n == 0 else None)
    if p.p5h:
        for r in range(4): a(f"v_add_f32_dpp v{vD2+r}, v{vD2+4+r}, v{vD2+r} row_ror:8 row_mask:0xf bank_mask:0xf")
        a(f"ds_write_b128 v{vL16}, {V(vD2)} offset:4096\ns_waitcnt vmcnt(0)")
        for n in range(4): a(f"ds_write_b128 v{vL16}, {V(vWO+4*n)} offset:{1024*n}")
        a(f"v_mov_b32 v9, {L_RED}\ns_waitcnt lgkmcnt(0)\nds_write_b32 v9, v137\ns_branch L_X_end")
    a.label("L_X_o3")
    a("s_waitcnt lgkmcnt(0)")
    stamp(9)
    L = poll_begin()
    for cq in range(4): a(f"buffer_load_dword v{72+cq}, v135, {R(rWS)}, s{sX} offen offset:{256*cq} sc1")
    a("s_waitcnt vmcnt(0)")
    a("v_xor_b32 v76, v132, v72")
    for cq in range(1, 4): a(f"v_bitop3_b32 v76, v76, v{72+cq}, v132 bitop3:0xf6")
    poll_end(L, 76, '0xff', ((sX,), CXL-CX), sleep=p.asleep)
    stamp(10)
    def dflag():
        a(f"""s_cmp_eq_u32 s{sWave}, 1
        s_cselect_b32 exec_lo, 0xffff, 0
        s_mov_b32 exec_hi, 0
        buffer_store_dword v137, v135, {R(rWS)}, s{sT3} offen sc1
        s_mov_b64 exec, -1""")
    if p.dflag == 3: dflag()
    a(f"""v_add_f32 v72, v72, v73
    v_add_f32 v74, v74, v75
    v_add_f32 v72, v72, v74
    v_mul_f32 v72, v72, v136
    v_cvt_pk_bf16_f32 v72, v72, v72
    v_mov_b32 v73, v72
    v_mov_b32 v74, v72
    v_mov_b32_dpp v73, v72 row_shr:4 row_mask:0xf bank_mask:0xa
    v_mov_b32_dpp v74, v72 row_shl:4 row_mask:0xf bank_mask:0x5
    s_cmp_eq_u32 s{sWave}, {0 if p.p5h else 4}
    s_cbranch_scc1 L_X_half3""")
    for t in range(8):
        buildA(vA2+4*t, 73+t//4, t % 4)
        if t > 0: mfma(vD2, vA2+4*(t-1), vWO+4*(t-1))
    mfma(vD2, vA2+28, vWO+28)
    slot_store(vD2, sX+1, False, 138)
    def qclean(w):
        a(f"""s_lshl_b32 vcc_lo, s{sH}, 3
        s_add_u32 vcc_lo, vcc_lo, s{sJ}
        s_lshl_b32 vcc_lo, vcc_lo, 10
        s_add_u32 vcc_lo, vcc_lo, {QPL}
        s_cmp_eq_u32 s{sWave}, {w}
        s_cselect_b64 exec, -1, 0
        buffer_store_dwordx4 v[4:7], v{vL16}, {R(rWS)}, vcc_lo offen sc1
        s_mov_b64 exec, -1""")
    if p.clean & 1: a(f"s_add_u32 vcc_lo, s{sT2}, {HPL-HP}\nbuffer_store_dwordx4 {V(vDF)}, v138, {R(rWS)}, vcc_lo offen sc1")
    if p.clean & 2: qclean(2)
    if p.dflag == 4: dflag()
    a("s_branch L_X_end")
    a.label("L_X_half3")
    if p.p5h:
        for t in range(9):
            if t < 8: buildA(vA2+4*t, 73+t//4, t % 4)
            if t > 0:
                u = t - 1
                mfma(124+4*(u & 1), vA2+4*u, 108+4*(u//2), '0' if u == 1 else None)
                mfma(vD2, vA2+4*u, vWO+4*u)
        for r in range(4): a(f"v_add_f32_dpp v{124+r}, v{128+r}, v{124+r} row_ror:8 row_mask:0xf bank_mask:0xf")
        slot_store(vD2, sX+1, False, 138)
        slot_store(124, sX+1, True, 133)
        a("s_branch L_X_end")
    else:
        for t in range(8):
            buildA(vA2+4*t, 73+t//4, t % 4)
            if t > 0: mfma(vD2+4*((t-1) & 1), vA2+4*(t-1), vWO+4*((t-1)//2))
        mfma(vD2+4, vA2+28, vWO+12)
        for r in range(4): a(f"v_add_f32_dpp v{vD2+r}, v{vD2+4+r}, v{vD2+r} row_ror:8 row_mask:0xf bank_mask:0xf")
        slot_store(vD2, sX+1, True, 138)
        if p.clean & 1: a(f"s_add_u32 vcc_lo, s{sT2}, {HPL-HP}\ns_mov_b32 exec_lo, 0x00ff00ff\ns_mov_b32 exec_hi, 0x00ff00ff\nbuffer_store_dwordx4 {V(vDF)}, v138, {R(rWS)}, vcc_lo offen sc1\ns_mov_b64 exec, -1")
        a("s_branch L_X_end")
    a.label("L_X_fg")
    a(f"""s_cmp_eq_u32 s{sWave}, 7
    s_cbranch_scc1 L_X_fg7""")
    srd(rB, pB1, SZ['b1'])
    a(f"""s_sub_u32 s{sT2}, s{sWave}, 5
    s_mul_i32 s{sT0}, s{sXcd}, {16*4608}
    s_mul_i32 s{sT1}, s{sT2}, 2304
    s_add_u32 s{sT0}, s{sT0}, s{sT1}
    s_mul_i32 s{sT1}, s{sI}, 144
    s_add_u32 s{sT0}, s{sT0}, s{sT1}
    s_add_u32 s{sT0}, s{sT0}, {HPL if p.floc else HP}
    s_add_u32 s{sQ}, s{sT0}, {4*4608}
    s_add_u32 s{sQ+1}, s{sT0}, {8*4608}
    s_add_u32 s{sQ+2}, s{sT0}, {12*4608}
    v_mul_u32_u24 v10, 4608, v{vG}
    v_lshl_add_u32 v10, v{vJ}, 4, v10
    v_add_u32 v14, v139, v{vG}
    v_lshlrev_b32 v14, 1, v14
    s_lshl_b32 s{sT1}, s{sT2}, 2
    s_add_u32 s{sT1}, s{sT1}, {L_GATE}
    v_mov_b32 v16, s{sT1}
    s_mul_i32 s{sT1}, s{sT2}, 192
    s_add_u32 s{sT1}, s{sT1}, {L_HX}
    v_lshl_add_u32 v17, v{vJ}, 2, v{vG}
    v_lshlrev_b32 v17, 2, v17
    v_add_u32 v17, s{sT1}, v17
    s_mov_b32 exec_lo, 0x01ff01ff
    s_mov_b32 exec_hi, 0x01ff01ff
    buffer_load_ushort v15, v14, {R(rB)}, 0 offen""")
    def floads():
        for k, s in enumerate((sT0, sQ, sQ+1, sQ+2)):
            if not p.nof: a(f"buffer_load_dwordx4 {V(20+4*k)}, v10, {R(rWS)}, s{s} offen sc1")
    if p.xord == 2: a("s_barrier")
    if p.fdel: a("s_barrier")
    a("s_barrier\nds_read_b32 v16, v16")
    if p.fmid < 8:
        floads()
        Lf = a.newlabel('fchk')
        a(f"s_barrier\ns_mov_b32 s{sCnt}, 0\ns_branch {Lf}")
        L = a.newlabel('poll'); a.label(L)
        floads()
        a.label(Lf)
    else:
        L = poll_begin()
        floads()
    for k in range(4):
        a(f"s_waitcnt vmcnt({3-k})")
        chk4(36, 20+4*k, k == 0)
    poll_end(L, 36, '0' if p.nof else '0xff', ((sT0, sQ, sQ+1, sQ+2), HPL-HP) if p.floc else None, sleep=p.fsleep)
    stamp(8)
    a("s_mov_b64 exec, -1")
    for k in range(4): a(f"v_add_f32 v{20+k}, v{20+k}, v{24+k}\nv_add_f32 v{28+k}, v{28+k}, v{32+k}")
    for k in range(4): a(f"v_add_f32 v{20+k}, v{20+k}, v{28+k}")
    treduce(20)
    c1 = -2*math.sqrt(2/math.pi)*math.log2(math.e)
    a(f"""v_lshlrev_b32 v15, 16, v15
    v_add_f32 v20, v20, v15
    v_mul_f32 v21, v20, v20
    v_mov_b32 v22, {f2u(c1)}
    v_fmac_f32 v22, {f2u(c1*0.044715)}, v21
    v_mul_f32 v21, v22, v20
    v_exp_f32 v21, v21
    v_add_f32 v21, 1.0, v21
    v_rcp_f32 v21, v21
    s_waitcnt lgkmcnt(0)
    v_sub_f32 v16, 1.0, v16
    v_mul_f32 v20, v20, v21
    v_mul_f32 v20, v20, v16
    v_cvt_pk_bf16_f32 v20, v20, v20
    s_mov_b32 exec_lo, 0x01ff01ff
    s_mov_b32 exec_hi, 0x01ff01ff
    ds_write_b32 v17, v20
    s_mov_b64 exec, -1
    s_waitcnt lgkmcnt(0)""")
    a("s_branch L_X_fgend")
    a.label("L_X_fg7")
    if p.floc:
        a(f"""s_lshl_b32 s{sT2}, s{sXcd}, 4
        s_add_u32 s{sT2}, s{sT2}, s{sI}
        s_mul_i32 s{sT2}, s{sT2}, 4608
        s_add_u32 s{sT2}, s{sT2}, {HPL}
        v_lshlrev_b32 v41, 7, v{vL}
        s_mov_b32 exec_hi, 15
        buffer_load_dword v42, v41, {R(rWS)}, s{sT2} offen sc1
        s_mov_b64 exec, -1""")
    srd(rB, pGW, SZ['gw'])
    a(f"""v_and_b32 v9, 31, v{vL}
    v_mul_u32_u24 v9, 36, v9
    v_lshrrev_b32 v12, 5, v{vL}
    v_mul_u32_u24 v11, 1152, v12
    v_add_u32 v11, v11, v9
    buffer_load_dwordx4 v[20:23], v11, {R(rA)}, 0 offen
    buffer_load_dwordx4 v[24:27], v11, {R(rA)}, 0 offen offset:16
    buffer_load_dword v28, v11, {R(rA)}, 0 offen offset:32
    buffer_load_dwordx4 v[32:35], v9, {R(rB)}, 0 offen
    buffer_load_dwordx4 v[36:39], v9, {R(rB)}, 0 offen offset:16
    buffer_load_dword v40, v9, {R(rB)}, 0 offen offset:32
    v_mov_b32 v13, 0
    v_lshlrev_b32 v10, 2, v12
    v_add_u32 v10, {L_GATE}, v10
    s_waitcnt vmcnt(0)""")
    gatemath()
    if p.fast:
        a(f"""s_mov_b32 exec_lo, 0x01010101
        s_mov_b32 exec_hi, 0x01010101
        buffer_load_dword v20, v{vL16}, {R(rWS)}, s{sX} offen sc1
        s_mov_b64 exec, -1""")
    if p.wogate:
        for k in range(p.wogate):
            a(f"s_add_u32 s{4+k}, s2, {53*k+11}\ns_and_b32 s{4+k}, s{4+k}, 127\ns_lshl_b32 s{4+k}, s{4+k}, 8\ns_add_u32 s{4+k}, s{4+k}, {HC + (128 if p.wgpos == 0 else 64)}")
        spoll_all([4+k for k in range(p.wogate)], 8)
    if p.xord == 2:
        srd(rC, pWO, 0 if p.nod1 & 2 else SZ['wo'])
        a("s_mov_b32 m0, 0\ns_barrier")
        for n in range(36):
            if n % 4 == 0 and n: a(f"s_addk_i32 m0, 4096\ns_add_u32 s{sX+2}, s{sX+2}, 4096")
            if n == p.wosplit: a("s_barrier")
            a(f"buffer_load_dwordx4 v{vL16}, {R(rC)}, s{sX+2} offen offset:{1024*(n%4)} {nt} lds")
        if p.wosplit >= 36: a("s_barrier")
        a("s_waitcnt vmcnt(0)\ns_branch L_X_fgend")
    a("s_barrier")
    if p.fflag:
        a(f"""s_lshl_b32 s{sT3}, s2, 7
        s_add_u32 s{sT3}, s{sT3}, {HD+64}
        s_mov_b64 exec, 0xffff
        buffer_store_dword v137, v135, {R(rWS)}, s{sT3} offen sc1
        s_mov_b64 exec, -1
        s_lshl_b32 s{sT3}, s{sXcd}, 7
        s_add_u32 s{sT3}, s{sT3}, {HD+64}
        s_add_u32 s{sQ}, s{rWS}, s{sT3}
        s_addc_u32 s{sQ+1}, s{rWS+1}, 0
        s_mov_b32 s{sCnt}, 0
L_ff:""")
        for k in range(16): a(f"s_load_dword s{4+k}, s[{sQ}:{sQ+1}], {1024*k} glc")
        a(f"s_add_u32 s{sCnt}, s{sCnt}, 1\ns_cmp_ge_u32 s{sCnt}, {p.maxspin}\ns_cbranch_scc1 L_ffd\ns_waitcnt lgkmcnt(0)")
        for k in range(16): a(f"s_cmp_lg_u32 s{4+k}, s{sT[0]}\ns_cbranch_scc1 L_ff")
        a("L_ffd:\ns_waitcnt lgkmcnt(0)")
    if p.fdel: a("s_barrier")
    if p.fmid < 8: a("s_barrier")
    a("s_waitcnt vmcnt(0)")
    a.label("L_X_fgend")
    a("s_barrier")
    a.label("L_X_end")
    stamp(11)
    finish('X')

    a.label("L_Y_main")
    vQA, vPA, vSF, vPF, vACC = 20, 36, 48, 112, 176
    vTG, vTO = 208, 212
    vQG = 216
    a(f"""s_and_b32 s{sT2}, s{sWave}, 3
    s_lshr_b32 s{sT3}, s{sWave}, 2
    v_and_b32 v9, 7, v{vJ}
    v_lshlrev_b32 v9, 1, v9
    v_lshrrev_b32 v10, 3, v{vJ}
    v_or_b32 v9, v9, v10
    v_lshlrev_b32 v9, 4, v9
    v_lshl_add_u32 v9, v{vG}, 8, v9
    v_lshl_add_u32 v9, v{vJ}, 10, v9
    s_lshl_b32 s{sT0}, s{sT2}, 14
    v_add_u32 v13, s{sT0}, v9
    s_lshl_b32 s{sT0}, s{sT3}, 14
    s_add_u32 s{sT0}, s{sT0}, {L_QIMG}
    v_add_u32 v{vQA}, s{sT0}, v9""")
    for ks in range(1, 16): a(f"v_xor_b32 v{vQA+ks}, {16*ks}, v{vQA}")
    a(f"""v_lshrrev_b32 v9, 2, v{vL}
    v_and_b32 v10, 7, v9
    v_lshlrev_b32 v10, 1, v10
    v_lshrrev_b32 v11, 3, v9
    v_or_b32 v10, v10, v11
    v_bfe_u32 v11, v{vL}, 1, 1
    v_xor_b32 v10, v10, v11
    v_lshlrev_b32 v10, 4, v10
    v_lshl_add_u32 v10, v9, 10, v10
    v_and_b32 v11, 1, v{vL}
    v_lshl_add_u32 v10, v11, 3, v10
    s_lshl_b32 s{sT0}, s{sT2}, 8
    v_add_u32 v{vPA}, s{sT0}, v10""")
    for ct in range(1, 8): a(f"v_xor_b32 v{vPA+ct}, {32*ct}, v{vPA}")
    lsbtags(vTG)
    a(f"s_bitcmp1_b32 s2, 0\ns_cselect_b32 s{sT0}, 0xff, 0")
    lsbtags(vTO, f"s{sT0}")
    a(f"s_sub_u32 s{sI}, s{sJ}, 4")
    if p.wrow:
        a(f"""v_and_b32 v11, 3, v{vL}
        v_lshlrev_b32 v14, 6, v11
        v_lshl_add_u32 v14, v{vG}, 4, v14
        s_lshl_b32 s{sQ+4}, s{sWave}, 8
        s_lshl_b32 s{sQ+5}, s{sH}, 11
        s_add_u32 s{sQ+4}, s{sQ+4}, s{sQ+5}
        s_add_u32 s{sQ+4}, s{sQ+4}, {ST}
        v_mov_b32 v47, v{vL16}
        s_lshl_b32 s{sQ+5}, s{sH}, 2
        s_add_u32 s{sQ+5}, s{sQ+5}, s{sI}
        s_lshl_b32 s{sQ+2}, s{sH}, 12
        s_lshl_b32 s{sQ+3}, s{sI}, 8
        s_add_u32 s{sQ+2}, s{sQ+2}, s{sQ+3}
        s_add_u32 s{sQ+3}, s{sQ+2}, {CXL}
        s_add_u32 s{sQ+2}, s{sQ+2}, {CX}
        s_mul_i32 s{sQ+5}, s{sQ+5}, {p.opstr}
        s_lshl_b32 vcc_lo, s{sWave}, 12
        s_add_u32 s{sQ+5}, s{sQ+5}, vcc_lo
        s_add_u32 s{sQ+5}, s{sQ+5}, {OP}""")
    else:
        a(f"""v_bfe_u32 v9, v{vL}, 3, 1
    v_lshlrev_b32 v14, {10 if p.cstat else 15}, v9
    v_and_b32 v11, 3, v{vL}
    v_lshl_add_u32 v14, v11, {6 if p.cstat else 11}, v14
    v_lshl_add_u32 v14, v{vG}, {4 if p.cstat else 9}, v14
    s_and_b32 s{sT2}, s{sWave}, 3
    s_lshr_b32 s{sT3}, s{sWave}, 2
    s_lshl_b32 s{sQ+4}, s{sT2}, {8 if p.cstat else 13}
    s_lshl_b32 s{sQ+5}, s{sH}, {11 if p.cstat else 4}
    s_add_u32 s{sQ+4}, s{sQ+4}, s{sQ+5}
    s_add_u32 s{sQ+4}, s{sQ+4}, {ST}""")
        a(f"""v_lshl_add_u32 v47, v9, 6, v{vG}
    v_mul_u32_u24 v47, {p.opstr if p.oplay else 256}, v47
    v_and_b32 v11, 7, v{vL}
    v_lshl_add_u32 v47, v11, 4, v47
    s_lshl_b32 s{sQ+5}, s{sH}, 2
    s_add_u32 s{sQ+5}, s{sQ+5}, s{sI}
    s_lshl_b32 s{sQ+2}, s{sH}, 12
    s_lshl_b32 s{sQ+3}, s{sI}, 8
    s_add_u32 s{sQ+2}, s{sQ+2}, s{sQ+3}
    s_add_u32 s{sQ+3}, s{sQ+2}, {CXL}
    s_add_u32 s{sQ+2}, s{sQ+2}, {CX}
    s_mul_i32 s{sQ+5}, s{sQ+5}, {256 if p.oplay else p.opstr}
    s_mul_i32 vcc_lo, s{sT2}, {16*p.opstr if p.oplay else 4096}
    s_add_u32 s{sQ+5}, s{sQ+5}, vcc_lo
    s_lshl_b32 vcc_lo, s{sT3}, {7 if not p.halfo else 11}
    s_add_u32 s{sQ+5}, s{sQ+5}, vcc_lo
    s_add_u32 s{sQ+5}, s{sQ+5}, {OP}""")
    a(f"""s_bfe_u32 s{sT0}, s2, 0x10006
    s_lshl_b32 s{sT0}, s{sT0}, 15
    s_lshl_b32 s{sT1}, s{sWave}, 12
    s_add_u32 s{sT0}, s{sT0}, s{sT1}
    s_add_u32 s{sT0}, s{sT0}, {QL}
    s_add_u32 s{sT1}, s{sT1}, {L_QIMG}
    s_and_b32 vcc_lo, s{sWave}, 1
    s_lshl_b32 vcc_lo, vcc_lo, 7
    s_bfe_u32 vcc_hi, s{sWave}, 0x10001
    s_lshl_b32 vcc_hi, vcc_hi, 4
    s_or_b32 vcc_lo, vcc_lo, vcc_hi
    v_xor_b32 v16, vcc_lo, v{vL16}
    v_add_u32 v16, s{sT1}, v16
    v_xor_b32 v17, 32, v16
    v_xor_b32 v18, 64, v16
    v_xor_b32 v19, 0x60, v16
    """)
    a(f"""s_lshl_b32 s{sQ+9}, s{sT3}, 12
    s_add_u32 s{sQ+9}, s{sQ+9}, {L_SX}
    v_add_u32 v10, s{sQ+9}, v{vL16}
    s_lshl_b32 s{sQ+9}, s{sT2}, 10
    v_add_u32 v11, s{sQ+9}, v10
    v_mul_u32_u24 v12, {4096 if p.oplay else 16*p.opstr}, v{vG}
    v_lshl_add_u32 v12, v{vJ}, 4, v12
    s_sub_u32 s{sQ+9}, s2, 128
    s_lshl_b32 s{sT1}, s{sQ+9}, {4 if p.cstat else 9}
    v_lshlrev_b32 v15, {11 if p.cstat else 4}, v{vL}
    s_lshl_b32 vcc_lo, s{sT3}, {15 if p.cstat else 8}
    s_add_u32 s{sT1}, s{sT1}, vcc_lo
    s_add_u32 s{sT1}, s{sT1}, {ST}
    s_mul_i32 s{sQ+10}, s{sQ+9}, {p.opstr if p.oplay else 256}
    s_mul_i32 vcc_lo, s{sT3}, {16384 if p.oplay else 64*p.opstr}
    s_add_u32 s{sQ+10}, s{sQ+10}, vcc_lo
    s_mul_i32 vcc_lo, s{sT2}, {256 if p.oplay else p.opstr}
    s_add_u32 s{sQ+10}, s{sQ+10}, vcc_lo
    s_add_u32 s{sQ+10}, s{sQ+10}, {OP}
    s_lshl_b32 s{sQ+9}, s{sQ+9}, 8
    s_lshl_b32 vcc_lo, s{sT3}, 7
    s_add_u32 s{sQ+9}, s{sQ+9}, vcc_lo
    s_add_u32 s{sQ+9}, s{sQ+9}, {HC}""")
    if p.uv1 < 8: uvsetup(sQ)
    if p.cflag and p.cprog:
        a(f"""s_bfe_u32 s{sQ+9}, s2, 0x20004
        s_mul_i32 s{sQ+9}, s{sQ+9}, {p.cstr}
        s_and_b32 vcc_lo, s2, 15
        s_lshl_b32 vcc_lo, vcc_lo, 1
        s_add_u32 s{sQ+9}, s{sQ+9}, vcc_lo
        s_bfe_u32 vcc_lo, s2, 0x10006
        s_lshl_b32 vcc_lo, vcc_lo, 5
        s_add_u32 s{sQ+9}, s{sQ+9}, vcc_lo
        s_add_u32 s{sQ+9}, s{sQ+9}, {FP2}
        v_mul_u32_u24 v46, {8*p.cstr}, v{vL}""")
    elif p.cflag:
        a(f"""s_bfe_u32 s{sQ+9}, s2, 0x30004
        s_mul_i32 s{sQ+9}, s{sQ+9}, {p.cstr}
        s_and_b32 vcc_lo, s2, 15
        s_lshl_b32 vcc_lo, vcc_lo, 2
        s_add_u32 s{sQ+9}, s{sQ+9}, vcc_lo
        s_add_u32 s{sQ+9}, s{sQ+9}, {FP2}
        v_mul_u32_u24 v46, {8*p.cstr}, v{vL}""")
        if p.cfine: a(f"s_mul_i32 vcc_lo, s{sWave}, {16*p.cstr}\ns_add_u32 s{sQ+9}, s{sQ+9}, vcc_lo")
    for k in range(4): a(f"v_mov_b32 v{248+k}, 0x3f803f80\nv_mov_b32 v{252+k}, s{sT[0]}")
    def qloads():
        for n in range(4): a(f"buffer_load_dwordx4 {V(vQG+4*n)}, v{vL16}, {R(rWS)}, s{sT0} offen offset:{1024*(n if not p.emub else n&1)} sc1")
    for T in range(4):
        if T == p.qat:
            if p.bflag:
                a(f"""s_and_b32 s{sQ+8}, s2, 15
                s_lshl_b32 s{sQ+8}, s{sQ+8}, 3
                s_add_u32 s{sQ+8}, s{sQ+8}, s{sWave}
                s_mul_i32 s{sQ+8}, s{sQ+8}, {p.cstr}
                s_add_u32 s{sQ+8}, s{sQ+8}, {FP2 + 0x80000}
                s_mov_b32 s{sQ+6}, s{sT[0]}
                s_mov_b32 s{sQ+7}, s{sT[0]}
                s_mov_b32 s{sCnt}, 0
L_bf:
                s_load_dwordx16 s[4:19], s[{rWS}:{rWS+1}], s{sQ+8} glc
                s_add_u32 s{sCnt}, s{sCnt}, 1
                s_cmp_ge_u32 s{sCnt}, {p.maxspin}
                s_cbranch_scc1 L_bfd
                s_waitcnt lgkmcnt(0)""")
                for k in range(8): a(f"s_cmp_lg_u64 s[{4+2*k}:{5+2*k}], s[{sQ+6}:{sQ+7}]\ns_cbranch_scc1 L_bf")
                a("L_bfd:\ns_waitcnt lgkmcnt(0)")
            qloads()
            if p.uv2:
                a(f"s_cmp_lt_u32 s{sWave}, 4\ns_cbranch_scc1 L_Y_nouv2")
                uvdma(sQ, p.uv1, p.uv1 + p.uv2)
                a.label("L_Y_nouv2")
        a(f"s_waitcnt vmcnt({12-4*T + (4+p.uv2 if T >= p.qat else 0)})\ns_barrier")
        if p.gate == 17 + T:
            a(f"""s_sub_u32 vcc_lo, s2, 128
            s_lshl_b32 vcc_lo, vcc_lo, 7
            s_add_u32 vcc_lo, vcc_lo, {HG}
            s_cmp_eq_u32 s{sWave}, 1
            s_cselect_b32 exec_lo, 0xf, 0
            s_mov_b32 exec_hi, 0
            buffer_store_dwordx4 v[252:255], v{vL16}, {R(rWS)}, vcc_lo offen sc1
            s_mov_b64 exec, -1""")
        if T == 3:
            stamp(3); cyc(1)
            if p.qat == 4: qloads()
        Ls = a.newlabel('nos')
        a(f"s_cmp_lg_u32 s{sT2}, {T}\ns_cbranch_scc1 {Ls}")
        for ks in range(16):
            a(f"v_xor_b32 v9, {16*ks}, v13\nds_read_b128 {V(vSF+4*ks)}, v9")
        a.label(Ls)
        for ct in range(8):
            a(f"ds_read_b64_tr_b16 {V(vPF+8*ct+2*T, 2)}, v{vPA+ct} offset:{16384*T}")
    if p.qsplit: a(f"s_cmp_eq_u32 s{sT3}, 0\ns_cbranch_scc1 L_Y_q\ns_barrier\nL_Y_q:")
    Lq = a.newlabel('qchk'); L = a.newlabel('poll'); Lw = a.newlabel('qw')
    def qw(n): a(f"ds_write_b128 v{16+n}, {V(vQG+4*n)} offset:{1024*n}")
    a(f"s_mov_b32 s{sCnt}, 0")
    if p.uv2:
        a(f"s_cmp_lt_u32 s{sWave}, 4\ns_cbranch_scc1 {Lw}")
        for n in range(4):
            a(f"s_waitcnt vmcnt({3-n+p.uv2})"); qw(n); chkv(9, vQG+4*n, vTG, n == 0)
        a(f"s_branch {Lq}")
    else:
        a(f"s_branch {Lw}")
    a.label(L)
    qloads()
    a("s_mov_b64 exec, -1")
    a.label(Lw)
    for n in range(4):
        a(f"s_waitcnt vmcnt({3-n})"); qw(n); chkv(9, vQG+4*n, vTG, n == 0)
    a.label(Lq)
    poll_end_masked(L, 9, '0x10001', p.bsleep)
    if p.stamp: a(f"s_mov_b32 s{sStamp+24}, s{sCnt}")
    stamp(4)
    a(f"s_mov_b32 s{sT0}, s{sQ+10}\nv_mov_b32 v9, 0x10001")
    def hint(pos):
        if p.hintpos == pos and p.cfine:
            a(f"""s_mov_b64 exec, 3
            buffer_store_dword v252, v46, {R(rWS)}, s{sQ+9} offen sc1
            s_mov_b64 exec, -1""")
        elif p.hintpos == pos and p.cflag:
            a(f"""s_cmp_eq_u32 s{sWave}, {p.cw}
            s_cselect_b32 exec_lo, {((1 << p.crep) - 1) & 0xffffffff}, 0
            s_cselect_b32 exec_hi, {((1 << p.crep) - 1) >> 32}, 0
            buffer_store_{'short' if p.cprog else 'dword'} v252, v46, {R(rWS)}, s{sQ+9} offen sc1
            s_mov_b64 exec, -1""")
        elif p.hintpos == pos:
            a(f"""s_cmp_eq_u32 s{sT2}, 3
            s_cselect_b32 exec_lo, 0xf, 0
            s_mov_b32 exec_hi, 0
            buffer_store_dwordx4 v[252:255], v{vL16}, {R(rWS)}, s{sQ+9} offen sc1
            s_mov_b64 exec, -1""")
    NQ = 8
    if p.qsplit:
        p.qpre = 0
        a(f"s_cmp_eq_u32 s{sT3}, 0\ns_cbranch_scc1 L_Y_s")
        uvdma(sQ, p.uv1 + p.uv2, 8 - p.uv3)
        if p.prio: a(f"s_setprio {p.prio}")
        a.label("L_Y_s")
        a("s_waitcnt lgkmcnt(0)\ns_barrier")
        stamp(5)
    else:
        cyc(2)
        a("s_waitcnt lgkmcnt(0)\ns_barrier")
        stamp(5); cyc(3)
        for ks in range(p.qpre): a(f"ds_read_b128 {V(vQG+4*ks)}, v{vQA+ks}")
        a(f"""s_cmp_eq_u32 s{sT3}, 0
    s_cbranch_scc1 L_Y_s""")
        uvdma(sQ, p.uv1 + p.uv2, 8 - p.uv3)
        a("s_barrier")
        if p.prio: a(f"s_setprio {p.prio}")
        a.label("L_Y_s")
    cyc(4)
    for ks in range(p.qpre, NQ): a(f"ds_read_b128 {V(vQG+4*ks)}, v{vQA+ks}")
    for ks in range(16):
        rem = min(15, ks+NQ-1) - ks
        a(f"s_waitcnt lgkmcnt({rem})")
        mfma(vACC, vSF+4*ks, vQG+4*(ks % NQ), '0' if ks == 0 else None)
        if ks + NQ < 16: a(f"ds_read_b128 {V(vQG+4*(ks%NQ))}, v{vQA+ks+NQ}")
    cyc(5)
    a(f"""ds_write_b128 v11, {V(vACC)}
    s_waitcnt lgkmcnt(0)
    s_barrier""")
    stamp(6); cyc(6)
    vS = 48
    for T in range(4): a(f"ds_read_b128 {V(vS+4*T)}, v10 offset:{1024*T}")
    hint(0)
    a(f"""s_waitcnt lgkmcnt(2)
    v_max3_f32 v64, v{vS}, v{vS+1}, v{vS+2}
    v_max3_f32 v65, v{vS+3}, v{vS+4}, v{vS+5}
    v_max3_f32 v64, v64, v{vS+6}, v{vS+7}
    s_waitcnt lgkmcnt(0)
    v_max3_f32 v65, v65, v{vS+8}, v{vS+9}
    v_max3_f32 v64, v64, v{vS+10}, v{vS+11}
    v_max3_f32 v65, v65, v{vS+12}, v{vS+13}
    v_max3_f32 v64, v64, v{vS+14}, v{vS+15}
    v_max_f32 v64, v64, v65""")
    allred_groups("v_max_f32", 64, 65)
    cyc(7)
    def lead_bar():
        a(f"s_cmp_eq_u32 s{sT3}, 0\ns_cbranch_scc0 L_Y_p\ns_barrier\nL_Y_p:")
    if p.bpos == 1: lead_bar()
    vP = 72
    def pksub(r): return f"v_pk_add_f32 v[{r}:{r+1}], v[{r}:{r+1}], v[64:65] op_sel_hi:[1,0] neg_lo:[0,1] neg_hi:[0,1]"
    for k in range(4): a(pksub(vS+2*k))
    for k in range(8): a(f"v_exp_f32 v{vS+k}, v{vS+k}")
    for k in range(4, 8): a(pksub(vS+2*k))
    for k in range(4): a(f"v_cvt_pk_bf16_f32 v{vP+k}, v{vS+2*k}, v{vS+2*k+1}")
    hint(1); cyc(8)
    if p.diag == 1: stamp(1)
    if p.bpos == 0: lead_bar()
    for ct in range(8):
        mfma(vACC+4*ct, vP, vPF+8*ct, '0')
        a(f"v_exp_f32 v{vS+8+ct}, v{vS+8+ct}")
        if ct in (3, 5, 7): a(f"v_cvt_pk_bf16_f32 v{vP+4+(ct-3)//2}, v{vS+8+ct-3}, v{vS+8+ct-2}")
    a(f"v_mov_b32 v66, s{sT[0]}\nv_cvt_pk_bf16_f32 v{vP+7}, v{vS+14}, v{vS+15}")
    hint(2)
    if p.diag == 1: stamp(4)
    a(f"""s_cmp_eq_u32 s{sT2}, 0
    s_cbranch_scc0 L_Y_nol""")
    mfma(68, 248, vP, '0')
    mfma(68, 248, vP+4)
    a.label("L_Y_nol")
    def epi(k):
        return [f"v_cvt_pk_bf16_f32 v{80+4*r+k}, v{vACC+8*k+r}, v{vACC+8*k+4+r}" for r in range(4)] + \
               [f"v_bfi_b32 v{80+4*r+k}, v9, v{vTO+k}, v{80+4*r+k}" for r in range(4)]
    for ct in range(4): mfma(vACC+4*ct, vP+4, vPF+8*ct+4)
    a(f"""s_cmp_eq_u32 s{sT2}, 0
    s_cselect_b32 vcc_lo, 0xffff, 0""")
    mfma(vACC+16, vP+4, vPF+36)
    a("s_nop 0\nv_mov_b32 v65, v68")
    mfma(vACC+20, vP+4, vPF+44)
    a(f"""s_mov_b32 exec_lo, vcc_lo
    s_mov_b32 exec_hi, 0
    buffer_store_dwordx4 v[64:67], v15, {R(rWS)}, s{sT1} offen sc1
    s_mov_b64 exec, -1""")
    e = epi(0)
    mfma(vACC+24, vP+4, vPF+52)
    for x in e[:3]: a(x)
    mfma(vACC+28, vP+4, vPF+60)
    if p.diag == 1: stamp(2)
    cyc(9)
    for x in e[3:] + epi(1) + epi(2): a(x)
    cyc(10)
    if p.diag == 6: a(f"s_memrealtime s[{sStamp+6}:{sStamp+7}]")
    hint(4)
    for r in range(4):
        a(f"v_cvt_pk_bf16_f32 v{83+4*r}, v{vACC+24+r}, v{vACC+28+r}")
        a(f"v_bfi_b32 v{83+4*r}, v9, v{vTO+3}, v{83+4*r}")
        if r: hint(4+r)
        if p.halfo: a("s_mov_b32 exec_lo, 0x00ff00ff\ns_mov_b32 exec_hi, 0x00ff00ff")
        a(f"buffer_store_dwordx4 {V(80+4*r)}, v12, {R(rWS)}, s{sT0} offen sc1")
        if p.halfo: a("s_mov_b64 exec, -1")
        if r < 3: a(f"s_add_u32 s{sT0}, s{sT0}, {1024 if p.oplay else 4*p.opstr}")
    hint(3)
    stamp(7); cyc(11)
    if p.diag == 6: a(f"s_waitcnt vmcnt(0)\ns_memrealtime s[{sStamp+8}:{sStamp+9}]")
    if p.uv3:
        a(f"s_cmp_lt_u32 s{sWave}, 4\ns_cbranch_scc1 L_Y_nouv3")
        uvdma(sQ, 8 - p.uv3, 8)
        a.label("L_Y_nouv3")
    if p.prio: a("s_setprio 0")
    def latesetup():
        a(f"""v_bfe_u32 v9, v{vL}, 2, 2
    v_lshl_add_u32 v134, {'v9, 4, v%d' % vG if p.uvlin else 'v%d, 3, v9' % vG}
    v_lshlrev_b32 v134, 8, v134
    v_and_b32 v11, 1, v{vG}
    v_lshl_add_u32 v9, v11, 2, v9
    v_lshlrev_b32 v9, 1, v9
    v_bfe_u32 v11, v{vL}, 1, 1
    s_lshl_b32 s{sT0}, s{sWave}, 1
    v_add_u32 v11, s{sT0}, v11
    v_xor_b32 v9, v9, v11
    v_lshl_add_u32 v134, v9, 4, v134
    v_and_b32 v9, 1, v{vL}
    v_lshl_add_u32 v134, v9, 3, v134
    v_add_u32 v134, {L_WUVY}, v134""")
        a(f"v_bfe_u32 v9, v{vL}, 3, 1\nv_and_b32 v11, 7, v{vL}")
        a(f"v_and_b32 v122, 1, v{vG}\nv_mul_u32_u24 v122, 0xff, v122")
        lsbtags(124, "v122")
        if p.wrow:
            a(f"""v_and_b32 v123, 1, v{vG}
        v_lshlrev_b32 v122, 4, v{vJ}
        v_lshl_add_u32 v122, v123, 3, v122
        s_mul_i32 s{sQ+7}, s{sWave}, 272
        s_add_u32 s{sQ+7}, s{sQ+7}, {L_AIMGY}
        v_add_u32 v122, s{sQ+7}, v122
        s_lshl_b32 s{sQ+7}, s{sT3}, 5
        s_lshl_b32 s{sQ+8}, s{sT2}, 2
        s_add_u32 s{sQ+7}, s{sQ+7}, s{sQ+8}
        s_add_u32 s{sQ+7}, s{sQ+7}, {L_VSTY}
        v_mov_b32 v128, s{sQ+7}
        v_lshlrev_b32 v129, 5, v123
        v_add_u32 v129, {L_VSTY}, v129""")
        else:
            a(f"""v_mul_u32_u24 v122, {4*272}, v9
    v_lshl_add_u32 v122, v11, 4, v122
    v_and_b32 v123, 1, v{vG}
    v_lshl_add_u32 v122, v123, 3, v122
    s_mul_i32 s{sQ+7}, s{sT2}, 272
    s_lshl_b32 s{sQ+8}, s{sT3}, 7
    s_add_u32 s{sQ+7}, s{sQ+7}, s{sQ+8}
    s_add_u32 s{sQ+7}, s{sQ+7}, {L_AIMGY}
    v_add_u32 v122, s{sQ+7}, v122""")
            a(f"""v_lshlrev_b32 v128, 5, v9
    s_lshl_b32 s{sQ+7}, s{sT2}, 2
    s_add_u32 s{sQ+7}, s{sQ+7}, {L_VSTY}
    v_add_u32 v128, s{sQ+7}, v128
    v_lshlrev_b32 v129, 5, v123
    v_add_u32 v129, {L_VSTY}, v129""")
        a(f"""v_mul_u32_u24 v130, 272, v11
    v_lshl_add_u32 v130, v{vG}, 4, v130
    v_add_u32 v130, {L_AIMGY}, v130""")
        a(f"""v_lshlrev_b32 v131, 5, v{vG}
    v_lshl_add_u32 v131, v11, 2, v131
    v_lshl_add_u32 v131, v9, 6, v131
    s_lshr_b32 s{sQ+7}, s{sWave}, 1
    s_lshl_b32 s{sQ+7}, s{sQ+7}, 10
    s_and_b32 s{sQ+8}, s{sWave}, 1
    s_lshl_b32 s{sQ+8}, s{sQ+8}, 7
    s_add_u32 s{sQ+7}, s{sQ+7}, s{sQ+8}
    v_add_u32 v131, s{sQ+7}, v131
    v_and_b32 v132, 3, v{vL}
    v_mul_u32_u24 v132, 37, v132
    v_add_u32 v132, s{sT[0]}, v132""")
        a("v_mov_b32 v133, 1")
    if p.early: latesetup()
    if p.cfine:
        a(f"""s_lshr_b32 s{sQ}, s{sH}, 4
        s_lshl_b32 s{sQ}, s{sQ}, 2
        s_add_u32 s{sQ}, s{sQ}, s{sI}
        s_lshl_b32 s{sQ}, s{sQ}, 1
        s_and_b32 vcc_lo, s{sH}, 1
        s_add_u32 s{sQ}, s{sQ}, vcc_lo
        s_lshl_b32 s{sQ}, s{sQ}, 3
        s_add_u32 s{sQ}, s{sQ}, s{sWave}
        s_mul_i32 s{sQ}, s{sQ}, {p.cstr}
        s_add_u32 s{sQ}, s{sQ}, {FP2}
        s_mov_b32 s{sQ+6}, s{sT[0]}
        s_mov_b32 s{sQ+7}, s{sT[0]}
        s_mov_b32 s{sCnt}, 0
        s_mov_b32 s{sQ+8}, 15
L_cf:
        s_load_dwordx16 s[4:19], s[{rWS}:{rWS+1}], s{sQ} glc
        s_add_u32 s{sCnt}, s{sCnt}, 1
        s_cmp_ge_u32 s{sCnt}, {p.maxspin}
        s_cbranch_scc1 L_cfd
        s_waitcnt lgkmcnt(0)""")
        for u in range(4):
            a(f"""s_bitcmp0_b32 s{sQ+8}, {u}
            s_cbranch_scc1 L_cf{u}
            s_cmp_lg_u64 s[{4+4*u}:{5+4*u}], s[{sQ+6}:{sQ+7}]
            s_cbranch_scc1 L_cf{u}
            s_cmp_lg_u64 s[{6+4*u}:{7+4*u}], s[{sQ+6}:{sQ+7}]
            s_cbranch_scc1 L_cf{u}
            buffer_load_dwordx4 {V(56+4*u)}, v47, {R(rWS)}, s{sQ+5} offen offset:{1024*u} sc1
            s_bitset0_b32 s{sQ+8}, {u}
L_cf{u}:""")
        a(f"s_cmp_lg_u32 s{sQ+8}, 0\ns_cbranch_scc1 L_cf\nL_cfd:\ns_waitcnt lgkmcnt(0)")
    elif p.cflag:
        a(f"""s_and_b32 s{sQ}, s2, {p.crep-1}
        s_lshl_b32 s{sQ}, s{sQ}, 3
        s_add_u32 s{sQ}, s{sQ}, s{sT2 if p.cprog else sWave}
        s_mul_i32 s{sQ}, s{sQ}, {p.cstr}
        s_add_u32 s{sQ}, s{sQ}, {FP2}
        {f's_pack_ll_b32_b16 s{sQ+6}, s{sT[0]}, s{sT[0]}' if p.cprog else f's_mov_b32 s{sQ+6}, s{sT[0]}'}
        s_mov_b32 s{sQ+7}, s{sQ+6}
        s_mov_b32 s{sCnt}, 0
L_cf:
        s_load_dwordx16 s[4:19], s[{rWS}:{rWS+1}], s{sQ} glc
        s_add_u32 s{sCnt}, s{sCnt}, 1
        s_cmp_ge_u32 s{sCnt}, {p.maxspin}
        s_cbranch_scc1 L_cfd
        s_waitcnt lgkmcnt(0)""")
        for k in range(8): a(f"s_cmp_lg_u64 s[{4+2*k}:{5+2*k}], s[{sQ+6}:{sQ+7}]\ns_cbranch_scc1 L_cf")
        a("L_cfd:\ns_waitcnt lgkmcnt(0)")
    else:
        a(f"""s_cmp_lg_u32 s{sWave}, 0
    s_cbranch_scc1 L_Y_v
    s_bfe_u32 s{sT0}, s2, 0x10004
    s_lshl_b32 s{sT0}, s{sT0}, 7
    s_add_u32 s{sT0}, s{sT0}, {HC}""")
        for k in range(p.nsamp):
            a(f"s_add_u32 s{4+k}, s2, {37*k}\ns_and_b32 s{4+k}, s{4+k}, 127\ns_lshl_b32 s{4+k}, s{4+k}, 8\ns_add_u32 s{4+k}, s{4+k}, s{sT0}")
        if p.need: spoll_cnt([4+k for k in range(p.nsamp)], 12, p.need)
        else: spoll_all([4+k for k in range(p.nsamp)], 12)
    a.label("L_Y_v")
    if p.uv3: a("s_barrier")
    elif not (p.cprog or p.wrow in (1, 3)): a(f"s_waitcnt vmcnt({0 if p.odrain else 4})\ns_barrier")
    vBV = 20
    stamp(1)
    if p.wogate and p.wgpos == 1:
        a(f"""s_cmp_eq_u32 s{sWave}, 1
        s_cselect_b32 exec_lo, 0xf, 0
        s_mov_b32 exec_hi, 0
        buffer_store_dwordx4 v[252:255], v{vL16}, {R(rWS)}, s{sQ+9} offen offset:64 sc1
        s_mov_b64 exec, -1""")
    vOD = 56
    def cloads():
        a(f"buffer_load_dwordx4 v[52:55], v14, {R(rWS)}, s{sQ+4} offen sc1")
        for u in range(4):
            if p.oplay: a(f"s_add_u32 s{sQ+1}, s{sQ+5}, {4*u*p.opstr}\nbuffer_load_dwordx4 {V(vOD+4*u)}, v47, {R(rWS)}, s{sQ+1} offen sc1")
            else: a(f"buffer_load_dwordx4 {V(vOD+4*u)}, v47, {R(rWS)}, s{sQ+5} offen offset:{1024*(u if not p.halfo else u&1)} sc1")
    if p.cfine: a(f"buffer_load_dwordx4 v[52:55], v14, {R(rWS)}, s{sQ+4} offen sc1")
    else: cloads()
    if not p.early: latesetup()
    if p.cprog or p.wrow == 1: a(f"s_waitcnt vmcnt(9)\ns_barrier")
    def uvfr(ks):
        for hf in range(2):
            a(f"ds_read_b64_tr_b16 {V(vBV+4*ks+2*hf, 2)}, v134 offset:{(4*ks+64*hf)*256 if p.uvlin else (32*ks+4*hf)*256}")
    late_uv = p.uv3 or p.wrow == 3
    if not late_uv:
        for ks in range(4): uvfr(ks)
    if p.diag == 3:
        a(f"s_waitcnt vmcnt(4)\ns_memrealtime s[{sStamp+2}:{sStamp+3}]\ns_waitcnt vmcnt(0)\ns_memrealtime s[{sStamp+4}:{sStamp+5}]")
    if p.cfine: a("s_waitcnt vmcnt(0)")
    Lc = a.newlabel('cchk')
    a(f"s_mov_b32 s{sCnt}, 0\ns_branch {Lc}")
    L = a.newlabel('poll'); a.label(L)
    cloads()
    a.label(Lc)
    a(f"""s_mov_b64 exec, -1
    s_waitcnt vmcnt(4)
    v_max_f32_dpp v50, v52, v52 quad_perm:[1,0,3,2] row_mask:0xf bank_mask:0xf
    v_cmp_ne_u32 vcc, s{sT[0]}, v54
    v_max_f32_dpp v50, v50, v50 quad_perm:[2,3,0,1] row_mask:0xf bank_mask:0xf
    v_cndmask_b32 v49, 0, v133, vcc""")
    allred_groups("v_max_f32", 50, 51)
    a(f"""v_sub_f32 v51, v52, v50
    v_exp_f32 v51, v51
    v_cvt_pk_bf16_f32 v51, v51, v51""")
    for u in range(4):
        buildA(72+4*u, 51, u)
    a(f"""v_and_b32 v51, 0xffff0000, v51
    v_mul_f32 v51, v51, v53
    s_waitcnt vmcnt(3)""")
    mfma(88, 72, vOD, '0')
    a("v_add_f32_dpp v51, v51, v51 quad_perm:[1,0,3,2] row_mask:0xf bank_mask:0xf")
    chkv(49, vOD, 124)
    a("v_add_f32_dpp v51, v51, v51 quad_perm:[2,3,0,1] row_mask:0xf bank_mask:0xf\ns_waitcnt vmcnt(2)")
    mfma(88, 76, vOD+4)
    a("v_mov_b32 v55, v51")
    chkv(49, vOD+4, 124)
    a("v_permlane32_swap_b32 v51, v55\nv_add_f32 v51, v51, v55\ns_waitcnt vmcnt(1)")
    mfma(88, 80, vOD+8)
    a("v_mov_b32 v55, v51")
    chkv(49, vOD+8, 124)
    a("v_permlane16_swap_b32 v51, v55\nv_add_f32 v51, v51, v55\ns_waitcnt vmcnt(0)")
    mfma(88, 84, vOD+12)
    a("ds_write2_b32 v128, v50, v51 offset0:0 offset1:4")
    chkv(49, vOD+12, 124)
    poll_end_masked(L, 49, '0x10001')
    if p.stamp: a(f"s_mov_b32 s{sStamp+24}, s{sCnt}")
    stamp(8)
    if p.wogate and p.wgpos == 2:
        a(f"""s_cmp_eq_u32 s{sWave}, 1
        s_cselect_b32 exec_lo, 0xf, 0
        s_mov_b32 exec_hi, 0
        buffer_store_dwordx4 v[252:255], v{vL16}, {R(rWS)}, s{sQ+9} offen offset:64 sc1
        s_mov_b64 exec, -1""")
    a(f"""v_cvt_pk_bf16_f32 v88, v88, v89
    v_cvt_pk_bf16_f32 v89, v90, v91
    s_mov_b32 exec_lo, {'-1' if p.wrow else '0x00ff00ff'}
    s_mov_b32 exec_hi, {'0' if p.wrow else '0xff00ff00'}
    ds_write_b64 v122, v[88:89]
    s_mov_b64 exec, -1
    s_waitcnt lgkmcnt(0)
    s_barrier""")
    for ks in range(4):
        a(f"ds_read_b128 {V(56+4*ks)}, v130 offset:{64*ks}")
        if late_uv: uvfr(ks)
    a(f"ds_read_b128 v[72:75], v129\nds_read_b128 v[76:79], v129 offset:16")
    for ks in range(4):
        a(f"s_waitcnt lgkmcnt({11-3*ks if late_uv else 5-ks})")
        mfma(88, 56+4*ks, vBV+4*ks, '0' if ks == 0 else None)
    a(f"""s_waitcnt lgkmcnt(0)
    v_max3_f32 v50, v72, v73, v74
    v_max_f32 v50, v50, v75""")
    for r in range(4): a(f"v_sub_f32 v{72+r}, v{72+r}, v50")
    for r in range(4): a(f"v_exp_f32 v{72+r}, v{72+r}")
    a(f"""v_mul_f32 v51, v72, v76
    v_fmac_f32 v51, v73, v77
    v_fmac_f32 v51, v74, v78
    v_fmac_f32 v51, v75, v79
    v_rcp_f32 v51, v51
    v_mul_f32 v50, v72, v88
    v_fmac_f32 v50, v73, v89
    v_fmac_f32 v50, v74, v90
    v_fmac_f32 v50, v75, v91
    v_mul_f32 v50, v50, v51
    v_mov_b32_sdwa v50, v132 dst_sel:BYTE_0 dst_unused:UNUSED_PRESERVE src0_sel:BYTE_0
    s_mov_b32 exec_hi, 0""")
    if p.fast: a(f"buffer_store_dword v50, v131, {R(rWS)}, s{sQ+3} offen")
    a(f"""buffer_store_dword v50, v131, {R(rWS)}, s{sQ+2} offen sc1
    s_mov_b64 exec, -1""")
    stamp(2)
    if p.clean & 2: qclean(7)
    a(f"""s_sub_u32 s2, s2, 128
    s_cmp_ge_u32 s2, 72
    s_cbranch_scc1 L_Y_end
    s_cmp_ge_u32 s2, 36
    s_cselect_b32 s{sT2}, 1, 0
    s_mul_i32 s{sT3}, s{sT2}, 36
    s_sub_u32 s{sT3}, s2, s{sT3}
    s_mul_i32 s{sT0}, s{sWave}, {16*4608}
    s_mul_i32 s{sT1}, s{sT2}, 2304
    s_add_u32 s{sT0}, s{sT0}, s{sT1}
    s_lshl_b32 s{sT1}, s{sT3}, 6
    s_add_u32 s{sT0}, s{sT0}, s{sT1}
    s_add_u32 s{sT0}, s{sT0}, {FP}
    v_lshrrev_b32 v9, 2, v{vL}
    v_mul_u32_u24 v10, 4608, v9
    v_and_b32 v11, 3, v{vL}
    v_lshl_add_u32 v10, v11, 4, v10
    v_lshl_add_u32 v13, v{vG}, 2, v11
    v_lshlrev_b32 v13, 5, v13
    s_lshl_b32 s{sT1}, s{sWave}, 2
    s_add_u32 s{sT1}, s{sT1}, {L_REDY}
    v_add_u32 v13, s{sT1}, v13""")
    srd(rB, pB2, SZ['b2']); srd(rC, pOUT, SZ['out'])
    a(f"""v_mov_b32 v15, 0
    s_cmp_lg_u32 s{sWave}, 0
    s_cbranch_scc1 L_Y_rx
    s_lshl_b32 s{sT1}, s{sT3}, 2
    v_add_u32 v14, s{sT1}, v11""")
    decode_v(15, 14, 16)
    a(f"""v_bfe_u32 v14, v{vL}, 2, 2
    v_add_u32 v15, v15, v14
    v_lshlrev_b32 v15, 1, v15
    buffer_load_ushort v16, v15, {R(rB)}, 0 offen
    s_lshl_b32 s{sT1}, s{sT2}, 2
    s_add_u32 s{sT1}, s{sT1}, {L_GATE}
    v_mov_b32 v17, s{sT1}
    ds_read_b32 v17, v17
    v_lshlrev_b32 v18, 5, v{vJ}
    v_add_u32 v18, {L_REDY}, v18
    s_mul_i32 s{sT2}, s{sT2}, 1152
L_Y_rx:""")
    if p.dflag >= 3:
        for k in range(p.dsamp):
            a(f"s_add_u32 s{4+k}, s2, {(16//p.dsamp)*k}\ns_and_b32 s{4+k}, s{4+k}, 15\ns_lshl_b32 s{sQ}, s{sWave}, 4\ns_add_u32 s{4+k}, s{4+k}, s{sQ}\ns_lshl_b32 s{4+k}, s{4+k}, 7\ns_add_u32 s{4+k}, s{4+k}, {HD}")
        spoll_all([4+k for k in range(p.dsamp)], 12)
        stamp(9)
    L = poll_begin()
    a(f"""buffer_load_dwordx4 v[20:23], v10, {R(rWS)}, s{sT0} offen sc1
    s_mov_b64 exec, -1
    s_waitcnt vmcnt(0)""")
    chk4(24, 20, True)
    poll_end_masked(L, 24, '0xff')
    stamp(10)
    treduce(20)
    a(f"""v_add_f32_dpp v20, v20, v20 row_ror:4 row_mask:0xf bank_mask:0xf
    v_add_f32_dpp v20, v20, v20 row_ror:8 row_mask:0xf bank_mask:0xf
    ds_write_b32 v13, v20
    s_waitcnt lgkmcnt(0)
    s_barrier
    s_cmp_lg_u32 s{sWave}, 0
    s_cbranch_scc1 L_Y_end
    ds_read_b128 v[20:23], v18
    ds_read_b128 v[24:27], v18 offset:16
    v_lshlrev_b32 v16, 16, v16
    v_sub_f32 v17, 1.0, v17
    v_mul_f32 v16, v16, v17
    s_waitcnt lgkmcnt(0)
    v_add_f32 v20, v20, v24
    v_add_f32 v21, v21, v25
    v_add_f32 v22, v22, v26
    v_add_f32 v23, v23, v27
    v_add_f32 v20, v20, v21
    v_add_f32 v22, v22, v23
    v_add_f32 v20, v20, v16
    v_add_f32 v20, v20, v22
    v_cvt_pk_bf16_f32 v20, v20, v20
    s_mov_b64 exec, 0xffff
    buffer_store_short v20, v15, {R(rC)}, s{sT2} offen {p.outf.replace('_',' ')}
    s_cmp_lg_u32 s2, 0
    s_cbranch_scc1 L_Y_end
    s_mov_b64 exec, 1
    v_mov_b32 v21, s{sT[0]}
    v_mov_b32 v22, 0
    buffer_store_dword v21, v22, {R(rWS)}, 0 offen offset:{EPOCH} sc1""")
    a.label("L_Y_end")
    if p.stamp: a("s_add_u32 s2, s2, 128")
    stamp(11)
    finish('Y')
    a.label("L_exit")
    a("s_endpgm")
    return a.finalize()

HEADER = open('gated_mix__compressed_kv_cla__dense_activation_gelu__decode.s.ref').read().split('; Override')[0]

def emit(path, p=P):
    body = build(p)
    s = HEADER + f"""; @launch grid=(256,1,1) block=(512,1,1) lds={LDS_BYTES}
.amdgcn_target "amdgcn-amd-amdhsa--gfx950"
.text
.globl {KNAME}
.p2align 8
.type {KNAME},@function
{KNAME}:
{body}.section .rodata,"a"
.p2align 6
.amdhsa_kernel {KNAME}
  .amdhsa_next_free_vgpr 256
  .amdhsa_next_free_sgpr 102
  .amdhsa_accum_offset 256
  .amdhsa_group_segment_fixed_size 0
  .amdhsa_kernarg_size 120
  .amdhsa_user_sgpr_count 2
  .amdhsa_user_sgpr_kernarg_segment_ptr 1
  .amdhsa_system_sgpr_workgroup_id_x 1
.end_amdhsa_kernel
"""
    open(path, 'w').write(s)

if __name__ == '__main__':
    out = sys.argv[1]
    for kv in sys.argv[2:]:
        k, v = kv.split('=')
        setattr(P, k, type(getattr(P, k))(v))
    emit(out)
```

```python
import sys, struct, math
from asmlib import Asm

KNAME = "gated_mix__compressed_kv_cla__dense_activation_gelu__decode_kernel"

def f2u(x): return struct.unpack('<I', struct.pack('<f', x))[0]

class P:
    stamp = 0
    nt = "nt"
    pollA_wait = 2
    maxspin = 200000
    prefetch = 1
    wsoff = 0
    fast = 1
    nlocal = 256
    hintpos = 2
    diag = 0
    xpre = 8
    ypre = 0
    gate = 9
    qat = 3
    bsleep = 0
    tlb = 0
    cstat = 1
    dflag = 3
    drep = 18
    dsamp = 2
    dstr = 2304
    wopre = 1
    won = 9
    xg = -1
    xgn = 2
    gand = 0
    wofirst = 1
    odrain = 0
    warm = 0
    halfo = 0
    outf = ""
    outpre = 0
    wopos = 0
    w2gate = 0
    uv1 = 4
    xord = 3
    wosplit = 20
    emub = 0
    ckvf = "nt"
    fpos = 0
    wogate = 0
    wgpos = 0
    uv2 = 0
    hmix = 0
    qsplit = 0
    bpos = 0
    opstr = 32896
    fdel = 1
    asleep = 0
    fsleep = 0
    uvlin = 0
    nof = 0
    fflag = 0
    cflag = 1
    crep = 16
    cstr = 2304
    cw = 7
    cprog = 0
    oplay = 0
    qpf = 0
    qpfs = 0
    bflag = 0
    uv3 = 0
    xramp = 0
    xrn = 4
    fmid = 4
    floc = 1
    clean = 0
    wrow = 0
    p5h = 0
    cfine = 0
    early = 1
    solo = 0
    f1 = 2
    f2 = 3
    own = 0
    x3 = 12
    stlate = 0
    stbr = 0
    kint = 1
    b0pos = 1
    nsamp = 4
    need = 0
    prio = 1
    only = ""
    b0 = 1
    wqdma = 0
    nod1 = 0
    sparseC = 1
    qpre = 2
    enc = -1
    encwave = 4

EPOCH, QP, QL, ST, CX, HP, FP, OP, STAMP = 0, 0x10000, 0x50000, 0x60000, 0x70000, 0x90000, 0x120000, 0x200000, 0x800000
QPL, CXL, HC, HG, HD, HK, FP2 = 0x700000, 0x740000, 0x760000, 0x770000, 0x778000, 0x780000, 0x790000
HPL = 0x610000
WS_REC = 0x1000000
L_CKV, L_QIMG, L_SX, L_HX, L_GATE = 0, 65536, 98304, 106496, 107008
L_WQ = 0x18000 - 20480
L_WUK, L_WUV, L_QV, L_AIMG, L_VST, L_RED = 0, 32768, 65536, 66048, 68352, 68480
L_WUVY = 107520
L_PX = 107520 + 32768
LDS_BYTES = 107520 + 32768 + 4096
L_AIMGY, L_VSTY, L_REDY = 65536, 67840, 67968
pX, pCKV, pWQ, pWUK, pWUV, pWO, pW1, pB1, pW2, pB2, pGW, pOUT, pWS = 4, 6, 8, 10, 12, 14, 18, 20, 22, 24, 26, 28, 32
sWave, sH, sJ, sI, sXcd, sTag = 3, 34, 35, 56, 57, 58
sT = [58, 59, 60, 61]
rA, rB, rC, rWS = 36, 40, 44, 48
sT0, sT1, sT2, sT3 = 52, 53, 54, 55
sCnt = 62
sQ = 64
sStamp = 76
vL, vJ, vG, vM, vL16 = 1, 2, 3, 4, 8
SZ = dict(x=2304, ckv=8388608, wq=4718592, wuk=4194304, wuv=4194304, wo=4718592, w1=5308416, w2=5308416, b1=9216, b2=1152, gw=1152, out=2304)

def build(p=P):
    a = Asm()
    nt = p.nt
    def srd(r, ptr, size):
        if ptr == pWS and p.wsoff:
            a(f"s_add_u32 s{r}, s{ptr}, {p.wsoff}\ns_addc_u32 s{r+1}, s{ptr+1}, 0\ns_mov_b32 s{r+2}, {size}\ns_mov_b32 s{r+3}, 0x20000")
            return
        a(f"s_mov_b32 s{r}, s{ptr}\ns_mov_b32 s{r+1}, s{ptr+1}\ns_mov_b32 s{r+2}, {size}\ns_mov_b32 s{r+3}, 0x20000")
    def R(r): return f"s[{r}:{r+3}]"
    def V(r, n=4): return f"v[{r}:{r+n-1}]"
    def stamp(k):
        if p.only and k not in [int(x) for x in p.only.split('.')]: return
        if p.stamp: a(f"s_memrealtime s[{sStamp+2*k}:{sStamp+2*k+1}]")
    def cyc(k):
        if p.diag == 5: a(f"s_memtime s[{sStamp+2*k}:{sStamp+2*k+1}]")
    def buildA(dst, x, u):
        for r in range(4):
            a(f"v_and_b32_dpp v{dst+r}, v{x}, v{vM+r} quad_perm:[{u},{u},{u},{u}] row_mask:0xf bank_mask:0xf")
    def mfma(d, A, B, c=None):
        a(f"v_mfma_f32_16x16x32_bf16 {V(d)}, {V(A)}, {V(B)}, {V(d) if c is None else c}")
    def tag4(d):
        for k in range(4):
            a(f"v_mov_b32_sdwa v{d+k}, s{sT[k]} dst_sel:BYTE_0 dst_unused:UNUSED_PRESERVE src0_sel:BYTE_0")
    def chk4(acc, d, first=False):
        for k in range(4):
            if first and k == 0: a(f"v_xor_b32 v{acc}, s{sT[0]}, v{d}")
            else: a(f"v_bitop3_b32 v{acc}, v{acc}, v{d+k}, s{sT[k]} bitop3:0xf6")
    def chkv(acc, d, t, first=False):
        for k in range(4):
            if first and k == 0: a(f"v_xor_b32 v{acc}, v{t}, v{d}")
            else: a(f"v_bitop3_b32 v{acc}, v{acc}, v{d+k}, v{t+k} bitop3:0xf6")
    def poll_begin():
        L = a.newlabel('poll')
        a(f"s_mov_b32 s{sCnt}, 0")
        a.label(L)
        return L
    def poll_end(L, acc, mask, fb=None, lim=None, sleep=0):
        D = a.newlabel('done')
        a(f"v_and_b32 v{acc}, {mask}, v{acc}\nv_cmp_ne_u32 vcc, 0, v{acc}\ns_add_u32 s{sCnt}, s{sCnt}, 1")
        a(f"s_cbranch_vccz {D}")
        if sleep: a(f"s_sleep {sleep}")
        if fb and p.fast:
            regs, delta = fb
            a(f"s_cmp_eq_u32 s{sCnt}, {p.nlocal}\ns_cselect_b32 vcc_lo, {delta}, 0")
            for r in regs: a(f"s_sub_u32 s{r}, s{r}, vcc_lo")
        a(f"s_cmp_lt_u32 s{sCnt}, {lim or p.maxspin}\ns_cbranch_scc1 {L}")
        a.label(D)
    def poll_end_masked(L, acc, mask, sleep=0):
        D = a.newlabel('done')
        a(f"""v_and_b32 v{acc}, {mask}, v{acc}
        v_cmp_ne_u32 vcc, 0, v{acc}
        s_add_u32 s{sCnt}, s{sCnt}, 1
        s_cbranch_vccz {D}
        s_wqm_b64 exec, vcc""")
        if sleep: a(f"s_sleep {sleep}")
        a(f"""s_cmp_lt_u32 s{sCnt}, {p.maxspin}
        s_cbranch_scc1 {L}
        s_mov_b64 exec, -1""")
        a.label(D)
    def spoll_cnt(off_regs, tmp, need):
        L = a.newlabel('sp'); D = a.newlabel('spd')
        a(f"s_mov_b32 s{sCnt}, 0")
        a.label(L)
        for k, r in enumerate(off_regs): a(f"s_load_dword s{tmp+k}, s[{rWS}:{rWS+1}], s{r} glc")
        a(f"s_add_u32 s{sCnt}, s{sCnt}, 1\ns_cmp_ge_u32 s{sCnt}, {p.maxspin}\ns_cbranch_scc1 {D}\ns_mov_b32 vcc_lo, 0\ns_waitcnt lgkmcnt(0)")
        for k, r in enumerate(off_regs): a(f"s_cmp_eq_u32 s{tmp+k}, s{sT[0]}\ns_addc_u32 vcc_lo, vcc_lo, 0")
        a(f"s_cmp_lt_u32 vcc_lo, {need}\ns_cbranch_scc1 {L}")
        a.label(D)
        a("s_waitcnt lgkmcnt(0)")
    def spoll_all(off_regs, tmp):
        L = a.newlabel('sp'); D = a.newlabel('spd')
        a(f"s_mov_b32 s{sCnt}, 0")
        a.label(L)
        for k, r in enumerate(off_regs): a(f"s_load_dword s{tmp+k}, s[{rWS}:{rWS+1}], s{r} glc")
        a(f"s_add_u32 s{sCnt}, s{sCnt}, 1\ns_cmp_ge_u32 s{sCnt}, {p.maxspin}\ns_cbranch_scc1 {D}\ns_waitcnt lgkmcnt(0)")
        for k, r in enumerate(off_regs): a(f"s_cmp_lg_u32 s{tmp+k}, s{sT[0]}\ns_cbranch_scc1 {L}")
        a.label(D)
        a("s_waitcnt lgkmcnt(0)")
    def spoll(off_regs):
        L = a.newlabel('sp'); D = a.newlabel('spd')
        a(f"s_mov_b32 s{sCnt}, 0")
        a.label(L)
        for k, r in enumerate(off_regs): a(f"s_load_dword s{sT0+k}, s[{rWS}:{rWS+1}], s{r} glc")
        a(f"s_add_u32 s{sCnt}, s{sCnt}, 1\ns_waitcnt lgkmcnt(0)")
        for k, r in enumerate(off_regs): a(f"s_cmp_eq_u32 s{sT0+k}, s{sT[0]}\ns_cbranch_scc1 {D}")
        a(f"s_cmp_lt_u32 s{sCnt}, {p.maxspin}\ns_cbranch_scc1 {L}")
        a.label(D)
    def treduce(r):
        a(f"v_permlane32_swap_b32 v{r}, v{r+2}\nv_permlane32_swap_b32 v{r+1}, v{r+3}")
        a(f"v_add_f32 v{r}, v{r}, v{r+2}\nv_add_f32 v{r+1}, v{r+1}, v{r+3}")
        a(f"v_permlane16_swap_b32 v{r}, v{r+1}\nv_add_f32 v{r}, v{r}, v{r+1}")
    def allred_groups(op, r, t):
        a(f"v_mov_b32 v{t}, v{r}\nv_permlane32_swap_b32 v{r}, v{t}\n{op} v{r}, v{r}, v{t}")
        a(f"v_mov_b32 v{t}, v{r}\nv_permlane16_swap_b32 v{r}, v{t}\n{op} v{r}, v{r}, v{t}")
    def masks():
        a(f"""v_and_b32 v9, 3, v{vL}
        v_lshlrev_b32 v9, 4, v9
        v_mov_b32 v10, 0xffff
        v_mov_b32 v11, 0
        v_lshlrev_b64 v[10:11], v9, v[10:11]
        v_and_b32 v9, 4, v{vL}
        v_cmp_eq_u32 vcc, 0, v9
        v_cndmask_b32 v{vM}, 0, v10, vcc
        v_cndmask_b32 v{vM+1}, 0, v11, vcc
        v_cndmask_b32 v{vM+2}, v10, 0, vcc
        v_cndmask_b32 v{vM+3}, v11, 0, vcc""".replace('v_cndmask_b32 v%d, v10, 0, vcc' % (vM+2), 'v_cndmask_b32_e64 v%d, v10, 0, vcc' % (vM+2)).replace('v_cndmask_b32 v%d, v11, 0, vcc' % (vM+3), 'v_cndmask_b32_e64 v%d, v11, 0, vcc' % (vM+3)))
    def xoff(dst):
        a(f"""v_bfe_u32 v{dst}, v{vL}, 3, 1
        v_mul_u32_u24 v{dst}, 1152, v{dst}
        v_and_b32 v9, 3, v{vL}
        v_lshl_add_u32 v{dst}, v9, 3, v{dst}
        v_lshl_add_u32 v{dst}, v{vG}, 1, v{dst}""")
    def epoch_wait():
        a(f"""s_waitcnt lgkmcnt(0)
        s_add_u32 s{sT[0]}, s{sT[0]}, 1
        s_addc_u32 s{sT[0]}, s{sT[0]}, 0
        s_add_u32 s{sT[1]}, s{sT[0]}, 37
        s_add_u32 s{sT[2]}, s{sT[0]}, 74
        s_add_u32 s{sT[3]}, s{sT[0]}, 111""")
    def lsbtags(t, flip=None):
        a(f"""v_and_b32 v{t}, 7, v{vL}
        v_mul_u32_u24 v{t}, 37, v{t}
        v_add_u32 v{t}, s{sT[0]}, v{t}""")
        if flip: a(f"v_xor_b32 v{t}, {flip}, v{t}")
        a(f"""v_and_b32 v{t}, 0xff, v{t}
        v_lshl_or_b32 v{t}, v{t}, 15, v{t}
        v_lshrrev_b32 v{t+1}, 2, v{t}
        v_lshrrev_b32 v{t+2}, 4, v{t}
        v_lshrrev_b32 v{t+3}, 6, v{t}""")
    def decode_v(dst, src, t):
        a(f"""v_lshrrev_b32 v{dst}, 5, v{src}
        v_lshlrev_b32 v{dst}, 7, v{dst}
        v_and_b32 v{t}, 15, v{src}
        v_lshl_add_u32 v{dst}, v{t}, 3, v{dst}
        v_bfe_u32 v{t}, v{src}, 4, 1
        v_lshl_add_u32 v{dst}, v{t}, 2, v{dst}
        v_and_b32 v{t}, 7, v{src}
        v_lshlrev_b32 v{t}, 3, v{t}
        v_bfe_u32 v{t+1}, v{src}, 3, 1
        v_lshl_add_u32 v{t}, v{t+1}, 2, v{t}
        v_add_u32 v{t}, 512, v{t}
        v_cmp_gt_u32 vcc, 128, v{src}
        v_cndmask_b32 v{dst}, v{t}, v{dst}, vcc""")
    def finish(nst):
        if p.stamp == 5:
            a("s_endpgm"); return
        if p.stamp == 3:
            Ls = a.newlabel('noenc'); Lw = a.newlabel('encw')
            a(f"""s_waitcnt lgkmcnt(0)
            s_lshl_b32 s{sT0}, s2, 3
            s_add_u32 s{sT0}, s{sT0}, s{sWave}
            s_cmp_eq_u32 s{sT0}, {p.encwave}
            s_cbranch_scc0 {Ls}
{Lw}:
            s_memrealtime s[{sT0}:{sT1}]
            s_waitcnt lgkmcnt(0)
            s_sub_u32 s{sT0}, s{sT0}, s{sStamp+2*p.enc}
            s_cmp_lt_u32 s{sT0}, 3000
            s_cbranch_scc1 {Lw}
{Ls}:
            s_endpgm""")
            return
        if p.stamp:
            a(f"""s_waitcnt lgkmcnt(0)
            s_lshl_b32 s{sT0}, s2, 3
            s_add_u32 s{sT0}, s{sT0}, s{sWave}
            s_lshl_b32 s{sT0}, s{sT0}, 6
            s_add_u32 s{sT0}, s{sT0}, {STAMP}
            s_mov_b64 exec, 1
            v_mov_b32 v9, 0""")
            for k in range(13):
                a(f"v_mov_b32 v{10+k}, s{sStamp+2*k}\nbuffer_store_dword v{10+k}, v9, {R(rWS)}, s{sT0} offen offset:{4*k}")
        if p.stamp == 2:
            Ls = a.newlabel('nosum')
            a(f"""s_lshl_b32 s{sT0}, s2, 3
            s_add_u32 s{sT0}, s{sT0}, s{sWave}
            s_cmp_eq_u32 s{sT0}, {4 if nst == 'X' else 1024}
            s_cbranch_scc0 {Ls}""")
            srd(rB, 30, 256)
            for n, k in enumerate((1,2,3,4,7,8,9,10) if nst == 'X' else (1,2,3,4,7,8,10,11)):
                a(f"s_sub_u32 s{sT1}, s{sStamp+2*k}, s{sStamp}\nv_mov_b32 v{30+n}, s{sT1}\nbuffer_store_dword v{30+n}, v9, {R(rB)}, 0 offen offset:{4*n + (0 if nst == 'X' else 32)}")
            a.label(Ls)
        a("s_endpgm")

    def slot_store(d, base_s, wave_is_half, toff, local=None):
        tag4(d)
        if wave_is_half: a("s_mov_b32 exec_lo, 0x00ff00ff\ns_mov_b32 exec_hi, 0x00ff00ff")
        if local: a(f"s_add_u32 vcc_lo, s{base_s}, {local}\nbuffer_store_dwordx4 {V(d)}, v{toff}, {R(rWS)}, vcc_lo offen")
        a(f"buffer_store_dwordx4 {V(d)}, v{toff}, {R(rWS)}, s{base_s} offen sc1")
        if wave_is_half: a("s_mov_b64 exec, -1")
    def slot_voff(dst, half):
        a(f"""v_lshrrev_b32 v{dst}, 1, v{vG}
        v_mul_u32_u24 v{dst}, 2304, v{dst}
        v_lshl_add_u32 v{dst}, v{vJ}, 4, v{dst}
        v_and_b32 v9, 1, v{vG}""")
        if half:
            a(f"v_lshl_add_u32 v{dst}, v9, 7, v{dst}\nv_add_u32 v{dst}, 2048, v{dst}")
        else:
            a(f"v_lshl_add_u32 v{dst}, v9, 8, v{dst}\ns_lshl_b32 s{sT0}, s{sWave}, 9\nv_add_u32 v{dst}, s{sT0}, v{dst}")

    def zstamps():
        if p.stamp:
            for k in range(1, 13): a(f"s_mov_b32 s{sStamp+2*k}, 0")
    vXP, vAP, vWP, vDP = 12, 20, 100, 180
    assert p.wsoff == 0
    stamp(0)
    a(f"""s_load_dwordx8 s[36:43], s[0:1], 0
    s_load_dwordx2 s[{rWS}:{rWS+1}], s[0:1], 112
    v_readfirstlane_b32 s{sWave}, v0
    v_and_b32 v{vJ}, 15, v0
    s_lshr_b32 s{sJ}, s2, 5
    s_and_b32 s{sH}, s2, 31""")
    if p.hmix == 1: a(f"s_lshr_b32 s{sT0}, s{sH}, 3\ns_xor_b32 s{sH}, s{sH}, s{sT0}")
    if p.hmix == 2: a(f"s_lshr_b32 s{sT0}, s{sH}, 2\ns_and_b32 s{sT0}, s{sT0}, 6\ns_xor_b32 s{sH}, s{sH}, s{sT0}")
    if p.hmix == 3: a(f"s_lshr_b32 s{sT0}, s{sH}, 3\ns_mul_i32 s{sT0}, s{sT0}, 5\ns_and_b32 s{sT0}, s{sT0}, 7\ns_xor_b32 s{sH}, s{sH}, s{sT0}")
    a(f"""s_mov_b32 s{rWS+3}, 0x20000
    s_lshr_b32 s{sT0}, s2, 8
    s_or_b32 s{sT0}, s{sT0}, s{sWave}
    s_cbranch_scc1 L_rest""")
    a(f"""v_lshrrev_b32 v{vG}, 4, v0
    v_lshlrev_b32 v9, 15, v{vG}
    v_lshl_add_u32 v9, v{vJ}, 4, v9
    v_add_u32 v10, {8192-1024}, v9
    v_add_u32 v11, {2*(8192-1024)}, v9
    v_add_u32 v12, {3*(8192-1024)}, v9
    s_mul_i32 s{sT0}, s{sJ}, {72*32}
    s_add_u32 s{sT0}, s{sT0}, s{sH}
    s_lshl_b32 s{sT0}, s{sT0}, 8
    s_mov_b32 m0, {L_WQ}
    v_lshrrev_b32 v13, 3, v{vJ}
    v_mul_u32_u24 v13, 144, v13
    v_and_b32 v14, 3, v0
    v_lshl_add_u32 v14, v14, 2, v{vG}
    v_add_lshl_u32 v13, v13, v14, 3
    s_mul_i32 s{sT1}, s{sJ}, 144
    s_waitcnt lgkmcnt(0)
    s_movk_i32 s{rA+2}, {SZ['x']}
    s_mov_b32 s{rA+3}, s{rWS+3}
    s_add_u32 s{rB+2}, s{sT0}, {71*8192+256}
    s_mov_b32 s{rB+3}, s{rWS+3}""")
    if p.diag == 2: a(f"s_memrealtime s[{sQ+6}:{sQ+7}]")
    a(f"""buffer_load_dwordx2 v[186:187], v13, {R(rA)}, s{sT1} offen
    buffer_load_dwordx2 v[188:189], v13, {R(rA)}, s{sT1} offen offset:128
L_wq:
    buffer_load_dwordx4 v9, {R(rB)}, s{sT0} offen {nt} lds
    buffer_load_dwordx4 v10, {R(rB)}, s{sT0} offen offset:1024 {nt} lds
    buffer_load_dwordx4 v11, {R(rB)}, s{sT0} offen offset:2048 {nt} lds
    buffer_load_dwordx4 v12, {R(rB)}, s{sT0} offen offset:3072 {nt} lds
    s_addk_i32 m0, 4096
    s_add_u32 s{sT0}, s{sT0}, s{rWS+3}
    s_bitcmp0_b32 m0, 15
    s_cbranch_scc1 L_wq""")
    if p.diag == 2: a(f"s_memrealtime s[{sQ+8}:{sQ+9}]")
    if p.b0pos == 0: a("s_barrier")
    a.label("L_rest")
    a(f"""s_cmp_ge_u32 s{sJ}, 8
    s_cbranch_scc1 L_exit
    s_lshr_b32 s{sWave}, s{sWave}, 6
    v_and_b32 v{vL}, 63, v0
    v_bfe_u32 v{vG}, v0, 4, 2
    v_lshlrev_b32 v{vL16}, 4, v{vL}""")
    if p.prefetch:
        a(f"""s_getpc_b64 s[{sQ}:{sQ+1}]
L_pc:
        s_lshr_b32 s{sQ+2}, s2, 3
        s_lshl_b32 s{sQ+2}, s{sQ+2}, 9
        s_min_u32 s{sQ+2}, s{sQ+2}, L_exit-L_pc-512
        v_add_u32 v249, s{sQ+2}, v{vL16}
        s_cmp_eq_u32 s{sWave}, 2
        s_cbranch_scc0 L_nopf
        s_mov_b64 exec, 0x01010101
        global_load_dword v250, v249, s[{sQ}:{sQ+1}]
        s_mov_b64 exec, -1
L_nopf:""")
    a(f"""s_mov_b32 s{rWS+2}, {WS_REC}
    s_lshl_b32 s{sT0}, s{sH}, 3
    s_add_u32 s{sT0}, s{sT0}, s{sJ}
    s_lshl_b32 s{sT0}, s{sT0}, 10
    s_add_u32 s{sT1}, s{sT0}, {QPL}
    s_and_b32 s{sT2}, s{sWave}, 3
    s_mov_b32 s{rC+3}, s{rWS+3}
    s_cmp_eq_u32 s{sWave}, 3
    s_cselect_b32 exec_lo, 0x01010101, 0
    s_cselect_b32 exec_hi, 0x01010101, 0
    s_waitcnt lgkmcnt(0)""")
    if p.fast: a(f"buffer_load_dword v250, v{vL16}, {R(rWS)}, s{sT1} offen sc1")
    a(f"""s_mov_b64 exec, -1
    s_load_dwordx16 s[4:19], s[0:1], 0
    s_load_dwordx8 s[20:27], s[0:1], 64
    s_load_dwordx4 s[28:31], s[0:1], 96
    s_and_b32 s{sXcd}, s2, 7
    s_bfe_u32 s{sI}, s2, 0x40003
    s_cmp_lt_u32 s{sWave}, 4
    s_cbranch_scc1 L_w03
    s_load_dword s{sT[0]}, s[{rWS}:{rWS+1}], {EPOCH}
    s_cmp_ge_u32 s2, 128
    s_cbranch_scc1 L_Ydma""")
    a(f"""s_lshl_b32 s{sQ}, s{sJ}, 2
    s_add_u32 s{sQ}, s{sQ}, s{sT2}
    s_lshl_b32 s{sQ}, s{sQ}, 10
    s_add_u32 s{sQ}, s{sQ}, s{sH}
    s_lshl_b32 s{sQ}, s{sQ}, 8
    s_lshl_b32 m0, s{sT2}, 13
    v_xor_b32 v19, v{vJ}, v{vG}
    v_lshlrev_b32 v19, 4, v19
    v_lshl_add_u32 v20, v{vG}, 13, v19
    v_xor_b32 v21, 64, v20
    v_xor_b32 v22, 0x80, v20
    v_xor_b32 v23, 0xc0, v20
    v_add_u32 v21, {32768-1024}, v21
    v_add_u32 v22, {2*(32768-1024)}, v22
    v_add_u32 v23, {3*(32768-1024)}, v23
    s_mov_b64 s[{rC}:{rC+1}], s[42:43]
    s_mov_b32 s{rC+2}, {SZ['wuk']}""")
    if p.diag == 2: a(f"s_memrealtime s[{sQ+6}:{sQ+7}]")
    def wuk(n):
        if n == 4: a(f"s_addk_i32 m0, 4096\ns_add_u32 s{sQ}, s{sQ}, {4*32768}")
        a(f"buffer_load_dwordx4 v{20+n%4}, {R(rC)}, s{sQ} offen offset:{1024*(n%4)} {nt} lds")
    if p.xg >= 0:
        epoch_wait()
        a(f"""s_lshl_b32 s{sT3}, s2, 7
        s_add_u32 s{sT3}, s{sT3}, {HK}
        v_mov_b32 v14, s{sT[0]}
        v_lshlrev_b32 v15, 2, v{vL}""")
    a("s_barrier")
    for n in range(p.xpre+1):
        if n == p.xg:
            a(f"""s_cmp_eq_u32 s{sWave}, 4
            s_cselect_b32 exec_lo, 0xffff, 0
            s_mov_b32 exec_hi, 0
            buffer_store_dword v14, v15, {R(rWS)}, s{sT3} offen sc1
            s_mov_b64 exec, -1""")
        if n < p.xpre: wuk(n)
    if p.diag == 2: a(f"s_memrealtime s[{sQ+8}:{sQ+9}]")
    a("s_branch L_X_w47")
    a.label("L_w03")
    a(f"""s_load_dword s{sT[0]}, s[{rWS}:{rWS+1}], {EPOCH}
    s_cmp_eq_u32 s{sWave}, 0
    s_cbranch_scc1 L_p1c
    s_cmp_ge_u32 s2, 128
    s_cbranch_scc1 L_w13
    s_cmp_lg_u32 s{sWave}, 2
    s_cbranch_scc1 L_xb0""")
    if p.warm:
        a(f"""v_mov_b32 v24, 0
        v_mov_b32 v25, 0
        v_mov_b32 v26, 0
        v_mov_b32 v27, 0
        s_mov_b32 exec_hi, 0
        s_lshl_b32 s{sT0}, s{sH}, 2
        s_add_u32 s{sT0}, s{sT0}, s{sJ}
        s_lshl_b32 s{sT1}, s{sT0}, 9
        s_add_u32 s{sT1}, s{sT1}, {ST}
        buffer_store_dwordx4 v[24:27], v{vL16}, {R(rWS)}, s{sT1} offen sc1""")
        if p.warm & 2:
            a(f"""s_lshl_b32 s{sT1}, s{sT0}, 8
            s_add_u32 s{sT1}, s{sT1}, {QL}
            v_lshlrev_b32 v28, 15, v{vG}
            v_lshl_add_u32 v28, v{vJ}, 4, v28
            buffer_store_dwordx4 v[24:27], v28, {R(rWS)}, s{sT1} offen sc1""")
        if p.cflag:
            a(f"""v_lshrrev_b32 v28, 2, v{vL}
            v_mul_u32_u24 v28, {p.cstr}, v28
            v_and_b32 v29, 3, v{vL}
            v_lshl_add_u32 v28, v29, 4, v28
            s_mul_i32 s{sT1}, s2, {8*p.cstr}
            s_add_u32 s{sT1}, s{sT1}, {FP2}
            s_cmp_lt_u32 s2, {p.crep}
            s_cselect_b32 exec_lo, -1, 0
            buffer_store_dwordx4 v[24:27], v28, {R(rWS)}, s{sT1} offen sc1""")
        a(f"""s_lshl_b32 s{sT1}, s2, 7
        s_add_u32 s{sT1}, s{sT1}, {HD}
        s_mov_b32 exec_lo, 0xff
        buffer_store_dwordx4 v[24:27], v{vL16}, {R(rWS)}, s{sT1} offen sc1
        s_mov_b64 exec, -1
""")
    a("L_xb0:\ns_barrier\ns_branch L_w3\nL_p1c:")
    zstamps()
    masks()
    stamp(1)
    if p.diag == 2: a(f"s_mov_b32 s{sStamp+6}, s{sQ+6}\ns_mov_b32 s{sStamp+8}, s{sQ+8}")
    a(f"""s_add_u32 s{sT0}, s{sT0}, {QP}
    s_mov_b32 s{sT2}, 0x01000100
    s_mov_b32 s{sT3}, 0x03020302
    v_add_u32 v190, {L_WQ}, v{vL16}
    s_waitcnt vmcnt(20)""")
    assert p.b0pos == 1 and p.ypre == 0
    a("s_cmp_ge_u32 s2, 128\ns_cbranch_scc1 L_nob0\ns_barrier\nL_nob0:")
    if p.diag == 2: a(f"s_memrealtime s[{sStamp+10}:{sStamp+11}]")
    for k in range(4):
        a(f"v_perm_b32 v{vXP+2*k}, v{186+k}, v{186+k}, s{sT2}\nv_perm_b32 v{vXP+2*k+1}, v{186+k}, v{186+k}, s{sT3}")
    for n in range(20): buildA(vAP+4*n, vXP+(n % 4)+(4 if n >= 16 else 0), (n//4) % 4)
    epoch_wait()
    if p.diag == 2: a(f"s_memrealtime s[{sStamp+12}:{sStamp+13}]")
    G = 4
    for t0 in range(0, 20, G):
        a(f"s_waitcnt vmcnt({20-t0-G})")
        if p.b0pos == 2 + t0//G: a("s_barrier")
        if p.diag == 2 and t0 == 0: a(f"s_memrealtime s[{sStamp+14}:{sStamp+15}]")
        if p.diag == 2 and t0 == 16: a(f"s_memrealtime s[{sStamp+16}:{sStamp+17}]")
        for t in range(t0, t0+G): a(f"ds_read_b128 {V(vWP+4*t)}, v190 offset:{1024*t}")
        if t0:
            a(f"s_waitcnt lgkmcnt({G})")
            for t in range(t0-G, t0): mfma(vDP, vAP+4*t, vWP+4*t, '0' if t == 0 else None)
    for t in range(20-G, 20):
        a(f"s_waitcnt lgkmcnt({19-t})")
        mfma(vDP, vAP+4*t, vWP+4*t)
    tag4(vDP)
    if p.fast: a(f"buffer_store_dwordx4 {V(vDP)}, v{vL16}, {R(rWS)}, s{sT1} offen")
    a(f"buffer_store_dwordx4 {V(vDP)}, v{vL16}, {R(rWS)}, s{sT0} offen sc1")
    stamp(2)
    a(f"""s_barrier
    s_cmp_ge_u32 s2, 128
    s_cbranch_scc1 L_Y_main
    s_branch L_X_main""")

    a.label("L_Ydma")
    sCK = sQ + 11
    if p.kint:
        a(f"""s_bfe_u32 s{sCK}, s2, 0x10006
        s_lshl_b32 s{sCK}, s{sCK}, 4
        s_add_u32 s{sCK}, s{sCK}, s{sT2}
        s_lshl_b32 s{sCK}, s{sCK}, 8
        s_and_b32 vcc_lo, s2, 63
        s_add_u32 s{sCK}, s{sCK}, vcc_lo
        s_lshl_b32 s{sCK}, s{sCK}, 10
        s_lshl_b32 m0, s{sT2}, 12""")
    else:
        a(f"""s_sub_u32 s{sCK}, s2, 128
        s_lshl_b32 s{sCK}, s{sCK}, 16
        s_lshl_b32 m0, s{sT2}, 12
        s_add_u32 s{sCK}, s{sCK}, m0""")
    a(f"""
    s_and_b32 vcc_lo, s{sT2}, 1
    s_lshl_b32 vcc_lo, vcc_lo, 7
    s_lshr_b32 vcc_hi, s{sT2}, 1
    s_lshl_b32 vcc_hi, vcc_hi, 4
    s_or_b32 vcc_lo, vcc_lo, vcc_hi
    v_xor_b32 v216, vcc_lo, v{vL16}
    v_xor_b32 v217, 32, v216
    v_xor_b32 v218, 64, v216
    v_xor_b32 v219, 0x60, v216""")
    if p.kint:
        for n in range(1, 4): a(f"v_add_u32 v{216+n}, {n*(65536-1024)}, v{216+n}")
    a(f"""s_mov_b64 s[{rC}:{rC+1}], s[38:39]
    s_mov_b32 s{rC+2}, {SZ['ckv']}""")
    def ckv(i):
        if i % 4 == 0 and i: a(f"s_add_u32 s{sCK}, s{sCK}, {16*65536 if p.kint else 16384}\ns_add_u32 m0, m0, 16384")
        a(f"buffer_load_dwordx4 v{216+(i&3)}, {R(rC)}, s{sCK} offen offset:{1024*(i%4)} {p.ckvf} lds")
    for i in range(p.ypre): ckv(i)
    zstamps()
    epoch_wait()
    a(f"""s_sub_u32 s{sT3}, s2, 128
    s_lshl_b32 s{sT3}, s{sT3}, 7
    s_add_u32 s{sT3}, s{sT3}, {HG}
    v_mov_b32 v14, s{sT[0]}
    v_lshlrev_b32 v15, 2, v{vL}""")
    if p.xg >= 0:
        a(f"s_cmp_lg_u32 s{sWave}, 4\ns_cbranch_scc1 L_nokg")
        for k in range(p.xgn):
            a(f"s_add_u32 s{sQ+k}, s2, {41*k}\ns_and_b32 s{sQ+k}, s{sQ+k}, 127\ns_lshl_b32 s{sQ+k}, s{sQ+k}, 7\ns_add_u32 s{sQ+k}, s{sQ+k}, {HK}")
        spoll_all([sQ+k for k in range(p.xgn)], sQ+4)
        a.label("L_nokg")
    def uvsetup(r):
        srd(rB, pWUV, 0 if p.nod1 & 8 else SZ['wuv'])
        a(f"""s_sub_u32 s{r}, s{sJ}, 4
        s_lshl_b32 s{r}, s{r}, 20
        s_lshl_b32 s{r+1}, s{sT2}, {18 if p.uvlin else 15}
        s_add_u32 s{r}, s{r}, s{r+1}
        s_lshl_b32 s{r+1}, s{sH}, 8
        s_add_u32 s{r}, s{r}, s{r+1}""")
        if p.uvlin:
            a(f"""s_lshl_b32 s{r+1}, s{sT2}, 6
            s_and_b32 s{r+1}, s{r+1}, 64
            v_and_b32 v9, 1, v{vG}
            v_lshlrev_b32 v9, 3, v9
            v_xor_b32 v9, v9, v{vJ}
            v_lshlrev_b32 v9, 4, v9
            v_xor_b32 v9, s{r+1}, v9
            v_lshl_add_u32 v44, v{vG}, 13, v9
            v_xor_b32 v45, 32, v44""")
        else:
            a(f"""v_lshlrev_b32 v9, 1, v{vG}
            v_xor_b32 v9, v9, v{vJ}
            v_lshlrev_b32 v9, 4, v9
            v_lshl_add_u32 v44, v{vG}, 17, v9
            v_xor_b32 v45, 0x80, v44""")
        a(f"""s_lshl_b32 s{r+1}, s{sT2}, 13
        s_add_u32 s{r+1}, s{r+1}, {L_WUVY}""")
    def uvdma(r, n0, n1):
        if n0 >= n1: return
        a("s_mov_b32 vcc_hi, m0")
        for n in range(n0, n1):
            off = 4*n*8192 if p.uvlin else (64*(n & 1) + (n >> 1))*8192
            a(f"s_add_u32 m0, s{r+1}, {1024*n}\ns_add_u32 vcc_lo, s{r}, {off}")
            a(f"buffer_load_dwordx4 v{44+((n>>2) if p.uvlin else ((n>>1)&1))}, {R(rB)}, vcc_lo offen {nt} lds")
        a("s_mov_b32 m0, vcc_hi")
    uvsetup(sQ)
    a("s_barrier")
    stamp(10)
    uvdma(sQ, 0, p.uv1)
    for i in range(p.ypre, 17):
        if i == p.gate:
            a(f"""s_cmp_eq_u32 s{sWave}, 4
            s_cselect_b32 exec_lo, -1, 0
            s_mov_b32 exec_hi, 0
            buffer_store_dword v14, v15, {R(rWS)}, s{sT3} offen sc1
            s_mov_b64 exec, -1""")
        if i < 16: ckv(i)
    if p.emub:
        a(f"s_sub_u32 s{sCK}, s{sCK}, {3*16*65536}\ns_xor_b32 s{sCK}, s{sCK}, {8*1024}\ns_sub_u32 m0, m0, {3*16384}")
        for i in range(16): ckv(i)
    stamp(1)
    masks()
    a("s_branch L_Y_main")
    a.label("L_w13")
    a(f"""s_cmp_eq_u32 s{sWave}, 1
    s_cbranch_scc1 L_w1""")
    a.label("L_w3")
    if p.stamp == 5:
        a(f"""s_lshl_b32 s{sT0}, s2, 3
        s_add_u32 s{sT0}, s{sT0}, s{sWave}
        s_lshl_b32 s{sT0}, s{sT0}, 6
        s_add_u32 s{sT0}, s{sT0}, {STAMP}
        v_mov_b32 v24, s{sStamp}
        v_mov_b32 v25, 0
        s_waitcnt lgkmcnt(0)
        v_mov_b32 v24, s{sStamp}
        s_cmp_lt_u32 s2, 8
        s_cselect_b32 exec_lo, 1, 0
        s_mov_b32 exec_hi, 0
        buffer_store_dword v24, v25, {R(rWS)}, s{sT0} offen sc1
        s_mov_b64 exec, -1""")
    if p.tlb:
        a(f"""s_cmp_ge_u32 s2, 128
        s_cselect_b32 exec_lo, {7 if p.tlb & 2 else 0}, 0
        s_mov_b32 exec_hi, 0
        v_mul_u32_u24 v22, {63*p.opstr}, v{vL}
        s_mov_b32 s{sT0}, {OP + p.opstr + 32768}
        s_cbranch_execz L_tlbd
        buffer_load_dword v251, v22, {R(rWS)}, s{sT0} offen
L_tlbd:
        s_mov_b64 exec, -1""")
    a.label("L_w23")
    zstamps()
    masks()
    epoch_wait()
    a(f"""s_barrier
    s_waitcnt vmcnt(0)
    s_cmp_ge_u32 s2, 128
    s_cbranch_scc1 L_Y_main
    s_branch L_X_main""")
    a.label("L_w1")
    a(f"""s_movk_i32 s{rA+2}, {SZ['x']}
    s_mov_b32 s{rA+3}, s{rWS+3}
    v_and_b32 v9, 31, v{vL}
    v_mul_u32_u24 v9, 36, v9
    v_lshrrev_b32 v12, 5, v{vL}
    v_mul_u32_u24 v11, 1152, v12
    v_add_u32 v11, v11, v9
    buffer_load_dwordx4 v[20:23], v11, {R(rA)}, 0 offen
    buffer_load_dwordx4 v[24:27], v11, {R(rA)}, 0 offen offset:16
    buffer_load_dword v28, v11, {R(rA)}, 0 offen offset:32
    s_waitcnt lgkmcnt(0)""")
    srd(rB, pGW, SZ['gw'])
    a(f"""buffer_load_dwordx4 v[32:35], v9, {R(rB)}, 0 offen
    buffer_load_dwordx4 v[36:39], v9, {R(rB)}, 0 offen offset:16
    buffer_load_dword v40, v9, {R(rB)}, 0 offen offset:32
    """)
    zstamps()
    masks()
    epoch_wait()
    a(f"""v_mov_b32 v13, 0
    v_lshlrev_b32 v10, 2, v12
    v_add_u32 v10, {L_GATE}, v10
    s_barrier
    s_waitcnt vmcnt(0)""")
    def gatemath():
        for k in range(9): a(f"v_dot2_f32_bf16 v13, v{20+k}, v{32+k}, v13")
        for m in ("quad_perm:[1,0,3,2]", "quad_perm:[2,3,0,1]", "row_half_mirror", "row_mirror"):
            a(f"v_add_f32_dpp v13, v13, v13 {m} row_mask:0xf bank_mask:0xf")
        a(f"""v_mov_b32 v14, v13
        v_permlane16_swap_b32 v13, v14
        v_add_f32 v13, v13, v14
        v_mul_f32 v13, {f2u(-math.log2(math.e))}, v13
        v_exp_f32 v13, v13
        v_add_f32 v13, 1.0, v13
        v_rcp_f32 v13, v13
        ds_write_b32 v10, v13
        s_waitcnt lgkmcnt(0)""")
    gatemath()
    a("s_branch L_Y_main")

    a.label("L_X_w47")
    zstamps()
    masks()
    a("v_mov_b32 v9, v19")
    if p.xg < 0: epoch_wait()
    if p.diag == 2: a(f"s_mov_b32 s{sStamp+10}, s{sQ+6}\ns_mov_b32 s{sStamp+12}, s{sQ+8}")
    a(f"""s_lshl_b32 s{sT0}, s{sH}, 13
    s_lshl_b32 s{sT1}, s{sT2}, 8
    s_add_u32 s{sT0}, s{sT0}, s{sT1}
    s_add_u32 s{sT0}, s{sT0}, {QPL if p.fast else QP}
    s_add_u32 s{sT1}, s{sT0}, 4096
    v_lshlrev_b32 v24, 10, v{vG}
    v_lshl_add_u32 v24, v{vJ}, 4, v24""")
    a(f"""s_lshr_b32 s{sT3}, s{sT2}, 1
    s_lshl_b32 s{sT3}, s{sT3}, 8
    s_bitcmp1_b32 s{sT2}, 0
    s_cselect_b32 vcc_lo, 8, 0
    s_add_u32 s{sT3}, s{sT3}, vcc_lo
    s_add_u32 s{sT3}, s{sT3}, {L_QV}
    v_lshlrev_b32 v25, 4, v{vJ}
    v_lshl_add_u32 v25, v{vG}, 1, v25
    v_add_u32 v25, s{sT3}, v25""")
    a(f"""s_lshl_b32 s{sT3}, s{sT2}, 13
    v_lshl_add_u32 v26, v{vJ}, 8, v9
    v_add_u32 v26, s{sT3}, v26
    v_xor_b32 v27, 64, v26
    v_xor_b32 v28, 0x80, v26
    v_xor_b32 v29, 0xc0, v26""")
    a(f"""v_lshrrev_b32 v30, 3, v{vJ}
    v_lshlrev_b32 v30, 8, v30
    v_lshl_add_u32 v30, v{vG}, 4, v30
    v_add_u32 v30, {L_QV}, v30""")
    a(f"""v_and_b32 v31, 31, v{vL}
    s_lshl_b32 s{sT3}, s{sT2}, 5
    v_add_u32 v31, s{sT3}, v31
    v_bfe_u32 v32, v31, 3, 3
    v_mul_u32_u24 v32, 37, v32
    v_add_u32 v32, s{sT[0]}, v32
    v_and_b32 v33, 7, v31
    v_lshrrev_b32 v32, v33, v32
    v_and_b32 v32, 1, v32
    v_lshlrev_b32 v32, 16, v32
    v_xor_b32 v33, 0x10000, v32
    v_lshlrev_b32 v31, 1, v31
    v_lshrrev_b32 v34, 5, v{vL}
    v_lshl_add_u32 v31, v34, 15, v31
    s_lshl_b32 s{sT3}, s{sH}, 10
    s_lshl_b32 vcc_lo, s{sJ}, 8
    s_add_u32 s{sT3}, s{sT3}, vcc_lo
    s_add_u32 s{sT3}, s{sT3}, {QL}
    v_mov_b32 v35, 0xfffe0000
    s_lshr_b32 s{sQ+2}, s{sH}, 2
    s_mul_i32 s{sQ+2}, s{sQ+2}, {p.cstr}
    s_and_b32 vcc_lo, s{sH}, 3
    s_lshl_b32 vcc_lo, vcc_lo, 2
    s_add_u32 vcc_lo, vcc_lo, s{sJ}
    s_lshl_b32 vcc_lo, vcc_lo, 2
    s_add_u32 s{sQ+2}, s{sQ+2}, vcc_lo
    s_add_u32 s{sQ+2}, s{sQ+2}, {FP2 + 0x80000}
    v_mul_u32_u24 v104, {8*p.cstr}, v{vL}
    v_mov_b32 v105, s{sT[0]}
    s_barrier""")
    stamp(1)
    for n in range(p.xpre, 8): wuk(n)
    a(f"s_waitcnt vmcnt({p.pollA_wait})")
    stamp(2)
    L = poll_begin()
    a(f"""buffer_load_dwordx4 v[36:39], v24, {R(rWS)}, s{sT0} offen sc1
    buffer_load_dwordx4 v[40:43], v24, {R(rWS)}, s{sT1} offen sc1
    s_waitcnt vmcnt(1)""")
    chk4(44, 36, True)
    a("s_waitcnt vmcnt(0)")
    chk4(44, 40)
    if p.diag == 4: a(f"s_cmp_eq_u32 s{sCnt}, 0\ns_cbranch_scc0 L_d4\ns_memrealtime s[{sStamp+12}:{sStamp+13}]\nL_d4:")
    poll_end(L, 44, '0xff', ((sT0, sT1), QPL-QP))
    if p.stamp: a(f"s_mov_b32 s{sStamp+24}, s{sCnt}")
    stamp(3)
    for tl in range(2):
        for ks in range(4):
            a(f"ds_read_b128 {V(48+16*tl+4*ks)}, v{26+ks} offset:{4096*tl}")
    for k in range(4): a(f"v_add_f32 v{36+k}, v{36+k}, v{40+k}")
    treduce(36)
    a(f"""v_cvt_pk_bf16_f32 v36, v36, v36
    ds_write_b16 v25, v36
    s_waitcnt lgkmcnt(0)
    s_barrier""")
    if p.diag == 4: stamp(7)
    for ks in range(4): a(f"ds_read_b128 {V(80+4*ks)}, v30 offset:{64*ks}")
    if p.bflag == 1:
        a(f"""s_cmp_eq_u32 s{sWave}, 4
        s_cselect_b32 exec_lo, 0xffff, 0
        s_mov_b32 exec_hi, 0
        buffer_store_dword v105, v104, {R(rWS)}, s{sQ+2} offen sc1
        s_mov_b64 exec, -1""")
    for ks in range(4):
        a(f"s_waitcnt lgkmcnt({3-ks})")
        mfma(96, 80+4*ks, 48+4*ks, '0' if ks == 0 else None)
        mfma(100, 80+4*ks, 64+4*ks, '0' if ks == 0 else None)
    a(f"""s_mov_b32 vcc_lo, 0xffff0000
    s_mov_b32 vcc_hi, 0xffff0000
    v_cndmask_b32 v96, v96, v100, vcc
    v_mul_f32 v96, {f2u(128**-0.5*math.log2(math.e))}, v96
    v_add_u32 v96, v96, v33
    v_and_or_b32 v96, v96, v35, v32
    buffer_store_short_d16_hi v96, v31, {R(rWS)}, s{sT3} offen sc1""")
    if p.bflag == 2:
        a(f"""s_cmp_eq_u32 s{sWave}, 4
        s_cselect_b32 exec_lo, 0xffff, 0
        s_mov_b32 exec_hi, 0
        buffer_store_dword v105, v104, {R(rWS)}, s{sQ+2} offen sc1
        s_mov_b64 exec, -1""")
    stamp(4)

    a.label("L_X_main")
    sX = sQ + 9
    a(f"s_mul_i32 s{sT0}, s{sI}, 9\nv_add_u32 v9, s{sT0}, v{vJ}")
    decode_v(139, 9, 10)
    a(f"""s_mul_i32 s{sT0}, s{sXcd}, 576
    v_add_u32 v139, s{sT0}, v139
    v_mul_u32_u24 v10, 1152, v139""")
    for t in range(9): a(f"v_readlane_b32 s{sQ+t}, v10, {t}")
    a(f"""v_bfe_u32 v9, v{vL}, 3, 1
    v_lshlrev_b32 v135, 2, v{vL}
    v_lshlrev_b32 v136, 2, v9
    v_add_u32 v136, {L_GATE}, v136
    v_mov_b32 v137, s{sT[0]}
    v_mov_b32 v138, 0
    v_mov_b32 v133, 0
    v_and_b32 v132, 3, v{vL}
    v_lshl_add_u32 v134, v132, 2, v{vG}
    v_lshlrev_b32 v134, 2, v134
    v_mul_u32_u24 v9, 192, v9
    v_add_u32 v134, v134, v9
    v_add_u32 v134, {L_HX}, v134
    v_mul_u32_u24 v132, 37, v132
    v_add_u32 v132, s{sT[0]}, v132
    s_lshl_b32 s{sX}, s{sH}, 2
    s_add_u32 s{sX}, s{sX}, s{sJ}
    s_mul_i32 s{sX+2}, s{sX}, {32*1152}
    s_lshl_b32 s{sX}, s{sX}, 10
    s_add_u32 s{sX}, s{sX}, {CXL if p.fast else CX}
    s_mul_i32 s{sX+1}, s2, 4608
    s_add_u32 s{sX+1}, s{sX+1}, {FP}""")
    if p.p5h: a(f"v_mov_b32 v9, {L_RED}\nds_write_b32 v9, v138\ns_waitcnt lgkmcnt(0)")
    srd(rA, pX, SZ['x'])
    xoff(12)
    a(f"""s_cmp_ge_u32 s{sWave}, 4
    s_cbranch_scc1 L_X_b2
    s_barrier""")
    if p.tlb:
        a(f"""s_cmp_lg_u32 s{sWave}, 3
        s_cbranch_scc1 L_X_notlb
        s_mov_b64 exec, 7
        v_lshlrev_b32 v22, 21, v{vL}
        global_load_dword v252, v22, s[{pW1}:{pW1+1}]
        global_load_dword v253, v22, s[{pW2}:{pW2+1}]
        global_load_dword v254, v22, s[{pWO}:{pWO+1}]
        s_mov_b64 exec, -1
L_X_notlb:""")
    if p.qpf:
        a(f"""s_cmp_lg_u32 s{sWave}, 1
        s_cbranch_scc1 L_X_noqpf
        s_lshl_b32 s{sT0}, s{sI}, 12
        s_add_u32 s{sT0}, s{sT0}, {QL}""")
        lsbtags(40)
        if p.qpfs: a(f"s_sleep {p.qpfs}")
        L = poll_begin()
        for n in range(4): a(f"buffer_load_dwordx4 {V(20+4*n)}, v{vL16}, {R(rWS)}, s{sT0} offen offset:{1024*n} sc1")
        a("s_mov_b64 exec, -1\ns_waitcnt vmcnt(0)")
        for n in range(4): chkv(9, 20+4*n, 40, n == 0)
        sv = p.maxspin; p.maxspin = p.qpf
        poll_end_masked(L, 9, '0x10001')
        p.maxspin = sv
        a.label("L_X_noqpf")
    if p.gate >= 0:
        a(f"""s_cmp_lg_u32 s{sWave}, 0
        s_cbranch_scc1 L_X_b2
        s_lshl_b32 s{sT2}, s2, 7
        s_add_u32 s{sT2}, s{sT2}, {HG}
        s_xor_b32 s{sT3}, s{sT2}, {43*128}""")
        if p.gand:
            for k in range(p.gand):
                a(f"s_add_u32 s{6+k}, s2, {43*k}\ns_and_b32 s{6+k}, s{6+k}, 127\ns_lshl_b32 s{6+k}, s{6+k}, 7\ns_add_u32 s{6+k}, s{6+k}, {HG}")
            spoll_all([6+k for k in range(p.gand)], sT0)
        else:
            spoll((sT2, sT3))
        stamp(3)
    a.label("L_X_b2")
    a("s_barrier")
    a(f"""s_cmp_ge_u32 s{sWave}, 5
    s_cbranch_scc1 L_X_fg""")
    vXF, vAF, vWF, vDF, vWO, vW2 = 13, 20, 60, 100, 140, 176
    srd(rB, pW1, 0 if p.nod1 & 4 else SZ['w1'])
    a(f"s_mul_i32 s{sT1}, s{sI}, 72")
    for v in range(3): a(f"buffer_load_ushort v{vXF+v}, v12, {R(rA)}, s{sT1} offen offset:{32*v}")
    srd(rA, pW2, 0 if p.nod1 & 1 else SZ['w2'])
    srd(rC, pWO, 0 if p.nod1 & 2 else SZ['wo'])
    a(f"""s_mul_i32 s{sT0}, s{sI}, {36*9216}
    s_mul_i32 s{sT1}, s{sXcd}, 1152
    s_add_u32 s{sT0}, s{sT0}, s{sT1}
    s_lshl_b32 s{sT1}, s{sWave}, 8
    s_add_u32 s{sT0}, s{sT0}, s{sT1}
    v_mul_u32_u24 v10, 9216, v{vG}
    v_mul_u32_u24 v17, 1152, v{vG}
    v_add_u32 v17, s{sT1}, v17
    v_add_u32 v16, s{sT1}, v10
    s_lshl_b32 s{sT2}, s{sXcd}, 4
    s_add_u32 s{sT2}, s{sT2}, s{sI}
    s_mul_i32 s{sT2}, s{sT2}, 4608
    s_add_u32 s{sT2}, s{sT2}, {HP}
    s_cmp_eq_u32 s{sWave}, 4
    s_cbranch_scc1 L_X_f1half
    v_lshl_add_u32 v10, v{vJ}, 4, v10
    v_lshl_add_u32 v16, v{vJ}, 4, v16
    v_lshl_add_u32 v17, v{vJ}, 4, v17""")
    def wo_full():
        for t in range(8):
            if t == 4: a(f"s_add_u32 s{sX+2}, s{sX+2}, {4*1152}")
            if t == p.fmid: a("s_barrier\ns_barrier")
            a(f"buffer_load_dwordx4 {V(vWO+4*t)}, v16, {R(rC)}, s{sX+2} offen offset:{1152*(t&3)} {nt}")
    def wo_half():
        for n in range(4):
            if n == 2: a(f"s_add_u32 s{sX+2}, s{sX+2}, {4*1152}")
            if p.fmid < 8 and n == p.fmid//2: a("s_barrier\ns_barrier")
            a(f"buffer_load_dwordx4 {V(vWO+4*n)}, v16, {R(rC)}, s{sX+2} offen offset:{2304*(n&1)} {nt}")
    for t in range(9):
        if p.xramp and p.xramp <= t <= p.xrn: a(f"s_waitcnt vmcnt({p.xramp-1})")
        a(f"buffer_load_dwordx4 {V(vWF+4*t)}, v10, {R(rB)}, s{sT0} offen {nt}")
        if t < 8: a(f"s_add_u32 s{sT0}, s{sT0}, {4*9216}")
    def w2_full():
        for t in range(9): a(f"buffer_load_dwordx4 {V(vW2+4*t)}, v17, {R(rA)}, s{sQ+t} offen {nt}")
    if p.xord < 2: w2_full()
    elif p.xord == 2: a("s_barrier")
    ex = {0: 17, 1: 9, 2: 0, 3: 0}[p.xord]
    if p.xord == 0: wo_full()
    slot_voff(138, False)
    a(f"s_waitcnt vmcnt({9+ex})")
    for v in range(3): a(f"v_lshl_or_b32 v{vXF+v}, v{vXF+v}, 16, v{vXF+v}")
    for t in range(9): buildA(vAF+4*t, vXF+t//4, t % 4)
    for t in range(9):
        a(f"s_waitcnt vmcnt({8 if p.xord == 3 else 8-t+ex})")
        mfma(vDF, vAF+4*t, vWF+4*t, '0' if t == 0 else None)
        if p.xord == 3 and t < 8: a(f"buffer_load_dwordx4 {V(vW2+4*t)}, v17, {R(rA)}, s{sQ+t} offen {nt}")
    if not p.nof: slot_store(vDF, sT2, False, 138, HPL-HP if p.floc else None)
    if p.xord == 3: a(f"buffer_load_dwordx4 {V(vW2+32)}, v17, {R(rA)}, s{sQ+8} offen {nt}")
    stamp(5)
    if p.fpos == 0: a("s_barrier")
    if p.xord in (1, 3): wo_full()
    if p.fpos == 1: a("s_barrier")
    if p.xord == 2: w2_full()
    a("s_branch L_X_o2")
    a.label("L_X_f1half")
    a(f"""v_and_b32 v9, 7, v{vJ}
    v_lshl_add_u32 v10, v9, 4, v10
    v_lshl_add_u32 v16, v9, 4, v16
    v_lshl_add_u32 v17, v9, 4, v17
    v_lshrrev_b32 v9, 3, v{vJ}
    v_mul_u32_u24 v11, {4*9216}, v9
    v_add_u32 v10, v10, v11
    v_mul_u32_u24 v11, 1152, v9
    v_add_u32 v16, v16, v11""")
    for n in range(5):
        if n == 4: a("s_mov_b32 exec_lo, 0x00ff00ff\ns_mov_b32 exec_hi, 0x00ff00ff")
        if p.xramp and n in (1, 2): a("s_waitcnt vmcnt(0)")
        a(f"buffer_load_dwordx4 {V(vWF+4*n)}, v10, {R(rB)}, s{sT0} offen {nt}")
        if n < 4: a(f"s_add_u32 s{sT0}, s{sT0}, {8*9216}")
    a("s_mov_b64 exec, -1")
    def w2_half():
        a("s_mov_b32 exec_lo, 0x00ff00ff\ns_mov_b32 exec_hi, 0x00ff00ff")
        a(f"buffer_load_dwordx4 {V(vW2+16)}, v17, {R(rA)}, s{sQ+8} offen {nt}")
        a("s_mov_b64 exec, -1\ns_mov_b32 vcc_lo, 0xff00ff00\ns_mov_b32 vcc_hi, 0xff00ff00")
        for n in range(4):
            a(f"v_mov_b32 v18, s{sQ+2*n}\nv_mov_b32 v19, s{sQ+2*n+1}\nv_cndmask_b32 v18, v18, v19, vcc\nv_add_u32 v18, v18, v17")
            a(f"buffer_load_dwordx4 {V(vW2+4*n)}, v18, {R(rA)}, 0 offen {nt}")
    if p.xord < 2: w2_half()
    elif p.xord == 2: a("s_barrier")
    ex = {0: 9, 1: 5, 2: 0, 3: 0}[p.xord]
    if p.xord == 0: wo_half()
    slot_voff(138, True)
    a(f"s_waitcnt vmcnt({5+ex})")
    for v in range(3): a(f"v_lshl_or_b32 v{vXF+v}, v{vXF+v}, 16, v{vXF+v}")
    for t in range(9): buildA(vAF+4*t, vXF+t//4, t % 4)
    for n in range(5):
        a(f"s_waitcnt vmcnt({4-n+ex})")
        mfma(vDF, vAF+8*n, vWF+4*n, '0' if n == 0 else None)
        if n < 4: mfma(vDF+4, vAF+8*n+4, vWF+4*n, '0' if n == 0 else None)
    for r in range(4): a(f"v_add_f32_dpp v{vDF+r}, v{vDF+4+r}, v{vDF+r} row_ror:8 row_mask:0xf bank_mask:0xf")
    if not p.nof: slot_store(vDF, sT2, True, 138, HPL-HP if p.floc else None)
    if p.xord == 3: w2_half()
    stamp(5)
    if p.fpos == 0: a("s_barrier")
    if p.xord in (1, 3): wo_half()
    if p.fpos == 1: a("s_barrier")
    if p.xord == 2: w2_half()
    a.label("L_X_o2")
    if p.fdel and p.fmid >= 8: a("s_barrier")
    vA2, vD2 = 20, 60
    a(f"""ds_read_b32 v136, v136
    s_lshl_b32 s{sT3}, s2, 7
    s_add_u32 s{sT3}, s{sT3}, {HD}
    s_barrier""")
    stamp(8)
    for v in range(3): a(f"ds_read_b32 v{68+v}, v134 offset:{64*v}")
    a("s_waitcnt lgkmcnt(0)")
    for t in range(9): buildA(vA2+4*t, 68+t//4, t % 4)
    a(f"""s_waitcnt vmcnt({8 if p.xord in (1, 3) else 0})
    s_cmp_eq_u32 s{sWave}, 4
    s_cbranch_scc1 L_X_half2""")
    if p.xord == 2:
        for t in range(8): a(f"ds_read_b128 {V(vWO+4*t)}, v16 offset:{1152*t}")
    for t in range(9): mfma(vD2, vA2+4*t, vW2+4*t, '0' if t == 0 else None)
    if p.p5h:
        a(f"""s_cmp_lg_u32 s{sWave}, 0
        s_cbranch_scc1 L_X_o3
        v_mov_b32 v9, {L_RED}
        s_mov_b32 s{sCnt}, 0
L_X_hw:
        ds_read_b32 v10, v9
        s_add_u32 s{sCnt}, s{sCnt}, 1
        s_cmp_ge_u32 s{sCnt}, {16*p.maxspin}
        s_cbranch_scc1 L_X_hwd
        s_waitcnt lgkmcnt(0)
        v_cmp_ne_u32 vcc, s{sT[0]}, v10
        s_cbranch_vccnz L_X_hw
L_X_hwd:""")
        for n in range(5): a(f"ds_read_b128 {V(108+4*n)}, v{vL16} offset:{1024*n}")
        slot_voff(133, True)
    a("s_branch L_X_o3")
    a.label("L_X_half2")
    a("s_waitcnt vmcnt(4)")
    if p.xord == 2:
        for n in range(4): a(f"ds_read_b128 {V(vWO+4*n)}, v16 offset:{2304*n}")
    for n in range(5):
        mfma(vD2, vA2+8*n, vW2+4*n, '0' if n == 0 else None)
        if n < 4: mfma(vD2+4, vA2+8*n+4, vW2+4*n, '0' if n == 0 else None)
    if p.p5h:
        for r in range(4): a(f"v_add_f32_dpp v{vD2+r}, v{vD2+4+r}, v{vD2+r} row_ror:8 row_mask:0xf bank_mask:0xf")
        a(f"ds_write_b128 v{vL16}, {V(vD2)} offset:4096\ns_waitcnt vmcnt(0)")
        for n in range(4): a(f"ds_write_b128 v{vL16}, {V(vWO+4*n)} offset:{1024*n}")
        a(f"v_mov_b32 v9, {L_RED}\ns_waitcnt lgkmcnt(0)\nds_write_b32 v9, v137\ns_branch L_X_end")
    a.label("L_X_o3")
    a("s_waitcnt lgkmcnt(0)")
    stamp(9)
    L = poll_begin()
    for cq in range(4): a(f"buffer_load_dword v{72+cq}, v135, {R(rWS)}, s{sX} offen offset:{256*cq} sc1")
    a("s_waitcnt vmcnt(0)")
    a("v_xor_b32 v76, v132, v72")
    for cq in range(1, 4): a(f"v_bitop3_b32 v76, v76, v{72+cq}, v132 bitop3:0xf6")
    poll_end(L, 76, '0xff', ((sX,), CXL-CX), sleep=p.asleep)
    stamp(10)
    def dflag():
        a(f"""s_cmp_eq_u32 s{sWave}, 1
        s_cselect_b32 exec_lo, 0xffff, 0
        s_mov_b32 exec_hi, 0
        buffer_store_dword v137, v135, {R(rWS)}, s{sT3} offen sc1
        s_mov_b64 exec, -1""")
    if p.dflag == 3: dflag()
    a(f"""v_add_f32 v72, v72, v73
    v_add_f32 v74, v74, v75
    v_add_f32 v72, v72, v74
    v_mul_f32 v72, v72, v136
    v_cvt_pk_bf16_f32 v72, v72, v72
    v_mov_b32 v73, v72
    v_mov_b32 v74, v72
    v_mov_b32_dpp v73, v72 row_shr:4 row_mask:0xf bank_mask:0xa
    v_mov_b32_dpp v74, v72 row_shl:4 row_mask:0xf bank_mask:0x5
    s_cmp_eq_u32 s{sWave}, {0 if p.p5h else 4}
    s_cbranch_scc1 L_X_half3""")
    for t in range(8):
        buildA(vA2+4*t, 73+t//4, t % 4)
        if t > 0: mfma(vD2, vA2+4*(t-1), vWO+4*(t-1))
    mfma(vD2, vA2+28, vWO+28)
    slot_store(vD2, sX+1, False, 138)
    def qclean(w):
        a(f"""s_lshl_b32 vcc_lo, s{sH}, 3
        s_add_u32 vcc_lo, vcc_lo, s{sJ}
        s_lshl_b32 vcc_lo, vcc_lo, 10
        s_add_u32 vcc_lo, vcc_lo, {QPL}
        s_cmp_eq_u32 s{sWave}, {w}
        s_cselect_b64 exec, -1, 0
        buffer_store_dwordx4 v[4:7], v{vL16}, {R(rWS)}, vcc_lo offen sc1
        s_mov_b64 exec, -1""")
    if p.clean & 1: a(f"s_add_u32 vcc_lo, s{sT2}, {HPL-HP}\nbuffer_store_dwordx4 {V(vDF)}, v138, {R(rWS)}, vcc_lo offen sc1")
    if p.clean & 2: qclean(2)
    if p.dflag == 4: dflag()
    a("s_branch L_X_end")
    a.label("L_X_half3")
    if p.p5h:
        for t in range(9):
            if t < 8: buildA(vA2+4*t, 73+t//4, t % 4)
            if t > 0:
                u = t - 1
                mfma(124+4*(u & 1), vA2+4*u, 108+4*(u//2), '0' if u == 1 else None)
                mfma(vD2, vA2+4*u, vWO+4*u)
        for r in range(4): a(f"v_add_f32_dpp v{124+r}, v{128+r}, v{124+r} row_ror:8 row_mask:0xf bank_mask:0xf")
        slot_store(vD2, sX+1, False, 138)
        slot_store(124, sX+1, True, 133)
        a("s_branch L_X_end")
    else:
        for t in range(8):
            buildA(vA2+4*t, 73+t//4, t % 4)
            if t > 0: mfma(vD2+4*((t-1) & 1), vA2+4*(t-1), vWO+4*((t-1)//2))
        mfma(vD2+4, vA2+28, vWO+12)
        for r in range(4): a(f"v_add_f32_dpp v{vD2+r}, v{vD2+4+r}, v{vD2+r} row_ror:8 row_mask:0xf bank_mask:0xf")
        slot_store(vD2, sX+1, True, 138)
        if p.clean & 1: a(f"s_add_u32 vcc_lo, s{sT2}, {HPL-HP}\ns_mov_b32 exec_lo, 0x00ff00ff\ns_mov_b32 exec_hi, 0x00ff00ff\nbuffer_store_dwordx4 {V(vDF)}, v138, {R(rWS)}, vcc_lo offen sc1\ns_mov_b64 exec, -1")
        a("s_branch L_X_end")
    a.label("L_X_fg")
    a(f"""s_cmp_eq_u32 s{sWave}, 7
    s_cbranch_scc1 L_X_fg7""")
    srd(rB, pB1, SZ['b1'])
    a(f"""s_sub_u32 s{sT2}, s{sWave}, 5
    s_mul_i32 s{sT0}, s{sXcd}, {16*4608}
    s_mul_i32 s{sT1}, s{sT2}, 2304
    s_add_u32 s{sT0}, s{sT0}, s{sT1}
    s_mul_i32 s{sT1}, s{sI}, 144
    s_add_u32 s{sT0}, s{sT0}, s{sT1}
    s_add_u32 s{sT0}, s{sT0}, {HPL if p.floc else HP}
    s_add_u32 s{sQ}, s{sT0}, {4*4608}
    s_add_u32 s{sQ+1}, s{sT0}, {8*4608}
    s_add_u32 s{sQ+2}, s{sT0}, {12*4608}
    v_mul_u32_u24 v10, 4608, v{vG}
    v_lshl_add_u32 v10, v{vJ}, 4, v10
    v_add_u32 v14, v139, v{vG}
    v_lshlrev_b32 v14, 1, v14
    s_lshl_b32 s{sT1}, s{sT2}, 2
    s_add_u32 s{sT1}, s{sT1}, {L_GATE}
    v_mov_b32 v16, s{sT1}
    s_mul_i32 s{sT1}, s{sT2}, 192
    s_add_u32 s{sT1}, s{sT1}, {L_HX}
    v_lshl_add_u32 v17, v{vJ}, 2, v{vG}
    v_lshlrev_b32 v17, 2, v17
    v_add_u32 v17, s{sT1}, v17
    s_mov_b32 exec_lo, 0x01ff01ff
    s_mov_b32 exec_hi, 0x01ff01ff
    buffer_load_ushort v15, v14, {R(rB)}, 0 offen""")
    def floads():
        for k, s in enumerate((sT0, sQ, sQ+1, sQ+2)):
            if not p.nof: a(f"buffer_load_dwordx4 {V(20+4*k)}, v10, {R(rWS)}, s{s} offen sc1")
    if p.xord == 2: a("s_barrier")
    if p.fdel: a("s_barrier")
    a("s_barrier\nds_read_b32 v16, v16")
    if p.fmid < 8:
        floads()
        Lf = a.newlabel('fchk')
        a(f"s_barrier\ns_mov_b32 s{sCnt}, 0\ns_branch {Lf}")
        L = a.newlabel('poll'); a.label(L)
        floads()
        a.label(Lf)
    else:
        L = poll_begin()
        floads()
    for k in range(4):
        a(f"s_waitcnt vmcnt({3-k})")
        chk4(36, 20+4*k, k == 0)
    poll_end(L, 36, '0' if p.nof else '0xff', ((sT0, sQ, sQ+1, sQ+2), HPL-HP) if p.floc else None, sleep=p.fsleep)
    stamp(8)
    a("s_mov_b64 exec, -1")
    for k in range(4): a(f"v_add_f32 v{20+k}, v{20+k}, v{24+k}\nv_add_f32 v{28+k}, v{28+k}, v{32+k}")
    for k in range(4): a(f"v_add_f32 v{20+k}, v{20+k}, v{28+k}")
    treduce(20)
    c1 = -2*math.sqrt(2/math.pi)*math.log2(math.e)
    a(f"""v_lshlrev_b32 v15, 16, v15
    v_add_f32 v20, v20, v15
    v_mul_f32 v21, v20, v20
    v_mov_b32 v22, {f2u(c1)}
    v_fmac_f32 v22, {f2u(c1*0.044715)}, v21
    v_mul_f32 v21, v22, v20
    v_exp_f32 v21, v21
    v_add_f32 v21, 1.0, v21
    v_rcp_f32 v21, v21
    s_waitcnt lgkmcnt(0)
    v_sub_f32 v16, 1.0, v16
    v_mul_f32 v20, v20, v21
    v_mul_f32 v20, v20, v16
    v_cvt_pk_bf16_f32 v20, v20, v20
    s_mov_b32 exec_lo, 0x01ff01ff
    s_mov_b32 exec_hi, 0x01ff01ff
    ds_write_b32 v17, v20
    s_mov_b64 exec, -1
    s_waitcnt lgkmcnt(0)""")
    a("s_branch L_X_fgend")
    a.label("L_X_fg7")
    if p.floc:
        a(f"""s_lshl_b32 s{sT2}, s{sXcd}, 4
        s_add_u32 s{sT2}, s{sT2}, s{sI}
        s_mul_i32 s{sT2}, s{sT2}, 4608
        s_add_u32 s{sT2}, s{sT2}, {HPL}
        v_lshlrev_b32 v41, 7, v{vL}
        s_mov_b32 exec_hi, 15
        buffer_load_dword v42, v41, {R(rWS)}, s{sT2} offen sc1
        s_mov_b64 exec, -1""")
    srd(rB, pGW, SZ['gw'])
    a(f"""v_and_b32 v9, 31, v{vL}
    v_mul_u32_u24 v9, 36, v9
    v_lshrrev_b32 v12, 5, v{vL}
    v_mul_u32_u24 v11, 1152, v12
    v_add_u32 v11, v11, v9
    buffer_load_dwordx4 v[20:23], v11, {R(rA)}, 0 offen
    buffer_load_dwordx4 v[24:27], v11, {R(rA)}, 0 offen offset:16
    buffer_load_dword v28, v11, {R(rA)}, 0 offen offset:32
    buffer_load_dwordx4 v[32:35], v9, {R(rB)}, 0 offen
    buffer_load_dwordx4 v[36:39], v9, {R(rB)}, 0 offen offset:16
    buffer_load_dword v40, v9, {R(rB)}, 0 offen offset:32
    v_mov_b32 v13, 0
    v_lshlrev_b32 v10, 2, v12
    v_add_u32 v10, {L_GATE}, v10
    s_waitcnt vmcnt(0)""")
    gatemath()
    if p.fast:
        a(f"""s_mov_b32 exec_lo, 0x01010101
        s_mov_b32 exec_hi, 0x01010101
        buffer_load_dword v20, v{vL16}, {R(rWS)}, s{sX} offen sc1
        s_mov_b64 exec, -1""")
    if p.wogate:
        for k in range(p.wogate):
            a(f"s_add_u32 s{4+k}, s2, {53*k+11}\ns_and_b32 s{4+k}, s{4+k}, 127\ns_lshl_b32 s{4+k}, s{4+k}, 8\ns_add_u32 s{4+k}, s{4+k}, {HC + (128 if p.wgpos == 0 else 64)}")
        spoll_all([4+k for k in range(p.wogate)], 8)
    if p.xord == 2:
        srd(rC, pWO, 0 if p.nod1 & 2 else SZ['wo'])
        a("s_mov_b32 m0, 0\ns_barrier")
        for n in range(36):
            if n % 4 == 0 and n: a(f"s_addk_i32 m0, 4096\ns_add_u32 s{sX+2}, s{sX+2}, 4096")
            if n == p.wosplit: a("s_barrier")
            a(f"buffer_load_dwordx4 v{vL16}, {R(rC)}, s{sX+2} offen offset:{1024*(n%4)} {nt} lds")
        if p.wosplit >= 36: a("s_barrier")
        a("s_waitcnt vmcnt(0)\ns_branch L_X_fgend")
    a("s_barrier")
    if p.fflag:
        a(f"""s_lshl_b32 s{sT3}, s2, 7
        s_add_u32 s{sT3}, s{sT3}, {HD+64}
        s_mov_b64 exec, 0xffff
        buffer_store_dword v137, v135, {R(rWS)}, s{sT3} offen sc1
        s_mov_b64 exec, -1
        s_lshl_b32 s{sT3}, s{sXcd}, 7
        s_add_u32 s{sT3}, s{sT3}, {HD+64}
        s_add_u32 s{sQ}, s{rWS}, s{sT3}
        s_addc_u32 s{sQ+1}, s{rWS+1}, 0
        s_mov_b32 s{sCnt}, 0
L_ff:""")
        for k in range(16): a(f"s_load_dword s{4+k}, s[{sQ}:{sQ+1}], {1024*k} glc")
        a(f"s_add_u32 s{sCnt}, s{sCnt}, 1\ns_cmp_ge_u32 s{sCnt}, {p.maxspin}\ns_cbranch_scc1 L_ffd\ns_waitcnt lgkmcnt(0)")
        for k in range(16): a(f"s_cmp_lg_u32 s{4+k}, s{sT[0]}\ns_cbranch_scc1 L_ff")
        a("L_ffd:\ns_waitcnt lgkmcnt(0)")
    if p.fdel: a("s_barrier")
    if p.fmid < 8: a("s_barrier")
    a("s_waitcnt vmcnt(0)")
    a.label("L_X_fgend")
    a("s_barrier")
    a.label("L_X_end")
    stamp(11)
    finish('X')

    a.label("L_Y_main")
    vQA, vPA, vSF, vPF, vACC = 20, 36, 48, 112, 176
    vTG, vTO = 208, 212
    vQG = 216
    a(f"""s_and_b32 s{sT2}, s{sWave}, 3
    s_lshr_b32 s{sT3}, s{sWave}, 2
    v_and_b32 v9, 7, v{vJ}
    v_lshlrev_b32 v9, 1, v9
    v_lshrrev_b32 v10, 3, v{vJ}
    v_or_b32 v9, v9, v10
    v_lshlrev_b32 v9, 4, v9
    v_lshl_add_u32 v9, v{vG}, 8, v9
    v_lshl_add_u32 v9, v{vJ}, 10, v9
    s_lshl_b32 s{sT0}, s{sT2}, 14
    v_add_u32 v13, s{sT0}, v9
    s_lshl_b32 s{sT0}, s{sT3}, 14
    s_add_u32 s{sT0}, s{sT0}, {L_QIMG}
    v_add_u32 v{vQA}, s{sT0}, v9""")
    for ks in range(1, 16): a(f"v_xor_b32 v{vQA+ks}, {16*ks}, v{vQA}")
    a(f"""v_lshrrev_b32 v9, 2, v{vL}
    v_and_b32 v10, 7, v9
    v_lshlrev_b32 v10, 1, v10
    v_lshrrev_b32 v11, 3, v9
    v_or_b32 v10, v10, v11
    v_bfe_u32 v11, v{vL}, 1, 1
    v_xor_b32 v10, v10, v11
    v_lshlrev_b32 v10, 4, v10
    v_lshl_add_u32 v10, v9, 10, v10
    v_and_b32 v11, 1, v{vL}
    v_lshl_add_u32 v10, v11, 3, v10
    s_lshl_b32 s{sT0}, s{sT2}, 8
    v_add_u32 v{vPA}, s{sT0}, v10""")
    for ct in range(1, 8): a(f"v_xor_b32 v{vPA+ct}, {32*ct}, v{vPA}")
    lsbtags(vTG)
    a(f"s_bitcmp1_b32 s2, 0\ns_cselect_b32 s{sT0}, 0xff, 0")
    lsbtags(vTO, f"s{sT0}")
    a(f"s_sub_u32 s{sI}, s{sJ}, 4")
    if p.wrow:
        a(f"""v_and_b32 v11, 3, v{vL}
        v_lshlrev_b32 v14, 6, v11
        v_lshl_add_u32 v14, v{vG}, 4, v14
        s_lshl_b32 s{sQ+4}, s{sWave}, 8
        s_lshl_b32 s{sQ+5}, s{sH}, 11
        s_add_u32 s{sQ+4}, s{sQ+4}, s{sQ+5}
        s_add_u32 s{sQ+4}, s{sQ+4}, {ST}
        v_mov_b32 v47, v{vL16}
        s_lshl_b32 s{sQ+5}, s{sH}, 2
        s_add_u32 s{sQ+5}, s{sQ+5}, s{sI}
        s_lshl_b32 s{sQ+2}, s{sH}, 12
        s_lshl_b32 s{sQ+3}, s{sI}, 8
        s_add_u32 s{sQ+2}, s{sQ+2}, s{sQ+3}
        s_add_u32 s{sQ+3}, s{sQ+2}, {CXL}
        s_add_u32 s{sQ+2}, s{sQ+2}, {CX}
        s_mul_i32 s{sQ+5}, s{sQ+5}, {p.opstr}
        s_lshl_b32 vcc_lo, s{sWave}, 12
        s_add_u32 s{sQ+5}, s{sQ+5}, vcc_lo
        s_add_u32 s{sQ+5}, s{sQ+5}, {OP}""")
    else:
        a(f"""v_bfe_u32 v9, v{vL}, 3, 1
    v_lshlrev_b32 v14, {10 if p.cstat else 15}, v9
    v_and_b32 v11, 3, v{vL}
    v_lshl_add_u32 v14, v11, {6 if p.cstat else 11}, v14
    v_lshl_add_u32 v14, v{vG}, {4 if p.cstat else 9}, v14
    s_and_b32 s{sT2}, s{sWave}, 3
    s_lshr_b32 s{sT3}, s{sWave}, 2
    s_lshl_b32 s{sQ+4}, s{sT2}, {8 if p.cstat else 13}
    s_lshl_b32 s{sQ+5}, s{sH}, {11 if p.cstat else 4}
    s_add_u32 s{sQ+4}, s{sQ+4}, s{sQ+5}
    s_add_u32 s{sQ+4}, s{sQ+4}, {ST}""")
        a(f"""v_lshl_add_u32 v47, v9, 6, v{vG}
    v_mul_u32_u24 v47, {p.opstr if p.oplay else 256}, v47
    v_and_b32 v11, 7, v{vL}
    v_lshl_add_u32 v47, v11, 4, v47
    s_lshl_b32 s{sQ+5}, s{sH}, 2
    s_add_u32 s{sQ+5}, s{sQ+5}, s{sI}
    s_lshl_b32 s{sQ+2}, s{sH}, 12
    s_lshl_b32 s{sQ+3}, s{sI}, 8
    s_add_u32 s{sQ+2}, s{sQ+2}, s{sQ+3}
    s_add_u32 s{sQ+3}, s{sQ+2}, {CXL}
    s_add_u32 s{sQ+2}, s{sQ+2}, {CX}
    s_mul_i32 s{sQ+5}, s{sQ+5}, {256 if p.oplay else p.opstr}
    s_mul_i32 vcc_lo, s{sT2}, {16*p.opstr if p.oplay else 4096}
    s_add_u32 s{sQ+5}, s{sQ+5}, vcc_lo
    s_lshl_b32 vcc_lo, s{sT3}, {7 if not p.halfo else 11}
    s_add_u32 s{sQ+5}, s{sQ+5}, vcc_lo
    s_add_u32 s{sQ+5}, s{sQ+5}, {OP}""")
    a(f"""s_bfe_u32 s{sT0}, s2, 0x10006
    s_lshl_b32 s{sT0}, s{sT0}, 15
    s_lshl_b32 s{sT1}, s{sWave}, 12
    s_add_u32 s{sT0}, s{sT0}, s{sT1}
    s_add_u32 s{sT0}, s{sT0}, {QL}
    s_add_u32 s{sT1}, s{sT1}, {L_QIMG}
    s_and_b32 vcc_lo, s{sWave}, 1
    s_lshl_b32 vcc_lo, vcc_lo, 7
    s_bfe_u32 vcc_hi, s{sWave}, 0x10001
    s_lshl_b32 vcc_hi, vcc_hi, 4
    s_or_b32 vcc_lo, vcc_lo, vcc_hi
    v_xor_b32 v16, vcc_lo, v{vL16}
    v_add_u32 v16, s{sT1}, v16
    v_xor_b32 v17, 32, v16
    v_xor_b32 v18, 64, v16
    v_xor_b32 v19, 0x60, v16
    """)
    a(f"""s_lshl_b32 s{sQ+9}, s{sT3}, 12
    s_add_u32 s{sQ+9}, s{sQ+9}, {L_SX}
    v_add_u32 v10, s{sQ+9}, v{vL16}
    s_lshl_b32 s{sQ+9}, s{sT2}, 10
    v_add_u32 v11, s{sQ+9}, v10
    v_mul_u32_u24 v12, {4096 if p.oplay else 16*p.opstr}, v{vG}
    v_lshl_add_u32 v12, v{vJ}, 4, v12
    s_sub_u32 s{sQ+9}, s2, 128
    s_lshl_b32 s{sT1}, s{sQ+9}, {4 if p.cstat else 9}
    v_lshlrev_b32 v15, {11 if p.cstat else 4}, v{vL}
    s_lshl_b32 vcc_lo, s{sT3}, {15 if p.cstat else 8}
    s_add_u32 s{sT1}, s{sT1}, vcc_lo
    s_add_u32 s{sT1}, s{sT1}, {ST}
    s_mul_i32 s{sQ+10}, s{sQ+9}, {p.opstr if p.oplay else 256}
    s_mul_i32 vcc_lo, s{sT3}, {16384 if p.oplay else 64*p.opstr}
    s_add_u32 s{sQ+10}, s{sQ+10}, vcc_lo
    s_mul_i32 vcc_lo, s{sT2}, {256 if p.oplay else p.opstr}
    s_add_u32 s{sQ+10}, s{sQ+10}, vcc_lo
    s_add_u32 s{sQ+10}, s{sQ+10}, {OP}
    s_lshl_b32 s{sQ+9}, s{sQ+9}, 8
    s_lshl_b32 vcc_lo, s{sT3}, 7
    s_add_u32 s{sQ+9}, s{sQ+9}, vcc_lo
    s_add_u32 s{sQ+9}, s{sQ+9}, {HC}""")
    if p.uv1 < 8: uvsetup(sQ)
    if p.cflag and p.cprog:
        a(f"""s_bfe_u32 s{sQ+9}, s2, 0x20004
        s_mul_i32 s{sQ+9}, s{sQ+9}, {p.cstr}
        s_and_b32 vcc_lo, s2, 15
        s_lshl_b32 vcc_lo, vcc_lo, 1
        s_add_u32 s{sQ+9}, s{sQ+9}, vcc_lo
        s_bfe_u32 vcc_lo, s2, 0x10006
        s_lshl_b32 vcc_lo, vcc_lo, 5
        s_add_u32 s{sQ+9}, s{sQ+9}, vcc_lo
        s_add_u32 s{sQ+9}, s{sQ+9}, {FP2}
        v_mul_u32_u24 v46, {8*p.cstr}, v{vL}""")
    elif p.cflag:
        a(f"""s_bfe_u32 s{sQ+9}, s2, 0x30004
        s_mul_i32 s{sQ+9}, s{sQ+9}, {p.cstr}
        s_and_b32 vcc_lo, s2, 15
        s_lshl_b32 vcc_lo, vcc_lo, 2
        s_add_u32 s{sQ+9}, s{sQ+9}, vcc_lo
        s_add_u32 s{sQ+9}, s{sQ+9}, {FP2}
        v_mul_u32_u24 v46, {8*p.cstr}, v{vL}""")
        if p.cfine: a(f"s_mul_i32 vcc_lo, s{sWave}, {16*p.cstr}\ns_add_u32 s{sQ+9}, s{sQ+9}, vcc_lo")
    for k in range(4): a(f"v_mov_b32 v{248+k}, 0x3f803f80\nv_mov_b32 v{252+k}, s{sT[0]}")
    if p.own:
        a(f"""s_lshl_b32 vcc_lo, s{sT3}, 11
        s_add_u32 vcc_lo, vcc_lo, {L_PX}
        v_lshlrev_b32 v253, 3, v{vL}
        v_add_u32 v253, vcc_lo, v253
        s_lshl_b32 vcc_lo, s{sT2}, 9
        v_add_u32 v254, vcc_lo, v253""")
    def qloads():
        for n in range(4): a(f"buffer_load_dwordx4 {V(vQG+4*n)}, v{vL16}, {R(rWS)}, s{sT0} offen offset:{1024*(n if not p.emub else n&1)} sc1")
    for T in range(4):
        if T == p.qat:
            if p.bflag:
                a(f"""s_and_b32 s{sQ+8}, s2, 15
                s_lshl_b32 s{sQ+8}, s{sQ+8}, 3
                s_add_u32 s{sQ+8}, s{sQ+8}, s{sWave}
                s_mul_i32 s{sQ+8}, s{sQ+8}, {p.cstr}
                s_add_u32 s{sQ+8}, s{sQ+8}, {FP2 + 0x80000}
                s_mov_b32 s{sQ+6}, s{sT[0]}
                s_mov_b32 s{sQ+7}, s{sT[0]}
                s_mov_b32 s{sCnt}, 0
L_bf:
                s_load_dwordx16 s[4:19], s[{rWS}:{rWS+1}], s{sQ+8} glc
                s_add_u32 s{sCnt}, s{sCnt}, 1
                s_cmp_ge_u32 s{sCnt}, {p.maxspin}
                s_cbranch_scc1 L_bfd
                s_waitcnt lgkmcnt(0)""")
                for k in range(8): a(f"s_cmp_lg_u64 s[{4+2*k}:{5+2*k}], s[{sQ+6}:{sQ+7}]\ns_cbranch_scc1 L_bf")
                a("L_bfd:\ns_waitcnt lgkmcnt(0)")
            qloads()
            if p.uv2:
                a(f"s_cmp_lt_u32 s{sWave}, 4\ns_cbranch_scc1 L_Y_nouv2")
                uvdma(sQ, p.uv1, p.uv1 + p.uv2)
                a.label("L_Y_nouv2")
        a(f"s_waitcnt vmcnt({12-4*T + (4+p.uv2 if T >= p.qat else 0)})\ns_barrier")
        if p.gate == 17 + T:
            a(f"""s_sub_u32 vcc_lo, s2, 128
            s_lshl_b32 vcc_lo, vcc_lo, 7
            s_add_u32 vcc_lo, vcc_lo, {HG}
            s_cmp_eq_u32 s{sWave}, 1
            s_cselect_b32 exec_lo, 0xf, 0
            s_mov_b32 exec_hi, 0
            buffer_store_dwordx4 v[252:255], v{vL16}, {R(rWS)}, vcc_lo offen sc1
            s_mov_b64 exec, -1""")
        if T == 3:
            stamp(3); cyc(1)
            if p.qat == 4: qloads()
        Ls = a.newlabel('nos'); Ln = a.newlabel('nof')
        if p.solo: a(f"s_cmp_ge_u32 s{sWave}, 4\ns_cbranch_scc1 {Ln}")
        a(f"s_cmp_lg_u32 s{sT2}, {T}\ns_cbranch_scc1 {Ls}")
        for ks in range(16):
            a(f"v_xor_b32 v9, {16*ks}, v13\nds_read_b128 {V(vSF+4*ks)}, v9")
        a.label(Ls)
        for ct in range(8):
            a(f"ds_read_b64_tr_b16 {V(vPF+8*ct+2*T, 2)}, v{vPA+ct} offset:{16384*T}")
        if p.solo: a.label(Ln)
    if p.qsplit: a(f"s_cmp_eq_u32 s{sT3}, 0\ns_cbranch_scc1 L_Y_q\ns_barrier\nL_Y_q:")
    Lq = a.newlabel('qchk'); L = a.newlabel('poll'); Lw = a.newlabel('qw')
    def qw(n): a(f"ds_write_b128 v{16+n}, {V(vQG+4*n)} offset:{1024*n}")
    a(f"s_mov_b32 s{sCnt}, 0")
    if p.uv2:
        a(f"s_cmp_lt_u32 s{sWave}, 4\ns_cbranch_scc1 {Lw}")
        for n in range(4):
            a(f"s_waitcnt vmcnt({3-n+p.uv2})"); qw(n); chkv(9, vQG+4*n, vTG, n == 0)
        a(f"s_branch {Lq}")
    else:
        a(f"s_branch {Lw}")
    a.label(L)
    qloads()
    a("s_mov_b64 exec, -1")
    a.label(Lw)
    for n in range(4):
        a(f"s_waitcnt vmcnt({3-n})"); qw(n); chkv(9, vQG+4*n, vTG, n == 0)
    a.label(Lq)
    poll_end_masked(L, 9, '0x10001', p.bsleep)
    if p.stamp: a(f"s_mov_b32 s{sStamp+24}, s{sCnt}")
    stamp(4)
    a(f"s_mov_b32 s{sT0}, s{sQ+10}\nv_mov_b32 v9, 0x10001")
    def hint(pos):
        if p.hintpos == pos and p.cfine:
            a(f"""s_mov_b64 exec, 3
            buffer_store_dword v252, v46, {R(rWS)}, s{sQ+9} offen sc1
            s_mov_b64 exec, -1""")
        elif p.hintpos == pos and p.cflag:
            a(f"""s_cmp_eq_u32 s{sWave}, {p.cw}
            s_cbranch_scc0 L_Y_noh
            s_mov_b32 exec_lo, {((1 << p.crep) - 1) & 0xffffffff}
            s_mov_b32 exec_hi, {((1 << p.crep) - 1) >> 32}
            buffer_store_{'short' if p.cprog else 'dword'} v252, v46, {R(rWS)}, s{sQ+9} offen sc1
            s_mov_b64 exec, -1
L_Y_noh:""")
        elif p.hintpos == pos:
            a(f"""s_cmp_eq_u32 s{sT2}, 3
            s_cselect_b32 exec_lo, 0xf, 0
            s_mov_b32 exec_hi, 0
            buffer_store_dwordx4 v[252:255], v{vL16}, {R(rWS)}, s{sQ+9} offen sc1
            s_mov_b64 exec, -1""")
    if p.solo:
        NQ = 8
        cyc(2)
        a("s_waitcnt lgkmcnt(0)\ns_barrier")
        stamp(5); cyc(3)
        a(f"s_cmp_ge_u32 s{sWave}, 4\ns_cbranch_scc1 L_Y_help\ns_setprio 2")
        lds = []
        def L_(tag, text): lds.append(tag); a(text)
        def W_(tag):
            n = len(lds) - 1 - lds.index(tag)
            assert n <= 15
            a(f"s_waitcnt lgkmcnt({n})")
        def qread(k): L_(('q', k), f"ds_read_b128 {V(vQG+4*(k%NQ))}, v{vQA+(k%16)} offset:{16384*(k//16)}")
        def softmax_ops(S, m, P):
            pk = lambda r: f"v_pk_add_f32 v[{r}:{r+1}], v[{r}:{r+1}], v[{m}:{m+1}] op_sel_hi:[1,0] neg_lo:[0,1] neg_hi:[0,1]"
            A = [f"v_max3_f32 v{m}, v{S}, v{S+1}, v{S+2}", f"v_max3_f32 v{m+1}, v{S+3}, v{S+4}, v{S+5}",
                 f"v_max3_f32 v{m}, v{m}, v{S+6}, v{S+7}", f"v_max3_f32 v{m+1}, v{m+1}, v{S+8}, v{S+9}",
                 f"v_max3_f32 v{m}, v{m}, v{S+10}, v{S+11}", f"v_max3_f32 v{m+1}, v{m+1}, v{S+12}, v{S+13}",
                 f"v_max3_f32 v{m}, v{m}, v{S+14}, v{S+15}", f"v_max_f32 v{m}, v{m}, v{m+1}",
                 f"v_mov_b32 v{m+1}, v{m}", None, f"v_permlane32_swap_b32 v{m}, v{m+1}", f"v_max_f32 v{m}, v{m}, v{m+1}",
                 f"v_mov_b32 v{m+1}, v{m}", None, f"v_permlane16_swap_b32 v{m}, v{m+1}", f"v_max_f32 v{m}, v{m}, v{m+1}"]
            B = [pk(S+2*k) for k in range(4)] + [f"v_exp_f32 v{S+k}, v{S+k}" for k in range(8)] + [pk(S+8), pk(S+10)] + \
                [f"v_cvt_pk_bf16_f32 v{P+k}, v{S+2*k}, v{S+2*k+1}" for k in range(4)]
            C = [pk(S+12), pk(S+14)] + [f"v_exp_f32 v{S+k}, v{S+k}" for k in range(8, 16)] + \
                [f"v_cvt_pk_bf16_f32 v{P+k}, v{S+2*k}, v{S+2*k+1}" for k in range(4, 8)]
            return A + B, C
        def fill(q, n):
            k = 0
            while q and k < n:
                x = q.pop(0)
                if x is None: break
                if callable(x): x()
                else: a(x)
                k += 2 if (isinstance(x, str) and 'v_exp' in x) else 1
        def drain(q):
            while q: fill(q, 99)
        sa0, sa1, S0, S1, P0, P1, m0_, m1_, AC0, AC1, O0, O1 = 208, 248, 48, 64, 36, 20, 16, 18, 176, 80, 216, 232
        for k in range(NQ): qread(k)
        for k in range(16):
            W_(('q', k)); mfma(sa0, vSF+4*k, vQG+4*(k % NQ), '0' if k == 0 else None); qread(k+NQ)
        cyc(4)
        sm0, sm0c = softmax_ops(S0, m0_, P0)
        for k in range(16, 32):
            W_(('q', k)); mfma(sa1, vSF+4*(k-16), vQG+4*(k % NQ), '0' if k == 16 else None)
            if k + NQ < 32: qread(k+NQ)
            if k == 18: L_('w0', f"ds_write_b128 v11, {V(sa0)}")
            if k == 21:
                W_('w0'); a("s_barrier")
                for T in range(4): L_(('s0', T), f"ds_read_b128 {V(S0+4*T)}, v10 offset:{1024*T}")
            if k == 25: W_(('s0', 3))
            if k >= 25: fill(sm0, p.f1)
        cyc(5)
        fill(sm0, 4); fill(sm0, 4); fill(sm0, 4)
        L_('w1', f"ds_write_b128 v11, {V(sa1)} offset:4096")
        fill(sm0, 10)
        W_('w1'); a("s_barrier")
        for T in range(4): L_(('s1', T), f"ds_read_b128 {V(S1+4*T)}, v10 offset:{4096+1024*T}")
        drain(sm0)
        hint(0); cyc(6)
        sm1, sm1c = softmax_ops(S1, m1_, P1)
        for ct in range(8):
            mfma(AC0+4*ct, P0, vPF+8*ct, '0'); fill(sm0c, p.f2)
        drain(sm0c)
        W_(('s1', 3)); fill(sm1, 2)
        hint(1); cyc(7)
        for ct in range(8):
            mfma(AC0+4*ct, P0+4, vPF+8*ct+4); fill(sm1, p.f2)
        drain(sm1)
        hint(2); cyc(8)
        def epi(AC, O, k):
            return [f"v_cvt_pk_bf16_f32 v{O+4*r+k}, v{AC+8*k+r}, v{AC+8*k+4+r}" for r in range(4)] + \
                   [f"v_bfi_b32 v{O+4*r+k}, v9, v{vTO+k}, v{O+4*r+k}" for r in range(4)]
        def epir(AC, O, r):
            return [f"v_cvt_pk_bf16_f32 v{O+4*r+k}, v{AC+8*k+r}, v{AC+8*k+4+r}" for k in range(4)] + \
                   [f"v_bfi_b32 v{O+4*r+k}, v9, v{vTO+k}, v{O+4*r+k}" for k in range(4)] + \
                   [f"buffer_store_dwordx4 {V(O+4*r)}, v12, {R(rWS)}, s{sT0} offen sc1\ns_add_u32 s{sT0}, s{sT0}, {4*p.opstr if r < 3 else 52*p.opstr}"]
        for ct in range(8):
            mfma(AC1+4*ct, P1, vPF+8*ct, '0'); fill(sm1c, p.f2)
        drain(sm1c)
        e0 = epir(AC0, O0, 0) + epir(AC0, O0, 1) + epir(AC0, O0, 2) + epir(AC0, O0, 3)
        fill(e0, 2)
        hint(4); cyc(9)
        for ct in range(8):
            mfma(AC1+4*ct, P1+4, vPF+8*ct+4); fill(e0, p.f2)
        drain(e0)
        hint(5); cyc(10)
        for r in range(4): drain(epir(AC1, O1, r))
        hint(3)
        stamp(7); cyc(11)
        a("s_branch L_Y_vv")
        a.label("L_Y_help")
        uvdma(sQ, p.uv1 + p.uv2, 8 - p.uv3)
        a(f"""s_lshl_b32 vcc_lo, s{sT2}, 12
        s_add_u32 vcc_lo, vcc_lo, {L_SX}
        v_add_u32 v10, vcc_lo, v{vL16}
        s_sub_u32 s{sT1}, s{sT1}, 32768
        s_lshl_b32 vcc_lo, s{sT2}, 15
        s_add_u32 s{sT1}, s{sT1}, vcc_lo
        s_barrier
        s_barrier
        s_cmp_ge_u32 s{sWave}, 6
        s_cbranch_scc1 L_Y_vv""")
        for T in range(4): a(f"ds_read_b128 {V(48+4*T)}, v10 offset:{1024*T}")
        a("s_waitcnt lgkmcnt(0)")
        h, hc = softmax_ops(48, 64, 72)
        for x in h + hc:
            if x and 'cvt' not in x: a(x)
        for k in range(4): a(f"v_pk_add_f32 v[{48+2*k}:{49+2*k}], v[{48+2*k}:{49+2*k}], v[{56+2*k}:{57+2*k}]")
        a("""v_pk_add_f32 v[48:49], v[48:49], v[52:53]
        v_pk_add_f32 v[50:51], v[50:51], v[54:55]
        v_pk_add_f32 v[48:49], v[48:49], v[50:51]
        v_add_f32 v65, v48, v49""")
        allred_groups("v_add_f32", 65, 66)
        a(f"""v_mov_b32 v66, s{sT[0]}
        s_mov_b64 exec, 0xffff
        buffer_store_dwordx4 v[64:67], v15, {R(rWS)}, s{sT1} offen sc1
        s_mov_b64 exec, -1""")
        stamp(7)
        a.label("L_Y_vv")
        a("s_setprio 0")
    else:
        NQ = 8
        if p.qsplit:
            p.qpre = 0
            a(f"s_cmp_eq_u32 s{sT3}, 0\ns_cbranch_scc1 L_Y_s")
            uvdma(sQ, p.uv1 + p.uv2, 8 - p.uv3)
            if p.prio: a(f"s_setprio {p.prio}")
            a.label("L_Y_s")
            a("s_waitcnt lgkmcnt(0)\ns_barrier")
            stamp(5)
        else:
            cyc(2)
            a("s_waitcnt lgkmcnt(0)\ns_barrier")
            stamp(5); cyc(3)
            for ks in range(p.qpre): a(f"ds_read_b128 {V(vQG+4*ks)}, v{vQA+ks}")
            a(f"""s_cmp_eq_u32 s{sT3}, 0
    s_cbranch_scc1 L_Y_s""")
            uvdma(sQ, p.uv1 + p.uv2, 8 - p.uv3)
            a("s_barrier")
            if p.prio: a(f"s_setprio {p.prio}")
            a.label("L_Y_s")
        cyc(4)
        for ks in range(p.qpre, NQ): a(f"ds_read_b128 {V(vQG+4*ks)}, v{vQA+ks}")
        for ks in range(16):
            rem = min(15, ks+NQ-1) - ks
            a(f"s_waitcnt lgkmcnt({rem})")
            mfma(vACC, vSF+4*ks, vQG+4*(ks % NQ), '0' if ks == 0 else None)
            if ks + NQ < 16: a(f"ds_read_b128 {V(vQG+4*(ks%NQ))}, v{vQA+ks+NQ}")
        cyc(5)
        a(f"""ds_write_b128 v11, {V(vACC)}
    s_waitcnt lgkmcnt(0)
    s_barrier""")
        stamp(6); cyc(6)
        vS = 48
        for T in range(4): a(f"ds_read_b128 {V(vS+4*T)}, v10 offset:{1024*T}")
        hint(0)
        a(f"""s_waitcnt lgkmcnt(2)
    v_max3_f32 v64, v{vS}, v{vS+1}, v{vS+2}
    v_max3_f32 v65, v{vS+3}, v{vS+4}, v{vS+5}
    v_max3_f32 v64, v64, v{vS+6}, v{vS+7}
    s_waitcnt lgkmcnt(0)
    v_max3_f32 v65, v65, v{vS+8}, v{vS+9}
    v_max3_f32 v64, v64, v{vS+10}, v{vS+11}
    v_max3_f32 v65, v65, v{vS+12}, v{vS+13}
    v_max3_f32 v64, v64, v{vS+14}, v{vS+15}
    v_max_f32 v64, v64, v65""")
        allred_groups("v_max_f32", 64, 65)
        cyc(7)
        def lead_bar():
            a(f"s_cmp_eq_u32 s{sT3}, 0\ns_cbranch_scc0 L_Y_p\ns_barrier\nL_Y_p:")
        def epi(k):
            return [f"v_cvt_pk_bf16_f32 v{80+4*r+k}, v{vACC+8*k+r}, v{vACC+8*k+4+r}" for r in range(4)] + \
                   [f"v_bfi_b32 v{80+4*r+k}, v9, v{vTO+k}, v{80+4*r+k}" for r in range(4)]
        if p.own:
            vP = 72
            for k in range(4): a(f"v_sub_f32 v{vACC+k}, v{vACC+k}, v64")
            for k in range(4): a(f"v_exp_f32 v{vACC+k}, v{vACC+k}")
            a(f"""v_mov_b32 v66, s{sT[0]}
            v_cvt_pk_bf16_f32 v70, v{vACC}, v{vACC+1}
            v_cvt_pk_bf16_f32 v71, v{vACC+2}, v{vACC+3}
            ds_write_b64 v254, v[70:71]
            s_waitcnt lgkmcnt(0)
            s_barrier""")
            cyc(8)
            for T in range(4): a(f"ds_read_b64 v[{vP+2*T}:{vP+2*T+1}], v253 offset:{512*T}")
            hint(1)
            a(f"""s_cmp_eq_u32 s{sT2}, 0
            s_cselect_b32 vcc_lo, 0xffff, 0
            s_waitcnt lgkmcnt(0)
            s_cbranch_scc0 L_Y_nol""")
            mfma(68, 248, vP, '0')
            mfma(68, 248, vP+4)
            a.label("L_Y_nol")
            n = 0; q = []
            for k in range(4):
                for (c, kk) in ((0, 0), (1, 0), (0, 1), (1, 1)):
                    ct = 2*k + c
                    mfma(vACC+4*ct, vP+4*kk, vPF+8*ct+4*kk, '0' if kk == 0 else None)
                    n += 1
                    if n == p.x3: lead_bar()
                    if n == 8:
                        if not p.stlate:
                            a(f"""v_mov_b32 v65, v68
                        s_mov_b32 exec_lo, vcc_lo
                        s_mov_b32 exec_hi, 0
                        buffer_store_dwordx4 v[64:67], v15, {R(rWS)}, s{sT1} offen sc1
                        s_mov_b64 exec, -1""")
                        hint(2)
                        q = epi(0) + epi(1)
                    elif n > 8:
                        a(q.pop(0)); a(q.pop(0))
            rest = q + epi(2)
            if p.x3 > 16: lead_bar()
        else:
            if p.bpos == 1: lead_bar()
            vP = 72
            def pksub(r): return f"v_pk_add_f32 v[{r}:{r+1}], v[{r}:{r+1}], v[64:65] op_sel_hi:[1,0] neg_lo:[0,1] neg_hi:[0,1]"
            for k in range(4): a(pksub(vS+2*k))
            for k in range(8): a(f"v_exp_f32 v{vS+k}, v{vS+k}")
            for k in range(4, 8): a(pksub(vS+2*k))
            for k in range(4): a(f"v_cvt_pk_bf16_f32 v{vP+k}, v{vS+2*k}, v{vS+2*k+1}")
            hint(1); cyc(8)
            if p.diag == 1: stamp(1)
            if p.bpos == 0: lead_bar()
            for ct in range(8):
                mfma(vACC+4*ct, vP, vPF+8*ct, '0')
                a(f"v_exp_f32 v{vS+8+ct}, v{vS+8+ct}")
                if ct in (3, 5, 7): a(f"v_cvt_pk_bf16_f32 v{vP+4+(ct-3)//2}, v{vS+8+ct-3}, v{vS+8+ct-2}")
            a(f"v_mov_b32 v66, s{sT[0]}\nv_cvt_pk_bf16_f32 v{vP+7}, v{vS+14}, v{vS+15}")
            hint(2)
            if p.diag == 1: stamp(4)
            a(f"""s_cmp_eq_u32 s{sT2}, 0
    s_cbranch_scc0 L_Y_nol""")
            mfma(68, 248, vP, '0')
            mfma(68, 248, vP+4)
            a.label("L_Y_nol")
            def epi(k):
                return [f"v_cvt_pk_bf16_f32 v{80+4*r+k}, v{vACC+8*k+r}, v{vACC+8*k+4+r}" for r in range(4)] + \
                       [f"v_bfi_b32 v{80+4*r+k}, v9, v{vTO+k}, v{80+4*r+k}" for r in range(4)]
            for ct in range(4): mfma(vACC+4*ct, vP+4, vPF+8*ct+4)
            a(f"""s_cmp_eq_u32 s{sT2}, 0
    s_cselect_b32 vcc_lo, 0xffff, 0""")
            mfma(vACC+16, vP+4, vPF+36)
            a("s_nop 0\nv_mov_b32 v65, v68")
            mfma(vACC+20, vP+4, vPF+44)
            if not p.stlate:
                a(f"""s_mov_b32 exec_lo, vcc_lo
    s_mov_b32 exec_hi, 0
    {'s_cbranch_execz L_Y_nost2' if p.stbr else ''}
    buffer_store_dwordx4 v[64:67], v15, {R(rWS)}, s{sT1} offen sc1
L_Y_nost2:
    s_mov_b64 exec, -1""")
            e = epi(0)
            mfma(vACC+24, vP+4, vPF+52)
            for x in e[:3]: a(x)
            mfma(vACC+28, vP+4, vPF+60)
            rest = e[3:] + epi(1) + epi(2)
        if p.diag == 1: stamp(2)
        cyc(9)
        for x in rest: a(x)
        cyc(10)
        if p.diag == 6: a(f"s_memrealtime s[{sStamp+6}:{sStamp+7}]")
        hint(4)
        if p.stlate:
            a(f"""s_cmp_eq_u32 s{sT2}, 0
            s_cbranch_scc0 L_Y_nost
            v_mov_b32 v65, v68
            s_mov_b64 exec, 0xffff
            buffer_store_dwordx4 v[64:67], v15, {R(rWS)}, s{sT1} offen sc1
            s_mov_b64 exec, -1
L_Y_nost:""")
        for r in range(4):
            a(f"v_cvt_pk_bf16_f32 v{83+4*r}, v{vACC+24+r}, v{vACC+28+r}")
            a(f"v_bfi_b32 v{83+4*r}, v9, v{vTO+3}, v{83+4*r}")
            if r: hint(4+r)
            if p.halfo: a("s_mov_b32 exec_lo, 0x00ff00ff\ns_mov_b32 exec_hi, 0x00ff00ff")
            a(f"buffer_store_dwordx4 {V(80+4*r)}, v12, {R(rWS)}, s{sT0} offen sc1")
            if p.halfo: a("s_mov_b64 exec, -1")
            if r < 3: a(f"s_add_u32 s{sT0}, s{sT0}, {1024 if p.oplay else 4*p.opstr}")
        hint(3)
        stamp(7); cyc(11)
        if p.diag == 6: a(f"s_waitcnt vmcnt(0)\ns_memrealtime s[{sStamp+8}:{sStamp+9}]")
    if p.uv3:
        a(f"s_cmp_lt_u32 s{sWave}, 4\ns_cbranch_scc1 L_Y_nouv3")
        uvdma(sQ, 8 - p.uv3, 8)
        a.label("L_Y_nouv3")
    if p.prio: a("s_setprio 0")
    def latesetup():
        a(f"""v_bfe_u32 v9, v{vL}, 2, 2
    v_lshl_add_u32 v134, {'v9, 4, v%d' % vG if p.uvlin else 'v%d, 3, v9' % vG}
    v_lshlrev_b32 v134, 8, v134
    v_and_b32 v11, 1, v{vG}
    v_lshl_add_u32 v9, v11, 2, v9
    v_lshlrev_b32 v9, 1, v9
    v_bfe_u32 v11, v{vL}, 1, 1
    s_lshl_b32 s{sT0}, s{sWave}, 1
    v_add_u32 v11, s{sT0}, v11
    v_xor_b32 v9, v9, v11
    v_lshl_add_u32 v134, v9, 4, v134
    v_and_b32 v9, 1, v{vL}
    v_lshl_add_u32 v134, v9, 3, v134
    v_add_u32 v134, {L_WUVY}, v134""")
        a(f"v_bfe_u32 v9, v{vL}, 3, 1\nv_and_b32 v11, 7, v{vL}")
        a(f"v_and_b32 v122, 1, v{vG}\nv_mul_u32_u24 v122, 0xff, v122")
        lsbtags(124, "v122")
        if p.wrow:
            a(f"""v_and_b32 v123, 1, v{vG}
        v_lshlrev_b32 v122, 4, v{vJ}
        v_lshl_add_u32 v122, v123, 3, v122
        s_mul_i32 s{sQ+7}, s{sWave}, 272
        s_add_u32 s{sQ+7}, s{sQ+7}, {L_AIMGY}
        v_add_u32 v122, s{sQ+7}, v122
        s_lshl_b32 s{sQ+7}, s{sT3}, 5
        s_lshl_b32 s{sQ+8}, s{sT2}, 2
        s_add_u32 s{sQ+7}, s{sQ+7}, s{sQ+8}
        s_add_u32 s{sQ+7}, s{sQ+7}, {L_VSTY}
        v_mov_b32 v128, s{sQ+7}
        v_lshlrev_b32 v129, 5, v123
        v_add_u32 v129, {L_VSTY}, v129""")
        else:
            a(f"""v_mul_u32_u24 v122, {4*272}, v9
    v_lshl_add_u32 v122, v11, 4, v122
    v_and_b32 v123, 1, v{vG}
    v_lshl_add_u32 v122, v123, 3, v122
    s_mul_i32 s{sQ+7}, s{sT2}, 272
    s_lshl_b32 s{sQ+8}, s{sT3}, 7
    s_add_u32 s{sQ+7}, s{sQ+7}, s{sQ+8}
    s_add_u32 s{sQ+7}, s{sQ+7}, {L_AIMGY}
    v_add_u32 v122, s{sQ+7}, v122""")
            a(f"""v_lshlrev_b32 v128, 5, v9
    s_lshl_b32 s{sQ+7}, s{sT2}, 2
    s_add_u32 s{sQ+7}, s{sQ+7}, {L_VSTY}
    v_add_u32 v128, s{sQ+7}, v128
    v_lshlrev_b32 v129, 5, v123
    v_add_u32 v129, {L_VSTY}, v129""")
        a(f"""v_mul_u32_u24 v130, 272, v11
    v_lshl_add_u32 v130, v{vG}, 4, v130
    v_add_u32 v130, {L_AIMGY}, v130""")
        a(f"""v_lshlrev_b32 v131, 5, v{vG}
    v_lshl_add_u32 v131, v11, 2, v131
    v_lshl_add_u32 v131, v9, 6, v131
    s_lshr_b32 s{sQ+7}, s{sWave}, 1
    s_lshl_b32 s{sQ+7}, s{sQ+7}, 10
    s_and_b32 s{sQ+8}, s{sWave}, 1
    s_lshl_b32 s{sQ+8}, s{sQ+8}, 7
    s_add_u32 s{sQ+7}, s{sQ+7}, s{sQ+8}
    v_add_u32 v131, s{sQ+7}, v131
    v_and_b32 v132, 3, v{vL}
    v_mul_u32_u24 v132, 37, v132
    v_add_u32 v132, s{sT[0]}, v132""")
        a("v_mov_b32 v133, 1")
    if p.early: latesetup()
    if p.cfine:
        a(f"""s_lshr_b32 s{sQ}, s{sH}, 4
        s_lshl_b32 s{sQ}, s{sQ}, 2
        s_add_u32 s{sQ}, s{sQ}, s{sI}
        s_lshl_b32 s{sQ}, s{sQ}, 1
        s_and_b32 vcc_lo, s{sH}, 1
        s_add_u32 s{sQ}, s{sQ}, vcc_lo
        s_lshl_b32 s{sQ}, s{sQ}, 3
        s_add_u32 s{sQ}, s{sQ}, s{sWave}
        s_mul_i32 s{sQ}, s{sQ}, {p.cstr}
        s_add_u32 s{sQ}, s{sQ}, {FP2}
        s_mov_b32 s{sQ+6}, s{sT[0]}
        s_mov_b32 s{sQ+7}, s{sT[0]}
        s_mov_b32 s{sCnt}, 0
        s_mov_b32 s{sQ+8}, 15
L_cf:
        s_load_dwordx16 s[4:19], s[{rWS}:{rWS+1}], s{sQ} glc
        s_add_u32 s{sCnt}, s{sCnt}, 1
        s_cmp_ge_u32 s{sCnt}, {p.maxspin}
        s_cbranch_scc1 L_cfd
        s_waitcnt lgkmcnt(0)""")
        for u in range(4):
            a(f"""s_bitcmp0_b32 s{sQ+8}, {u}
            s_cbranch_scc1 L_cf{u}
            s_cmp_lg_u64 s[{4+4*u}:{5+4*u}], s[{sQ+6}:{sQ+7}]
            s_cbranch_scc1 L_cf{u}
            s_cmp_lg_u64 s[{6+4*u}:{7+4*u}], s[{sQ+6}:{sQ+7}]
            s_cbranch_scc1 L_cf{u}
            buffer_load_dwordx4 {V(56+4*u)}, v47, {R(rWS)}, s{sQ+5} offen offset:{1024*u} sc1
            s_bitset0_b32 s{sQ+8}, {u}
L_cf{u}:""")
        a(f"s_cmp_lg_u32 s{sQ+8}, 0\ns_cbranch_scc1 L_cf\nL_cfd:\ns_waitcnt lgkmcnt(0)")
    elif p.cflag:
        a(f"""s_and_b32 s{sQ}, s2, {p.crep-1}
        s_lshl_b32 s{sQ}, s{sQ}, 3
        s_add_u32 s{sQ}, s{sQ}, s{sT2 if p.cprog else sWave}
        s_mul_i32 s{sQ}, s{sQ}, {p.cstr}
        s_add_u32 s{sQ}, s{sQ}, {FP2}
        {f's_pack_ll_b32_b16 s{sQ+6}, s{sT[0]}, s{sT[0]}' if p.cprog else f's_mov_b32 s{sQ+6}, s{sT[0]}'}
        s_mov_b32 s{sQ+7}, s{sQ+6}
        s_mov_b32 s{sCnt}, 0
L_cf:
        s_load_dwordx16 s[4:19], s[{rWS}:{rWS+1}], s{sQ} glc
        s_add_u32 s{sCnt}, s{sCnt}, 1
        s_cmp_ge_u32 s{sCnt}, {p.maxspin}
        s_cbranch_scc1 L_cfd
        s_waitcnt lgkmcnt(0)""")
        for k in range(8): a(f"s_cmp_lg_u64 s[{4+2*k}:{5+2*k}], s[{sQ+6}:{sQ+7}]\ns_cbranch_scc1 L_cf")
        a("L_cfd:\ns_waitcnt lgkmcnt(0)")
    else:
        a(f"""s_cmp_lg_u32 s{sWave}, 0
    s_cbranch_scc1 L_Y_v
    s_bfe_u32 s{sT0}, s2, 0x10004
    s_lshl_b32 s{sT0}, s{sT0}, 7
    s_add_u32 s{sT0}, s{sT0}, {HC}""")
        for k in range(p.nsamp):
            a(f"s_add_u32 s{4+k}, s2, {37*k}\ns_and_b32 s{4+k}, s{4+k}, 127\ns_lshl_b32 s{4+k}, s{4+k}, 8\ns_add_u32 s{4+k}, s{4+k}, s{sT0}")
        if p.need: spoll_cnt([4+k for k in range(p.nsamp)], 12, p.need)
        else: spoll_all([4+k for k in range(p.nsamp)], 12)
    a.label("L_Y_v")
    if p.uv3: a("s_barrier")
    elif not (p.cprog or p.wrow in (1, 3)): a(f"s_cmp_lt_u32 s{sWave}, 4\ns_cbranch_scc1 L_Y_nw\ns_waitcnt vmcnt(0)\nL_Y_nw:\ns_barrier" if p.solo else f"s_waitcnt vmcnt({0 if p.odrain else 4})\ns_barrier")
    vBV = 20
    stamp(1)
    if p.wogate and p.wgpos == 1:
        a(f"""s_cmp_eq_u32 s{sWave}, 1
        s_cselect_b32 exec_lo, 0xf, 0
        s_mov_b32 exec_hi, 0
        buffer_store_dwordx4 v[252:255], v{vL16}, {R(rWS)}, s{sQ+9} offen offset:64 sc1
        s_mov_b64 exec, -1""")
    vOD = 56
    def cloads():
        a(f"buffer_load_dwordx4 v[52:55], v14, {R(rWS)}, s{sQ+4} offen sc1")
        for u in range(4):
            if p.oplay: a(f"s_add_u32 s{sQ+1}, s{sQ+5}, {4*u*p.opstr}\nbuffer_load_dwordx4 {V(vOD+4*u)}, v47, {R(rWS)}, s{sQ+1} offen sc1")
            else: a(f"buffer_load_dwordx4 {V(vOD+4*u)}, v47, {R(rWS)}, s{sQ+5} offen offset:{1024*(u if not p.halfo else u&1)} sc1")
    if p.cfine: a(f"buffer_load_dwordx4 v[52:55], v14, {R(rWS)}, s{sQ+4} offen sc1")
    else: cloads()
    if not p.early: latesetup()
    if p.cprog or p.wrow == 1: a(f"s_waitcnt vmcnt(9)\ns_barrier")
    def uvfr(ks):
        for hf in range(2):
            a(f"ds_read_b64_tr_b16 {V(vBV+4*ks+2*hf, 2)}, v134 offset:{(4*ks+64*hf)*256 if p.uvlin else (32*ks+4*hf)*256}")
    late_uv = p.uv3 or p.wrow == 3
    if not late_uv:
        for ks in range(4): uvfr(ks)
    if p.diag == 3:
        a(f"s_waitcnt vmcnt(4)\ns_memrealtime s[{sStamp+2}:{sStamp+3}]\ns_waitcnt vmcnt(0)\ns_memrealtime s[{sStamp+4}:{sStamp+5}]")
    if p.cfine: a("s_waitcnt vmcnt(0)")
    Lc = a.newlabel('cchk')
    a(f"s_mov_b32 s{sCnt}, 0\ns_branch {Lc}")
    L = a.newlabel('poll'); a.label(L)
    cloads()
    a.label(Lc)
    a(f"""s_mov_b64 exec, -1
    s_waitcnt vmcnt(4)
    v_max_f32_dpp v50, v52, v52 quad_perm:[1,0,3,2] row_mask:0xf bank_mask:0xf
    v_cmp_ne_u32 vcc, s{sT[0]}, v54
    v_max_f32_dpp v50, v50, v50 quad_perm:[2,3,0,1] row_mask:0xf bank_mask:0xf
    v_cndmask_b32 v49, 0, v133, vcc""")
    allred_groups("v_max_f32", 50, 51)
    a(f"""v_sub_f32 v51, v52, v50
    v_exp_f32 v51, v51
    v_cvt_pk_bf16_f32 v51, v51, v51""")
    for u in range(4):
        buildA(72+4*u, 51, u)
    a(f"""v_and_b32 v51, 0xffff0000, v51
    v_mul_f32 v51, v51, v53
    s_waitcnt vmcnt(3)""")
    mfma(88, 72, vOD, '0')
    a("v_add_f32_dpp v51, v51, v51 quad_perm:[1,0,3,2] row_mask:0xf bank_mask:0xf")
    chkv(49, vOD, 124)
    a("v_add_f32_dpp v51, v51, v51 quad_perm:[2,3,0,1] row_mask:0xf bank_mask:0xf\ns_waitcnt vmcnt(2)")
    mfma(88, 76, vOD+4)
    a("v_mov_b32 v55, v51")
    chkv(49, vOD+4, 124)
    a("v_permlane32_swap_b32 v51, v55\nv_add_f32 v51, v51, v55\ns_waitcnt vmcnt(1)")
    mfma(88, 80, vOD+8)
    a("v_mov_b32 v55, v51")
    chkv(49, vOD+8, 124)
    a("v_permlane16_swap_b32 v51, v55\nv_add_f32 v51, v51, v55\ns_waitcnt vmcnt(0)")
    mfma(88, 84, vOD+12)
    a("ds_write2_b32 v128, v50, v51 offset0:0 offset1:4")
    chkv(49, vOD+12, 124)
    poll_end_masked(L, 49, '0x10001')
    if p.stamp: a(f"s_mov_b32 s{sStamp+24}, s{sCnt}")
    stamp(8)
    if p.wogate and p.wgpos == 2:
        a(f"""s_cmp_eq_u32 s{sWave}, 1
        s_cselect_b32 exec_lo, 0xf, 0
        s_mov_b32 exec_hi, 0
        buffer_store_dwordx4 v[252:255], v{vL16}, {R(rWS)}, s{sQ+9} offen offset:64 sc1
        s_mov_b64 exec, -1""")
    a(f"""v_cvt_pk_bf16_f32 v88, v88, v89
    v_cvt_pk_bf16_f32 v89, v90, v91
    s_mov_b32 exec_lo, {'-1' if p.wrow else '0x00ff00ff'}
    s_mov_b32 exec_hi, {'0' if p.wrow else '0xff00ff00'}
    ds_write_b64 v122, v[88:89]
    s_mov_b64 exec, -1
    s_waitcnt lgkmcnt(0)
    s_barrier""")
    for ks in range(4):
        a(f"ds_read_b128 {V(56+4*ks)}, v130 offset:{64*ks}")
        if late_uv: uvfr(ks)
    a(f"ds_read_b128 v[72:75], v129\nds_read_b128 v[76:79], v129 offset:16")
    for ks in range(4):
        a(f"s_waitcnt lgkmcnt({11-3*ks if late_uv else 5-ks})")
        mfma(88, 56+4*ks, vBV+4*ks, '0' if ks == 0 else None)
    a(f"""s_waitcnt lgkmcnt(0)
    v_max3_f32 v50, v72, v73, v74
    v_max_f32 v50, v50, v75""")
    for r in range(4): a(f"v_sub_f32 v{72+r}, v{72+r}, v50")
    for r in range(4): a(f"v_exp_f32 v{72+r}, v{72+r}")
    a(f"""v_mul_f32 v51, v72, v76
    v_fmac_f32 v51, v73, v77
    v_fmac_f32 v51, v74, v78
    v_fmac_f32 v51, v75, v79
    v_rcp_f32 v51, v51
    v_mul_f32 v50, v72, v88
    v_fmac_f32 v50, v73, v89
    v_fmac_f32 v50, v74, v90
    v_fmac_f32 v50, v75, v91
    v_mul_f32 v50, v50, v51
    v_mov_b32_sdwa v50, v132 dst_sel:BYTE_0 dst_unused:UNUSED_PRESERVE src0_sel:BYTE_0
    s_mov_b32 exec_hi, 0""")
    if p.fast: a(f"buffer_store_dword v50, v131, {R(rWS)}, s{sQ+3} offen")
    a(f"""buffer_store_dword v50, v131, {R(rWS)}, s{sQ+2} offen sc1
    s_mov_b64 exec, -1""")
    stamp(2)
    if p.clean & 2: qclean(7)
    a(f"""s_sub_u32 s2, s2, 128
    s_cmp_ge_u32 s2, 72
    s_cbranch_scc1 L_Y_end
    s_cmp_ge_u32 s2, 36
    s_cselect_b32 s{sT2}, 1, 0
    s_mul_i32 s{sT3}, s{sT2}, 36
    s_sub_u32 s{sT3}, s2, s{sT3}
    s_mul_i32 s{sT0}, s{sWave}, {16*4608}
    s_mul_i32 s{sT1}, s{sT2}, 2304
    s_add_u32 s{sT0}, s{sT0}, s{sT1}
    s_lshl_b32 s{sT1}, s{sT3}, 6
    s_add_u32 s{sT0}, s{sT0}, s{sT1}
    s_add_u32 s{sT0}, s{sT0}, {FP}
    v_lshrrev_b32 v9, 2, v{vL}
    v_mul_u32_u24 v10, 4608, v9
    v_and_b32 v11, 3, v{vL}
    v_lshl_add_u32 v10, v11, 4, v10
    v_lshl_add_u32 v13, v{vG}, 2, v11
    v_lshlrev_b32 v13, 5, v13
    s_lshl_b32 s{sT1}, s{sWave}, 2
    s_add_u32 s{sT1}, s{sT1}, {L_REDY}
    v_add_u32 v13, s{sT1}, v13""")
    srd(rB, pB2, SZ['b2']); srd(rC, pOUT, SZ['out'])
    a(f"""v_mov_b32 v15, 0
    s_cmp_lg_u32 s{sWave}, 0
    s_cbranch_scc1 L_Y_rx
    s_lshl_b32 s{sT1}, s{sT3}, 2
    v_add_u32 v14, s{sT1}, v11""")
    decode_v(15, 14, 16)
    a(f"""v_bfe_u32 v14, v{vL}, 2, 2
    v_add_u32 v15, v15, v14
    v_lshlrev_b32 v15, 1, v15
    buffer_load_ushort v16, v15, {R(rB)}, 0 offen
    s_lshl_b32 s{sT1}, s{sT2}, 2
    s_add_u32 s{sT1}, s{sT1}, {L_GATE}
    v_mov_b32 v17, s{sT1}
    ds_read_b32 v17, v17
    v_lshlrev_b32 v18, 5, v{vJ}
    v_add_u32 v18, {L_REDY}, v18
    s_mul_i32 s{sT2}, s{sT2}, 1152
L_Y_rx:""")
    if p.dflag >= 3:
        for k in range(p.dsamp):
            a(f"s_add_u32 s{4+k}, s2, {(16//p.dsamp)*k}\ns_and_b32 s{4+k}, s{4+k}, 15\ns_lshl_b32 s{sQ}, s{sWave}, 4\ns_add_u32 s{4+k}, s{4+k}, s{sQ}\ns_lshl_b32 s{4+k}, s{4+k}, 7\ns_add_u32 s{4+k}, s{4+k}, {HD}")
        spoll_all([4+k for k in range(p.dsamp)], 12)
        stamp(9)
    L = poll_begin()
    a(f"""buffer_load_dwordx4 v[20:23], v10, {R(rWS)}, s{sT0} offen sc1
    s_mov_b64 exec, -1
    s_waitcnt vmcnt(0)""")
    chk4(24, 20, True)
    poll_end_masked(L, 24, '0xff')
    stamp(10)
    treduce(20)
    a(f"""v_add_f32_dpp v20, v20, v20 row_ror:4 row_mask:0xf bank_mask:0xf
    v_add_f32_dpp v20, v20, v20 row_ror:8 row_mask:0xf bank_mask:0xf
    ds_write_b32 v13, v20
    s_waitcnt lgkmcnt(0)
    s_barrier
    s_cmp_lg_u32 s{sWave}, 0
    s_cbranch_scc1 L_Y_end
    ds_read_b128 v[20:23], v18
    ds_read_b128 v[24:27], v18 offset:16
    v_lshlrev_b32 v16, 16, v16
    v_sub_f32 v17, 1.0, v17
    v_mul_f32 v16, v16, v17
    s_waitcnt lgkmcnt(0)
    v_add_f32 v20, v20, v24
    v_add_f32 v21, v21, v25
    v_add_f32 v22, v22, v26
    v_add_f32 v23, v23, v27
    v_add_f32 v20, v20, v21
    v_add_f32 v22, v22, v23
    v_add_f32 v20, v20, v16
    v_add_f32 v20, v20, v22
    v_cvt_pk_bf16_f32 v20, v20, v20
    s_mov_b64 exec, 0xffff
    buffer_store_short v20, v15, {R(rC)}, s{sT2} offen {p.outf.replace('_',' ')}
    s_cmp_lg_u32 s2, 0
    s_cbranch_scc1 L_Y_end
    s_mov_b64 exec, 1
    v_mov_b32 v21, s{sT[0]}
    v_mov_b32 v22, 0
    buffer_store_dword v21, v22, {R(rWS)}, 0 offen offset:{EPOCH} sc1""")
    a.label("L_Y_end")
    if p.stamp: a("s_add_u32 s2, s2, 128")
    stamp(11)
    finish('Y')
    a.label("L_exit")
    a("s_endpgm")
    return a.finalize()

HEADER = open('gated_mix__compressed_kv_cla__dense_activation_gelu__decode.s.ref').read().split('; Override')[0]

def emit(path, p=P):
    body = build(p)
    s = HEADER + f"""; @launch grid=(256,1,1) block=(512,1,1) lds={LDS_BYTES}
.amdgcn_target "amdgcn-amd-amdhsa--gfx950"
.text
.globl {KNAME}
.p2align 8
.type {KNAME},@function
{KNAME}:
{body}.section .rodata,"a"
.p2align 6
.amdhsa_kernel {KNAME}
  .amdhsa_next_free_vgpr 256
  .amdhsa_next_free_sgpr 102
  .amdhsa_accum_offset 256
  .amdhsa_group_segment_fixed_size 0
  .amdhsa_kernarg_size 120
  .amdhsa_user_sgpr_count 2
  .amdhsa_user_sgpr_kernarg_segment_ptr 1
  .amdhsa_system_sgpr_workgroup_id_x 1
.end_amdhsa_kernel
"""
    open(path, 'w').write(s)

if __name__ == '__main__':
    out = sys.argv[1]
    for kv in sys.argv[2:]:
        k, v = kv.split('=')
        setattr(P, k, type(getattr(P, k))(v))
    emit(out)
```

```python
import sys, struct, math
from asmlib import Asm

KNAME = "gated_mix__compressed_kv_cla__dense_activation_gelu__decode_kernel"

def f2u(x): return struct.unpack('<I', struct.pack('<f', x))[0]

class P:
    stamp = 0
    nt = "nt"
    pollA_wait = 2
    maxspin = 200000
    prefetch = 1
    wsoff = 0
    fast = 1
    nlocal = 256
    hintpos = 1
    diag = 0
    xpre = 8
    ypre = 0
    gate = 9
    qat = 3
    bsleep = 0
    tlb = 0
    cstat = 1
    dflag = 3
    drep = 18
    dsamp = 2
    dstr = 2304
    wopre = 1
    won = 9
    xg = -1
    xgn = 2
    gand = 0
    wofirst = 1
    odrain = 0
    warm = 0
    halfo = 0
    outf = ""
    outpre = 0
    wopos = 0
    w2gate = 0
    uv1 = 4
    xord = 3
    wosplit = 20
    emub = 0
    ckvf = "nt"
    fpos = 0
    wogate = 0
    wgpos = 0
    uv2 = 0
    hmix = 0
    qsplit = 0
    bpos = 1
    opstr = 32896
    fdel = 1
    asleep = 0
    fsleep = 0
    uvlin = 0
    nof = 0
    fflag = 0
    cflag = 1
    crep = 16
    cstr = 2304
    cw = 7
    cprog = 0
    oplay = 0
    qpf = 0
    qpfs = 0
    bflag = 0
    uv3 = 0
    xramp = 0
    xrn = 4
    fmid = 4
    floc = 1
    clean = 0
    wrow = 0
    p5h = 0
    cfine = 0
    early = 2
    solo = 0
    f1 = 2
    f2 = 3
    own = 0
    x3 = 12
    stlate = 0
    stbr = 0
    dex = 0
    dexw = 7
    dexr = 16
    dexs = 0
    wb = 0
    qmid = 0
    vglob = 1
    vbar = 1
    v4 = 0
    kint = 1
    b0pos = 1
    nsamp = 4
    need = 0
    prio = 1
    only = ""
    b0 = 1
    wqdma = 0
    nod1 = 0
    sparseC = 1
    qpre = 2
    enc = -1
    encwave = 4

EPOCH, QP, QL, ST, CX, HP, FP, OP, STAMP = 0, 0x10000, 0x50000, 0x60000, 0x70000, 0x90000, 0x120000, 0x200000, 0x800000
QPL, CXL, HC, HG, HD, HK, FP2 = 0x700000, 0x740000, 0x760000, 0x770000, 0x778000, 0x780000, 0x790000
HPL = 0x610000
WS_REC = 0x1000000
L_CKV, L_QIMG, L_SX, L_HX, L_GATE = 0, 65536, 98304, 106496, 107008
L_WQ = 0x18000 - 20480
L_WUK, L_WUV, L_QV, L_AIMG, L_VST, L_RED = 0, 32768, 65536, 66048, 68352, 68480
L_WUVY = 107520
L_PX = 107520 + 32768
LDS_BYTES = 107520 + 32768
L_AIMGY, L_VSTY, L_REDY = 65536, 67840, 67968
pX, pCKV, pWQ, pWUK, pWUV, pWO, pW1, pB1, pW2, pB2, pGW, pOUT, pWS = 4, 6, 8, 10, 12, 14, 18, 20, 22, 24, 26, 28, 32
sWave, sH, sJ, sI, sXcd, sTag = 3, 34, 35, 56, 57, 58
sT = [58, 59, 60, 61]
rA, rB, rC, rWS = 36, 40, 44, 48
sT0, sT1, sT2, sT3 = 52, 53, 54, 55
sCnt = 62
sQ = 64
sStamp = 76
vL, vJ, vG, vM, vL16 = 1, 2, 3, 4, 8
SZ = dict(x=2304, ckv=8388608, wq=4718592, wuk=4194304, wuv=4194304, wo=4718592, w1=5308416, w2=5308416, b1=9216, b2=1152, gw=1152, out=2304)

def build(p=P):
    a = Asm()
    nt = p.nt
    def srd(r, ptr, size):
        if ptr == pWS and p.wsoff:
            a(f"s_add_u32 s{r}, s{ptr}, {p.wsoff}\ns_addc_u32 s{r+1}, s{ptr+1}, 0\ns_mov_b32 s{r+2}, {size}\ns_mov_b32 s{r+3}, 0x20000")
            return
        a(f"s_mov_b32 s{r}, s{ptr}\ns_mov_b32 s{r+1}, s{ptr+1}\ns_mov_b32 s{r+2}, {size}\ns_mov_b32 s{r+3}, 0x20000")
    def R(r): return f"s[{r}:{r+3}]"
    def V(r, n=4): return f"v[{r}:{r+n-1}]"
    def stamp(k):
        if p.only and k not in [int(x) for x in p.only.split('.')]: return
        if p.stamp: a(f"s_memrealtime s[{sStamp+2*k}:{sStamp+2*k+1}]")
    def cyc(k):
        if p.diag == 5: a(f"s_memtime s[{sStamp+2*k}:{sStamp+2*k+1}]")
    def buildA(dst, x, u):
        for r in range(4):
            a(f"v_and_b32_dpp v{dst+r}, v{x}, v{vM+r} quad_perm:[{u},{u},{u},{u}] row_mask:0xf bank_mask:0xf")
    def mfma(d, A, B, c=None):
        a(f"v_mfma_f32_16x16x32_bf16 {V(d)}, {V(A)}, {V(B)}, {V(d) if c is None else c}")
    def tag4(d):
        for k in range(4):
            a(f"v_mov_b32_sdwa v{d+k}, s{sT[k]} dst_sel:BYTE_0 dst_unused:UNUSED_PRESERVE src0_sel:BYTE_0")
    def chk4(acc, d, first=False):
        for k in range(4):
            if first and k == 0: a(f"v_xor_b32 v{acc}, s{sT[0]}, v{d}")
            else: a(f"v_bitop3_b32 v{acc}, v{acc}, v{d+k}, s{sT[k]} bitop3:0xf6")
    def chkv(acc, d, t, first=False):
        for k in range(4):
            if first and k == 0: a(f"v_xor_b32 v{acc}, v{t}, v{d}")
            else: a(f"v_bitop3_b32 v{acc}, v{acc}, v{d+k}, v{t+k} bitop3:0xf6")
    def poll_begin():
        L = a.newlabel('poll')
        a(f"s_mov_b32 s{sCnt}, 0")
        a.label(L)
        return L
    def poll_end(L, acc, mask, fb=None, lim=None, sleep=0):
        D = a.newlabel('done')
        a(f"v_and_b32 v{acc}, {mask}, v{acc}\nv_cmp_ne_u32 vcc, 0, v{acc}\ns_add_u32 s{sCnt}, s{sCnt}, 1")
        a(f"s_cbranch_vccz {D}")
        if sleep: a(f"s_sleep {sleep}")
        if fb and p.fast:
            regs, delta = fb
            a(f"s_cmp_eq_u32 s{sCnt}, {p.nlocal}\ns_cselect_b32 vcc_lo, {delta}, 0")
            for r in regs: a(f"s_sub_u32 s{r}, s{r}, vcc_lo")
        a(f"s_cmp_lt_u32 s{sCnt}, {lim or p.maxspin}\ns_cbranch_scc1 {L}")
        a.label(D)
    def poll_end_masked(L, acc, mask, sleep=0):
        D = a.newlabel('done')
        a(f"""v_and_b32 v{acc}, {mask}, v{acc}
        v_cmp_ne_u32 vcc, 0, v{acc}
        s_add_u32 s{sCnt}, s{sCnt}, 1
        s_cbranch_vccz {D}
        s_wqm_b64 exec, vcc""")
        if sleep: a(f"s_sleep {sleep}")
        a(f"""s_cmp_lt_u32 s{sCnt}, {p.maxspin}
        s_cbranch_scc1 {L}
        s_mov_b64 exec, -1""")
        a.label(D)
    def spoll_cnt(off_regs, tmp, need):
        L = a.newlabel('sp'); D = a.newlabel('spd')
        a(f"s_mov_b32 s{sCnt}, 0")
        a.label(L)
        for k, r in enumerate(off_regs): a(f"s_load_dword s{tmp+k}, s[{rWS}:{rWS+1}], s{r} glc")
        a(f"s_add_u32 s{sCnt}, s{sCnt}, 1\ns_cmp_ge_u32 s{sCnt}, {p.maxspin}\ns_cbranch_scc1 {D}\ns_mov_b32 vcc_lo, 0\ns_waitcnt lgkmcnt(0)")
        for k, r in enumerate(off_regs): a(f"s_cmp_eq_u32 s{tmp+k}, s{sT[0]}\ns_addc_u32 vcc_lo, vcc_lo, 0")
        a(f"s_cmp_lt_u32 vcc_lo, {need}\ns_cbranch_scc1 {L}")
        a.label(D)
        a("s_waitcnt lgkmcnt(0)")
    def spoll_all(off_regs, tmp):
        L = a.newlabel('sp'); D = a.newlabel('spd')
        a(f"s_mov_b32 s{sCnt}, 0")
        a.label(L)
        for k, r in enumerate(off_regs): a(f"s_load_dword s{tmp+k}, s[{rWS}:{rWS+1}], s{r} glc")
        a(f"s_add_u32 s{sCnt}, s{sCnt}, 1\ns_cmp_ge_u32 s{sCnt}, {p.maxspin}\ns_cbranch_scc1 {D}\ns_waitcnt lgkmcnt(0)")
        for k, r in enumerate(off_regs): a(f"s_cmp_lg_u32 s{tmp+k}, s{sT[0]}\ns_cbranch_scc1 {L}")
        a.label(D)
        a("s_waitcnt lgkmcnt(0)")
    def spoll(off_regs):
        L = a.newlabel('sp'); D = a.newlabel('spd')
        a(f"s_mov_b32 s{sCnt}, 0")
        a.label(L)
        for k, r in enumerate(off_regs): a(f"s_load_dword s{sT0+k}, s[{rWS}:{rWS+1}], s{r} glc")
        a(f"s_add_u32 s{sCnt}, s{sCnt}, 1\ns_waitcnt lgkmcnt(0)")
        for k, r in enumerate(off_regs): a(f"s_cmp_eq_u32 s{sT0+k}, s{sT[0]}\ns_cbranch_scc1 {D}")
        a(f"s_cmp_lt_u32 s{sCnt}, {p.maxspin}\ns_cbranch_scc1 {L}")
        a.label(D)
    def treduce(r):
        a(f"v_permlane32_swap_b32 v{r}, v{r+2}\nv_permlane32_swap_b32 v{r+1}, v{r+3}")
        a(f"v_add_f32 v{r}, v{r}, v{r+2}\nv_add_f32 v{r+1}, v{r+1}, v{r+3}")
        a(f"v_permlane16_swap_b32 v{r}, v{r+1}\nv_add_f32 v{r}, v{r}, v{r+1}")
    def allred_groups(op, r, t):
        a(f"v_mov_b32 v{t}, v{r}\nv_permlane32_swap_b32 v{r}, v{t}\n{op} v{r}, v{r}, v{t}")
        a(f"v_mov_b32 v{t}, v{r}\nv_permlane16_swap_b32 v{r}, v{t}\n{op} v{r}, v{r}, v{t}")
    def masks():
        a(f"""v_and_b32 v9, 3, v{vL}
        v_lshlrev_b32 v9, 4, v9
        v_mov_b32 v10, 0xffff
        v_mov_b32 v11, 0
        v_lshlrev_b64 v[10:11], v9, v[10:11]
        v_and_b32 v9, 4, v{vL}
        v_cmp_eq_u32 vcc, 0, v9
        v_cndmask_b32 v{vM}, 0, v10, vcc
        v_cndmask_b32 v{vM+1}, 0, v11, vcc
        v_cndmask_b32 v{vM+2}, v10, 0, vcc
        v_cndmask_b32 v{vM+3}, v11, 0, vcc""".replace('v_cndmask_b32 v%d, v10, 0, vcc' % (vM+2), 'v_cndmask_b32_e64 v%d, v10, 0, vcc' % (vM+2)).replace('v_cndmask_b32 v%d, v11, 0, vcc' % (vM+3), 'v_cndmask_b32_e64 v%d, v11, 0, vcc' % (vM+3)))
    def xoff(dst):
        a(f"""v_bfe_u32 v{dst}, v{vL}, 3, 1
        v_mul_u32_u24 v{dst}, 1152, v{dst}
        v_and_b32 v9, 3, v{vL}
        v_lshl_add_u32 v{dst}, v9, 3, v{dst}
        v_lshl_add_u32 v{dst}, v{vG}, 1, v{dst}""")
    def epoch_wait():
        a(f"""s_waitcnt lgkmcnt(0)
        s_add_u32 s{sT[0]}, s{sT[0]}, 1
        s_addc_u32 s{sT[0]}, s{sT[0]}, 0
        s_add_u32 s{sT[1]}, s{sT[0]}, 37
        s_add_u32 s{sT[2]}, s{sT[0]}, 74
        s_add_u32 s{sT[3]}, s{sT[0]}, 111""")
    def lsbtags(t, flip=None):
        a(f"""v_and_b32 v{t}, 7, v{vL}
        v_mul_u32_u24 v{t}, 37, v{t}
        v_add_u32 v{t}, s{sT[0]}, v{t}""")
        if flip: a(f"v_xor_b32 v{t}, {flip}, v{t}")
        a(f"""v_and_b32 v{t}, 0xff, v{t}
        v_lshl_or_b32 v{t}, v{t}, 15, v{t}
        v_lshrrev_b32 v{t+1}, 2, v{t}
        v_lshrrev_b32 v{t+2}, 4, v{t}
        v_lshrrev_b32 v{t+3}, 6, v{t}""")
    def decode_v(dst, src, t):
        a(f"""v_lshrrev_b32 v{dst}, 5, v{src}
        v_lshlrev_b32 v{dst}, 7, v{dst}
        v_and_b32 v{t}, 15, v{src}
        v_lshl_add_u32 v{dst}, v{t}, 3, v{dst}
        v_bfe_u32 v{t}, v{src}, 4, 1
        v_lshl_add_u32 v{dst}, v{t}, 2, v{dst}
        v_and_b32 v{t}, 7, v{src}
        v_lshlrev_b32 v{t}, 3, v{t}
        v_bfe_u32 v{t+1}, v{src}, 3, 1
        v_lshl_add_u32 v{t}, v{t+1}, 2, v{t}
        v_add_u32 v{t}, 512, v{t}
        v_cmp_gt_u32 vcc, 128, v{src}
        v_cndmask_b32 v{dst}, v{t}, v{dst}, vcc""")
    def finish(nst):
        if p.stamp == 5:
            a("s_endpgm"); return
        if p.stamp == 3:
            Ls = a.newlabel('noenc'); Lw = a.newlabel('encw')
            a(f"""s_waitcnt lgkmcnt(0)
            s_lshl_b32 s{sT0}, s2, 3
            s_add_u32 s{sT0}, s{sT0}, s{sWave}
            s_cmp_eq_u32 s{sT0}, {p.encwave}
            s_cbranch_scc0 {Ls}
{Lw}:
            s_memrealtime s[{sT0}:{sT1}]
            s_waitcnt lgkmcnt(0)
            s_sub_u32 s{sT0}, s{sT0}, s{sStamp+2*p.enc}
            s_cmp_lt_u32 s{sT0}, 3000
            s_cbranch_scc1 {Lw}
{Ls}:
            s_endpgm""")
            return
        if p.stamp:
            a(f"""s_waitcnt lgkmcnt(0)
            s_lshl_b32 s{sT0}, s2, 3
            s_add_u32 s{sT0}, s{sT0}, s{sWave}
            s_lshl_b32 s{sT0}, s{sT0}, 6
            s_add_u32 s{sT0}, s{sT0}, {STAMP}
            s_mov_b64 exec, 1
            v_mov_b32 v9, 0""")
            for k in range(13):
                a(f"v_mov_b32 v{10+k}, s{sStamp+2*k}\nbuffer_store_dword v{10+k}, v9, {R(rWS)}, s{sT0} offen offset:{4*k}")
        if p.stamp == 2:
            Ls = a.newlabel('nosum')
            a(f"""s_lshl_b32 s{sT0}, s2, 3
            s_add_u32 s{sT0}, s{sT0}, s{sWave}
            s_cmp_eq_u32 s{sT0}, {4 if nst == 'X' else 1024}
            s_cbranch_scc0 {Ls}""")
            srd(rB, 30, 256)
            for n, k in enumerate((1,2,3,4,7,8,9,10) if nst == 'X' else (1,2,3,4,7,8,10,11)):
                a(f"s_sub_u32 s{sT1}, s{sStamp+2*k}, s{sStamp}\nv_mov_b32 v{30+n}, s{sT1}\nbuffer_store_dword v{30+n}, v9, {R(rB)}, 0 offen offset:{4*n + (0 if nst == 'X' else 32)}")
            a.label(Ls)
        a("s_endpgm")

    def slot_store(d, base_s, wave_is_half, toff, local=None):
        tag4(d)
        if wave_is_half: a("s_mov_b32 exec_lo, 0x00ff00ff\ns_mov_b32 exec_hi, 0x00ff00ff")
        if local: a(f"s_add_u32 vcc_lo, s{base_s}, {local}\nbuffer_store_dwordx4 {V(d)}, v{toff}, {R(rWS)}, vcc_lo offen")
        a(f"buffer_store_dwordx4 {V(d)}, v{toff}, {R(rWS)}, s{base_s} offen sc1")
        if wave_is_half: a("s_mov_b64 exec, -1")
    def slot_voff(dst, half):
        a(f"""v_lshrrev_b32 v{dst}, 1, v{vG}
        v_mul_u32_u24 v{dst}, 2304, v{dst}
        v_lshl_add_u32 v{dst}, v{vJ}, 4, v{dst}
        v_and_b32 v9, 1, v{vG}""")
        if half:
            a(f"v_lshl_add_u32 v{dst}, v9, 7, v{dst}\nv_add_u32 v{dst}, 2048, v{dst}")
        else:
            a(f"v_lshl_add_u32 v{dst}, v9, 8, v{dst}\ns_lshl_b32 s{sT0}, s{sWave}, 9\nv_add_u32 v{dst}, s{sT0}, v{dst}")

    def zstamps():
        if p.stamp:
            for k in range(1, 13): a(f"s_mov_b32 s{sStamp+2*k}, 0")
    vXP, vAP, vWP, vDP = 12, 20, 100, 180
    assert p.wsoff == 0
    stamp(0)
    a(f"""s_load_dwordx8 s[36:43], s[0:1], 0
    s_load_dwordx2 s[{rWS}:{rWS+1}], s[0:1], 112
    v_readfirstlane_b32 s{sWave}, v0
    v_and_b32 v{vJ}, 15, v0
    s_lshr_b32 s{sJ}, s2, 5
    s_and_b32 s{sH}, s2, 31""")
    if p.hmix == 1: a(f"s_lshr_b32 s{sT0}, s{sH}, 3\ns_xor_b32 s{sH}, s{sH}, s{sT0}")
    if p.hmix == 2: a(f"s_lshr_b32 s{sT0}, s{sH}, 2\ns_and_b32 s{sT0}, s{sT0}, 6\ns_xor_b32 s{sH}, s{sH}, s{sT0}")
    if p.hmix == 3: a(f"s_lshr_b32 s{sT0}, s{sH}, 3\ns_mul_i32 s{sT0}, s{sT0}, 5\ns_and_b32 s{sT0}, s{sT0}, 7\ns_xor_b32 s{sH}, s{sH}, s{sT0}")
    a(f"""s_mov_b32 s{rWS+3}, 0x20000
    s_lshr_b32 s{sT0}, s2, 8
    s_or_b32 s{sT0}, s{sT0}, s{sWave}
    s_cbranch_scc1 L_rest""")
    a(f"""v_lshrrev_b32 v{vG}, 4, v0
    v_lshlrev_b32 v9, 15, v{vG}
    v_lshl_add_u32 v9, v{vJ}, 4, v9
    v_add_u32 v10, {8192-1024}, v9
    v_add_u32 v11, {2*(8192-1024)}, v9
    v_add_u32 v12, {3*(8192-1024)}, v9
    s_mul_i32 s{sT0}, s{sJ}, {72*32}
    s_add_u32 s{sT0}, s{sT0}, s{sH}
    s_lshl_b32 s{sT0}, s{sT0}, 8
    s_mov_b32 m0, {L_WQ}
    v_lshrrev_b32 v13, 3, v{vJ}
    v_mul_u32_u24 v13, 144, v13
    v_and_b32 v14, 3, v0
    v_lshl_add_u32 v14, v14, 2, v{vG}
    v_add_lshl_u32 v13, v13, v14, 3
    s_mul_i32 s{sT1}, s{sJ}, 144
    s_waitcnt lgkmcnt(0)
    s_movk_i32 s{rA+2}, {SZ['x']}
    s_mov_b32 s{rA+3}, s{rWS+3}
    s_add_u32 s{rB+2}, s{sT0}, {71*8192+256}
    s_mov_b32 s{rB+3}, s{rWS+3}""")
    if p.diag == 2: a(f"s_memrealtime s[{sQ+6}:{sQ+7}]")
    a(f"""buffer_load_dwordx2 v[186:187], v13, {R(rA)}, s{sT1} offen
    buffer_load_dwordx2 v[188:189], v13, {R(rA)}, s{sT1} offen offset:128
L_wq:
    buffer_load_dwordx4 v9, {R(rB)}, s{sT0} offen {nt} lds
    buffer_load_dwordx4 v10, {R(rB)}, s{sT0} offen offset:1024 {nt} lds
    buffer_load_dwordx4 v11, {R(rB)}, s{sT0} offen offset:2048 {nt} lds
    buffer_load_dwordx4 v12, {R(rB)}, s{sT0} offen offset:3072 {nt} lds
    s_addk_i32 m0, 4096
    s_add_u32 s{sT0}, s{sT0}, s{rWS+3}
    s_bitcmp0_b32 m0, 15
    s_cbranch_scc1 L_wq""")
    if p.diag == 2: a(f"s_memrealtime s[{sQ+8}:{sQ+9}]")
    if p.b0pos == 0: a("s_barrier")
    a.label("L_rest")
    a(f"""s_cmp_ge_u32 s{sJ}, 8
    s_cbranch_scc1 L_exit
    s_lshr_b32 s{sWave}, s{sWave}, 6
    v_and_b32 v{vL}, 63, v0
    v_bfe_u32 v{vG}, v0, 4, 2
    v_lshlrev_b32 v{vL16}, 4, v{vL}""")
    if p.prefetch:
        a(f"""s_getpc_b64 s[{sQ}:{sQ+1}]
L_pc:
        s_lshr_b32 s{sQ+2}, s2, 3
        s_lshl_b32 s{sQ+2}, s{sQ+2}, 9
        s_min_u32 s{sQ+2}, s{sQ+2}, L_exit-L_pc-512
        v_add_u32 v249, s{sQ+2}, v{vL16}
        s_cmp_eq_u32 s{sWave}, 2
        s_cbranch_scc0 L_nopf
        s_mov_b64 exec, 0x01010101
        global_load_dword v250, v249, s[{sQ}:{sQ+1}]
        s_mov_b64 exec, -1
L_nopf:""")
    a(f"""s_mov_b32 s{rWS+2}, {WS_REC}
    s_lshl_b32 s{sT0}, s{sH}, 3
    s_add_u32 s{sT0}, s{sT0}, s{sJ}
    s_lshl_b32 s{sT0}, s{sT0}, 10
    s_add_u32 s{sT1}, s{sT0}, {QPL}
    s_and_b32 s{sT2}, s{sWave}, 3
    s_mov_b32 s{rC+3}, s{rWS+3}
    s_cmp_eq_u32 s{sWave}, 3
    s_cselect_b32 exec_lo, 0x01010101, 0
    s_cselect_b32 exec_hi, 0x01010101, 0
    s_waitcnt lgkmcnt(0)""")
    if p.fast: a(f"buffer_load_dword v250, v{vL16}, {R(rWS)}, s{sT1} offen sc1")
    a(f"""s_mov_b64 exec, -1
    s_load_dwordx16 s[4:19], s[0:1], 0
    s_load_dwordx8 s[20:27], s[0:1], 64
    s_load_dwordx4 s[28:31], s[0:1], 96
    s_and_b32 s{sXcd}, s2, 7
    s_bfe_u32 s{sI}, s2, 0x40003
    s_cmp_lt_u32 s{sWave}, 4
    s_cbranch_scc1 L_w03
    s_load_dword s{sT[0]}, s[{rWS}:{rWS+1}], {EPOCH}
    s_cmp_ge_u32 s2, 128
    s_cbranch_scc1 L_Ydma""")
    a(f"""s_lshl_b32 s{sQ}, s{sJ}, 2
    s_add_u32 s{sQ}, s{sQ}, s{sT2}
    s_lshl_b32 s{sQ}, s{sQ}, 10
    s_add_u32 s{sQ}, s{sQ}, s{sH}
    s_lshl_b32 s{sQ}, s{sQ}, 8
    s_lshl_b32 m0, s{sT2}, 13
    v_xor_b32 v19, v{vJ}, v{vG}
    v_lshlrev_b32 v19, 4, v19
    v_lshl_add_u32 v20, v{vG}, 13, v19
    v_xor_b32 v21, 64, v20
    v_xor_b32 v22, 0x80, v20
    v_xor_b32 v23, 0xc0, v20
    v_add_u32 v21, {32768-1024}, v21
    v_add_u32 v22, {2*(32768-1024)}, v22
    v_add_u32 v23, {3*(32768-1024)}, v23
    s_mov_b64 s[{rC}:{rC+1}], s[42:43]
    s_mov_b32 s{rC+2}, {SZ['wuk']}""")
    if p.diag == 2: a(f"s_memrealtime s[{sQ+6}:{sQ+7}]")
    def wuk(n):
        if n == 4: a(f"s_addk_i32 m0, 4096\ns_add_u32 s{sQ}, s{sQ}, {4*32768}")
        a(f"buffer_load_dwordx4 v{20+n%4}, {R(rC)}, s{sQ} offen offset:{1024*(n%4)} {nt} lds")
    if p.xg >= 0:
        epoch_wait()
        a(f"""s_lshl_b32 s{sT3}, s2, 7
        s_add_u32 s{sT3}, s{sT3}, {HK}
        v_mov_b32 v14, s{sT[0]}
        v_lshlrev_b32 v15, 2, v{vL}""")
    a("s_barrier")
    for n in range(p.xpre+1):
        if n == p.xg:
            a(f"""s_cmp_eq_u32 s{sWave}, 4
            s_cselect_b32 exec_lo, 0xffff, 0
            s_mov_b32 exec_hi, 0
            buffer_store_dword v14, v15, {R(rWS)}, s{sT3} offen sc1
            s_mov_b64 exec, -1""")
        if n < p.xpre: wuk(n)
    if p.diag == 2: a(f"s_memrealtime s[{sQ+8}:{sQ+9}]")
    a("s_branch L_X_w47")
    a.label("L_w03")
    a(f"""s_load_dword s{sT[0]}, s[{rWS}:{rWS+1}], {EPOCH}
    s_cmp_eq_u32 s{sWave}, 0
    s_cbranch_scc1 L_p1c
    s_cmp_ge_u32 s2, 128
    s_cbranch_scc1 L_w13
    s_cmp_lg_u32 s{sWave}, 2
    s_cbranch_scc1 L_xb0""")
    if p.warm:
        a(f"""v_mov_b32 v24, 0
        v_mov_b32 v25, 0
        v_mov_b32 v26, 0
        v_mov_b32 v27, 0
        s_mov_b32 exec_hi, 0
        s_lshl_b32 s{sT0}, s{sH}, 2
        s_add_u32 s{sT0}, s{sT0}, s{sJ}
        s_lshl_b32 s{sT1}, s{sT0}, 9
        s_add_u32 s{sT1}, s{sT1}, {ST}
        buffer_store_dwordx4 v[24:27], v{vL16}, {R(rWS)}, s{sT1} offen sc1""")
        if p.warm & 2:
            a(f"""s_lshl_b32 s{sT1}, s{sT0}, 8
            s_add_u32 s{sT1}, s{sT1}, {QL}
            v_lshlrev_b32 v28, 15, v{vG}
            v_lshl_add_u32 v28, v{vJ}, 4, v28
            buffer_store_dwordx4 v[24:27], v28, {R(rWS)}, s{sT1} offen sc1""")
        if p.cflag:
            a(f"""v_lshrrev_b32 v28, 2, v{vL}
            v_mul_u32_u24 v28, {p.cstr}, v28
            v_and_b32 v29, 3, v{vL}
            v_lshl_add_u32 v28, v29, 4, v28
            s_mul_i32 s{sT1}, s2, {8*p.cstr}
            s_add_u32 s{sT1}, s{sT1}, {FP2}
            s_cmp_lt_u32 s2, {p.crep}
            s_cselect_b32 exec_lo, -1, 0
            buffer_store_dwordx4 v[24:27], v28, {R(rWS)}, s{sT1} offen sc1""")
        a(f"""s_lshl_b32 s{sT1}, s2, 7
        s_add_u32 s{sT1}, s{sT1}, {HD}
        s_mov_b32 exec_lo, 0xff
        buffer_store_dwordx4 v[24:27], v{vL16}, {R(rWS)}, s{sT1} offen sc1
        s_mov_b64 exec, -1
""")
    a("L_xb0:\ns_barrier\ns_branch L_w3\nL_p1c:")
    zstamps()
    masks()
    stamp(1)
    if p.diag == 2: a(f"s_mov_b32 s{sStamp+6}, s{sQ+6}\ns_mov_b32 s{sStamp+8}, s{sQ+8}")
    a(f"""s_add_u32 s{sT0}, s{sT0}, {QP}
    s_mov_b32 s{sT2}, 0x01000100
    s_mov_b32 s{sT3}, 0x03020302
    v_add_u32 v190, {L_WQ}, v{vL16}
    s_waitcnt vmcnt(20)""")
    assert p.b0pos == 1 and p.ypre == 0
    a("s_cmp_ge_u32 s2, 128\ns_cbranch_scc1 L_nob0\ns_barrier\nL_nob0:")
    if p.diag == 2: a(f"s_memrealtime s[{sStamp+10}:{sStamp+11}]")
    for k in range(4):
        a(f"v_perm_b32 v{vXP+2*k}, v{186+k}, v{186+k}, s{sT2}\nv_perm_b32 v{vXP+2*k+1}, v{186+k}, v{186+k}, s{sT3}")
    for n in range(20): buildA(vAP+4*n, vXP+(n % 4)+(4 if n >= 16 else 0), (n//4) % 4)
    epoch_wait()
    if p.diag == 2: a(f"s_memrealtime s[{sStamp+12}:{sStamp+13}]")
    G = 4
    for t0 in range(0, 20, G):
        a(f"s_waitcnt vmcnt({20-t0-G})")
        if p.b0pos == 2 + t0//G: a("s_barrier")
        if p.diag == 2 and t0 == 0: a(f"s_memrealtime s[{sStamp+14}:{sStamp+15}]")
        if p.diag == 2 and t0 == 16: a(f"s_memrealtime s[{sStamp+16}:{sStamp+17}]")
        for t in range(t0, t0+G): a(f"ds_read_b128 {V(vWP+4*t)}, v190 offset:{1024*t}")
        if t0:
            a(f"s_waitcnt lgkmcnt({G})")
            for t in range(t0-G, t0): mfma(vDP, vAP+4*t, vWP+4*t, '0' if t == 0 else None)
    for t in range(20-G, 20):
        a(f"s_waitcnt lgkmcnt({19-t})")
        mfma(vDP, vAP+4*t, vWP+4*t)
    tag4(vDP)
    if p.fast: a(f"buffer_store_dwordx4 {V(vDP)}, v{vL16}, {R(rWS)}, s{sT1} offen")
    a(f"buffer_store_dwordx4 {V(vDP)}, v{vL16}, {R(rWS)}, s{sT0} offen sc1")
    stamp(2)
    a(f"""s_barrier
    s_cmp_ge_u32 s2, 128
    s_cbranch_scc1 L_Y_main
    s_branch L_X_main""")

    a.label("L_Ydma")
    sCK = sQ + 11
    if p.kint:
        a(f"""s_bfe_u32 s{sCK}, s2, 0x10006
        s_lshl_b32 s{sCK}, s{sCK}, 4
        s_add_u32 s{sCK}, s{sCK}, s{sT2}
        s_lshl_b32 s{sCK}, s{sCK}, 8
        s_and_b32 vcc_lo, s2, 63
        s_add_u32 s{sCK}, s{sCK}, vcc_lo
        s_lshl_b32 s{sCK}, s{sCK}, 10
        s_lshl_b32 m0, s{sT2}, 12""")
        if p.kint == 2: a(f"s_xor_b32 s{sCK}, s{sCK}, m0")
    else:
        a(f"""s_sub_u32 s{sCK}, s2, 128
        s_lshl_b32 s{sCK}, s{sCK}, 16
        s_lshl_b32 m0, s{sT2}, 12
        s_add_u32 s{sCK}, s{sCK}, m0""")
    def ckvaddr():
        a(f"""
    s_and_b32 vcc_lo, s{sT2}, 1
    s_lshl_b32 vcc_lo, vcc_lo, 7
    s_lshr_b32 vcc_hi, s{sT2}, 1
    s_lshl_b32 vcc_hi, vcc_hi, 4
    s_or_b32 vcc_lo, vcc_lo, vcc_hi
    v_xor_b32 v244, vcc_lo, v{vL16}
    v_xor_b32 v245, 32, v244
    v_xor_b32 v246, 64, v244
    v_xor_b32 v247, 0x60, v244""")
        if p.kint:
            for n in range(1, 4): a(f"v_add_u32 v{244+n}, {n*(65536-1024)}, v{244+n}")
    ckvaddr()
    a(f"""s_mov_b64 s[{rC}:{rC+1}], s[38:39]
    s_mov_b32 s{rC+2}, {SZ['ckv']}""")
    def ckv(i):
        if i % 4 == 0 and i: a(f"s_add_u32 s{sCK}, s{sCK}, {16*65536 if p.kint else 16384}\ns_add_u32 m0, m0, 16384")
        if p.kint == 2:
            a(f"s_xor_b32 s{sQ+2}, s{sCK}, {(16*(i>>2) + (i&3)) << 10}")
            a(f"buffer_load_dwordx4 v{244+(i&3)}, {R(rC)}, s{sQ+2} offen offset:{1024*(i%4)} {p.ckvf} lds")
            return
        a(f"buffer_load_dwordx4 v{244+(i&3)}, {R(rC)}, s{sCK} offen offset:{1024*(i%4)} {p.ckvf} lds")
    for i in range(p.ypre): ckv(i)
    zstamps()
    epoch_wait()
    a(f"""s_sub_u32 s{sT3}, s2, 128
    s_lshl_b32 s{sT3}, s{sT3}, 7
    s_add_u32 s{sT3}, s{sT3}, {HG}
    v_mov_b32 v14, s{sT[0]}
    v_lshlrev_b32 v15, 2, v{vL}""")
    if p.xg >= 0:
        a(f"s_cmp_lg_u32 s{sWave}, 4\ns_cbranch_scc1 L_nokg")
        for k in range(p.xgn):
            a(f"s_add_u32 s{sQ+k}, s2, {41*k}\ns_and_b32 s{sQ+k}, s{sQ+k}, 127\ns_lshl_b32 s{sQ+k}, s{sQ+k}, 7\ns_add_u32 s{sQ+k}, s{sQ+k}, {HK}")
        spoll_all([sQ+k for k in range(p.xgn)], sQ+4)
        a.label("L_nokg")
    def uvsetup(r):
        srd(rB, pWUV, 0 if p.nod1 & 8 else SZ['wuv'])
        a(f"""s_sub_u32 s{r}, s{sJ}, 4
        s_lshl_b32 s{r}, s{r}, 20
        s_lshl_b32 s{r+1}, s{sT2}, {18 if p.uvlin else 15}
        s_add_u32 s{r}, s{r}, s{r+1}
        s_lshl_b32 s{r+1}, s{sH}, 8
        s_add_u32 s{r}, s{r}, s{r+1}""")
        if p.uvlin:
            a(f"""s_lshl_b32 s{r+1}, s{sT2}, 6
            s_and_b32 s{r+1}, s{r+1}, 64
            v_and_b32 v9, 1, v{vG}
            v_lshlrev_b32 v9, 3, v9
            v_xor_b32 v9, v9, v{vJ}
            v_lshlrev_b32 v9, 4, v9
            v_xor_b32 v9, s{r+1}, v9
            v_lshl_add_u32 v44, v{vG}, 13, v9
            v_xor_b32 v45, 32, v44""")
        else:
            a(f"""v_lshlrev_b32 v9, 1, v{vG}
            v_xor_b32 v9, v9, v{vJ}
            v_lshlrev_b32 v9, 4, v9
            v_lshl_add_u32 v44, v{vG}, 17, v9
            v_xor_b32 v45, 0x80, v44""")
        a(f"""s_lshl_b32 s{r+1}, s{sT2}, 13
        s_add_u32 s{r+1}, s{r+1}, {L_WUVY}""")
    def uvdma(r, n0, n1):
        if n0 >= n1: return
        a("s_mov_b32 vcc_hi, m0")
        for n in range(n0, n1):
            off = 4*n*8192 if p.uvlin else (64*(n & 1) + (n >> 1))*8192
            a(f"s_add_u32 m0, s{r+1}, {1024*n}\ns_add_u32 vcc_lo, s{r}, {off}")
            a(f"buffer_load_dwordx4 v{44+((n>>2) if p.uvlin else ((n>>1)&1))}, {R(rB)}, vcc_lo offen {nt} lds")
        a("s_mov_b32 m0, vcc_hi")
    uvsetup(sQ)
    a("s_barrier")
    stamp(10)
    uvdma(sQ, 0, p.uv1)
    for i in range(p.ypre, 17):
        if i == p.gate:
            a(f"""s_cmp_eq_u32 s{sWave}, 4
            s_cselect_b32 exec_lo, -1, 0
            s_mov_b32 exec_hi, 0
            buffer_store_dword v14, v15, {R(rWS)}, s{sT3} offen sc1
            s_mov_b64 exec, -1""")
        if i < (12 if p.qmid else 16): ckv(i)
    if p.emub:
        a(f"s_sub_u32 s{sCK}, s{sCK}, {3*16*65536}\ns_xor_b32 s{sCK}, s{sCK}, {8*1024}\ns_sub_u32 m0, m0, {3*16384}")
        for i in range(16): ckv(i)
    stamp(1)
    masks()
    a("s_branch L_Y_main")
    a.label("L_w13")
    a(f"""s_cmp_eq_u32 s{sWave}, 1
    s_cbranch_scc1 L_w1""")
    a.label("L_w3")
    if p.stamp == 5:
        a(f"""s_lshl_b32 s{sT0}, s2, 3
        s_add_u32 s{sT0}, s{sT0}, s{sWave}
        s_lshl_b32 s{sT0}, s{sT0}, 6
        s_add_u32 s{sT0}, s{sT0}, {STAMP}
        v_mov_b32 v24, s{sStamp}
        v_mov_b32 v25, 0
        s_waitcnt lgkmcnt(0)
        v_mov_b32 v24, s{sStamp}
        s_cmp_lt_u32 s2, 8
        s_cselect_b32 exec_lo, 1, 0
        s_mov_b32 exec_hi, 0
        buffer_store_dword v24, v25, {R(rWS)}, s{sT0} offen sc1
        s_mov_b64 exec, -1""")
    if p.tlb:
        a(f"""s_cmp_ge_u32 s2, 128
        s_cselect_b32 exec_lo, {7 if p.tlb & 2 else 0}, 0
        s_mov_b32 exec_hi, 0
        v_mul_u32_u24 v22, {63*p.opstr}, v{vL}
        s_mov_b32 s{sT0}, {OP + p.opstr + 32768}
        s_cbranch_execz L_tlbd
        buffer_load_dword v251, v22, {R(rWS)}, s{sT0} offen
L_tlbd:
        s_mov_b64 exec, -1""")
    a.label("L_w23")
    zstamps()
    masks()
    epoch_wait()
    a(f"""s_barrier
    s_waitcnt vmcnt(0)
    s_cmp_ge_u32 s2, 128
    s_cbranch_scc1 L_Y_main
    s_branch L_X_main""")
    a.label("L_w1")
    a(f"""s_movk_i32 s{rA+2}, {SZ['x']}
    s_mov_b32 s{rA+3}, s{rWS+3}
    v_and_b32 v9, 31, v{vL}
    v_mul_u32_u24 v9, 36, v9
    v_lshrrev_b32 v12, 5, v{vL}
    v_mul_u32_u24 v11, 1152, v12
    v_add_u32 v11, v11, v9
    buffer_load_dwordx4 v[20:23], v11, {R(rA)}, 0 offen
    buffer_load_dwordx4 v[24:27], v11, {R(rA)}, 0 offen offset:16
    buffer_load_dword v28, v11, {R(rA)}, 0 offen offset:32
    s_waitcnt lgkmcnt(0)""")
    srd(rB, pGW, SZ['gw'])
    a(f"""buffer_load_dwordx4 v[32:35], v9, {R(rB)}, 0 offen
    buffer_load_dwordx4 v[36:39], v9, {R(rB)}, 0 offen offset:16
    buffer_load_dword v40, v9, {R(rB)}, 0 offen offset:32
    """)
    zstamps()
    masks()
    epoch_wait()
    a(f"""v_mov_b32 v13, 0
    v_lshlrev_b32 v10, 2, v12
    v_add_u32 v10, {L_GATE}, v10
    s_barrier
    s_waitcnt vmcnt(0)""")
    def gatemath():
        for k in range(9): a(f"v_dot2_f32_bf16 v13, v{20+k}, v{32+k}, v13")
        for m in ("quad_perm:[1,0,3,2]", "quad_perm:[2,3,0,1]", "row_half_mirror", "row_mirror"):
            a(f"v_add_f32_dpp v13, v13, v13 {m} row_mask:0xf bank_mask:0xf")
        a(f"""v_mov_b32 v14, v13
        v_permlane16_swap_b32 v13, v14
        v_add_f32 v13, v13, v14
        v_mul_f32 v13, {f2u(-math.log2(math.e))}, v13
        v_exp_f32 v13, v13
        v_add_f32 v13, 1.0, v13
        v_rcp_f32 v13, v13
        ds_write_b32 v10, v13
        s_waitcnt lgkmcnt(0)""")
    gatemath()
    a("s_branch L_Y_main")

    a.label("L_X_w47")
    zstamps()
    masks()
    a("v_mov_b32 v9, v19")
    if p.xg < 0: epoch_wait()
    if p.diag == 2: a(f"s_mov_b32 s{sStamp+10}, s{sQ+6}\ns_mov_b32 s{sStamp+12}, s{sQ+8}")
    a(f"""s_lshl_b32 s{sT0}, s{sH}, 13
    s_lshl_b32 s{sT1}, s{sT2}, 8
    s_add_u32 s{sT0}, s{sT0}, s{sT1}
    s_add_u32 s{sT0}, s{sT0}, {QPL if p.fast else QP}
    s_add_u32 s{sT1}, s{sT0}, 4096
    v_lshlrev_b32 v24, 10, v{vG}
    v_lshl_add_u32 v24, v{vJ}, 4, v24""")
    a(f"""s_lshr_b32 s{sT3}, s{sT2}, 1
    s_lshl_b32 s{sT3}, s{sT3}, 8
    s_bitcmp1_b32 s{sT2}, 0
    s_cselect_b32 vcc_lo, 8, 0
    s_add_u32 s{sT3}, s{sT3}, vcc_lo
    s_add_u32 s{sT3}, s{sT3}, {L_QV}
    v_lshlrev_b32 v25, 4, v{vJ}
    v_lshl_add_u32 v25, v{vG}, 1, v25
    v_add_u32 v25, s{sT3}, v25""")
    a(f"""s_lshl_b32 s{sT3}, s{sT2}, 13
    v_lshl_add_u32 v26, v{vJ}, 8, v9
    v_add_u32 v26, s{sT3}, v26
    v_xor_b32 v27, 64, v26
    v_xor_b32 v28, 0x80, v26
    v_xor_b32 v29, 0xc0, v26""")
    a(f"""v_lshrrev_b32 v30, 3, v{vJ}
    v_lshlrev_b32 v30, 8, v30
    v_lshl_add_u32 v30, v{vG}, 4, v30
    v_add_u32 v30, {L_QV}, v30""")
    a(f"""v_and_b32 v31, 31, v{vL}
    s_lshl_b32 s{sT3}, s{sT2}, 5
    v_add_u32 v31, s{sT3}, v31
    v_bfe_u32 v32, v31, 3, 3
    v_mul_u32_u24 v32, 37, v32
    v_add_u32 v32, s{sT[0]}, v32
    v_and_b32 v33, 7, v31
    v_lshrrev_b32 v32, v33, v32
    v_and_b32 v32, 1, v32
    v_lshlrev_b32 v32, 16, v32
    v_xor_b32 v33, 0x10000, v32
    v_lshlrev_b32 v31, 1, v31
    v_lshrrev_b32 v34, 5, v{vL}
    v_lshl_add_u32 v31, v34, 15, v31
    s_lshl_b32 s{sT3}, s{sH}, 10
    s_lshl_b32 vcc_lo, s{sJ}, 8
    s_add_u32 s{sT3}, s{sT3}, vcc_lo
    s_add_u32 s{sT3}, s{sT3}, {QL}
    v_mov_b32 v35, 0xfffe0000
    s_lshr_b32 s{sQ+2}, s{sH}, 2
    s_mul_i32 s{sQ+2}, s{sQ+2}, {p.cstr}
    s_and_b32 vcc_lo, s{sH}, 3
    s_lshl_b32 vcc_lo, vcc_lo, 2
    s_add_u32 vcc_lo, vcc_lo, s{sJ}
    s_lshl_b32 vcc_lo, vcc_lo, 2
    s_add_u32 s{sQ+2}, s{sQ+2}, vcc_lo
    s_add_u32 s{sQ+2}, s{sQ+2}, {FP2 + 0x80000}
    v_mul_u32_u24 v104, {8*p.cstr}, v{vL}
    v_mov_b32 v105, s{sT[0]}
    s_barrier""")
    stamp(1)
    for n in range(p.xpre, 8): wuk(n)
    a(f"s_waitcnt vmcnt({p.pollA_wait})")
    stamp(2)
    L = poll_begin()
    a(f"""buffer_load_dwordx4 v[36:39], v24, {R(rWS)}, s{sT0} offen sc1
    buffer_load_dwordx4 v[40:43], v24, {R(rWS)}, s{sT1} offen sc1
    s_waitcnt vmcnt(1)""")
    chk4(44, 36, True)
    a("s_waitcnt vmcnt(0)")
    chk4(44, 40)
    if p.diag == 4: a(f"s_cmp_eq_u32 s{sCnt}, 0\ns_cbranch_scc0 L_d4\ns_memrealtime s[{sStamp+12}:{sStamp+13}]\nL_d4:")
    poll_end(L, 44, '0xff', ((sT0, sT1), QPL-QP))
    if p.stamp: a(f"s_mov_b32 s{sStamp+24}, s{sCnt}")
    stamp(3)
    for tl in range(2):
        for ks in range(4):
            a(f"ds_read_b128 {V(48+16*tl+4*ks)}, v{26+ks} offset:{4096*tl}")
    for k in range(4): a(f"v_add_f32 v{36+k}, v{36+k}, v{40+k}")
    treduce(36)
    a(f"""v_cvt_pk_bf16_f32 v36, v36, v36
    ds_write_b16 v25, v36
    s_waitcnt lgkmcnt(0)
    s_barrier""")
    if p.diag == 4: stamp(7)
    for ks in range(4): a(f"ds_read_b128 {V(80+4*ks)}, v30 offset:{64*ks}")
    if p.bflag == 1:
        a(f"""s_cmp_eq_u32 s{sWave}, 4
        s_cselect_b32 exec_lo, 0xffff, 0
        s_mov_b32 exec_hi, 0
        buffer_store_dword v105, v104, {R(rWS)}, s{sQ+2} offen sc1
        s_mov_b64 exec, -1""")
    for ks in range(4):
        a(f"s_waitcnt lgkmcnt({3-ks})")
        mfma(96, 80+4*ks, 48+4*ks, '0' if ks == 0 else None)
        mfma(100, 80+4*ks, 64+4*ks, '0' if ks == 0 else None)
    a(f"""s_mov_b32 vcc_lo, 0xffff0000
    s_mov_b32 vcc_hi, 0xffff0000
    v_cndmask_b32 v96, v96, v100, vcc
    v_mul_f32 v96, {f2u(128**-0.5*math.log2(math.e))}, v96
    v_add_u32 v96, v96, v33
    v_and_or_b32 v96, v96, v35, v32
    buffer_store_short_d16_hi v96, v31, {R(rWS)}, s{sT3} offen sc1""")
    if p.bflag == 2:
        a(f"""s_cmp_eq_u32 s{sWave}, 4
        s_cselect_b32 exec_lo, 0xffff, 0
        s_mov_b32 exec_hi, 0
        buffer_store_dword v105, v104, {R(rWS)}, s{sQ+2} offen sc1
        s_mov_b64 exec, -1""")
    stamp(4)

    a.label("L_X_main")
    sX = sQ + 9
    a(f"s_mul_i32 s{sT0}, s{sI}, 9\nv_add_u32 v9, s{sT0}, v{vJ}")
    decode_v(139, 9, 10)
    a(f"""s_mul_i32 s{sT0}, s{sXcd}, 576
    v_add_u32 v139, s{sT0}, v139
    v_mul_u32_u24 v10, 1152, v139""")
    for t in range(9): a(f"v_readlane_b32 s{sQ+t}, v10, {t}")
    a(f"""v_bfe_u32 v9, v{vL}, 3, 1
    v_lshlrev_b32 v135, 2, v{vL}
    v_lshlrev_b32 v136, 2, v9
    v_add_u32 v136, {L_GATE}, v136
    v_mov_b32 v137, s{sT[0]}
    v_mov_b32 v138, 0
    v_mov_b32 v133, 0
    v_and_b32 v132, 3, v{vL}
    v_lshl_add_u32 v134, v132, 2, v{vG}
    v_lshlrev_b32 v134, 2, v134
    v_mul_u32_u24 v9, 192, v9
    v_add_u32 v134, v134, v9
    v_add_u32 v134, {L_HX}, v134
    v_mul_u32_u24 v132, 37, v132
    v_add_u32 v132, s{sT[0]}, v132
    s_lshl_b32 s{sX}, s{sH}, 2
    s_add_u32 s{sX}, s{sX}, s{sJ}
    s_mul_i32 s{sX+2}, s{sX}, {32*1152}
    s_lshl_b32 s{sX}, s{sX}, 10
    s_add_u32 s{sX}, s{sX}, {CXL if p.fast else CX}
    s_mul_i32 s{sX+1}, s2, 4608
    s_add_u32 s{sX+1}, s{sX+1}, {FP}""")
    if p.p5h: a(f"v_mov_b32 v9, {L_RED}\nds_write_b32 v9, v138\ns_waitcnt lgkmcnt(0)")
    srd(rA, pX, SZ['x'])
    xoff(12)
    a(f"""s_cmp_ge_u32 s{sWave}, 4
    s_cbranch_scc1 L_X_b2
    s_barrier""")
    if p.tlb:
        a(f"""s_cmp_lg_u32 s{sWave}, 3
        s_cbranch_scc1 L_X_notlb
        s_mov_b64 exec, 7
        v_lshlrev_b32 v22, 21, v{vL}
        global_load_dword v252, v22, s[{pW1}:{pW1+1}]
        global_load_dword v253, v22, s[{pW2}:{pW2+1}]
        global_load_dword v254, v22, s[{pWO}:{pWO+1}]
        s_mov_b64 exec, -1
L_X_notlb:""")
    if p.qpf:
        a(f"""s_cmp_lg_u32 s{sWave}, 1
        s_cbranch_scc1 L_X_noqpf
        s_lshl_b32 s{sT0}, s{sI}, 12
        s_add_u32 s{sT0}, s{sT0}, {QL}""")
        lsbtags(40)
        if p.qpfs: a(f"s_sleep {p.qpfs}")
        L = poll_begin()
        for n in range(4): a(f"buffer_load_dwordx4 {V(20+4*n)}, v{vL16}, {R(rWS)}, s{sT0} offen offset:{1024*n} sc1")
        a("s_mov_b64 exec, -1\ns_waitcnt vmcnt(0)")
        for n in range(4): chkv(9, 20+4*n, 40, n == 0)
        sv = p.maxspin; p.maxspin = p.qpf
        poll_end_masked(L, 9, '0x10001')
        p.maxspin = sv
        a.label("L_X_noqpf")
    if p.gate >= 0:
        a(f"""s_cmp_lg_u32 s{sWave}, 0
        s_cbranch_scc1 L_X_b2
        s_lshl_b32 s{sT2}, s2, 7
        s_add_u32 s{sT2}, s{sT2}, {HG}
        s_xor_b32 s{sT3}, s{sT2}, {43*128}""")
        if p.gand:
            for k in range(p.gand):
                a(f"s_add_u32 s{6+k}, s2, {43*k}\ns_and_b32 s{6+k}, s{6+k}, 127\ns_lshl_b32 s{6+k}, s{6+k}, 7\ns_add_u32 s{6+k}, s{6+k}, {HG}")
            spoll_all([6+k for k in range(p.gand)], sT0)
        else:
            spoll((sT2, sT3))
        stamp(3)
    a.label("L_X_b2")
    a("s_barrier")
    a(f"""s_cmp_ge_u32 s{sWave}, 5
    s_cbranch_scc1 L_X_fg""")
    vXF, vAF, vWF, vDF, vWO, vW2 = 13, 20, 60, 100, 140, 176
    srd(rB, pW1, 0 if p.nod1 & 4 else SZ['w1'])
    a(f"s_mul_i32 s{sT1}, s{sI}, 72")
    for v in range(3): a(f"buffer_load_ushort v{vXF+v}, v12, {R(rA)}, s{sT1} offen offset:{32*v}")
    srd(rA, pW2, 0 if p.nod1 & 1 else SZ['w2'])
    srd(rC, pWO, 0 if p.nod1 & 2 else SZ['wo'])
    a(f"""s_mul_i32 s{sT0}, s{sI}, {36*9216}
    s_mul_i32 s{sT1}, s{sXcd}, 1152
    s_add_u32 s{sT0}, s{sT0}, s{sT1}
    s_lshl_b32 s{sT1}, s{sWave}, 8
    s_add_u32 s{sT0}, s{sT0}, s{sT1}
    v_mul_u32_u24 v10, 9216, v{vG}
    v_mul_u32_u24 v17, 1152, v{vG}
    v_add_u32 v17, s{sT1}, v17
    v_add_u32 v16, s{sT1}, v10
    s_lshl_b32 s{sT2}, s{sXcd}, 4
    s_add_u32 s{sT2}, s{sT2}, s{sI}
    s_mul_i32 s{sT2}, s{sT2}, 4608
    s_add_u32 s{sT2}, s{sT2}, {HP}
    s_cmp_eq_u32 s{sWave}, 4
    s_cbranch_scc1 L_X_f1half
    v_lshl_add_u32 v10, v{vJ}, 4, v10
    v_lshl_add_u32 v16, v{vJ}, 4, v16
    v_lshl_add_u32 v17, v{vJ}, 4, v17""")
    def wo_full():
        for t in range(8):
            if t == 4: a(f"s_add_u32 s{sX+2}, s{sX+2}, {4*1152}")
            if t == p.fmid: a("s_barrier\ns_barrier")
            a(f"buffer_load_dwordx4 {V(vWO+4*t)}, v16, {R(rC)}, s{sX+2} offen offset:{1152*(t&3)} {nt}")
    def wo_half():
        for n in range(4):
            if n == 2: a(f"s_add_u32 s{sX+2}, s{sX+2}, {4*1152}")
            if p.fmid < 8 and n == p.fmid//2: a("s_barrier\ns_barrier")
            a(f"buffer_load_dwordx4 {V(vWO+4*n)}, v16, {R(rC)}, s{sX+2} offen offset:{2304*(n&1)} {nt}")
    for t in range(9):
        if p.xramp and p.xramp <= t <= p.xrn: a(f"s_waitcnt vmcnt({p.xramp-1})")
        a(f"buffer_load_dwordx4 {V(vWF+4*t)}, v10, {R(rB)}, s{sT0} offen {nt}")
        if t < 8: a(f"s_add_u32 s{sT0}, s{sT0}, {4*9216}")
    def w2_full():
        for t in range(9): a(f"buffer_load_dwordx4 {V(vW2+4*t)}, v17, {R(rA)}, s{sQ+t} offen {nt}")
    if p.xord < 2: w2_full()
    elif p.xord == 2: a("s_barrier")
    ex = {0: 17, 1: 9, 2: 0, 3: 0}[p.xord]
    if p.xord == 0: wo_full()
    slot_voff(138, False)
    a(f"s_waitcnt vmcnt({9+ex})")
    for v in range(3): a(f"v_lshl_or_b32 v{vXF+v}, v{vXF+v}, 16, v{vXF+v}")
    for t in range(9): buildA(vAF+4*t, vXF+t//4, t % 4)
    for t in range(9):
        a(f"s_waitcnt vmcnt({8 if p.xord == 3 else 8-t+ex})")
        mfma(vDF, vAF+4*t, vWF+4*t, '0' if t == 0 else None)
        if p.xord == 3 and t < 8: a(f"buffer_load_dwordx4 {V(vW2+4*t)}, v17, {R(rA)}, s{sQ+t} offen {nt}")
    if not p.nof: slot_store(vDF, sT2, False, 138, HPL-HP if p.floc else None)
    if p.xord == 3: a(f"buffer_load_dwordx4 {V(vW2+32)}, v17, {R(rA)}, s{sQ+8} offen {nt}")
    stamp(5)
    if p.fpos == 0: a("s_barrier")
    if p.xord in (1, 3): wo_full()
    if p.fpos == 1: a("s_barrier")
    if p.xord == 2: w2_full()
    a("s_branch L_X_o2")
    a.label("L_X_f1half")
    a(f"""v_and_b32 v9, 7, v{vJ}
    v_lshl_add_u32 v10, v9, 4, v10
    v_lshl_add_u32 v16, v9, 4, v16
    v_lshl_add_u32 v17, v9, 4, v17
    v_lshrrev_b32 v9, 3, v{vJ}
    v_mul_u32_u24 v11, {4*9216}, v9
    v_add_u32 v10, v10, v11
    v_mul_u32_u24 v11, 1152, v9
    v_add_u32 v16, v16, v11""")
    for n in range(5):
        if n == 4: a("s_mov_b32 exec_lo, 0x00ff00ff\ns_mov_b32 exec_hi, 0x00ff00ff")
        if p.xramp and n in (1, 2): a("s_waitcnt vmcnt(0)")
        a(f"buffer_load_dwordx4 {V(vWF+4*n)}, v10, {R(rB)}, s{sT0} offen {nt}")
        if n < 4: a(f"s_add_u32 s{sT0}, s{sT0}, {8*9216}")
    a("s_mov_b64 exec, -1")
    def w2_half():
        a("s_mov_b32 exec_lo, 0x00ff00ff\ns_mov_b32 exec_hi, 0x00ff00ff")
        a(f"buffer_load_dwordx4 {V(vW2+16)}, v17, {R(rA)}, s{sQ+8} offen {nt}")
        a("s_mov_b64 exec, -1\ns_mov_b32 vcc_lo, 0xff00ff00\ns_mov_b32 vcc_hi, 0xff00ff00")
        for n in range(4):
            a(f"v_mov_b32 v18, s{sQ+2*n}\nv_mov_b32 v19, s{sQ+2*n+1}\nv_cndmask_b32 v18, v18, v19, vcc\nv_add_u32 v18, v18, v17")
            a(f"buffer_load_dwordx4 {V(vW2+4*n)}, v18, {R(rA)}, 0 offen {nt}")
    if p.xord < 2: w2_half()
    elif p.xord == 2: a("s_barrier")
    ex = {0: 9, 1: 5, 2: 0, 3: 0}[p.xord]
    if p.xord == 0: wo_half()
    slot_voff(138, True)
    a(f"s_waitcnt vmcnt({5+ex})")
    for v in range(3): a(f"v_lshl_or_b32 v{vXF+v}, v{vXF+v}, 16, v{vXF+v}")
    for t in range(9): buildA(vAF+4*t, vXF+t//4, t % 4)
    for n in range(5):
        a(f"s_waitcnt vmcnt({4-n+ex})")
        mfma(vDF, vAF+8*n, vWF+4*n, '0' if n == 0 else None)
        if n < 4: mfma(vDF+4, vAF+8*n+4, vWF+4*n, '0' if n == 0 else None)
    for r in range(4): a(f"v_add_f32_dpp v{vDF+r}, v{vDF+4+r}, v{vDF+r} row_ror:8 row_mask:0xf bank_mask:0xf")
    if not p.nof: slot_store(vDF, sT2, True, 138, HPL-HP if p.floc else None)
    if p.xord == 3: w2_half()
    stamp(5)
    if p.fpos == 0: a("s_barrier")
    if p.xord in (1, 3): wo_half()
    if p.fpos == 1: a("s_barrier")
    if p.xord == 2: w2_half()
    a.label("L_X_o2")
    if p.fdel and p.fmid >= 8: a("s_barrier")
    vA2, vD2 = 20, 60
    a(f"""ds_read_b32 v136, v136
    s_lshl_b32 s{sT3}, s2, 7
    s_add_u32 s{sT3}, s{sT3}, {HD}
    s_barrier""")
    stamp(8)
    for v in range(3): a(f"ds_read_b32 v{68+v}, v134 offset:{64*v}")
    a("s_waitcnt lgkmcnt(0)")
    for t in range(9): buildA(vA2+4*t, 68+t//4, t % 4)
    a(f"""s_waitcnt vmcnt({8 if p.xord in (1, 3) else 0})
    s_cmp_eq_u32 s{sWave}, 4
    s_cbranch_scc1 L_X_half2""")
    if p.xord == 2:
        for t in range(8): a(f"ds_read_b128 {V(vWO+4*t)}, v16 offset:{1152*t}")
    for t in range(9): mfma(vD2, vA2+4*t, vW2+4*t, '0' if t == 0 else None)
    if p.p5h:
        a(f"""s_cmp_lg_u32 s{sWave}, 0
        s_cbranch_scc1 L_X_o3
        v_mov_b32 v9, {L_RED}
        s_mov_b32 s{sCnt}, 0
L_X_hw:
        ds_read_b32 v10, v9
        s_add_u32 s{sCnt}, s{sCnt}, 1
        s_cmp_ge_u32 s{sCnt}, {16*p.maxspin}
        s_cbranch_scc1 L_X_hwd
        s_waitcnt lgkmcnt(0)
        v_cmp_ne_u32 vcc, s{sT[0]}, v10
        s_cbranch_vccnz L_X_hw
L_X_hwd:""")
        for n in range(5): a(f"ds_read_b128 {V(108+4*n)}, v{vL16} offset:{1024*n}")
        slot_voff(133, True)
    a("s_branch L_X_o3")
    a.label("L_X_half2")
    a("s_waitcnt vmcnt(4)")
    if p.xord == 2:
        for n in range(4): a(f"ds_read_b128 {V(vWO+4*n)}, v16 offset:{2304*n}")
    for n in range(5):
        mfma(vD2, vA2+8*n, vW2+4*n, '0' if n == 0 else None)
        if n < 4: mfma(vD2+4, vA2+8*n+4, vW2+4*n, '0' if n == 0 else None)
    if p.p5h:
        for r in range(4): a(f"v_add_f32_dpp v{vD2+r}, v{vD2+4+r}, v{vD2+r} row_ror:8 row_mask:0xf bank_mask:0xf")
        a(f"ds_write_b128 v{vL16}, {V(vD2)} offset:4096\ns_waitcnt vmcnt(0)")
        for n in range(4): a(f"ds_write_b128 v{vL16}, {V(vWO+4*n)} offset:{1024*n}")
        a(f"v_mov_b32 v9, {L_RED}\ns_waitcnt lgkmcnt(0)\nds_write_b32 v9, v137\ns_branch L_X_end")
    a.label("L_X_o3")
    a("s_waitcnt lgkmcnt(0)")
    stamp(9)
    L = poll_begin()
    for cq in range(4): a(f"buffer_load_dword v{72+cq}, v135, {R(rWS)}, s{sX} offen offset:{256*cq} sc1")
    a("s_waitcnt vmcnt(0)")
    a("v_xor_b32 v76, v132, v72")
    for cq in range(1, 4): a(f"v_bitop3_b32 v76, v76, v{72+cq}, v132 bitop3:0xf6")
    poll_end(L, 76, '0xff', ((sX,), CXL-CX), sleep=p.asleep)
    stamp(10)
    def dflag():
        a(f"""s_cmp_eq_u32 s{sWave}, 1
        s_cselect_b32 exec_lo, 0xffff, 0
        s_mov_b32 exec_hi, 0
        buffer_store_dword v137, v135, {R(rWS)}, s{sT3} offen sc1
        s_mov_b64 exec, -1""")
    if p.dflag == 3 and not p.dex: dflag()
    a(f"""v_add_f32 v72, v72, v73
    v_add_f32 v74, v74, v75
    v_add_f32 v72, v72, v74
    v_mul_f32 v72, v72, v136
    v_cvt_pk_bf16_f32 v72, v72, v72
    v_mov_b32 v73, v72
    v_mov_b32 v74, v72
    v_mov_b32_dpp v73, v72 row_shr:4 row_mask:0xf bank_mask:0xa
    v_mov_b32_dpp v74, v72 row_shl:4 row_mask:0xf bank_mask:0x5
    s_cmp_eq_u32 s{sWave}, {0 if p.p5h else 4}
    s_cbranch_scc1 L_X_half3""")
    for t in range(8):
        buildA(vA2+4*t, 73+t//4, t % 4)
        if t > 0: mfma(vD2, vA2+4*(t-1), vWO+4*(t-1))
    mfma(vD2, vA2+28, vWO+28)
    slot_store(vD2, sX+1, False, 138)
    def qclean(w):
        a(f"""s_lshl_b32 vcc_lo, s{sH}, 3
        s_add_u32 vcc_lo, vcc_lo, s{sJ}
        s_lshl_b32 vcc_lo, vcc_lo, 10
        s_add_u32 vcc_lo, vcc_lo, {QPL}
        s_cmp_eq_u32 s{sWave}, {w}
        s_cselect_b64 exec, -1, 0
        buffer_store_dwordx4 v[4:7], v{vL16}, {R(rWS)}, vcc_lo offen sc1
        s_mov_b64 exec, -1""")
    if p.clean & 1: a(f"s_add_u32 vcc_lo, s{sT2}, {HPL-HP}\nbuffer_store_dwordx4 {V(vDF)}, v138, {R(rWS)}, vcc_lo offen sc1")
    if p.clean & 2: qclean(2)
    if p.dflag == 4: dflag()
    a("s_branch L_X_end")
    a.label("L_X_half3")
    if p.p5h:
        for t in range(9):
            if t < 8: buildA(vA2+4*t, 73+t//4, t % 4)
            if t > 0:
                u = t - 1
                mfma(124+4*(u & 1), vA2+4*u, 108+4*(u//2), '0' if u == 1 else None)
                mfma(vD2, vA2+4*u, vWO+4*u)
        for r in range(4): a(f"v_add_f32_dpp v{124+r}, v{128+r}, v{124+r} row_ror:8 row_mask:0xf bank_mask:0xf")
        slot_store(vD2, sX+1, False, 138)
        slot_store(124, sX+1, True, 133)
        a("s_branch L_X_end")
    else:
        for t in range(8):
            buildA(vA2+4*t, 73+t//4, t % 4)
            if t > 0: mfma(vD2+4*((t-1) & 1), vA2+4*(t-1), vWO+4*((t-1)//2))
        mfma(vD2+4, vA2+28, vWO+12)
        for r in range(4): a(f"v_add_f32_dpp v{vD2+r}, v{vD2+4+r}, v{vD2+r} row_ror:8 row_mask:0xf bank_mask:0xf")
        slot_store(vD2, sX+1, True, 138)
        if p.clean & 1: a(f"s_add_u32 vcc_lo, s{sT2}, {HPL-HP}\ns_mov_b32 exec_lo, 0x00ff00ff\ns_mov_b32 exec_hi, 0x00ff00ff\nbuffer_store_dwordx4 {V(vDF)}, v138, {R(rWS)}, vcc_lo offen sc1\ns_mov_b64 exec, -1")
        a("s_branch L_X_end")
    a.label("L_X_fg")
    a(f"""s_cmp_eq_u32 s{sWave}, 7
    s_cbranch_scc1 L_X_fg7""")
    srd(rB, pB1, SZ['b1'])
    a(f"""s_sub_u32 s{sT2}, s{sWave}, 5
    s_mul_i32 s{sT0}, s{sXcd}, {16*4608}
    s_mul_i32 s{sT1}, s{sT2}, 2304
    s_add_u32 s{sT0}, s{sT0}, s{sT1}
    s_mul_i32 s{sT1}, s{sI}, 144
    s_add_u32 s{sT0}, s{sT0}, s{sT1}
    s_add_u32 s{sT0}, s{sT0}, {HPL if p.floc else HP}
    s_add_u32 s{sQ}, s{sT0}, {4*4608}
    s_add_u32 s{sQ+1}, s{sT0}, {8*4608}
    s_add_u32 s{sQ+2}, s{sT0}, {12*4608}
    v_mul_u32_u24 v10, 4608, v{vG}
    v_lshl_add_u32 v10, v{vJ}, 4, v10
    v_add_u32 v14, v139, v{vG}
    v_lshlrev_b32 v14, 1, v14
    s_lshl_b32 s{sT1}, s{sT2}, 2
    s_add_u32 s{sT1}, s{sT1}, {L_GATE}
    v_mov_b32 v16, s{sT1}
    s_mul_i32 s{sT1}, s{sT2}, 192
    s_add_u32 s{sT1}, s{sT1}, {L_HX}
    v_lshl_add_u32 v17, v{vJ}, 2, v{vG}
    v_lshlrev_b32 v17, 2, v17
    v_add_u32 v17, s{sT1}, v17
    s_mov_b32 exec_lo, 0x01ff01ff
    s_mov_b32 exec_hi, 0x01ff01ff
    buffer_load_ushort v15, v14, {R(rB)}, 0 offen""")
    def floads():
        for k, s in enumerate((sT0, sQ, sQ+1, sQ+2)):
            if not p.nof: a(f"buffer_load_dwordx4 {V(20+4*k)}, v10, {R(rWS)}, s{s} offen sc1")
    if p.xord == 2: a("s_barrier")
    if p.fdel: a("s_barrier")
    a("s_barrier\nds_read_b32 v16, v16")
    if p.fmid < 8:
        floads()
        Lf = a.newlabel('fchk')
        a(f"s_barrier\ns_mov_b32 s{sCnt}, 0\ns_branch {Lf}")
        L = a.newlabel('poll'); a.label(L)
        floads()
        a.label(Lf)
    else:
        L = poll_begin()
        floads()
    for k in range(4):
        a(f"s_waitcnt vmcnt({3-k})")
        chk4(36, 20+4*k, k == 0)
    poll_end(L, 36, '0' if p.nof else '0xff', ((sT0, sQ, sQ+1, sQ+2), HPL-HP) if p.floc else None, sleep=p.fsleep)
    stamp(8)
    a("s_mov_b64 exec, -1")
    for k in range(4): a(f"v_add_f32 v{20+k}, v{20+k}, v{24+k}\nv_add_f32 v{28+k}, v{28+k}, v{32+k}")
    for k in range(4): a(f"v_add_f32 v{20+k}, v{20+k}, v{28+k}")
    treduce(20)
    c1 = -2*math.sqrt(2/math.pi)*math.log2(math.e)
    a(f"""v_lshlrev_b32 v15, 16, v15
    v_add_f32 v20, v20, v15
    v_mul_f32 v21, v20, v20
    v_mov_b32 v22, {f2u(c1)}
    v_fmac_f32 v22, {f2u(c1*0.044715)}, v21
    v_mul_f32 v21, v22, v20
    v_exp_f32 v21, v21
    v_add_f32 v21, 1.0, v21
    v_rcp_f32 v21, v21
    s_waitcnt lgkmcnt(0)
    v_sub_f32 v16, 1.0, v16
    v_mul_f32 v20, v20, v21
    v_mul_f32 v20, v20, v16
    v_cvt_pk_bf16_f32 v20, v20, v20
    s_mov_b32 exec_lo, 0x01ff01ff
    s_mov_b32 exec_hi, 0x01ff01ff
    ds_write_b32 v17, v20
    s_mov_b64 exec, -1
    s_waitcnt lgkmcnt(0)""")
    a("s_branch L_X_fgend")
    a.label("L_X_fg7")
    if p.floc:
        a(f"""s_lshl_b32 s{sT2}, s{sXcd}, 4
        s_add_u32 s{sT2}, s{sT2}, s{sI}
        s_mul_i32 s{sT2}, s{sT2}, 4608
        s_add_u32 s{sT2}, s{sT2}, {HPL}
        v_lshlrev_b32 v41, 7, v{vL}
        s_mov_b32 exec_hi, 15
        buffer_load_dword v42, v41, {R(rWS)}, s{sT2} offen sc1
        s_mov_b64 exec, -1""")
    srd(rB, pGW, SZ['gw'])
    a(f"""v_and_b32 v9, 31, v{vL}
    v_mul_u32_u24 v9, 36, v9
    v_lshrrev_b32 v12, 5, v{vL}
    v_mul_u32_u24 v11, 1152, v12
    v_add_u32 v11, v11, v9
    buffer_load_dwordx4 v[20:23], v11, {R(rA)}, 0 offen
    buffer_load_dwordx4 v[24:27], v11, {R(rA)}, 0 offen offset:16
    buffer_load_dword v28, v11, {R(rA)}, 0 offen offset:32
    buffer_load_dwordx4 v[32:35], v9, {R(rB)}, 0 offen
    buffer_load_dwordx4 v[36:39], v9, {R(rB)}, 0 offen offset:16
    buffer_load_dword v40, v9, {R(rB)}, 0 offen offset:32
    v_mov_b32 v13, 0
    v_lshlrev_b32 v10, 2, v12
    v_add_u32 v10, {L_GATE}, v10
    s_waitcnt vmcnt(0)""")
    gatemath()
    if p.fast:
        a(f"""s_mov_b32 exec_lo, 0x01010101
        s_mov_b32 exec_hi, 0x01010101
        buffer_load_dword v20, v{vL16}, {R(rWS)}, s{sX} offen sc1
        s_mov_b64 exec, -1""")
    if p.wogate:
        for k in range(p.wogate):
            a(f"s_add_u32 s{4+k}, s2, {53*k+11}\ns_and_b32 s{4+k}, s{4+k}, 127\ns_lshl_b32 s{4+k}, s{4+k}, 8\ns_add_u32 s{4+k}, s{4+k}, {HC + (128 if p.wgpos == 0 else 64)}")
        spoll_all([4+k for k in range(p.wogate)], 8)
    if p.xord == 2:
        srd(rC, pWO, 0 if p.nod1 & 2 else SZ['wo'])
        a("s_mov_b32 m0, 0\ns_barrier")
        for n in range(36):
            if n % 4 == 0 and n: a(f"s_addk_i32 m0, 4096\ns_add_u32 s{sX+2}, s{sX+2}, 4096")
            if n == p.wosplit: a("s_barrier")
            a(f"buffer_load_dwordx4 v{vL16}, {R(rC)}, s{sX+2} offen offset:{1024*(n%4)} {nt} lds")
        if p.wosplit >= 36: a("s_barrier")
        a("s_waitcnt vmcnt(0)\ns_branch L_X_fgend")
    a("s_barrier")
    if p.fflag:
        a(f"""s_lshl_b32 s{sT3}, s2, 7
        s_add_u32 s{sT3}, s{sT3}, {HD+64}
        s_mov_b64 exec, 0xffff
        buffer_store_dword v137, v135, {R(rWS)}, s{sT3} offen sc1
        s_mov_b64 exec, -1
        s_lshl_b32 s{sT3}, s{sXcd}, 7
        s_add_u32 s{sT3}, s{sT3}, {HD+64}
        s_add_u32 s{sQ}, s{rWS}, s{sT3}
        s_addc_u32 s{sQ+1}, s{rWS+1}, 0
        s_mov_b32 s{sCnt}, 0
L_ff:""")
        for k in range(16): a(f"s_load_dword s{4+k}, s[{sQ}:{sQ+1}], {1024*k} glc")
        a(f"s_add_u32 s{sCnt}, s{sCnt}, 1\ns_cmp_ge_u32 s{sCnt}, {p.maxspin}\ns_cbranch_scc1 L_ffd\ns_waitcnt lgkmcnt(0)")
        for k in range(16): a(f"s_cmp_lg_u32 s{4+k}, s{sT[0]}\ns_cbranch_scc1 L_ff")
        a("L_ffd:\ns_waitcnt lgkmcnt(0)")
    if p.fdel: a("s_barrier")
    if p.fmid < 8: a("s_barrier")
    a("s_waitcnt vmcnt(0)")
    a.label("L_X_fgend")
    if p.wb == 2: a(f"s_lshr_b32 s{sT0}, s2, 3\ns_lshl_b32 s{sT0}, s{sT0}, 3\ns_add_u32 s{sT0}, s{sT0}, s{sWave}\ns_cmp_eq_u32 s{sT0}, 7\ns_cbranch_scc0 L_nowb\nbuffer_wbl2 sc1\nL_nowb:")
    a("s_barrier")
    if p.wb == 1: a(f"s_lshr_b32 s{sT0}, s2, 3\ns_lshl_b32 s{sT0}, s{sT0}, 3\ns_add_u32 s{sT0}, s{sT0}, s{sWave}\ns_cmp_eq_u32 s{sT0}, 7\ns_cbranch_scc0 L_X_end\nbuffer_wbl2 sc1")
    a.label("L_X_end")
    stamp(11)
    finish('X')

    a.label("L_Y_main")
    vQA, vPA, vSF, vPF, vACC = 20, 36, 48, 112, 176
    vTG, vTO = 208, 212
    vQG = 216
    a(f"""s_and_b32 s{sT2}, s{sWave}, 3
    s_lshr_b32 s{sT3}, s{sWave}, 2
    v_and_b32 v9, 7, v{vJ}
    v_lshlrev_b32 v9, 1, v9
    v_lshrrev_b32 v10, 3, v{vJ}
    v_or_b32 v9, v9, v10
    v_lshlrev_b32 v9, 4, v9
    v_lshl_add_u32 v9, v{vG}, 8, v9
    v_lshl_add_u32 v9, v{vJ}, 10, v9
    s_lshl_b32 s{sT0}, s{sT2}, 14
    v_add_u32 v13, s{sT0}, v9
    s_lshl_b32 s{sT0}, s{sT3}, 14
    s_add_u32 s{sT0}, s{sT0}, {L_QIMG}
    v_add_u32 v{vQA}, s{sT0}, v9""")
    for ks in range(1, 16): a(f"v_xor_b32 v{vQA+ks}, {16*ks}, v{vQA}")
    a(f"""v_lshrrev_b32 v9, 2, v{vL}
    v_and_b32 v10, 7, v9
    v_lshlrev_b32 v10, 1, v10
    v_lshrrev_b32 v11, 3, v9
    v_or_b32 v10, v10, v11
    v_bfe_u32 v11, v{vL}, 1, 1
    v_xor_b32 v10, v10, v11
    v_lshlrev_b32 v10, 4, v10
    v_lshl_add_u32 v10, v9, 10, v10
    v_and_b32 v11, 1, v{vL}
    v_lshl_add_u32 v10, v11, 3, v10
    s_lshl_b32 s{sT0}, s{sT2}, 8
    v_add_u32 v{vPA}, s{sT0}, v10""")
    for ct in range(1, 8): a(f"v_xor_b32 v{vPA+ct}, {32*ct}, v{vPA}")
    lsbtags(vTG)
    a(f"s_bitcmp1_b32 s2, 0\ns_cselect_b32 s{sT0}, 0xff, 0")
    lsbtags(vTO, f"s{sT0}")
    a(f"s_sub_u32 s{sI}, s{sJ}, 4")
    if p.wrow:
        a(f"""v_and_b32 v11, 3, v{vL}
        v_lshlrev_b32 v14, 6, v11
        v_lshl_add_u32 v14, v{vG}, 4, v14
        s_lshl_b32 s{sQ+4}, s{sWave}, 8
        s_lshl_b32 s{sQ+5}, s{sH}, 11
        s_add_u32 s{sQ+4}, s{sQ+4}, s{sQ+5}
        s_add_u32 s{sQ+4}, s{sQ+4}, {ST}
        v_mov_b32 v47, v{vL16}
        s_lshl_b32 s{sQ+5}, s{sH}, 2
        s_add_u32 s{sQ+5}, s{sQ+5}, s{sI}
        s_lshl_b32 s{sQ+2}, s{sH}, 12
        s_lshl_b32 s{sQ+3}, s{sI}, 8
        s_add_u32 s{sQ+2}, s{sQ+2}, s{sQ+3}
        s_add_u32 s{sQ+3}, s{sQ+2}, {CXL}
        s_add_u32 s{sQ+2}, s{sQ+2}, {CX}
        s_mul_i32 s{sQ+5}, s{sQ+5}, {p.opstr}
        s_lshl_b32 vcc_lo, s{sWave}, 12
        s_add_u32 s{sQ+5}, s{sQ+5}, vcc_lo
        s_add_u32 s{sQ+5}, s{sQ+5}, {OP}""")
    else:
        a(f"""v_bfe_u32 v9, v{vL}, 3, 1
    v_lshlrev_b32 v14, {10 if p.cstat else 15}, v9
    v_and_b32 v11, 3, v{vL}
    v_lshl_add_u32 v14, v11, {6 if p.cstat else 11}, v14
    v_lshl_add_u32 v14, v{vG}, {4 if p.cstat else 9}, v14
    s_and_b32 s{sT2}, s{sWave}, 3
    s_lshr_b32 s{sT3}, s{sWave}, 2
    s_lshl_b32 s{sQ+4}, s{sT2}, {8 if p.cstat else 13}
    s_lshl_b32 s{sQ+5}, s{sH}, {11 if p.cstat else 4}
    s_add_u32 s{sQ+4}, s{sQ+4}, s{sQ+5}
    s_add_u32 s{sQ+4}, s{sQ+4}, {ST}""")
        a(f"""v_lshl_add_u32 v47, v9, 6, v{vG}
    v_mul_u32_u24 v47, {p.opstr if p.oplay else 256}, v47
    v_and_b32 v11, 7, v{vL}
    v_lshl_add_u32 v47, v11, 4, v47
    s_lshl_b32 s{sQ+5}, s{sH}, 2
    s_add_u32 s{sQ+5}, s{sQ+5}, s{sI}
    s_lshl_b32 s{sQ+2}, s{sH}, 12
    s_lshl_b32 s{sQ+3}, s{sI}, 8
    s_add_u32 s{sQ+2}, s{sQ+2}, s{sQ+3}
    s_add_u32 s{sQ+3}, s{sQ+2}, {CXL}
    s_add_u32 s{sQ+2}, s{sQ+2}, {CX}
    s_mul_i32 s{sQ+5}, s{sQ+5}, {256 if p.oplay else p.opstr}
    s_mul_i32 vcc_lo, s{sT2}, {16*p.opstr if p.oplay else 4096}
    s_add_u32 s{sQ+5}, s{sQ+5}, vcc_lo
    s_lshl_b32 vcc_lo, s{sT3}, {7 if not p.halfo else 11}
    s_add_u32 s{sQ+5}, s{sQ+5}, vcc_lo
    s_add_u32 s{sQ+5}, s{sQ+5}, {OP}""")
    if p.vglob:
        a(f"""v_bfe_u32 v11, v{vL}, 2, 1
        v_lshlrev_b32 v11, 1, v11
        v_xor_b32 v11, s{sT2}, v11
        v_lshl_add_u32 v14, v11, 8, v14
        s_lshl_b32 s{sQ+4}, s{sH}, 11
        s_add_u32 s{sQ+4}, s{sQ+4}, {ST}""")
    a(f"""s_bfe_u32 s{sT0}, s2, 0x10006
    s_lshl_b32 s{sT0}, s{sT0}, 15
    s_lshl_b32 s{sT1}, s{sWave}, 12
    s_add_u32 s{sT0}, s{sT0}, s{sT1}
    s_add_u32 s{sT0}, s{sT0}, {QL}
    s_add_u32 s{sT1}, s{sT1}, {L_QIMG}
    s_and_b32 vcc_lo, s{sWave}, 1
    s_lshl_b32 vcc_lo, vcc_lo, 7
    s_bfe_u32 vcc_hi, s{sWave}, 0x10001
    s_lshl_b32 vcc_hi, vcc_hi, 4
    s_or_b32 vcc_lo, vcc_lo, vcc_hi
    v_xor_b32 v16, vcc_lo, v{vL16}
    v_add_u32 v16, s{sT1}, v16
    v_xor_b32 v17, 32, v16
    v_xor_b32 v18, 64, v16
    v_xor_b32 v19, 0x60, v16
    """)
    a(f"""s_lshl_b32 s{sQ+9}, s{sT3}, 12
    s_add_u32 s{sQ+9}, s{sQ+9}, {L_SX}
    v_add_u32 v10, s{sQ+9}, v{vL16}
    s_lshl_b32 s{sQ+9}, s{sT2}, 10
    v_add_u32 v11, s{sQ+9}, v10
    v_mul_u32_u24 v12, {4096 if p.oplay else 16*p.opstr}, v{vG}
    v_lshl_add_u32 v12, v{vJ}, 4, v12
    s_sub_u32 s{sQ+9}, s2, 128
    s_lshl_b32 s{sT1}, s{sQ+9}, {4 if p.cstat else 9}
    v_lshlrev_b32 v15, {11 if p.cstat else 4}, v{vL}
    s_lshl_b32 vcc_lo, s{sT3}, {15 if p.cstat else 8}
    s_add_u32 s{sT1}, s{sT1}, vcc_lo
    s_add_u32 s{sT1}, s{sT1}, {ST}
    s_mul_i32 s{sQ+10}, s{sQ+9}, {p.opstr if p.oplay else 256}
    s_mul_i32 vcc_lo, s{sT3}, {16384 if p.oplay else 64*p.opstr}
    s_add_u32 s{sQ+10}, s{sQ+10}, vcc_lo
    s_mul_i32 vcc_lo, s{sT2}, {256 if p.oplay else p.opstr}
    s_add_u32 s{sQ+10}, s{sQ+10}, vcc_lo
    s_add_u32 s{sQ+10}, s{sQ+10}, {OP}
    s_lshl_b32 s{sQ+9}, s{sQ+9}, 8
    s_lshl_b32 vcc_lo, s{sT3}, 7
    s_add_u32 s{sQ+9}, s{sQ+9}, vcc_lo
    s_add_u32 s{sQ+9}, s{sQ+9}, {HC}""")
    if p.uv1 < 8: uvsetup(sQ)
    if p.qmid:
        ckvaddr(); srd(rC, pCKV, SZ['ckv'])
    if p.cflag and p.cprog:
        a(f"""s_bfe_u32 s{sQ+9}, s2, 0x20004
        s_mul_i32 s{sQ+9}, s{sQ+9}, {p.cstr}
        s_and_b32 vcc_lo, s2, 15
        s_lshl_b32 vcc_lo, vcc_lo, 1
        s_add_u32 s{sQ+9}, s{sQ+9}, vcc_lo
        s_bfe_u32 vcc_lo, s2, 0x10006
        s_lshl_b32 vcc_lo, vcc_lo, 5
        s_add_u32 s{sQ+9}, s{sQ+9}, vcc_lo
        s_add_u32 s{sQ+9}, s{sQ+9}, {FP2}
        v_mul_u32_u24 v46, {8*p.cstr}, v{vL}""")
    elif p.cflag:
        a(f"""s_bfe_u32 s{sQ+9}, s2, 0x30004
        s_mul_i32 s{sQ+9}, s{sQ+9}, {p.cstr}
        s_and_b32 vcc_lo, s2, 15
        s_lshl_b32 vcc_lo, vcc_lo, 2
        s_add_u32 s{sQ+9}, s{sQ+9}, vcc_lo
        s_add_u32 s{sQ+9}, s{sQ+9}, {FP2}
        v_mul_u32_u24 v46, {8*p.cstr}, v{vL}""")
        if p.cfine: a(f"s_mul_i32 vcc_lo, s{sWave}, {16*p.cstr}\ns_add_u32 s{sQ+9}, s{sQ+9}, vcc_lo")
    for k in range(4): a(f"v_mov_b32 v{248+k}, 0x3f803f80\nv_mov_b32 v{252+k}, s{sT[0]}")
    if p.own:
        a(f"""s_lshl_b32 vcc_lo, s{sT3}, 11
        s_add_u32 vcc_lo, vcc_lo, {L_PX}
        v_lshlrev_b32 v253, 3, v{vL}
        v_add_u32 v253, vcc_lo, v253
        s_lshl_b32 vcc_lo, s{sT2}, 9
        v_add_u32 v254, vcc_lo, v253""")
    def qloads():
        for n in range(4): a(f"buffer_load_dwordx4 {V(vQG+4*n)}, v{vL16}, {R(rWS)}, s{sT0} offen offset:{1024*(n if not p.emub else n&1)} sc1")
    if p.qmid:
        def tilefr(T):
            Ls = a.newlabel('nos')
            a(f"s_cmp_lg_u32 s{sT2}, {T}\ns_cbranch_scc1 {Ls}")
            for ks in range(16): a(f"v_xor_b32 v9, {16*ks}, v13\nds_read_b128 {V(vSF+4*ks)}, v9")
            a.label(Ls)
            for ct in range(8): a(f"ds_read_b64_tr_b16 {V(vPF+8*ct+2*T, 2)}, v{vPA+ct} offset:{16384*T}")
        def qw(n): a(f"ds_write_b128 v{16+n}, {V(vQG+4*n)} offset:{1024*n}")
        for T in range(3):
            a(f"s_waitcnt vmcnt({8-4*T + (8 if T >= p.qat else 0)})\ns_barrier")
            if T == p.qat - 1:
                qloads()
                a(f"s_cmp_lt_u32 s{sWave}, 4\ns_cbranch_scc1 L_Y_not3")
                for i in range(12, 16): ckv(i)
                a.label("L_Y_not3")
            tilefr(T)
        Lq = a.newlabel('qchk'); L = a.newlabel('poll'); Lw = a.newlabel('qw')
        a(f"""s_mov_b32 s{sCnt}, 0
        s_waitcnt vmcnt(4)
        s_cmp_lt_u32 s{sWave}, 4
        s_cbranch_scc1 {Lw}
        s_branch {Lq}""")
        a.label(L)
        qloads()
        a("s_mov_b64 exec, -1")
        a.label(Lw)
        a("s_waitcnt vmcnt(0)")
        a.label(Lq)
        for n in range(4): qw(n); chkv(9, vQG+4*n, vTG, n == 0)
        poll_end_masked(L, 9, '0x10001', p.bsleep)
        a("s_waitcnt vmcnt(0) lgkmcnt(0)\ns_barrier")
        stamp(3); cyc(1)
        tilefr(3)
    else:
        for T in range(4):
            if T == p.qat:
                if p.bflag:
                    a(f"""s_and_b32 s{sQ+8}, s2, 15
                s_lshl_b32 s{sQ+8}, s{sQ+8}, 3
                s_add_u32 s{sQ+8}, s{sQ+8}, s{sWave}
                s_mul_i32 s{sQ+8}, s{sQ+8}, {p.cstr}
                s_add_u32 s{sQ+8}, s{sQ+8}, {FP2 + 0x80000}
                s_mov_b32 s{sQ+6}, s{sT[0]}
                s_mov_b32 s{sQ+7}, s{sT[0]}
                s_mov_b32 s{sCnt}, 0
L_bf:
                s_load_dwordx16 s[4:19], s[{rWS}:{rWS+1}], s{sQ+8} glc
                s_add_u32 s{sCnt}, s{sCnt}, 1
                s_cmp_ge_u32 s{sCnt}, {p.maxspin}
                s_cbranch_scc1 L_bfd
                s_waitcnt lgkmcnt(0)""")
                    for k in range(8): a(f"s_cmp_lg_u64 s[{4+2*k}:{5+2*k}], s[{sQ+6}:{sQ+7}]\ns_cbranch_scc1 L_bf")
                    a("L_bfd:\ns_waitcnt lgkmcnt(0)")
                qloads()
                if p.uv2:
                    a(f"s_cmp_lt_u32 s{sWave}, 4\ns_cbranch_scc1 L_Y_nouv2")
                    uvdma(sQ, p.uv1, p.uv1 + p.uv2)
                    a.label("L_Y_nouv2")
            a(f"s_waitcnt vmcnt({12-4*T + (4+p.uv2 if T >= p.qat else 0)})\ns_barrier")
            if p.gate == 17 + T:
                a(f"""s_sub_u32 vcc_lo, s2, 128
            s_lshl_b32 vcc_lo, vcc_lo, 7
            s_add_u32 vcc_lo, vcc_lo, {HG}
            s_cmp_eq_u32 s{sWave}, 1
            s_cselect_b32 exec_lo, 0xf, 0
            s_mov_b32 exec_hi, 0
            buffer_store_dwordx4 v[252:255], v{vL16}, {R(rWS)}, vcc_lo offen sc1
            s_mov_b64 exec, -1""")
            if T == 3:
                stamp(3); cyc(1)
                if p.qat == 4: qloads()
            Ls = a.newlabel('nos'); Ln = a.newlabel('nof')
            if p.solo: a(f"s_cmp_ge_u32 s{sWave}, 4\ns_cbranch_scc1 {Ln}")
            a(f"s_cmp_lg_u32 s{sT2}, {T}\ns_cbranch_scc1 {Ls}")
            for ks in range(16):
                a(f"v_xor_b32 v9, {16*ks}, v13\nds_read_b128 {V(vSF+4*ks)}, v9")
            a.label(Ls)
            for ct in range(8):
                a(f"ds_read_b64_tr_b16 {V(vPF+8*ct+2*T, 2)}, v{vPA+ct} offset:{16384*T}")
            if p.solo: a.label(Ln)
        if p.qsplit: a(f"s_cmp_eq_u32 s{sT3}, 0\ns_cbranch_scc1 L_Y_q\ns_barrier\nL_Y_q:")
        Lq = a.newlabel('qchk'); L = a.newlabel('poll'); Lw = a.newlabel('qw')
        def qw(n): a(f"ds_write_b128 v{16+n}, {V(vQG+4*n)} offset:{1024*n}")
        a(f"s_mov_b32 s{sCnt}, 0")
        if p.uv2:
            a(f"s_cmp_lt_u32 s{sWave}, 4\ns_cbranch_scc1 {Lw}")
            for n in range(4):
                a(f"s_waitcnt vmcnt({3-n+p.uv2})"); qw(n); chkv(9, vQG+4*n, vTG, n == 0)
            a(f"s_branch {Lq}")
        else:
            a(f"s_branch {Lw}")
        a.label(L)
        qloads()
        a("s_mov_b64 exec, -1")
        a.label(Lw)
        for n in range(4):
            a(f"s_waitcnt vmcnt({3-n})"); qw(n); chkv(9, vQG+4*n, vTG, n == 0)
        a.label(Lq)
        poll_end_masked(L, 9, '0x10001', p.bsleep)
    if p.stamp: a(f"s_mov_b32 s{sStamp+24}, s{sCnt}")
    stamp(4)
    a(f"s_mov_b32 s{sT0}, s{sQ+10}\nv_mov_b32 v9, 0x10001")
    def hint(pos):
        if p.hintpos == pos and p.cfine:
            a(f"""s_mov_b64 exec, 3
            buffer_store_dword v252, v46, {R(rWS)}, s{sQ+9} offen sc1
            s_mov_b64 exec, -1""")
        elif p.hintpos == pos and p.cflag:
            a(f"""s_cmp_eq_u32 s{sWave}, {p.cw}
            s_cbranch_scc0 L_Y_noh
            s_mov_b32 exec_lo, {((1 << p.crep) - 1) & 0xffffffff}
            s_mov_b32 exec_hi, {((1 << p.crep) - 1) >> 32}
            buffer_store_{'short' if p.cprog else 'dword'} v252, v46, {R(rWS)}, s{sQ+9} offen sc1
            s_mov_b64 exec, -1
L_Y_noh:""")
        elif p.hintpos == pos:
            a(f"""s_cmp_eq_u32 s{sT2}, 3
            s_cselect_b32 exec_lo, 0xf, 0
            s_mov_b32 exec_hi, 0
            buffer_store_dwordx4 v[252:255], v{vL16}, {R(rWS)}, s{sQ+9} offen sc1
            s_mov_b64 exec, -1""")
    if p.solo:
        NQ = 8
        cyc(2)
        a("s_waitcnt lgkmcnt(0)\ns_barrier")
        stamp(5); cyc(3)
        a(f"s_cmp_ge_u32 s{sWave}, 4\ns_cbranch_scc1 L_Y_help\ns_setprio 2")
        lds = []
        def L_(tag, text): lds.append(tag); a(text)
        def W_(tag):
            n = len(lds) - 1 - lds.index(tag)
            assert n <= 15
            a(f"s_waitcnt lgkmcnt({n})")
        def qread(k): L_(('q', k), f"ds_read_b128 {V(vQG+4*(k%NQ))}, v{vQA+(k%16)} offset:{16384*(k//16)}")
        def softmax_ops(S, m, P):
            pk = lambda r: f"v_pk_add_f32 v[{r}:{r+1}], v[{r}:{r+1}], v[{m}:{m+1}] op_sel_hi:[1,0] neg_lo:[0,1] neg_hi:[0,1]"
            A = [f"v_max3_f32 v{m}, v{S}, v{S+1}, v{S+2}", f"v_max3_f32 v{m+1}, v{S+3}, v{S+4}, v{S+5}",
                 f"v_max3_f32 v{m}, v{m}, v{S+6}, v{S+7}", f"v_max3_f32 v{m+1}, v{m+1}, v{S+8}, v{S+9}",
                 f"v_max3_f32 v{m}, v{m}, v{S+10}, v{S+11}", f"v_max3_f32 v{m+1}, v{m+1}, v{S+12}, v{S+13}",
                 f"v_max3_f32 v{m}, v{m}, v{S+14}, v{S+15}", f"v_max_f32 v{m}, v{m}, v{m+1}",
                 f"v_mov_b32 v{m+1}, v{m}", None, f"v_permlane32_swap_b32 v{m}, v{m+1}", f"v_max_f32 v{m}, v{m}, v{m+1}",
                 f"v_mov_b32 v{m+1}, v{m}", None, f"v_permlane16_swap_b32 v{m}, v{m+1}", f"v_max_f32 v{m}, v{m}, v{m+1}"]
            B = [pk(S+2*k) for k in range(4)] + [f"v_exp_f32 v{S+k}, v{S+k}" for k in range(8)] + [pk(S+8), pk(S+10)] + \
                [f"v_cvt_pk_bf16_f32 v{P+k}, v{S+2*k}, v{S+2*k+1}" for k in range(4)]
            C = [pk(S+12), pk(S+14)] + [f"v_exp_f32 v{S+k}, v{S+k}" for k in range(8, 16)] + \
                [f"v_cvt_pk_bf16_f32 v{P+k}, v{S+2*k}, v{S+2*k+1}" for k in range(4, 8)]
            return A + B, C
        def fill(q, n):
            k = 0
            while q and k < n:
                x = q.pop(0)
                if x is None: break
                if callable(x): x()
                else: a(x)
                k += 2 if (isinstance(x, str) and 'v_exp' in x) else 1
        def drain(q):
            while q: fill(q, 99)
        sa0, sa1, S0, S1, P0, P1, m0_, m1_, AC0, AC1, O0, O1 = 208, 248, 48, 64, 36, 20, 16, 18, 176, 80, 216, 232
        for k in range(NQ): qread(k)
        for k in range(16):
            W_(('q', k)); mfma(sa0, vSF+4*k, vQG+4*(k % NQ), '0' if k == 0 else None); qread(k+NQ)
        cyc(4)
        sm0, sm0c = softmax_ops(S0, m0_, P0)
        for k in range(16, 32):
            W_(('q', k)); mfma(sa1, vSF+4*(k-16), vQG+4*(k % NQ), '0' if k == 16 else None)
            if k + NQ < 32: qread(k+NQ)
            if k == 18: L_('w0', f"ds_write_b128 v11, {V(sa0)}")
            if k == 21:
                W_('w0'); a("s_barrier")
                for T in range(4): L_(('s0', T), f"ds_read_b128 {V(S0+4*T)}, v10 offset:{1024*T}")
            if k == 25: W_(('s0', 3))
            if k >= 25: fill(sm0, p.f1)
        cyc(5)
        fill(sm0, 4); fill(sm0, 4); fill(sm0, 4)
        L_('w1', f"ds_write_b128 v11, {V(sa1)} offset:4096")
        fill(sm0, 10)
        W_('w1'); a("s_barrier")
        for T in range(4): L_(('s1', T), f"ds_read_b128 {V(S1+4*T)}, v10 offset:{4096+1024*T}")
        drain(sm0)
        hint(0); cyc(6)
        sm1, sm1c = softmax_ops(S1, m1_, P1)
        for ct in range(8):
            mfma(AC0+4*ct, P0, vPF+8*ct, '0'); fill(sm0c, p.f2)
        drain(sm0c)
        W_(('s1', 3)); fill(sm1, 2)
        hint(1); cyc(7)
        for ct in range(8):
            mfma(AC0+4*ct, P0+4, vPF+8*ct+4); fill(sm1, p.f2)
        drain(sm1)
        hint(2); cyc(8)
        def epi(AC, O, k):
            return [f"v_cvt_pk_bf16_f32 v{O+4*r+k}, v{AC+8*k+r}, v{AC+8*k+4+r}" for r in range(4)] + \
                   [f"v_bfi_b32 v{O+4*r+k}, v9, v{vTO+k}, v{O+4*r+k}" for r in range(4)]
        def epir(AC, O, r):
            return [f"v_cvt_pk_bf16_f32 v{O+4*r+k}, v{AC+8*k+r}, v{AC+8*k+4+r}" for k in range(4)] + \
                   [f"v_bfi_b32 v{O+4*r+k}, v9, v{vTO+k}, v{O+4*r+k}" for k in range(4)] + \
                   [f"buffer_store_dwordx4 {V(O+4*r)}, v12, {R(rWS)}, s{sT0} offen sc1\ns_add_u32 s{sT0}, s{sT0}, {4*p.opstr if r < 3 else 52*p.opstr}"]
        for ct in range(8):
            mfma(AC1+4*ct, P1, vPF+8*ct, '0'); fill(sm1c, p.f2)
        drain(sm1c)
        e0 = epir(AC0, O0, 0) + epir(AC0, O0, 1) + epir(AC0, O0, 2) + epir(AC0, O0, 3)
        fill(e0, 2)
        hint(4); cyc(9)
        for ct in range(8):
            mfma(AC1+4*ct, P1+4, vPF+8*ct+4); fill(e0, p.f2)
        drain(e0)
        hint(5); cyc(10)
        for r in range(4): drain(epir(AC1, O1, r))
        hint(3)
        stamp(7); cyc(11)
        a("s_branch L_Y_vv")
        a.label("L_Y_help")
        uvdma(sQ, p.uv1 + p.uv2, 8 - p.uv3)
        a(f"""s_lshl_b32 vcc_lo, s{sT2}, 12
        s_add_u32 vcc_lo, vcc_lo, {L_SX}
        v_add_u32 v10, vcc_lo, v{vL16}
        s_sub_u32 s{sT1}, s{sT1}, 32768
        s_lshl_b32 vcc_lo, s{sT2}, 15
        s_add_u32 s{sT1}, s{sT1}, vcc_lo
        s_barrier
        s_barrier
        s_cmp_ge_u32 s{sWave}, 6
        s_cbranch_scc1 L_Y_vv""")
        for T in range(4): a(f"ds_read_b128 {V(48+4*T)}, v10 offset:{1024*T}")
        a("s_waitcnt lgkmcnt(0)")
        h, hc = softmax_ops(48, 64, 72)
        for x in h + hc:
            if x and 'cvt' not in x: a(x)
        for k in range(4): a(f"v_pk_add_f32 v[{48+2*k}:{49+2*k}], v[{48+2*k}:{49+2*k}], v[{56+2*k}:{57+2*k}]")
        a("""v_pk_add_f32 v[48:49], v[48:49], v[52:53]
        v_pk_add_f32 v[50:51], v[50:51], v[54:55]
        v_pk_add_f32 v[48:49], v[48:49], v[50:51]
        v_add_f32 v65, v48, v49""")
        allred_groups("v_add_f32", 65, 66)
        a(f"""v_mov_b32 v66, s{sT[0]}
        s_mov_b64 exec, 0xffff
        buffer_store_dwordx4 v[64:67], v15, {R(rWS)}, s{sT1} offen sc1
        s_mov_b64 exec, -1""")
        stamp(7)
        a.label("L_Y_vv")
        a("s_setprio 0")
    else:
        NQ = 8
        if p.qsplit:
            p.qpre = 0
            a(f"s_cmp_eq_u32 s{sT3}, 0\ns_cbranch_scc1 L_Y_s")
            uvdma(sQ, p.uv1 + p.uv2, 8 - p.uv3)
            if p.prio: a(f"s_setprio {p.prio}")
            a.label("L_Y_s")
            a("s_waitcnt lgkmcnt(0)\ns_barrier")
            stamp(5)
        else:
            cyc(2)
            a("s_waitcnt lgkmcnt(0)" if p.qmid else "s_waitcnt lgkmcnt(0)\ns_barrier")
            stamp(5); cyc(3)
            for ks in range(p.qpre): a(f"ds_read_b128 {V(vQG+4*ks)}, v{vQA+ks}")
            a(f"""s_cmp_eq_u32 s{sT3}, 0
    s_cbranch_scc1 L_Y_s""")
            uvdma(sQ, p.uv1 + p.uv2, 8 - p.uv3)
            a("s_barrier")
            if p.prio: a(f"s_setprio {p.prio}")
            a.label("L_Y_s")
        cyc(4)
        for ks in range(p.qpre, NQ): a(f"ds_read_b128 {V(vQG+4*ks)}, v{vQA+ks}")
        for ks in range(16):
            rem = min(15, ks+NQ-1) - ks
            a(f"s_waitcnt lgkmcnt({rem})")
            mfma(vACC, vSF+4*ks, vQG+4*(ks % NQ), '0' if ks == 0 else None)
            if ks + NQ < 16: a(f"ds_read_b128 {V(vQG+4*(ks%NQ))}, v{vQA+ks+NQ}")
        cyc(5)
        a(f"""ds_write_b128 v11, {V(vACC)}
    s_waitcnt lgkmcnt(0)
    s_barrier""")
        stamp(6); cyc(6)
        vS = 48
        for T in range(4): a(f"ds_read_b128 {V(vS+4*T)}, v10 offset:{1024*T}")
        hint(0)
        a(f"""s_waitcnt lgkmcnt(2)
    v_max3_f32 v64, v{vS}, v{vS+1}, v{vS+2}
    v_max3_f32 v65, v{vS+3}, v{vS+4}, v{vS+5}
    v_max3_f32 v64, v64, v{vS+6}, v{vS+7}
    s_waitcnt lgkmcnt(0)
    v_max3_f32 v65, v65, v{vS+8}, v{vS+9}
    v_max3_f32 v64, v64, v{vS+10}, v{vS+11}
    v_max3_f32 v65, v65, v{vS+12}, v{vS+13}
    v_max3_f32 v64, v64, v{vS+14}, v{vS+15}
    v_max_f32 v64, v64, v65""")
        allred_groups("v_max_f32", 64, 65)
        cyc(7)
        def lead_bar():
            a(f"s_cmp_eq_u32 s{sT3}, 0\ns_cbranch_scc0 L_Y_p\ns_barrier\nL_Y_p:")
        def epi(k):
            return [f"v_cvt_pk_bf16_f32 v{80+4*r+k}, v{vACC+8*k+r}, v{vACC+8*k+4+r}" for r in range(4)] + \
                   [f"v_bfi_b32 v{80+4*r+k}, v9, v{vTO+k}, v{80+4*r+k}" for r in range(4)]
        if p.own:
            vP = 72
            for k in range(4): a(f"v_sub_f32 v{vACC+k}, v{vACC+k}, v64")
            for k in range(4): a(f"v_exp_f32 v{vACC+k}, v{vACC+k}")
            a(f"""v_mov_b32 v66, s{sT[0]}
            v_cvt_pk_bf16_f32 v70, v{vACC}, v{vACC+1}
            v_cvt_pk_bf16_f32 v71, v{vACC+2}, v{vACC+3}
            ds_write_b64 v254, v[70:71]
            s_waitcnt lgkmcnt(0)
            s_barrier""")
            cyc(8)
            for T in range(4): a(f"ds_read_b64 v[{vP+2*T}:{vP+2*T+1}], v253 offset:{512*T}")
            hint(1)
            a(f"""s_cmp_eq_u32 s{sT2}, 0
            s_cselect_b32 vcc_lo, 0xffff, 0
            s_waitcnt lgkmcnt(0)
            s_cbranch_scc0 L_Y_nol""")
            mfma(68, 248, vP, '0')
            mfma(68, 248, vP+4)
            a.label("L_Y_nol")
            n = 0; q = []
            for k in range(4):
                for (c, kk) in ((0, 0), (1, 0), (0, 1), (1, 1)):
                    ct = 2*k + c
                    mfma(vACC+4*ct, vP+4*kk, vPF+8*ct+4*kk, '0' if kk == 0 else None)
                    n += 1
                    if n == p.x3: lead_bar()
                    if n == 8:
                        if not p.stlate:
                            a(f"""v_mov_b32 v65, v68
                        s_mov_b32 exec_lo, vcc_lo
                        s_mov_b32 exec_hi, 0
                        buffer_store_dwordx4 v[64:67], v15, {R(rWS)}, s{sT1} offen sc1
                        s_mov_b64 exec, -1""")
                        hint(2)
                        q = epi(0) + epi(1)
                    elif n > 8:
                        a(q.pop(0)); a(q.pop(0))
            rest = q + epi(2)
            if p.x3 > 16: lead_bar()
        else:
            if p.bpos == 1: lead_bar()
            vP = 72
            def pksub(r): return f"v_pk_add_f32 v[{r}:{r+1}], v[{r}:{r+1}], v[64:65] op_sel_hi:[1,0] neg_lo:[0,1] neg_hi:[0,1]"
            for k in range(4): a(pksub(vS+2*k))
            for k in range(8): a(f"v_exp_f32 v{vS+k}, v{vS+k}")
            for k in range(4, 8): a(pksub(vS+2*k))
            for k in range(4): a(f"v_cvt_pk_bf16_f32 v{vP+k}, v{vS+2*k}, v{vS+2*k+1}")
            hint(1); cyc(8)
            if p.diag == 1: stamp(1)
            if p.bpos == 0: lead_bar()
            for ct in range(8):
                mfma(vACC+4*ct, vP, vPF+8*ct, '0')
                a(f"v_exp_f32 v{vS+8+ct}, v{vS+8+ct}")
                if ct in (3, 5, 7): a(f"v_cvt_pk_bf16_f32 v{vP+4+(ct-3)//2}, v{vS+8+ct-3}, v{vS+8+ct-2}")
            a(f"v_mov_b32 v66, s{sT[0]}\nv_cvt_pk_bf16_f32 v{vP+7}, v{vS+14}, v{vS+15}")
            hint(2)
            if p.diag == 1: stamp(4)
            a(f"""s_cmp_eq_u32 s{sT2}, 0
    s_cbranch_scc0 L_Y_nol""")
            mfma(68, 248, vP, '0')
            mfma(68, 248, vP+4)
            a.label("L_Y_nol")
            def epi(k):
                return [f"v_cvt_pk_bf16_f32 v{80+4*r+k}, v{vACC+8*k+r}, v{vACC+8*k+4+r}" for r in range(4)] + \
                       [f"v_bfi_b32 v{80+4*r+k}, v9, v{vTO+k}, v{80+4*r+k}" for r in range(4)]
            for ct in range(4): mfma(vACC+4*ct, vP+4, vPF+8*ct+4)
            a(f"""s_cmp_eq_u32 s{sT2}, 0
    s_cselect_b32 vcc_lo, 0xffff, 0""")
            mfma(vACC+16, vP+4, vPF+36)
            a("s_nop 0\nv_mov_b32 v65, v68")
            mfma(vACC+20, vP+4, vPF+44)
            if not p.stlate:
                a(f"""s_mov_b32 exec_lo, vcc_lo
    s_mov_b32 exec_hi, 0
    {'s_cbranch_execz L_Y_nost2' if p.stbr else ''}
    buffer_store_dwordx4 v[64:67], v15, {R(rWS)}, s{sT1} offen sc1
L_Y_nost2:
    s_mov_b64 exec, -1""")
            e = epi(0)
            mfma(vACC+24, vP+4, vPF+52)
            for x in e[:3]: a(x)
            mfma(vACC+28, vP+4, vPF+60)
            rest = e[3:] + epi(1) + epi(2)
        if p.diag == 1: stamp(2)
        cyc(9)
        for x in rest: a(x)
        cyc(10)
        if p.diag == 6: a(f"s_memrealtime s[{sStamp+6}:{sStamp+7}]")
        hint(4)
        if p.stlate:
            a(f"""s_cmp_eq_u32 s{sT2}, 0
            s_cbranch_scc0 L_Y_nost
            v_mov_b32 v65, v68
            s_mov_b64 exec, 0xffff
            buffer_store_dwordx4 v[64:67], v15, {R(rWS)}, s{sT1} offen sc1
            s_mov_b64 exec, -1
L_Y_nost:""")
        for r in range(4):
            a(f"v_cvt_pk_bf16_f32 v{83+4*r}, v{vACC+24+r}, v{vACC+28+r}")
            a(f"v_bfi_b32 v{83+4*r}, v9, v{vTO+3}, v{83+4*r}")
            if r: hint(4+r)
            if p.halfo: a("s_mov_b32 exec_lo, 0x00ff00ff\ns_mov_b32 exec_hi, 0x00ff00ff")
            a(f"buffer_store_dwordx4 {V(80+4*r)}, v12, {R(rWS)}, s{sT0} offen sc1")
            if p.halfo: a("s_mov_b64 exec, -1")
            if r < 3: a(f"s_add_u32 s{sT0}, s{sT0}, {1024 if p.oplay else 4*p.opstr}")
        hint(3)
        stamp(7); cyc(11)
        if p.diag == 6: a(f"s_waitcnt vmcnt(0)\ns_memrealtime s[{sStamp+8}:{sStamp+9}]")
    if p.vglob: a("v_xor_b32 v13, 0x100, v14")
    if p.uv3:
        a(f"s_cmp_lt_u32 s{sWave}, 4\ns_cbranch_scc1 L_Y_nouv3")
        uvdma(sQ, 8 - p.uv3, 8)
        a.label("L_Y_nouv3")
    if p.prio: a("s_setprio 0")
    def latesetup():
        a(f"""v_bfe_u32 v9, v{vL}, 2, 2
    v_lshl_add_u32 v134, {'v9, 4, v%d' % vG if p.uvlin else 'v%d, 3, v9' % vG}
    v_lshlrev_b32 v134, 8, v134
    v_and_b32 v11, 1, v{vG}
    v_lshl_add_u32 v9, v11, 2, v9
    v_lshlrev_b32 v9, 1, v9
    v_bfe_u32 v11, v{vL}, 1, 1
    s_lshl_b32 s{sT0}, s{sWave}, 1
    v_add_u32 v11, s{sT0}, v11
    v_xor_b32 v9, v9, v11
    v_lshl_add_u32 v134, v9, 4, v134
    v_and_b32 v9, 1, v{vL}
    v_lshl_add_u32 v134, v9, 3, v134
    v_add_u32 v134, {L_WUVY}, v134""")
        a(f"v_bfe_u32 v9, v{vL}, 3, 1\nv_and_b32 v11, 7, v{vL}")
        a(f"v_and_b32 v122, 1, v{vG}\nv_mul_u32_u24 v122, 0xff, v122")
        lsbtags(124, "v122")
        if p.wrow:
            a(f"""v_and_b32 v123, 1, v{vG}
        v_lshlrev_b32 v122, 4, v{vJ}
        v_lshl_add_u32 v122, v123, 3, v122
        s_mul_i32 s{sQ+7}, s{sWave}, 272
        s_add_u32 s{sQ+7}, s{sQ+7}, {L_AIMGY}
        v_add_u32 v122, s{sQ+7}, v122
        s_lshl_b32 s{sQ+7}, s{sT3}, 5
        s_lshl_b32 s{sQ+8}, s{sT2}, 2
        s_add_u32 s{sQ+7}, s{sQ+7}, s{sQ+8}
        s_add_u32 s{sQ+7}, s{sQ+7}, {L_VSTY}
        v_mov_b32 v128, s{sQ+7}
        v_lshlrev_b32 v129, 5, v123
        v_add_u32 v129, {L_VSTY}, v129""")
        else:
            a(f"""v_mul_u32_u24 v122, {4*272}, v9
    v_lshl_add_u32 v122, v11, 4, v122
    v_and_b32 v123, 1, v{vG}
    v_lshl_add_u32 v122, v123, 3, v122
    s_mul_i32 s{sQ+7}, s{sT2}, 272
    s_lshl_b32 s{sQ+8}, s{sT3}, 7
    s_add_u32 s{sQ+7}, s{sQ+7}, s{sQ+8}
    s_add_u32 s{sQ+7}, s{sQ+7}, {L_AIMGY}
    v_add_u32 v122, s{sQ+7}, v122""")
            a(f"""v_lshlrev_b32 v128, 5, v9
    s_lshl_b32 s{sQ+7}, s{sT2}, 2
    s_add_u32 s{sQ+7}, s{sQ+7}, {L_VSTY}
    v_add_u32 v128, s{sQ+7}, v128
    v_lshlrev_b32 v129, 5, v123
    v_add_u32 v129, {L_VSTY}, v129""")
        a(f"""v_mul_u32_u24 v130, 272, v11
    v_lshl_add_u32 v130, v{vG}, 4, v130
    v_add_u32 v130, {L_AIMGY}, v130""")
        a(f"""v_lshlrev_b32 v131, 5, v{vG}
    v_lshl_add_u32 v131, v11, 2, v131
    v_lshl_add_u32 v131, v9, 6, v131
    s_lshr_b32 s{sQ+7}, s{sWave}, 1
    s_lshl_b32 s{sQ+7}, s{sQ+7}, 10
    s_and_b32 s{sQ+8}, s{sWave}, 1
    s_lshl_b32 s{sQ+8}, s{sQ+8}, 7
    s_add_u32 s{sQ+7}, s{sQ+7}, s{sQ+8}
    v_add_u32 v131, s{sQ+7}, v131
    v_and_b32 v132, 3, v{vL}
    v_mul_u32_u24 v132, 37, v132
    v_add_u32 v132, s{sT[0]}, v132""")
        a("v_mov_b32 v133, 1")
    if p.early == 1: latesetup()
    if p.cfine:
        a(f"""s_lshr_b32 s{sQ}, s{sH}, 4
        s_lshl_b32 s{sQ}, s{sQ}, 2
        s_add_u32 s{sQ}, s{sQ}, s{sI}
        s_lshl_b32 s{sQ}, s{sQ}, 1
        s_and_b32 vcc_lo, s{sH}, 1
        s_add_u32 s{sQ}, s{sQ}, vcc_lo
        s_lshl_b32 s{sQ}, s{sQ}, 3
        s_add_u32 s{sQ}, s{sQ}, s{sWave}
        s_mul_i32 s{sQ}, s{sQ}, {p.cstr}
        s_add_u32 s{sQ}, s{sQ}, {FP2}
        s_mov_b32 s{sQ+6}, s{sT[0]}
        s_mov_b32 s{sQ+7}, s{sT[0]}
        s_mov_b32 s{sCnt}, 0
        s_mov_b32 s{sQ+8}, 15
L_cf:
        s_load_dwordx16 s[4:19], s[{rWS}:{rWS+1}], s{sQ} glc
        s_add_u32 s{sCnt}, s{sCnt}, 1
        s_cmp_ge_u32 s{sCnt}, {p.maxspin}
        s_cbranch_scc1 L_cfd
        s_waitcnt lgkmcnt(0)""")
        for u in range(4):
            a(f"""s_bitcmp0_b32 s{sQ+8}, {u}
            s_cbranch_scc1 L_cf{u}
            s_cmp_lg_u64 s[{4+4*u}:{5+4*u}], s[{sQ+6}:{sQ+7}]
            s_cbranch_scc1 L_cf{u}
            s_cmp_lg_u64 s[{6+4*u}:{7+4*u}], s[{sQ+6}:{sQ+7}]
            s_cbranch_scc1 L_cf{u}
            buffer_load_dwordx4 {V(56+4*u)}, v47, {R(rWS)}, s{sQ+5} offen offset:{1024*u} sc1
            s_bitset0_b32 s{sQ+8}, {u}
L_cf{u}:""")
        a(f"s_cmp_lg_u32 s{sQ+8}, 0\ns_cbranch_scc1 L_cf\nL_cfd:\ns_waitcnt lgkmcnt(0)")
    elif p.cflag:
        a(f"""s_and_b32 s{sQ}, s2, {p.crep-1}
        s_lshl_b32 s{sQ}, s{sQ}, 3
        s_add_u32 s{sQ}, s{sQ}, s{sT2 if p.cprog else sWave}
        s_mul_i32 s{sQ}, s{sQ}, {p.cstr}
        s_add_u32 s{sQ}, s{sQ}, {FP2}
        {f's_pack_ll_b32_b16 s{sQ+6}, s{sT[0]}, s{sT[0]}' if p.cprog else f's_mov_b32 s{sQ+6}, s{sT[0]}'}
        s_mov_b32 s{sCnt}, 0""")
        if p.early == 2:
            a(f"s_load_dwordx16 s[4:19], s[{rWS}:{rWS+1}], s{sQ} glc")
            latesetup()
            a(f"s_mov_b32 s{sQ+7}, s{sQ+6}\ns_branch L_cf2")
        a(f"""s_mov_b32 s{sQ+7}, s{sQ+6}
L_cf:
        s_load_dwordx16 s[4:19], s[{rWS}:{rWS+1}], s{sQ} glc
L_cf2:
        s_add_u32 s{sCnt}, s{sCnt}, 1
        s_cmp_ge_u32 s{sCnt}, {p.maxspin}
        s_cbranch_scc1 L_cfd
        s_waitcnt lgkmcnt(0)""")
        for k in range(8): a(f"s_cmp_lg_u64 s[{4+2*k}:{5+2*k}], s[{sQ+6}:{sQ+7}]\ns_cbranch_scc1 L_cf")
        a("L_cfd:\ns_waitcnt lgkmcnt(0)")
    else:
        a(f"""s_cmp_lg_u32 s{sWave}, 0
    s_cbranch_scc1 L_Y_v
    s_bfe_u32 s{sT0}, s2, 0x10004
    s_lshl_b32 s{sT0}, s{sT0}, 7
    s_add_u32 s{sT0}, s{sT0}, {HC}""")
        for k in range(p.nsamp):
            a(f"s_add_u32 s{4+k}, s2, {37*k}\ns_and_b32 s{4+k}, s{4+k}, 127\ns_lshl_b32 s{4+k}, s{4+k}, 8\ns_add_u32 s{4+k}, s{4+k}, s{sT0}")
        if p.need: spoll_cnt([4+k for k in range(p.nsamp)], 12, p.need)
        else: spoll_all([4+k for k in range(p.nsamp)], 12)
    a.label("L_Y_v")
    if p.uv3: a("s_barrier")
    elif not (p.cprog or p.wrow in (1, 3)): a(f"s_cmp_lt_u32 s{sWave}, 4\ns_cbranch_scc1 L_Y_nw\ns_waitcnt vmcnt(0)\nL_Y_nw:\ns_barrier" if p.solo else f"s_waitcnt vmcnt({0 if p.odrain else 4})\ns_barrier")
    vBV = 20
    stamp(1)
    if p.wogate and p.wgpos == 1:
        a(f"""s_cmp_eq_u32 s{sWave}, 1
        s_cselect_b32 exec_lo, 0xf, 0
        s_mov_b32 exec_hi, 0
        buffer_store_dwordx4 v[252:255], v{vL16}, {R(rWS)}, s{sQ+9} offen offset:64 sc1
        s_mov_b64 exec, -1""")
    vOD = 56
    def cloads():
        a(f"buffer_load_dwordx4 v[52:55], v14, {R(rWS)}, s{sQ+4} offen sc1")
        for u in range(4):
            if p.oplay: a(f"s_add_u32 s{sQ+1}, s{sQ+5}, {4*u*p.opstr}\nbuffer_load_dwordx4 {V(vOD+4*u)}, v47, {R(rWS)}, s{sQ+1} offen sc1")
            else: a(f"buffer_load_dwordx4 {V(vOD+4*u)}, v47, {R(rWS)}, s{sQ+5} offen offset:{1024*(u if not p.halfo else u&1)} sc1")
    if p.cfine: a(f"buffer_load_dwordx4 v[52:55], v14, {R(rWS)}, s{sQ+4} offen sc1")
    elif p.vglob:
        def sloads(): a(f"buffer_load_dwordx4 v[52:55], v14, {R(rWS)}, s{sQ+4} offen sc1\nbuffer_load_dwordx4 v[92:95], v13, {R(rWS)}, s{sQ+4} offen sc1")
        def dloads():
            for u in range(4):
                a(f"buffer_load_dwordx4 {V(vOD+4*u)}, v47, {R(rWS)}, s{sQ+5} offen offset:{1024*u} sc1")
                if p.v4: a(f"buffer_load_dwordx4 {V(96+4*u)}, v47, {R(rWS)}, s{sQ+5} offen offset:{1024*u+128} sc1")
        if p.v4:
            a(f"s_cmp_ge_u32 s{sWave}, 4\ns_cbranch_scc1 L_Y_nl")
            sloads(); dloads()
            a.label("L_Y_nl")
        else:
            sloads()
            if p.vbar: a("s_barrier")
            dloads()
    else: cloads()
    if not p.early: latesetup()
    if p.cprog or p.wrow == 1: a(f"s_waitcnt vmcnt(9)\ns_barrier")
    def uvfr(ks):
        for hf in range(2):
            a(f"ds_read_b64_tr_b16 {V(vBV+4*ks+2*hf, 2)}, v134 offset:{(4*ks+64*hf)*256 if p.uvlin else (32*ks+4*hf)*256}")
    late_uv = p.uv3 or p.wrow == 3
    if not late_uv:
        for ks in range(4): uvfr(ks)
    if p.diag == 3:
        a(f"s_waitcnt vmcnt(4)\ns_memrealtime s[{sStamp+2}:{sStamp+3}]\ns_waitcnt vmcnt(0)\ns_memrealtime s[{sStamp+4}:{sStamp+5}]")
    if p.cfine: a("s_waitcnt vmcnt(0)")
    if p.vglob:
        Lc = a.newlabel('schk'); L = a.newlabel('poll')
        if p.v4: a(f"s_cmp_ge_u32 s{sWave}, 4\ns_cbranch_scc1 L_Y_b4")
        a(f"s_mov_b32 s{sCnt}, 0\ns_waitcnt vmcnt({8 if p.v4 else 4})\ns_branch {Lc}")
        a.label(L)
        sloads()
        a("s_waitcnt vmcnt(0)")
        a.label(Lc)
        a(f"v_xor_b32 v49, s{sT[0]}, v54\nv_bitop3_b32 v49, v49, v94, s{sT[0]} bitop3:0xf6\nv_max_f32 v50, v52, v92")
        poll_end(L, 49, '-1')
        for m in ("quad_perm:[1,0,3,2]", "quad_perm:[2,3,0,1]", "row_half_mirror"):
            a(f"v_max_f32_dpp v50, v50, v50 {m} row_mask:0xf bank_mask:0xf")
        allred_groups("v_max_f32", 50, 51)
        a("""v_sub_f32 v52, v52, v50
        v_sub_f32 v92, v92, v50
        v_exp_f32 v52, v52
        v_exp_f32 v92, v92
        v_mul_f32 v51, v52, v53
        v_fmac_f32 v51, v92, v93""")
        for m in ("quad_perm:[1,0,3,2]", "quad_perm:[2,3,0,1]", "row_half_mirror"):
            a(f"v_add_f32_dpp v51, v51, v51 {m} row_mask:0xf bank_mask:0xf")
        allred_groups("v_add_f32", 51, 55)
        a("""v_rcp_f32 v51, v51
        v_mul_f32 v51, v51, v52
        v_cvt_pk_bf16_f32 v51, v51, v51
        v_mov_b32_dpp v51, v51 row_shr:4 row_mask:0xf bank_mask:0xa""")
        for u in range(4): buildA(72+4*u, 51, u)
        Lc = a.newlabel('cchk'); L = a.newlabel('poll')
        a(f"s_mov_b32 s{sCnt}, 0\ns_branch {Lc}")
        a.label(L)
        dloads()
        a("s_mov_b64 exec, -1")
        a.label(Lc)
        for u in range(4):
            a(f"s_waitcnt vmcnt({7-2*u if p.v4 else 3-u})")
            mfma(88, 72+4*u, vOD+4*u, '0' if u == 0 else None)
            chkv(49, vOD+4*u, 124, u == 0)
            if p.v4:
                a(f"s_waitcnt vmcnt({6-2*u})")
                mfma(112, 72+4*u, 96+4*u, '0' if u == 0 else None)
                chkv(49, 96+4*u, 124)
        poll_end_masked(L, 49, '0x10001')
    else:
        Lc = a.newlabel('cchk')
        a(f"s_mov_b32 s{sCnt}, 0\ns_branch {Lc}")
        L = a.newlabel('poll'); a.label(L)
        cloads()
        a.label(Lc)
        a(f"""s_mov_b64 exec, -1
    s_waitcnt vmcnt(4)
    v_max_f32_dpp v50, v52, v52 quad_perm:[1,0,3,2] row_mask:0xf bank_mask:0xf
    v_cmp_ne_u32 vcc, s{sT[0]}, v54
    v_max_f32_dpp v50, v50, v50 quad_perm:[2,3,0,1] row_mask:0xf bank_mask:0xf
    v_cndmask_b32 v49, 0, v133, vcc""")
        allred_groups("v_max_f32", 50, 51)
        a(f"""v_sub_f32 v51, v52, v50
    v_exp_f32 v51, v51
    v_cvt_pk_bf16_f32 v51, v51, v51""")
        for u in range(4):
            buildA(72+4*u, 51, u)
        a(f"""v_and_b32 v51, 0xffff0000, v51
    v_mul_f32 v51, v51, v53
    s_waitcnt vmcnt(3)""")
        mfma(88, 72, vOD, '0')
        a("v_add_f32_dpp v51, v51, v51 quad_perm:[1,0,3,2] row_mask:0xf bank_mask:0xf")
        chkv(49, vOD, 124)
        a("v_add_f32_dpp v51, v51, v51 quad_perm:[2,3,0,1] row_mask:0xf bank_mask:0xf\ns_waitcnt vmcnt(2)")
        mfma(88, 76, vOD+4)
        a("v_mov_b32 v55, v51")
        chkv(49, vOD+4, 124)
        a("v_permlane32_swap_b32 v51, v55\nv_add_f32 v51, v51, v55\ns_waitcnt vmcnt(1)")
        mfma(88, 80, vOD+8)
        a("v_mov_b32 v55, v51")
        chkv(49, vOD+8, 124)
        a("v_permlane16_swap_b32 v51, v55\nv_add_f32 v51, v51, v55\ns_waitcnt vmcnt(0)")
        mfma(88, 84, vOD+12)
        a("ds_write2_b32 v128, v50, v51 offset0:0 offset1:4")
        chkv(49, vOD+12, 124)
        poll_end_masked(L, 49, '0x10001')
    if p.stamp: a(f"s_mov_b32 s{sStamp+24}, s{sCnt}")
    stamp(8)
    if p.wogate and p.wgpos == 2:
        a(f"""s_cmp_eq_u32 s{sWave}, 1
        s_cselect_b32 exec_lo, 0xf, 0
        s_mov_b32 exec_hi, 0
        buffer_store_dwordx4 v[252:255], v{vL16}, {R(rWS)}, s{sQ+9} offen offset:64 sc1
        s_mov_b64 exec, -1""")
    a(f"""v_cvt_pk_bf16_f32 v88, v88, v89
    v_cvt_pk_bf16_f32 v89, v90, v91
    s_mov_b32 exec_lo, {'-1' if p.wrow else '0x00ff00ff'}
    s_mov_b32 exec_hi, {'0' if p.wrow else '0xff00ff00'}
    ds_write_b64 v122, v[88:89]""")
    if p.v4: a("v_cvt_pk_bf16_f32 v112, v112, v113\nv_cvt_pk_bf16_f32 v113, v114, v115\nds_write_b64 v122, v[112:113] offset:128")
    a("""s_mov_b64 exec, -1
L_Y_b4:
    s_waitcnt lgkmcnt(0)
    s_barrier""")
    if p.dex == 2:
        a(f"""s_cmp_eq_u32 s{sWave}, {p.dexw}
        s_cselect_b32 exec_lo, {(1 << p.dexr) - 1}, 0
        s_mov_b32 exec_hi, 0
        buffer_store_dword v252, v46, {R(rWS)}, s{sQ+9} offen offset:1152 sc1
        s_mov_b64 exec, -1""")
    for ks in range(4):
        a(f"ds_read_b128 {V(56+4*ks)}, v130 offset:{64*ks}")
        if late_uv: uvfr(ks)
    if p.vglob:
        for ks in range(4):
            a(f"s_waitcnt lgkmcnt({3-ks})")
            mfma(88, 56+4*ks, vBV+4*ks, '0' if ks == 0 else None)
        a("""v_add_f32 v50, v88, v89
        v_add_f32 v51, v90, v91
        v_add_f32 v50, v50, v51
        v_mov_b32_sdwa v50, v132 dst_sel:BYTE_0 dst_unused:UNUSED_PRESERVE src0_sel:BYTE_0
        s_mov_b32 exec_hi, 0""")
    else:
        a(f"ds_read_b128 v[72:75], v129\nds_read_b128 v[76:79], v129 offset:16")
        for ks in range(4):
            a(f"s_waitcnt lgkmcnt({11-3*ks if late_uv else 5-ks})")
            mfma(88, 56+4*ks, vBV+4*ks, '0' if ks == 0 else None)
        a(f"""s_waitcnt lgkmcnt(0)
    v_max3_f32 v50, v72, v73, v74
    v_max_f32 v50, v50, v75""")
        for r in range(4): a(f"v_sub_f32 v{72+r}, v{72+r}, v50")
        for r in range(4): a(f"v_exp_f32 v{72+r}, v{72+r}")
        a(f"""v_mul_f32 v51, v72, v76
    v_fmac_f32 v51, v73, v77
    v_fmac_f32 v51, v74, v78
    v_fmac_f32 v51, v75, v79
    v_rcp_f32 v51, v51
    v_mul_f32 v50, v72, v88
    v_fmac_f32 v50, v73, v89
    v_fmac_f32 v50, v74, v90
    v_fmac_f32 v50, v75, v91
    v_mul_f32 v50, v50, v51
    v_mov_b32_sdwa v50, v132 dst_sel:BYTE_0 dst_unused:UNUSED_PRESERVE src0_sel:BYTE_0
    s_mov_b32 exec_hi, 0""")
    if p.fast: a(f"buffer_store_dword v50, v131, {R(rWS)}, s{sQ+3} offen")
    a(f"""buffer_store_dword v50, v131, {R(rWS)}, s{sQ+2} offen sc1
    s_mov_b64 exec, -1""")
    if p.dex == 1:
        a(f"""s_cmp_eq_u32 s{sWave}, {p.dexw}
        s_cselect_b32 exec_lo, {(1 << p.dexr) - 1}, 0
        s_mov_b32 exec_hi, 0
        buffer_store_dword v252, v46, {R(rWS)}, s{sQ+9} offen offset:1152 sc1
        s_mov_b64 exec, -1""")
    stamp(2)
    if p.clean & 2: qclean(7)
    a(f"""s_sub_u32 s2, s2, 128
    s_cmp_ge_u32 s2, 72
    s_cbranch_scc1 L_Y_end
    s_cmp_ge_u32 s2, 36
    s_cselect_b32 s{sT2}, 1, 0
    s_mul_i32 s{sT3}, s{sT2}, 36
    s_sub_u32 s{sT3}, s2, s{sT3}
    s_mul_i32 s{sT0}, s{sWave}, {16*4608}
    s_mul_i32 s{sT1}, s{sT2}, 2304
    s_add_u32 s{sT0}, s{sT0}, s{sT1}
    s_lshl_b32 s{sT1}, s{sT3}, 6
    s_add_u32 s{sT0}, s{sT0}, s{sT1}
    s_add_u32 s{sT0}, s{sT0}, {FP}
    v_lshrrev_b32 v9, 2, v{vL}
    v_mul_u32_u24 v10, 4608, v9
    v_and_b32 v11, 3, v{vL}
    v_lshl_add_u32 v10, v11, 4, v10
    v_lshl_add_u32 v13, v{vG}, 2, v11
    v_lshlrev_b32 v13, 5, v13
    s_lshl_b32 s{sT1}, s{sWave}, 2
    s_add_u32 s{sT1}, s{sT1}, {L_REDY}
    v_add_u32 v13, s{sT1}, v13""")
    srd(rB, pB2, SZ['b2']); srd(rC, pOUT, SZ['out'])
    a(f"""v_mov_b32 v15, 0
    s_cmp_lg_u32 s{sWave}, 0
    s_cbranch_scc1 L_Y_rx
    s_lshl_b32 s{sT1}, s{sT3}, 2
    v_add_u32 v14, s{sT1}, v11""")
    decode_v(15, 14, 16)
    a(f"""v_bfe_u32 v14, v{vL}, 2, 2
    v_add_u32 v15, v15, v14
    v_lshlrev_b32 v15, 1, v15
    buffer_load_ushort v16, v15, {R(rB)}, 0 offen
    s_lshl_b32 s{sT1}, s{sT2}, 2
    s_add_u32 s{sT1}, s{sT1}, {L_GATE}
    v_mov_b32 v17, s{sT1}
    ds_read_b32 v17, v17
    v_lshlrev_b32 v18, 5, v{vJ}
    v_add_u32 v18, {L_REDY}, v18
    s_mul_i32 s{sT2}, s{sT2}, 1152
L_Y_rx:""")
    if p.dex:
        a(f"""s_and_b32 s{sQ}, s2, {p.dexr-1}
        s_lshl_b32 s{sQ}, s{sQ}, 3
        s_add_u32 s{sQ}, s{sQ}, s{sWave}
        s_mul_i32 s{sQ}, s{sQ}, {p.cstr}
        s_add_u32 s{sQ}, s{sQ}, {FP2+1152}
        s_mov_b32 s{sQ+6}, s{sT[0]}
        s_mov_b32 s{sQ+7}, s{sT[0]}
        s_mov_b32 s{sCnt}, 0
L_df:
        {f's_sleep {p.dexs}' if p.dexs else ''}
        s_load_dwordx16 s[4:19], s[{rWS}:{rWS+1}], s{sQ} glc
        s_add_u32 s{sCnt}, s{sCnt}, 1
        s_cmp_ge_u32 s{sCnt}, {p.maxspin}
        s_cbranch_scc1 L_dfd
        s_waitcnt lgkmcnt(0)""")
        for k in range(8): a(f"s_cmp_lg_u64 s[{4+2*k}:{5+2*k}], s[{sQ+6}:{sQ+7}]\ns_cbranch_scc1 L_df")
        a("L_dfd:\ns_waitcnt lgkmcnt(0)\ns_barrier")
        stamp(9)
    elif p.dflag >= 3:
        for k in range(p.dsamp):
            a(f"s_add_u32 s{4+k}, s2, {(16//p.dsamp)*k}\ns_and_b32 s{4+k}, s{4+k}, 15\ns_lshl_b32 s{sQ}, s{sWave}, 4\ns_add_u32 s{4+k}, s{4+k}, s{sQ}\ns_lshl_b32 s{4+k}, s{4+k}, 7\ns_add_u32 s{4+k}, s{4+k}, {HD}")
        spoll_all([4+k for k in range(p.dsamp)], 12)
        stamp(9)
    L = poll_begin()
    a(f"""buffer_load_dwordx4 v[20:23], v10, {R(rWS)}, s{sT0} offen sc1
    s_mov_b64 exec, -1
    s_waitcnt vmcnt(0)""")
    chk4(24, 20, True)
    poll_end_masked(L, 24, '0xff')
    stamp(10)
    treduce(20)
    a(f"""v_add_f32_dpp v20, v20, v20 row_ror:4 row_mask:0xf bank_mask:0xf
    v_add_f32_dpp v20, v20, v20 row_ror:8 row_mask:0xf bank_mask:0xf
    ds_write_b32 v13, v20
    s_waitcnt lgkmcnt(0)
    s_barrier
    s_cmp_lg_u32 s{sWave}, 0
    s_cbranch_scc1 L_Y_end
    ds_read_b128 v[20:23], v18
    ds_read_b128 v[24:27], v18 offset:16
    v_lshlrev_b32 v16, 16, v16
    v_sub_f32 v17, 1.0, v17
    v_mul_f32 v16, v16, v17
    s_waitcnt lgkmcnt(0)
    v_add_f32 v20, v20, v24
    v_add_f32 v21, v21, v25
    v_add_f32 v22, v22, v26
    v_add_f32 v23, v23, v27
    v_add_f32 v20, v20, v21
    v_add_f32 v22, v22, v23
    v_add_f32 v20, v20, v16
    v_add_f32 v20, v20, v22
    v_cvt_pk_bf16_f32 v20, v20, v20
    s_mov_b64 exec, 0xffff
    buffer_store_short v20, v15, {R(rC)}, s{sT2} offen {p.outf.replace('_',' ')}
    s_cmp_lg_u32 s2, 0
    s_cbranch_scc1 L_Y_end
    s_mov_b64 exec, 1
    v_mov_b32 v21, s{sT[0]}
    v_mov_b32 v22, 0
    buffer_store_dword v21, v22, {R(rWS)}, 0 offen offset:{EPOCH} sc1""")
    a.label("L_Y_end")
    if p.stamp: a("s_add_u32 s2, s2, 128")
    stamp(11)
    finish('Y')
    a.label("L_exit")
    a("s_endpgm")
    return a.finalize()

HEADER = open('gated_mix__compressed_kv_cla__dense_activation_gelu__decode.s.ref').read().split('; Override')[0]

DOC = '''; ---------------------------------------------------------------------------------------------
; ---------------------------------------------------------------------------------------------
'''

def emit(path, p=P):
    body = build(p)
    s = HEADER + f"""; @launch grid=(256,1,1) block=(512,1,1) lds={LDS_BYTES}
{DOC}.amdgcn_target "amdgcn-amd-amdhsa--gfx950"
.text
.globl {KNAME}
.p2align 8
.type {KNAME},@function
{KNAME}:
{body}.section .rodata,"a"
.p2align 6
.amdhsa_kernel {KNAME}
  .amdhsa_next_free_vgpr 256
  .amdhsa_next_free_sgpr 102
  .amdhsa_accum_offset 256
  .amdhsa_group_segment_fixed_size 0
  .amdhsa_kernarg_size 120
  .amdhsa_user_sgpr_count 2
  .amdhsa_user_sgpr_kernarg_segment_ptr 1
  .amdhsa_system_sgpr_workgroup_id_x 1
.end_amdhsa_kernel
"""
    open(path, 'w').write(s)

if __name__ == '__main__':
    out = sys.argv[1]
    for kv in sys.argv[2:]:
        k, v = kv.split('=')
        setattr(P, k, type(getattr(P, k))(v))
    emit(out)
```

```python
import sys, struct, math
from asmlib import Asm

KNAME = "gated_mix__compressed_kv_cla__dense_activation_gelu__decode_kernel"

def f2u(x): return struct.unpack('<I', struct.pack('<f', x))[0]

class P:
    stamp = 0
    nt = "nt"
    pollA_wait = 2
    maxspin = 200000
    prefetch = 1
    wsoff = 0
    fast = 1
    nlocal = 256
    hintpos = 1
    diag = 0
    xpre = 8
    ypre = 0
    gate = 9
    qat = 3
    bsleep = 0
    tlb = 0
    cstat = 1
    dflag = 3
    drep = 18
    dsamp = 2
    dstr = 2304
    wopre = 1
    won = 9
    xg = -1
    xgn = 2
    gand = 0
    wofirst = 1
    odrain = 0
    warm = 0
    halfo = 0
    outf = ""
    outpre = 0
    wopos = 0
    w2gate = 0
    uv1 = 4
    xord = 3
    wosplit = 20
    emub = 0
    ckvf = "nt"
    fpos = 0
    wogate = 0
    wgpos = 0
    uv2 = 0
    hmix = 0
    qsplit = 0
    bpos = 1
    opstr = 32896
    fdel = 1
    asleep = 0
    fsleep = 0
    uvlin = 0
    nof = 0
    fflag = 0
    cflag = 1
    crep = 16
    cstr = 2304
    cw = 7
    cprog = 0
    oplay = 0
    qpf = 0
    qpfs = 0
    bflag = 0
    uv3 = 0
    xramp = 0
    xrn = 4
    fmid = 4
    floc = 1
    clean = 0
    wrow = 0
    p5h = 0
    cfine = 0
    early = 2
    solo = 0
    f1 = 2
    f2 = 3
    own = 0
    x3 = 12
    stlate = 0
    stbr = 0
    dex = 0
    dexw = 7
    dexr = 16
    dexs = 0
    wb = 0
    qmid = 0
    vglob = 1
    vbar = 1
    kint = 1
    b0pos = 1
    nsamp = 4
    need = 0
    prio = 1
    only = ""
    b0 = 1
    wqdma = 0
    nod1 = 0
    sparseC = 1
    qpre = 2
    enc = -1
    encwave = 4

EPOCH, QP, QL, ST, CX, HP, FP, OP, STAMP = 0, 0x10000, 0x50000, 0x60000, 0x70000, 0x90000, 0x120000, 0x200000, 0x800000
QPL, CXL, HC, HG, HD, HK, FP2 = 0x700000, 0x740000, 0x760000, 0x770000, 0x778000, 0x780000, 0x790000
HPL = 0x610000
WS_REC = 0x1000000
L_CKV, L_QIMG, L_SX, L_HX, L_GATE = 0, 65536, 98304, 106496, 107008
L_WQ = 0x18000 - 20480
L_WUK, L_WUV, L_QV, L_AIMG, L_VST, L_RED = 0, 32768, 65536, 66048, 68352, 68480
L_WUVY = 107520
L_PX = 107520 + 32768
LDS_BYTES = 107520 + 32768
L_AIMGY, L_VSTY, L_REDY = 65536, 67840, 67968
pX, pCKV, pWQ, pWUK, pWUV, pWO, pW1, pB1, pW2, pB2, pGW, pOUT, pWS = 4, 6, 8, 10, 12, 14, 18, 20, 22, 24, 26, 28, 32
sWave, sH, sJ, sI, sXcd, sTag = 3, 34, 35, 56, 57, 58
sT = [58, 59, 60, 61]
rA, rB, rC, rWS = 36, 40, 44, 48
sT0, sT1, sT2, sT3 = 52, 53, 54, 55
sCnt = 62
sQ = 64
sStamp = 76
vL, vJ, vG, vM, vL16 = 1, 2, 3, 4, 8
SZ = dict(x=2304, ckv=8388608, wq=4718592, wuk=4194304, wuv=4194304, wo=4718592, w1=5308416, w2=5308416, b1=9216, b2=1152, gw=1152, out=2304)

def build(p=P):
    a = Asm()
    nt = p.nt
    def srd(r, ptr, size):
        if ptr == pWS and p.wsoff:
            a(f"s_add_u32 s{r}, s{ptr}, {p.wsoff}\ns_addc_u32 s{r+1}, s{ptr+1}, 0\ns_mov_b32 s{r+2}, {size}\ns_mov_b32 s{r+3}, 0x20000")
            return
        a(f"s_mov_b32 s{r}, s{ptr}\ns_mov_b32 s{r+1}, s{ptr+1}\ns_mov_b32 s{r+2}, {size}\ns_mov_b32 s{r+3}, 0x20000")
    def R(r): return f"s[{r}:{r+3}]"
    def V(r, n=4): return f"v[{r}:{r+n-1}]"
    def stamp(k):
        if p.only and k not in [int(x) for x in p.only.split('.')]: return
        if p.stamp: a(f"s_memrealtime s[{sStamp+2*k}:{sStamp+2*k+1}]")
    def cyc(k):
        if p.diag == 5: a(f"s_memtime s[{sStamp+2*k}:{sStamp+2*k+1}]")
    def buildA(dst, x, u):
        for r in range(4):
            a(f"v_and_b32_dpp v{dst+r}, v{x}, v{vM+r} quad_perm:[{u},{u},{u},{u}] row_mask:0xf bank_mask:0xf")
    def mfma(d, A, B, c=None):
        a(f"v_mfma_f32_16x16x32_bf16 {V(d)}, {V(A)}, {V(B)}, {V(d) if c is None else c}")
    def tag4(d):
        for k in range(4):
            a(f"v_mov_b32_sdwa v{d+k}, s{sT[k]} dst_sel:BYTE_0 dst_unused:UNUSED_PRESERVE src0_sel:BYTE_0")
    def chk4(acc, d, first=False):
        for k in range(4):
            if first and k == 0: a(f"v_xor_b32 v{acc}, s{sT[0]}, v{d}")
            else: a(f"v_bitop3_b32 v{acc}, v{acc}, v{d+k}, s{sT[k]} bitop3:0xf6")
    def chkv(acc, d, t, first=False):
        for k in range(4):
            if first and k == 0: a(f"v_xor_b32 v{acc}, v{t}, v{d}")
            else: a(f"v_bitop3_b32 v{acc}, v{acc}, v{d+k}, v{t+k} bitop3:0xf6")
    def poll_begin():
        L = a.newlabel('poll')
        a(f"s_mov_b32 s{sCnt}, 0")
        a.label(L)
        return L
    def poll_end(L, acc, mask, fb=None, lim=None, sleep=0):
        D = a.newlabel('done')
        a(f"v_and_b32 v{acc}, {mask}, v{acc}\nv_cmp_ne_u32 vcc, 0, v{acc}\ns_add_u32 s{sCnt}, s{sCnt}, 1")
        a(f"s_cbranch_vccz {D}")
        if sleep: a(f"s_sleep {sleep}")
        if fb and p.fast:
            regs, delta = fb
            a(f"s_cmp_eq_u32 s{sCnt}, {p.nlocal}\ns_cselect_b32 vcc_lo, {delta}, 0")
            for r in regs: a(f"s_sub_u32 s{r}, s{r}, vcc_lo")
        a(f"s_cmp_lt_u32 s{sCnt}, {lim or p.maxspin}\ns_cbranch_scc1 {L}")
        a.label(D)
    def poll_end_masked(L, acc, mask, sleep=0):
        D = a.newlabel('done')
        a(f"""v_and_b32 v{acc}, {mask}, v{acc}
        v_cmp_ne_u32 vcc, 0, v{acc}
        s_add_u32 s{sCnt}, s{sCnt}, 1
        s_cbranch_vccz {D}
        s_wqm_b64 exec, vcc""")
        if sleep: a(f"s_sleep {sleep}")
        a(f"""s_cmp_lt_u32 s{sCnt}, {p.maxspin}
        s_cbranch_scc1 {L}
        s_mov_b64 exec, -1""")
        a.label(D)
    def spoll_cnt(off_regs, tmp, need):
        L = a.newlabel('sp'); D = a.newlabel('spd')
        a(f"s_mov_b32 s{sCnt}, 0")
        a.label(L)
        for k, r in enumerate(off_regs): a(f"s_load_dword s{tmp+k}, s[{rWS}:{rWS+1}], s{r} glc")
        a(f"s_add_u32 s{sCnt}, s{sCnt}, 1\ns_cmp_ge_u32 s{sCnt}, {p.maxspin}\ns_cbranch_scc1 {D}\ns_mov_b32 vcc_lo, 0\ns_waitcnt lgkmcnt(0)")
        for k, r in enumerate(off_regs): a(f"s_cmp_eq_u32 s{tmp+k}, s{sT[0]}\ns_addc_u32 vcc_lo, vcc_lo, 0")
        a(f"s_cmp_lt_u32 vcc_lo, {need}\ns_cbranch_scc1 {L}")
        a.label(D)
        a("s_waitcnt lgkmcnt(0)")
    def spoll_all(off_regs, tmp):
        L = a.newlabel('sp'); D = a.newlabel('spd')
        a(f"s_mov_b32 s{sCnt}, 0")
        a.label(L)
        for k, r in enumerate(off_regs): a(f"s_load_dword s{tmp+k}, s[{rWS}:{rWS+1}], s{r} glc")
        a(f"s_add_u32 s{sCnt}, s{sCnt}, 1\ns_cmp_ge_u32 s{sCnt}, {p.maxspin}\ns_cbranch_scc1 {D}\ns_waitcnt lgkmcnt(0)")
        for k, r in enumerate(off_regs): a(f"s_cmp_lg_u32 s{tmp+k}, s{sT[0]}\ns_cbranch_scc1 {L}")
        a.label(D)
        a("s_waitcnt lgkmcnt(0)")
    def spoll(off_regs):
        L = a.newlabel('sp'); D = a.newlabel('spd')
        a(f"s_mov_b32 s{sCnt}, 0")
        a.label(L)
        for k, r in enumerate(off_regs): a(f"s_load_dword s{sT0+k}, s[{rWS}:{rWS+1}], s{r} glc")
        a(f"s_add_u32 s{sCnt}, s{sCnt}, 1\ns_waitcnt lgkmcnt(0)")
        for k, r in enumerate(off_regs): a(f"s_cmp_eq_u32 s{sT0+k}, s{sT[0]}\ns_cbranch_scc1 {D}")
        a(f"s_cmp_lt_u32 s{sCnt}, {p.maxspin}\ns_cbranch_scc1 {L}")
        a.label(D)
    def treduce(r):
        a(f"v_permlane32_swap_b32 v{r}, v{r+2}\nv_permlane32_swap_b32 v{r+1}, v{r+3}")
        a(f"v_add_f32 v{r}, v{r}, v{r+2}\nv_add_f32 v{r+1}, v{r+1}, v{r+3}")
        a(f"v_permlane16_swap_b32 v{r}, v{r+1}\nv_add_f32 v{r}, v{r}, v{r+1}")
    def allred_groups(op, r, t):
        a(f"v_mov_b32 v{t}, v{r}\nv_permlane32_swap_b32 v{r}, v{t}\n{op} v{r}, v{r}, v{t}")
        a(f"v_mov_b32 v{t}, v{r}\nv_permlane16_swap_b32 v{r}, v{t}\n{op} v{r}, v{r}, v{t}")
    def masks():
        a(f"""v_and_b32 v9, 3, v{vL}
        v_lshlrev_b32 v9, 4, v9
        v_mov_b32 v10, 0xffff
        v_mov_b32 v11, 0
        v_lshlrev_b64 v[10:11], v9, v[10:11]
        v_and_b32 v9, 4, v{vL}
        v_cmp_eq_u32 vcc, 0, v9
        v_cndmask_b32 v{vM}, 0, v10, vcc
        v_cndmask_b32 v{vM+1}, 0, v11, vcc
        v_cndmask_b32 v{vM+2}, v10, 0, vcc
        v_cndmask_b32 v{vM+3}, v11, 0, vcc""".replace('v_cndmask_b32 v%d, v10, 0, vcc' % (vM+2), 'v_cndmask_b32_e64 v%d, v10, 0, vcc' % (vM+2)).replace('v_cndmask_b32 v%d, v11, 0, vcc' % (vM+3), 'v_cndmask_b32_e64 v%d, v11, 0, vcc' % (vM+3)))
    def xoff(dst):
        a(f"""v_bfe_u32 v{dst}, v{vL}, 3, 1
        v_mul_u32_u24 v{dst}, 1152, v{dst}
        v_and_b32 v9, 3, v{vL}
        v_lshl_add_u32 v{dst}, v9, 3, v{dst}
        v_lshl_add_u32 v{dst}, v{vG}, 1, v{dst}""")
    def epoch_wait():
        a(f"""s_waitcnt lgkmcnt(0)
        s_add_u32 s{sT[0]}, s{sT[0]}, 1
        s_addc_u32 s{sT[0]}, s{sT[0]}, 0
        s_add_u32 s{sT[1]}, s{sT[0]}, 37
        s_add_u32 s{sT[2]}, s{sT[0]}, 74
        s_add_u32 s{sT[3]}, s{sT[0]}, 111""")
    def lsbtags(t, flip=None):
        a(f"""v_and_b32 v{t}, 7, v{vL}
        v_mul_u32_u24 v{t}, 37, v{t}
        v_add_u32 v{t}, s{sT[0]}, v{t}""")
        if flip: a(f"v_xor_b32 v{t}, {flip}, v{t}")
        a(f"""v_and_b32 v{t}, 0xff, v{t}
        v_lshl_or_b32 v{t}, v{t}, 15, v{t}
        v_lshrrev_b32 v{t+1}, 2, v{t}
        v_lshrrev_b32 v{t+2}, 4, v{t}
        v_lshrrev_b32 v{t+3}, 6, v{t}""")
    def decode_v(dst, src, t):
        a(f"""v_lshrrev_b32 v{dst}, 5, v{src}
        v_lshlrev_b32 v{dst}, 7, v{dst}
        v_and_b32 v{t}, 15, v{src}
        v_lshl_add_u32 v{dst}, v{t}, 3, v{dst}
        v_bfe_u32 v{t}, v{src}, 4, 1
        v_lshl_add_u32 v{dst}, v{t}, 2, v{dst}
        v_and_b32 v{t}, 7, v{src}
        v_lshlrev_b32 v{t}, 3, v{t}
        v_bfe_u32 v{t+1}, v{src}, 3, 1
        v_lshl_add_u32 v{t}, v{t+1}, 2, v{t}
        v_add_u32 v{t}, 512, v{t}
        v_cmp_gt_u32 vcc, 128, v{src}
        v_cndmask_b32 v{dst}, v{t}, v{dst}, vcc""")
    def finish(nst):
        if p.stamp == 5:
            a("s_endpgm"); return
        if p.stamp == 3:
            Ls = a.newlabel('noenc'); Lw = a.newlabel('encw')
            a(f"""s_waitcnt lgkmcnt(0)
            s_lshl_b32 s{sT0}, s2, 3
            s_add_u32 s{sT0}, s{sT0}, s{sWave}
            s_cmp_eq_u32 s{sT0}, {p.encwave}
            s_cbranch_scc0 {Ls}
{Lw}:
            s_memrealtime s[{sT0}:{sT1}]
            s_waitcnt lgkmcnt(0)
            s_sub_u32 s{sT0}, s{sT0}, s{sStamp+2*p.enc}
            s_cmp_lt_u32 s{sT0}, 3000
            s_cbranch_scc1 {Lw}
{Ls}:
            s_endpgm""")
            return
        if p.stamp:
            a(f"""s_waitcnt lgkmcnt(0)
            s_lshl_b32 s{sT0}, s2, 3
            s_add_u32 s{sT0}, s{sT0}, s{sWave}
            s_lshl_b32 s{sT0}, s{sT0}, 6
            s_add_u32 s{sT0}, s{sT0}, {STAMP}
            s_mov_b64 exec, 1
            v_mov_b32 v9, 0""")
            for k in range(13):
                a(f"v_mov_b32 v{10+k}, s{sStamp+2*k}\nbuffer_store_dword v{10+k}, v9, {R(rWS)}, s{sT0} offen offset:{4*k}")
        if p.stamp == 2:
            Ls = a.newlabel('nosum')
            a(f"""s_lshl_b32 s{sT0}, s2, 3
            s_add_u32 s{sT0}, s{sT0}, s{sWave}
            s_cmp_eq_u32 s{sT0}, {4 if nst == 'X' else 1024}
            s_cbranch_scc0 {Ls}""")
            srd(rB, 30, 256)
            for n, k in enumerate((1,2,3,4,7,8,9,10) if nst == 'X' else (1,2,3,4,7,8,10,11)):
                a(f"s_sub_u32 s{sT1}, s{sStamp+2*k}, s{sStamp}\nv_mov_b32 v{30+n}, s{sT1}\nbuffer_store_dword v{30+n}, v9, {R(rB)}, 0 offen offset:{4*n + (0 if nst == 'X' else 32)}")
            a.label(Ls)
        a("s_endpgm")

    def slot_store(d, base_s, wave_is_half, toff, local=None):
        tag4(d)
        if wave_is_half: a("s_mov_b32 exec_lo, 0x00ff00ff\ns_mov_b32 exec_hi, 0x00ff00ff")
        if local: a(f"s_add_u32 vcc_lo, s{base_s}, {local}\nbuffer_store_dwordx4 {V(d)}, v{toff}, {R(rWS)}, vcc_lo offen")
        a(f"buffer_store_dwordx4 {V(d)}, v{toff}, {R(rWS)}, s{base_s} offen sc1")
        if wave_is_half: a("s_mov_b64 exec, -1")
    def slot_voff(dst, half):
        a(f"""v_lshrrev_b32 v{dst}, 1, v{vG}
        v_mul_u32_u24 v{dst}, 2304, v{dst}
        v_lshl_add_u32 v{dst}, v{vJ}, 4, v{dst}
        v_and_b32 v9, 1, v{vG}""")
        if half:
            a(f"v_lshl_add_u32 v{dst}, v9, 7, v{dst}\nv_add_u32 v{dst}, 2048, v{dst}")
        else:
            a(f"v_lshl_add_u32 v{dst}, v9, 8, v{dst}\ns_lshl_b32 s{sT0}, s{sWave}, 9\nv_add_u32 v{dst}, s{sT0}, v{dst}")

    def zstamps():
        if p.stamp:
            for k in range(1, 13): a(f"s_mov_b32 s{sStamp+2*k}, 0")
    vXP, vAP, vWP, vDP = 12, 20, 100, 180
    assert p.wsoff == 0
    stamp(0)
    a(f"""s_load_dwordx8 s[36:43], s[0:1], 0
    s_load_dwordx2 s[{rWS}:{rWS+1}], s[0:1], 112
    v_readfirstlane_b32 s{sWave}, v0
    v_and_b32 v{vJ}, 15, v0
    s_lshr_b32 s{sJ}, s2, 5
    s_and_b32 s{sH}, s2, 31""")
    if p.hmix == 1: a(f"s_lshr_b32 s{sT0}, s{sH}, 3\ns_xor_b32 s{sH}, s{sH}, s{sT0}")
    if p.hmix == 2: a(f"s_lshr_b32 s{sT0}, s{sH}, 2\ns_and_b32 s{sT0}, s{sT0}, 6\ns_xor_b32 s{sH}, s{sH}, s{sT0}")
    if p.hmix == 3: a(f"s_lshr_b32 s{sT0}, s{sH}, 3\ns_mul_i32 s{sT0}, s{sT0}, 5\ns_and_b32 s{sT0}, s{sT0}, 7\ns_xor_b32 s{sH}, s{sH}, s{sT0}")
    a(f"""s_mov_b32 s{rWS+3}, 0x20000
    s_lshr_b32 s{sT0}, s2, 8
    s_or_b32 s{sT0}, s{sT0}, s{sWave}
    s_cbranch_scc1 L_rest""")
    a(f"""v_lshrrev_b32 v{vG}, 4, v0
    v_lshlrev_b32 v9, 15, v{vG}
    v_lshl_add_u32 v9, v{vJ}, 4, v9
    v_add_u32 v10, {8192-1024}, v9
    v_add_u32 v11, {2*(8192-1024)}, v9
    v_add_u32 v12, {3*(8192-1024)}, v9
    s_mul_i32 s{sT0}, s{sJ}, {72*32}
    s_add_u32 s{sT0}, s{sT0}, s{sH}
    s_lshl_b32 s{sT0}, s{sT0}, 8
    s_mov_b32 m0, {L_WQ}
    v_lshrrev_b32 v13, 3, v{vJ}
    v_mul_u32_u24 v13, 144, v13
    v_and_b32 v14, 3, v0
    v_lshl_add_u32 v14, v14, 2, v{vG}
    v_add_lshl_u32 v13, v13, v14, 3
    s_mul_i32 s{sT1}, s{sJ}, 144
    s_waitcnt lgkmcnt(0)
    s_movk_i32 s{rA+2}, {SZ['x']}
    s_mov_b32 s{rA+3}, s{rWS+3}
    s_add_u32 s{rB+2}, s{sT0}, {71*8192+256}
    s_mov_b32 s{rB+3}, s{rWS+3}""")
    if p.diag == 2: a(f"s_memrealtime s[{sQ+6}:{sQ+7}]")
    a(f"""buffer_load_dwordx2 v[186:187], v13, {R(rA)}, s{sT1} offen
    buffer_load_dwordx2 v[188:189], v13, {R(rA)}, s{sT1} offen offset:128
L_wq:
    buffer_load_dwordx4 v9, {R(rB)}, s{sT0} offen {nt} lds
    buffer_load_dwordx4 v10, {R(rB)}, s{sT0} offen offset:1024 {nt} lds
    buffer_load_dwordx4 v11, {R(rB)}, s{sT0} offen offset:2048 {nt} lds
    buffer_load_dwordx4 v12, {R(rB)}, s{sT0} offen offset:3072 {nt} lds
    s_addk_i32 m0, 4096
    s_add_u32 s{sT0}, s{sT0}, s{rWS+3}
    s_bitcmp0_b32 m0, 15
    s_cbranch_scc1 L_wq""")
    if p.diag == 2: a(f"s_memrealtime s[{sQ+8}:{sQ+9}]")
    if p.b0pos == 0: a("s_barrier")
    a.label("L_rest")
    a(f"""s_cmp_ge_u32 s{sJ}, 8
    s_cbranch_scc1 L_exit
    s_lshr_b32 s{sWave}, s{sWave}, 6
    v_and_b32 v{vL}, 63, v0
    v_bfe_u32 v{vG}, v0, 4, 2
    v_lshlrev_b32 v{vL16}, 4, v{vL}""")
    if p.prefetch:
        a(f"""s_getpc_b64 s[{sQ}:{sQ+1}]
L_pc:
        s_lshr_b32 s{sQ+2}, s2, 3
        s_lshl_b32 s{sQ+2}, s{sQ+2}, 9
        s_min_u32 s{sQ+2}, s{sQ+2}, L_exit-L_pc-512
        v_add_u32 v249, s{sQ+2}, v{vL16}
        s_cmp_eq_u32 s{sWave}, 2
        s_cbranch_scc0 L_nopf
        s_mov_b64 exec, 0x01010101
        global_load_dword v250, v249, s[{sQ}:{sQ+1}]
        s_mov_b64 exec, -1
L_nopf:""")
    a(f"""s_mov_b32 s{rWS+2}, {WS_REC}
    s_lshl_b32 s{sT0}, s{sH}, 3
    s_add_u32 s{sT0}, s{sT0}, s{sJ}
    s_lshl_b32 s{sT0}, s{sT0}, 10
    s_add_u32 s{sT1}, s{sT0}, {QPL}
    s_and_b32 s{sT2}, s{sWave}, 3
    s_mov_b32 s{rC+3}, s{rWS+3}
    s_cmp_eq_u32 s{sWave}, 3
    s_cselect_b32 exec_lo, 0x01010101, 0
    s_cselect_b32 exec_hi, 0x01010101, 0
    s_waitcnt lgkmcnt(0)""")
    if p.fast: a(f"buffer_load_dword v250, v{vL16}, {R(rWS)}, s{sT1} offen sc1")
    a(f"""s_mov_b64 exec, -1
    s_load_dwordx16 s[4:19], s[0:1], 0
    s_load_dwordx8 s[20:27], s[0:1], 64
    s_load_dwordx4 s[28:31], s[0:1], 96
    s_and_b32 s{sXcd}, s2, 7
    s_bfe_u32 s{sI}, s2, 0x40003
    s_cmp_lt_u32 s{sWave}, 4
    s_cbranch_scc1 L_w03
    s_load_dword s{sT[0]}, s[{rWS}:{rWS+1}], {EPOCH}
    s_cmp_ge_u32 s2, 128
    s_cbranch_scc1 L_Ydma""")
    a(f"""s_lshl_b32 s{sQ}, s{sJ}, 2
    s_add_u32 s{sQ}, s{sQ}, s{sT2}
    s_lshl_b32 s{sQ}, s{sQ}, 10
    s_add_u32 s{sQ}, s{sQ}, s{sH}
    s_lshl_b32 s{sQ}, s{sQ}, 8
    s_lshl_b32 m0, s{sT2}, 13
    v_xor_b32 v19, v{vJ}, v{vG}
    v_lshlrev_b32 v19, 4, v19
    v_lshl_add_u32 v20, v{vG}, 13, v19
    v_xor_b32 v21, 64, v20
    v_xor_b32 v22, 0x80, v20
    v_xor_b32 v23, 0xc0, v20
    v_add_u32 v21, {32768-1024}, v21
    v_add_u32 v22, {2*(32768-1024)}, v22
    v_add_u32 v23, {3*(32768-1024)}, v23
    s_mov_b64 s[{rC}:{rC+1}], s[42:43]
    s_mov_b32 s{rC+2}, {SZ['wuk']}""")
    if p.diag == 2: a(f"s_memrealtime s[{sQ+6}:{sQ+7}]")
    def wuk(n):
        if n == 4: a(f"s_addk_i32 m0, 4096\ns_add_u32 s{sQ}, s{sQ}, {4*32768}")
        a(f"buffer_load_dwordx4 v{20+n%4}, {R(rC)}, s{sQ} offen offset:{1024*(n%4)} {nt} lds")
    if p.xg >= 0:
        epoch_wait()
        a(f"""s_lshl_b32 s{sT3}, s2, 7
        s_add_u32 s{sT3}, s{sT3}, {HK}
        v_mov_b32 v14, s{sT[0]}
        v_lshlrev_b32 v15, 2, v{vL}""")
    a("s_barrier")
    for n in range(p.xpre+1):
        if n == p.xg:
            a(f"""s_cmp_eq_u32 s{sWave}, 4
            s_cselect_b32 exec_lo, 0xffff, 0
            s_mov_b32 exec_hi, 0
            buffer_store_dword v14, v15, {R(rWS)}, s{sT3} offen sc1
            s_mov_b64 exec, -1""")
        if n < p.xpre: wuk(n)
    if p.diag == 2: a(f"s_memrealtime s[{sQ+8}:{sQ+9}]")
    a("s_branch L_X_w47")
    a.label("L_w03")
    a(f"""s_load_dword s{sT[0]}, s[{rWS}:{rWS+1}], {EPOCH}
    s_cmp_eq_u32 s{sWave}, 0
    s_cbranch_scc1 L_p1c
    s_cmp_ge_u32 s2, 128
    s_cbranch_scc1 L_w13
    s_cmp_lg_u32 s{sWave}, 2
    s_cbranch_scc1 L_xb0""")
    if p.warm:
        a(f"""v_mov_b32 v24, 0
        v_mov_b32 v25, 0
        v_mov_b32 v26, 0
        v_mov_b32 v27, 0
        s_mov_b32 exec_hi, 0
        s_lshl_b32 s{sT0}, s{sH}, 2
        s_add_u32 s{sT0}, s{sT0}, s{sJ}
        s_lshl_b32 s{sT1}, s{sT0}, 9
        s_add_u32 s{sT1}, s{sT1}, {ST}
        buffer_store_dwordx4 v[24:27], v{vL16}, {R(rWS)}, s{sT1} offen sc1""")
        if p.warm & 2:
            a(f"""s_lshl_b32 s{sT1}, s{sT0}, 8
            s_add_u32 s{sT1}, s{sT1}, {QL}
            v_lshlrev_b32 v28, 15, v{vG}
            v_lshl_add_u32 v28, v{vJ}, 4, v28
            buffer_store_dwordx4 v[24:27], v28, {R(rWS)}, s{sT1} offen sc1""")
        if p.cflag:
            a(f"""v_lshrrev_b32 v28, 2, v{vL}
            v_mul_u32_u24 v28, {p.cstr}, v28
            v_and_b32 v29, 3, v{vL}
            v_lshl_add_u32 v28, v29, 4, v28
            s_mul_i32 s{sT1}, s2, {8*p.cstr}
            s_add_u32 s{sT1}, s{sT1}, {FP2}
            s_cmp_lt_u32 s2, {p.crep}
            s_cselect_b32 exec_lo, -1, 0
            buffer_store_dwordx4 v[24:27], v28, {R(rWS)}, s{sT1} offen sc1""")
        a(f"""s_lshl_b32 s{sT1}, s2, 7
        s_add_u32 s{sT1}, s{sT1}, {HD}
        s_mov_b32 exec_lo, 0xff
        buffer_store_dwordx4 v[24:27], v{vL16}, {R(rWS)}, s{sT1} offen sc1
        s_mov_b64 exec, -1
""")
    a("L_xb0:\ns_barrier\ns_branch L_w3\nL_p1c:")
    zstamps()
    masks()
    stamp(1)
    if p.diag == 2: a(f"s_mov_b32 s{sStamp+6}, s{sQ+6}\ns_mov_b32 s{sStamp+8}, s{sQ+8}")
    a(f"""s_add_u32 s{sT0}, s{sT0}, {QP}
    s_mov_b32 s{sT2}, 0x01000100
    s_mov_b32 s{sT3}, 0x03020302
    v_add_u32 v190, {L_WQ}, v{vL16}
    s_waitcnt vmcnt(20)""")
    assert p.b0pos == 1 and p.ypre == 0
    a("s_cmp_ge_u32 s2, 128\ns_cbranch_scc1 L_nob0\ns_barrier\nL_nob0:")
    if p.diag == 2: a(f"s_memrealtime s[{sStamp+10}:{sStamp+11}]")
    for k in range(4):
        a(f"v_perm_b32 v{vXP+2*k}, v{186+k}, v{186+k}, s{sT2}\nv_perm_b32 v{vXP+2*k+1}, v{186+k}, v{186+k}, s{sT3}")
    for n in range(20): buildA(vAP+4*n, vXP+(n % 4)+(4 if n >= 16 else 0), (n//4) % 4)
    epoch_wait()
    if p.diag == 2: a(f"s_memrealtime s[{sStamp+12}:{sStamp+13}]")
    G = 4
    for t0 in range(0, 20, G):
        a(f"s_waitcnt vmcnt({20-t0-G})")
        if p.b0pos == 2 + t0//G: a("s_barrier")
        if p.diag == 2 and t0 == 0: a(f"s_memrealtime s[{sStamp+14}:{sStamp+15}]")
        if p.diag == 2 and t0 == 16: a(f"s_memrealtime s[{sStamp+16}:{sStamp+17}]")
        for t in range(t0, t0+G): a(f"ds_read_b128 {V(vWP+4*t)}, v190 offset:{1024*t}")
        if t0:
            a(f"s_waitcnt lgkmcnt({G})")
            for t in range(t0-G, t0): mfma(vDP, vAP+4*t, vWP+4*t, '0' if t == 0 else None)
    for t in range(20-G, 20):
        a(f"s_waitcnt lgkmcnt({19-t})")
        mfma(vDP, vAP+4*t, vWP+4*t)
    tag4(vDP)
    if p.fast: a(f"buffer_store_dwordx4 {V(vDP)}, v{vL16}, {R(rWS)}, s{sT1} offen")
    a(f"buffer_store_dwordx4 {V(vDP)}, v{vL16}, {R(rWS)}, s{sT0} offen sc1")
    stamp(2)
    a(f"""s_barrier
    s_cmp_ge_u32 s2, 128
    s_cbranch_scc1 L_Y_main
    s_branch L_X_main""")

    a.label("L_Ydma")
    sCK = sQ + 11
    if p.kint:
        a(f"""s_bfe_u32 s{sCK}, s2, 0x10006
        s_lshl_b32 s{sCK}, s{sCK}, 4
        s_add_u32 s{sCK}, s{sCK}, s{sT2}
        s_lshl_b32 s{sCK}, s{sCK}, 8
        s_and_b32 vcc_lo, s2, 63
        s_add_u32 s{sCK}, s{sCK}, vcc_lo
        s_lshl_b32 s{sCK}, s{sCK}, 10
        s_lshl_b32 m0, s{sT2}, 12""")
        if p.kint == 2: a(f"s_xor_b32 s{sCK}, s{sCK}, m0")
    else:
        a(f"""s_sub_u32 s{sCK}, s2, 128
        s_lshl_b32 s{sCK}, s{sCK}, 16
        s_lshl_b32 m0, s{sT2}, 12
        s_add_u32 s{sCK}, s{sCK}, m0""")
    def ckvaddr():
        a(f"""
    s_and_b32 vcc_lo, s{sT2}, 1
    s_lshl_b32 vcc_lo, vcc_lo, 7
    s_lshr_b32 vcc_hi, s{sT2}, 1
    s_lshl_b32 vcc_hi, vcc_hi, 4
    s_or_b32 vcc_lo, vcc_lo, vcc_hi
    v_xor_b32 v244, vcc_lo, v{vL16}
    v_xor_b32 v245, 32, v244
    v_xor_b32 v246, 64, v244
    v_xor_b32 v247, 0x60, v244""")
        if p.kint:
            for n in range(1, 4): a(f"v_add_u32 v{244+n}, {n*(65536-1024)}, v{244+n}")
    ckvaddr()
    a(f"""s_mov_b64 s[{rC}:{rC+1}], s[38:39]
    s_mov_b32 s{rC+2}, {SZ['ckv']}""")
    def ckv(i):
        if i % 4 == 0 and i: a(f"s_add_u32 s{sCK}, s{sCK}, {16*65536 if p.kint else 16384}\ns_add_u32 m0, m0, 16384")
        if p.kint == 2:
            a(f"s_xor_b32 s{sQ+2}, s{sCK}, {(16*(i>>2) + (i&3)) << 10}")
            a(f"buffer_load_dwordx4 v{244+(i&3)}, {R(rC)}, s{sQ+2} offen offset:{1024*(i%4)} {p.ckvf} lds")
            return
        a(f"buffer_load_dwordx4 v{244+(i&3)}, {R(rC)}, s{sCK} offen offset:{1024*(i%4)} {p.ckvf} lds")
    for i in range(p.ypre): ckv(i)
    zstamps()
    epoch_wait()
    a(f"""s_sub_u32 s{sT3}, s2, 128
    s_lshl_b32 s{sT3}, s{sT3}, 7
    s_add_u32 s{sT3}, s{sT3}, {HG}
    v_mov_b32 v14, s{sT[0]}
    v_lshlrev_b32 v15, 2, v{vL}""")
    if p.xg >= 0:
        a(f"s_cmp_lg_u32 s{sWave}, 4\ns_cbranch_scc1 L_nokg")
        for k in range(p.xgn):
            a(f"s_add_u32 s{sQ+k}, s2, {41*k}\ns_and_b32 s{sQ+k}, s{sQ+k}, 127\ns_lshl_b32 s{sQ+k}, s{sQ+k}, 7\ns_add_u32 s{sQ+k}, s{sQ+k}, {HK}")
        spoll_all([sQ+k for k in range(p.xgn)], sQ+4)
        a.label("L_nokg")
    def uvsetup(r):
        srd(rB, pWUV, 0 if p.nod1 & 8 else SZ['wuv'])
        a(f"""s_sub_u32 s{r}, s{sJ}, 4
        s_lshl_b32 s{r}, s{r}, 20
        s_lshl_b32 s{r+1}, s{sT2}, {18 if p.uvlin else 15}
        s_add_u32 s{r}, s{r}, s{r+1}
        s_lshl_b32 s{r+1}, s{sH}, 8
        s_add_u32 s{r}, s{r}, s{r+1}""")
        if p.uvlin:
            a(f"""s_lshl_b32 s{r+1}, s{sT2}, 6
            s_and_b32 s{r+1}, s{r+1}, 64
            v_and_b32 v9, 1, v{vG}
            v_lshlrev_b32 v9, 3, v9
            v_xor_b32 v9, v9, v{vJ}
            v_lshlrev_b32 v9, 4, v9
            v_xor_b32 v9, s{r+1}, v9
            v_lshl_add_u32 v44, v{vG}, 13, v9
            v_xor_b32 v45, 32, v44""")
        else:
            a(f"""v_lshlrev_b32 v9, 1, v{vG}
            v_xor_b32 v9, v9, v{vJ}
            v_lshlrev_b32 v9, 4, v9
            v_lshl_add_u32 v44, v{vG}, 17, v9
            v_xor_b32 v45, 0x80, v44""")
        a(f"""s_lshl_b32 s{r+1}, s{sT2}, 13
        s_add_u32 s{r+1}, s{r+1}, {L_WUVY}""")
    def uvdma(r, n0, n1):
        if n0 >= n1: return
        a("s_mov_b32 vcc_hi, m0")
        for n in range(n0, n1):
            off = 4*n*8192 if p.uvlin else (64*(n & 1) + (n >> 1))*8192
            a(f"s_add_u32 m0, s{r+1}, {1024*n}\ns_add_u32 vcc_lo, s{r}, {off}")
            a(f"buffer_load_dwordx4 v{44+((n>>2) if p.uvlin else ((n>>1)&1))}, {R(rB)}, vcc_lo offen {nt} lds")
        a("s_mov_b32 m0, vcc_hi")
    uvsetup(sQ)
    a("s_barrier")
    stamp(10)
    uvdma(sQ, 0, p.uv1)
    for i in range(p.ypre, 17):
        if i == p.gate:
            a(f"""s_cmp_eq_u32 s{sWave}, 4
            s_cselect_b32 exec_lo, -1, 0
            s_mov_b32 exec_hi, 0
            buffer_store_dword v14, v15, {R(rWS)}, s{sT3} offen sc1
            s_mov_b64 exec, -1""")
        if i < (12 if p.qmid else 16): ckv(i)
    if p.emub:
        a(f"s_sub_u32 s{sCK}, s{sCK}, {3*16*65536}\ns_xor_b32 s{sCK}, s{sCK}, {8*1024}\ns_sub_u32 m0, m0, {3*16384}")
        for i in range(16): ckv(i)
    stamp(1)
    masks()
    a("s_branch L_Y_main")
    a.label("L_w13")
    a(f"""s_cmp_eq_u32 s{sWave}, 1
    s_cbranch_scc1 L_w1""")
    a.label("L_w3")
    if p.stamp == 5:
        a(f"""s_lshl_b32 s{sT0}, s2, 3
        s_add_u32 s{sT0}, s{sT0}, s{sWave}
        s_lshl_b32 s{sT0}, s{sT0}, 6
        s_add_u32 s{sT0}, s{sT0}, {STAMP}
        v_mov_b32 v24, s{sStamp}
        v_mov_b32 v25, 0
        s_waitcnt lgkmcnt(0)
        v_mov_b32 v24, s{sStamp}
        s_cmp_lt_u32 s2, 8
        s_cselect_b32 exec_lo, 1, 0
        s_mov_b32 exec_hi, 0
        buffer_store_dword v24, v25, {R(rWS)}, s{sT0} offen sc1
        s_mov_b64 exec, -1""")
    if p.tlb:
        a(f"""s_cmp_ge_u32 s2, 128
        s_cselect_b32 exec_lo, {7 if p.tlb & 2 else 0}, 0
        s_mov_b32 exec_hi, 0
        v_mul_u32_u24 v22, {63*p.opstr}, v{vL}
        s_mov_b32 s{sT0}, {OP + p.opstr + 32768}
        s_cbranch_execz L_tlbd
        buffer_load_dword v251, v22, {R(rWS)}, s{sT0} offen
L_tlbd:
        s_mov_b64 exec, -1""")
    a.label("L_w23")
    zstamps()
    masks()
    epoch_wait()
    a(f"""s_barrier
    s_waitcnt vmcnt(0)
    s_cmp_ge_u32 s2, 128
    s_cbranch_scc1 L_Y_main
    s_branch L_X_main""")
    a.label("L_w1")
    a(f"""s_movk_i32 s{rA+2}, {SZ['x']}
    s_mov_b32 s{rA+3}, s{rWS+3}
    v_and_b32 v9, 31, v{vL}
    v_mul_u32_u24 v9, 36, v9
    v_lshrrev_b32 v12, 5, v{vL}
    v_mul_u32_u24 v11, 1152, v12
    v_add_u32 v11, v11, v9
    buffer_load_dwordx4 v[20:23], v11, {R(rA)}, 0 offen
    buffer_load_dwordx4 v[24:27], v11, {R(rA)}, 0 offen offset:16
    buffer_load_dword v28, v11, {R(rA)}, 0 offen offset:32
    s_waitcnt lgkmcnt(0)""")
    srd(rB, pGW, SZ['gw'])
    a(f"""buffer_load_dwordx4 v[32:35], v9, {R(rB)}, 0 offen
    buffer_load_dwordx4 v[36:39], v9, {R(rB)}, 0 offen offset:16
    buffer_load_dword v40, v9, {R(rB)}, 0 offen offset:32
    """)
    zstamps()
    masks()
    epoch_wait()
    a(f"""v_mov_b32 v13, 0
    v_lshlrev_b32 v10, 2, v12
    v_add_u32 v10, {L_GATE}, v10
    s_barrier
    s_waitcnt vmcnt(0)""")
    def gatemath():
        for k in range(9): a(f"v_dot2_f32_bf16 v13, v{20+k}, v{32+k}, v13")
        for m in ("quad_perm:[1,0,3,2]", "quad_perm:[2,3,0,1]", "row_half_mirror", "row_mirror"):
            a(f"v_add_f32_dpp v13, v13, v13 {m} row_mask:0xf bank_mask:0xf")
        a(f"""v_mov_b32 v14, v13
        v_permlane16_swap_b32 v13, v14
        v_add_f32 v13, v13, v14
        v_mul_f32 v13, {f2u(-math.log2(math.e))}, v13
        v_exp_f32 v13, v13
        v_add_f32 v13, 1.0, v13
        v_rcp_f32 v13, v13
        ds_write_b32 v10, v13
        s_waitcnt lgkmcnt(0)""")
    gatemath()
    a("s_branch L_Y_main")

    a.label("L_X_w47")
    zstamps()
    masks()
    a("v_mov_b32 v9, v19")
    if p.xg < 0: epoch_wait()
    if p.diag == 2: a(f"s_mov_b32 s{sStamp+10}, s{sQ+6}\ns_mov_b32 s{sStamp+12}, s{sQ+8}")
    a(f"""s_lshl_b32 s{sT0}, s{sH}, 13
    s_lshl_b32 s{sT1}, s{sT2}, 8
    s_add_u32 s{sT0}, s{sT0}, s{sT1}
    s_add_u32 s{sT0}, s{sT0}, {QPL if p.fast else QP}
    s_add_u32 s{sT1}, s{sT0}, 4096
    v_lshlrev_b32 v24, 10, v{vG}
    v_lshl_add_u32 v24, v{vJ}, 4, v24""")
    a(f"""s_lshr_b32 s{sT3}, s{sT2}, 1
    s_lshl_b32 s{sT3}, s{sT3}, 8
    s_bitcmp1_b32 s{sT2}, 0
    s_cselect_b32 vcc_lo, 8, 0
    s_add_u32 s{sT3}, s{sT3}, vcc_lo
    s_add_u32 s{sT3}, s{sT3}, {L_QV}
    v_lshlrev_b32 v25, 4, v{vJ}
    v_lshl_add_u32 v25, v{vG}, 1, v25
    v_add_u32 v25, s{sT3}, v25""")
    a(f"""s_lshl_b32 s{sT3}, s{sT2}, 13
    v_lshl_add_u32 v26, v{vJ}, 8, v9
    v_add_u32 v26, s{sT3}, v26
    v_xor_b32 v27, 64, v26
    v_xor_b32 v28, 0x80, v26
    v_xor_b32 v29, 0xc0, v26""")
    a(f"""v_lshrrev_b32 v30, 3, v{vJ}
    v_lshlrev_b32 v30, 8, v30
    v_lshl_add_u32 v30, v{vG}, 4, v30
    v_add_u32 v30, {L_QV}, v30""")
    a(f"""v_and_b32 v31, 31, v{vL}
    s_lshl_b32 s{sT3}, s{sT2}, 5
    v_add_u32 v31, s{sT3}, v31
    v_bfe_u32 v32, v31, 3, 3
    v_mul_u32_u24 v32, 37, v32
    v_add_u32 v32, s{sT[0]}, v32
    v_and_b32 v33, 7, v31
    v_lshrrev_b32 v32, v33, v32
    v_and_b32 v32, 1, v32
    v_lshlrev_b32 v32, 16, v32
    v_xor_b32 v33, 0x10000, v32
    v_lshlrev_b32 v31, 1, v31
    v_lshrrev_b32 v34, 5, v{vL}
    v_lshl_add_u32 v31, v34, 15, v31
    s_lshl_b32 s{sT3}, s{sH}, 10
    s_lshl_b32 vcc_lo, s{sJ}, 8
    s_add_u32 s{sT3}, s{sT3}, vcc_lo
    s_add_u32 s{sT3}, s{sT3}, {QL}
    v_mov_b32 v35, 0xfffe0000
    s_lshr_b32 s{sQ+2}, s{sH}, 2
    s_mul_i32 s{sQ+2}, s{sQ+2}, {p.cstr}
    s_and_b32 vcc_lo, s{sH}, 3
    s_lshl_b32 vcc_lo, vcc_lo, 2
    s_add_u32 vcc_lo, vcc_lo, s{sJ}
    s_lshl_b32 vcc_lo, vcc_lo, 2
    s_add_u32 s{sQ+2}, s{sQ+2}, vcc_lo
    s_add_u32 s{sQ+2}, s{sQ+2}, {FP2 + 0x80000}
    v_mul_u32_u24 v104, {8*p.cstr}, v{vL}
    v_mov_b32 v105, s{sT[0]}
    s_barrier""")
    stamp(1)
    for n in range(p.xpre, 8): wuk(n)
    a(f"s_waitcnt vmcnt({p.pollA_wait})")
    stamp(2)
    L = poll_begin()
    a(f"""buffer_load_dwordx4 v[36:39], v24, {R(rWS)}, s{sT0} offen sc1
    buffer_load_dwordx4 v[40:43], v24, {R(rWS)}, s{sT1} offen sc1
    s_waitcnt vmcnt(1)""")
    chk4(44, 36, True)
    a("s_waitcnt vmcnt(0)")
    chk4(44, 40)
    if p.diag == 4: a(f"s_cmp_eq_u32 s{sCnt}, 0\ns_cbranch_scc0 L_d4\ns_memrealtime s[{sStamp+12}:{sStamp+13}]\nL_d4:")
    poll_end(L, 44, '0xff', ((sT0, sT1), QPL-QP))
    if p.stamp: a(f"s_mov_b32 s{sStamp+24}, s{sCnt}")
    stamp(3)
    for tl in range(2):
        for ks in range(4):
            a(f"ds_read_b128 {V(48+16*tl+4*ks)}, v{26+ks} offset:{4096*tl}")
    for k in range(4): a(f"v_add_f32 v{36+k}, v{36+k}, v{40+k}")
    treduce(36)
    a(f"""v_cvt_pk_bf16_f32 v36, v36, v36
    ds_write_b16 v25, v36
    s_waitcnt lgkmcnt(0)
    s_barrier""")
    if p.diag == 4: stamp(7)
    for ks in range(4): a(f"ds_read_b128 {V(80+4*ks)}, v30 offset:{64*ks}")
    if p.bflag == 1:
        a(f"""s_cmp_eq_u32 s{sWave}, 4
        s_cselect_b32 exec_lo, 0xffff, 0
        s_mov_b32 exec_hi, 0
        buffer_store_dword v105, v104, {R(rWS)}, s{sQ+2} offen sc1
        s_mov_b64 exec, -1""")
    for ks in range(4):
        a(f"s_waitcnt lgkmcnt({3-ks})")
        mfma(96, 80+4*ks, 48+4*ks, '0' if ks == 0 else None)
        mfma(100, 80+4*ks, 64+4*ks, '0' if ks == 0 else None)
    a(f"""s_mov_b32 vcc_lo, 0xffff0000
    s_mov_b32 vcc_hi, 0xffff0000
    v_cndmask_b32 v96, v96, v100, vcc
    v_mul_f32 v96, {f2u(128**-0.5*math.log2(math.e))}, v96
    v_add_u32 v96, v96, v33
    v_and_or_b32 v96, v96, v35, v32
    buffer_store_short_d16_hi v96, v31, {R(rWS)}, s{sT3} offen sc1""")
    if p.bflag == 2:
        a(f"""s_cmp_eq_u32 s{sWave}, 4
        s_cselect_b32 exec_lo, 0xffff, 0
        s_mov_b32 exec_hi, 0
        buffer_store_dword v105, v104, {R(rWS)}, s{sQ+2} offen sc1
        s_mov_b64 exec, -1""")
    stamp(4)

    a.label("L_X_main")
    sX = sQ + 9
    a(f"s_mul_i32 s{sT0}, s{sI}, 9\nv_add_u32 v9, s{sT0}, v{vJ}")
    decode_v(139, 9, 10)
    a(f"""s_mul_i32 s{sT0}, s{sXcd}, 576
    v_add_u32 v139, s{sT0}, v139
    v_mul_u32_u24 v10, 1152, v139""")
    for t in range(9): a(f"v_readlane_b32 s{sQ+t}, v10, {t}")
    a(f"""v_bfe_u32 v9, v{vL}, 3, 1
    v_lshlrev_b32 v135, 2, v{vL}
    v_lshlrev_b32 v136, 2, v9
    v_add_u32 v136, {L_GATE}, v136
    v_mov_b32 v137, s{sT[0]}
    v_mov_b32 v138, 0
    v_mov_b32 v133, 0
    v_and_b32 v132, 3, v{vL}
    v_lshl_add_u32 v134, v132, 2, v{vG}
    v_lshlrev_b32 v134, 2, v134
    v_mul_u32_u24 v9, 192, v9
    v_add_u32 v134, v134, v9
    v_add_u32 v134, {L_HX}, v134
    v_mul_u32_u24 v132, 37, v132
    v_add_u32 v132, s{sT[0]}, v132
    s_lshl_b32 s{sX}, s{sH}, 2
    s_add_u32 s{sX}, s{sX}, s{sJ}
    s_mul_i32 s{sX+2}, s{sX}, {32*1152}
    s_lshl_b32 s{sX}, s{sX}, 10
    s_add_u32 s{sX}, s{sX}, {CXL if p.fast else CX}
    s_mul_i32 s{sX+1}, s2, 4608
    s_add_u32 s{sX+1}, s{sX+1}, {FP}""")
    if p.p5h: a(f"v_mov_b32 v9, {L_RED}\nds_write_b32 v9, v138\ns_waitcnt lgkmcnt(0)")
    srd(rA, pX, SZ['x'])
    xoff(12)
    a(f"""s_cmp_ge_u32 s{sWave}, 4
    s_cbranch_scc1 L_X_b2
    s_barrier""")
    if p.tlb:
        a(f"""s_cmp_lg_u32 s{sWave}, 3
        s_cbranch_scc1 L_X_notlb
        s_mov_b64 exec, 7
        v_lshlrev_b32 v22, 21, v{vL}
        global_load_dword v252, v22, s[{pW1}:{pW1+1}]
        global_load_dword v253, v22, s[{pW2}:{pW2+1}]
        global_load_dword v254, v22, s[{pWO}:{pWO+1}]
        s_mov_b64 exec, -1
L_X_notlb:""")
    if p.qpf:
        a(f"""s_cmp_lg_u32 s{sWave}, 1
        s_cbranch_scc1 L_X_noqpf
        s_lshl_b32 s{sT0}, s{sI}, 12
        s_add_u32 s{sT0}, s{sT0}, {QL}""")
        lsbtags(40)
        if p.qpfs: a(f"s_sleep {p.qpfs}")
        L = poll_begin()
        for n in range(4): a(f"buffer_load_dwordx4 {V(20+4*n)}, v{vL16}, {R(rWS)}, s{sT0} offen offset:{1024*n} sc1")
        a("s_mov_b64 exec, -1\ns_waitcnt vmcnt(0)")
        for n in range(4): chkv(9, 20+4*n, 40, n == 0)
        sv = p.maxspin; p.maxspin = p.qpf
        poll_end_masked(L, 9, '0x10001')
        p.maxspin = sv
        a.label("L_X_noqpf")
    if p.gate >= 0:
        a(f"""s_cmp_lg_u32 s{sWave}, 0
        s_cbranch_scc1 L_X_b2
        s_lshl_b32 s{sT2}, s2, 7
        s_add_u32 s{sT2}, s{sT2}, {HG}
        s_xor_b32 s{sT3}, s{sT2}, {43*128}""")
        if p.gand:
            for k in range(p.gand):
                a(f"s_add_u32 s{6+k}, s2, {43*k}\ns_and_b32 s{6+k}, s{6+k}, 127\ns_lshl_b32 s{6+k}, s{6+k}, 7\ns_add_u32 s{6+k}, s{6+k}, {HG}")
            spoll_all([6+k for k in range(p.gand)], sT0)
        else:
            spoll((sT2, sT3))
        stamp(3)
    a.label("L_X_b2")
    a("s_barrier")
    a(f"""s_cmp_ge_u32 s{sWave}, 5
    s_cbranch_scc1 L_X_fg""")
    vXF, vAF, vWF, vDF, vWO, vW2 = 13, 20, 60, 100, 140, 176
    srd(rB, pW1, 0 if p.nod1 & 4 else SZ['w1'])
    a(f"s_mul_i32 s{sT1}, s{sI}, 72")
    for v in range(3): a(f"buffer_load_ushort v{vXF+v}, v12, {R(rA)}, s{sT1} offen offset:{32*v}")
    srd(rA, pW2, 0 if p.nod1 & 1 else SZ['w2'])
    srd(rC, pWO, 0 if p.nod1 & 2 else SZ['wo'])
    a(f"""s_mul_i32 s{sT0}, s{sI}, {36*9216}
    s_mul_i32 s{sT1}, s{sXcd}, 1152
    s_add_u32 s{sT0}, s{sT0}, s{sT1}
    s_lshl_b32 s{sT1}, s{sWave}, 8
    s_add_u32 s{sT0}, s{sT0}, s{sT1}
    v_mul_u32_u24 v10, 9216, v{vG}
    v_mul_u32_u24 v17, 1152, v{vG}
    v_add_u32 v17, s{sT1}, v17
    v_add_u32 v16, s{sT1}, v10
    s_lshl_b32 s{sT2}, s{sXcd}, 4
    s_add_u32 s{sT2}, s{sT2}, s{sI}
    s_mul_i32 s{sT2}, s{sT2}, 4608
    s_add_u32 s{sT2}, s{sT2}, {HP}
    s_cmp_eq_u32 s{sWave}, 4
    s_cbranch_scc1 L_X_f1half
    v_lshl_add_u32 v10, v{vJ}, 4, v10
    v_lshl_add_u32 v16, v{vJ}, 4, v16
    v_lshl_add_u32 v17, v{vJ}, 4, v17""")
    def wo_full():
        for t in range(8):
            if t == 4: a(f"s_add_u32 s{sX+2}, s{sX+2}, {4*1152}")
            if t == p.fmid: a("s_barrier\ns_barrier")
            a(f"buffer_load_dwordx4 {V(vWO+4*t)}, v16, {R(rC)}, s{sX+2} offen offset:{1152*(t&3)} {nt}")
    def wo_half():
        for n in range(4):
            if n == 2: a(f"s_add_u32 s{sX+2}, s{sX+2}, {4*1152}")
            if p.fmid < 8 and n == p.fmid//2: a("s_barrier\ns_barrier")
            a(f"buffer_load_dwordx4 {V(vWO+4*n)}, v16, {R(rC)}, s{sX+2} offen offset:{2304*(n&1)} {nt}")
    for t in range(9):
        if p.xramp and p.xramp <= t <= p.xrn: a(f"s_waitcnt vmcnt({p.xramp-1})")
        a(f"buffer_load_dwordx4 {V(vWF+4*t)}, v10, {R(rB)}, s{sT0} offen {nt}")
        if t < 8: a(f"s_add_u32 s{sT0}, s{sT0}, {4*9216}")
    def w2_full():
        for t in range(9): a(f"buffer_load_dwordx4 {V(vW2+4*t)}, v17, {R(rA)}, s{sQ+t} offen {nt}")
    if p.xord < 2: w2_full()
    elif p.xord == 2: a("s_barrier")
    ex = {0: 17, 1: 9, 2: 0, 3: 0}[p.xord]
    if p.xord == 0: wo_full()
    slot_voff(138, False)
    a(f"s_waitcnt vmcnt({9+ex})")
    for v in range(3): a(f"v_lshl_or_b32 v{vXF+v}, v{vXF+v}, 16, v{vXF+v}")
    for t in range(9): buildA(vAF+4*t, vXF+t//4, t % 4)
    for t in range(9):
        a(f"s_waitcnt vmcnt({8 if p.xord == 3 else 8-t+ex})")
        mfma(vDF, vAF+4*t, vWF+4*t, '0' if t == 0 else None)
        if p.xord == 3 and t < 8: a(f"buffer_load_dwordx4 {V(vW2+4*t)}, v17, {R(rA)}, s{sQ+t} offen {nt}")
    if not p.nof: slot_store(vDF, sT2, False, 138, HPL-HP if p.floc else None)
    if p.xord == 3: a(f"buffer_load_dwordx4 {V(vW2+32)}, v17, {R(rA)}, s{sQ+8} offen {nt}")
    stamp(5)
    if p.fpos == 0: a("s_barrier")
    if p.xord in (1, 3): wo_full()
    if p.fpos == 1: a("s_barrier")
    if p.xord == 2: w2_full()
    a("s_branch L_X_o2")
    a.label("L_X_f1half")
    a(f"""v_and_b32 v9, 7, v{vJ}
    v_lshl_add_u32 v10, v9, 4, v10
    v_lshl_add_u32 v16, v9, 4, v16
    v_lshl_add_u32 v17, v9, 4, v17
    v_lshrrev_b32 v9, 3, v{vJ}
    v_mul_u32_u24 v11, {4*9216}, v9
    v_add_u32 v10, v10, v11
    v_mul_u32_u24 v11, 1152, v9
    v_add_u32 v16, v16, v11""")
    for n in range(5):
        if n == 4: a("s_mov_b32 exec_lo, 0x00ff00ff\ns_mov_b32 exec_hi, 0x00ff00ff")
        if p.xramp and n in (1, 2): a("s_waitcnt vmcnt(0)")
        a(f"buffer_load_dwordx4 {V(vWF+4*n)}, v10, {R(rB)}, s{sT0} offen {nt}")
        if n < 4: a(f"s_add_u32 s{sT0}, s{sT0}, {8*9216}")
    a("s_mov_b64 exec, -1")
    def w2_half():
        a("s_mov_b32 exec_lo, 0x00ff00ff\ns_mov_b32 exec_hi, 0x00ff00ff")
        a(f"buffer_load_dwordx4 {V(vW2+16)}, v17, {R(rA)}, s{sQ+8} offen {nt}")
        a("s_mov_b64 exec, -1\ns_mov_b32 vcc_lo, 0xff00ff00\ns_mov_b32 vcc_hi, 0xff00ff00")
        for n in range(4):
            a(f"v_mov_b32 v18, s{sQ+2*n}\nv_mov_b32 v19, s{sQ+2*n+1}\nv_cndmask_b32 v18, v18, v19, vcc\nv_add_u32 v18, v18, v17")
            a(f"buffer_load_dwordx4 {V(vW2+4*n)}, v18, {R(rA)}, 0 offen {nt}")
    if p.xord < 2: w2_half()
    elif p.xord == 2: a("s_barrier")
    ex = {0: 9, 1: 5, 2: 0, 3: 0}[p.xord]
    if p.xord == 0: wo_half()
    slot_voff(138, True)
    a(f"s_waitcnt vmcnt({5+ex})")
    for v in range(3): a(f"v_lshl_or_b32 v{vXF+v}, v{vXF+v}, 16, v{vXF+v}")
    for t in range(9): buildA(vAF+4*t, vXF+t//4, t % 4)
    for n in range(5):
        a(f"s_waitcnt vmcnt({4-n+ex})")
        mfma(vDF, vAF+8*n, vWF+4*n, '0' if n == 0 else None)
        if n < 4: mfma(vDF+4, vAF+8*n+4, vWF+4*n, '0' if n == 0 else None)
    for r in range(4): a(f"v_add_f32_dpp v{vDF+r}, v{vDF+4+r}, v{vDF+r} row_ror:8 row_mask:0xf bank_mask:0xf")
    if not p.nof: slot_store(vDF, sT2, True, 138, HPL-HP if p.floc else None)
    if p.xord == 3: w2_half()
    stamp(5)
    if p.fpos == 0: a("s_barrier")
    if p.xord in (1, 3): wo_half()
    if p.fpos == 1: a("s_barrier")
    if p.xord == 2: w2_half()
    a.label("L_X_o2")
    if p.fdel and p.fmid >= 8: a("s_barrier")
    vA2, vD2 = 20, 60
    a(f"""ds_read_b32 v136, v136
    s_lshl_b32 s{sT3}, s2, 7
    s_add_u32 s{sT3}, s{sT3}, {HD}
    s_barrier""")
    stamp(8)
    for v in range(3): a(f"ds_read_b32 v{68+v}, v134 offset:{64*v}")
    a("s_waitcnt lgkmcnt(0)")
    for t in range(9): buildA(vA2+4*t, 68+t//4, t % 4)
    a(f"""s_waitcnt vmcnt({8 if p.xord in (1, 3) else 0})
    s_cmp_eq_u32 s{sWave}, 4
    s_cbranch_scc1 L_X_half2""")
    if p.xord == 2:
        for t in range(8): a(f"ds_read_b128 {V(vWO+4*t)}, v16 offset:{1152*t}")
    for t in range(9): mfma(vD2, vA2+4*t, vW2+4*t, '0' if t == 0 else None)
    if p.p5h:
        a(f"""s_cmp_lg_u32 s{sWave}, 0
        s_cbranch_scc1 L_X_o3
        v_mov_b32 v9, {L_RED}
        s_mov_b32 s{sCnt}, 0
L_X_hw:
        ds_read_b32 v10, v9
        s_add_u32 s{sCnt}, s{sCnt}, 1
        s_cmp_ge_u32 s{sCnt}, {16*p.maxspin}
        s_cbranch_scc1 L_X_hwd
        s_waitcnt lgkmcnt(0)
        v_cmp_ne_u32 vcc, s{sT[0]}, v10
        s_cbranch_vccnz L_X_hw
L_X_hwd:""")
        for n in range(5): a(f"ds_read_b128 {V(108+4*n)}, v{vL16} offset:{1024*n}")
        slot_voff(133, True)
    a("s_branch L_X_o3")
    a.label("L_X_half2")
    a("s_waitcnt vmcnt(4)")
    if p.xord == 2:
        for n in range(4): a(f"ds_read_b128 {V(vWO+4*n)}, v16 offset:{2304*n}")
    for n in range(5):
        mfma(vD2, vA2+8*n, vW2+4*n, '0' if n == 0 else None)
        if n < 4: mfma(vD2+4, vA2+8*n+4, vW2+4*n, '0' if n == 0 else None)
    if p.p5h:
        for r in range(4): a(f"v_add_f32_dpp v{vD2+r}, v{vD2+4+r}, v{vD2+r} row_ror:8 row_mask:0xf bank_mask:0xf")
        a(f"ds_write_b128 v{vL16}, {V(vD2)} offset:4096\ns_waitcnt vmcnt(0)")
        for n in range(4): a(f"ds_write_b128 v{vL16}, {V(vWO+4*n)} offset:{1024*n}")
        a(f"v_mov_b32 v9, {L_RED}\ns_waitcnt lgkmcnt(0)\nds_write_b32 v9, v137\ns_branch L_X_end")
    a.label("L_X_o3")
    a("s_waitcnt lgkmcnt(0)")
    stamp(9)
    L = poll_begin()
    for cq in range(4): a(f"buffer_load_dword v{72+cq}, v135, {R(rWS)}, s{sX} offen offset:{256*cq} sc1")
    a("s_waitcnt vmcnt(0)")
    a("v_xor_b32 v76, v132, v72")
    for cq in range(1, 4): a(f"v_bitop3_b32 v76, v76, v{72+cq}, v132 bitop3:0xf6")
    poll_end(L, 76, '0xff', ((sX,), CXL-CX), sleep=p.asleep)
    stamp(10)
    def dflag():
        a(f"""s_cmp_eq_u32 s{sWave}, 1
        s_cselect_b32 exec_lo, 0xffff, 0
        s_mov_b32 exec_hi, 0
        buffer_store_dword v137, v135, {R(rWS)}, s{sT3} offen sc1
        s_mov_b64 exec, -1""")
    if p.dflag == 3 and not p.dex: dflag()
    a(f"""v_add_f32 v72, v72, v73
    v_add_f32 v74, v74, v75
    v_add_f32 v72, v72, v74
    v_mul_f32 v72, v72, v136
    v_cvt_pk_bf16_f32 v72, v72, v72
    v_mov_b32 v73, v72
    v_mov_b32 v74, v72
    v_mov_b32_dpp v73, v72 row_shr:4 row_mask:0xf bank_mask:0xa
    v_mov_b32_dpp v74, v72 row_shl:4 row_mask:0xf bank_mask:0x5
    s_cmp_eq_u32 s{sWave}, {0 if p.p5h else 4}
    s_cbranch_scc1 L_X_half3""")
    for t in range(8):
        buildA(vA2+4*t, 73+t//4, t % 4)
        if t > 0: mfma(vD2, vA2+4*(t-1), vWO+4*(t-1))
    mfma(vD2, vA2+28, vWO+28)
    slot_store(vD2, sX+1, False, 138)
    def qclean(w):
        a(f"""s_lshl_b32 vcc_lo, s{sH}, 3
        s_add_u32 vcc_lo, vcc_lo, s{sJ}
        s_lshl_b32 vcc_lo, vcc_lo, 10
        s_add_u32 vcc_lo, vcc_lo, {QPL}
        s_cmp_eq_u32 s{sWave}, {w}
        s_cselect_b64 exec, -1, 0
        buffer_store_dwordx4 v[4:7], v{vL16}, {R(rWS)}, vcc_lo offen sc1
        s_mov_b64 exec, -1""")
    if p.clean & 1: a(f"s_add_u32 vcc_lo, s{sT2}, {HPL-HP}\nbuffer_store_dwordx4 {V(vDF)}, v138, {R(rWS)}, vcc_lo offen sc1")
    if p.clean & 2: qclean(2)
    if p.dflag == 4: dflag()
    a("s_branch L_X_end")
    a.label("L_X_half3")
    if p.p5h:
        for t in range(9):
            if t < 8: buildA(vA2+4*t, 73+t//4, t % 4)
            if t > 0:
                u = t - 1
                mfma(124+4*(u & 1), vA2+4*u, 108+4*(u//2), '0' if u == 1 else None)
                mfma(vD2, vA2+4*u, vWO+4*u)
        for r in range(4): a(f"v_add_f32_dpp v{124+r}, v{128+r}, v{124+r} row_ror:8 row_mask:0xf bank_mask:0xf")
        slot_store(vD2, sX+1, False, 138)
        slot_store(124, sX+1, True, 133)
        a("s_branch L_X_end")
    else:
        for t in range(8):
            buildA(vA2+4*t, 73+t//4, t % 4)
            if t > 0: mfma(vD2+4*((t-1) & 1), vA2+4*(t-1), vWO+4*((t-1)//2))
        mfma(vD2+4, vA2+28, vWO+12)
        for r in range(4): a(f"v_add_f32_dpp v{vD2+r}, v{vD2+4+r}, v{vD2+r} row_ror:8 row_mask:0xf bank_mask:0xf")
        slot_store(vD2, sX+1, True, 138)
        if p.clean & 1: a(f"s_add_u32 vcc_lo, s{sT2}, {HPL-HP}\ns_mov_b32 exec_lo, 0x00ff00ff\ns_mov_b32 exec_hi, 0x00ff00ff\nbuffer_store_dwordx4 {V(vDF)}, v138, {R(rWS)}, vcc_lo offen sc1\ns_mov_b64 exec, -1")
        a("s_branch L_X_end")
    a.label("L_X_fg")
    a(f"""s_cmp_eq_u32 s{sWave}, 7
    s_cbranch_scc1 L_X_fg7""")
    srd(rB, pB1, SZ['b1'])
    a(f"""s_sub_u32 s{sT2}, s{sWave}, 5
    s_mul_i32 s{sT0}, s{sXcd}, {16*4608}
    s_mul_i32 s{sT1}, s{sT2}, 2304
    s_add_u32 s{sT0}, s{sT0}, s{sT1}
    s_mul_i32 s{sT1}, s{sI}, 144
    s_add_u32 s{sT0}, s{sT0}, s{sT1}
    s_add_u32 s{sT0}, s{sT0}, {HPL if p.floc else HP}
    s_add_u32 s{sQ}, s{sT0}, {4*4608}
    s_add_u32 s{sQ+1}, s{sT0}, {8*4608}
    s_add_u32 s{sQ+2}, s{sT0}, {12*4608}
    v_mul_u32_u24 v10, 4608, v{vG}
    v_lshl_add_u32 v10, v{vJ}, 4, v10
    v_add_u32 v14, v139, v{vG}
    v_lshlrev_b32 v14, 1, v14
    s_lshl_b32 s{sT1}, s{sT2}, 2
    s_add_u32 s{sT1}, s{sT1}, {L_GATE}
    v_mov_b32 v16, s{sT1}
    s_mul_i32 s{sT1}, s{sT2}, 192
    s_add_u32 s{sT1}, s{sT1}, {L_HX}
    v_lshl_add_u32 v17, v{vJ}, 2, v{vG}
    v_lshlrev_b32 v17, 2, v17
    v_add_u32 v17, s{sT1}, v17
    s_mov_b32 exec_lo, 0x01ff01ff
    s_mov_b32 exec_hi, 0x01ff01ff
    buffer_load_ushort v15, v14, {R(rB)}, 0 offen""")
    def floads():
        for k, s in enumerate((sT0, sQ, sQ+1, sQ+2)):
            if not p.nof: a(f"buffer_load_dwordx4 {V(20+4*k)}, v10, {R(rWS)}, s{s} offen sc1")
    if p.xord == 2: a("s_barrier")
    if p.fdel: a("s_barrier")
    a("s_barrier\nds_read_b32 v16, v16")
    if p.fmid < 8:
        floads()
        Lf = a.newlabel('fchk')
        a(f"s_barrier\ns_mov_b32 s{sCnt}, 0\ns_branch {Lf}")
        L = a.newlabel('poll'); a.label(L)
        floads()
        a.label(Lf)
    else:
        L = poll_begin()
        floads()
    for k in range(4):
        a(f"s_waitcnt vmcnt({3-k})")
        chk4(36, 20+4*k, k == 0)
    poll_end(L, 36, '0' if p.nof else '0xff', ((sT0, sQ, sQ+1, sQ+2), HPL-HP) if p.floc else None, sleep=p.fsleep)
    stamp(8)
    a("s_mov_b64 exec, -1")
    for k in range(4): a(f"v_add_f32 v{20+k}, v{20+k}, v{24+k}\nv_add_f32 v{28+k}, v{28+k}, v{32+k}")
    for k in range(4): a(f"v_add_f32 v{20+k}, v{20+k}, v{28+k}")
    treduce(20)
    c1 = -2*math.sqrt(2/math.pi)*math.log2(math.e)
    a(f"""v_lshlrev_b32 v15, 16, v15
    v_add_f32 v20, v20, v15
    v_mul_f32 v21, v20, v20
    v_mov_b32 v22, {f2u(c1)}
    v_fmac_f32 v22, {f2u(c1*0.044715)}, v21
    v_mul_f32 v21, v22, v20
    v_exp_f32 v21, v21
    v_add_f32 v21, 1.0, v21
    v_rcp_f32 v21, v21
    s_waitcnt lgkmcnt(0)
    v_sub_f32 v16, 1.0, v16
    v_mul_f32 v20, v20, v21
    v_mul_f32 v20, v20, v16
    v_cvt_pk_bf16_f32 v20, v20, v20
    s_mov_b32 exec_lo, 0x01ff01ff
    s_mov_b32 exec_hi, 0x01ff01ff
    ds_write_b32 v17, v20
    s_mov_b64 exec, -1
    s_waitcnt lgkmcnt(0)""")
    a("s_branch L_X_fgend")
    a.label("L_X_fg7")
    if p.floc:
        a(f"""s_lshl_b32 s{sT2}, s{sXcd}, 4
        s_add_u32 s{sT2}, s{sT2}, s{sI}
        s_mul_i32 s{sT2}, s{sT2}, 4608
        s_add_u32 s{sT2}, s{sT2}, {HPL}
        v_lshlrev_b32 v41, 7, v{vL}
        s_mov_b32 exec_hi, 15
        buffer_load_dword v42, v41, {R(rWS)}, s{sT2} offen sc1
        s_mov_b64 exec, -1""")
    srd(rB, pGW, SZ['gw'])
    a(f"""v_and_b32 v9, 31, v{vL}
    v_mul_u32_u24 v9, 36, v9
    v_lshrrev_b32 v12, 5, v{vL}
    v_mul_u32_u24 v11, 1152, v12
    v_add_u32 v11, v11, v9
    buffer_load_dwordx4 v[20:23], v11, {R(rA)}, 0 offen
    buffer_load_dwordx4 v[24:27], v11, {R(rA)}, 0 offen offset:16
    buffer_load_dword v28, v11, {R(rA)}, 0 offen offset:32
    buffer_load_dwordx4 v[32:35], v9, {R(rB)}, 0 offen
    buffer_load_dwordx4 v[36:39], v9, {R(rB)}, 0 offen offset:16
    buffer_load_dword v40, v9, {R(rB)}, 0 offen offset:32
    v_mov_b32 v13, 0
    v_lshlrev_b32 v10, 2, v12
    v_add_u32 v10, {L_GATE}, v10
    s_waitcnt vmcnt(0)""")
    gatemath()
    if p.fast:
        a(f"""s_mov_b32 exec_lo, 0x01010101
        s_mov_b32 exec_hi, 0x01010101
        buffer_load_dword v20, v{vL16}, {R(rWS)}, s{sX} offen sc1
        s_mov_b64 exec, -1""")
    if p.wogate:
        for k in range(p.wogate):
            a(f"s_add_u32 s{4+k}, s2, {53*k+11}\ns_and_b32 s{4+k}, s{4+k}, 127\ns_lshl_b32 s{4+k}, s{4+k}, 8\ns_add_u32 s{4+k}, s{4+k}, {HC + (128 if p.wgpos == 0 else 64)}")
        spoll_all([4+k for k in range(p.wogate)], 8)
    if p.xord == 2:
        srd(rC, pWO, 0 if p.nod1 & 2 else SZ['wo'])
        a("s_mov_b32 m0, 0\ns_barrier")
        for n in range(36):
            if n % 4 == 0 and n: a(f"s_addk_i32 m0, 4096\ns_add_u32 s{sX+2}, s{sX+2}, 4096")
            if n == p.wosplit: a("s_barrier")
            a(f"buffer_load_dwordx4 v{vL16}, {R(rC)}, s{sX+2} offen offset:{1024*(n%4)} {nt} lds")
        if p.wosplit >= 36: a("s_barrier")
        a("s_waitcnt vmcnt(0)\ns_branch L_X_fgend")
    a("s_barrier")
    if p.fflag:
        a(f"""s_lshl_b32 s{sT3}, s2, 7
        s_add_u32 s{sT3}, s{sT3}, {HD+64}
        s_mov_b64 exec, 0xffff
        buffer_store_dword v137, v135, {R(rWS)}, s{sT3} offen sc1
        s_mov_b64 exec, -1
        s_lshl_b32 s{sT3}, s{sXcd}, 7
        s_add_u32 s{sT3}, s{sT3}, {HD+64}
        s_add_u32 s{sQ}, s{rWS}, s{sT3}
        s_addc_u32 s{sQ+1}, s{rWS+1}, 0
        s_mov_b32 s{sCnt}, 0
L_ff:""")
        for k in range(16): a(f"s_load_dword s{4+k}, s[{sQ}:{sQ+1}], {1024*k} glc")
        a(f"s_add_u32 s{sCnt}, s{sCnt}, 1\ns_cmp_ge_u32 s{sCnt}, {p.maxspin}\ns_cbranch_scc1 L_ffd\ns_waitcnt lgkmcnt(0)")
        for k in range(16): a(f"s_cmp_lg_u32 s{4+k}, s{sT[0]}\ns_cbranch_scc1 L_ff")
        a("L_ffd:\ns_waitcnt lgkmcnt(0)")
    if p.fdel: a("s_barrier")
    if p.fmid < 8: a("s_barrier")
    a("s_waitcnt vmcnt(0)")
    a.label("L_X_fgend")
    if p.wb == 2: a(f"s_lshr_b32 s{sT0}, s2, 3\ns_lshl_b32 s{sT0}, s{sT0}, 3\ns_add_u32 s{sT0}, s{sT0}, s{sWave}\ns_cmp_eq_u32 s{sT0}, 7\ns_cbranch_scc0 L_nowb\nbuffer_wbl2 sc1\nL_nowb:")
    a("s_barrier")
    if p.wb == 1: a(f"s_lshr_b32 s{sT0}, s2, 3\ns_lshl_b32 s{sT0}, s{sT0}, 3\ns_add_u32 s{sT0}, s{sT0}, s{sWave}\ns_cmp_eq_u32 s{sT0}, 7\ns_cbranch_scc0 L_X_end\nbuffer_wbl2 sc1")
    a.label("L_X_end")
    stamp(11)
    finish('X')

    a.label("L_Y_main")
    vQA, vPA, vSF, vPF, vACC = 20, 36, 48, 112, 176
    vTG, vTO = 208, 212
    vQG = 216
    a(f"""s_and_b32 s{sT2}, s{sWave}, 3
    s_lshr_b32 s{sT3}, s{sWave}, 2
    v_and_b32 v9, 7, v{vJ}
    v_lshlrev_b32 v9, 1, v9
    v_lshrrev_b32 v10, 3, v{vJ}
    v_or_b32 v9, v9, v10
    v_lshlrev_b32 v9, 4, v9
    v_lshl_add_u32 v9, v{vG}, 8, v9
    v_lshl_add_u32 v9, v{vJ}, 10, v9
    s_lshl_b32 s{sT0}, s{sT2}, 14
    v_add_u32 v13, s{sT0}, v9
    s_lshl_b32 s{sT0}, s{sT3}, 14
    s_add_u32 s{sT0}, s{sT0}, {L_QIMG}
    v_add_u32 v{vQA}, s{sT0}, v9""")
    for ks in range(1, 16): a(f"v_xor_b32 v{vQA+ks}, {16*ks}, v{vQA}")
    a(f"""v_lshrrev_b32 v9, 2, v{vL}
    v_and_b32 v10, 7, v9
    v_lshlrev_b32 v10, 1, v10
    v_lshrrev_b32 v11, 3, v9
    v_or_b32 v10, v10, v11
    v_bfe_u32 v11, v{vL}, 1, 1
    v_xor_b32 v10, v10, v11
    v_lshlrev_b32 v10, 4, v10
    v_lshl_add_u32 v10, v9, 10, v10
    v_and_b32 v11, 1, v{vL}
    v_lshl_add_u32 v10, v11, 3, v10
    s_lshl_b32 s{sT0}, s{sT2}, 8
    v_add_u32 v{vPA}, s{sT0}, v10""")
    for ct in range(1, 8): a(f"v_xor_b32 v{vPA+ct}, {32*ct}, v{vPA}")
    lsbtags(vTG)
    a(f"s_bitcmp1_b32 s2, 0\ns_cselect_b32 s{sT0}, 0xff, 0")
    lsbtags(vTO, f"s{sT0}")
    a(f"s_sub_u32 s{sI}, s{sJ}, 4")
    if p.wrow:
        a(f"""v_and_b32 v11, 3, v{vL}
        v_lshlrev_b32 v14, 6, v11
        v_lshl_add_u32 v14, v{vG}, 4, v14
        s_lshl_b32 s{sQ+4}, s{sWave}, 8
        s_lshl_b32 s{sQ+5}, s{sH}, 11
        s_add_u32 s{sQ+4}, s{sQ+4}, s{sQ+5}
        s_add_u32 s{sQ+4}, s{sQ+4}, {ST}
        v_mov_b32 v47, v{vL16}
        s_lshl_b32 s{sQ+5}, s{sH}, 2
        s_add_u32 s{sQ+5}, s{sQ+5}, s{sI}
        s_lshl_b32 s{sQ+2}, s{sH}, 12
        s_lshl_b32 s{sQ+3}, s{sI}, 8
        s_add_u32 s{sQ+2}, s{sQ+2}, s{sQ+3}
        s_add_u32 s{sQ+3}, s{sQ+2}, {CXL}
        s_add_u32 s{sQ+2}, s{sQ+2}, {CX}
        s_mul_i32 s{sQ+5}, s{sQ+5}, {p.opstr}
        s_lshl_b32 vcc_lo, s{sWave}, 12
        s_add_u32 s{sQ+5}, s{sQ+5}, vcc_lo
        s_add_u32 s{sQ+5}, s{sQ+5}, {OP}""")
    else:
        a(f"""v_bfe_u32 v9, v{vL}, 3, 1
    v_lshlrev_b32 v14, {10 if p.cstat else 15}, v9
    v_and_b32 v11, 3, v{vL}
    v_lshl_add_u32 v14, v11, {6 if p.cstat else 11}, v14
    v_lshl_add_u32 v14, v{vG}, {4 if p.cstat else 9}, v14
    s_and_b32 s{sT2}, s{sWave}, 3
    s_lshr_b32 s{sT3}, s{sWave}, 2
    s_lshl_b32 s{sQ+4}, s{sT2}, {8 if p.cstat else 13}
    s_lshl_b32 s{sQ+5}, s{sH}, {11 if p.cstat else 4}
    s_add_u32 s{sQ+4}, s{sQ+4}, s{sQ+5}
    s_add_u32 s{sQ+4}, s{sQ+4}, {ST}""")
        a(f"""v_lshl_add_u32 v47, v9, 6, v{vG}
    v_mul_u32_u24 v47, {p.opstr if p.oplay else 256}, v47
    v_and_b32 v11, 7, v{vL}
    v_lshl_add_u32 v47, v11, 4, v47
    s_lshl_b32 s{sQ+5}, s{sH}, 2
    s_add_u32 s{sQ+5}, s{sQ+5}, s{sI}
    s_lshl_b32 s{sQ+2}, s{sH}, 12
    s_lshl_b32 s{sQ+3}, s{sI}, 8
    s_add_u32 s{sQ+2}, s{sQ+2}, s{sQ+3}
    s_add_u32 s{sQ+3}, s{sQ+2}, {CXL}
    s_add_u32 s{sQ+2}, s{sQ+2}, {CX}
    s_mul_i32 s{sQ+5}, s{sQ+5}, {256 if p.oplay else p.opstr}
    s_mul_i32 vcc_lo, s{sT2}, {16*p.opstr if p.oplay else 4096}
    s_add_u32 s{sQ+5}, s{sQ+5}, vcc_lo
    s_lshl_b32 vcc_lo, s{sT3}, {7 if not p.halfo else 11}
    s_add_u32 s{sQ+5}, s{sQ+5}, vcc_lo
    s_add_u32 s{sQ+5}, s{sQ+5}, {OP}""")
    if p.vglob:
        a(f"""v_bfe_u32 v11, v{vL}, 2, 1
        v_lshlrev_b32 v11, 1, v11
        v_xor_b32 v11, s{sT2}, v11
        v_lshl_add_u32 v14, v11, 8, v14
        s_lshl_b32 s{sQ+4}, s{sH}, 11
        s_add_u32 s{sQ+4}, s{sQ+4}, {ST}""")
    a(f"""s_bfe_u32 s{sT0}, s2, 0x10006
    s_lshl_b32 s{sT0}, s{sT0}, 15
    s_lshl_b32 s{sT1}, s{sWave}, 12
    s_add_u32 s{sT0}, s{sT0}, s{sT1}
    s_add_u32 s{sT0}, s{sT0}, {QL}
    s_add_u32 s{sT1}, s{sT1}, {L_QIMG}
    s_and_b32 vcc_lo, s{sWave}, 1
    s_lshl_b32 vcc_lo, vcc_lo, 7
    s_bfe_u32 vcc_hi, s{sWave}, 0x10001
    s_lshl_b32 vcc_hi, vcc_hi, 4
    s_or_b32 vcc_lo, vcc_lo, vcc_hi
    v_xor_b32 v16, vcc_lo, v{vL16}
    v_add_u32 v16, s{sT1}, v16
    v_xor_b32 v17, 32, v16
    v_xor_b32 v18, 64, v16
    v_xor_b32 v19, 0x60, v16
    """)
    a(f"""s_lshl_b32 s{sQ+9}, s{sT3}, 12
    s_add_u32 s{sQ+9}, s{sQ+9}, {L_SX}
    v_add_u32 v10, s{sQ+9}, v{vL16}
    s_lshl_b32 s{sQ+9}, s{sT2}, 10
    v_add_u32 v11, s{sQ+9}, v10
    v_mul_u32_u24 v12, {4096 if p.oplay else 16*p.opstr}, v{vG}
    v_lshl_add_u32 v12, v{vJ}, 4, v12
    s_sub_u32 s{sQ+9}, s2, 128
    s_lshl_b32 s{sT1}, s{sQ+9}, {4 if p.cstat else 9}
    v_lshlrev_b32 v15, {11 if p.cstat else 4}, v{vL}
    s_lshl_b32 vcc_lo, s{sT3}, {15 if p.cstat else 8}
    s_add_u32 s{sT1}, s{sT1}, vcc_lo
    s_add_u32 s{sT1}, s{sT1}, {ST}
    s_mul_i32 s{sQ+10}, s{sQ+9}, {p.opstr if p.oplay else 256}
    s_mul_i32 vcc_lo, s{sT3}, {16384 if p.oplay else 64*p.opstr}
    s_add_u32 s{sQ+10}, s{sQ+10}, vcc_lo
    s_mul_i32 vcc_lo, s{sT2}, {256 if p.oplay else p.opstr}
    s_add_u32 s{sQ+10}, s{sQ+10}, vcc_lo
    s_add_u32 s{sQ+10}, s{sQ+10}, {OP}
    s_lshl_b32 s{sQ+9}, s{sQ+9}, 8
    s_lshl_b32 vcc_lo, s{sT3}, 7
    s_add_u32 s{sQ+9}, s{sQ+9}, vcc_lo
    s_add_u32 s{sQ+9}, s{sQ+9}, {HC}""")
    if p.uv1 < 8: uvsetup(sQ)
    if p.qmid:
        ckvaddr(); srd(rC, pCKV, SZ['ckv'])
    if p.cflag and p.cprog:
        a(f"""s_bfe_u32 s{sQ+9}, s2, 0x20004
        s_mul_i32 s{sQ+9}, s{sQ+9}, {p.cstr}
        s_and_b32 vcc_lo, s2, 15
        s_lshl_b32 vcc_lo, vcc_lo, 1
        s_add_u32 s{sQ+9}, s{sQ+9}, vcc_lo
        s_bfe_u32 vcc_lo, s2, 0x10006
        s_lshl_b32 vcc_lo, vcc_lo, 5
        s_add_u32 s{sQ+9}, s{sQ+9}, vcc_lo
        s_add_u32 s{sQ+9}, s{sQ+9}, {FP2}
        v_mul_u32_u24 v46, {8*p.cstr}, v{vL}""")
    elif p.cflag:
        a(f"""s_bfe_u32 s{sQ+9}, s2, 0x30004
        s_mul_i32 s{sQ+9}, s{sQ+9}, {p.cstr}
        s_and_b32 vcc_lo, s2, 15
        s_lshl_b32 vcc_lo, vcc_lo, 2
        s_add_u32 s{sQ+9}, s{sQ+9}, vcc_lo
        s_add_u32 s{sQ+9}, s{sQ+9}, {FP2}
        v_mul_u32_u24 v46, {8*p.cstr}, v{vL}""")
        if p.cfine: a(f"s_mul_i32 vcc_lo, s{sWave}, {16*p.cstr}\ns_add_u32 s{sQ+9}, s{sQ+9}, vcc_lo")
    for k in range(4): a(f"v_mov_b32 v{248+k}, 0x3f803f80\nv_mov_b32 v{252+k}, s{sT[0]}")
    if p.own:
        a(f"""s_lshl_b32 vcc_lo, s{sT3}, 11
        s_add_u32 vcc_lo, vcc_lo, {L_PX}
        v_lshlrev_b32 v253, 3, v{vL}
        v_add_u32 v253, vcc_lo, v253
        s_lshl_b32 vcc_lo, s{sT2}, 9
        v_add_u32 v254, vcc_lo, v253""")
    def qloads():
        for n in range(4): a(f"buffer_load_dwordx4 {V(vQG+4*n)}, v{vL16}, {R(rWS)}, s{sT0} offen offset:{1024*(n if not p.emub else n&1)} sc1")
    if p.qmid:
        def tilefr(T):
            Ls = a.newlabel('nos')
            a(f"s_cmp_lg_u32 s{sT2}, {T}\ns_cbranch_scc1 {Ls}")
            for ks in range(16): a(f"v_xor_b32 v9, {16*ks}, v13\nds_read_b128 {V(vSF+4*ks)}, v9")
            a.label(Ls)
            for ct in range(8): a(f"ds_read_b64_tr_b16 {V(vPF+8*ct+2*T, 2)}, v{vPA+ct} offset:{16384*T}")
        def qw(n): a(f"ds_write_b128 v{16+n}, {V(vQG+4*n)} offset:{1024*n}")
        for T in range(3):
            a(f"s_waitcnt vmcnt({8-4*T + (8 if T >= p.qat else 0)})\ns_barrier")
            if T == p.qat - 1:
                qloads()
                a(f"s_cmp_lt_u32 s{sWave}, 4\ns_cbranch_scc1 L_Y_not3")
                for i in range(12, 16): ckv(i)
                a.label("L_Y_not3")
            tilefr(T)
        Lq = a.newlabel('qchk'); L = a.newlabel('poll'); Lw = a.newlabel('qw')
        a(f"""s_mov_b32 s{sCnt}, 0
        s_waitcnt vmcnt(4)
        s_cmp_lt_u32 s{sWave}, 4
        s_cbranch_scc1 {Lw}
        s_branch {Lq}""")
        a.label(L)
        qloads()
        a("s_mov_b64 exec, -1")
        a.label(Lw)
        a("s_waitcnt vmcnt(0)")
        a.label(Lq)
        for n in range(4): qw(n); chkv(9, vQG+4*n, vTG, n == 0)
        poll_end_masked(L, 9, '0x10001', p.bsleep)
        a("s_waitcnt vmcnt(0) lgkmcnt(0)\ns_barrier")
        stamp(3); cyc(1)
        tilefr(3)
    else:
        for T in range(4):
            if T == p.qat:
                if p.bflag:
                    a(f"""s_and_b32 s{sQ+8}, s2, 15
                s_lshl_b32 s{sQ+8}, s{sQ+8}, 3
                s_add_u32 s{sQ+8}, s{sQ+8}, s{sWave}
                s_mul_i32 s{sQ+8}, s{sQ+8}, {p.cstr}
                s_add_u32 s{sQ+8}, s{sQ+8}, {FP2 + 0x80000}
                s_mov_b32 s{sQ+6}, s{sT[0]}
                s_mov_b32 s{sQ+7}, s{sT[0]}
                s_mov_b32 s{sCnt}, 0
L_bf:
                s_load_dwordx16 s[4:19], s[{rWS}:{rWS+1}], s{sQ+8} glc
                s_add_u32 s{sCnt}, s{sCnt}, 1
                s_cmp_ge_u32 s{sCnt}, {p.maxspin}
                s_cbranch_scc1 L_bfd
                s_waitcnt lgkmcnt(0)""")
                    for k in range(8): a(f"s_cmp_lg_u64 s[{4+2*k}:{5+2*k}], s[{sQ+6}:{sQ+7}]\ns_cbranch_scc1 L_bf")
                    a("L_bfd:\ns_waitcnt lgkmcnt(0)")
                qloads()
                if p.uv2:
                    a(f"s_cmp_lt_u32 s{sWave}, 4\ns_cbranch_scc1 L_Y_nouv2")
                    uvdma(sQ, p.uv1, p.uv1 + p.uv2)
                    a.label("L_Y_nouv2")
            a(f"s_waitcnt vmcnt({12-4*T + (4+p.uv2 if T >= p.qat else 0)})\ns_barrier")
            if p.gate == 17 + T:
                a(f"""s_sub_u32 vcc_lo, s2, 128
            s_lshl_b32 vcc_lo, vcc_lo, 7
            s_add_u32 vcc_lo, vcc_lo, {HG}
            s_cmp_eq_u32 s{sWave}, 1
            s_cselect_b32 exec_lo, 0xf, 0
            s_mov_b32 exec_hi, 0
            buffer_store_dwordx4 v[252:255], v{vL16}, {R(rWS)}, vcc_lo offen sc1
            s_mov_b64 exec, -1""")
            if T == 3:
                stamp(3); cyc(1)
                if p.qat == 4: qloads()
            Ls = a.newlabel('nos'); Ln = a.newlabel('nof')
            if p.solo: a(f"s_cmp_ge_u32 s{sWave}, 4\ns_cbranch_scc1 {Ln}")
            a(f"s_cmp_lg_u32 s{sT2}, {T}\ns_cbranch_scc1 {Ls}")
            for ks in range(16):
                a(f"v_xor_b32 v9, {16*ks}, v13\nds_read_b128 {V(vSF+4*ks)}, v9")
            a.label(Ls)
            for ct in range(8):
                a(f"ds_read_b64_tr_b16 {V(vPF+8*ct+2*T, 2)}, v{vPA+ct} offset:{16384*T}")
            if p.solo: a.label(Ln)
        if p.qsplit: a(f"s_cmp_eq_u32 s{sT3}, 0\ns_cbranch_scc1 L_Y_q\ns_barrier\nL_Y_q:")
        Lq = a.newlabel('qchk'); L = a.newlabel('poll'); Lw = a.newlabel('qw')
        def qw(n): a(f"ds_write_b128 v{16+n}, {V(vQG+4*n)} offset:{1024*n}")
        a(f"s_mov_b32 s{sCnt}, 0")
        if p.uv2:
            a(f"s_cmp_lt_u32 s{sWave}, 4\ns_cbranch_scc1 {Lw}")
            for n in range(4):
                a(f"s_waitcnt vmcnt({3-n+p.uv2})"); qw(n); chkv(9, vQG+4*n, vTG, n == 0)
            a(f"s_branch {Lq}")
        else:
            a(f"s_branch {Lw}")
        a.label(L)
        qloads()
        a("s_mov_b64 exec, -1")
        a.label(Lw)
        for n in range(4):
            a(f"s_waitcnt vmcnt({3-n})"); qw(n); chkv(9, vQG+4*n, vTG, n == 0)
        a.label(Lq)
        poll_end_masked(L, 9, '0x10001', p.bsleep)
    if p.stamp: a(f"s_mov_b32 s{sStamp+24}, s{sCnt}")
    stamp(4)
    a(f"s_mov_b32 s{sT0}, s{sQ+10}\nv_mov_b32 v9, 0x10001")
    def hint(pos):
        if p.hintpos == pos and p.cfine:
            a(f"""s_mov_b64 exec, 3
            buffer_store_dword v252, v46, {R(rWS)}, s{sQ+9} offen sc1
            s_mov_b64 exec, -1""")
        elif p.hintpos == pos and p.cflag:
            a(f"""s_cmp_eq_u32 s{sWave}, {p.cw}
            s_cbranch_scc0 L_Y_noh
            s_mov_b32 exec_lo, {((1 << p.crep) - 1) & 0xffffffff}
            s_mov_b32 exec_hi, {((1 << p.crep) - 1) >> 32}
            buffer_store_{'short' if p.cprog else 'dword'} v252, v46, {R(rWS)}, s{sQ+9} offen sc1
            s_mov_b64 exec, -1
L_Y_noh:""")
        elif p.hintpos == pos:
            a(f"""s_cmp_eq_u32 s{sT2}, 3
            s_cselect_b32 exec_lo, 0xf, 0
            s_mov_b32 exec_hi, 0
            buffer_store_dwordx4 v[252:255], v{vL16}, {R(rWS)}, s{sQ+9} offen sc1
            s_mov_b64 exec, -1""")
    if p.solo:
        NQ = 8
        cyc(2)
        a("s_waitcnt lgkmcnt(0)\ns_barrier")
        stamp(5); cyc(3)
        a(f"s_cmp_ge_u32 s{sWave}, 4\ns_cbranch_scc1 L_Y_help\ns_setprio 2")
        lds = []
        def L_(tag, text): lds.append(tag); a(text)
        def W_(tag):
            n = len(lds) - 1 - lds.index(tag)
            assert n <= 15
            a(f"s_waitcnt lgkmcnt({n})")
        def qread(k): L_(('q', k), f"ds_read_b128 {V(vQG+4*(k%NQ))}, v{vQA+(k%16)} offset:{16384*(k//16)}")
        def softmax_ops(S, m, P):
            pk = lambda r: f"v_pk_add_f32 v[{r}:{r+1}], v[{r}:{r+1}], v[{m}:{m+1}] op_sel_hi:[1,0] neg_lo:[0,1] neg_hi:[0,1]"
            A = [f"v_max3_f32 v{m}, v{S}, v{S+1}, v{S+2}", f"v_max3_f32 v{m+1}, v{S+3}, v{S+4}, v{S+5}",
                 f"v_max3_f32 v{m}, v{m}, v{S+6}, v{S+7}", f"v_max3_f32 v{m+1}, v{m+1}, v{S+8}, v{S+9}",
                 f"v_max3_f32 v{m}, v{m}, v{S+10}, v{S+11}", f"v_max3_f32 v{m+1}, v{m+1}, v{S+12}, v{S+13}",
                 f"v_max3_f32 v{m}, v{m}, v{S+14}, v{S+15}", f"v_max_f32 v{m}, v{m}, v{m+1}",
                 f"v_mov_b32 v{m+1}, v{m}", None, f"v_permlane32_swap_b32 v{m}, v{m+1}", f"v_max_f32 v{m}, v{m}, v{m+1}",
                 f"v_mov_b32 v{m+1}, v{m}", None, f"v_permlane16_swap_b32 v{m}, v{m+1}", f"v_max_f32 v{m}, v{m}, v{m+1}"]
            B = [pk(S+2*k) for k in range(4)] + [f"v_exp_f32 v{S+k}, v{S+k}" for k in range(8)] + [pk(S+8), pk(S+10)] + \
                [f"v_cvt_pk_bf16_f32 v{P+k}, v{S+2*k}, v{S+2*k+1}" for k in range(4)]
            C = [pk(S+12), pk(S+14)] + [f"v_exp_f32 v{S+k}, v{S+k}" for k in range(8, 16)] + \
                [f"v_cvt_pk_bf16_f32 v{P+k}, v{S+2*k}, v{S+2*k+1}" for k in range(4, 8)]
            return A + B, C
        def fill(q, n):
            k = 0
            while q and k < n:
                x = q.pop(0)
                if x is None: break
                if callable(x): x()
                else: a(x)
                k += 2 if (isinstance(x, str) and 'v_exp' in x) else 1
        def drain(q):
            while q: fill(q, 99)
        sa0, sa1, S0, S1, P0, P1, m0_, m1_, AC0, AC1, O0, O1 = 208, 248, 48, 64, 36, 20, 16, 18, 176, 80, 216, 232
        for k in range(NQ): qread(k)
        for k in range(16):
            W_(('q', k)); mfma(sa0, vSF+4*k, vQG+4*(k % NQ), '0' if k == 0 else None); qread(k+NQ)
        cyc(4)
        sm0, sm0c = softmax_ops(S0, m0_, P0)
        for k in range(16, 32):
            W_(('q', k)); mfma(sa1, vSF+4*(k-16), vQG+4*(k % NQ), '0' if k == 16 else None)
            if k + NQ < 32: qread(k+NQ)
            if k == 18: L_('w0', f"ds_write_b128 v11, {V(sa0)}")
            if k == 21:
                W_('w0'); a("s_barrier")
                for T in range(4): L_(('s0', T), f"ds_read_b128 {V(S0+4*T)}, v10 offset:{1024*T}")
            if k == 25: W_(('s0', 3))
            if k >= 25: fill(sm0, p.f1)
        cyc(5)
        fill(sm0, 4); fill(sm0, 4); fill(sm0, 4)
        L_('w1', f"ds_write_b128 v11, {V(sa1)} offset:4096")
        fill(sm0, 10)
        W_('w1'); a("s_barrier")
        for T in range(4): L_(('s1', T), f"ds_read_b128 {V(S1+4*T)}, v10 offset:{4096+1024*T}")
        drain(sm0)
        hint(0); cyc(6)
        sm1, sm1c = softmax_ops(S1, m1_, P1)
        for ct in range(8):
            mfma(AC0+4*ct, P0, vPF+8*ct, '0'); fill(sm0c, p.f2)
        drain(sm0c)
        W_(('s1', 3)); fill(sm1, 2)
        hint(1); cyc(7)
        for ct in range(8):
            mfma(AC0+4*ct, P0+4, vPF+8*ct+4); fill(sm1, p.f2)
        drain(sm1)
        hint(2); cyc(8)
        def epi(AC, O, k):
            return [f"v_cvt_pk_bf16_f32 v{O+4*r+k}, v{AC+8*k+r}, v{AC+8*k+4+r}" for r in range(4)] + \
                   [f"v_bfi_b32 v{O+4*r+k}, v9, v{vTO+k}, v{O+4*r+k}" for r in range(4)]
        def epir(AC, O, r):
            return [f"v_cvt_pk_bf16_f32 v{O+4*r+k}, v{AC+8*k+r}, v{AC+8*k+4+r}" for k in range(4)] + \
                   [f"v_bfi_b32 v{O+4*r+k}, v9, v{vTO+k}, v{O+4*r+k}" for k in range(4)] + \
                   [f"buffer_store_dwordx4 {V(O+4*r)}, v12, {R(rWS)}, s{sT0} offen sc1\ns_add_u32 s{sT0}, s{sT0}, {4*p.opstr if r < 3 else 52*p.opstr}"]
        for ct in range(8):
            mfma(AC1+4*ct, P1, vPF+8*ct, '0'); fill(sm1c, p.f2)
        drain(sm1c)
        e0 = epir(AC0, O0, 0) + epir(AC0, O0, 1) + epir(AC0, O0, 2) + epir(AC0, O0, 3)
        fill(e0, 2)
        hint(4); cyc(9)
        for ct in range(8):
            mfma(AC1+4*ct, P1+4, vPF+8*ct+4); fill(e0, p.f2)
        drain(e0)
        hint(5); cyc(10)
        for r in range(4): drain(epir(AC1, O1, r))
        hint(3)
        stamp(7); cyc(11)
        a("s_branch L_Y_vv")
        a.label("L_Y_help")
        uvdma(sQ, p.uv1 + p.uv2, 8 - p.uv3)
        a(f"""s_lshl_b32 vcc_lo, s{sT2}, 12
        s_add_u32 vcc_lo, vcc_lo, {L_SX}
        v_add_u32 v10, vcc_lo, v{vL16}
        s_sub_u32 s{sT1}, s{sT1}, 32768
        s_lshl_b32 vcc_lo, s{sT2}, 15
        s_add_u32 s{sT1}, s{sT1}, vcc_lo
        s_barrier
        s_barrier
        s_cmp_ge_u32 s{sWave}, 6
        s_cbranch_scc1 L_Y_vv""")
        for T in range(4): a(f"ds_read_b128 {V(48+4*T)}, v10 offset:{1024*T}")
        a("s_waitcnt lgkmcnt(0)")
        h, hc = softmax_ops(48, 64, 72)
        for x in h + hc:
            if x and 'cvt' not in x: a(x)
        for k in range(4): a(f"v_pk_add_f32 v[{48+2*k}:{49+2*k}], v[{48+2*k}:{49+2*k}], v[{56+2*k}:{57+2*k}]")
        a("""v_pk_add_f32 v[48:49], v[48:49], v[52:53]
        v_pk_add_f32 v[50:51], v[50:51], v[54:55]
        v_pk_add_f32 v[48:49], v[48:49], v[50:51]
        v_add_f32 v65, v48, v49""")
        allred_groups("v_add_f32", 65, 66)
        a(f"""v_mov_b32 v66, s{sT[0]}
        s_mov_b64 exec, 0xffff
        buffer_store_dwordx4 v[64:67], v15, {R(rWS)}, s{sT1} offen sc1
        s_mov_b64 exec, -1""")
        stamp(7)
        a.label("L_Y_vv")
        a("s_setprio 0")
    else:
        NQ = 8
        if p.qsplit:
            p.qpre = 0
            a(f"s_cmp_eq_u32 s{sT3}, 0\ns_cbranch_scc1 L_Y_s")
            uvdma(sQ, p.uv1 + p.uv2, 8 - p.uv3)
            if p.prio: a(f"s_setprio {p.prio}")
            a.label("L_Y_s")
            a("s_waitcnt lgkmcnt(0)\ns_barrier")
            stamp(5)
        else:
            cyc(2)
            a("s_waitcnt lgkmcnt(0)" if p.qmid else "s_waitcnt lgkmcnt(0)\ns_barrier")
            stamp(5); cyc(3)
            for ks in range(p.qpre): a(f"ds_read_b128 {V(vQG+4*ks)}, v{vQA+ks}")
            a(f"""s_cmp_eq_u32 s{sT3}, 0
    s_cbranch_scc1 L_Y_s""")
            uvdma(sQ, p.uv1 + p.uv2, 8 - p.uv3)
            a("s_barrier")
            if p.prio: a(f"s_setprio {p.prio}")
            a.label("L_Y_s")
        cyc(4)
        for ks in range(p.qpre, NQ): a(f"ds_read_b128 {V(vQG+4*ks)}, v{vQA+ks}")
        for ks in range(16):
            rem = min(15, ks+NQ-1) - ks
            a(f"s_waitcnt lgkmcnt({rem})")
            mfma(vACC, vSF+4*ks, vQG+4*(ks % NQ), '0' if ks == 0 else None)
            if ks + NQ < 16: a(f"ds_read_b128 {V(vQG+4*(ks%NQ))}, v{vQA+ks+NQ}")
        cyc(5)
        a(f"""ds_write_b128 v11, {V(vACC)}
    s_waitcnt lgkmcnt(0)
    s_barrier""")
        stamp(6); cyc(6)
        vS = 48
        for T in range(4): a(f"ds_read_b128 {V(vS+4*T)}, v10 offset:{1024*T}")
        hint(0)
        a(f"""s_waitcnt lgkmcnt(2)
    v_max3_f32 v64, v{vS}, v{vS+1}, v{vS+2}
    v_max3_f32 v65, v{vS+3}, v{vS+4}, v{vS+5}
    v_max3_f32 v64, v64, v{vS+6}, v{vS+7}
    s_waitcnt lgkmcnt(0)
    v_max3_f32 v65, v65, v{vS+8}, v{vS+9}
    v_max3_f32 v64, v64, v{vS+10}, v{vS+11}
    v_max3_f32 v65, v65, v{vS+12}, v{vS+13}
    v_max3_f32 v64, v64, v{vS+14}, v{vS+15}
    v_max_f32 v64, v64, v65""")
        allred_groups("v_max_f32", 64, 65)
        cyc(7)
        def lead_bar():
            a(f"s_cmp_eq_u32 s{sT3}, 0\ns_cbranch_scc0 L_Y_p\ns_barrier\nL_Y_p:")
        def epi(k):
            return [f"v_cvt_pk_bf16_f32 v{80+4*r+k}, v{vACC+8*k+r}, v{vACC+8*k+4+r}" for r in range(4)] + \
                   [f"v_bfi_b32 v{80+4*r+k}, v9, v{vTO+k}, v{80+4*r+k}" for r in range(4)]
        if p.own:
            vP = 72
            for k in range(4): a(f"v_sub_f32 v{vACC+k}, v{vACC+k}, v64")
            for k in range(4): a(f"v_exp_f32 v{vACC+k}, v{vACC+k}")
            a(f"""v_mov_b32 v66, s{sT[0]}
            v_cvt_pk_bf16_f32 v70, v{vACC}, v{vACC+1}
            v_cvt_pk_bf16_f32 v71, v{vACC+2}, v{vACC+3}
            ds_write_b64 v254, v[70:71]
            s_waitcnt lgkmcnt(0)
            s_barrier""")
            cyc(8)
            for T in range(4): a(f"ds_read_b64 v[{vP+2*T}:{vP+2*T+1}], v253 offset:{512*T}")
            hint(1)
            a(f"""s_cmp_eq_u32 s{sT2}, 0
            s_cselect_b32 vcc_lo, 0xffff, 0
            s_waitcnt lgkmcnt(0)
            s_cbranch_scc0 L_Y_nol""")
            mfma(68, 248, vP, '0')
            mfma(68, 248, vP+4)
            a.label("L_Y_nol")
            n = 0; q = []
            for k in range(4):
                for (c, kk) in ((0, 0), (1, 0), (0, 1), (1, 1)):
                    ct = 2*k + c
                    mfma(vACC+4*ct, vP+4*kk, vPF+8*ct+4*kk, '0' if kk == 0 else None)
                    n += 1
                    if n == p.x3: lead_bar()
                    if n == 8:
                        if not p.stlate:
                            a(f"""v_mov_b32 v65, v68
                        s_mov_b32 exec_lo, vcc_lo
                        s_mov_b32 exec_hi, 0
                        buffer_store_dwordx4 v[64:67], v15, {R(rWS)}, s{sT1} offen sc1
                        s_mov_b64 exec, -1""")
                        hint(2)
                        q = epi(0) + epi(1)
                    elif n > 8:
                        a(q.pop(0)); a(q.pop(0))
            rest = q + epi(2)
            if p.x3 > 16: lead_bar()
        else:
            if p.bpos == 1: lead_bar()
            vP = 72
            def pksub(r): return f"v_pk_add_f32 v[{r}:{r+1}], v[{r}:{r+1}], v[64:65] op_sel_hi:[1,0] neg_lo:[0,1] neg_hi:[0,1]"
            for k in range(4): a(pksub(vS+2*k))
            for k in range(8): a(f"v_exp_f32 v{vS+k}, v{vS+k}")
            for k in range(4, 8): a(pksub(vS+2*k))
            for k in range(4): a(f"v_cvt_pk_bf16_f32 v{vP+k}, v{vS+2*k}, v{vS+2*k+1}")
            hint(1); cyc(8)
            if p.diag == 1: stamp(1)
            if p.bpos == 0: lead_bar()
            for ct in range(8):
                mfma(vACC+4*ct, vP, vPF+8*ct, '0')
                a(f"v_exp_f32 v{vS+8+ct}, v{vS+8+ct}")
                if ct in (3, 5, 7): a(f"v_cvt_pk_bf16_f32 v{vP+4+(ct-3)//2}, v{vS+8+ct-3}, v{vS+8+ct-2}")
            a(f"v_mov_b32 v66, s{sT[0]}\nv_cvt_pk_bf16_f32 v{vP+7}, v{vS+14}, v{vS+15}")
            hint(2)
            if p.diag == 1: stamp(4)
            a(f"""s_cmp_eq_u32 s{sT2}, 0
    s_cbranch_scc0 L_Y_nol""")
            mfma(68, 248, vP, '0')
            mfma(68, 248, vP+4)
            a.label("L_Y_nol")
            def epi(k):
                return [f"v_cvt_pk_bf16_f32 v{80+4*r+k}, v{vACC+8*k+r}, v{vACC+8*k+4+r}" for r in range(4)] + \
                       [f"v_bfi_b32 v{80+4*r+k}, v9, v{vTO+k}, v{80+4*r+k}" for r in range(4)]
            for ct in range(4): mfma(vACC+4*ct, vP+4, vPF+8*ct+4)
            a(f"""s_cmp_eq_u32 s{sT2}, 0
    s_cselect_b32 vcc_lo, 0xffff, 0""")
            mfma(vACC+16, vP+4, vPF+36)
            a("s_nop 0\nv_mov_b32 v65, v68")
            mfma(vACC+20, vP+4, vPF+44)
            if not p.stlate:
                a(f"""s_mov_b32 exec_lo, vcc_lo
    s_mov_b32 exec_hi, 0
    {'s_cbranch_execz L_Y_nost2' if p.stbr else ''}
    buffer_store_dwordx4 v[64:67], v15, {R(rWS)}, s{sT1} offen sc1
L_Y_nost2:
    s_mov_b64 exec, -1""")
            e = epi(0)
            mfma(vACC+24, vP+4, vPF+52)
            for x in e[:3]: a(x)
            mfma(vACC+28, vP+4, vPF+60)
            rest = e[3:] + epi(1) + epi(2)
        if p.diag == 1: stamp(2)
        cyc(9)
        for x in rest: a(x)
        cyc(10)
        if p.diag == 6: a(f"s_memrealtime s[{sStamp+6}:{sStamp+7}]")
        hint(4)
        if p.stlate:
            a(f"""s_cmp_eq_u32 s{sT2}, 0
            s_cbranch_scc0 L_Y_nost
            v_mov_b32 v65, v68
            s_mov_b64 exec, 0xffff
            buffer_store_dwordx4 v[64:67], v15, {R(rWS)}, s{sT1} offen sc1
            s_mov_b64 exec, -1
L_Y_nost:""")
        for r in range(4):
            a(f"v_cvt_pk_bf16_f32 v{83+4*r}, v{vACC+24+r}, v{vACC+28+r}")
            a(f"v_bfi_b32 v{83+4*r}, v9, v{vTO+3}, v{83+4*r}")
            if r: hint(4+r)
            if p.halfo: a("s_mov_b32 exec_lo, 0x00ff00ff\ns_mov_b32 exec_hi, 0x00ff00ff")
            a(f"buffer_store_dwordx4 {V(80+4*r)}, v12, {R(rWS)}, s{sT0} offen sc1")
            if p.halfo: a("s_mov_b64 exec, -1")
            if r < 3: a(f"s_add_u32 s{sT0}, s{sT0}, {1024 if p.oplay else 4*p.opstr}")
        hint(3)
        stamp(7); cyc(11)
        if p.diag == 6: a(f"s_waitcnt vmcnt(0)\ns_memrealtime s[{sStamp+8}:{sStamp+9}]")
    if p.vglob: a("v_xor_b32 v13, 0x100, v14")
    if p.uv3:
        a(f"s_cmp_lt_u32 s{sWave}, 4\ns_cbranch_scc1 L_Y_nouv3")
        uvdma(sQ, 8 - p.uv3, 8)
        a.label("L_Y_nouv3")
    if p.prio: a("s_setprio 0")
    def latesetup():
        a(f"""v_bfe_u32 v9, v{vL}, 2, 2
    v_lshl_add_u32 v134, {'v9, 4, v%d' % vG if p.uvlin else 'v%d, 3, v9' % vG}
    v_lshlrev_b32 v134, 8, v134
    v_and_b32 v11, 1, v{vG}
    v_lshl_add_u32 v9, v11, 2, v9
    v_lshlrev_b32 v9, 1, v9
    v_bfe_u32 v11, v{vL}, 1, 1
    s_lshl_b32 s{sT0}, s{sWave}, 1
    v_add_u32 v11, s{sT0}, v11
    v_xor_b32 v9, v9, v11
    v_lshl_add_u32 v134, v9, 4, v134
    v_and_b32 v9, 1, v{vL}
    v_lshl_add_u32 v134, v9, 3, v134
    v_add_u32 v134, {L_WUVY}, v134""")
        a(f"v_bfe_u32 v9, v{vL}, 3, 1\nv_and_b32 v11, 7, v{vL}")
        a(f"v_and_b32 v122, 1, v{vG}\nv_mul_u32_u24 v122, 0xff, v122")
        lsbtags(124, "v122")
        if p.wrow:
            a(f"""v_and_b32 v123, 1, v{vG}
        v_lshlrev_b32 v122, 4, v{vJ}
        v_lshl_add_u32 v122, v123, 3, v122
        s_mul_i32 s{sQ+7}, s{sWave}, 272
        s_add_u32 s{sQ+7}, s{sQ+7}, {L_AIMGY}
        v_add_u32 v122, s{sQ+7}, v122
        s_lshl_b32 s{sQ+7}, s{sT3}, 5
        s_lshl_b32 s{sQ+8}, s{sT2}, 2
        s_add_u32 s{sQ+7}, s{sQ+7}, s{sQ+8}
        s_add_u32 s{sQ+7}, s{sQ+7}, {L_VSTY}
        v_mov_b32 v128, s{sQ+7}
        v_lshlrev_b32 v129, 5, v123
        v_add_u32 v129, {L_VSTY}, v129""")
        else:
            a(f"""v_mul_u32_u24 v122, {4*272}, v9
    v_lshl_add_u32 v122, v11, 4, v122
    v_and_b32 v123, 1, v{vG}
    v_lshl_add_u32 v122, v123, 3, v122
    s_mul_i32 s{sQ+7}, s{sT2}, 272
    s_lshl_b32 s{sQ+8}, s{sT3}, 7
    s_add_u32 s{sQ+7}, s{sQ+7}, s{sQ+8}
    s_add_u32 s{sQ+7}, s{sQ+7}, {L_AIMGY}
    v_add_u32 v122, s{sQ+7}, v122""")
            a(f"""v_lshlrev_b32 v128, 5, v9
    s_lshl_b32 s{sQ+7}, s{sT2}, 2
    s_add_u32 s{sQ+7}, s{sQ+7}, {L_VSTY}
    v_add_u32 v128, s{sQ+7}, v128
    v_lshlrev_b32 v129, 5, v123
    v_add_u32 v129, {L_VSTY}, v129""")
        a(f"""v_mul_u32_u24 v130, 272, v11
    v_lshl_add_u32 v130, v{vG}, 4, v130
    v_add_u32 v130, {L_AIMGY}, v130""")
        a(f"""v_lshlrev_b32 v131, 5, v{vG}
    v_lshl_add_u32 v131, v11, 2, v131
    v_lshl_add_u32 v131, v9, 6, v131
    s_lshr_b32 s{sQ+7}, s{sWave}, 1
    s_lshl_b32 s{sQ+7}, s{sQ+7}, 10
    s_and_b32 s{sQ+8}, s{sWave}, 1
    s_lshl_b32 s{sQ+8}, s{sQ+8}, 7
    s_add_u32 s{sQ+7}, s{sQ+7}, s{sQ+8}
    v_add_u32 v131, s{sQ+7}, v131
    v_and_b32 v132, 3, v{vL}
    v_mul_u32_u24 v132, 37, v132
    v_add_u32 v132, s{sT[0]}, v132""")
        a("v_mov_b32 v133, 1")
    if p.early == 1: latesetup()
    if p.cfine:
        a(f"""s_lshr_b32 s{sQ}, s{sH}, 4
        s_lshl_b32 s{sQ}, s{sQ}, 2
        s_add_u32 s{sQ}, s{sQ}, s{sI}
        s_lshl_b32 s{sQ}, s{sQ}, 1
        s_and_b32 vcc_lo, s{sH}, 1
        s_add_u32 s{sQ}, s{sQ}, vcc_lo
        s_lshl_b32 s{sQ}, s{sQ}, 3
        s_add_u32 s{sQ}, s{sQ}, s{sWave}
        s_mul_i32 s{sQ}, s{sQ}, {p.cstr}
        s_add_u32 s{sQ}, s{sQ}, {FP2}
        s_mov_b32 s{sQ+6}, s{sT[0]}
        s_mov_b32 s{sQ+7}, s{sT[0]}
        s_mov_b32 s{sCnt}, 0
        s_mov_b32 s{sQ+8}, 15
L_cf:
        s_load_dwordx16 s[4:19], s[{rWS}:{rWS+1}], s{sQ} glc
        s_add_u32 s{sCnt}, s{sCnt}, 1
        s_cmp_ge_u32 s{sCnt}, {p.maxspin}
        s_cbranch_scc1 L_cfd
        s_waitcnt lgkmcnt(0)""")
        for u in range(4):
            a(f"""s_bitcmp0_b32 s{sQ+8}, {u}
            s_cbranch_scc1 L_cf{u}
            s_cmp_lg_u64 s[{4+4*u}:{5+4*u}], s[{sQ+6}:{sQ+7}]
            s_cbranch_scc1 L_cf{u}
            s_cmp_lg_u64 s[{6+4*u}:{7+4*u}], s[{sQ+6}:{sQ+7}]
            s_cbranch_scc1 L_cf{u}
            buffer_load_dwordx4 {V(56+4*u)}, v47, {R(rWS)}, s{sQ+5} offen offset:{1024*u} sc1
            s_bitset0_b32 s{sQ+8}, {u}
L_cf{u}:""")
        a(f"s_cmp_lg_u32 s{sQ+8}, 0\ns_cbranch_scc1 L_cf\nL_cfd:\ns_waitcnt lgkmcnt(0)")
    elif p.cflag:
        a(f"""s_and_b32 s{sQ}, s2, {p.crep-1}
        s_lshl_b32 s{sQ}, s{sQ}, 3
        s_add_u32 s{sQ}, s{sQ}, s{sT2 if p.cprog else sWave}
        s_mul_i32 s{sQ}, s{sQ}, {p.cstr}
        s_add_u32 s{sQ}, s{sQ}, {FP2}
        {f's_pack_ll_b32_b16 s{sQ+6}, s{sT[0]}, s{sT[0]}' if p.cprog else f's_mov_b32 s{sQ+6}, s{sT[0]}'}
        s_mov_b32 s{sCnt}, 0""")
        if p.early == 2:
            a(f"s_load_dwordx16 s[4:19], s[{rWS}:{rWS+1}], s{sQ} glc")
            latesetup()
            a(f"s_mov_b32 s{sQ+7}, s{sQ+6}\ns_branch L_cf2")
        a(f"""s_mov_b32 s{sQ+7}, s{sQ+6}
L_cf:
        s_load_dwordx16 s[4:19], s[{rWS}:{rWS+1}], s{sQ} glc
L_cf2:
        s_add_u32 s{sCnt}, s{sCnt}, 1
        s_cmp_ge_u32 s{sCnt}, {p.maxspin}
        s_cbranch_scc1 L_cfd
        s_waitcnt lgkmcnt(0)""")
        for k in range(8): a(f"s_cmp_lg_u64 s[{4+2*k}:{5+2*k}], s[{sQ+6}:{sQ+7}]\ns_cbranch_scc1 L_cf")
        a("L_cfd:\ns_waitcnt lgkmcnt(0)")
    else:
        a(f"""s_cmp_lg_u32 s{sWave}, 0
    s_cbranch_scc1 L_Y_v
    s_bfe_u32 s{sT0}, s2, 0x10004
    s_lshl_b32 s{sT0}, s{sT0}, 7
    s_add_u32 s{sT0}, s{sT0}, {HC}""")
        for k in range(p.nsamp):
            a(f"s_add_u32 s{4+k}, s2, {37*k}\ns_and_b32 s{4+k}, s{4+k}, 127\ns_lshl_b32 s{4+k}, s{4+k}, 8\ns_add_u32 s{4+k}, s{4+k}, s{sT0}")
        if p.need: spoll_cnt([4+k for k in range(p.nsamp)], 12, p.need)
        else: spoll_all([4+k for k in range(p.nsamp)], 12)
    a.label("L_Y_v")
    if p.uv3: a("s_barrier")
    elif not (p.cprog or p.wrow in (1, 3)): a(f"s_cmp_lt_u32 s{sWave}, 4\ns_cbranch_scc1 L_Y_nw\ns_waitcnt vmcnt(0)\nL_Y_nw:\ns_barrier" if p.solo else f"s_waitcnt vmcnt({0 if p.odrain else 4})\ns_barrier")
    vBV = 20
    stamp(1)
    if p.wogate and p.wgpos == 1:
        a(f"""s_cmp_eq_u32 s{sWave}, 1
        s_cselect_b32 exec_lo, 0xf, 0
        s_mov_b32 exec_hi, 0
        buffer_store_dwordx4 v[252:255], v{vL16}, {R(rWS)}, s{sQ+9} offen offset:64 sc1
        s_mov_b64 exec, -1""")
    vOD = 56
    def cloads():
        a(f"buffer_load_dwordx4 v[52:55], v14, {R(rWS)}, s{sQ+4} offen sc1")
        for u in range(4):
            if p.oplay: a(f"s_add_u32 s{sQ+1}, s{sQ+5}, {4*u*p.opstr}\nbuffer_load_dwordx4 {V(vOD+4*u)}, v47, {R(rWS)}, s{sQ+1} offen sc1")
            else: a(f"buffer_load_dwordx4 {V(vOD+4*u)}, v47, {R(rWS)}, s{sQ+5} offen offset:{1024*(u if not p.halfo else u&1)} sc1")
    if p.cfine: a(f"buffer_load_dwordx4 v[52:55], v14, {R(rWS)}, s{sQ+4} offen sc1")
    elif p.vglob:
        def sloads(): a(f"buffer_load_dwordx4 v[52:55], v14, {R(rWS)}, s{sQ+4} offen sc1\nbuffer_load_dwordx4 v[92:95], v13, {R(rWS)}, s{sQ+4} offen sc1")
        def dloads():
            for u in range(4): a(f"buffer_load_dwordx4 {V(vOD+4*u)}, v47, {R(rWS)}, s{sQ+5} offen offset:{1024*u} sc1")
        sloads()
        if p.vbar: a("s_barrier")
        dloads()
    else: cloads()
    if not p.early: latesetup()
    if p.cprog or p.wrow == 1: a(f"s_waitcnt vmcnt(9)\ns_barrier")
    def uvfr(ks):
        for hf in range(2):
            a(f"ds_read_b64_tr_b16 {V(vBV+4*ks+2*hf, 2)}, v134 offset:{(4*ks+64*hf)*256 if p.uvlin else (32*ks+4*hf)*256}")
    late_uv = p.uv3 or p.wrow == 3
    if not late_uv:
        for ks in range(4): uvfr(ks)
    if p.diag == 3:
        a(f"s_waitcnt vmcnt(4)\ns_memrealtime s[{sStamp+2}:{sStamp+3}]\ns_waitcnt vmcnt(0)\ns_memrealtime s[{sStamp+4}:{sStamp+5}]")
    if p.cfine: a("s_waitcnt vmcnt(0)")
    if p.vglob:
        Lc = a.newlabel('schk'); L = a.newlabel('poll')
        a(f"s_mov_b32 s{sCnt}, 0\ns_waitcnt vmcnt(4)\ns_branch {Lc}")
        a.label(L)
        sloads()
        a("s_waitcnt vmcnt(0)")
        a.label(Lc)
        a(f"v_xor_b32 v49, s{sT[0]}, v54\nv_bitop3_b32 v49, v49, v94, s{sT[0]} bitop3:0xf6\nv_max_f32 v50, v52, v92")
        poll_end(L, 49, '-1')
        for m in ("quad_perm:[1,0,3,2]", "quad_perm:[2,3,0,1]", "row_half_mirror"):
            a(f"v_max_f32_dpp v50, v50, v50 {m} row_mask:0xf bank_mask:0xf")
        allred_groups("v_max_f32", 50, 51)
        a("""v_sub_f32 v52, v52, v50
        v_sub_f32 v92, v92, v50
        v_exp_f32 v52, v52
        v_exp_f32 v92, v92
        v_mul_f32 v51, v52, v53
        v_fmac_f32 v51, v92, v93""")
        for m in ("quad_perm:[1,0,3,2]", "quad_perm:[2,3,0,1]", "row_half_mirror"):
            a(f"v_add_f32_dpp v51, v51, v51 {m} row_mask:0xf bank_mask:0xf")
        allred_groups("v_add_f32", 51, 55)
        a("""v_rcp_f32 v51, v51
        v_mul_f32 v51, v51, v52
        v_cvt_pk_bf16_f32 v51, v51, v51
        v_mov_b32_dpp v51, v51 row_shr:4 row_mask:0xf bank_mask:0xa""")
        for u in range(4): buildA(72+4*u, 51, u)
        Lc = a.newlabel('cchk'); L = a.newlabel('poll')
        a(f"s_mov_b32 s{sCnt}, 0\ns_branch {Lc}")
        a.label(L)
        dloads()
        a("s_mov_b64 exec, -1")
        a.label(Lc)
        for u in range(4):
            a(f"s_waitcnt vmcnt({3-u})")
            mfma(88, 72+4*u, vOD+4*u, '0' if u == 0 else None)
            chkv(49, vOD+4*u, 124, u == 0)
        poll_end_masked(L, 49, '0x10001')
    else:
        Lc = a.newlabel('cchk')
        a(f"s_mov_b32 s{sCnt}, 0\ns_branch {Lc}")
        L = a.newlabel('poll'); a.label(L)
        cloads()
        a.label(Lc)
        a(f"""s_mov_b64 exec, -1
    s_waitcnt vmcnt(4)
    v_max_f32_dpp v50, v52, v52 quad_perm:[1,0,3,2] row_mask:0xf bank_mask:0xf
    v_cmp_ne_u32 vcc, s{sT[0]}, v54
    v_max_f32_dpp v50, v50, v50 quad_perm:[2,3,0,1] row_mask:0xf bank_mask:0xf
    v_cndmask_b32 v49, 0, v133, vcc""")
        allred_groups("v_max_f32", 50, 51)
        a(f"""v_sub_f32 v51, v52, v50
    v_exp_f32 v51, v51
    v_cvt_pk_bf16_f32 v51, v51, v51""")
        for u in range(4):
            buildA(72+4*u, 51, u)
        a(f"""v_and_b32 v51, 0xffff0000, v51
    v_mul_f32 v51, v51, v53
    s_waitcnt vmcnt(3)""")
        mfma(88, 72, vOD, '0')
        a("v_add_f32_dpp v51, v51, v51 quad_perm:[1,0,3,2] row_mask:0xf bank_mask:0xf")
        chkv(49, vOD, 124)
        a("v_add_f32_dpp v51, v51, v51 quad_perm:[2,3,0,1] row_mask:0xf bank_mask:0xf\ns_waitcnt vmcnt(2)")
        mfma(88, 76, vOD+4)
        a("v_mov_b32 v55, v51")
        chkv(49, vOD+4, 124)
        a("v_permlane32_swap_b32 v51, v55\nv_add_f32 v51, v51, v55\ns_waitcnt vmcnt(1)")
        mfma(88, 80, vOD+8)
        a("v_mov_b32 v55, v51")
        chkv(49, vOD+8, 124)
        a("v_permlane16_swap_b32 v51, v55\nv_add_f32 v51, v51, v55\ns_waitcnt vmcnt(0)")
        mfma(88, 84, vOD+12)
        a("ds_write2_b32 v128, v50, v51 offset0:0 offset1:4")
        chkv(49, vOD+12, 124)
        poll_end_masked(L, 49, '0x10001')
    if p.stamp: a(f"s_mov_b32 s{sStamp+24}, s{sCnt}")
    stamp(8)
    if p.wogate and p.wgpos == 2:
        a(f"""s_cmp_eq_u32 s{sWave}, 1
        s_cselect_b32 exec_lo, 0xf, 0
        s_mov_b32 exec_hi, 0
        buffer_store_dwordx4 v[252:255], v{vL16}, {R(rWS)}, s{sQ+9} offen offset:64 sc1
        s_mov_b64 exec, -1""")
    a(f"""v_cvt_pk_bf16_f32 v88, v88, v89
    v_cvt_pk_bf16_f32 v89, v90, v91
    s_mov_b32 exec_lo, {'-1' if p.wrow else '0x00ff00ff'}
    s_mov_b32 exec_hi, {'0' if p.wrow else '0xff00ff00'}
    ds_write_b64 v122, v[88:89]
    s_mov_b64 exec, -1
    s_waitcnt lgkmcnt(0)
    s_barrier""")
    if p.dex == 2:
        a(f"""s_cmp_eq_u32 s{sWave}, {p.dexw}
        s_cselect_b32 exec_lo, {(1 << p.dexr) - 1}, 0
        s_mov_b32 exec_hi, 0
        buffer_store_dword v252, v46, {R(rWS)}, s{sQ+9} offen offset:1152 sc1
        s_mov_b64 exec, -1""")
    for ks in range(4):
        a(f"ds_read_b128 {V(56+4*ks)}, v130 offset:{64*ks}")
        if late_uv: uvfr(ks)
    if p.vglob:
        for ks in range(4):
            a(f"s_waitcnt lgkmcnt({3-ks})")
            mfma(88, 56+4*ks, vBV+4*ks, '0' if ks == 0 else None)
        a("""v_add_f32 v50, v88, v89
        v_add_f32 v51, v90, v91
        v_add_f32 v50, v50, v51
        v_mov_b32_sdwa v50, v132 dst_sel:BYTE_0 dst_unused:UNUSED_PRESERVE src0_sel:BYTE_0
        s_mov_b32 exec_hi, 0""")
    else:
        a(f"ds_read_b128 v[72:75], v129\nds_read_b128 v[76:79], v129 offset:16")
        for ks in range(4):
            a(f"s_waitcnt lgkmcnt({11-3*ks if late_uv else 5-ks})")
            mfma(88, 56+4*ks, vBV+4*ks, '0' if ks == 0 else None)
        a(f"""s_waitcnt lgkmcnt(0)
    v_max3_f32 v50, v72, v73, v74
    v_max_f32 v50, v50, v75""")
        for r in range(4): a(f"v_sub_f32 v{72+r}, v{72+r}, v50")
        for r in range(4): a(f"v_exp_f32 v{72+r}, v{72+r}")
        a(f"""v_mul_f32 v51, v72, v76
    v_fmac_f32 v51, v73, v77
    v_fmac_f32 v51, v74, v78
    v_fmac_f32 v51, v75, v79
    v_rcp_f32 v51, v51
    v_mul_f32 v50, v72, v88
    v_fmac_f32 v50, v73, v89
    v_fmac_f32 v50, v74, v90
    v_fmac_f32 v50, v75, v91
    v_mul_f32 v50, v50, v51
    v_mov_b32_sdwa v50, v132 dst_sel:BYTE_0 dst_unused:UNUSED_PRESERVE src0_sel:BYTE_0
    s_mov_b32 exec_hi, 0""")
    if p.fast: a(f"buffer_store_dword v50, v131, {R(rWS)}, s{sQ+3} offen")
    a(f"""buffer_store_dword v50, v131, {R(rWS)}, s{sQ+2} offen sc1
    s_mov_b64 exec, -1""")
    if p.dex == 1:
        a(f"""s_cmp_eq_u32 s{sWave}, {p.dexw}
        s_cselect_b32 exec_lo, {(1 << p.dexr) - 1}, 0
        s_mov_b32 exec_hi, 0
        buffer_store_dword v252, v46, {R(rWS)}, s{sQ+9} offen offset:1152 sc1
        s_mov_b64 exec, -1""")
    stamp(2)
    if p.clean & 2: qclean(7)
    a(f"""s_sub_u32 s2, s2, 128
    s_cmp_ge_u32 s2, 72
    s_cbranch_scc1 L_Y_end
    s_cmp_ge_u32 s2, 36
    s_cselect_b32 s{sT2}, 1, 0
    s_mul_i32 s{sT3}, s{sT2}, 36
    s_sub_u32 s{sT3}, s2, s{sT3}
    s_mul_i32 s{sT0}, s{sWave}, {16*4608}
    s_mul_i32 s{sT1}, s{sT2}, 2304
    s_add_u32 s{sT0}, s{sT0}, s{sT1}
    s_lshl_b32 s{sT1}, s{sT3}, 6
    s_add_u32 s{sT0}, s{sT0}, s{sT1}
    s_add_u32 s{sT0}, s{sT0}, {FP}
    v_lshrrev_b32 v9, 2, v{vL}
    v_mul_u32_u24 v10, 4608, v9
    v_and_b32 v11, 3, v{vL}
    v_lshl_add_u32 v10, v11, 4, v10
    v_lshl_add_u32 v13, v{vG}, 2, v11
    v_lshlrev_b32 v13, 5, v13
    s_lshl_b32 s{sT1}, s{sWave}, 2
    s_add_u32 s{sT1}, s{sT1}, {L_REDY}
    v_add_u32 v13, s{sT1}, v13""")
    srd(rB, pB2, SZ['b2']); srd(rC, pOUT, SZ['out'])
    a(f"""v_mov_b32 v15, 0
    s_cmp_lg_u32 s{sWave}, 0
    s_cbranch_scc1 L_Y_rx
    s_lshl_b32 s{sT1}, s{sT3}, 2
    v_add_u32 v14, s{sT1}, v11""")
    decode_v(15, 14, 16)
    a(f"""v_bfe_u32 v14, v{vL}, 2, 2
    v_add_u32 v15, v15, v14
    v_lshlrev_b32 v15, 1, v15
    buffer_load_ushort v16, v15, {R(rB)}, 0 offen
    s_lshl_b32 s{sT1}, s{sT2}, 2
    s_add_u32 s{sT1}, s{sT1}, {L_GATE}
    v_mov_b32 v17, s{sT1}
    ds_read_b32 v17, v17
    v_lshlrev_b32 v18, 5, v{vJ}
    v_add_u32 v18, {L_REDY}, v18
    s_mul_i32 s{sT2}, s{sT2}, 1152
L_Y_rx:""")
    if p.dex:
        a(f"""s_and_b32 s{sQ}, s2, {p.dexr-1}
        s_lshl_b32 s{sQ}, s{sQ}, 3
        s_add_u32 s{sQ}, s{sQ}, s{sWave}
        s_mul_i32 s{sQ}, s{sQ}, {p.cstr}
        s_add_u32 s{sQ}, s{sQ}, {FP2+1152}
        s_mov_b32 s{sQ+6}, s{sT[0]}
        s_mov_b32 s{sQ+7}, s{sT[0]}
        s_mov_b32 s{sCnt}, 0
L_df:
        {f's_sleep {p.dexs}' if p.dexs else ''}
        s_load_dwordx16 s[4:19], s[{rWS}:{rWS+1}], s{sQ} glc
        s_add_u32 s{sCnt}, s{sCnt}, 1
        s_cmp_ge_u32 s{sCnt}, {p.maxspin}
        s_cbranch_scc1 L_dfd
        s_waitcnt lgkmcnt(0)""")
        for k in range(8): a(f"s_cmp_lg_u64 s[{4+2*k}:{5+2*k}], s[{sQ+6}:{sQ+7}]\ns_cbranch_scc1 L_df")
        a("L_dfd:\ns_waitcnt lgkmcnt(0)\ns_barrier")
        stamp(9)
    elif p.dflag >= 3:
        for k in range(p.dsamp):
            a(f"s_add_u32 s{4+k}, s2, {(16//p.dsamp)*k}\ns_and_b32 s{4+k}, s{4+k}, 15\ns_lshl_b32 s{sQ}, s{sWave}, 4\ns_add_u32 s{4+k}, s{4+k}, s{sQ}\ns_lshl_b32 s{4+k}, s{4+k}, 7\ns_add_u32 s{4+k}, s{4+k}, {HD}")
        spoll_all([4+k for k in range(p.dsamp)], 12)
        stamp(9)
    L = poll_begin()
    a(f"""buffer_load_dwordx4 v[20:23], v10, {R(rWS)}, s{sT0} offen sc1
    s_mov_b64 exec, -1
    s_waitcnt vmcnt(0)""")
    chk4(24, 20, True)
    poll_end_masked(L, 24, '0xff')
    stamp(10)
    treduce(20)
    a(f"""v_add_f32_dpp v20, v20, v20 row_ror:4 row_mask:0xf bank_mask:0xf
    v_add_f32_dpp v20, v20, v20 row_ror:8 row_mask:0xf bank_mask:0xf
    ds_write_b32 v13, v20
    s_waitcnt lgkmcnt(0)
    s_barrier
    s_cmp_lg_u32 s{sWave}, 0
    s_cbranch_scc1 L_Y_end
    ds_read_b128 v[20:23], v18
    ds_read_b128 v[24:27], v18 offset:16
    v_lshlrev_b32 v16, 16, v16
    v_sub_f32 v17, 1.0, v17
    v_mul_f32 v16, v16, v17
    s_waitcnt lgkmcnt(0)
    v_add_f32 v20, v20, v24
    v_add_f32 v21, v21, v25
    v_add_f32 v22, v22, v26
    v_add_f32 v23, v23, v27
    v_add_f32 v20, v20, v21
    v_add_f32 v22, v22, v23
    v_add_f32 v20, v20, v16
    v_add_f32 v20, v20, v22
    v_cvt_pk_bf16_f32 v20, v20, v20
    s_mov_b64 exec, 0xffff
    buffer_store_short v20, v15, {R(rC)}, s{sT2} offen {p.outf.replace('_',' ')}
    s_cmp_lg_u32 s2, 0
    s_cbranch_scc1 L_Y_end
    s_mov_b64 exec, 1
    v_mov_b32 v21, s{sT[0]}
    v_mov_b32 v22, 0
    buffer_store_dword v21, v22, {R(rWS)}, 0 offen offset:{EPOCH} sc1""")
    a.label("L_Y_end")
    if p.stamp: a("s_add_u32 s2, s2, 128")
    stamp(11)
    finish('Y')
    a.label("L_exit")
    a("s_endpgm")
    return a.finalize()

HEADER = open('gated_mix__compressed_kv_cla__dense_activation_gelu__decode.s.ref').read().split('; Override')[0]

def emit(path, p=P):
    body = build(p)
    s = HEADER + f"""; @launch grid=(256,1,1) block=(512,1,1) lds={LDS_BYTES}
.amdgcn_target "amdgcn-amd-amdhsa--gfx950"
.text
.globl {KNAME}
.p2align 8
.type {KNAME},@function
{KNAME}:
{body}.section .rodata,"a"
.p2align 6
.amdhsa_kernel {KNAME}
  .amdhsa_next_free_vgpr 256
  .amdhsa_next_free_sgpr 102
  .amdhsa_accum_offset 256
  .amdhsa_group_segment_fixed_size 0
  .amdhsa_kernarg_size 120
  .amdhsa_user_sgpr_count 2
  .amdhsa_user_sgpr_kernarg_segment_ptr 1
  .amdhsa_system_sgpr_workgroup_id_x 1
.end_amdhsa_kernel
"""
    open(path, 'w').write(s)

if __name__ == '__main__':
    out = sys.argv[1]
    for kv in sys.argv[2:]:
        k, v = kv.split('=')
        setattr(P, k, type(getattr(P, k))(v))
    emit(out)
```

```python
import sys, struct, math
from asmlib import Asm

KNAME = "gated_mix__compressed_kv_cla__dense_activation_gelu__decode_kernel"

def f2u(x): return struct.unpack('<I', struct.pack('<f', x))[0]

class P:
    stamp = 0
    nt = "nt"
    pollA_wait = 2
    maxspin = 200000
    prefetch = 1
    wsoff = 0
    fast = 1
    nlocal = 256
    hintpos = 1
    diag = 0
    xpre = 8
    ypre = 0
    gate = 9
    qat = 3
    bsleep = 0
    tlb = 0
    cstat = 1
    dflag = 3
    drep = 18
    dsamp = 2
    dstr = 2304
    wopre = 1
    won = 9
    xg = -1
    xgn = 2
    gand = 0
    wofirst = 1
    odrain = 0
    warm = 0
    halfo = 0
    outf = ""
    outpre = 0
    wopos = 0
    w2gate = 0
    uv1 = 4
    xord = 3
    wosplit = 20
    emub = 0
    ckvf = "nt"
    fpos = 0
    wogate = 0
    wgpos = 0
    uv2 = 0
    hmix = 0
    qsplit = 0
    bpos = 1
    opstr = 32896
    fdel = 1
    asleep = 0
    fsleep = 0
    uvlin = 0
    nof = 0
    fflag = 0
    cflag = 1
    crep = 16
    cstr = 2304
    cw = 7
    cprog = 0
    oplay = 0
    qpf = 0
    qpfs = 0
    bflag = 0
    uv3 = 0
    xramp = 0
    xrn = 4
    fmid = 4
    floc = 1
    clean = 0
    wrow = 0
    p5h = 0
    cfine = 0
    early = 2
    solo = 0
    f1 = 2
    f2 = 3
    own = 0
    x3 = 12
    stlate = 0
    stbr = 0
    dex = 0
    dexw = 7
    dexr = 16
    dexs = 0
    wb = 0
    qmid = 0
    vglob = 1
    vbar = 1
    v4 = 0
    gate2 = -1
    xearly = 0
    stag = 1
    vlds = 0
    vseq = 0
    pdrop = 0
    kint = 1
    b0pos = 1
    nsamp = 4
    need = 0
    prio = 1
    only = ""
    b0 = 1
    wqdma = 0
    nod1 = 0
    sparseC = 1
    qpre = 2
    enc = -1
    encwave = 4

EPOCH, QP, QL, ST, CX, HP, FP, OP, STAMP = 0, 0x10000, 0x50000, 0x60000, 0x70000, 0x90000, 0x120000, 0x200000, 0x800000
QPL, CXL, HC, HG, HD, HK, FP2 = 0x700000, 0x740000, 0x760000, 0x770000, 0x778000, 0x780000, 0x790000
HPL = 0x610000
WS_REC = 0x1000000
L_CKV, L_QIMG, L_SX, L_HX, L_GATE = 0, 65536, 98304, 106496, 107008
L_WQ = 0x18000 - 20480
L_WUK, L_WUV, L_QV, L_AIMG, L_VST, L_RED = 0, 32768, 65536, 66048, 68352, 68480
L_WUVY = 107520
L_PX = 107520 + 32768
LDS_BYTES = 107520 + 32768
L_AIMGY, L_VSTY, L_REDY, L_STX = 65536, 67840, 67968, 69632
pX, pCKV, pWQ, pWUK, pWUV, pWO, pW1, pB1, pW2, pB2, pGW, pOUT, pWS = 4, 6, 8, 10, 12, 14, 18, 20, 22, 24, 26, 28, 32
sWave, sH, sJ, sI, sXcd, sTag = 3, 34, 35, 56, 57, 58
sT = [58, 59, 60, 61]
rA, rB, rC, rWS = 36, 40, 44, 48
sT0, sT1, sT2, sT3 = 52, 53, 54, 55
sCnt = 62
sQ = 64
sStamp = 76
vL, vJ, vG, vM, vL16 = 1, 2, 3, 4, 8
SZ = dict(x=2304, ckv=8388608, wq=4718592, wuk=4194304, wuv=4194304, wo=4718592, w1=5308416, w2=5308416, b1=9216, b2=1152, gw=1152, out=2304)

def build(p=P):
    a = Asm()
    if p.vlds: p.cstat = 0
    nt = p.nt
    def srd(r, ptr, size):
        if ptr == pWS and p.wsoff:
            a(f"s_add_u32 s{r}, s{ptr}, {p.wsoff}\ns_addc_u32 s{r+1}, s{ptr+1}, 0\ns_mov_b32 s{r+2}, {size}\ns_mov_b32 s{r+3}, 0x20000")
            return
        a(f"s_mov_b32 s{r}, s{ptr}\ns_mov_b32 s{r+1}, s{ptr+1}\ns_mov_b32 s{r+2}, {size}\ns_mov_b32 s{r+3}, 0x20000")
    def R(r): return f"s[{r}:{r+3}]"
    def V(r, n=4): return f"v[{r}:{r+n-1}]"
    def stamp(k):
        if p.only and k not in [int(x) for x in p.only.split('.')]: return
        if p.stamp: a(f"s_memrealtime s[{sStamp+2*k}:{sStamp+2*k+1}]")
    def cyc(k):
        if p.diag == 5: a(f"s_memtime s[{sStamp+2*k}:{sStamp+2*k+1}]")
    def buildA(dst, x, u):
        for r in range(4):
            a(f"v_and_b32_dpp v{dst+r}, v{x}, v{vM+r} quad_perm:[{u},{u},{u},{u}] row_mask:0xf bank_mask:0xf")
    def mfma(d, A, B, c=None):
        a(f"v_mfma_f32_16x16x32_bf16 {V(d)}, {V(A)}, {V(B)}, {V(d) if c is None else c}")
    def tag4(d):
        for k in range(4):
            a(f"v_mov_b32_sdwa v{d+k}, s{sT[k]} dst_sel:BYTE_0 dst_unused:UNUSED_PRESERVE src0_sel:BYTE_0")
    def chk4(acc, d, first=False):
        for k in range(4):
            if first and k == 0: a(f"v_xor_b32 v{acc}, s{sT[0]}, v{d}")
            else: a(f"v_bitop3_b32 v{acc}, v{acc}, v{d+k}, s{sT[k]} bitop3:0xf6")
    def chkv(acc, d, t, first=False):
        for k in range(4):
            if first and k == 0: a(f"v_xor_b32 v{acc}, v{t}, v{d}")
            else: a(f"v_bitop3_b32 v{acc}, v{acc}, v{d+k}, v{t+k} bitop3:0xf6")
    def poll_begin():
        L = a.newlabel('poll')
        a(f"s_mov_b32 s{sCnt}, 0")
        a.label(L)
        return L
    def poll_end(L, acc, mask, fb=None, lim=None, sleep=0):
        D = a.newlabel('done')
        a(f"v_and_b32 v{acc}, {mask}, v{acc}\nv_cmp_ne_u32 vcc, 0, v{acc}\ns_add_u32 s{sCnt}, s{sCnt}, 1")
        a(f"s_cbranch_vccz {D}")
        if sleep: a(f"s_sleep {sleep}")
        if fb and p.fast:
            regs, delta = fb
            a(f"s_cmp_eq_u32 s{sCnt}, {p.nlocal}\ns_cselect_b32 vcc_lo, {delta}, 0")
            for r in regs: a(f"s_sub_u32 s{r}, s{r}, vcc_lo")
        a(f"s_cmp_lt_u32 s{sCnt}, {lim or p.maxspin}\ns_cbranch_scc1 {L}")
        a.label(D)
    def poll_end_masked(L, acc, mask, sleep=0):
        D = a.newlabel('done')
        a(f"""v_and_b32 v{acc}, {mask}, v{acc}
        v_cmp_ne_u32 vcc, 0, v{acc}
        s_add_u32 s{sCnt}, s{sCnt}, 1
        s_cbranch_vccz {D}
        s_wqm_b64 exec, vcc""")
        if sleep: a(f"s_sleep {sleep}")
        a(f"""s_cmp_lt_u32 s{sCnt}, {p.maxspin}
        s_cbranch_scc1 {L}
        s_mov_b64 exec, -1""")
        a.label(D)
    def spoll_cnt(off_regs, tmp, need):
        L = a.newlabel('sp'); D = a.newlabel('spd')
        a(f"s_mov_b32 s{sCnt}, 0")
        a.label(L)
        for k, r in enumerate(off_regs): a(f"s_load_dword s{tmp+k}, s[{rWS}:{rWS+1}], s{r} glc")
        a(f"s_add_u32 s{sCnt}, s{sCnt}, 1\ns_cmp_ge_u32 s{sCnt}, {p.maxspin}\ns_cbranch_scc1 {D}\ns_mov_b32 vcc_lo, 0\ns_waitcnt lgkmcnt(0)")
        for k, r in enumerate(off_regs): a(f"s_cmp_eq_u32 s{tmp+k}, s{sT[0]}\ns_addc_u32 vcc_lo, vcc_lo, 0")
        a(f"s_cmp_lt_u32 vcc_lo, {need}\ns_cbranch_scc1 {L}")
        a.label(D)
        a("s_waitcnt lgkmcnt(0)")
    def spoll_all(off_regs, tmp):
        L = a.newlabel('sp'); D = a.newlabel('spd')
        a(f"s_mov_b32 s{sCnt}, 0")
        a.label(L)
        for k, r in enumerate(off_regs): a(f"s_load_dword s{tmp+k}, s[{rWS}:{rWS+1}], s{r} glc")
        a(f"s_add_u32 s{sCnt}, s{sCnt}, 1\ns_cmp_ge_u32 s{sCnt}, {p.maxspin}\ns_cbranch_scc1 {D}\ns_waitcnt lgkmcnt(0)")
        for k, r in enumerate(off_regs): a(f"s_cmp_lg_u32 s{tmp+k}, s{sT[0]}\ns_cbranch_scc1 {L}")
        a.label(D)
        a("s_waitcnt lgkmcnt(0)")
    def spoll(off_regs):
        L = a.newlabel('sp'); D = a.newlabel('spd')
        a(f"s_mov_b32 s{sCnt}, 0")
        a.label(L)
        for k, r in enumerate(off_regs): a(f"s_load_dword s{sT0+k}, s[{rWS}:{rWS+1}], s{r} glc")
        a(f"s_add_u32 s{sCnt}, s{sCnt}, 1\ns_waitcnt lgkmcnt(0)")
        for k, r in enumerate(off_regs): a(f"s_cmp_eq_u32 s{sT0+k}, s{sT[0]}\ns_cbranch_scc1 {D}")
        a(f"s_cmp_lt_u32 s{sCnt}, {p.maxspin}\ns_cbranch_scc1 {L}")
        a.label(D)
    def treduce(r):
        a(f"v_permlane32_swap_b32 v{r}, v{r+2}\nv_permlane32_swap_b32 v{r+1}, v{r+3}")
        a(f"v_add_f32 v{r}, v{r}, v{r+2}\nv_add_f32 v{r+1}, v{r+1}, v{r+3}")
        a(f"v_permlane16_swap_b32 v{r}, v{r+1}\nv_add_f32 v{r}, v{r}, v{r+1}")
    def allred_groups(op, r, t):
        a(f"v_mov_b32 v{t}, v{r}\nv_permlane32_swap_b32 v{r}, v{t}\n{op} v{r}, v{r}, v{t}")
        a(f"v_mov_b32 v{t}, v{r}\nv_permlane16_swap_b32 v{r}, v{t}\n{op} v{r}, v{r}, v{t}")
    def masks():
        a(f"""v_and_b32 v9, 3, v{vL}
        v_lshlrev_b32 v9, 4, v9
        v_mov_b32 v10, 0xffff
        v_mov_b32 v11, 0
        v_lshlrev_b64 v[10:11], v9, v[10:11]
        v_and_b32 v9, 4, v{vL}
        v_cmp_eq_u32 vcc, 0, v9
        v_cndmask_b32 v{vM}, 0, v10, vcc
        v_cndmask_b32 v{vM+1}, 0, v11, vcc
        v_cndmask_b32 v{vM+2}, v10, 0, vcc
        v_cndmask_b32 v{vM+3}, v11, 0, vcc""".replace('v_cndmask_b32 v%d, v10, 0, vcc' % (vM+2), 'v_cndmask_b32_e64 v%d, v10, 0, vcc' % (vM+2)).replace('v_cndmask_b32 v%d, v11, 0, vcc' % (vM+3), 'v_cndmask_b32_e64 v%d, v11, 0, vcc' % (vM+3)))
    def xoff(dst):
        a(f"""v_bfe_u32 v{dst}, v{vL}, 3, 1
        v_mul_u32_u24 v{dst}, 1152, v{dst}
        v_and_b32 v9, 3, v{vL}
        v_lshl_add_u32 v{dst}, v9, 3, v{dst}
        v_lshl_add_u32 v{dst}, v{vG}, 1, v{dst}""")
    def epoch_wait():
        a(f"""s_waitcnt lgkmcnt(0)
        s_add_u32 s{sT[0]}, s{sT[0]}, 1
        s_addc_u32 s{sT[0]}, s{sT[0]}, 0
        s_add_u32 s{sT[1]}, s{sT[0]}, 37
        s_add_u32 s{sT[2]}, s{sT[0]}, 74
        s_add_u32 s{sT[3]}, s{sT[0]}, 111""")
    def lsbtags(t, flip=None):
        a(f"""v_and_b32 v{t}, 7, v{vL}
        v_mul_u32_u24 v{t}, 37, v{t}
        v_add_u32 v{t}, s{sT[0]}, v{t}""")
        if flip: a(f"v_xor_b32 v{t}, {flip}, v{t}")
        a(f"""v_and_b32 v{t}, 0xff, v{t}
        v_lshl_or_b32 v{t}, v{t}, 15, v{t}
        v_lshrrev_b32 v{t+1}, 2, v{t}
        v_lshrrev_b32 v{t+2}, 4, v{t}
        v_lshrrev_b32 v{t+3}, 6, v{t}""")
    def decode_v(dst, src, t):
        a(f"""v_lshrrev_b32 v{dst}, 5, v{src}
        v_lshlrev_b32 v{dst}, 7, v{dst}
        v_and_b32 v{t}, 15, v{src}
        v_lshl_add_u32 v{dst}, v{t}, 3, v{dst}
        v_bfe_u32 v{t}, v{src}, 4, 1
        v_lshl_add_u32 v{dst}, v{t}, 2, v{dst}
        v_and_b32 v{t}, 7, v{src}
        v_lshlrev_b32 v{t}, 3, v{t}
        v_bfe_u32 v{t+1}, v{src}, 3, 1
        v_lshl_add_u32 v{t}, v{t+1}, 2, v{t}
        v_add_u32 v{t}, 512, v{t}
        v_cmp_gt_u32 vcc, 128, v{src}
        v_cndmask_b32 v{dst}, v{t}, v{dst}, vcc""")
    def finish(nst):
        if p.stamp == 5:
            a("s_endpgm"); return
        if p.stamp == 3:
            Ls = a.newlabel('noenc'); Lw = a.newlabel('encw')
            a(f"""s_waitcnt lgkmcnt(0)
            s_lshl_b32 s{sT0}, s2, 3
            s_add_u32 s{sT0}, s{sT0}, s{sWave}
            s_cmp_eq_u32 s{sT0}, {p.encwave}
            s_cbranch_scc0 {Ls}
{Lw}:
            s_memrealtime s[{sT0}:{sT1}]
            s_waitcnt lgkmcnt(0)
            s_sub_u32 s{sT0}, s{sT0}, s{sStamp+2*p.enc}
            s_cmp_lt_u32 s{sT0}, 3000
            s_cbranch_scc1 {Lw}
{Ls}:
            s_endpgm""")
            return
        if p.stamp:
            a(f"""s_waitcnt lgkmcnt(0)
            s_lshl_b32 s{sT0}, s2, 3
            s_add_u32 s{sT0}, s{sT0}, s{sWave}
            s_lshl_b32 s{sT0}, s{sT0}, 6
            s_add_u32 s{sT0}, s{sT0}, {STAMP}
            s_mov_b64 exec, 1
            v_mov_b32 v9, 0""")
            for k in range(13):
                a(f"v_mov_b32 v{10+k}, s{sStamp+2*k}\nbuffer_store_dword v{10+k}, v9, {R(rWS)}, s{sT0} offen offset:{4*k}")
        if p.stamp == 2:
            Ls = a.newlabel('nosum')
            a(f"""s_lshl_b32 s{sT0}, s2, 3
            s_add_u32 s{sT0}, s{sT0}, s{sWave}
            s_cmp_eq_u32 s{sT0}, {4 if nst == 'X' else 1024}
            s_cbranch_scc0 {Ls}""")
            srd(rB, 30, 256)
            for n, k in enumerate((1,2,3,4,7,8,9,10) if nst == 'X' else (1,2,3,4,7,8,10,11)):
                a(f"s_sub_u32 s{sT1}, s{sStamp+2*k}, s{sStamp}\nv_mov_b32 v{30+n}, s{sT1}\nbuffer_store_dword v{30+n}, v9, {R(rB)}, 0 offen offset:{4*n + (0 if nst == 'X' else 32)}")
            a.label(Ls)
        a("s_endpgm")

    def slot_store(d, base_s, wave_is_half, toff, local=None):
        tag4(d)
        if wave_is_half: a("s_mov_b32 exec_lo, 0x00ff00ff\ns_mov_b32 exec_hi, 0x00ff00ff")
        if local: a(f"s_add_u32 vcc_lo, s{base_s}, {local}\nbuffer_store_dwordx4 {V(d)}, v{toff}, {R(rWS)}, vcc_lo offen")
        a(f"buffer_store_dwordx4 {V(d)}, v{toff}, {R(rWS)}, s{base_s} offen sc1")
        if wave_is_half: a("s_mov_b64 exec, -1")
    def slot_voff(dst, half):
        a(f"""v_lshrrev_b32 v{dst}, 1, v{vG}
        v_mul_u32_u24 v{dst}, 2304, v{dst}
        v_lshl_add_u32 v{dst}, v{vJ}, 4, v{dst}
        v_and_b32 v9, 1, v{vG}""")
        if half:
            a(f"v_lshl_add_u32 v{dst}, v9, 7, v{dst}\nv_add_u32 v{dst}, 2048, v{dst}")
        else:
            a(f"v_lshl_add_u32 v{dst}, v9, 8, v{dst}\ns_lshl_b32 s{sT0}, s{sWave}, 9\nv_add_u32 v{dst}, s{sT0}, v{dst}")

    def zstamps():
        if p.stamp:
            for k in range(1, 13): a(f"s_mov_b32 s{sStamp+2*k}, 0")
    vXP, vAP, vWP, vDP = 12, 20, 100, 180
    assert p.wsoff == 0
    stamp(0)
    a(f"""s_load_dwordx8 s[36:43], s[0:1], 0
    s_load_dwordx2 s[{rWS}:{rWS+1}], s[0:1], 112
    v_readfirstlane_b32 s{sWave}, v0
    v_and_b32 v{vJ}, 15, v0
    s_lshr_b32 s{sJ}, s2, 5
    s_and_b32 s{sH}, s2, 31""")
    if p.hmix == 1: a(f"s_lshr_b32 s{sT0}, s{sH}, 3\ns_xor_b32 s{sH}, s{sH}, s{sT0}")
    if p.hmix == 2: a(f"s_lshr_b32 s{sT0}, s{sH}, 2\ns_and_b32 s{sT0}, s{sT0}, 6\ns_xor_b32 s{sH}, s{sH}, s{sT0}")
    if p.hmix == 3: a(f"s_lshr_b32 s{sT0}, s{sH}, 3\ns_mul_i32 s{sT0}, s{sT0}, 5\ns_and_b32 s{sT0}, s{sT0}, 7\ns_xor_b32 s{sH}, s{sH}, s{sT0}")
    a(f"""s_mov_b32 s{rWS+3}, 0x20000
    s_lshr_b32 s{sT0}, s2, 8
    s_or_b32 s{sT0}, s{sT0}, s{sWave}
    s_cbranch_scc1 L_rest""")
    a(f"""v_lshrrev_b32 v{vG}, 4, v0
    v_lshlrev_b32 v9, 15, v{vG}
    v_lshl_add_u32 v9, v{vJ}, 4, v9
    v_add_u32 v10, {8192-1024}, v9
    v_add_u32 v11, {2*(8192-1024)}, v9
    v_add_u32 v12, {3*(8192-1024)}, v9
    s_mul_i32 s{sT0}, s{sJ}, {72*32}
    s_add_u32 s{sT0}, s{sT0}, s{sH}
    s_lshl_b32 s{sT0}, s{sT0}, 8
    s_mov_b32 m0, {L_WQ}
    v_lshrrev_b32 v13, 3, v{vJ}
    v_mul_u32_u24 v13, 144, v13
    v_and_b32 v14, 3, v0
    v_lshl_add_u32 v14, v14, 2, v{vG}
    v_add_lshl_u32 v13, v13, v14, 3
    s_mul_i32 s{sT1}, s{sJ}, 144
    s_waitcnt lgkmcnt(0)
    s_movk_i32 s{rA+2}, {SZ['x']}
    s_mov_b32 s{rA+3}, s{rWS+3}
    s_add_u32 s{rB+2}, s{sT0}, {71*8192+256}
    s_mov_b32 s{rB+3}, s{rWS+3}""")
    if p.diag == 2: a(f"s_memrealtime s[{sQ+6}:{sQ+7}]")
    a(f"""buffer_load_dwordx2 v[186:187], v13, {R(rA)}, s{sT1} offen
    buffer_load_dwordx2 v[188:189], v13, {R(rA)}, s{sT1} offen offset:128
L_wq:
    buffer_load_dwordx4 v9, {R(rB)}, s{sT0} offen {nt} lds
    buffer_load_dwordx4 v10, {R(rB)}, s{sT0} offen offset:1024 {nt} lds
    buffer_load_dwordx4 v11, {R(rB)}, s{sT0} offen offset:2048 {nt} lds
    buffer_load_dwordx4 v12, {R(rB)}, s{sT0} offen offset:3072 {nt} lds
    s_addk_i32 m0, 4096
    s_add_u32 s{sT0}, s{sT0}, s{rWS+3}
    s_bitcmp0_b32 m0, 15
    s_cbranch_scc1 L_wq""")
    if p.diag == 2: a(f"s_memrealtime s[{sQ+8}:{sQ+9}]")
    if p.b0pos == 0: a("s_barrier")
    a.label("L_rest")
    a(f"""s_cmp_ge_u32 s{sJ}, 8
    s_cbranch_scc1 L_exit
    s_lshr_b32 s{sWave}, s{sWave}, 6
    v_and_b32 v{vL}, 63, v0
    v_bfe_u32 v{vG}, v0, 4, 2
    v_lshlrev_b32 v{vL16}, 4, v{vL}""")
    if p.prefetch:
        a(f"""s_getpc_b64 s[{sQ}:{sQ+1}]
L_pc:
        s_lshr_b32 s{sQ+2}, s2, 3
        s_lshl_b32 s{sQ+2}, s{sQ+2}, 9
        s_min_u32 s{sQ+2}, s{sQ+2}, L_exit-L_pc-512
        v_add_u32 v249, s{sQ+2}, v{vL16}
        s_cmp_eq_u32 s{sWave}, 2
        s_cbranch_scc0 L_nopf
        s_mov_b64 exec, 0x01010101
        global_load_dword v250, v249, s[{sQ}:{sQ+1}]
        s_mov_b64 exec, -1
L_nopf:""")
    a(f"""s_mov_b32 s{rWS+2}, {WS_REC}
    s_lshl_b32 s{sT0}, s{sH}, 3
    s_add_u32 s{sT0}, s{sT0}, s{sJ}
    s_lshl_b32 s{sT0}, s{sT0}, 10
    s_add_u32 s{sT1}, s{sT0}, {QPL}
    s_and_b32 s{sT2}, s{sWave}, 3
    s_mov_b32 s{rC+3}, s{rWS+3}
    s_cmp_eq_u32 s{sWave}, 3
    s_cselect_b32 exec_lo, 0x01010101, 0
    s_cselect_b32 exec_hi, 0x01010101, 0
    s_waitcnt lgkmcnt(0)""")
    if p.fast: a(f"buffer_load_dword v250, v{vL16}, {R(rWS)}, s{sT1} offen sc1")
    a(f"""s_mov_b64 exec, -1
    s_load_dwordx16 s[4:19], s[0:1], 0
    s_load_dwordx8 s[20:27], s[0:1], 64
    s_load_dwordx4 s[28:31], s[0:1], 96
    s_and_b32 s{sXcd}, s2, 7
    s_bfe_u32 s{sI}, s2, 0x40003
    s_cmp_lt_u32 s{sWave}, 4
    s_cbranch_scc1 L_w03
    s_load_dword s{sT[0]}, s[{rWS}:{rWS+1}], {EPOCH}
    s_cmp_ge_u32 s2, 128
    s_cbranch_scc1 L_Ydma""")
    a(f"""s_lshl_b32 s{sQ}, s{sJ}, 2
    s_add_u32 s{sQ}, s{sQ}, s{sT2}
    s_lshl_b32 s{sQ}, s{sQ}, 10
    s_add_u32 s{sQ}, s{sQ}, s{sH}
    s_lshl_b32 s{sQ}, s{sQ}, 8
    s_lshl_b32 m0, s{sT2}, 13
    v_xor_b32 v19, v{vJ}, v{vG}
    v_lshlrev_b32 v19, 4, v19
    v_lshl_add_u32 v20, v{vG}, 13, v19
    v_xor_b32 v21, 64, v20
    v_xor_b32 v22, 0x80, v20
    v_xor_b32 v23, 0xc0, v20
    v_add_u32 v21, {32768-1024}, v21
    v_add_u32 v22, {2*(32768-1024)}, v22
    v_add_u32 v23, {3*(32768-1024)}, v23
    s_mov_b64 s[{rC}:{rC+1}], s[42:43]
    s_mov_b32 s{rC+2}, {SZ['wuk']}""")
    if p.diag == 2: a(f"s_memrealtime s[{sQ+6}:{sQ+7}]")
    def wuk(n):
        if n == 4: a(f"s_addk_i32 m0, 4096\ns_add_u32 s{sQ}, s{sQ}, {4*32768}")
        a(f"buffer_load_dwordx4 v{20+n%4}, {R(rC)}, s{sQ} offen offset:{1024*(n%4)} {nt} lds")
    if p.xg >= 0:
        epoch_wait()
        a(f"""s_lshl_b32 s{sT3}, s2, 7
        s_add_u32 s{sT3}, s{sT3}, {HK}
        v_mov_b32 v14, s{sT[0]}
        v_lshlrev_b32 v15, 2, v{vL}""")
    a("s_barrier")
    for n in range(p.xpre+1):
        if n == p.xg:
            a(f"""s_cmp_eq_u32 s{sWave}, 4
            s_cselect_b32 exec_lo, 0xffff, 0
            s_mov_b32 exec_hi, 0
            buffer_store_dword v14, v15, {R(rWS)}, s{sT3} offen sc1
            s_mov_b64 exec, -1""")
        if n < p.xpre: wuk(n)
    if p.diag == 2: a(f"s_memrealtime s[{sQ+8}:{sQ+9}]")
    a("s_branch L_X_w47")
    a.label("L_w03")
    a(f"""s_load_dword s{sT[0]}, s[{rWS}:{rWS+1}], {EPOCH}
    s_cmp_eq_u32 s{sWave}, 0
    s_cbranch_scc1 L_p1c
    s_cmp_ge_u32 s2, 128
    s_cbranch_scc1 L_w13
    s_cmp_lg_u32 s{sWave}, 2
    s_cbranch_scc1 L_xb0""")
    if p.warm:
        a(f"""v_mov_b32 v24, 0
        v_mov_b32 v25, 0
        v_mov_b32 v26, 0
        v_mov_b32 v27, 0
        s_mov_b32 exec_hi, 0
        s_lshl_b32 s{sT0}, s{sH}, 2
        s_add_u32 s{sT0}, s{sT0}, s{sJ}
        s_lshl_b32 s{sT1}, s{sT0}, 9
        s_add_u32 s{sT1}, s{sT1}, {ST}
        buffer_store_dwordx4 v[24:27], v{vL16}, {R(rWS)}, s{sT1} offen sc1""")
        if p.warm & 2:
            a(f"""s_lshl_b32 s{sT1}, s{sT0}, 8
            s_add_u32 s{sT1}, s{sT1}, {QL}
            v_lshlrev_b32 v28, 15, v{vG}
            v_lshl_add_u32 v28, v{vJ}, 4, v28
            buffer_store_dwordx4 v[24:27], v28, {R(rWS)}, s{sT1} offen sc1""")
        if p.cflag:
            a(f"""v_lshrrev_b32 v28, 2, v{vL}
            v_mul_u32_u24 v28, {p.cstr}, v28
            v_and_b32 v29, 3, v{vL}
            v_lshl_add_u32 v28, v29, 4, v28
            s_mul_i32 s{sT1}, s2, {8*p.cstr}
            s_add_u32 s{sT1}, s{sT1}, {FP2}
            s_cmp_lt_u32 s2, {p.crep}
            s_cselect_b32 exec_lo, -1, 0
            buffer_store_dwordx4 v[24:27], v28, {R(rWS)}, s{sT1} offen sc1""")
        a(f"""s_lshl_b32 s{sT1}, s2, 7
        s_add_u32 s{sT1}, s{sT1}, {HD}
        s_mov_b32 exec_lo, 0xff
        buffer_store_dwordx4 v[24:27], v{vL16}, {R(rWS)}, s{sT1} offen sc1
        s_mov_b64 exec, -1
""")
    a("L_xb0:\ns_barrier\ns_branch L_w3\nL_p1c:")
    zstamps()
    masks()
    stamp(1)
    if p.diag == 2: a(f"s_mov_b32 s{sStamp+6}, s{sQ+6}\ns_mov_b32 s{sStamp+8}, s{sQ+8}")
    a(f"""s_add_u32 s{sT0}, s{sT0}, {QP}
    s_mov_b32 s{sT2}, 0x01000100
    s_mov_b32 s{sT3}, 0x03020302
    v_add_u32 v190, {L_WQ}, v{vL16}
    s_waitcnt vmcnt(20)""")
    assert p.b0pos == 1 and p.ypre == 0
    a("s_cmp_ge_u32 s2, 128\ns_cbranch_scc1 L_nob0\ns_barrier\nL_nob0:")
    if p.diag == 2: a(f"s_memrealtime s[{sStamp+10}:{sStamp+11}]")
    for k in range(4):
        a(f"v_perm_b32 v{vXP+2*k}, v{186+k}, v{186+k}, s{sT2}\nv_perm_b32 v{vXP+2*k+1}, v{186+k}, v{186+k}, s{sT3}")
    for n in range(20): buildA(vAP+4*n, vXP+(n % 4)+(4 if n >= 16 else 0), (n//4) % 4)
    epoch_wait()
    if p.diag == 2: a(f"s_memrealtime s[{sStamp+12}:{sStamp+13}]")
    G = 4
    for t0 in range(0, 20, G):
        a(f"s_waitcnt vmcnt({20-t0-G})")
        if p.b0pos == 2 + t0//G: a("s_barrier")
        if p.diag == 2 and t0 == 0: a(f"s_memrealtime s[{sStamp+14}:{sStamp+15}]")
        if p.diag == 2 and t0 == 16: a(f"s_memrealtime s[{sStamp+16}:{sStamp+17}]")
        for t in range(t0, t0+G): a(f"ds_read_b128 {V(vWP+4*t)}, v190 offset:{1024*t}")
        if t0:
            a(f"s_waitcnt lgkmcnt({G})")
            for t in range(t0-G, t0): mfma(vDP, vAP+4*t, vWP+4*t, '0' if t == 0 else None)
    for t in range(20-G, 20):
        a(f"s_waitcnt lgkmcnt({19-t})")
        mfma(vDP, vAP+4*t, vWP+4*t)
    tag4(vDP)
    if p.fast: a(f"buffer_store_dwordx4 {V(vDP)}, v{vL16}, {R(rWS)}, s{sT1} offen")
    a(f"buffer_store_dwordx4 {V(vDP)}, v{vL16}, {R(rWS)}, s{sT0} offen sc1")
    stamp(2)
    a(f"""s_barrier
    s_cmp_ge_u32 s2, 128
    s_cbranch_scc1 L_Y_main
    s_branch L_X_main""")

    a.label("L_Ydma")
    sCK = sQ + 11
    if p.kint:
        a(f"""s_bfe_u32 s{sCK}, s2, 0x10006
        s_lshl_b32 s{sCK}, s{sCK}, 4
        s_add_u32 s{sCK}, s{sCK}, s{sT2}
        s_lshl_b32 s{sCK}, s{sCK}, 8
        s_and_b32 vcc_lo, s2, 63
        s_add_u32 s{sCK}, s{sCK}, vcc_lo
        s_lshl_b32 s{sCK}, s{sCK}, 10
        s_lshl_b32 m0, s{sT2}, 12""")
        if p.kint == 2: a(f"s_xor_b32 s{sCK}, s{sCK}, m0")
    else:
        a(f"""s_sub_u32 s{sCK}, s2, 128
        s_lshl_b32 s{sCK}, s{sCK}, 16
        s_lshl_b32 m0, s{sT2}, 12
        s_add_u32 s{sCK}, s{sCK}, m0""")
    def ckvaddr():
        a(f"""
    s_and_b32 vcc_lo, s{sT2}, 1
    s_lshl_b32 vcc_lo, vcc_lo, 7
    s_lshr_b32 vcc_hi, s{sT2}, 1
    s_lshl_b32 vcc_hi, vcc_hi, 4
    s_or_b32 vcc_lo, vcc_lo, vcc_hi
    v_xor_b32 v244, vcc_lo, v{vL16}
    v_xor_b32 v245, 32, v244
    v_xor_b32 v246, 64, v244
    v_xor_b32 v247, 0x60, v244""")
        if p.kint:
            for n in range(1, 4): a(f"v_add_u32 v{244+n}, {n*(65536-1024)}, v{244+n}")
    ckvaddr()
    a(f"""s_mov_b64 s[{rC}:{rC+1}], s[38:39]
    s_mov_b32 s{rC+2}, {SZ['ckv']}""")
    def ckv(i):
        if i % 4 == 0 and i: a(f"s_add_u32 s{sCK}, s{sCK}, {16*65536 if p.kint else 16384}\ns_add_u32 m0, m0, 16384")
        if p.kint == 2:
            a(f"s_xor_b32 s{sQ+2}, s{sCK}, {(16*(i>>2) + (i&3)) << 10}")
            a(f"buffer_load_dwordx4 v{244+(i&3)}, {R(rC)}, s{sQ+2} offen offset:{1024*(i%4)} {p.ckvf} lds")
            return
        a(f"buffer_load_dwordx4 v{244+(i&3)}, {R(rC)}, s{sCK} offen offset:{1024*(i%4)} {p.ckvf} lds")
    for i in range(p.ypre): ckv(i)
    zstamps()
    epoch_wait()
    a(f"""s_sub_u32 s{sT3}, s2, 128
    s_lshl_b32 s{sT3}, s{sT3}, 7
    s_add_u32 s{sT3}, s{sT3}, {HG}
    v_mov_b32 v14, s{sT[0]}
    v_lshlrev_b32 v15, 2, v{vL}""")
    if p.xg >= 0:
        a(f"s_cmp_lg_u32 s{sWave}, 4\ns_cbranch_scc1 L_nokg")
        for k in range(p.xgn):
            a(f"s_add_u32 s{sQ+k}, s2, {41*k}\ns_and_b32 s{sQ+k}, s{sQ+k}, 127\ns_lshl_b32 s{sQ+k}, s{sQ+k}, 7\ns_add_u32 s{sQ+k}, s{sQ+k}, {HK}")
        spoll_all([sQ+k for k in range(p.xgn)], sQ+4)
        a.label("L_nokg")
    def uvsetup(r):
        srd(rB, pWUV, 0 if p.nod1 & 8 else SZ['wuv'])
        a(f"""s_sub_u32 s{r}, s{sJ}, 4
        s_lshl_b32 s{r}, s{r}, 20
        s_lshl_b32 s{r+1}, s{sT2}, {18 if p.uvlin else 15}
        s_add_u32 s{r}, s{r}, s{r+1}
        s_lshl_b32 s{r+1}, s{sH}, 8
        s_add_u32 s{r}, s{r}, s{r+1}""")
        if p.uvlin:
            a(f"""s_lshl_b32 s{r+1}, s{sT2}, 6
            s_and_b32 s{r+1}, s{r+1}, 64
            v_and_b32 v9, 1, v{vG}
            v_lshlrev_b32 v9, 3, v9
            v_xor_b32 v9, v9, v{vJ}
            v_lshlrev_b32 v9, 4, v9
            v_xor_b32 v9, s{r+1}, v9
            v_lshl_add_u32 v44, v{vG}, 13, v9
            v_xor_b32 v45, 32, v44""")
        else:
            a(f"""v_lshlrev_b32 v9, 1, v{vG}
            v_xor_b32 v9, v9, v{vJ}
            v_lshlrev_b32 v9, 4, v9
            v_lshl_add_u32 v44, v{vG}, 17, v9
            v_xor_b32 v45, 0x80, v44""")
        a(f"""s_lshl_b32 s{r+1}, s{sT2}, 13
        s_add_u32 s{r+1}, s{r+1}, {L_WUVY}""")
    def uvdma(r, n0, n1):
        if n0 >= n1: return
        a("s_mov_b32 vcc_hi, m0")
        for n in range(n0, n1):
            off = 4*n*8192 if p.uvlin else (64*(n & 1) + (n >> 1))*8192
            a(f"s_add_u32 m0, s{r+1}, {1024*n}\ns_add_u32 vcc_lo, s{r}, {off}")
            a(f"buffer_load_dwordx4 v{44+((n>>2) if p.uvlin else ((n>>1)&1))}, {R(rB)}, vcc_lo offen {nt} lds")
        a("s_mov_b32 m0, vcc_hi")
    uvsetup(sQ)
    a("s_barrier")
    stamp(10)
    uvdma(sQ, 0, p.uv1)
    for i in range(p.ypre, 17):
        if i == p.gate:
            a(f"""s_cmp_eq_u32 s{sWave}, 4
            s_cselect_b32 exec_lo, {'0xffff' if p.gate2 >= 0 else '-1'}, 0
            s_mov_b32 exec_hi, 0
            buffer_store_dword v14, v15, {R(rWS)}, s{sT3} offen sc1
            s_mov_b64 exec, -1""")
        if i == p.gate2:
            a(f"""s_cmp_eq_u32 s{sWave}, 5
            s_cselect_b32 exec_lo, 0xffff, 0
            s_mov_b32 exec_hi, 0
            buffer_store_dword v14, v15, {R(rWS)}, s{sT3} offen offset:64 sc1
            s_mov_b64 exec, -1""")
        if i < (12 if p.qmid else 16): ckv(i)
    if p.emub:
        a(f"s_sub_u32 s{sCK}, s{sCK}, {3*16*65536}\ns_xor_b32 s{sCK}, s{sCK}, {8*1024}\ns_sub_u32 m0, m0, {3*16384}")
        for i in range(16): ckv(i)
    stamp(1)
    masks()
    a("s_branch L_Y_main")
    a.label("L_w13")
    a(f"""s_cmp_eq_u32 s{sWave}, 1
    s_cbranch_scc1 L_w1""")
    a.label("L_w3")
    if p.stamp == 5:
        a(f"""s_lshl_b32 s{sT0}, s2, 3
        s_add_u32 s{sT0}, s{sT0}, s{sWave}
        s_lshl_b32 s{sT0}, s{sT0}, 6
        s_add_u32 s{sT0}, s{sT0}, {STAMP}
        v_mov_b32 v24, s{sStamp}
        v_mov_b32 v25, 0
        s_waitcnt lgkmcnt(0)
        v_mov_b32 v24, s{sStamp}
        s_cmp_lt_u32 s2, 8
        s_cselect_b32 exec_lo, 1, 0
        s_mov_b32 exec_hi, 0
        buffer_store_dword v24, v25, {R(rWS)}, s{sT0} offen sc1
        s_mov_b64 exec, -1""")
    if p.tlb:
        a(f"""s_cmp_ge_u32 s2, 128
        s_cselect_b32 exec_lo, {7 if p.tlb & 2 else 0}, 0
        s_mov_b32 exec_hi, 0
        v_mul_u32_u24 v22, {63*p.opstr}, v{vL}
        s_mov_b32 s{sT0}, {OP + p.opstr + 32768}
        s_cbranch_execz L_tlbd
        buffer_load_dword v251, v22, {R(rWS)}, s{sT0} offen
L_tlbd:
        s_mov_b64 exec, -1""")
    a.label("L_w23")
    zstamps()
    masks()
    epoch_wait()
    a(f"""s_barrier
    s_waitcnt vmcnt(0)
    s_cmp_ge_u32 s2, 128
    s_cbranch_scc1 L_Y_main
    s_branch L_X_main""")
    a.label("L_w1")
    a(f"""s_movk_i32 s{rA+2}, {SZ['x']}
    s_mov_b32 s{rA+3}, s{rWS+3}
    v_and_b32 v9, 31, v{vL}
    v_mul_u32_u24 v9, 36, v9
    v_lshrrev_b32 v12, 5, v{vL}
    v_mul_u32_u24 v11, 1152, v12
    v_add_u32 v11, v11, v9
    buffer_load_dwordx4 v[20:23], v11, {R(rA)}, 0 offen
    buffer_load_dwordx4 v[24:27], v11, {R(rA)}, 0 offen offset:16
    buffer_load_dword v28, v11, {R(rA)}, 0 offen offset:32
    s_waitcnt lgkmcnt(0)""")
    srd(rB, pGW, SZ['gw'])
    a(f"""buffer_load_dwordx4 v[32:35], v9, {R(rB)}, 0 offen
    buffer_load_dwordx4 v[36:39], v9, {R(rB)}, 0 offen offset:16
    buffer_load_dword v40, v9, {R(rB)}, 0 offen offset:32
    """)
    zstamps()
    masks()
    epoch_wait()
    a(f"""v_mov_b32 v13, 0
    v_lshlrev_b32 v10, 2, v12
    v_add_u32 v10, {L_GATE}, v10
    s_barrier
    s_waitcnt vmcnt(0)""")
    def gatemath():
        for k in range(9): a(f"v_dot2_f32_bf16 v13, v{20+k}, v{32+k}, v13")
        for m in ("quad_perm:[1,0,3,2]", "quad_perm:[2,3,0,1]", "row_half_mirror", "row_mirror"):
            a(f"v_add_f32_dpp v13, v13, v13 {m} row_mask:0xf bank_mask:0xf")
        a(f"""v_mov_b32 v14, v13
        v_permlane16_swap_b32 v13, v14
        v_add_f32 v13, v13, v14
        v_mul_f32 v13, {f2u(-math.log2(math.e))}, v13
        v_exp_f32 v13, v13
        v_add_f32 v13, 1.0, v13
        v_rcp_f32 v13, v13
        ds_write_b32 v10, v13
        s_waitcnt lgkmcnt(0)""")
    gatemath()
    a("s_branch L_Y_main")

    a.label("L_X_w47")
    zstamps()
    masks()
    a("v_mov_b32 v9, v19")
    if p.xg < 0: epoch_wait()
    if p.diag == 2: a(f"s_mov_b32 s{sStamp+10}, s{sQ+6}\ns_mov_b32 s{sStamp+12}, s{sQ+8}")
    a(f"""s_lshl_b32 s{sT0}, s{sH}, 13
    s_lshl_b32 s{sT1}, s{sT2}, 8
    s_add_u32 s{sT0}, s{sT0}, s{sT1}
    s_add_u32 s{sT0}, s{sT0}, {QPL if p.fast else QP}
    s_add_u32 s{sT1}, s{sT0}, 4096
    v_lshlrev_b32 v24, 10, v{vG}
    v_lshl_add_u32 v24, v{vJ}, 4, v24""")
    a(f"""s_lshr_b32 s{sT3}, s{sT2}, 1
    s_lshl_b32 s{sT3}, s{sT3}, 8
    s_bitcmp1_b32 s{sT2}, 0
    s_cselect_b32 vcc_lo, 8, 0
    s_add_u32 s{sT3}, s{sT3}, vcc_lo
    s_add_u32 s{sT3}, s{sT3}, {L_QV}
    v_lshlrev_b32 v25, 4, v{vJ}
    v_lshl_add_u32 v25, v{vG}, 1, v25
    v_add_u32 v25, s{sT3}, v25""")
    a(f"""s_lshl_b32 s{sT3}, s{sT2}, 13
    v_lshl_add_u32 v26, v{vJ}, 8, v9
    v_add_u32 v26, s{sT3}, v26
    v_xor_b32 v27, 64, v26
    v_xor_b32 v28, 0x80, v26
    v_xor_b32 v29, 0xc0, v26""")
    a(f"""v_lshrrev_b32 v30, 3, v{vJ}
    v_lshlrev_b32 v30, 8, v30
    v_lshl_add_u32 v30, v{vG}, 4, v30
    v_add_u32 v30, {L_QV}, v30""")
    a(f"""v_and_b32 v31, 31, v{vL}
    s_lshl_b32 s{sT3}, s{sT2}, 5
    v_add_u32 v31, s{sT3}, v31
    v_bfe_u32 v32, v31, 3, 3
    v_mul_u32_u24 v32, 37, v32
    v_add_u32 v32, s{sT[0]}, v32
    v_and_b32 v33, 7, v31
    v_lshrrev_b32 v32, v33, v32
    v_and_b32 v32, 1, v32
    v_lshlrev_b32 v32, 16, v32
    v_xor_b32 v33, 0x10000, v32
    v_lshlrev_b32 v31, 1, v31
    v_lshrrev_b32 v34, 5, v{vL}
    v_lshl_add_u32 v31, v34, 15, v31
    s_lshl_b32 s{sT3}, s{sH}, 10
    s_lshl_b32 vcc_lo, s{sJ}, 8
    s_add_u32 s{sT3}, s{sT3}, vcc_lo
    s_add_u32 s{sT3}, s{sT3}, {QL}
    v_mov_b32 v35, 0xfffe0000
    s_lshr_b32 s{sQ+2}, s{sH}, 2
    s_mul_i32 s{sQ+2}, s{sQ+2}, {p.cstr}
    s_and_b32 vcc_lo, s{sH}, 3
    s_lshl_b32 vcc_lo, vcc_lo, 2
    s_add_u32 vcc_lo, vcc_lo, s{sJ}
    s_lshl_b32 vcc_lo, vcc_lo, 2
    s_add_u32 s{sQ+2}, s{sQ+2}, vcc_lo
    s_add_u32 s{sQ+2}, s{sQ+2}, {FP2 + 0x80000}
    v_mul_u32_u24 v104, {8*p.cstr}, v{vL}
    v_mov_b32 v105, s{sT[0]}
    s_barrier""")
    stamp(1)
    for n in range(p.xpre, 8): wuk(n)
    a(f"s_waitcnt vmcnt({p.pollA_wait})")
    stamp(2)
    L = poll_begin()
    a(f"""buffer_load_dwordx4 v[36:39], v24, {R(rWS)}, s{sT0} offen sc1
    buffer_load_dwordx4 v[40:43], v24, {R(rWS)}, s{sT1} offen sc1
    s_waitcnt vmcnt(1)""")
    chk4(44, 36, True)
    a("s_waitcnt vmcnt(0)")
    chk4(44, 40)
    if p.diag == 4: a(f"s_cmp_eq_u32 s{sCnt}, 0\ns_cbranch_scc0 L_d4\ns_memrealtime s[{sStamp+12}:{sStamp+13}]\nL_d4:")
    poll_end(L, 44, '0xff', ((sT0, sT1), QPL-QP))
    if p.stamp: a(f"s_mov_b32 s{sStamp+24}, s{sCnt}")
    stamp(3)
    for tl in range(2):
        for ks in range(4):
            a(f"ds_read_b128 {V(48+16*tl+4*ks)}, v{26+ks} offset:{4096*tl}")
    for k in range(4): a(f"v_add_f32 v{36+k}, v{36+k}, v{40+k}")
    treduce(36)
    a(f"""v_cvt_pk_bf16_f32 v36, v36, v36
    ds_write_b16 v25, v36
    s_waitcnt lgkmcnt(0)
    s_barrier""")
    if p.diag == 4: stamp(7)
    for ks in range(4): a(f"ds_read_b128 {V(80+4*ks)}, v30 offset:{64*ks}")
    if p.bflag == 1:
        a(f"""s_cmp_eq_u32 s{sWave}, 4
        s_cselect_b32 exec_lo, 0xffff, 0
        s_mov_b32 exec_hi, 0
        buffer_store_dword v105, v104, {R(rWS)}, s{sQ+2} offen sc1
        s_mov_b64 exec, -1""")
    for ks in range(4):
        a(f"s_waitcnt lgkmcnt({3-ks})")
        mfma(96, 80+4*ks, 48+4*ks, '0' if ks == 0 else None)
        mfma(100, 80+4*ks, 64+4*ks, '0' if ks == 0 else None)
    a(f"""s_mov_b32 vcc_lo, 0xffff0000
    s_mov_b32 vcc_hi, 0xffff0000
    v_cndmask_b32 v96, v96, v100, vcc
    v_mul_f32 v96, {f2u(128**-0.5*math.log2(math.e))}, v96
    v_add_u32 v96, v96, v33
    v_and_or_b32 v96, v96, v35, v32
    buffer_store_short_d16_hi v96, v31, {R(rWS)}, s{sT3} offen sc1""")
    if p.bflag == 2:
        a(f"""s_cmp_eq_u32 s{sWave}, 4
        s_cselect_b32 exec_lo, 0xffff, 0
        s_mov_b32 exec_hi, 0
        buffer_store_dword v105, v104, {R(rWS)}, s{sQ+2} offen sc1
        s_mov_b64 exec, -1""")
    stamp(4)

    a.label("L_X_main")
    sX = sQ + 9
    a(f"s_mul_i32 s{sT0}, s{sI}, 9\nv_add_u32 v9, s{sT0}, v{vJ}")
    decode_v(139, 9, 10)
    a(f"""s_mul_i32 s{sT0}, s{sXcd}, 576
    v_add_u32 v139, s{sT0}, v139
    v_mul_u32_u24 v10, 1152, v139""")
    for t in range(9): a(f"v_readlane_b32 s{sQ+t}, v10, {t}")
    a(f"""v_bfe_u32 v9, v{vL}, 3, 1
    v_lshlrev_b32 v135, 2, v{vL}
    v_lshlrev_b32 v136, 2, v9
    v_add_u32 v136, {L_GATE}, v136
    v_mov_b32 v137, s{sT[0]}
    v_mov_b32 v138, 0
    v_mov_b32 v133, 0
    v_and_b32 v132, 3, v{vL}
    v_lshl_add_u32 v134, v132, 2, v{vG}
    v_lshlrev_b32 v134, 2, v134
    v_mul_u32_u24 v9, 192, v9
    v_add_u32 v134, v134, v9
    v_add_u32 v134, {L_HX}, v134
    v_mul_u32_u24 v132, 37, v132
    v_add_u32 v132, s{sT[0]}, v132
    s_lshl_b32 s{sX}, s{sH}, 2
    s_add_u32 s{sX}, s{sX}, s{sJ}
    s_mul_i32 s{sX+2}, s{sX}, {32*1152}
    s_lshl_b32 s{sX}, s{sX}, 10
    s_add_u32 s{sX}, s{sX}, {CXL if p.fast else CX}
    s_mul_i32 s{sX+1}, s2, 4608
    s_add_u32 s{sX+1}, s{sX+1}, {FP}""")
    if p.p5h: a(f"v_mov_b32 v9, {L_RED}\nds_write_b32 v9, v138\ns_waitcnt lgkmcnt(0)")
    srd(rA, pX, SZ['x'])
    xoff(12)
    a(f"""s_cmp_ge_u32 s{sWave}, 4
    s_cbranch_scc1 {'L_X_x' if p.xearly else 'L_X_b2'}
    s_barrier""")
    if p.xearly:
        a(f"L_X_x:\ns_cmp_ge_u32 s{sWave}, 5\ns_cbranch_scc1 L_X_b2\ns_mul_i32 s{sT1}, s{sI}, 72")
        for v in range(3): a(f"buffer_load_ushort v{13+v}, v12, {R(rA)}, s{sT1} offen offset:{32*v}")
        a("s_waitcnt vmcnt(0)")
        for v in range(3): a(f"v_lshl_or_b32 v{13+v}, v{13+v}, 16, v{13+v}")
        for t in range(9): buildA(20+4*t, 13+t//4, t % 4)
    if p.tlb:
        a(f"""s_cmp_lg_u32 s{sWave}, 3
        s_cbranch_scc1 L_X_notlb
        s_mov_b64 exec, 7
        v_lshlrev_b32 v22, 21, v{vL}
        global_load_dword v252, v22, s[{pW1}:{pW1+1}]
        global_load_dword v253, v22, s[{pW2}:{pW2+1}]
        global_load_dword v254, v22, s[{pWO}:{pWO+1}]
        s_mov_b64 exec, -1
L_X_notlb:""")
    if p.qpf:
        a(f"""s_cmp_lg_u32 s{sWave}, 1
        s_cbranch_scc1 L_X_noqpf
        s_lshl_b32 s{sT0}, s{sI}, 12
        s_add_u32 s{sT0}, s{sT0}, {QL}""")
        lsbtags(40)
        if p.qpfs: a(f"s_sleep {p.qpfs}")
        L = poll_begin()
        for n in range(4): a(f"buffer_load_dwordx4 {V(20+4*n)}, v{vL16}, {R(rWS)}, s{sT0} offen offset:{1024*n} sc1")
        a("s_mov_b64 exec, -1\ns_waitcnt vmcnt(0)")
        for n in range(4): chkv(9, 20+4*n, 40, n == 0)
        sv = p.maxspin; p.maxspin = p.qpf
        poll_end_masked(L, 9, '0x10001')
        p.maxspin = sv
        a.label("L_X_noqpf")
    if p.gate >= 0:
        a(f"""s_cmp_lg_u32 s{sWave}, 0
        s_cbranch_scc1 L_X_b2
        s_lshl_b32 s{sT2}, s2, 7
        s_add_u32 s{sT2}, s{sT2}, {HG}""")
        if p.gate2 >= 0: a(f"s_bitcmp1_b32 s2, 3\ns_cselect_b32 s{sT3}, 64, 0\ns_add_u32 s{sT2}, s{sT2}, s{sT3}")
        a(f"s_xor_b32 s{sT3}, s{sT2}, {43*128}")
        if p.gand:
            for k in range(p.gand):
                a(f"s_add_u32 s{6+k}, s2, {43*k}\ns_and_b32 s{6+k}, s{6+k}, 127\ns_lshl_b32 s{6+k}, s{6+k}, 7\ns_add_u32 s{6+k}, s{6+k}, {HG}")
            spoll_all([6+k for k in range(p.gand)], sT0)
        else:
            spoll((sT2, sT3))
        stamp(3)
    a.label("L_X_b2")
    a("s_barrier")
    a(f"""s_cmp_ge_u32 s{sWave}, 5
    s_cbranch_scc1 L_X_fg""")
    vXF, vAF, vWF, vDF, vWO, vW2 = 13, 20, 60, 100, 140, 176
    srd(rB, pW1, 0 if p.nod1 & 4 else SZ['w1'])
    if not p.xearly:
        a(f"s_mul_i32 s{sT1}, s{sI}, 72")
        for v in range(3): a(f"buffer_load_ushort v{vXF+v}, v12, {R(rA)}, s{sT1} offen offset:{32*v}")
    srd(rA, pW2, 0 if p.nod1 & 1 else SZ['w2'])
    srd(rC, pWO, 0 if p.nod1 & 2 else SZ['wo'])
    a(f"""s_mul_i32 s{sT0}, s{sI}, {36*9216}
    s_mul_i32 s{sT1}, s{sXcd}, 1152
    s_add_u32 s{sT0}, s{sT0}, s{sT1}
    s_lshl_b32 s{sT1}, s{sWave}, 8
    s_add_u32 s{sT0}, s{sT0}, s{sT1}
    v_mul_u32_u24 v10, 9216, v{vG}
    v_mul_u32_u24 v17, 1152, v{vG}
    v_add_u32 v17, s{sT1}, v17
    v_add_u32 v16, s{sT1}, v10
    s_lshl_b32 s{sT2}, s{sXcd}, 4
    s_add_u32 s{sT2}, s{sT2}, s{sI}
    s_mul_i32 s{sT2}, s{sT2}, 4608
    s_add_u32 s{sT2}, s{sT2}, {HP}
    s_cmp_eq_u32 s{sWave}, 4
    s_cbranch_scc1 L_X_f1half
    v_lshl_add_u32 v10, v{vJ}, 4, v10
    v_lshl_add_u32 v16, v{vJ}, 4, v16
    v_lshl_add_u32 v17, v{vJ}, 4, v17""")
    def wo_full():
        for t in range(8):
            if t == 4: a(f"s_add_u32 s{sX+2}, s{sX+2}, {4*1152}")
            if t == p.fmid: a("s_barrier\ns_barrier")
            a(f"buffer_load_dwordx4 {V(vWO+4*t)}, v16, {R(rC)}, s{sX+2} offen offset:{1152*(t&3)} {nt}")
    def wo_half():
        for n in range(4):
            if n == 2: a(f"s_add_u32 s{sX+2}, s{sX+2}, {4*1152}")
            if p.fmid < 8 and n == p.fmid//2: a("s_barrier\ns_barrier")
            a(f"buffer_load_dwordx4 {V(vWO+4*n)}, v16, {R(rC)}, s{sX+2} offen offset:{2304*(n&1)} {nt}")
    for t in range(9):
        if p.xramp and p.xramp <= t <= p.xrn: a(f"s_waitcnt vmcnt({p.xramp-1})")
        a(f"buffer_load_dwordx4 {V(vWF+4*t)}, v10, {R(rB)}, s{sT0} offen {nt}")
        if t < 8: a(f"s_add_u32 s{sT0}, s{sT0}, {4*9216}")
    def w2_full():
        for t in range(9): a(f"buffer_load_dwordx4 {V(vW2+4*t)}, v17, {R(rA)}, s{sQ+t} offen {nt}")
    if p.xord < 2: w2_full()
    elif p.xord == 2: a("s_barrier")
    ex = {0: 17, 1: 9, 2: 0, 3: 0}[p.xord]
    if p.xord == 0: wo_full()
    slot_voff(138, False)
    if not p.xearly:
        a(f"s_waitcnt vmcnt({9+ex})")
        for v in range(3): a(f"v_lshl_or_b32 v{vXF+v}, v{vXF+v}, 16, v{vXF+v}")
        for t in range(9): buildA(vAF+4*t, vXF+t//4, t % 4)
    for t in range(9):
        a(f"s_waitcnt vmcnt({8 if p.xord == 3 else 8-t+ex})")
        mfma(vDF, vAF+4*t, vWF+4*t, '0' if t == 0 else None)
        if p.xord == 3 and t < 8: a(f"buffer_load_dwordx4 {V(vW2+4*t)}, v17, {R(rA)}, s{sQ+t} offen {nt}")
    if not p.nof: slot_store(vDF, sT2, False, 138, HPL-HP if p.floc else None)
    if p.xord == 3: a(f"buffer_load_dwordx4 {V(vW2+32)}, v17, {R(rA)}, s{sQ+8} offen {nt}")
    stamp(5)
    if p.fpos == 0: a("s_barrier")
    if p.xord in (1, 3): wo_full()
    if p.fpos == 1: a("s_barrier")
    if p.xord == 2: w2_full()
    a("s_branch L_X_o2")
    a.label("L_X_f1half")
    a(f"""v_and_b32 v9, 7, v{vJ}
    v_lshl_add_u32 v10, v9, 4, v10
    v_lshl_add_u32 v16, v9, 4, v16
    v_lshl_add_u32 v17, v9, 4, v17
    v_lshrrev_b32 v9, 3, v{vJ}
    v_mul_u32_u24 v11, {4*9216}, v9
    v_add_u32 v10, v10, v11
    v_mul_u32_u24 v11, 1152, v9
    v_add_u32 v16, v16, v11""")
    for n in range(5):
        if n == 4: a("s_mov_b32 exec_lo, 0x00ff00ff\ns_mov_b32 exec_hi, 0x00ff00ff")
        if p.xramp and n in (1, 2): a("s_waitcnt vmcnt(0)")
        a(f"buffer_load_dwordx4 {V(vWF+4*n)}, v10, {R(rB)}, s{sT0} offen {nt}")
        if n < 4: a(f"s_add_u32 s{sT0}, s{sT0}, {8*9216}")
    a("s_mov_b64 exec, -1")
    def w2_half():
        a("s_mov_b32 exec_lo, 0x00ff00ff\ns_mov_b32 exec_hi, 0x00ff00ff")
        a(f"buffer_load_dwordx4 {V(vW2+16)}, v17, {R(rA)}, s{sQ+8} offen {nt}")
        a("s_mov_b64 exec, -1\ns_mov_b32 vcc_lo, 0xff00ff00\ns_mov_b32 vcc_hi, 0xff00ff00")
        for n in range(4):
            a(f"v_mov_b32 v18, s{sQ+2*n}\nv_mov_b32 v19, s{sQ+2*n+1}\nv_cndmask_b32 v18, v18, v19, vcc\nv_add_u32 v18, v18, v17")
            a(f"buffer_load_dwordx4 {V(vW2+4*n)}, v18, {R(rA)}, 0 offen {nt}")
    if p.xord < 2: w2_half()
    elif p.xord == 2: a("s_barrier")
    ex = {0: 9, 1: 5, 2: 0, 3: 0}[p.xord]
    if p.xord == 0: wo_half()
    slot_voff(138, True)
    if not p.xearly:
        a(f"s_waitcnt vmcnt({5+ex})")
        for v in range(3): a(f"v_lshl_or_b32 v{vXF+v}, v{vXF+v}, 16, v{vXF+v}")
        for t in range(9): buildA(vAF+4*t, vXF+t//4, t % 4)
    for n in range(5):
        a(f"s_waitcnt vmcnt({4-n+ex})")
        mfma(vDF, vAF+8*n, vWF+4*n, '0' if n == 0 else None)
        if n < 4: mfma(vDF+4, vAF+8*n+4, vWF+4*n, '0' if n == 0 else None)
    for r in range(4): a(f"v_add_f32_dpp v{vDF+r}, v{vDF+4+r}, v{vDF+r} row_ror:8 row_mask:0xf bank_mask:0xf")
    if not p.nof: slot_store(vDF, sT2, True, 138, HPL-HP if p.floc else None)
    if p.xord == 3: w2_half()
    stamp(5)
    if p.fpos == 0: a("s_barrier")
    if p.xord in (1, 3): wo_half()
    if p.fpos == 1: a("s_barrier")
    if p.xord == 2: w2_half()
    a.label("L_X_o2")
    if p.fdel and p.fmid >= 8: a("s_barrier")
    vA2, vD2 = 20, 60
    a(f"""ds_read_b32 v136, v136
    s_lshl_b32 s{sT3}, s2, 7
    s_add_u32 s{sT3}, s{sT3}, {HD}
    s_barrier""")
    stamp(8)
    for v in range(3): a(f"ds_read_b32 v{68+v}, v134 offset:{64*v}")
    a("s_waitcnt lgkmcnt(0)")
    for t in range(9): buildA(vA2+4*t, 68+t//4, t % 4)
    a(f"""s_waitcnt vmcnt({8 if p.xord in (1, 3) else 0})
    s_cmp_eq_u32 s{sWave}, 4
    s_cbranch_scc1 L_X_half2""")
    if p.xord == 2:
        for t in range(8): a(f"ds_read_b128 {V(vWO+4*t)}, v16 offset:{1152*t}")
    for t in range(9): mfma(vD2, vA2+4*t, vW2+4*t, '0' if t == 0 else None)
    if p.p5h:
        a(f"""s_cmp_lg_u32 s{sWave}, 0
        s_cbranch_scc1 L_X_o3
        v_mov_b32 v9, {L_RED}
        s_mov_b32 s{sCnt}, 0
L_X_hw:
        ds_read_b32 v10, v9
        s_add_u32 s{sCnt}, s{sCnt}, 1
        s_cmp_ge_u32 s{sCnt}, {16*p.maxspin}
        s_cbranch_scc1 L_X_hwd
        s_waitcnt lgkmcnt(0)
        v_cmp_ne_u32 vcc, s{sT[0]}, v10
        s_cbranch_vccnz L_X_hw
L_X_hwd:""")
        for n in range(5): a(f"ds_read_b128 {V(108+4*n)}, v{vL16} offset:{1024*n}")
        slot_voff(133, True)
    a("s_branch L_X_o3")
    a.label("L_X_half2")
    a("s_waitcnt vmcnt(4)")
    if p.xord == 2:
        for n in range(4): a(f"ds_read_b128 {V(vWO+4*n)}, v16 offset:{2304*n}")
    for n in range(5):
        mfma(vD2, vA2+8*n, vW2+4*n, '0' if n == 0 else None)
        if n < 4: mfma(vD2+4, vA2+8*n+4, vW2+4*n, '0' if n == 0 else None)
    if p.p5h:
        for r in range(4): a(f"v_add_f32_dpp v{vD2+r}, v{vD2+4+r}, v{vD2+r} row_ror:8 row_mask:0xf bank_mask:0xf")
        a(f"ds_write_b128 v{vL16}, {V(vD2)} offset:4096\ns_waitcnt vmcnt(0)")
        for n in range(4): a(f"ds_write_b128 v{vL16}, {V(vWO+4*n)} offset:{1024*n}")
        a(f"v_mov_b32 v9, {L_RED}\ns_waitcnt lgkmcnt(0)\nds_write_b32 v9, v137\ns_branch L_X_end")
    a.label("L_X_o3")
    a("s_waitcnt lgkmcnt(0)")
    stamp(9)
    L = poll_begin()
    for cq in range(4): a(f"buffer_load_dword v{72+cq}, v135, {R(rWS)}, s{sX} offen offset:{256*cq} sc1")
    a("s_waitcnt vmcnt(0)")
    a("v_xor_b32 v76, v132, v72")
    for cq in range(1, 4): a(f"v_bitop3_b32 v76, v76, v{72+cq}, v132 bitop3:0xf6")
    poll_end(L, 76, '0xff', ((sX,), CXL-CX), sleep=p.asleep)
    stamp(10)
    def dflag():
        a(f"""s_cmp_eq_u32 s{sWave}, 1
        s_cselect_b32 exec_lo, 0xffff, 0
        s_mov_b32 exec_hi, 0
        buffer_store_dword v137, v135, {R(rWS)}, s{sT3} offen sc1
        s_mov_b64 exec, -1""")
    if p.dflag == 3 and not p.dex: dflag()
    a(f"""v_add_f32 v72, v72, v73
    v_add_f32 v74, v74, v75
    v_add_f32 v72, v72, v74
    v_mul_f32 v72, v72, v136
    v_cvt_pk_bf16_f32 v72, v72, v72
    v_mov_b32 v73, v72
    v_mov_b32 v74, v72
    v_mov_b32_dpp v73, v72 row_shr:4 row_mask:0xf bank_mask:0xa
    v_mov_b32_dpp v74, v72 row_shl:4 row_mask:0xf bank_mask:0x5
    s_cmp_eq_u32 s{sWave}, {0 if p.p5h else 4}
    s_cbranch_scc1 L_X_half3""")
    for t in range(8):
        buildA(vA2+4*t, 73+t//4, t % 4)
        if t > 0: mfma(vD2, vA2+4*(t-1), vWO+4*(t-1))
    mfma(vD2, vA2+28, vWO+28)
    slot_store(vD2, sX+1, False, 138)
    def qclean(w):
        a(f"""s_lshl_b32 vcc_lo, s{sH}, 3
        s_add_u32 vcc_lo, vcc_lo, s{sJ}
        s_lshl_b32 vcc_lo, vcc_lo, 10
        s_add_u32 vcc_lo, vcc_lo, {QPL}
        s_cmp_eq_u32 s{sWave}, {w}
        s_cselect_b64 exec, -1, 0
        buffer_store_dwordx4 v[4:7], v{vL16}, {R(rWS)}, vcc_lo offen sc1
        s_mov_b64 exec, -1""")
    if p.clean & 1: a(f"s_add_u32 vcc_lo, s{sT2}, {HPL-HP}\nbuffer_store_dwordx4 {V(vDF)}, v138, {R(rWS)}, vcc_lo offen sc1")
    if p.clean & 2: qclean(2)
    if p.dflag == 4: dflag()
    a("s_branch L_X_end")
    a.label("L_X_half3")
    if p.p5h:
        for t in range(9):
            if t < 8: buildA(vA2+4*t, 73+t//4, t % 4)
            if t > 0:
                u = t - 1
                mfma(124+4*(u & 1), vA2+4*u, 108+4*(u//2), '0' if u == 1 else None)
                mfma(vD2, vA2+4*u, vWO+4*u)
        for r in range(4): a(f"v_add_f32_dpp v{124+r}, v{128+r}, v{124+r} row_ror:8 row_mask:0xf bank_mask:0xf")
        slot_store(vD2, sX+1, False, 138)
        slot_store(124, sX+1, True, 133)
        a("s_branch L_X_end")
    else:
        for t in range(8):
            buildA(vA2+4*t, 73+t//4, t % 4)
            if t > 0: mfma(vD2+4*((t-1) & 1), vA2+4*(t-1), vWO+4*((t-1)//2))
        mfma(vD2+4, vA2+28, vWO+12)
        for r in range(4): a(f"v_add_f32_dpp v{vD2+r}, v{vD2+4+r}, v{vD2+r} row_ror:8 row_mask:0xf bank_mask:0xf")
        slot_store(vD2, sX+1, True, 138)
        if p.clean & 1: a(f"s_add_u32 vcc_lo, s{sT2}, {HPL-HP}\ns_mov_b32 exec_lo, 0x00ff00ff\ns_mov_b32 exec_hi, 0x00ff00ff\nbuffer_store_dwordx4 {V(vDF)}, v138, {R(rWS)}, vcc_lo offen sc1\ns_mov_b64 exec, -1")
        a("s_branch L_X_end")
    a.label("L_X_fg")
    a(f"""s_cmp_eq_u32 s{sWave}, 7
    s_cbranch_scc1 L_X_fg7""")
    srd(rB, pB1, SZ['b1'])
    a(f"""s_sub_u32 s{sT2}, s{sWave}, 5
    s_mul_i32 s{sT0}, s{sXcd}, {16*4608}
    s_mul_i32 s{sT1}, s{sT2}, 2304
    s_add_u32 s{sT0}, s{sT0}, s{sT1}
    s_mul_i32 s{sT1}, s{sI}, 144
    s_add_u32 s{sT0}, s{sT0}, s{sT1}
    s_add_u32 s{sT0}, s{sT0}, {HPL if p.floc else HP}
    s_add_u32 s{sQ}, s{sT0}, {4*4608}
    s_add_u32 s{sQ+1}, s{sT0}, {8*4608}
    s_add_u32 s{sQ+2}, s{sT0}, {12*4608}
    v_mul_u32_u24 v10, 4608, v{vG}
    v_lshl_add_u32 v10, v{vJ}, 4, v10
    v_add_u32 v14, v139, v{vG}
    v_lshlrev_b32 v14, 1, v14
    s_lshl_b32 s{sT1}, s{sT2}, 2
    s_add_u32 s{sT1}, s{sT1}, {L_GATE}
    v_mov_b32 v16, s{sT1}
    s_mul_i32 s{sT1}, s{sT2}, 192
    s_add_u32 s{sT1}, s{sT1}, {L_HX}
    v_lshl_add_u32 v17, v{vJ}, 2, v{vG}
    v_lshlrev_b32 v17, 2, v17
    v_add_u32 v17, s{sT1}, v17
    s_mov_b32 exec_lo, 0x01ff01ff
    s_mov_b32 exec_hi, 0x01ff01ff
    buffer_load_ushort v15, v14, {R(rB)}, 0 offen""")
    def floads():
        for k, s in enumerate((sT0, sQ, sQ+1, sQ+2)):
            if not p.nof: a(f"buffer_load_dwordx4 {V(20+4*k)}, v10, {R(rWS)}, s{s} offen sc1")
    if p.xord == 2: a("s_barrier")
    if p.fdel: a("s_barrier")
    a("s_barrier\nds_read_b32 v16, v16")
    if p.fmid < 8:
        floads()
        Lf = a.newlabel('fchk')
        a(f"s_barrier\ns_mov_b32 s{sCnt}, 0\ns_branch {Lf}")
        L = a.newlabel('poll'); a.label(L)
        floads()
        a.label(Lf)
    else:
        L = poll_begin()
        floads()
    for k in range(4):
        a(f"s_waitcnt vmcnt({3-k})")
        chk4(36, 20+4*k, k == 0)
    poll_end(L, 36, '0' if p.nof else '0xff', ((sT0, sQ, sQ+1, sQ+2), HPL-HP) if p.floc else None, sleep=p.fsleep)
    stamp(8)
    a("s_mov_b64 exec, -1")
    for k in range(4): a(f"v_add_f32 v{20+k}, v{20+k}, v{24+k}\nv_add_f32 v{28+k}, v{28+k}, v{32+k}")
    for k in range(4): a(f"v_add_f32 v{20+k}, v{20+k}, v{28+k}")
    treduce(20)
    c1 = -2*math.sqrt(2/math.pi)*math.log2(math.e)
    a(f"""v_lshlrev_b32 v15, 16, v15
    v_add_f32 v20, v20, v15
    v_mul_f32 v21, v20, v20
    v_mov_b32 v22, {f2u(c1)}
    v_fmac_f32 v22, {f2u(c1*0.044715)}, v21
    v_mul_f32 v21, v22, v20
    v_exp_f32 v21, v21
    v_add_f32 v21, 1.0, v21
    v_rcp_f32 v21, v21
    s_waitcnt lgkmcnt(0)
    v_sub_f32 v16, 1.0, v16
    v_mul_f32 v20, v20, v21
    v_mul_f32 v20, v20, v16
    v_cvt_pk_bf16_f32 v20, v20, v20
    s_mov_b32 exec_lo, 0x01ff01ff
    s_mov_b32 exec_hi, 0x01ff01ff
    ds_write_b32 v17, v20
    s_mov_b64 exec, -1
    s_waitcnt lgkmcnt(0)""")
    a("s_branch L_X_fgend")
    a.label("L_X_fg7")
    if p.floc:
        a(f"""s_lshl_b32 s{sT2}, s{sXcd}, 4
        s_add_u32 s{sT2}, s{sT2}, s{sI}
        s_mul_i32 s{sT2}, s{sT2}, 4608
        s_add_u32 s{sT2}, s{sT2}, {HPL}
        v_lshlrev_b32 v41, 7, v{vL}
        s_mov_b32 exec_hi, 15
        buffer_load_dword v42, v41, {R(rWS)}, s{sT2} offen sc1
        s_mov_b64 exec, -1""")
    srd(rB, pGW, SZ['gw'])
    a(f"""v_and_b32 v9, 31, v{vL}
    v_mul_u32_u24 v9, 36, v9
    v_lshrrev_b32 v12, 5, v{vL}
    v_mul_u32_u24 v11, 1152, v12
    v_add_u32 v11, v11, v9
    buffer_load_dwordx4 v[20:23], v11, {R(rA)}, 0 offen
    buffer_load_dwordx4 v[24:27], v11, {R(rA)}, 0 offen offset:16
    buffer_load_dword v28, v11, {R(rA)}, 0 offen offset:32
    buffer_load_dwordx4 v[32:35], v9, {R(rB)}, 0 offen
    buffer_load_dwordx4 v[36:39], v9, {R(rB)}, 0 offen offset:16
    buffer_load_dword v40, v9, {R(rB)}, 0 offen offset:32
    v_mov_b32 v13, 0
    v_lshlrev_b32 v10, 2, v12
    v_add_u32 v10, {L_GATE}, v10
    s_waitcnt vmcnt(0)""")
    gatemath()
    if p.fast:
        a(f"""s_mov_b32 exec_lo, 0x01010101
        s_mov_b32 exec_hi, 0x01010101
        buffer_load_dword v20, v{vL16}, {R(rWS)}, s{sX} offen sc1
        s_mov_b64 exec, -1""")
    if p.wogate:
        for k in range(p.wogate):
            a(f"s_add_u32 s{4+k}, s2, {53*k+11}\ns_and_b32 s{4+k}, s{4+k}, 127\ns_lshl_b32 s{4+k}, s{4+k}, 8\ns_add_u32 s{4+k}, s{4+k}, {HC + (128 if p.wgpos == 0 else 64)}")
        spoll_all([4+k for k in range(p.wogate)], 8)
    if p.xord == 2:
        srd(rC, pWO, 0 if p.nod1 & 2 else SZ['wo'])
        a("s_mov_b32 m0, 0\ns_barrier")
        for n in range(36):
            if n % 4 == 0 and n: a(f"s_addk_i32 m0, 4096\ns_add_u32 s{sX+2}, s{sX+2}, 4096")
            if n == p.wosplit: a("s_barrier")
            a(f"buffer_load_dwordx4 v{vL16}, {R(rC)}, s{sX+2} offen offset:{1024*(n%4)} {nt} lds")
        if p.wosplit >= 36: a("s_barrier")
        a("s_waitcnt vmcnt(0)\ns_branch L_X_fgend")
    a("s_barrier")
    if p.fflag:
        a(f"""s_lshl_b32 s{sT3}, s2, 7
        s_add_u32 s{sT3}, s{sT3}, {HD+64}
        s_mov_b64 exec, 0xffff
        buffer_store_dword v137, v135, {R(rWS)}, s{sT3} offen sc1
        s_mov_b64 exec, -1
        s_lshl_b32 s{sT3}, s{sXcd}, 7
        s_add_u32 s{sT3}, s{sT3}, {HD+64}
        s_add_u32 s{sQ}, s{rWS}, s{sT3}
        s_addc_u32 s{sQ+1}, s{rWS+1}, 0
        s_mov_b32 s{sCnt}, 0
L_ff:""")
        for k in range(16): a(f"s_load_dword s{4+k}, s[{sQ}:{sQ+1}], {1024*k} glc")
        a(f"s_add_u32 s{sCnt}, s{sCnt}, 1\ns_cmp_ge_u32 s{sCnt}, {p.maxspin}\ns_cbranch_scc1 L_ffd\ns_waitcnt lgkmcnt(0)")
        for k in range(16): a(f"s_cmp_lg_u32 s{4+k}, s{sT[0]}\ns_cbranch_scc1 L_ff")
        a("L_ffd:\ns_waitcnt lgkmcnt(0)")
    if p.fdel: a("s_barrier")
    if p.fmid < 8: a("s_barrier")
    a("s_waitcnt vmcnt(0)")
    a.label("L_X_fgend")
    if p.wb == 2: a(f"s_lshr_b32 s{sT0}, s2, 3\ns_lshl_b32 s{sT0}, s{sT0}, 3\ns_add_u32 s{sT0}, s{sT0}, s{sWave}\ns_cmp_eq_u32 s{sT0}, 7\ns_cbranch_scc0 L_nowb\nbuffer_wbl2 sc1\nL_nowb:")
    a("s_barrier")
    if p.wb == 1: a(f"s_lshr_b32 s{sT0}, s2, 3\ns_lshl_b32 s{sT0}, s{sT0}, 3\ns_add_u32 s{sT0}, s{sT0}, s{sWave}\ns_cmp_eq_u32 s{sT0}, 7\ns_cbranch_scc0 L_X_end\nbuffer_wbl2 sc1")
    a.label("L_X_end")
    stamp(11)
    finish('X')

    a.label("L_Y_main")
    vQA, vPA, vSF, vPF, vACC = 20, 36, 48, 112, 176
    vTG, vTO = 208, 212
    vQG = 216
    a(f"""s_and_b32 s{sT2}, s{sWave}, 3
    s_lshr_b32 s{sT3}, s{sWave}, 2
    v_and_b32 v9, 7, v{vJ}
    v_lshlrev_b32 v9, 1, v9
    v_lshrrev_b32 v10, 3, v{vJ}
    v_or_b32 v9, v9, v10
    v_lshlrev_b32 v9, 4, v9
    v_lshl_add_u32 v9, v{vG}, 8, v9
    v_lshl_add_u32 v9, v{vJ}, 10, v9
    s_lshl_b32 s{sT0}, s{sT2}, 14
    v_add_u32 v13, s{sT0}, v9
    s_lshl_b32 s{sT0}, s{sT3}, 14
    s_add_u32 s{sT0}, s{sT0}, {L_QIMG}
    v_add_u32 v{vQA}, s{sT0}, v9""")
    for ks in range(1, 16): a(f"v_xor_b32 v{vQA+ks}, {16*ks}, v{vQA}")
    a(f"""v_lshrrev_b32 v9, 2, v{vL}
    v_and_b32 v10, 7, v9
    v_lshlrev_b32 v10, 1, v10
    v_lshrrev_b32 v11, 3, v9
    v_or_b32 v10, v10, v11
    v_bfe_u32 v11, v{vL}, 1, 1
    v_xor_b32 v10, v10, v11
    v_lshlrev_b32 v10, 4, v10
    v_lshl_add_u32 v10, v9, 10, v10
    v_and_b32 v11, 1, v{vL}
    v_lshl_add_u32 v10, v11, 3, v10
    s_lshl_b32 s{sT0}, s{sT2}, 8
    v_add_u32 v{vPA}, s{sT0}, v10""")
    for ct in range(1, 8): a(f"v_xor_b32 v{vPA+ct}, {32*ct}, v{vPA}")
    lsbtags(vTG)
    a(f"s_bitcmp1_b32 s2, 0\ns_cselect_b32 s{sT0}, 0xff, 0")
    lsbtags(vTO, f"s{sT0}")
    a(f"s_sub_u32 s{sI}, s{sJ}, 4")
    if p.wrow:
        a(f"""v_and_b32 v11, 3, v{vL}
        v_lshlrev_b32 v14, 6, v11
        v_lshl_add_u32 v14, v{vG}, 4, v14
        s_lshl_b32 s{sQ+4}, s{sWave}, 8
        s_lshl_b32 s{sQ+5}, s{sH}, 11
        s_add_u32 s{sQ+4}, s{sQ+4}, s{sQ+5}
        s_add_u32 s{sQ+4}, s{sQ+4}, {ST}
        v_mov_b32 v47, v{vL16}
        s_lshl_b32 s{sQ+5}, s{sH}, 2
        s_add_u32 s{sQ+5}, s{sQ+5}, s{sI}
        s_lshl_b32 s{sQ+2}, s{sH}, 12
        s_lshl_b32 s{sQ+3}, s{sI}, 8
        s_add_u32 s{sQ+2}, s{sQ+2}, s{sQ+3}
        s_add_u32 s{sQ+3}, s{sQ+2}, {CXL}
        s_add_u32 s{sQ+2}, s{sQ+2}, {CX}
        s_mul_i32 s{sQ+5}, s{sQ+5}, {p.opstr}
        s_lshl_b32 vcc_lo, s{sWave}, 12
        s_add_u32 s{sQ+5}, s{sQ+5}, vcc_lo
        s_add_u32 s{sQ+5}, s{sQ+5}, {OP}""")
    else:
        a(f"""v_bfe_u32 v9, v{vL}, 3, 1
    v_lshlrev_b32 v14, {10 if p.cstat else 15}, v9
    v_and_b32 v11, 3, v{vL}
    v_lshl_add_u32 v14, v11, {6 if p.cstat else 11}, v14
    v_lshl_add_u32 v14, v{vG}, {4 if p.cstat else 9}, v14
    s_and_b32 s{sT2}, s{sWave}, 3
    s_lshr_b32 s{sT3}, s{sWave}, 2
    s_lshl_b32 s{sQ+4}, s{sT2}, {8 if p.cstat else 13}
    s_lshl_b32 s{sQ+5}, s{sH}, {11 if p.cstat else 4}
    s_add_u32 s{sQ+4}, s{sQ+4}, s{sQ+5}
    s_add_u32 s{sQ+4}, s{sQ+4}, {ST}""")
        a(f"""v_lshl_add_u32 v47, v9, 6, v{vG}
    v_mul_u32_u24 v47, {p.opstr if p.oplay else 256}, v47
    v_and_b32 v11, 7, v{vL}
    v_lshl_add_u32 v47, v11, 4, v47
    s_lshl_b32 s{sQ+5}, s{sH}, 2
    s_add_u32 s{sQ+5}, s{sQ+5}, s{sI}
    s_lshl_b32 s{sQ+2}, s{sH}, 12
    s_lshl_b32 s{sQ+3}, s{sI}, 8
    s_add_u32 s{sQ+2}, s{sQ+2}, s{sQ+3}
    s_add_u32 s{sQ+3}, s{sQ+2}, {CXL}
    s_add_u32 s{sQ+2}, s{sQ+2}, {CX}
    s_mul_i32 s{sQ+5}, s{sQ+5}, {256 if p.oplay else p.opstr}
    s_mul_i32 vcc_lo, s{sT2}, {16*p.opstr if p.oplay else 4096}
    s_add_u32 s{sQ+5}, s{sQ+5}, vcc_lo
    s_lshl_b32 vcc_lo, s{sT3}, {7 if not p.halfo else 11}
    s_add_u32 s{sQ+5}, s{sQ+5}, vcc_lo
    s_add_u32 s{sQ+5}, s{sQ+5}, {OP}""")
    if p.vlds:
        a(f"""v_lshlrev_b32 v14, 9, v{vJ}
        s_lshl_b32 s{sQ+4}, s{sWave}, 13
        s_lshl_b32 vcc_lo, s{sH}, 4
        s_add_u32 s{sQ+4}, s{sQ+4}, vcc_lo
        s_add_u32 s{sQ+4}, s{sQ+4}, {ST}""")
    elif p.vglob:
        a(f"""v_bfe_u32 v11, v{vL}, 2, 1
        v_lshlrev_b32 v11, 1, v11
        v_xor_b32 v11, s{sT2}, v11
        v_lshl_add_u32 v14, v11, 8, v14
        s_lshl_b32 s{sQ+4}, s{sH}, 11
        s_add_u32 s{sQ+4}, s{sQ+4}, {ST}""")
    a(f"""s_bfe_u32 s{sT0}, s2, 0x10006
    s_lshl_b32 s{sT0}, s{sT0}, 15
    s_lshl_b32 s{sT1}, s{sWave}, 12
    s_add_u32 s{sT0}, s{sT0}, s{sT1}
    s_add_u32 s{sT0}, s{sT0}, {QL}
    s_add_u32 s{sT1}, s{sT1}, {L_QIMG}
    s_and_b32 vcc_lo, s{sWave}, 1
    s_lshl_b32 vcc_lo, vcc_lo, 7
    s_bfe_u32 vcc_hi, s{sWave}, 0x10001
    s_lshl_b32 vcc_hi, vcc_hi, 4
    s_or_b32 vcc_lo, vcc_lo, vcc_hi
    v_xor_b32 v16, vcc_lo, v{vL16}
    v_add_u32 v16, s{sT1}, v16
    v_xor_b32 v17, 32, v16
    v_xor_b32 v18, 64, v16
    v_xor_b32 v19, 0x60, v16
    """)
    a(f"""s_lshl_b32 s{sQ+9}, s{sT3}, 12
    s_add_u32 s{sQ+9}, s{sQ+9}, {L_SX}
    v_add_u32 v10, s{sQ+9}, v{vL16}
    s_lshl_b32 s{sQ+9}, s{sT2}, 10
    v_add_u32 v11, s{sQ+9}, v10
    v_mul_u32_u24 v12, {4096 if p.oplay else 16*p.opstr}, v{vG}
    v_lshl_add_u32 v12, v{vJ}, 4, v12
    s_sub_u32 s{sQ+9}, s2, 128
    s_lshl_b32 s{sT1}, s{sQ+9}, {4 if p.cstat else 9}
    v_lshlrev_b32 v15, {11 if p.cstat else 4}, v{vL}
    s_lshl_b32 vcc_lo, s{sT3}, {15 if p.cstat else 8}
    s_add_u32 s{sT1}, s{sT1}, vcc_lo
    s_add_u32 s{sT1}, s{sT1}, {ST}
    s_mul_i32 s{sQ+10}, s{sQ+9}, {p.opstr if p.oplay else 256}
    s_mul_i32 vcc_lo, s{sT3}, {16384 if p.oplay else 64*p.opstr}
    s_add_u32 s{sQ+10}, s{sQ+10}, vcc_lo
    s_mul_i32 vcc_lo, s{sT2}, {256 if p.oplay else p.opstr}
    s_add_u32 s{sQ+10}, s{sQ+10}, vcc_lo
    s_add_u32 s{sQ+10}, s{sQ+10}, {OP}
    s_lshl_b32 s{sQ+9}, s{sQ+9}, 8
    s_lshl_b32 vcc_lo, s{sT3}, 7
    s_add_u32 s{sQ+9}, s{sQ+9}, vcc_lo
    s_add_u32 s{sQ+9}, s{sQ+9}, {HC}""")
    if p.uv1 < 8: uvsetup(sQ)
    if p.qmid:
        ckvaddr(); srd(rC, pCKV, SZ['ckv'])
    if p.cflag and p.cprog:
        a(f"""s_bfe_u32 s{sQ+9}, s2, 0x20004
        s_mul_i32 s{sQ+9}, s{sQ+9}, {p.cstr}
        s_and_b32 vcc_lo, s2, 15
        s_lshl_b32 vcc_lo, vcc_lo, 1
        s_add_u32 s{sQ+9}, s{sQ+9}, vcc_lo
        s_bfe_u32 vcc_lo, s2, 0x10006
        s_lshl_b32 vcc_lo, vcc_lo, 5
        s_add_u32 s{sQ+9}, s{sQ+9}, vcc_lo
        s_add_u32 s{sQ+9}, s{sQ+9}, {FP2}
        v_mul_u32_u24 v46, {8*p.cstr}, v{vL}""")
    elif p.cflag:
        a(f"""s_bfe_u32 s{sQ+9}, s2, 0x30004
        s_mul_i32 s{sQ+9}, s{sQ+9}, {p.cstr}
        s_and_b32 vcc_lo, s2, 15
        s_lshl_b32 vcc_lo, vcc_lo, 2
        s_add_u32 s{sQ+9}, s{sQ+9}, vcc_lo
        s_add_u32 s{sQ+9}, s{sQ+9}, {FP2}
        v_mul_u32_u24 v46, {8*p.cstr}, v{vL}""")
        if p.cfine: a(f"s_mul_i32 vcc_lo, s{sWave}, {16*p.cstr}\ns_add_u32 s{sQ+9}, s{sQ+9}, vcc_lo")
    for k in range(4): a(f"v_mov_b32 v{248+k}, 0x3f803f80\nv_mov_b32 v{252+k}, s{sT[0]}")
    if p.own:
        a(f"""s_lshl_b32 vcc_lo, s{sT3}, 11
        s_add_u32 vcc_lo, vcc_lo, {L_PX}
        v_lshlrev_b32 v253, 3, v{vL}
        v_add_u32 v253, vcc_lo, v253
        s_lshl_b32 vcc_lo, s{sT2}, 9
        v_add_u32 v254, vcc_lo, v253""")
    def qloads():
        for n in range(4): a(f"buffer_load_dwordx4 {V(vQG+4*n)}, v{vL16}, {R(rWS)}, s{sT0} offen offset:{1024*(n if not p.emub else n&1)} sc1")
    if p.qmid:
        def tilefr(T):
            Ls = a.newlabel('nos')
            a(f"s_cmp_lg_u32 s{sT2}, {T}\ns_cbranch_scc1 {Ls}")
            for ks in range(16): a(f"v_xor_b32 v9, {16*ks}, v13\nds_read_b128 {V(vSF+4*ks)}, v9")
            a.label(Ls)
            for ct in range(8): a(f"ds_read_b64_tr_b16 {V(vPF+8*ct+2*T, 2)}, v{vPA+ct} offset:{16384*T}")
        def qw(n): a(f"ds_write_b128 v{16+n}, {V(vQG+4*n)} offset:{1024*n}")
        for T in range(3):
            a(f"s_waitcnt vmcnt({8-4*T + (8 if T >= p.qat else 0)})\ns_barrier")
            if T == p.qat - 1:
                qloads()
                a(f"s_cmp_lt_u32 s{sWave}, 4\ns_cbranch_scc1 L_Y_not3")
                for i in range(12, 16): ckv(i)
                a.label("L_Y_not3")
            tilefr(T)
        Lq = a.newlabel('qchk'); L = a.newlabel('poll'); Lw = a.newlabel('qw')
        a(f"""s_mov_b32 s{sCnt}, 0
        s_waitcnt vmcnt(4)
        s_cmp_lt_u32 s{sWave}, 4
        s_cbranch_scc1 {Lw}
        s_branch {Lq}""")
        a.label(L)
        qloads()
        a("s_mov_b64 exec, -1")
        a.label(Lw)
        a("s_waitcnt vmcnt(0)")
        a.label(Lq)
        for n in range(4): qw(n); chkv(9, vQG+4*n, vTG, n == 0)
        poll_end_masked(L, 9, '0x10001', p.bsleep)
        a("s_waitcnt vmcnt(0) lgkmcnt(0)\ns_barrier")
        stamp(3); cyc(1)
        tilefr(3)
    else:
        for T in range(4):
            if T == p.qat:
                if p.bflag:
                    a(f"""s_and_b32 s{sQ+8}, s2, 15
                s_lshl_b32 s{sQ+8}, s{sQ+8}, 3
                s_add_u32 s{sQ+8}, s{sQ+8}, s{sWave}
                s_mul_i32 s{sQ+8}, s{sQ+8}, {p.cstr}
                s_add_u32 s{sQ+8}, s{sQ+8}, {FP2 + 0x80000}
                s_mov_b32 s{sQ+6}, s{sT[0]}
                s_mov_b32 s{sQ+7}, s{sT[0]}
                s_mov_b32 s{sCnt}, 0
L_bf:
                s_load_dwordx16 s[4:19], s[{rWS}:{rWS+1}], s{sQ+8} glc
                s_add_u32 s{sCnt}, s{sCnt}, 1
                s_cmp_ge_u32 s{sCnt}, {p.maxspin}
                s_cbranch_scc1 L_bfd
                s_waitcnt lgkmcnt(0)""")
                    for k in range(8): a(f"s_cmp_lg_u64 s[{4+2*k}:{5+2*k}], s[{sQ+6}:{sQ+7}]\ns_cbranch_scc1 L_bf")
                    a("L_bfd:\ns_waitcnt lgkmcnt(0)")
                qloads()
                if p.uv2:
                    a(f"s_cmp_lt_u32 s{sWave}, 4\ns_cbranch_scc1 L_Y_nouv2")
                    uvdma(sQ, p.uv1, p.uv1 + p.uv2)
                    a.label("L_Y_nouv2")
            a(f"s_waitcnt vmcnt({12-4*T + (4+p.uv2 if T >= p.qat else 0)})\ns_barrier")
            if p.gate == 17 + T:
                a(f"""s_sub_u32 vcc_lo, s2, 128
            s_lshl_b32 vcc_lo, vcc_lo, 7
            s_add_u32 vcc_lo, vcc_lo, {HG}
            s_cmp_eq_u32 s{sWave}, 1
            s_cselect_b32 exec_lo, 0xf, 0
            s_mov_b32 exec_hi, 0
            buffer_store_dwordx4 v[252:255], v{vL16}, {R(rWS)}, vcc_lo offen sc1
            s_mov_b64 exec, -1""")
            if T == 3:
                stamp(3); cyc(1)
                if p.qat == 4: qloads()
            Ls = a.newlabel('nos'); Ln = a.newlabel('nof')
            if p.solo: a(f"s_cmp_ge_u32 s{sWave}, 4\ns_cbranch_scc1 {Ln}")
            a(f"s_cmp_lg_u32 s{sT2}, {T}\ns_cbranch_scc1 {Ls}")
            for ks in range(16):
                a(f"v_xor_b32 v9, {16*ks}, v13\nds_read_b128 {V(vSF+4*ks)}, v9")
            a.label(Ls)
            for ct in range(8):
                a(f"ds_read_b64_tr_b16 {V(vPF+8*ct+2*T, 2)}, v{vPA+ct} offset:{16384*T}")
            if p.solo: a.label(Ln)
        if p.qsplit: a(f"s_cmp_eq_u32 s{sT3}, 0\ns_cbranch_scc1 L_Y_q\ns_barrier\nL_Y_q:")
        Lq = a.newlabel('qchk'); L = a.newlabel('poll'); Lw = a.newlabel('qw')
        def qw(n): a(f"ds_write_b128 v{16+n}, {V(vQG+4*n)} offset:{1024*n}")
        a(f"s_mov_b32 s{sCnt}, 0")
        if p.uv2:
            a(f"s_cmp_lt_u32 s{sWave}, 4\ns_cbranch_scc1 {Lw}")
            for n in range(4):
                a(f"s_waitcnt vmcnt({3-n+p.uv2})"); qw(n); chkv(9, vQG+4*n, vTG, n == 0)
            a(f"s_branch {Lq}")
        else:
            a(f"s_branch {Lw}")
        a.label(L)
        qloads()
        a("s_mov_b64 exec, -1")
        a.label(Lw)
        for n in range(4):
            a(f"s_waitcnt vmcnt({3-n})"); qw(n); chkv(9, vQG+4*n, vTG, n == 0)
        a.label(Lq)
        poll_end_masked(L, 9, '0x10001', p.bsleep)
    if p.stamp: a(f"s_mov_b32 s{sStamp+24}, s{sCnt}")
    stamp(4)
    a(f"s_mov_b32 s{sT0}, s{sQ+10}\nv_mov_b32 v9, 0x10001")
    def hint(pos):
        if p.hintpos == pos and p.cfine:
            a(f"""s_mov_b64 exec, 3
            buffer_store_dword v252, v46, {R(rWS)}, s{sQ+9} offen sc1
            s_mov_b64 exec, -1""")
        elif p.hintpos == pos and p.cflag:
            a(f"""s_cmp_eq_u32 s{sWave}, {p.cw}
            s_cbranch_scc0 L_Y_noh
            s_mov_b32 exec_lo, {((1 << p.crep) - 1) & 0xffffffff}
            s_mov_b32 exec_hi, {((1 << p.crep) - 1) >> 32}
            buffer_store_{'short' if p.cprog else 'dword'} v252, v46, {R(rWS)}, s{sQ+9} offen sc1
            s_mov_b64 exec, -1
L_Y_noh:""")
        elif p.hintpos == pos:
            a(f"""s_cmp_eq_u32 s{sT2}, 3
            s_cselect_b32 exec_lo, 0xf, 0
            s_mov_b32 exec_hi, 0
            buffer_store_dwordx4 v[252:255], v{vL16}, {R(rWS)}, s{sQ+9} offen sc1
            s_mov_b64 exec, -1""")
    if p.solo:
        NQ = 8
        cyc(2)
        a("s_waitcnt lgkmcnt(0)\ns_barrier")
        stamp(5); cyc(3)
        a(f"s_cmp_ge_u32 s{sWave}, 4\ns_cbranch_scc1 L_Y_help\ns_setprio 2")
        lds = []
        def L_(tag, text): lds.append(tag); a(text)
        def W_(tag):
            n = len(lds) - 1 - lds.index(tag)
            assert n <= 15
            a(f"s_waitcnt lgkmcnt({n})")
        def qread(k): L_(('q', k), f"ds_read_b128 {V(vQG+4*(k%NQ))}, v{vQA+(k%16)} offset:{16384*(k//16)}")
        def softmax_ops(S, m, P):
            pk = lambda r: f"v_pk_add_f32 v[{r}:{r+1}], v[{r}:{r+1}], v[{m}:{m+1}] op_sel_hi:[1,0] neg_lo:[0,1] neg_hi:[0,1]"
            A = [f"v_max3_f32 v{m}, v{S}, v{S+1}, v{S+2}", f"v_max3_f32 v{m+1}, v{S+3}, v{S+4}, v{S+5}",
                 f"v_max3_f32 v{m}, v{m}, v{S+6}, v{S+7}", f"v_max3_f32 v{m+1}, v{m+1}, v{S+8}, v{S+9}",
                 f"v_max3_f32 v{m}, v{m}, v{S+10}, v{S+11}", f"v_max3_f32 v{m+1}, v{m+1}, v{S+12}, v{S+13}",
                 f"v_max3_f32 v{m}, v{m}, v{S+14}, v{S+15}", f"v_max_f32 v{m}, v{m}, v{m+1}",
                 f"v_mov_b32 v{m+1}, v{m}", None, f"v_permlane32_swap_b32 v{m}, v{m+1}", f"v_max_f32 v{m}, v{m}, v{m+1}",
                 f"v_mov_b32 v{m+1}, v{m}", None, f"v_permlane16_swap_b32 v{m}, v{m+1}", f"v_max_f32 v{m}, v{m}, v{m+1}"]
            B = [pk(S+2*k) for k in range(4)] + [f"v_exp_f32 v{S+k}, v{S+k}" for k in range(8)] + [pk(S+8), pk(S+10)] + \
                [f"v_cvt_pk_bf16_f32 v{P+k}, v{S+2*k}, v{S+2*k+1}" for k in range(4)]
            C = [pk(S+12), pk(S+14)] + [f"v_exp_f32 v{S+k}, v{S+k}" for k in range(8, 16)] + \
                [f"v_cvt_pk_bf16_f32 v{P+k}, v{S+2*k}, v{S+2*k+1}" for k in range(4, 8)]
            return A + B, C
        def fill(q, n):
            k = 0
            while q and k < n:
                x = q.pop(0)
                if x is None: break
                if callable(x): x()
                else: a(x)
                k += 2 if (isinstance(x, str) and 'v_exp' in x) else 1
        def drain(q):
            while q: fill(q, 99)
        sa0, sa1, S0, S1, P0, P1, m0_, m1_, AC0, AC1, O0, O1 = 208, 248, 48, 64, 36, 20, 16, 18, 176, 80, 216, 232
        for k in range(NQ): qread(k)
        for k in range(16):
            W_(('q', k)); mfma(sa0, vSF+4*k, vQG+4*(k % NQ), '0' if k == 0 else None); qread(k+NQ)
        cyc(4)
        sm0, sm0c = softmax_ops(S0, m0_, P0)
        for k in range(16, 32):
            W_(('q', k)); mfma(sa1, vSF+4*(k-16), vQG+4*(k % NQ), '0' if k == 16 else None)
            if k + NQ < 32: qread(k+NQ)
            if k == 18: L_('w0', f"ds_write_b128 v11, {V(sa0)}")
            if k == 21:
                W_('w0'); a("s_barrier")
                for T in range(4): L_(('s0', T), f"ds_read_b128 {V(S0+4*T)}, v10 offset:{1024*T}")
            if k == 25: W_(('s0', 3))
            if k >= 25: fill(sm0, p.f1)
        cyc(5)
        fill(sm0, 4); fill(sm0, 4); fill(sm0, 4)
        L_('w1', f"ds_write_b128 v11, {V(sa1)} offset:4096")
        fill(sm0, 10)
        W_('w1'); a("s_barrier")
        for T in range(4): L_(('s1', T), f"ds_read_b128 {V(S1+4*T)}, v10 offset:{4096+1024*T}")
        drain(sm0)
        hint(0); cyc(6)
        sm1, sm1c = softmax_ops(S1, m1_, P1)
        for ct in range(8):
            mfma(AC0+4*ct, P0, vPF+8*ct, '0'); fill(sm0c, p.f2)
        drain(sm0c)
        W_(('s1', 3)); fill(sm1, 2)
        hint(1); cyc(7)
        for ct in range(8):
            mfma(AC0+4*ct, P0+4, vPF+8*ct+4); fill(sm1, p.f2)
        drain(sm1)
        hint(2); cyc(8)
        def epi(AC, O, k):
            return [f"v_cvt_pk_bf16_f32 v{O+4*r+k}, v{AC+8*k+r}, v{AC+8*k+4+r}" for r in range(4)] + \
                   [f"v_bfi_b32 v{O+4*r+k}, v9, v{vTO+k}, v{O+4*r+k}" for r in range(4)]
        def epir(AC, O, r):
            return [f"v_cvt_pk_bf16_f32 v{O+4*r+k}, v{AC+8*k+r}, v{AC+8*k+4+r}" for k in range(4)] + \
                   [f"v_bfi_b32 v{O+4*r+k}, v9, v{vTO+k}, v{O+4*r+k}" for k in range(4)] + \
                   [f"buffer_store_dwordx4 {V(O+4*r)}, v12, {R(rWS)}, s{sT0} offen sc1\ns_add_u32 s{sT0}, s{sT0}, {4*p.opstr if r < 3 else 52*p.opstr}"]
        for ct in range(8):
            mfma(AC1+4*ct, P1, vPF+8*ct, '0'); fill(sm1c, p.f2)
        drain(sm1c)
        e0 = epir(AC0, O0, 0) + epir(AC0, O0, 1) + epir(AC0, O0, 2) + epir(AC0, O0, 3)
        fill(e0, 2)
        hint(4); cyc(9)
        for ct in range(8):
            mfma(AC1+4*ct, P1+4, vPF+8*ct+4); fill(e0, p.f2)
        drain(e0)
        hint(5); cyc(10)
        for r in range(4): drain(epir(AC1, O1, r))
        hint(3)
        stamp(7); cyc(11)
        a("s_branch L_Y_vv")
        a.label("L_Y_help")
        uvdma(sQ, p.uv1 + p.uv2, 8 - p.uv3)
        a(f"""s_lshl_b32 vcc_lo, s{sT2}, 12
        s_add_u32 vcc_lo, vcc_lo, {L_SX}
        v_add_u32 v10, vcc_lo, v{vL16}
        s_sub_u32 s{sT1}, s{sT1}, 32768
        s_lshl_b32 vcc_lo, s{sT2}, 15
        s_add_u32 s{sT1}, s{sT1}, vcc_lo
        s_barrier
        s_barrier
        s_cmp_ge_u32 s{sWave}, 6
        s_cbranch_scc1 L_Y_vv""")
        for T in range(4): a(f"ds_read_b128 {V(48+4*T)}, v10 offset:{1024*T}")
        a("s_waitcnt lgkmcnt(0)")
        h, hc = softmax_ops(48, 64, 72)
        for x in h + hc:
            if x and 'cvt' not in x: a(x)
        for k in range(4): a(f"v_pk_add_f32 v[{48+2*k}:{49+2*k}], v[{48+2*k}:{49+2*k}], v[{56+2*k}:{57+2*k}]")
        a("""v_pk_add_f32 v[48:49], v[48:49], v[52:53]
        v_pk_add_f32 v[50:51], v[50:51], v[54:55]
        v_pk_add_f32 v[48:49], v[48:49], v[50:51]
        v_add_f32 v65, v48, v49""")
        allred_groups("v_add_f32", 65, 66)
        a(f"""v_mov_b32 v66, s{sT[0]}
        s_mov_b64 exec, 0xffff
        buffer_store_dwordx4 v[64:67], v15, {R(rWS)}, s{sT1} offen sc1
        s_mov_b64 exec, -1""")
        stamp(7)
        a.label("L_Y_vv")
        a("s_setprio 0")
    else:
        NQ = 8
        if p.qsplit:
            p.qpre = 0
            a(f"s_cmp_eq_u32 s{sT3}, 0\ns_cbranch_scc1 L_Y_s")
            uvdma(sQ, p.uv1 + p.uv2, 8 - p.uv3)
            if p.prio: a(f"s_setprio {p.prio}")
            a.label("L_Y_s")
            a("s_waitcnt lgkmcnt(0)\ns_barrier")
            stamp(5)
        else:
            cyc(2)
            a("s_waitcnt lgkmcnt(0)" if p.qmid else "s_waitcnt lgkmcnt(0)\ns_barrier")
            stamp(5); cyc(3)
            for ks in range(p.qpre): a(f"ds_read_b128 {V(vQG+4*ks)}, v{vQA+ks}")
            a(f"""s_cmp_eq_u32 s{sT3}, 0
    s_cbranch_scc1 L_Y_s""")
            uvdma(sQ, p.uv1 + p.uv2, 8 - p.uv3)
            if p.stag: a("s_barrier")
            if p.prio: a(f"s_setprio {p.prio}")
            a.label("L_Y_s")
        cyc(4)
        for ks in range(p.qpre, NQ): a(f"ds_read_b128 {V(vQG+4*ks)}, v{vQA+ks}")
        for ks in range(16):
            rem = min(15, ks+NQ-1) - ks
            a(f"s_waitcnt lgkmcnt({rem})")
            mfma(vACC, vSF+4*ks, vQG+4*(ks % NQ), '0' if ks == 0 else None)
            if ks + NQ < 16: a(f"ds_read_b128 {V(vQG+4*(ks%NQ))}, v{vQA+ks+NQ}")
        cyc(5)
        a(f"""ds_write_b128 v11, {V(vACC)}
    s_waitcnt lgkmcnt(0)
    s_barrier""")
        stamp(6); cyc(6)
        if p.pdrop == 1: a("s_setprio 0")
        vS = 48
        for T in range(4): a(f"ds_read_b128 {V(vS+4*T)}, v10 offset:{1024*T}")
        hint(0)
        a(f"""s_waitcnt lgkmcnt(2)
    v_max3_f32 v64, v{vS}, v{vS+1}, v{vS+2}
    v_max3_f32 v65, v{vS+3}, v{vS+4}, v{vS+5}
    v_max3_f32 v64, v64, v{vS+6}, v{vS+7}
    s_waitcnt lgkmcnt(0)
    v_max3_f32 v65, v65, v{vS+8}, v{vS+9}
    v_max3_f32 v64, v64, v{vS+10}, v{vS+11}
    v_max3_f32 v65, v65, v{vS+12}, v{vS+13}
    v_max3_f32 v64, v64, v{vS+14}, v{vS+15}
    v_max_f32 v64, v64, v65""")
        allred_groups("v_max_f32", 64, 65)
        cyc(7)
        if p.pdrop == 2: a("s_setprio 0")
        def lead_bar():
            if not p.stag: return
            a(f"s_cmp_eq_u32 s{sT3}, 0\ns_cbranch_scc0 L_Y_p\ns_barrier\nL_Y_p:")
        def epi(k):
            return [f"v_cvt_pk_bf16_f32 v{80+4*r+k}, v{vACC+8*k+r}, v{vACC+8*k+4+r}" for r in range(4)] + \
                   [f"v_bfi_b32 v{80+4*r+k}, v9, v{vTO+k}, v{80+4*r+k}" for r in range(4)]
        if p.own:
            vP = 72
            for k in range(4): a(f"v_sub_f32 v{vACC+k}, v{vACC+k}, v64")
            for k in range(4): a(f"v_exp_f32 v{vACC+k}, v{vACC+k}")
            a(f"""v_mov_b32 v66, s{sT[0]}
            v_cvt_pk_bf16_f32 v70, v{vACC}, v{vACC+1}
            v_cvt_pk_bf16_f32 v71, v{vACC+2}, v{vACC+3}
            ds_write_b64 v254, v[70:71]
            s_waitcnt lgkmcnt(0)
            s_barrier""")
            cyc(8)
            for T in range(4): a(f"ds_read_b64 v[{vP+2*T}:{vP+2*T+1}], v253 offset:{512*T}")
            hint(1)
            a(f"""s_cmp_eq_u32 s{sT2}, 0
            s_cselect_b32 vcc_lo, 0xffff, 0
            s_waitcnt lgkmcnt(0)
            s_cbranch_scc0 L_Y_nol""")
            mfma(68, 248, vP, '0')
            mfma(68, 248, vP+4)
            a.label("L_Y_nol")
            n = 0; q = []
            for k in range(4):
                for (c, kk) in ((0, 0), (1, 0), (0, 1), (1, 1)):
                    ct = 2*k + c
                    mfma(vACC+4*ct, vP+4*kk, vPF+8*ct+4*kk, '0' if kk == 0 else None)
                    n += 1
                    if n == p.x3: lead_bar()
                    if n == 8:
                        if not p.stlate:
                            a(f"""v_mov_b32 v65, v68
                        s_mov_b32 exec_lo, vcc_lo
                        s_mov_b32 exec_hi, 0
                        buffer_store_dwordx4 v[64:67], v15, {R(rWS)}, s{sT1} offen sc1
                        s_mov_b64 exec, -1""")
                        hint(2)
                        q = epi(0) + epi(1)
                    elif n > 8:
                        a(q.pop(0)); a(q.pop(0))
            rest = q + epi(2)
            if p.x3 > 16: lead_bar()
        else:
            if p.bpos == 1: lead_bar()
            vP = 72
            def pksub(r): return f"v_pk_add_f32 v[{r}:{r+1}], v[{r}:{r+1}], v[64:65] op_sel_hi:[1,0] neg_lo:[0,1] neg_hi:[0,1]"
            for k in range(4): a(pksub(vS+2*k))
            for k in range(8): a(f"v_exp_f32 v{vS+k}, v{vS+k}")
            for k in range(4, 8): a(pksub(vS+2*k))
            for k in range(4): a(f"v_cvt_pk_bf16_f32 v{vP+k}, v{vS+2*k}, v{vS+2*k+1}")
            hint(1); cyc(8)
            if p.pdrop == 3: a("s_setprio 0")
            if p.diag == 1: stamp(1)
            if p.bpos == 0: lead_bar()
            for ct in range(8):
                mfma(vACC+4*ct, vP, vPF+8*ct, '0')
                a(f"v_exp_f32 v{vS+8+ct}, v{vS+8+ct}")
                if ct in (3, 5, 7): a(f"v_cvt_pk_bf16_f32 v{vP+4+(ct-3)//2}, v{vS+8+ct-3}, v{vS+8+ct-2}")
            a(f"v_mov_b32 v66, s{sT[0]}\nv_cvt_pk_bf16_f32 v{vP+7}, v{vS+14}, v{vS+15}")
            hint(2)
            if p.pdrop == 4: a("s_setprio 0")
            if p.diag == 1: stamp(4)
            a(f"""s_cmp_eq_u32 s{sT2}, 0
    s_cbranch_scc0 L_Y_nol""")
            mfma(68, 248, vP, '0')
            mfma(68, 248, vP+4)
            a.label("L_Y_nol")
            def epi(k):
                return [f"v_cvt_pk_bf16_f32 v{80+4*r+k}, v{vACC+8*k+r}, v{vACC+8*k+4+r}" for r in range(4)] + \
                       [f"v_bfi_b32 v{80+4*r+k}, v9, v{vTO+k}, v{80+4*r+k}" for r in range(4)]
            for ct in range(4): mfma(vACC+4*ct, vP+4, vPF+8*ct+4)
            a(f"""s_cmp_eq_u32 s{sT2}, 0
    s_cselect_b32 vcc_lo, 0xffff, 0""")
            mfma(vACC+16, vP+4, vPF+36)
            a("s_nop 0\nv_mov_b32 v65, v68")
            mfma(vACC+20, vP+4, vPF+44)
            if not p.stlate:
                a(f"""s_mov_b32 exec_lo, vcc_lo
    s_mov_b32 exec_hi, 0
    {'s_cbranch_execz L_Y_nost2' if p.stbr else ''}
    buffer_store_dwordx4 v[64:67], v15, {R(rWS)}, s{sT1} offen sc1
L_Y_nost2:
    s_mov_b64 exec, -1""")
            e = epi(0)
            mfma(vACC+24, vP+4, vPF+52)
            for x in e[:3]: a(x)
            mfma(vACC+28, vP+4, vPF+60)
            rest = e[3:] + epi(1) + epi(2)
        if p.diag == 1: stamp(2)
        cyc(9)
        for x in rest: a(x)
        cyc(10)
        if p.diag == 6: a(f"s_memrealtime s[{sStamp+6}:{sStamp+7}]")
        hint(4)
        def stst():
            a(f"""s_cmp_eq_u32 s{sT2}, 0
            s_cbranch_scc0 L_Y_nost
            v_mov_b32 v65, v68
            s_mov_b64 exec, 0xffff
            buffer_store_dwordx4 v[64:67], v15, {R(rWS)}, s{sT1} offen sc1
            s_mov_b64 exec, -1
L_Y_nost:""")
        if p.stlate == 1: stst()
        for r in range(4):
            a(f"v_cvt_pk_bf16_f32 v{83+4*r}, v{vACC+24+r}, v{vACC+28+r}")
            a(f"v_bfi_b32 v{83+4*r}, v9, v{vTO+3}, v{83+4*r}")
            if r: hint(4+r)
            if p.halfo: a("s_mov_b32 exec_lo, 0x00ff00ff\ns_mov_b32 exec_hi, 0x00ff00ff")
            a(f"buffer_store_dwordx4 {V(80+4*r)}, v12, {R(rWS)}, s{sT0} offen sc1")
            if p.halfo: a("s_mov_b64 exec, -1")
            if r < 3: a(f"s_add_u32 s{sT0}, s{sT0}, {1024 if p.oplay else 4*p.opstr}")
        if p.stlate == 2: stst()
        hint(3)
        stamp(7); cyc(11)
        if p.diag == 6: a(f"s_waitcnt vmcnt(0)\ns_memrealtime s[{sStamp+8}:{sStamp+9}]")
    if p.vglob and not p.vlds: a("v_xor_b32 v13, 0x100, v14")
    if p.uv3:
        a(f"s_cmp_lt_u32 s{sWave}, 4\ns_cbranch_scc1 L_Y_nouv3")
        uvdma(sQ, 8 - p.uv3, 8)
        a.label("L_Y_nouv3")
    if p.prio: a("s_setprio 0")
    def latesetup():
        a(f"""v_bfe_u32 v9, v{vL}, 2, 2
    v_lshl_add_u32 v134, {'v9, 4, v%d' % vG if p.uvlin else 'v%d, 3, v9' % vG}
    v_lshlrev_b32 v134, 8, v134
    v_and_b32 v11, 1, v{vG}
    v_lshl_add_u32 v9, v11, 2, v9
    v_lshlrev_b32 v9, 1, v9
    v_bfe_u32 v11, v{vL}, 1, 1
    s_lshl_b32 s{sT0}, s{sWave}, 1
    v_add_u32 v11, s{sT0}, v11
    v_xor_b32 v9, v9, v11
    v_lshl_add_u32 v134, v9, 4, v134
    v_and_b32 v9, 1, v{vL}
    v_lshl_add_u32 v134, v9, 3, v134
    v_add_u32 v134, {L_WUVY}, v134""")
        a(f"v_bfe_u32 v9, v{vL}, 3, 1\nv_and_b32 v11, 7, v{vL}")
        a(f"v_and_b32 v122, 1, v{vG}\nv_mul_u32_u24 v122, 0xff, v122")
        lsbtags(124, "v122")
        if p.wrow:
            a(f"""v_and_b32 v123, 1, v{vG}
        v_lshlrev_b32 v122, 4, v{vJ}
        v_lshl_add_u32 v122, v123, 3, v122
        s_mul_i32 s{sQ+7}, s{sWave}, 272
        s_add_u32 s{sQ+7}, s{sQ+7}, {L_AIMGY}
        v_add_u32 v122, s{sQ+7}, v122
        s_lshl_b32 s{sQ+7}, s{sT3}, 5
        s_lshl_b32 s{sQ+8}, s{sT2}, 2
        s_add_u32 s{sQ+7}, s{sQ+7}, s{sQ+8}
        s_add_u32 s{sQ+7}, s{sQ+7}, {L_VSTY}
        v_mov_b32 v128, s{sQ+7}
        v_lshlrev_b32 v129, 5, v123
        v_add_u32 v129, {L_VSTY}, v129""")
        else:
            a(f"""v_mul_u32_u24 v122, {4*272}, v9
    v_lshl_add_u32 v122, v11, 4, v122
    v_and_b32 v123, 1, v{vG}
    v_lshl_add_u32 v122, v123, 3, v122
    s_mul_i32 s{sQ+7}, s{sT2}, 272
    s_lshl_b32 s{sQ+8}, s{sT3}, 7
    s_add_u32 s{sQ+7}, s{sQ+7}, s{sQ+8}
    s_add_u32 s{sQ+7}, s{sQ+7}, {L_AIMGY}
    v_add_u32 v122, s{sQ+7}, v122""")
            a(f"""v_lshlrev_b32 v128, 5, v9
    s_lshl_b32 s{sQ+7}, s{sT2}, 2
    s_add_u32 s{sQ+7}, s{sQ+7}, {L_VSTY}
    v_add_u32 v128, s{sQ+7}, v128
    v_lshlrev_b32 v129, 5, v123
    v_add_u32 v129, {L_VSTY}, v129""")
        a(f"""v_mul_u32_u24 v130, 272, v11
    v_lshl_add_u32 v130, v{vG}, 4, v130
    v_add_u32 v130, {L_AIMGY}, v130""")
        a(f"""v_lshlrev_b32 v131, 5, v{vG}
    v_lshl_add_u32 v131, v11, 2, v131
    v_lshl_add_u32 v131, v9, 6, v131
    s_lshr_b32 s{sQ+7}, s{sWave}, 1
    s_lshl_b32 s{sQ+7}, s{sQ+7}, 10
    s_and_b32 s{sQ+8}, s{sWave}, 1
    s_lshl_b32 s{sQ+8}, s{sQ+8}, 7
    s_add_u32 s{sQ+7}, s{sQ+7}, s{sQ+8}
    v_add_u32 v131, s{sQ+7}, v131
    v_and_b32 v132, 3, v{vL}
    v_mul_u32_u24 v132, 37, v132
    v_add_u32 v132, s{sT[0]}, v132""")
        a("v_mov_b32 v133, 1")
        if p.vlds:
            a(f"""s_lshl_b32 s{sQ+7}, s{sWave}, 7
            s_add_u32 s{sQ+7}, s{sQ+7}, {L_STX}
            v_lshlrev_b32 v128, 3, v{vJ}
            v_add_u32 v128, s{sQ+7}, v128
            v_bfe_u32 v129, v{vL}, 2, 1
            v_lshlrev_b32 v129, 1, v129
            v_xor_b32 v129, s{sT2}, v129
            v_lshl_add_u32 v129, v9, 2, v129
            v_and_b32 v13, 3, v{vL}
            v_lshl_add_u32 v129, v129, 2, v13
            v_lshl_add_u32 v129, v129, 2, v{vG}
            v_lshlrev_b32 v129, 3, v129
            v_add_u32 v129, {L_STX}, v129
            v_xor_b32 v13, 0x80, v129""")
    if p.early == 1: latesetup()
    if p.cfine:
        a(f"""s_lshr_b32 s{sQ}, s{sH}, 4
        s_lshl_b32 s{sQ}, s{sQ}, 2
        s_add_u32 s{sQ}, s{sQ}, s{sI}
        s_lshl_b32 s{sQ}, s{sQ}, 1
        s_and_b32 vcc_lo, s{sH}, 1
        s_add_u32 s{sQ}, s{sQ}, vcc_lo
        s_lshl_b32 s{sQ}, s{sQ}, 3
        s_add_u32 s{sQ}, s{sQ}, s{sWave}
        s_mul_i32 s{sQ}, s{sQ}, {p.cstr}
        s_add_u32 s{sQ}, s{sQ}, {FP2}
        s_mov_b32 s{sQ+6}, s{sT[0]}
        s_mov_b32 s{sQ+7}, s{sT[0]}
        s_mov_b32 s{sCnt}, 0
        s_mov_b32 s{sQ+8}, 15
L_cf:
        s_load_dwordx16 s[4:19], s[{rWS}:{rWS+1}], s{sQ} glc
        s_add_u32 s{sCnt}, s{sCnt}, 1
        s_cmp_ge_u32 s{sCnt}, {p.maxspin}
        s_cbranch_scc1 L_cfd
        s_waitcnt lgkmcnt(0)""")
        for u in range(4):
            a(f"""s_bitcmp0_b32 s{sQ+8}, {u}
            s_cbranch_scc1 L_cf{u}
            s_cmp_lg_u64 s[{4+4*u}:{5+4*u}], s[{sQ+6}:{sQ+7}]
            s_cbranch_scc1 L_cf{u}
            s_cmp_lg_u64 s[{6+4*u}:{7+4*u}], s[{sQ+6}:{sQ+7}]
            s_cbranch_scc1 L_cf{u}
            buffer_load_dwordx4 {V(56+4*u)}, v47, {R(rWS)}, s{sQ+5} offen offset:{1024*u} sc1
            s_bitset0_b32 s{sQ+8}, {u}
L_cf{u}:""")
        a(f"s_cmp_lg_u32 s{sQ+8}, 0\ns_cbranch_scc1 L_cf\nL_cfd:\ns_waitcnt lgkmcnt(0)")
    elif p.cflag:
        a(f"""s_and_b32 s{sQ}, s2, {p.crep-1}
        s_lshl_b32 s{sQ}, s{sQ}, 3
        s_add_u32 s{sQ}, s{sQ}, s{sT2 if p.cprog else sWave}
        s_mul_i32 s{sQ}, s{sQ}, {p.cstr}
        s_add_u32 s{sQ}, s{sQ}, {FP2}
        {f's_pack_ll_b32_b16 s{sQ+6}, s{sT[0]}, s{sT[0]}' if p.cprog else f's_mov_b32 s{sQ+6}, s{sT[0]}'}
        s_mov_b32 s{sCnt}, 0""")
        if p.early == 2:
            a(f"s_load_dwordx16 s[4:19], s[{rWS}:{rWS+1}], s{sQ} glc")
            latesetup()
            a(f"s_mov_b32 s{sQ+7}, s{sQ+6}\ns_branch L_cf2")
        a(f"""s_mov_b32 s{sQ+7}, s{sQ+6}
L_cf:
        s_load_dwordx16 s[4:19], s[{rWS}:{rWS+1}], s{sQ} glc
L_cf2:
        s_add_u32 s{sCnt}, s{sCnt}, 1
        s_cmp_ge_u32 s{sCnt}, {p.maxspin}
        s_cbranch_scc1 L_cfd
        s_waitcnt lgkmcnt(0)""")
        for k in range(8): a(f"s_cmp_lg_u64 s[{4+2*k}:{5+2*k}], s[{sQ+6}:{sQ+7}]\ns_cbranch_scc1 L_cf")
        a("L_cfd:\ns_waitcnt lgkmcnt(0)")
    else:
        a(f"""s_cmp_lg_u32 s{sWave}, 0
    s_cbranch_scc1 L_Y_v
    s_bfe_u32 s{sT0}, s2, 0x10004
    s_lshl_b32 s{sT0}, s{sT0}, 7
    s_add_u32 s{sT0}, s{sT0}, {HC}""")
        for k in range(p.nsamp):
            a(f"s_add_u32 s{4+k}, s2, {37*k}\ns_and_b32 s{4+k}, s{4+k}, 127\ns_lshl_b32 s{4+k}, s{4+k}, 8\ns_add_u32 s{4+k}, s{4+k}, s{sT0}")
        if p.need: spoll_cnt([4+k for k in range(p.nsamp)], 12, p.need)
        else: spoll_all([4+k for k in range(p.nsamp)], 12)
    a.label("L_Y_v")
    if p.uv3: a("s_barrier")
    elif p.vseq == 2: pass
    elif not (p.cprog or p.wrow in (1, 3)): a(f"s_cmp_lt_u32 s{sWave}, 4\ns_cbranch_scc1 L_Y_nw\ns_waitcnt vmcnt(0)\nL_Y_nw:\ns_barrier" if p.solo else f"s_waitcnt vmcnt({0 if p.odrain else 4})\ns_barrier")
    vBV = 20
    stamp(1)
    if p.wogate and p.wgpos == 1:
        a(f"""s_cmp_eq_u32 s{sWave}, 1
        s_cselect_b32 exec_lo, 0xf, 0
        s_mov_b32 exec_hi, 0
        buffer_store_dwordx4 v[252:255], v{vL16}, {R(rWS)}, s{sQ+9} offen offset:64 sc1
        s_mov_b64 exec, -1""")
    vOD = 56
    def cloads():
        a(f"buffer_load_dwordx4 v[52:55], v14, {R(rWS)}, s{sQ+4} offen sc1")
        for u in range(4):
            if p.oplay: a(f"s_add_u32 s{sQ+1}, s{sQ+5}, {4*u*p.opstr}\nbuffer_load_dwordx4 {V(vOD+4*u)}, v47, {R(rWS)}, s{sQ+1} offen sc1")
            else: a(f"buffer_load_dwordx4 {V(vOD+4*u)}, v47, {R(rWS)}, s{sQ+5} offen offset:{1024*(u if not p.halfo else u&1)} sc1")
    if p.cfine: a(f"buffer_load_dwordx4 v[52:55], v14, {R(rWS)}, s{sQ+4} offen sc1")
    elif p.vglob:
        def sloads():
            if p.vlds: a(f"s_mov_b64 exec, 0xffff\nbuffer_load_dwordx4 v[52:55], v14, {R(rWS)}, s{sQ+4} offen sc1\ns_mov_b64 exec, -1")
            else: a(f"buffer_load_dwordx4 v[52:55], v14, {R(rWS)}, s{sQ+4} offen sc1\nbuffer_load_dwordx4 v[92:95], v13, {R(rWS)}, s{sQ+4} offen sc1")
        def dloads():
            for u in range(4):
                a(f"buffer_load_dwordx4 {V(vOD+4*u)}, v47, {R(rWS)}, s{sQ+5} offen offset:{1024*u} sc1")
                if p.v4: a(f"buffer_load_dwordx4 {V(96+4*u)}, v47, {R(rWS)}, s{sQ+5} offen offset:{1024*u+128} sc1")
        if p.v4:
            a(f"s_cmp_ge_u32 s{sWave}, 4\ns_cbranch_scc1 L_Y_nl")
            sloads(); dloads()
            a.label("L_Y_nl")
        else:
            sloads()
            if not p.vseq:
                if p.vbar: a("s_barrier")
                dloads()
    else: cloads()
    if not p.early: latesetup()
    if p.cprog or p.wrow == 1: a(f"s_waitcnt vmcnt(9)\ns_barrier")
    def uvfr(ks):
        for hf in range(2):
            a(f"ds_read_b64_tr_b16 {V(vBV+4*ks+2*hf, 2)}, v134 offset:{(4*ks+64*hf)*256 if p.uvlin else (32*ks+4*hf)*256}")
    late_uv = p.uv3 or p.wrow == 3
    if not late_uv and p.vseq != 2:
        for ks in range(4): uvfr(ks)
    if p.diag == 3:
        a(f"s_waitcnt vmcnt(4)\ns_memrealtime s[{sStamp+2}:{sStamp+3}]\ns_waitcnt vmcnt(0)\ns_memrealtime s[{sStamp+4}:{sStamp+5}]")
    if p.cfine: a("s_waitcnt vmcnt(0)")
    if p.vglob:
        Lc = a.newlabel('schk'); L = a.newlabel('poll')
        if p.v4: a(f"s_cmp_ge_u32 s{sWave}, 4\ns_cbranch_scc1 L_Y_b4")
        a(f"s_mov_b32 s{sCnt}, 0\ns_waitcnt vmcnt({0 if p.vseq else 8 if p.v4 else 4})\ns_branch {Lc}")
        a.label(L)
        sloads()
        a("s_waitcnt vmcnt(0)")
        a.label(Lc)
        if p.vlds:
            a(f"s_mov_b64 exec, 0xffff\nds_write_b64 v128, v[52:53]\nv_xor_b32 v49, s{sT[0]}, v54")
            poll_end(L, 49, '-1')
            a("""s_mov_b64 exec, -1
            s_waitcnt lgkmcnt(0)
            s_barrier
            ds_read_b64 v[52:53], v129
            ds_read_b64 v[92:93], v13""")
            if p.vseq: dloads()
            a("""s_waitcnt lgkmcnt(0)
            v_max_f32 v50, v52, v92""")
        else:
            a(f"v_xor_b32 v49, s{sT[0]}, v54\nv_bitop3_b32 v49, v49, v94, s{sT[0]} bitop3:0xf6\nv_max_f32 v50, v52, v92")
            poll_end(L, 49, '-1')
        for m in ("quad_perm:[1,0,3,2]", "quad_perm:[2,3,0,1]", "row_half_mirror"):
            a(f"v_max_f32_dpp v50, v50, v50 {m} row_mask:0xf bank_mask:0xf")
        allred_groups("v_max_f32", 50, 51)
        a("""v_sub_f32 v52, v52, v50
        v_sub_f32 v92, v92, v50
        v_exp_f32 v52, v52
        v_exp_f32 v92, v92
        v_mul_f32 v51, v52, v53
        v_fmac_f32 v51, v92, v93""")
        for m in ("quad_perm:[1,0,3,2]", "quad_perm:[2,3,0,1]", "row_half_mirror"):
            a(f"v_add_f32_dpp v51, v51, v51 {m} row_mask:0xf bank_mask:0xf")
        allred_groups("v_add_f32", 51, 55)
        a("""v_rcp_f32 v51, v51
        v_mul_f32 v51, v51, v52
        v_cvt_pk_bf16_f32 v51, v51, v51
        v_mov_b32_dpp v51, v51 row_shr:4 row_mask:0xf bank_mask:0xa""")
        for u in range(4): buildA(72+4*u, 51, u)
        if p.vseq == 2:
            for ks in range(4): uvfr(ks)
        Lc = a.newlabel('cchk'); L = a.newlabel('poll')
        a(f"s_mov_b32 s{sCnt}, 0\ns_branch {Lc}")
        a.label(L)
        dloads()
        a("s_mov_b64 exec, -1")
        a.label(Lc)
        for u in range(4):
            a(f"s_waitcnt vmcnt({7-2*u if p.v4 else 3-u})")
            mfma(88, 72+4*u, vOD+4*u, '0' if u == 0 else None)
            chkv(49, vOD+4*u, 124, u == 0)
            if p.v4:
                a(f"s_waitcnt vmcnt({6-2*u})")
                mfma(112, 72+4*u, 96+4*u, '0' if u == 0 else None)
                chkv(49, 96+4*u, 124)
        poll_end_masked(L, 49, '0x10001')
    else:
        Lc = a.newlabel('cchk')
        a(f"s_mov_b32 s{sCnt}, 0\ns_branch {Lc}")
        L = a.newlabel('poll'); a.label(L)
        cloads()
        a.label(Lc)
        a(f"""s_mov_b64 exec, -1
    s_waitcnt vmcnt(4)
    v_max_f32_dpp v50, v52, v52 quad_perm:[1,0,3,2] row_mask:0xf bank_mask:0xf
    v_cmp_ne_u32 vcc, s{sT[0]}, v54
    v_max_f32_dpp v50, v50, v50 quad_perm:[2,3,0,1] row_mask:0xf bank_mask:0xf
    v_cndmask_b32 v49, 0, v133, vcc""")
        allred_groups("v_max_f32", 50, 51)
        a(f"""v_sub_f32 v51, v52, v50
    v_exp_f32 v51, v51
    v_cvt_pk_bf16_f32 v51, v51, v51""")
        for u in range(4):
            buildA(72+4*u, 51, u)
        a(f"""v_and_b32 v51, 0xffff0000, v51
    v_mul_f32 v51, v51, v53
    s_waitcnt vmcnt(3)""")
        mfma(88, 72, vOD, '0')
        a("v_add_f32_dpp v51, v51, v51 quad_perm:[1,0,3,2] row_mask:0xf bank_mask:0xf")
        chkv(49, vOD, 124)
        a("v_add_f32_dpp v51, v51, v51 quad_perm:[2,3,0,1] row_mask:0xf bank_mask:0xf\ns_waitcnt vmcnt(2)")
        mfma(88, 76, vOD+4)
        a("v_mov_b32 v55, v51")
        chkv(49, vOD+4, 124)
        a("v_permlane32_swap_b32 v51, v55\nv_add_f32 v51, v51, v55\ns_waitcnt vmcnt(1)")
        mfma(88, 80, vOD+8)
        a("v_mov_b32 v55, v51")
        chkv(49, vOD+8, 124)
        a("v_permlane16_swap_b32 v51, v55\nv_add_f32 v51, v51, v55\ns_waitcnt vmcnt(0)")
        mfma(88, 84, vOD+12)
        a("ds_write2_b32 v128, v50, v51 offset0:0 offset1:4")
        chkv(49, vOD+12, 124)
        poll_end_masked(L, 49, '0x10001')
    if p.stamp: a(f"s_mov_b32 s{sStamp+24}, s{sCnt}")
    stamp(8)
    if p.wogate and p.wgpos == 2:
        a(f"""s_cmp_eq_u32 s{sWave}, 1
        s_cselect_b32 exec_lo, 0xf, 0
        s_mov_b32 exec_hi, 0
        buffer_store_dwordx4 v[252:255], v{vL16}, {R(rWS)}, s{sQ+9} offen offset:64 sc1
        s_mov_b64 exec, -1""")
    a(f"""v_cvt_pk_bf16_f32 v88, v88, v89
    v_cvt_pk_bf16_f32 v89, v90, v91
    s_mov_b32 exec_lo, {'-1' if p.wrow else '0x00ff00ff'}
    s_mov_b32 exec_hi, {'0' if p.wrow else '0xff00ff00'}
    ds_write_b64 v122, v[88:89]""")
    if p.v4: a("v_cvt_pk_bf16_f32 v112, v112, v113\nv_cvt_pk_bf16_f32 v113, v114, v115\nds_write_b64 v122, v[112:113] offset:128")
    a("""s_mov_b64 exec, -1
L_Y_b4:
    s_waitcnt lgkmcnt(0)
    s_barrier""")
    if p.dex == 2:
        a(f"""s_cmp_eq_u32 s{sWave}, {p.dexw}
        s_cselect_b32 exec_lo, {(1 << p.dexr) - 1}, 0
        s_mov_b32 exec_hi, 0
        buffer_store_dword v252, v46, {R(rWS)}, s{sQ+9} offen offset:1152 sc1
        s_mov_b64 exec, -1""")
    for ks in range(4):
        a(f"ds_read_b128 {V(56+4*ks)}, v130 offset:{64*ks}")
        if late_uv: uvfr(ks)
    if p.vglob:
        for ks in range(4):
            a(f"s_waitcnt lgkmcnt({3-ks})")
            mfma(88, 56+4*ks, vBV+4*ks, '0' if ks == 0 else None)
        a("""v_add_f32 v50, v88, v89
        v_add_f32 v51, v90, v91
        v_add_f32 v50, v50, v51
        v_mov_b32_sdwa v50, v132 dst_sel:BYTE_0 dst_unused:UNUSED_PRESERVE src0_sel:BYTE_0
        s_mov_b32 exec_hi, 0""")
    else:
        a(f"ds_read_b128 v[72:75], v129\nds_read_b128 v[76:79], v129 offset:16")
        for ks in range(4):
            a(f"s_waitcnt lgkmcnt({11-3*ks if late_uv else 5-ks})")
            mfma(88, 56+4*ks, vBV+4*ks, '0' if ks == 0 else None)
        a(f"""s_waitcnt lgkmcnt(0)
    v_max3_f32 v50, v72, v73, v74
    v_max_f32 v50, v50, v75""")
        for r in range(4): a(f"v_sub_f32 v{72+r}, v{72+r}, v50")
        for r in range(4): a(f"v_exp_f32 v{72+r}, v{72+r}")
        a(f"""v_mul_f32 v51, v72, v76
    v_fmac_f32 v51, v73, v77
    v_fmac_f32 v51, v74, v78
    v_fmac_f32 v51, v75, v79
    v_rcp_f32 v51, v51
    v_mul_f32 v50, v72, v88
    v_fmac_f32 v50, v73, v89
    v_fmac_f32 v50, v74, v90
    v_fmac_f32 v50, v75, v91
    v_mul_f32 v50, v50, v51
    v_mov_b32_sdwa v50, v132 dst_sel:BYTE_0 dst_unused:UNUSED_PRESERVE src0_sel:BYTE_0
    s_mov_b32 exec_hi, 0""")
    if p.fast: a(f"buffer_store_dword v50, v131, {R(rWS)}, s{sQ+3} offen")
    a(f"""buffer_store_dword v50, v131, {R(rWS)}, s{sQ+2} offen sc1
    s_mov_b64 exec, -1""")
    if p.dex == 1:
        a(f"""s_cmp_eq_u32 s{sWave}, {p.dexw}
        s_cselect_b32 exec_lo, {(1 << p.dexr) - 1}, 0
        s_mov_b32 exec_hi, 0
        buffer_store_dword v252, v46, {R(rWS)}, s{sQ+9} offen offset:1152 sc1
        s_mov_b64 exec, -1""")
    stamp(2)
    if p.clean & 2: qclean(7)
    a(f"""s_sub_u32 s2, s2, 128
    s_cmp_ge_u32 s2, 72
    s_cbranch_scc1 L_Y_end
    s_cmp_ge_u32 s2, 36
    s_cselect_b32 s{sT2}, 1, 0
    s_mul_i32 s{sT3}, s{sT2}, 36
    s_sub_u32 s{sT3}, s2, s{sT3}
    s_mul_i32 s{sT0}, s{sWave}, {16*4608}
    s_mul_i32 s{sT1}, s{sT2}, 2304
    s_add_u32 s{sT0}, s{sT0}, s{sT1}
    s_lshl_b32 s{sT1}, s{sT3}, 6
    s_add_u32 s{sT0}, s{sT0}, s{sT1}
    s_add_u32 s{sT0}, s{sT0}, {FP}
    v_lshrrev_b32 v9, 2, v{vL}
    v_mul_u32_u24 v10, 4608, v9
    v_and_b32 v11, 3, v{vL}
    v_lshl_add_u32 v10, v11, 4, v10
    v_lshl_add_u32 v13, v{vG}, 2, v11
    v_lshlrev_b32 v13, 5, v13
    s_lshl_b32 s{sT1}, s{sWave}, 2
    s_add_u32 s{sT1}, s{sT1}, {L_REDY}
    v_add_u32 v13, s{sT1}, v13""")
    srd(rB, pB2, SZ['b2']); srd(rC, pOUT, SZ['out'])
    a(f"""v_mov_b32 v15, 0
    s_cmp_lg_u32 s{sWave}, 0
    s_cbranch_scc1 L_Y_rx
    s_lshl_b32 s{sT1}, s{sT3}, 2
    v_add_u32 v14, s{sT1}, v11""")
    decode_v(15, 14, 16)
    a(f"""v_bfe_u32 v14, v{vL}, 2, 2
    v_add_u32 v15, v15, v14
    v_lshlrev_b32 v15, 1, v15
    buffer_load_ushort v16, v15, {R(rB)}, 0 offen
    s_lshl_b32 s{sT1}, s{sT2}, 2
    s_add_u32 s{sT1}, s{sT1}, {L_GATE}
    v_mov_b32 v17, s{sT1}
    ds_read_b32 v17, v17
    v_lshlrev_b32 v18, 5, v{vJ}
    v_add_u32 v18, {L_REDY}, v18
    s_mul_i32 s{sT2}, s{sT2}, 1152
L_Y_rx:""")
    if p.dex:
        a(f"""s_and_b32 s{sQ}, s2, {p.dexr-1}
        s_lshl_b32 s{sQ}, s{sQ}, 3
        s_add_u32 s{sQ}, s{sQ}, s{sWave}
        s_mul_i32 s{sQ}, s{sQ}, {p.cstr}
        s_add_u32 s{sQ}, s{sQ}, {FP2+1152}
        s_mov_b32 s{sQ+6}, s{sT[0]}
        s_mov_b32 s{sQ+7}, s{sT[0]}
        s_mov_b32 s{sCnt}, 0
L_df:
        {f's_sleep {p.dexs}' if p.dexs else ''}
        s_load_dwordx16 s[4:19], s[{rWS}:{rWS+1}], s{sQ} glc
        s_add_u32 s{sCnt}, s{sCnt}, 1
        s_cmp_ge_u32 s{sCnt}, {p.maxspin}
        s_cbranch_scc1 L_dfd
        s_waitcnt lgkmcnt(0)""")
        for k in range(8): a(f"s_cmp_lg_u64 s[{4+2*k}:{5+2*k}], s[{sQ+6}:{sQ+7}]\ns_cbranch_scc1 L_df")
        a("L_dfd:\ns_waitcnt lgkmcnt(0)\ns_barrier")
        stamp(9)
    elif p.dflag >= 3:
        for k in range(p.dsamp):
            a(f"s_add_u32 s{4+k}, s2, {(16//p.dsamp)*k}\ns_and_b32 s{4+k}, s{4+k}, 15\ns_lshl_b32 s{sQ}, s{sWave}, 4\ns_add_u32 s{4+k}, s{4+k}, s{sQ}\ns_lshl_b32 s{4+k}, s{4+k}, 7\ns_add_u32 s{4+k}, s{4+k}, {HD}")
        spoll_all([4+k for k in range(p.dsamp)], 12)
        stamp(9)
    L = poll_begin()
    a(f"""buffer_load_dwordx4 v[20:23], v10, {R(rWS)}, s{sT0} offen sc1
    s_mov_b64 exec, -1
    s_waitcnt vmcnt(0)""")
    chk4(24, 20, True)
    poll_end_masked(L, 24, '0xff')
    stamp(10)
    treduce(20)
    a(f"""v_add_f32_dpp v20, v20, v20 row_ror:4 row_mask:0xf bank_mask:0xf
    v_add_f32_dpp v20, v20, v20 row_ror:8 row_mask:0xf bank_mask:0xf
    ds_write_b32 v13, v20
    s_waitcnt lgkmcnt(0)
    s_barrier
    s_cmp_lg_u32 s{sWave}, 0
    s_cbranch_scc1 L_Y_end
    ds_read_b128 v[20:23], v18
    ds_read_b128 v[24:27], v18 offset:16
    v_lshlrev_b32 v16, 16, v16
    v_sub_f32 v17, 1.0, v17
    v_mul_f32 v16, v16, v17
    s_waitcnt lgkmcnt(0)
    v_add_f32 v20, v20, v24
    v_add_f32 v21, v21, v25
    v_add_f32 v22, v22, v26
    v_add_f32 v23, v23, v27
    v_add_f32 v20, v20, v21
    v_add_f32 v22, v22, v23
    v_add_f32 v20, v20, v16
    v_add_f32 v20, v20, v22
    v_cvt_pk_bf16_f32 v20, v20, v20
    s_mov_b64 exec, 0xffff
    buffer_store_short v20, v15, {R(rC)}, s{sT2} offen {p.outf.replace('_',' ')}
    s_cmp_lg_u32 s2, 0
    s_cbranch_scc1 L_Y_end
    s_mov_b64 exec, 1
    v_mov_b32 v21, s{sT[0]}
    v_mov_b32 v22, 0
    buffer_store_dword v21, v22, {R(rWS)}, 0 offen offset:{EPOCH} sc1""")
    a.label("L_Y_end")
    if p.stamp: a("s_add_u32 s2, s2, 128")
    stamp(11)
    finish('Y')
    a.label("L_exit")
    a("s_endpgm")
    return a.finalize()

HEADER = open('gated_mix__compressed_kv_cla__dense_activation_gelu__decode.s.ref').read().split('; Override')[0]

DOC = '''; ---------------------------------------------------------------------------------------------
; ---------------------------------------------------------------------------------------------
'''

def emit(path, p=P):
    body = build(p)
    s = HEADER + f"""; @launch grid=(256,1,1) block=(512,1,1) lds={LDS_BYTES}
{DOC}.amdgcn_target "amdgcn-amd-amdhsa--gfx950"
.text
.globl {KNAME}
.p2align 8
.type {KNAME},@function
{KNAME}:
{body}.section .rodata,"a"
.p2align 6
.amdhsa_kernel {KNAME}
  .amdhsa_next_free_vgpr 256
  .amdhsa_next_free_sgpr 102
  .amdhsa_accum_offset 256
  .amdhsa_group_segment_fixed_size 0
  .amdhsa_kernarg_size 120
  .amdhsa_user_sgpr_count 2
  .amdhsa_user_sgpr_kernarg_segment_ptr 1
  .amdhsa_system_sgpr_workgroup_id_x 1
.end_amdhsa_kernel
"""
    open(path, 'w').write(s)

if __name__ == '__main__':
    out = sys.argv[1]
    for kv in sys.argv[2:]:
        k, v = kv.split('=')
        setattr(P, k, type(getattr(P, k))(v))
    emit(out)
```
